```python
import torch

def _softmax(x, axis=-1):
    return torch.softmax(x, dim=axis)

def _gelu(x):
    return torch.nn.functional.gelu(x, approximate='tanh')

def _silu(x):
    return torch.nn.functional.silu(x)

def _sigmoid(x):
    return torch.sigmoid(x)

def _layernorm(x, axis=-1, eps=1e-05):
    m = x.mean(dim=axis, keepdim=True)
    v = x.var(dim=axis, keepdim=True, unbiased=False)
    return (x - m) / torch.sqrt(v + eps)

def _scatter_add(tgt, idx, src, axis=0):
    return tgt.clone().index_add_(axis, idx, src)

def _segment_sum(src, seg, n):
    out = torch.zeros((n,) + src.shape[1:], dtype=src.dtype)
    return out.index_add_(0, seg, src)

def _pad(x, pw):
    flat = tuple((v for pair in reversed(pw) for v in pair))
    return torch.nn.functional.pad(x, flat)
kernel_name = 'adaLN_cond__gqa_block_cached__geglu_ffn__decode'

def setup_inputs():

    _w = lambda a: (lambda t: t.to(torch.bfloat16) if t.is_floating_point() else t)(torch.as_tensor(a))

    def _A_setup():
        B, Sq, D = (4, 1, 448)
        Hq, Hkv, Sk, Dh = (16, 8, 4096, 256)
        assert Hq % Hkv == 0, (Hq, Hkv)
        return {'x': _w((lambda *s: torch.randn(*s, dtype=torch.bfloat16) * 0.05)(B, Sq, D)), 'k_cache': _w((lambda *s: torch.randn(*s, dtype=torch.bfloat16) * 3.2)(B, Hkv, Sk, Dh)), 'v_cache': _w((lambda *s: torch.randn(*s, dtype=torch.bfloat16) * 0.4)(B, Hkv, Sk, Dh)), 'wq': _w((lambda *s: torch.randn(*s, dtype=torch.bfloat16) * 3.2)(D, Hq * Dh) * D ** (-0.5)), 'wo': _w((lambda *s: torch.randn(*s, dtype=torch.bfloat16) * 0.4)(Hq * Dh, D) * (Hq * Dh) ** (-0.5))}
    _A_in = _A_setup()

    def _B_setup():
        B, S, D, F = (4, 1, 448, 1792)
        return {'x': _w((lambda *s: torch.randn(*s, dtype=torch.bfloat16) * 0.05)(B, S, D)), 'w_gate': _w((lambda *s: torch.randn(*s, dtype=torch.bfloat16) * 0.05)(D, F)), 'w_up': _w((lambda *s: torch.randn(*s, dtype=torch.bfloat16) * 0.05)(D, F)), 'w_down': _w((lambda *s: torch.randn(*s, dtype=torch.bfloat16) * 0.05)(F, D))}
    _B_in = _B_setup()
    return {'A_x': _A_in['x'], 'A_k_cache': _A_in['k_cache'], 'A_v_cache': _A_in['v_cache'], 'A_wq': _A_in['wq'], 'A_wo': _A_in['wo'], 'B_x': _B_in['x'], 'B_w_gate': _B_in['w_gate'], 'B_w_up': _B_in['w_up'], 'B_w_down': _B_in['w_down'], 'c': _w((lambda *s: torch.randn(*s, dtype=torch.bfloat16) * 0.2)(4, 448) * 8.0), 'w_mod': _w((lambda *s: torch.randn(*s, dtype=torch.bfloat16) * 0.2)(448, 6 * 448) * 448 ** (-0.5) * 8.0)}

def reference(A_x, A_k_cache, A_v_cache, A_wq, A_wo, B_x, B_w_gate, B_w_up, B_w_down, c, w_mod):

    def _A_ref(x, k_cache, v_cache, wq, wo):
        B, Sq, D = x.shape
        Hq, Dh = (16, 256)
        Hkv = k_cache.shape[1]
        rep = Hq // Hkv
        q = (lambda x, *d: x.permute(*d))((x @ wq).reshape(B, Sq, Hq, Dh), 0, 2, 1, 3)
        k = (lambda x, n, axis: torch.repeat_interleave(x, n, dim=axis))(k_cache, rep, axis=1)
        v = (lambda x, n, axis: torch.repeat_interleave(x, n, dim=axis))(v_cache, rep, axis=1)
        scores = torch.einsum('bhqd,bhkd->bhqk', q, k) * Dh ** (-0.5)
        p = _softmax(scores, axis=-1)
        o = torch.einsum('bhqk,bhkd->bhqd', p, v)
        return (lambda x, *d: x.permute(*d))(o, 0, 2, 1, 3).reshape(B, Sq, Hq * Dh) @ wo

    def _B_ref(x, w_gate, w_up, w_down):
        return _gelu(x @ w_gate) * (x @ w_up) @ w_down
    x = A_x
    mod = (_silu(c) @ w_mod).reshape(c.shape[0], 6, 1, -1)
    sa, ca, ga, sb, cb, gb = (mod[:, 0].clone(), mod[:, 1].clone(), mod[:, 2].clone(), mod[:, 3].clone(), mod[:, 4].clone(), mod[:, 5].clone())
    h = _layernorm(x, axis=-1) * (1 + ca) + sa
    x = x + ga * _A_ref(h, A_k_cache, A_v_cache, A_wq, A_wo)
    h = _layernorm(x, axis=-1) * (1 + cb) + sb
    x = x + gb * _B_ref(h, B_w_gate, B_w_up, B_w_down)
    return x
```

```python
import sys, math

NAME = "adaLN_cond__gqa_block_cached__geglu_ffn__decode"

WS_E   = 0x0
WS_MOD = 0x1000
WS_Q   = 0x10000
WS_X1  = 0x20000
WS_O   = 0x40000
WS_Y   = 0x140000
WS_Z   = 0x240000
WS_STAMP = 0x400000
WS_SIZE = 0x800000

L_WO = 0
L_WG = 57344
L_WU = L_WG + 14336
L_WD = L_WU + 14336
L_WM = L_WD + 14336
L_WQ = L_WM + 14336
L_SC = L_WQ + 14336
L_H  = L_SC + 3584
L_Q  = L_H + 3584
L_P  = L_Q + 1024
L_RED = L_P + 2048
L_OL = L_RED + 128
L_OB = L_OL + 8192
L_G  = L_OB + 128
L_FLAG = L_G + 128
L_END = L_FLAG + 64
L_M1 = L_OL
L_M2 = L_WM

LOG2E = 1.4426950408889634
def f2u(x):
    import struct
    return struct.unpack("<I", struct.pack("<f", x))[0]

class G:
    def __init__(self, opt):
        self.L = []
        self.o = opt
        self.lab = 0
    def A(self, s):
        self.L.append("    " + s)
    def lbl(self, s):
        self.L.append(s + ":")
    def newlab(self, p="L"):
        self.lab += 1
        return f"{p}_{self.lab}"
    def nop(self, n):
        while n > 0:
            k = min(n, 16)
            self.A(f"s_nop {k-1}")
            n -= k

def v(a, n=1):
    return f"v{a}" if n == 1 else f"v[{a}:{a+n-1}]"
def s(a, n=1):
    return f"s{a}" if n == 1 else f"s[{a}:{a+n-1}]"

sWAVE = 3
sK, sV, sWS, sA, sB = 4, 8, 12, 16, 20
sS, sB_, sKVH, sN = 24, 25, 26, 27
sTAG, sRETRY = 28, 29
sKB, sVB = 30, 31
sROT = 32
sT0, sT1, sT2, sT3 = 33, 34, 35, 36
sM1, sM2, sM3 = 38, 40, 42
sM56 = 44
sTMP = 46
sSTART, sSTEP, sLDS = 48, 49, 50
sPLO, sPHI = 51, 52
sC = 53
sHI = 54
sROLE = 55
sF = 56
sGRP = 57
sPX = 58
sEX = 60
sST = 62
P_X, P_K, P_V, P_WQ, P_WO, P_BX, P_WG, P_WU, P_WD, P_C, P_WM, P_OUT, P_DBG, P_WS = [64 + 2*i for i in range(14)]

vTID, vL, vJ, vGR, vKO, vVO, vL16, vDM = 0, 1, 2, 3, 4, 5, 6, 7
vE = 8
vT = 9
vQF = 16
vSD = 48
vVE = 64
vK = 128

def srd(g, r, ptr, size):
    g.A(f"s_mov_b32 s{r}, s{ptr}")
    g.A(f"s_mov_b32 s{r+1}, s{ptr+1}")
    g.A(f"s_mov_b32 s{r+2}, {size}")
    g.A(f"s_mov_b32 s{r+3}, 0x20000")

DPP = "row_mask:0xf bank_mask:0xf"
def wave_reduce(g, op, regs, tmps):
    n = len(regs)
    for pat in ("quad_perm:[1,0,3,2]", "quad_perm:[2,3,0,1]", "row_half_mirror", "row_mirror"):
        g.nop(max(0, 2 - (n - 1)))
        for r in regs:
            g.A(f"{op} v{r}, v{r}, v{r} {pat} {DPP}")
    for sw in ("v_permlane16_swap_b32", "v_permlane32_swap_b32"):
        for r, t in zip(regs, tmps):
            g.A(f"v_mov_b32 v{t}, v{r}")
        g.nop(2)
        for r, t in zip(regs, tmps):
            g.A(f"{sw} v{r}, v{t}")
        g.nop(1)
        for r, t in zip(regs, tmps):
            g.A(f"{op} v{r}, v{r}, v{t}")

def rnd2(g, a, b, t):
    g.A(f"v_cvt_pk_bf16_f32 v{t}, v{a}, v{b}")
    g.A(f"v_lshlrev_b32 v{a}, 16, v{t}")
    g.A(f"v_and_b32 v{b}, s{sHI}, v{t}")
def rnd1(g, a):
    g.A(f"v_cvt_pk_bf16_f32 v{a}, v{a}, v{a}")
    g.A(f"v_lshlrev_b32 v{a}, 16, v{a}")

def unpack(g, src, lo, hi):
    g.A(f"v_lshlrev_b32 v{lo}, 16, v{src}")
    g.A(f"v_and_b32 v{hi}, s{sHI}, v{src}")

def layernorm(g, X, t0, t1, t2):
    g.A(f"v_add_f32 v{t0}, v{X}, v{X+1}")
    g.A(f"v_add_f32 v{t1}, v{X+2}, v{X+3}")
    g.A(f"v_add_f32 v{t0}, v{t0}, v{X+4}")
    g.A(f"v_add_f32 v{t1}, v{t1}, v{X+5}")
    g.A(f"v_add_f32 v{t0}, v{t0}, v{X+6}")
    g.A(f"v_add_f32 v{t1}, v{t1}, v{X+7}")
    g.A(f"v_add_f32 v{t0}, v{t0}, v{t1}")
    wave_reduce(g, "v_add_f32", [t0], [t1])
    g.A(f"v_mul_f32 v{t0}, {f2u(1.0/448):#x}, v{t0}")
    g.A(f"v_sub_f32 v{t2}, v{X}, v{t0}")
    g.A(f"v_mul_f32 v{t1}, v{t2}, v{t2}")
    for i in range(1, 8):
        g.A(f"v_sub_f32 v{t2}, v{X+i}, v{t0}")
        g.A(f"v_fmac_f32 v{t1}, v{t2}, v{t2}")
    g.A(f"v_cndmask_b32 v{t1}, 0, v{t1}, s[{sM56}:{sM56+1}]")
    wave_reduce(g, "v_add_f32", [t1], [t2])
    g.A(f"v_mul_f32 v{t1}, {f2u(1.0/448):#x}, v{t1}")
    rnd2(g, t0, t1, t2)
    g.A(f"v_add_f32 v{t1}, {f2u(1e-5):#x}, v{t1}")
    rnd1(g, t1)
    g.A(f"v_sqrt_f32 v{t1}, v{t1}")
    g.nop(1)
    rnd1(g, t1)
    g.A(f"v_rcp_f32 v{t1}, v{t1}")
    for i in range(8):
        g.A(f"v_sub_f32 v{X+i}, v{X+i}, v{t0}")
    for i in range(0, 8, 2):
        rnd2(g, X+i, X+i+1, t2)
    for i in range(8):
        g.A(f"v_mul_f32 v{X+i}, v{X+i}, v{t1}")
    for i in range(0, 8, 2):
        rnd2(g, X+i, X+i+1, t2)

def modulate_pack(g, X, OC, SH, D, t):
    for i in range(8):
        g.A(f"v_mul_f32 v{X+i}, v{X+i}, v{OC+i}")
    for i in range(0, 8, 2):
        rnd2(g, X+i, X+i+1, t)
    for i in range(8):
        g.A(f"v_add_f32 v{X+i}, v{X+i}, v{SH+i}")
    for i in range(0, 8, 2):
        g.A(f"v_cvt_pk_bf16_f32 v{D+i//2}, v{X+i}, v{X+i+1}")

def dma14(g, pol, vm):
    for i in range(14):
        vm.pre()
        g.A(f"s_mov_b32 m0, s{sLDS}")
        g.A(f"s_add_u32 s{sLDS}, s{sLDS}, 1024")
        g.A(f"buffer_load_dwordx4 v{vDM}, s[{sA}:{sA+3}], s{sSTART} offen{pol} lds")
        g.A(f"s_add_u32 s{sSTART}, s{sSTART}, s{sSTEP}")

class VM:
    def __init__(self, g, W, n0=0):
        self.g, self.W, self.n = g, W, n0
    def pre(self):
        if self.W and self.n >= self.W:
            self.g.A(f"s_waitcnt vmcnt({self.W-1})")
            self.n = self.W - 1
        self.n += 1

def k_loads(g, vm, pol):
    for t in range(4):
        g.A(f"s_add_u32 s{sT0}, s{sROT}, {t}")
        g.A(f"s_and_b32 s{sT0}, s{sT0}, 3")
        g.A(f"s_lshl_b32 s{sT0}, s{sT0}, 13")
        g.A(f"s_add_u32 s{sT0}, s{sT0}, s{sKB}")
        for j in range(8):
            vm.pre()
            r = vK + 32*t + 4*j
            g.A(f"buffer_load_dwordx4 v[{r}:{r+3}], v{vKO}, s[{sK}:{sK+3}], s{sT0} offen offset:{64*j}{pol}")

def v_dst(u):
    return vVE + 32*u

def v_loads(g, vm, pol, groups):
    for u in groups:
        g.A(f"s_add_u32 s{sT0}, s{sROT}, {u}")
        g.A(f"s_and_b32 s{sT0}, s{sT0}, 3")
        g.A(f"s_lshl_b32 s{sT0}, s{sT0}, 14")
        g.A(f"s_add_u32 s{sT0}, s{sT0}, s{sVB}")
        for r in range(8):
            vm.pre()
            d = v_dst(u) + 4*r
            g.A(f"buffer_load_dwordx4 v[{d}:{d+3}], v{vVO}, s[{sV}:{sV+3}], s{sT0} offen offset:{512*r}{pol}")

def get_tag(g):
    g.A(f"v_readfirstlane_b32 s{sTAG}, v{vE}")
    g.A(f"s_add_u32 s{sTAG}, s{sTAG}, 0x9e3779b9")

def check_tags(g, regs, fail_label, mask=None, t=vT):
    g.A(f"v_xor_b32 v{t}, s{sTAG}, v{regs[0]}")
    for r in regs[1:]:
        g.A(f"v_bitop3_b32 v{t}, v{t}, v{r}, s{sTAG} bitop3:0xf6")
    g.A(f"v_cmp_ne_u32 vcc, 0, v{t}")
    if mask is not None:
        g.A(f"s_and_b64 vcc, vcc, s[{mask}:{mask+1}]")
    ok = g.newlab("L_ok")
    g.A(f"s_cbranch_vccz {ok}")
    g.A(f"s_sub_u32 s{sRETRY}, s{sRETRY}, 1")
    g.A(f"s_cbranch_scc0 {fail_label}")
    g.A(f"s_mov_b32 s{sRETRY}, 0")
    g.lbl(ok)

def mod_fetch14(g, ws_off, lab, vaddr):
    g.lbl(lab)
    for i in range(14):
        if i % 4 == 0:
            g.A(f"s_mov_b32 s{sT0}, {ws_off + i*1024}")
        g.A(f"buffer_load_dwordx4 v[{64+4*i}:{67+4*i}], v{vL16}, s[{sWS}:{sWS+3}], s{sT0} offen offset:{(i%4)*1024} sc1")
    g.A("s_waitcnt vmcnt(0)")
    check_tags(g, [67+4*i for i in range(14)], lab)
    for i in range(14):
        g.A(f"ds_write_b64 v{vaddr}, v[{64+4*i}:{65+4*i}] offset:{512*i}")
    g.A("s_waitcnt lgkmcnt(0)")

def gemv_publish(g, lds_a, lds_b, ws_off_sreg):
    aA, aB = vT, vT+1
    FA, FB, ACC = 16, 64, 48
    g.A(f"v_and_b32 v{aA}, 3, v{vL}")
    g.A(f"v_mul_u32_u24 v{aA}, 896, v{aA}")
    g.A(f"v_lshl_add_u32 v{aA}, v{vGR}, 4, v{aA}")
    g.A(f"v_add_u32 v{aA}, {lds_a}, v{aA}")
    g.A(f"v_lshlrev_b32 v{aB}, 3, v{vJ}")
    g.A(f"v_lshl_add_u32 v{aB}, v{vGR}, 8, v{aB}")
    g.A(f"v_add_u32 v{aB}, {lds_b}, v{aB}")
    for half in range(2):
        for i in range(7):
            ks = half*7 + i
            g.A(f"ds_read_b128 v[{FA+4*i}:{FA+4*i+3}], v{aA} offset:{ks*64}")
        g.A("s_waitcnt lgkmcnt(0)")
        for i in range(7):
            ks = half*7 + i
            g.A(f"ds_read_b64_tr_b16 v[{FB+4*i}:{FB+4*i+1}], v{aB} offset:{ks*1024}")
            g.A(f"ds_read_b64_tr_b16 v[{FB+4*i+2}:{FB+4*i+3}], v{aB} offset:{ks*1024+128}")
        g.A("s_waitcnt lgkmcnt(0)")
        for i in range(7):
            c = "0" if (half == 0 and i == 0) else f"v[{ACC}:{ACC+3}]"
            g.A(f"v_mfma_f32_16x16x32_bf16 v[{ACC}:{ACC+3}], v[{FA+4*i}:{FA+4*i+3}], v[{FB+4*i}:{FB+4*i+3}], {c}")
        g.nop(8)
    g.A(f"v_cvt_pk_bf16_f32 v{ACC+4}, v{ACC}, v{ACC+1}")
    g.A(f"v_cvt_pk_bf16_f32 v{ACC+5}, v{ACC+2}, v{ACC+3}")
    g.A(f"v_mov_b32 v{ACC+6}, 0")
    g.A(f"v_mov_b32 v{ACC+7}, s{sTAG}")
    g.A(f"s_mov_b64 exec, 0xffff")
    g.A(f"buffer_store_dwordx4 v[{ACC+4}:{ACC+7}], v{vL16}, s[{sWS}:{sWS+3}], s{ws_off_sreg} offen sc1")
    g.A(f"s_mov_b64 exec, -1")
    g.nop(2)

def stamp(g, idx):
    if not g.o.get("stamps"): return
    g.A(f"s_memrealtime s[{sST}:{sST+1}]")
    g.A(f"s_lshl_b32 s{sT3}, s2, 3")
    g.A(f"s_add_u32 s{sT3}, s{sT3}, s{sWAVE}")
    g.A(f"s_lshl_b32 s{sT3}, s{sT3}, 6")
    g.A(f"s_add_u32 s{sT3}, s{sT3}, {WS_STAMP + idx*4}")
    g.A("s_waitcnt lgkmcnt(0)")
    g.A(f"v_mov_b32 v254, s{sST}") if False else None
    g.A(f"s_mov_b32 s{92+idx}, s{sST}")

def flush_stamps(g, n):
    if not g.o.get("stamps"): return
    g.A(f"s_lshl_b32 s{sT3}, s2, 3")
    g.A(f"s_add_u32 s{sT3}, s{sT3}, s{sWAVE}")
    g.A(f"s_lshl_b32 s{sT3}, s{sT3}, 6")
    g.A(f"s_add_u32 s{sT3}, s{sT3}, {WS_STAMP}")
    g.A("s_mov_b64 exec, 1")
    g.A("v_mov_b32 v15, 0")
    for i in range(n):
        g.A(f"v_mov_b32 v14, s{92+i}")
        g.A(f"buffer_store_dword v14, v15, s[{sWS}:{sWS+3}], s{sT3} offen offset:{4*i}")
        g.nop(1)

NSTAMP = 10

def build(opt):
    g = G(opt)
    A = g.A
    polKV = opt.get("polKV", " nt")
    polW = opt.get("polW", "")
    W = opt.get("W", 8)
    W0 = opt.get("W0", 16)
    hdr = open(f"cdna_kernels/{NAME}.s.ref").read().split("\n")
    for line in hdr:
        if line.startswith("; @launch"):
            g.L.append(f"; @launch grid=(256,1,1) block=(512,1,1) lds={L_END}")
            break
        g.L.append(line)
    g.L.append('.amdgcn_target "amdgcn-amd-amdhsa--gfx950"')
    g.L.append(".text")
    g.L.append(f".globl {NAME}_kernel")
    g.L.append(".p2align 8")
    g.L.append(f".type {NAME}_kernel,@function")
    g.lbl(f"{NAME}_kernel")
    A("s_cmp_ge_u32 s2, 256")
    A("s_cbranch_scc1 L_end")
    A("s_load_dwordx16 s[64:79], s[0:1], 0")
    A("s_load_dwordx8 s[80:87], s[0:1], 64")
    A("s_load_dwordx4 s[88:91], s[0:1], 96")
    if opt.get("stamps"):
        for i in range(NSTAMP): A(f"s_mov_b32 s{92+i}, 0")
    A(f"v_mov_b32 v{vT}, {L_FLAG}")
    A(f"v_mov_b32 v{vT+1}, 0")
    A(f"ds_write_b32 v{vT}, v{vT+1}")
    A(f"v_lshrrev_b32 v{vL}, 6, v0")
    A(f"s_and_b32 s{sS}, s2, 7")
    A(f"v_readfirstlane_b32 s{sWAVE}, v{vL}")
    A(f"v_and_b32 v{vL}, 63, v0")
    A(f"v_and_b32 v{vJ}, 15, v0")
    A(f"v_lshrrev_b32 v{vGR}, 4, v{vL}")
    A(f"v_lshlrev_b32 v{vKO}, 9, v{vJ}")
    A(f"v_lshl_add_u32 v{vKO}, v{vGR}, 4, v{vKO}")
    A(f"v_lshlrev_b32 v{vVO}, 12, v{vGR}")
    A(f"v_lshl_add_u32 v{vVO}, v{vJ}, 4, v{vVO}")
    A(f"v_lshlrev_b32 v{vL16}, 4, v{vL}")
    A(f"s_lshr_b32 s{sN}, s2, 3")
    A(f"s_and_b32 s{sB_}, s{sN}, 3")
    A(f"s_lshr_b32 s{sKVH}, s{sN}, 2")
    A(f"s_lshl_b32 s{sGRP}, s{sB_}, 3")
    A(f"s_add_u32 s{sGRP}, s{sGRP}, s{sKVH}")
    A(f"s_lshl_b32 s{sT0}, s{sGRP}, 21")
    A(f"s_lshl_b32 s{sT1}, s{sS}, 18")
    A(f"s_add_u32 s{sT0}, s{sT0}, s{sT1}")
    A(f"s_lshl_b32 s{sT1}, s{sWAVE}, 15")
    A(f"s_add_u32 s{sKB}, s{sT0}, s{sT1}")
    A(f"s_lshr_b32 s{sT1}, s{sWAVE}, 1")
    A(f"s_lshl_b32 s{sT1}, s{sT1}, 16")
    A(f"s_add_u32 s{sVB}, s{sT0}, s{sT1}")
    A(f"s_and_b32 s{sT1}, s{sWAVE}, 1")
    A(f"s_lshl_b32 s{sT1}, s{sT1}, 8")
    A(f"s_add_u32 s{sVB}, s{sVB}, s{sT1}")
    A(f"s_add_u32 s{sROT}, s{sN}, s{sWAVE}")
    A(f"s_and_b32 s{sROT}, s{sROT}, 3")
    A(f"s_mov_b32 s{sRETRY}, 0x40000")
    A(f"s_mov_b32 s{sM1}, 0xffff0000"); A(f"s_mov_b32 s{sM1+1}, 0")
    A(f"s_mov_b32 s{sM2}, 0"); A(f"s_mov_b32 s{sM2+1}, 0xffff")
    A(f"s_mov_b32 s{sM3}, 0"); A(f"s_mov_b32 s{sM3+1}, 0xffff0000")
    A(f"s_mov_b32 s{sM56}, -1"); A(f"s_mov_b32 s{sM56+1}, 0x00ffffff")
    A(f"s_mov_b32 s{sPLO}, 0x05040100"); A(f"s_mov_b32 s{sPHI}, 0x07060302")
    A(f"s_mov_b32 s{sC}, {f2u(0.0625*LOG2E):#x}")
    A(f"s_mov_b32 s{sHI}, 0xffff0000")
    A(f"s_lshr_b32 s{sPX}, s{sS}, 1")
    A(f"s_and_b32 s{sT1}, s{sS}, 1")
    A(f"s_lshl_b32 s{sT1}, s{sT1}, 2")
    A(f"s_add_u32 s{sPX}, s{sPX}, s{sT1}")
    A(f"s_mov_b32 s{sROLE}, 0")
    A(f"s_mov_b32 s{sF}, s2")
    A(f"s_cmp_lt_u32 s2, 112")
    A(f"s_cselect_b32 s{sROLE}, 1, 0")
    A(f"s_cmp_lt_u32 s{sN}, 16")
    A(f"s_cbranch_scc1 L_role_done")
    A(f"s_sub_u32 s{sT1}, s{sKVH}, 4")
    A(f"s_lshl_b32 s{sT1}, s{sT1}, 3")
    A(f"s_add_u32 s{sT1}, s{sT1}, s{sPX}")
    A(f"s_cmp_lt_u32 s{sT1}, 28")
    A(f"s_cselect_b32 s{sROLE}, 2, 0")
    A(f"s_lshl_b32 s{sF}, s{sT1}, 2")
    A(f"s_add_u32 s{sF}, s{sF}, s{sB_}")
    g.lbl("L_role_done")
    A("s_waitcnt lgkmcnt(0)")
    A("s_barrier")
    srd(g, sWS, P_WS, WS_SIZE)
    srd(g, sK, P_K, 64 << 20)
    srd(g, sV, P_V, 64 << 20)
    A(f"v_mov_b32 v{vT}, 0")
    A(f"buffer_load_dword v{vE}, v{vT}, s[{sWS}:{sWS+3}], 0 offen sc1")
    stamp(g, 0)
    A(f"s_cmp_eq_u32 s{sWAVE}, 0")
    A("s_cbranch_scc1 L_w0")
    A(f"s_cmp_eq_u32 s{sWAVE}, 1")
    A("s_cbranch_scc1 L_w1")

    vm = VM(g, W, 1)
    k_loads(g, vm, polKV)
    v_loads(g, vm, polKV, [0, 1])
    A(f"s_cmp_lt_u32 s{sWAVE}, 6")
    A("s_cbranch_scc0 L_dma_ffn")
    srd(g, sA, P_WO, 4096*896)
    A(f"s_sub_u32 s{sT1}, s{sWAVE}, 2")
    A(f"s_mul_i32 s{sLDS}, s{sT1}, 14336")
    A(f"s_add_u32 s{sLDS}, s{sLDS}, {L_WO}")
    A(f"s_lshr_b32 s{sT2}, s{sT1}, 1")
    A(f"s_lshl_b32 s{sT0}, s{sKVH}, 1")
    A(f"s_add_u32 s{sT0}, s{sT0}, s{sT2}")
    A(f"s_lshl_b32 s{sT0}, s{sT0}, 8")
    A(f"s_lshl_b32 s{sT2}, s{sS}, 5")
    A(f"s_add_u32 s{sT0}, s{sT0}, s{sT2}")
    A(f"s_mul_i32 s{sSTART}, s{sT0}, 896")
    A(f"s_and_b32 s{sT1}, s{sT1}, 1")
    A(f"s_mul_i32 s{sT1}, s{sT1}, 14336")
    A(f"s_add_u32 s{sSTART}, s{sSTART}, s{sT1}")
    A(f"s_mov_b32 s{sSTEP}, 1024")
    A(f"v_mov_b32 v{vDM}, v{vL16}")
    A(f"s_mov_b32 s{sT3}, 0")
    A("s_branch L_dma_go")
    g.lbl("L_dma_ffn")
    A(f"s_cmp_eq_u32 s{sROLE}, 2")
    A("s_cbranch_scc0 L_dma_done")
    srd(g, sA, P_WG, 448*3584)
    A(f"s_mov_b32 s{sLDS}, {L_WG}")
    A(f"s_mov_b32 s{sT3}, 1")
    A(f"s_cmp_eq_u32 s{sWAVE}, 7")
    A("s_cbranch_scc0 L_dma_g")
    A(f"s_mov_b32 s{sA}, s{P_WU}")
    A(f"s_mov_b32 s{sA+1}, s{P_WU+1}")
    A(f"s_mov_b32 s{sLDS}, {L_WU}")
    A(f"s_mov_b32 s{sT3}, 0")
    g.lbl("L_dma_g")
    A(f"s_lshl_b32 s{sSTART}, s{sF}, 5")
    A(f"s_mov_b32 s{sSTEP}, {32*3584}")
    A(f"v_lshrrev_b32 v{vDM}, 1, v{vL}")
    A(f"v_mul_u32_u24 v{vDM}, 3584, v{vDM}")
    A(f"v_and_b32 v{vT}, 1, v{vL}")
    A(f"v_lshl_add_u32 v{vDM}, v{vT}, 4, v{vDM}")
    g.lbl("L_dma_go")
    dma14(g, polW, VM(g, W, W))
    A(f"s_cmp_eq_u32 s{sT3}, 0")
    A("s_cbranch_scc1 L_dma_done")
    A(f"s_mov_b32 s{sA}, s{P_WD}")
    A(f"s_mov_b32 s{sA+1}, s{P_WD+1}")
    A(f"s_mov_b32 s{sLDS}, {L_WD}")
    A(f"s_mul_i32 s{sSTART}, s{sF}, 14336")
    A(f"s_mov_b32 s{sSTEP}, 1024")
    A(f"v_mov_b32 v{vDM}, v{vL16}")
    A(f"s_mov_b32 s{sT3}, 0")
    A("s_branch L_dma_go")
    g.lbl("L_dma_done")
    get_tag(g)
    A("s_branch L_qwait")

    g.lbl("L_w0")
    A(f"s_lshl_b32 s{sT1}, s{sKVH}, 3")
    A(f"s_add_u32 s{sT1}, s{sT1}, s{sPX}")
    A(f"s_cmp_lt_u32 s{sT1}, 42")
    A("s_cbranch_scc0 L_w0_k")
    A(f"s_lshl_b32 s{sT2}, s{sT1}, 2")
    A(f"s_add_u32 s{sT2}, s{sT2}, s{sB_}")
    srd(g, sB, P_C, 3584)
    for i in range(4):
        A(f"buffer_load_dwordx4 v[{16+4*i}:{19+4*i}], v{vL16}, s[{sB}:{sB+3}], 0 offen offset:{1024*i}")
    srd(g, sA, P_WM, 448*5376)
    A(f"s_lshl_b32 s{sSTART}, s{sT2}, 5")
    A(f"s_mov_b32 s{sSTEP}, {32*5376}")
    A(f"s_mov_b32 s{sLDS}, {L_WM}")
    A(f"v_lshrrev_b32 v{vDM}, 1, v{vL}")
    A(f"v_mul_u32_u24 v{vDM}, 5376, v{vDM}")
    A(f"v_and_b32 v{vT}, 1, v{vL}")
    A(f"v_lshl_add_u32 v{vDM}, v{vT}, 4, v{vDM}")
    dma14(g, polW, VM(g, 0))
    A("s_waitcnt vmcnt(14)")
    get_tag(g)
    for i in range(16):
        lo, hi = 64 + 2*i, 65 + 2*i
        unpack(g, 16+i, lo, hi)
    for i in range(32):
        A(f"v_mul_f32 v{96+i}, {f2u(-LOG2E):#x}, v{64+i}")
    for i in range(32):
        A(f"v_exp_f32 v{96+i}, v{96+i}")
    for i in range(32):
        A(f"v_add_f32 v{96+i}, 1.0, v{96+i}")
    for i in range(32):
        A(f"v_rcp_f32 v{96+i}, v{96+i}")
    for i in range(32):
        A(f"v_mul_f32 v{64+i}, v{64+i}, v{96+i}")
    for i in range(16):
        A(f"v_cvt_pk_bf16_f32 v{16+i}, v{64+2*i}, v{65+2*i}")
    A(f"v_add_u32 v{vT}, {L_SC}, v{vL16}")
    for i in range(3):
        A(f"ds_write_b128 v{vT}, v[{16+4*i}:{19+4*i}] offset:{1024*i}")
    A("s_mov_b32 exec_hi, 0")
    A(f"ds_write_b128 v{vT}, v[28:31] offset:3072")
    A("s_mov_b64 exec, -1")
    A("s_waitcnt vmcnt(0) lgkmcnt(0)")
    A(f"s_lshl_b32 s{sT2}, s{sT2}, 8")
    A(f"s_add_u32 s{sT2}, s{sT2}, {WS_MOD}")
    gemv_publish(g, L_SC, L_WM, sT2)
    stamp(g, 1)
    g.lbl("L_w0_k")
    vm = VM(g, W0, 1)
    k_loads(g, vm, polKV)
    get_tag(g)
    A(f"s_cmp_eq_u32 s{sROLE}, 0")
    A("s_cbranch_scc1 L_w0_v")
    A(f"v_lshlrev_b32 v{vT+3}, 3, v{vL}")
    A(f"v_add_u32 v{vT+3}, {L_M2}, v{vT+3}")
    A(f"s_cmp_eq_u32 s{sROLE}, 1")
    A("s_cbranch_scc1 L_w0_red")
    mod_fetch14(g, WS_MOD + 3*448*16, "L_mod2poll", vT+3)
    A("s_branch L_w0_v")
    g.lbl("L_w0_red")
    A(f"s_mul_i32 s{sT0}, s{sF}, 2341")
    A(f"s_lshr_b32 s{sT0}, s{sT0}, 16")
    A(f"s_mul_i32 s{sT0}, s{sT0}, 28")
    A(f"s_sub_u32 s{sT0}, s{sF}, s{sT0}")
    A(f"s_lshl_b32 s{sT0}, s{sT0}, 8")
    A(f"s_add_u32 s{sT0}, s{sT0}, {WS_MOD + 2*448*16}")
    A(f"v_and_b32 v{vT+1}, 1, v{vGR}")
    A(f"v_mul_u32_u24 v{vT+1}, {3*448*16}, v{vT+1}")
    A(f"v_lshl_add_u32 v{vT+1}, v{vJ}, 4, v{vT+1}")
    g.lbl("L_gpoll")
    A(f"buffer_load_dwordx4 v[64:67], v{vT+1}, s[{sWS}:{sWS+3}], s{sT0} offen sc1")
    A("s_waitcnt vmcnt(0)")
    check_tags(g, [67], "L_gpoll")
    A(f"ds_write_b64 v{vT+3}, v[64:65]")
    A("s_waitcnt lgkmcnt(0)")
    g.lbl("L_w0_v")
    vm = VM(g, W0, W0)
    v_loads(g, vm, polKV, [0, 1])
    A("s_branch L_qwait")

    g.lbl("L_w1")
    srd(g, sB, P_X, 3584)
    A(f"v_mov_b32 v{vT+1}, 0x100000")
    A(f"v_cndmask_b32 v{vT+1}, v{vT+1}, v{vL16}, s[{sM56}:{sM56+1}]")
    for b in range(4):
        A(f"buffer_load_dwordx4 v[{48+4*b}:{51+4*b}], v{vT+1}, s[{sB}:{sB+3}], 0 offen offset:{896*b}")
    srd(g, sA, P_WQ, 448*8192)
    A(f"s_lshl_b32 s{sT2}, s{sKVH}, 5")
    A(f"s_lshl_b32 s{sT1}, s{sS}, 2")
    A(f"s_add_u32 s{sT2}, s{sT2}, s{sT1}")
    A(f"s_add_u32 s{sT2}, s{sT2}, s{sB_}")
    A(f"s_lshl_b32 s{sSTART}, s{sT2}, 5")
    A(f"s_mov_b32 s{sSTEP}, {32*8192}")
    A(f"s_mov_b32 s{sLDS}, {L_WQ}")
    A(f"v_lshrrev_b32 v{vDM}, 1, v{vL}")
    A(f"v_lshlrev_b32 v{vDM}, 13, v{vDM}")
    A(f"v_and_b32 v{vT}, 1, v{vL}")
    A(f"v_lshl_add_u32 v{vDM}, v{vT}, 4, v{vDM}")
    dma14(g, polW, VM(g, 0))
    A("s_waitcnt vmcnt(14)")
    get_tag(g)
    for b in range(4):
        X = 16 + 8*b
        for i in range(4):
            unpack(g, 48+4*b+i, X+2*i, X+2*i+1)
        layernorm(g, X, vT, vT+1, vT+2)
    A(f"v_lshlrev_b32 v{vT+3}, 3, v{vL}")
    A(f"v_add_u32 v{vT+3}, {L_M1}, v{vT+3}")
    mod_fetch14(g, WS_MOD, "L_modpoll", vT+3)
    stamp(g, 1)
    A(f"v_lshlrev_b32 v{vT+3}, 6, v{vL}")
    A(f"v_add_u32 v{vT+3}, {L_M1}, v{vT+3}")
    for sec in range(2):
        for i in range(4):
            A(f"ds_read_b128 v[{64+16*sec+4*i}:{67+16*sec+4*i}], v{vT+3} offset:{3584*sec+16*i}")
    A(f"v_add_u32 v{vT+3}, {L_H}, v{vL16}")
    A("s_waitcnt lgkmcnt(0)")
    for b in range(4):
        X = 16 + 8*b
        OC, SH = 48, 56
        for i in range(8):
            sa = 64 + 2*i + (b >> 1)
            ca = 80 + 2*i + (b >> 1)
            if b & 1:
                A(f"v_and_b32 v{SH+i}, s{sHI}, v{sa}")
                A(f"v_and_b32 v{OC+i}, s{sHI}, v{ca}")
            else:
                A(f"v_lshlrev_b32 v{SH+i}, 16, v{sa}")
                A(f"v_lshlrev_b32 v{OC+i}, 16, v{ca}")
            A(f"v_add_f32 v{OC+i}, 1.0, v{OC+i}")
        for i in range(0, 8, 2):
            rnd2(g, OC+i, OC+i+1, vT)
        modulate_pack(g, X, OC, SH, X, vT)
        A(f"s_mov_b64 exec, s[{sM56}:{sM56+1}]")
        A(f"ds_write_b128 v{vT+3}, v[{X}:{X+3}] offset:{896*b}")
        A("s_mov_b64 exec, -1")
    A("s_waitcnt lgkmcnt(0)")
    A(f"s_lshl_b32 s{sT2}, s{sT2}, 8")
    A(f"s_add_u32 s{sT2}, s{sT2}, {WS_Q}")
    gemv_publish(g, L_H, L_WQ, sT2)
    stamp(g, 2)
    vm = VM(g, W0, 1)
    k_loads(g, vm, polKV)
    A(f"s_lshl_b32 s{sT1}, s{sKVH}, 13")
    A(f"s_add_u32 s{sT1}, s{sT1}, {WS_Q}")
    A(f"s_add_u32 s{sT2}, s{sT1}, 4096")
    g.lbl("L_qpoll")
    for i in range(8):
        A(f"buffer_load_dwordx4 v[{64+4*i}:{67+4*i}], v{vL16}, s[{sWS}:{sWS+3}], s{sT1 + i//4} offen offset:{1024*(i%4)} sc1")
    A("s_waitcnt vmcnt(0)")
    check_tags(g, [67+4*i for i in range(8)], "L_qpoll")
    A(f"s_cmp_ge_u32 s{sB_}, 2")
    A(f"s_cselect_b64 vcc, -1, 0")
    A(f"s_and_b32 s{sT0}, s{sB_}, 1")
    A(f"s_lshl_b32 s{sT0}, s{sT0}, 4")
    A(f"v_lshlrev_b32 v{vT+1}, 1, v{vL}")
    A(f"v_add_u32 v{vT+1}, {L_Q}, v{vT+1}")
    for i in range(8):
        A(f"v_cndmask_b32 v{64+4*i}, v{64+4*i}, v{65+4*i}, vcc")
        A(f"v_lshrrev_b32 v{64+4*i}, s{sT0}, v{64+4*i}")
        A(f"ds_write_b16 v{vT+1}, v{64+4*i} offset:{128*i}")
    A(f"v_mov_b32 v{vT}, {L_FLAG}")
    A(f"v_mov_b32 v{vT+1}, 1")
    A("s_waitcnt lgkmcnt(0)")
    A(f"ds_write_b32 v{vT}, v{vT+1}")
    vm = VM(g, W0, 0)
    v_loads(g, vm, polKV, [0, 1])

    g.lbl("L_qwait")
    A(f"v_mov_b32 v{vT}, {L_FLAG}")
    g.lbl("L_qspin")
    A(f"ds_read_b32 v{vT+1}, v{vT}")
    A("s_waitcnt lgkmcnt(0)")
    A(f"v_cmp_ne_u32 vcc, 0, v{vT+1}")
    A("s_cbranch_vccnz L_qready")
    A("s_sleep 4")
    A("s_branch L_qspin")
    g.lbl("L_qready")
    stamp(g, 3)
    A("s_waitcnt vmcnt(16)")
    A(f"v_and_b32 v{vT}, 1, v{vL}")
    A(f"v_lshlrev_b32 v{vT}, 9, v{vT}")
    A(f"v_lshl_add_u32 v{vT}, v{vGR}, 4, v{vT}")
    A(f"v_add_u32 v{vT}, {L_Q}, v{vT}")
    for j in range(8):
        A(f"ds_read_b128 v[{vQF+4*j}:{vQF+4*j+3}], v{vT} offset:{64*j}")
    A("s_waitcnt lgkmcnt(0)")
    for t in range(4):
        for j in range(8):
            c = "0" if j == 0 else f"v[{vSD+4*t}:{vSD+4*t+3}]"
            r = vK + 32*t + 4*j
            A(f"v_mfma_f32_16x16x32_bf16 v[{vSD+4*t}:{vSD+4*t+3}], v[{vQF+4*j}:{vQF+4*j+3}], v[{r}:{r+3}], {c}")
        if t == 1:
            vm = VM(g, 0)
            v_loads(g, vm, polKV, [2, 3])
    g.nop(8)
    S0, S1 = vT, vT+1
    A(f"v_cndmask_b32 v{S0}, v{vSD}, v{vSD+4}, s[{sM1}:{sM1+1}]")
    A(f"v_cndmask_b32 v{S1}, v{vSD+1}, v{vSD+5}, s[{sM1}:{sM1+1}]")
    A(f"v_cndmask_b32 v{S0}, v{S0}, v{vSD+8}, s[{sM2}:{sM2+1}]")
    A(f"v_cndmask_b32 v{S1}, v{S1}, v{vSD+9}, s[{sM2}:{sM2+1}]")
    A(f"v_cndmask_b32 v{S0}, v{S0}, v{vSD+12}, s[{sM3}:{sM3+1}]")
    A(f"v_cndmask_b32 v{S1}, v{S1}, v{vSD+13}, s[{sM3}:{sM3+1}]")
    rnd2(g, S0, S1, vT+2)
    M0_, M1_ = 16, 17
    A(f"v_mov_b32 v{M0_}, v{S0}")
    A(f"v_mov_b32 v{M1_}, v{S1}")
    wave_reduce(g, "v_max_f32", [M0_, M1_], [18, 19])
    A(f"s_lshl_b32 s{sT0}, s{sWAVE}, 3")
    A(f"s_add_u32 s{sT0}, s{sT0}, {L_RED}")
    A(f"v_mov_b32 v{vT+2}, s{sT0}")
    A(f"ds_write_b64 v{vT+2}, v[{M0_}:{M1_}]")
    A("s_waitcnt lgkmcnt(0)")
    A("s_barrier")
    A(f"v_mov_b32 v{vT+3}, {L_RED}")
    for i in range(4):
        A(f"ds_read_b128 v[{20+4*i}:{23+4*i}], v{vT+3} offset:{16*i}")
    A("s_waitcnt lgkmcnt(0)")
    for h in range(2):
        m = 16 + h
        A(f"v_max3_f32 v{m}, v{20+h}, v{22+h}, v{24+h}")
        A(f"v_max3_f32 v{m}, v{m}, v{26+h}, v{28+h}")
        A(f"v_max3_f32 v{m}, v{m}, v{30+h}, v{32+h}")
        A(f"v_max_f32 v{m}, v{m}, v{34+h}")
    A(f"v_sub_f32 v{S0}, v{S0}, v{M0_}")
    A(f"v_sub_f32 v{S1}, v{S1}, v{M1_}")
    A(f"v_mul_f32 v{S0}, s{sC}, v{S0}")
    A(f"v_mul_f32 v{S1}, s{sC}, v{S1}")
    A(f"v_exp_f32 v{S0}, v{S0}")
    A(f"v_exp_f32 v{S1}, v{S1}")
    g.nop(1)
    A(f"v_cvt_pk_bf16_f32 v20, v{S0}, v{S1}")
    A(f"v_add_u32 v21, s{sROT}, v{vGR}")
    A(f"v_and_b32 v21, 3, v21")
    A(f"v_lshl_add_u32 v21, v21, 4, v{vJ}")
    A(f"s_lshl_b32 s{sT0}, s{sWAVE}, 7")
    A(f"s_add_u32 s{sT0}, s{sT0}, {L_P}")
    A(f"v_lshl_add_u32 v21, v21, 1, s{sT0}")
    A(f"ds_write_b16 v21, v20")
    A(f"ds_write_b16_d16_hi v21, v20 offset:1024")
    wave_reduce(g, "v_add_f32", [S0, S1], [18, 19])
    A(f"ds_write_b64 v{vT+2}, v[{S0}:{S1}] offset:64") if S0 % 2 == 0 else None
    if S0 % 2:
        A(f"v_mov_b32 v18, v{S0}"); A(f"v_mov_b32 v19, v{S1}")
        A(f"ds_write_b64 v{vT+2}, v[18:19] offset:64")
    A("s_waitcnt lgkmcnt(0)")
    A("s_barrier")
    stamp(g, 4)
    for i in range(4):
        A(f"ds_read_b128 v[{20+4*i}:{23+4*i}], v{vT+3} offset:{64+16*i}")
    A(f"v_and_b32 v{vT}, 1, v{vL}")
    A(f"v_lshlrev_b32 v{vT}, 10, v{vT}")
    A(f"v_lshl_add_u32 v{vT}, v{vGR}, 4, v{vT}")
    A(f"s_lshr_b32 s{sT1}, s{sWAVE}, 1")
    A(f"s_lshl_b32 s{sT1}, s{sT1}, 8")
    A(f"s_add_u32 s{sT1}, s{sT1}, {L_P}")
    for u in range(4):
        A(f"s_add_u32 s{sT0}, s{sROT}, {u}")
        A(f"s_and_b32 s{sT0}, s{sT0}, 3")
        A(f"s_lshl_b32 s{sT0}, s{sT0}, 6")
        A(f"s_add_u32 s{sT0}, s{sT0}, s{sT1}")
        A(f"v_add_u32 v{vT+1}, s{sT0}, v{vT}")
        A(f"ds_read_b128 v[{vSD+4*u}:{vSD+4*u+3}], v{vT+1}")
    A("s_waitcnt lgkmcnt(0)")
    for h in range(2):
        A(f"v_add_f32 v{18+h}, v{20+h}, v{22+h}")
        for i in range(2, 8):
            A(f"v_add_f32 v{18+h}, v{18+h}, v{20+2*i+h}")
    A(f"s_cmp_ge_u32 s{sWAVE}, 4")
    A(f"s_cselect_b64 vcc, -1, 0")
    vRL, vLSE = 10, 11
    A(f"v_cndmask_b32 v18, v18, v19, vcc")
    A(f"v_cndmask_b32 v16, v16, v17, vcc")
    A(f"v_rcp_f32 v{vRL}, v18")
    A(f"v_log_f32 v{vLSE}, v18")
    g.nop(1)
    A(f"v_fma_f32 v{vLSE}, v16, s{sC}, v{vLSE}")
    PT = 192
    for u in range(4):
        A(f"s_waitcnt vmcnt({8*(3-u)})")
        R = v_dst(u)
        for c in range(4):
            T = PT + 8*(c & 1)
            for m in range(4):
                A(f"v_perm_b32 v{T+m}, v{R+4*(2*m+1)+c}, v{R+4*(2*m)+c}, s{sPLO}")
            for m in range(4):
                A(f"v_perm_b32 v{T+4+m}, v{R+4*(2*m+1)+c}, v{R+4*(2*m)+c}, s{sPHI}")
            g.nop(1)
            for hh in range(2):
                e = 2*c + hh
                acc = vQF + 4*e
                cc = "0" if u == 0 else f"v[{acc}:{acc+3}]"
                if hh == 1: pass
                A(f"v_mfma_f32_16x16x32_bf16 v[{acc}:{acc+3}], v[{vSD+4*u}:{vSD+4*u+3}], v[{T+4*hh}:{T+4*hh+3}], {cc}")
    stamp(g, 5)
    g.nop(8)
    OUT = 48
    for i in range(4):
        A(f"v_cndmask_b32 v{OUT+i}, v{vQF+4*i}, v{vQF+4*i+1}, s[{sM1}:{sM1+1}]")
    for i in range(4):
        A(f"v_cndmask_b32 v{OUT+i}, v{OUT+i}, v{vQF+4*(4+i)}, s[{sM2}:{sM2+1}]")
    for i in range(4):
        A(f"v_cndmask_b32 v{OUT+i}, v{OUT+i}, v{vQF+4*(4+i)+1}, s[{sM3}:{sM3+1}]")
    A(f"v_and_b32 v{vT}, 1, v{vGR}")
    A(f"v_lshlrev_b32 v{vT}, 10, v{vT}")
    A(f"v_lshl_add_u32 v{vT}, v{vJ}, 5, v{vT}")
    A(f"v_lshrrev_b32 v12, 1, v{vGR}")
    A(f"v_lshl_add_u32 v{vT}, v12, 4, v{vT}")
    A(f"s_lshr_b32 s{sT1}, s{sWAVE}, 1")
    A(f"s_lshl_b32 s{sT1}, s{sT1}, 11")
    A(f"s_and_b32 s{sT0}, s{sWAVE}, 1")
    A(f"s_lshl_b32 s{sT0}, s{sT0}, 9")
    A(f"s_add_u32 s{sT1}, s{sT1}, s{sT0}")
    A(f"s_add_u32 s{sT1}, s{sT1}, {L_OL}")
    A(f"v_add_u32 v{vT}, s{sT1}, v{vT}")
    A(f"ds_write_b128 v{vT}, v[{OUT}:{OUT+3}]")
    A("s_waitcnt lgkmcnt(0)")
    A("s_barrier")
    A(f"s_lshl_b32 s{sT0}, s{sWAVE}, 8")
    A(f"s_add_u32 s{sT0}, s{sT0}, {L_OL}")
    A(f"v_lshl_add_u32 v{vT}, v{vL}, 3, s{sT0}")
    for qd in range(4):
        A(f"ds_read_b64 v[{16+2*qd}:{17+2*qd}], v{vT} offset:{2048*qd}")
    A(f"s_lshl_b32 s{sT0}, s{sGRP}, 15")
    A(f"s_and_b32 s{sT1}, s{sWAVE}, 3")
    A(f"s_lshl_b32 s{sT1}, s{sT1}, 13")
    A(f"s_add_u32 s{sT0}, s{sT0}, s{sT1}")
    A(f"s_lshl_b32 s{sT1}, s{sS}, 9")
    A(f"s_add_u32 s{sT0}, s{sT0}, s{sT1}")
    A(f"s_lshr_b32 s{sT1}, s{sWAVE}, 2")
    A(f"s_lshl_b32 s{sT1}, s{sT1}, 8")
    A(f"s_add_u32 s{sT0}, s{sT0}, s{sT1}")
    A(f"s_add_u32 s{sT0}, s{sT0}, {WS_O}")
    A(f"v_mov_b32 v26, v{vLSE}")
    A(f"v_mov_b32 v27, s{sTAG}")
    A("s_waitcnt lgkmcnt(0)")
    A(f"v_add_f32 v16, v16, v18"); A(f"v_add_f32 v17, v17, v19")
    A(f"v_add_f32 v20, v20, v22"); A(f"v_add_f32 v21, v21, v23")
    A(f"v_add_f32 v16, v16, v20"); A(f"v_add_f32 v17, v17, v21")
    A(f"v_mul_f32 v24, v16, v{vRL}"); A(f"v_mul_f32 v25, v17, v{vRL}")
    A("s_mov_b32 exec_hi, 0")
    A(f"buffer_store_dwordx4 v[24:27], v{vVO}, s[{sWS}:{sWS+3}], s{sT0} offen sc1")
    A("s_mov_b64 exec, -1")
    stamp(g, 6)
    A(f"s_cmp_eq_u32 s{sWAVE}, 7")
    A("s_cbranch_scc1 L_w7")

    WB = 64
    A(f"v_lshrrev_b32 v{vT}, 2, v{vJ}")
    A(f"v_lshl_add_u32 v{vT}, v{vGR}, 3, v{vT}")
    A(f"v_mul_u32_u24 v{vT}, 896, v{vT}")
    A(f"v_and_b32 v12, 3, v{vL}")
    A(f"v_lshl_add_u32 v{vT}, v12, 3, v{vT}")
    A(f"s_lshl_b32 s{sT0}, s{sWAVE}, 7")
    A(f"v_add_u32 v{vT}, s{sT0}, v{vT}")
    for t in range(4):
        for ks in range(2):
            r = WB + 8*t + 4*ks
            A(f"ds_read_b64_tr_b16 v[{r}:{r+1}], v{vT} offset:{L_WO + ks*28672 + t*32}")
            A(f"ds_read_b64_tr_b16 v[{r+2}:{r+3}], v{vT} offset:{L_WO + ks*28672 + t*32 + 3584}")
        if t == 1: A("s_waitcnt lgkmcnt(0)")
    A(f"s_cmp_eq_u32 s{sROLE}, 2")
    A("s_cbranch_scc0 L_nopre")
    A(f"v_lshrrev_b32 v13, 2, v{vL}")
    A(f"v_mul_u32_u24 v13, 896, v13")
    A(f"v_lshl_add_u32 v13, v12, 3, v13")
    A(f"s_add_u32 s{sT0}, s{sT0}, {L_WD}")
    A(f"v_add_u32 v13, s{sT0}, v13")
    A("s_waitcnt lgkmcnt(0)")
    for t in range(4):
        A(f"ds_read_b64_tr_b16 v[{96+2*t}:{97+2*t}], v13 offset:{t*32}")
    A(f"s_cmp_lt_u32 s{sWAVE}, 4")
    A("s_cbranch_scc1 L_pre_ln")
    A(f"s_cmp_lt_u32 s{sWAVE}, 6")
    A("s_cbranch_scc0 L_nopre")
    A(f"v_lshrrev_b32 v13, 2, v{vJ}")
    A(f"v_lshl_add_u32 v13, v{vGR}, 3, v13")
    A(f"v_lshlrev_b32 v13, 5, v13")
    A(f"v_and_b32 v14, 1, v{vL}")
    A(f"v_lshl_add_u32 v13, v14, 3, v13")
    A(f"v_lshrrev_b32 v14, 1, v12")
    A(f"v_mul_u32_u24 v14, 14336, v14")
    A(f"v_add_u32 v13, v13, v14")
    A(f"s_sub_u32 s{sT0}, s{sWAVE}, 4")
    A(f"s_lshl_b32 s{sT0}, s{sT0}, 4")
    A(f"s_add_u32 s{sT0}, s{sT0}, {L_WG}")
    A(f"v_add_u32 v13, s{sT0}, v13")
    for ks in range(14):
        r = 128 + 4*ks
        A(f"ds_read_b64_tr_b16 v[{r}:{r+1}], v13 offset:{ks*1024}")
        A(f"ds_read_b64_tr_b16 v[{r+2}:{r+3}], v13 offset:{ks*1024+128}")
        if ks % 4 == 3: A("s_waitcnt lgkmcnt(0)")
    A("s_branch L_nopre")
    g.lbl("L_pre_ln")
    A(f"v_lshlrev_b32 v13, 6, v{vL}")
    A(f"v_add_u32 v13, {L_M2}, v13")
    for sec in range(2):
        for i in range(4):
            A(f"ds_read_b128 v[{128+16*sec+4*i}:{131+16*sec+4*i}], v13 offset:{3584*sec+16*i}")
    A("s_waitcnt lgkmcnt(0)")
    A(f"s_cmp_ge_u32 s{sWAVE}, 2")
    A(f"s_cselect_b64 vcc, -1, 0")
    A(f"s_and_b32 s{sT0}, s{sWAVE}, 1")
    A(f"s_lshl_b32 s{sT0}, s{sT0}, 4")
    for i in range(8):
        A(f"v_cndmask_b32 v{120+i}, v{128+2*i}, v{129+2*i}, vcc")
        A(f"v_cndmask_b32 v{112+i}, v{144+2*i}, v{145+2*i}, vcc")
    for i in range(16):
        A(f"v_lshrrev_b32 v{112+i}, s{sT0}, v{112+i}")
        A(f"v_lshlrev_b32 v{112+i}, 16, v{112+i}")
    for i in range(8):
        A(f"v_add_f32 v{112+i}, 1.0, v{112+i}")
    for i in range(0, 8, 2):
        rnd2(g, 112+i, 113+i, vT)
    g.lbl("L_nopre")
    A(f"s_mul_i32 s{sT0}, s{sB_}, 28")
    A(f"s_lshl_b32 s{sT1}, s{sWAVE}, 2")
    A(f"s_add_u32 s{sT0}, s{sT0}, s{sT1}")
    A(f"s_lshl_b32 s{sT0}, s{sT0}, 6")
    A(f"s_lshl_b32 s{sT1}, s{sKVH}, 3")
    A(f"s_add_u32 s{sT0}, s{sT0}, s{sT1}")
    A(f"s_add_u32 s{sT0}, s{sT0}, s{sS}")
    A(f"s_lshl_b32 s{sT0}, s{sT0}, 7")
    A(f"s_add_u32 s{sT0}, s{sT0}, {WS_Y}")
    A(f"v_lshlrev_b32 v12, 13, v{vGR}")
    A(f"v_lshl_add_u32 v12, v{vJ}, 3, v12")
    A(f"v_lshlrev_b32 v{vT}, 4, v{vGR}")
    A(f"v_add_u32 v{vT}, {L_OB}, v{vT}")
    A(f"v_mov_b32 v41, s{sTAG}")
    A("s_waitcnt lgkmcnt(0)")
    A("s_barrier")
    A(f"ds_read_b128 v[16:19], v{vT}")
    A(f"ds_read_b128 v[20:23], v{vT} offset:64")
    A("s_waitcnt lgkmcnt(1)")
    for t in range(4):
        A(f"v_mfma_f32_16x16x32_bf16 v[{24+4*t}:{27+4*t}], v[16:19], v[{WB+8*t}:{WB+8*t+3}], 0")
    A("s_waitcnt lgkmcnt(0)")
    for t in range(4):
        A(f"v_mfma_f32_16x16x32_bf16 v[{24+4*t}:{27+4*t}], v[20:23], v[{WB+8*t+4}:{WB+8*t+7}], v[{24+4*t}:{27+4*t}]")
    g.nop(6)
    A(f"v_cndmask_b32 v40, v24, v28, s[{sM1}:{sM1+1}]")
    A(f"v_cndmask_b32 v40, v40, v32, s[{sM2}:{sM2+1}]")
    A(f"v_cndmask_b32 v40, v40, v36, s[{sM3}:{sM3+1}]")
    A(f"buffer_store_dwordx2 v[40:41], v12, s[{sWS}:{sWS+3}], s{sT0} offen sc1")
    stamp(g, 7)
    A(f"s_cmp_eq_u32 s{sROLE}, 2")
    A("s_cbranch_scc0 L_fin")

    A(f"s_cmp_lt_u32 s{sWAVE}, 4")
    A("s_cbranch_scc0 L_ffn_barC")
    A(f"v_lshlrev_b32 v13, 5, v{vL}")
    A(f"v_mov_b32 v14, {WS_SIZE}")
    A(f"v_cndmask_b32 v13, v14, v13, s[{sM56}:{sM56+1}]")
    A(f"s_mul_i32 s{sT0}, s{sWAVE}, 1792")
    A(f"s_add_u32 s{sT0}, s{sT0}, {WS_X1}")
    g.lbl("L_x1poll")
    A(f"buffer_load_dwordx4 v[16:19], v13, s[{sWS}:{sWS+3}], s{sT0} offen sc1")
    A(f"buffer_load_dwordx4 v[20:23], v13, s[{sWS}:{sWS+3}], s{sT0} offen offset:16 sc1")
    A("s_waitcnt vmcnt(0)")
    check_tags(g, [17, 19, 21, 23], "L_x1poll", mask=sM56)
    for i in range(4):
        unpack(g, 16+2*i, 24+2*i, 25+2*i)
    layernorm(g, 24, vT, vT+1, vT+2)
    modulate_pack(g, 24, 112, 120, 24, vT)
    A(f"s_mul_i32 s{sT0}, s{sWAVE}, 896")
    A(f"s_add_u32 s{sT0}, s{sT0}, {L_H}")
    A(f"v_add_u32 v{vT}, s{sT0}, v{vL16}")
    A(f"s_mov_b64 exec, s[{sM56}:{sM56+1}]")
    A(f"ds_write_b128 v{vT}, v[24:27]")
    A("s_mov_b64 exec, -1")
    A("s_waitcnt lgkmcnt(0)")
    g.lbl("L_ffn_barC")
    A(f"v_and_b32 v{vT}, 3, v{vL}")
    A(f"v_mul_u32_u24 v{vT}, 896, v{vT}")
    A(f"v_lshl_add_u32 v{vT}, v{vGR}, 4, v{vT}")
    A(f"v_add_u32 v{vT}, {L_H}, v{vT}")
    A("s_barrier")
    A(f"s_cmp_lt_u32 s{sWAVE}, 4")
    A("s_cbranch_scc1 L_ffn_barD")
    A(f"s_cmp_lt_u32 s{sWAVE}, 6")
    A("s_cbranch_scc0 L_ffn_barD")
    for ks in range(14):
        A(f"ds_read_b128 v[{192+4*ks}:{195+4*ks}], v{vT} offset:{64*ks}")
    for ks in range(14):
        A(f"s_waitcnt lgkmcnt({13-ks})")
        c = "0" if ks == 0 else "v[16:19]"
        A(f"v_mfma_f32_16x16x32_bf16 v[16:19], v[{192+4*ks}:{195+4*ks}], v[{128+4*ks}:{131+4*ks}], {c}")
    g.nop(8)
    A(f"v_cndmask_b32 v20, v16, v17, s[{sM1}:{sM1+1}]")
    A(f"v_cndmask_b32 v20, v20, v18, s[{sM2}:{sM2+1}]")
    A(f"v_cndmask_b32 v20, v20, v19, s[{sM3}:{sM3+1}]")
    rnd1(g, 20)
    kk = -2.0 * math.sqrt(2.0/math.pi) * LOG2E
    A(f"v_mul_f32 v21, v20, v20")
    A(f"v_mov_b32 v23, v20 row_ror:8 {DPP}") if False else None
    A(f"v_mul_f32 v21, {f2u(0.044715):#x}, v21")
    A(f"v_fma_f32 v21, v21, v20, v20")
    A(f"v_mul_f32 v21, {f2u(kk):#x}, v21")
    A(f"v_exp_f32 v21, v21")
    A(f"v_mov_b32 v23, v20 row_ror:8 {DPP}")
    A(f"v_add_f32 v21, 1.0, v21")
    A(f"v_rcp_f32 v21, v21")
    g.nop(1)
    A(f"v_mul_f32 v21, v21, v20")
    rnd1(g, 21)
    A(f"v_mul_f32 v21, v21, v23")
    A(f"v_cvt_pk_bf16_f32 v21, v21, v21")
    A(f"s_sub_u32 s{sT0}, s{sWAVE}, 4")
    A(f"s_lshl_b32 s{sT0}, s{sT0}, 4")
    A(f"s_add_u32 s{sT0}, s{sT0}, {L_G}")
    A(f"v_lshlrev_b32 v22, 5, v{vGR}")
    A(f"v_lshl_add_u32 v22, v{vJ}, 1, v22")
    A(f"v_add_u32 v22, s{sT0}, v22")
    A(f"s_mov_b32 exec_lo, 0x00ff00ff")
    A(f"s_mov_b32 exec_hi, 0x00ff00ff")
    A(f"ds_write_b16 v22, v21")
    A("s_mov_b64 exec, -1")
    A("s_waitcnt lgkmcnt(0)")
    g.lbl("L_ffn_barD")
    A(f"v_and_b32 v{vT}, 3, v{vL}")
    A(f"v_lshlrev_b32 v{vT}, 5, v{vT}")
    A(f"v_lshl_add_u32 v{vT}, v{vGR}, 3, v{vT}")
    A(f"v_add_u32 v{vT}, {L_G}, v{vT}")
    A(f"s_mul_i32 s{sT0}, s{sWAVE}, {4*112*128}")
    A(f"s_lshl_b32 s{sT1}, s{sF}, 7")
    A(f"s_add_u32 s{sT0}, s{sT0}, s{sT1}")
    A(f"s_add_u32 s{sT0}, s{sT0}, {WS_Z}")
    A(f"s_add_u32 s{sT1}, s{sT0}, {28*112*128}")
    A(f"s_add_u32 s{sT2}, s{sT1}, {28*112*128}")
    A(f"s_add_u32 s{sT3}, s{sT2}, {28*112*128}")
    A(f"v_mul_u32_u24 v12, {112*128}, v{vGR}")
    A(f"v_lshl_add_u32 v12, v{vJ}, 3, v12")
    for b in range(4):
        A(f"v_mov_b32 v{41+2*b}, s{sTAG}")
    A("s_barrier")
    A(f"ds_read_b64 v[16:17], v{vT}")
    A("s_waitcnt lgkmcnt(0)")
    for t in range(4):
        A(f"v_mfma_f32_16x16x16_bf16 v[{24+4*t}:{27+4*t}], v[16:17], v[{96+2*t}:{97+2*t}], 0")
    g.nop(6)
    for b in range(4):
        A(f"v_cndmask_b32 v{40+2*b}, v{24+b}, v{28+b}, s[{sM1}:{sM1+1}]")
    for b in range(4):
        A(f"v_cndmask_b32 v{40+2*b}, v{40+2*b}, v{32+b}, s[{sM2}:{sM2+1}]")
    for b in range(4):
        A(f"v_cndmask_b32 v{40+2*b}, v{40+2*b}, v{36+b}, s[{sM3}:{sM3+1}]")
        A(f"buffer_store_dwordx2 v[{40+2*b}:{41+2*b}], v12, s[{sWS}:{sWS+3}], s{sT0+b} offen sc1")
    stamp(g, 8)
    A("s_branch L_fin")

    g.lbl("L_w7")
    A(f"s_lshl_b32 s{sT0}, s{sGRP}, 15")
    A(f"s_lshl_b32 s{sT1}, s{sS}, 12")
    A(f"s_add_u32 s{sT0}, s{sT0}, s{sT1}")
    A(f"s_add_u32 s{sT0}, s{sT0}, {WS_O}")
    g.lbl("L_opoll")
    for i in range(4):
        A(f"buffer_load_dwordx4 v[{16+4*i}:{19+4*i}], v{vL16}, s[{sWS}:{sWS+3}], s{sT0} offen offset:{1024*i} sc1")
    A("s_waitcnt vmcnt(0)")
    check_tags(g, [19, 23, 27, 31], "L_opoll")
    A(f"v_max3_f32 v32, v18, v22, v26")
    A(f"v_max_f32 v32, v32, v30")
    A(f"v_mov_b32 v33, v32")
    g.nop(2)
    A(f"v_permlane32_swap_b32 v32, v33")
    g.nop(1)
    A(f"v_max_f32 v32, v32, v33")
    for i in range(4):
        A(f"v_sub_f32 v{18+4*i}, v{18+4*i}, v32")
    for i in range(4):
        A(f"v_exp_f32 v{18+4*i}, v{18+4*i}")
    g.nop(1)
    A(f"v_mul_f32 v34, v16, v18")
    A(f"v_mul_f32 v35, v17, v18")
    A(f"v_add_f32 v36, v18, v22")
    for i in range(1, 4):
        A(f"v_fmac_f32 v34, v{16+4*i}, v{18+4*i}")
        A(f"v_fmac_f32 v35, v{17+4*i}, v{18+4*i}")
    A(f"v_add_f32 v36, v36, v26")
    A(f"v_add_f32 v36, v36, v30")
    for i in range(3):
        A(f"v_mov_b32 v{37+i}, v{34+i}")
    g.nop(2)
    for i in range(3):
        A(f"v_permlane32_swap_b32 v{34+i}, v{37+i}")
    g.nop(1)
    A(f"v_add_f32 v36, v36, v39")
    A(f"v_rcp_f32 v36, v36")
    A(f"v_add_f32 v34, v34, v37")
    A(f"v_add_f32 v35, v35, v38")
    A(f"v_mul_f32 v34, v34, v36")
    A(f"v_mul_f32 v35, v35, v36")
    A(f"v_cvt_pk_bf16_f32 v34, v34, v35")
    A(f"v_and_b32 v{vT}, 31, v{vL}")
    A(f"v_lshlrev_b32 v{vT}, 2, v{vT}")
    A(f"v_add_u32 v{vT}, {L_OB}, v{vT}")
    A(f"ds_write_b32 v{vT}, v34")
    A("s_waitcnt lgkmcnt(0)")
    A("s_barrier")
    stamp(g, 7)
    A(f"s_cmp_eq_u32 s{sROLE}, 1")
    A("s_cbranch_scc0 L_fin")
    sRB, sCB = sSTART, sSTEP
    A(f"s_mul_i32 s{sRB}, s{sF}, 2341")
    A(f"s_lshr_b32 s{sRB}, s{sRB}, 16")
    A(f"s_mul_i32 s{sT0}, s{sRB}, 28")
    A(f"s_sub_u32 s{sCB}, s{sF}, s{sT0}")
    A(f"v_and_b32 v12, 7, v{vL}")
    A(f"v_lshlrev_b32 v13, 4, v12")
    A(f"v_add_u32 v13, {L_M2}, v13")
    A(f"ds_read_b128 v[104:107], v13")
    A(f"ds_read_b128 v[108:111], v13 offset:128")
    srd(g, sB, P_X, 3584)
    srd(g, sA, P_OUT, 3584)
    A(f"s_mul_i32 s{sT2}, s{sRB}, 896")
    A(f"s_lshl_b32 s{sT3}, s{sCB}, 5")
    A(f"s_add_u32 s{sLDS}, s{sT2}, s{sT3}")
    A(f"v_lshlrev_b32 v14, 2, v12")
    A(f"buffer_load_dword v100, v14, s[{sB}:{sB+3}], s{sLDS} offen")
    A("s_waitcnt lgkmcnt(0)")
    A(f"s_cmp_ge_u32 s{sRB}, 2")
    A(f"s_cselect_b64 vcc, -1, 0")
    A(f"s_and_b32 s{sT0}, s{sRB}, 1")
    A(f"s_lshl_b32 s{sT0}, s{sT0}, 4")
    for i in range(4):
        A(f"v_cndmask_b32 v{120+i}, v{104+2*i}, v{105+2*i}, vcc")
        A(f"v_lshrrev_b32 v{120+i}, s{sT0}, v{120+i}")
        A(f"v_lshlrev_b32 v{120+i}, 16, v{120+i}")
    def reduce_stage(nld, base_expr_sreg, lab):
        g.lbl(lab)
        for i in range(nld):
            if i % 4 == 0:
                A(f"s_add_u32 s{sT1}, s{base_expr_sreg}, {i*1024}")
            A(f"buffer_load_dwordx4 v[{16+4*i}:{19+4*i}], v{vL16}, s[{sWS}:{sWS+3}], s{sT1} offen offset:{(i%4)*1024} sc1")
        A("s_waitcnt vmcnt(0)")
        check_tags(g, [17+2*i for i in range(2*nld)], lab)
        n = nld
        regs = [16+4*i for i in range(nld)]
        while len(regs) > 1:
            nxt = []
            for i in range(0, len(regs)-1, 2):
                A(f"v_add_f32 v{regs[i]}, v{regs[i]}, v{regs[i+1]}")
                A(f"v_add_f32 v{regs[i]+2}, v{regs[i]+2}, v{regs[i+1]+2}")
                nxt.append(regs[i])
            if len(regs) % 2: nxt.append(regs[-1])
            regs = nxt
        g.nop(1)
        A(f"v_add_f32 v16, v16, v16 row_ror:8 {DPP}")
        A(f"v_add_f32 v18, v18, v18 row_ror:8 {DPP}")
        for sw in ("v_permlane16_swap_b32", "v_permlane32_swap_b32"):
            A(f"v_mov_b32 v17, v16"); A(f"v_mov_b32 v19, v18")
            g.nop(2)
            A(f"{sw} v16, v17"); A(f"{sw} v18, v19")
            g.nop(1)
            A(f"v_add_f32 v16, v16, v17"); A(f"v_add_f32 v18, v18, v19")
    def resid(gate):
        rnd2(g, 16, 18, 17)
        A(f"v_mul_f32 v16, v16, v{gate}")
        A(f"v_mul_f32 v18, v18, v{gate+1}")
        rnd2(g, 16, 18, 17)
        A(f"v_add_f32 v124, v124, v16")
        A(f"v_add_f32 v125, v125, v18")
        A(f"v_cvt_pk_bf16_f32 v126, v124, v125")
    A(f"s_lshl_b32 s{sT0}, s{sF}, 13")
    A(f"s_add_u32 s{sT0}, s{sT0}, {WS_Y}")
    A(f"v_mov_b32 v127, s{sTAG}")
    A(f"v_lshlrev_b32 v13, 3, v12")
    A(f"s_lshl_b32 s{sT2}, s{sLDS}, 1")
    A(f"s_add_u32 s{sT2}, s{sT2}, {WS_X1}")
    reduce_stage(8, sT0, "L_ypoll")
    unpack(g, 100, 124, 125)
    resid(120)
    A("s_mov_b64 exec, 0xff")
    A(f"buffer_store_dwordx2 v[126:127], v13, s[{sWS}:{sWS+3}], s{sT2} offen sc1")
    A("s_mov_b64 exec, -1")
    stamp(g, 8)
    unpack(g, 126, 124, 125)
    A(f"s_mul_i32 s{sT0}, s{sF}, {112*128}")
    A(f"s_add_u32 s{sT0}, s{sT0}, {WS_Z}")
    reduce_stage(14, sT0, "L_zpoll")
    resid(122)
    A("s_mov_b64 exec, 0xff")
    A(f"buffer_store_dword v126, v14, s[{sA}:{sA+3}], s{sLDS} offen")
    A("s_mov_b64 exec, -1")
    stamp(g, 9)
    A("s_cmp_eq_u32 s2, 0")
    A("s_cbranch_scc0 L_fin")
    A("s_mov_b64 exec, 1")
    A(f"v_mov_b32 v{vT}, 0")
    A(f"buffer_store_dword v127, v{vT}, s[{sWS}:{sWS+3}], 0 offen sc1")
    g.lbl("L_fin")
    flush_stamps(g, NSTAMP)
    g.lbl("L_end")
    A("s_endpgm")
    g.L.append('.section .rodata,"a"')
    g.L.append(".p2align 6")
    g.L.append(f".amdhsa_kernel {NAME}_kernel")
    g.L.append("  .amdhsa_next_free_vgpr 256")
    g.L.append("  .amdhsa_next_free_sgpr 102")
    g.L.append("  .amdhsa_accum_offset 256")
    g.L.append("  .amdhsa_group_segment_fixed_size 0")
    g.L.append("  .amdhsa_kernarg_size 112")
    g.L.append("  .amdhsa_user_sgpr_count 2")
    g.L.append("  .amdhsa_user_sgpr_kernarg_segment_ptr 1")
    g.L.append("  .amdhsa_system_sgpr_workgroup_id_x 1")
    g.L.append(".end_amdhsa_kernel")
    return "\n".join(g.L) + "\n"

if __name__ == "__main__":
    out = sys.argv[1] if len(sys.argv) > 1 else f"cdna_kernels/{NAME}.s"
    opt = {}
    for a in sys.argv[2:]:
        k, val = a.split("=", 1)
        try: val = int(val)
        except ValueError: val = (" " + val.replace("+", " ")) if val else ""
        opt[k] = val
    open(out, "w").write(build(opt))
```

```python
import sys, math, struct

NAME = "adaLN_cond__gqa_block_cached__geglu_ffn__decode"

WS_E   = 0x0
WS_X1  = 0x3000
WS_M   = 0x5000
MB = 10752
WS_Q   = 0x10000
WS_O   = 0x20000
WS_Y   = 0x120000
WS_Z   = 0x200000
WS_STAMP = 0x400000
WS_SIZE = 0x800000

L_WO = 0
L_WG = 57344
L_WU = L_WG + 28672
L_WD = L_WU + 28672
L_IMG = L_WG
L_A  = L_WD + 28672
L_Q  = L_A + 3584
L_P  = L_Q + 1024
L_RED = L_P + 2048
L_OL = L_WG
L_PD = L_WU + 20480
L_OB = L_RED + 128
L_G  = L_OB + 128
L_FLAG = L_G + 256
L_END = L_FLAG + 64

LOG2E = 1.4426950408889634
def f2u(x): return struct.unpack("<I", struct.pack("<f", x))[0]

class G:
    def __init__(self, opt):
        self.L = []; self.o = opt; self.lab = 0
    def A(self, s): self.L.append("    " + s)
    def lbl(self, s): self.L.append(s + ":")
    def newlab(self, p="L"):
        self.lab += 1
        return f"{p}_{self.lab}"
    def nop(self, n):
        while n > 0:
            k = min(n, 16)
            self.A(f"s_nop {k-1}")
            n -= k

sWAVE = 3
sK, sV, sWS, sA, sB = 4, 8, 12, 16, 20
sS, sB_, sKVH, sN = 24, 25, 26, 27
sTAG, sRETRY = 28, 29
sKB, sSV = 30, 31
sROT = 32
sT0, sT1, sT2, sT3 = 33, 34, 35, 36
sIDX = 37
sM1, sM2, sM3 = 38, 40, 42
sM56 = 44
sQ1, sQ2, sQ3 = 46, 48, 50
sR8 = 52
sSTART, sSTEP, sLDS = 54, 55, 56
sPLO, sPHI = 57, 58
sC = 59
sHI = 60
sROLE = 61
sRED = 62
sGRP = 63
P_X, P_K, P_V, P_WQ, P_WO, P_BX, P_WG, P_WU, P_WD, P_C, P_WM, P_OUT, P_DBG, P_WS = [64 + 2*i for i in range(14)]
sPX = 74
sXO = 75
sRET = 0
sST = 88
sO_DST, sY_DST = 66, 67
sO_IN, sRB = 68, 69

vTID, vL, vJ, vGR, vKO, vVO, vL16, vDM = 0, 1, 2, 3, 4, 5, 6, 7
vE = 8
vT = 9
vQF = 16
vSD = 48
vVE = 64
vK = 128
vPAR = 240
vPA1, vPA2 = 56, 57
vOLW, vOLR, vYO, vOBA = 58, 59, 60, 61
vSC = 62

def srd(g, r, ptr, size):
    g.A(f"s_mov_b32 s{r}, s{ptr}")
    g.A(f"s_mov_b32 s{r+1}, s{ptr+1}")
    g.A(f"s_mov_b32 s{r+2}, {size}")
    g.A(f"s_mov_b32 s{r+3}, 0x20000")

DPP = "row_mask:0xf bank_mask:0xf"
def wave_reduce(g, op, regs, tmps, swaps=("v_permlane16_swap_b32", "v_permlane32_swap_b32")):
    n = len(regs)
    for pat in ("quad_perm:[1,0,3,2]", "quad_perm:[2,3,0,1]", "row_half_mirror", "row_mirror"):
        g.nop(max(0, 2 - (n - 1)))
        for r in regs:
            g.A(f"{op} v{r}, v{r}, v{r} {pat} {DPP}")
    for sw in swaps:
        for r, t in zip(regs, tmps):
            g.A(f"v_mov_b32 v{t}, v{r}")
        g.nop(2)
        for r, t in zip(regs, tmps):
            g.A(f"{sw} v{r}, v{t}")
        g.nop(1)
        for r, t in zip(regs, tmps):
            g.A(f"{op} v{r}, v{r}, v{t}")

def rnd2(g, a, b, t):
    g.A(f"v_cvt_pk_bf16_f32 v{t}, v{a}, v{b}")
    g.A(f"v_lshlrev_b32 v{a}, 16, v{t}")
    g.A(f"v_and_b32 v{b}, s{sHI}, v{t}")
def rnd1(g, a):
    g.A(f"v_cvt_pk_bf16_f32 v{a}, v{a}, v{a}")
    g.A(f"v_lshlrev_b32 v{a}, 16, v{a}")
def unpack(g, src, lo, hi):
    g.A(f"v_lshlrev_b32 v{lo}, 16, v{src}")
    g.A(f"v_and_b32 v{hi}, s{sHI}, v{src}")

def layernorm(g, X, t0, t1, t2, last_round=True):
    g.A(f"v_add_f32 v{t0}, v{X}, v{X+1}")
    g.A(f"v_add_f32 v{t1}, v{X+2}, v{X+3}")
    g.A(f"v_add_f32 v{t0}, v{t0}, v{X+4}")
    g.A(f"v_add_f32 v{t1}, v{t1}, v{X+5}")
    g.A(f"v_add_f32 v{t0}, v{t0}, v{X+6}")
    g.A(f"v_add_f32 v{t1}, v{t1}, v{X+7}")
    g.A(f"v_add_f32 v{t0}, v{t0}, v{t1}")
    wave_reduce(g, "v_add_f32", [t0], [t1])
    g.A(f"v_mul_f32 v{t0}, {f2u(1.0/448):#x}, v{t0}")
    g.A(f"v_sub_f32 v{t2}, v{X}, v{t0}")
    g.A(f"v_mul_f32 v{t1}, v{t2}, v{t2}")
    for i in range(1, 8):
        g.A(f"v_sub_f32 v{t2}, v{X+i}, v{t0}")
        g.A(f"v_fmac_f32 v{t1}, v{t2}, v{t2}")
    g.A(f"v_cndmask_b32 v{t1}, 0, v{t1}, s[{sM56}:{sM56+1}]")
    wave_reduce(g, "v_add_f32", [t1], [t2])
    g.A(f"v_mul_f32 v{t1}, {f2u(1.0/448):#x}, v{t1}")
    rnd2(g, t0, t1, t2)
    g.A(f"v_add_f32 v{t1}, {f2u(1e-5):#x}, v{t1}")
    rnd1(g, t1)
    g.A(f"v_sqrt_f32 v{t1}, v{t1}")
    g.nop(1)
    rnd1(g, t1)
    g.A(f"v_rcp_f32 v{t1}, v{t1}")
    for i in range(8):
        g.A(f"v_sub_f32 v{X+i}, v{X+i}, v{t0}")
    for i in range(0, 8, 2):
        rnd2(g, X+i, X+i+1, t2)
    for i in range(8):
        g.A(f"v_mul_f32 v{X+i}, v{X+i}, v{t1}")
    if last_round:
        for i in range(0, 8, 2):
            rnd2(g, X+i, X+i+1, t2)

def modulate_pack(g, X, OC, SH, D, t, n=8):
    for i in range(n):
        g.A(f"v_mul_f32 v{X+i}, v{X+i}, v{OC+i}")
    for i in range(0, n, 2):
        rnd2(g, X+i, X+i+1, t)
    for i in range(n):
        g.A(f"v_add_f32 v{X+i}, v{X+i}, v{SH+i}")
    for i in range(0, n, 2):
        g.A(f"v_cvt_pk_bf16_f32 v{D+i//2}, v{X+i}, v{X+i+1}")

class VM:
    def __init__(self, g, W, n0=0):
        self.g, self.W, self.n = g, W, n0
    def pre(self):
        if self.W and self.n >= self.W:
            self.g.A(f"s_waitcnt vmcnt({self.W-1})")
            self.n = self.W - 1
        self.n += 1

def dma7(g, pol, vm):
    for i in range(7):
        vm.pre()
        g.A(f"s_mov_b32 m0, s{sLDS}")
        g.A(f"s_add_u32 s{sLDS}, s{sLDS}, 1024")
        g.A(f"buffer_load_dwordx4 v{vDM}, s[{sA}:{sA+3}], s{sSTART} offen{pol} lds")
        g.A(f"s_add_u32 s{sSTART}, s{sSTART}, s{sSTEP}")

def k_tile(g, vm, pol, t):
    g.A(f"s_add_u32 s{sT0}, s{sROT}, {t}")
    g.A(f"s_and_b32 s{sT0}, s{sT0}, 3")
    g.A(f"s_lshl_b32 s{sT0}, s{sT0}, 13")
    g.A(f"s_add_u32 s{sT0}, s{sT0}, s{sKB}")
    g.A(f"s_add_u32 s{sT1}, s{sT0}, 4096")
    for jj in range(8):
        vm.pre()
        r = vK + 32*t + 4*jj
        kq, blk = jj >> 1, jj & 1
        so = sT0 if kq < 2 else sT1
        g.A(f"buffer_load_dwordx4 v[{r}:{r+3}], v{vKO}, s[{sK}:{sK+3}], s{so} offen offset:{(kq&1)*2048 + blk*256}{pol}")

def v_dst(u): return vVE + 32*u

def v_loads(g, vm, pol, units):
    for u in units:
        gam, eta = u >> 1, u & 1
        if eta == 0:
            g.A(f"s_add_u32 s{sT0}, s{sROT}, {gam}")
            g.A(f"s_and_b32 s{sT0}, s{sT0}, 1")
            g.A(f"s_lshl_b32 s{sT0}, s{sT0}, 14")
            g.A(f"s_add_u32 s{sT0}, s{sT0}, s{sKB}")
        for r in range(8):
            vm.pre()
            d = v_dst(u) + 4*r
            g.A(f"buffer_load_dwordx4 v[{d}:{d+3}], v{vVO}, s[{sV}:{sV+3}], s{sT0} offen offset:{512*r + 256*eta}{pol}")

def get_tag(g):
    g.A(f"v_readfirstlane_b32 s{sTAG}, v{vE}")
    g.A(f"s_add_u32 s{sTAG}, s{sTAG}, 0x9e3779b9")

def check_tags(g, regs, fail_label, mask=None, t=vT):
    if len(regs) == 1:
        g.A(f"v_cmp_ne_u32 vcc, s{sTAG}, v{regs[0]}")
    else:
        g.A(f"v_xor_b32 v{t}, s{sTAG}, v{regs[0]}")
        for r in regs[1:]:
            g.A(f"v_bitop3_b32 v{t}, v{t}, v{r}, s{sTAG} bitop3:0xf6")
        g.A(f"v_cmp_ne_u32 vcc, 0, v{t}")
    if mask is not None:
        g.A(f"s_and_b64 vcc, vcc, s[{mask}:{mask+1}]")
    ok = g.newlab("L_ok")
    g.A(f"s_cbranch_vccz {ok}")
    g.A(f"s_sub_u32 s{sRETRY}, s{sRETRY}, 1")
    g.A(f"s_cbranch_scc0 {fail_label}")
    g.A(f"s_mov_b32 s{sRETRY}, 0")
    g.lbl(ok)

def lds_spin(g, off, target_sreg_or_imm, lab):
    g.A(f"v_mov_b32 v{vT}, {L_FLAG}")
    g.lbl(lab)
    g.A(f"ds_read_b32 v{vT+1}, v{vT} offset:{off}")
    g.A("s_waitcnt lgkmcnt(0)")
    g.A(f"v_cmp_le_u32 vcc, {target_sreg_or_imm}, v{vT+1}")
    g.A(f"s_cbranch_vccnz {lab}_ok")
    g.A("s_sleep 2")
    g.A(f"s_branch {lab}")
    g.lbl(lab + "_ok")

def lds_inc(g, off):
    g.A(f"v_mov_b32 v{vT}, {L_FLAG}")
    g.A(f"v_mov_b32 v{vT+1}, 1")
    g.A("s_mov_b64 exec, 1")
    g.A(f"ds_add_u32 v{vT}, v{vT+1} offset:{off}")
    g.A("s_mov_b64 exec, -1")

NSTAMP = 10
def stamp(g, idx):
    if not g.o.get("stamps"): return
    g.A(f"s_memrealtime s[{sST}:{sST+1}]")
    g.A("s_waitcnt lgkmcnt(0)")
    g.A(f"s_mov_b32 s{92+idx}, s{sST}")
def flush_stamps(g, n):
    if not g.o.get("stamps"): return
    g.A(f"s_lshl_b32 s{sT3}, s2, 3")
    g.A(f"s_add_u32 s{sT3}, s{sT3}, s{sWAVE}")
    g.A(f"s_lshl_b32 s{sT3}, s{sT3}, 6")
    g.A(f"s_add_u32 s{sT3}, s{sT3}, {WS_STAMP}")
    g.A("s_mov_b64 exec, 1")
    g.A("v_mov_b32 v15, 0")
    for i in range(n):
        g.A(f"v_mov_b32 v14, s{92+i}")
        g.A(f"buffer_store_dword v14, v15, s[{sWS}:{sWS+3}], s{sT3} offen offset:{4*i}")
        g.nop(1)

def sel4(g, dst, r0, r1, r2, r3, m1, m2, m3):
    g.A(f"v_cndmask_b32 v{dst}, v{r0}, v{r1}, s[{m1}:{m1+1}]")
    g.A(f"v_cndmask_b32 v{dst}, v{dst}, v{r2}, s[{m2}:{m2+1}]")
    g.A(f"v_cndmask_b32 v{dst}, v{dst}, v{r3}, s[{m3}:{m3+1}]")

def build(opt):
    g = G(opt)
    A = g.A
    polK = opt.get("polK", " nt"); polV = opt.get("polV", " nt"); polW = opt.get("polW", " nt")
    polWO = opt.get("polWO", " nt"); polP = opt.get("polP", "")
    W = opt.get("W", 12)
    W2 = opt.get("W2", 24)
    PRIO = opt.get("prio", 1)
    def prio(p):
        if PRIO: A(f"s_setprio {p}")
    hdr = open(f"cdna_kernels/{NAME}.s.ref").read().split("\n")
    for line in hdr:
        if line.startswith("; @launch"):
            g.L.append(f"; @launch grid=(256,1,1) block=(512,1,1) lds={L_END}")
            break
        g.L.append(line)
    g.L += ['.amdgcn_target "amdgcn-amd-amdhsa--gfx950"', ".text", f".globl {NAME}_kernel", ".p2align 8",
            f".type {NAME}_kernel,@function"]
    g.lbl(f"{NAME}_kernel")
    A("s_cmp_ge_u32 s2, 256")
    A("s_cbranch_scc1 L_end")
    A("s_load_dwordx16 s[64:79], s[0:1], 0")
    A("s_load_dwordx8 s[80:87], s[0:1], 64")
    A("s_load_dwordx2 s[90:91], s[0:1], 104")
    A(f"s_getpc_b64 s[{sST}:{sST+1}]")
    g.lbl("L_pc")
    A(f"v_lshlrev_b32 v{vT}, 5, v0")
    A(f"v_min_u32 v{vT}, L_end - L_pc - 4, v{vT}")
    A(f"global_load_dword v15, v{vT}, s[{sST}:{sST+1}]")
    prio(3)
    A(f"v_lshrrev_b32 v{vL}, 6, v0")
    A(f"s_and_b32 s{sS}, s2, 7")
    A(f"v_readfirstlane_b32 s{sWAVE}, v{vL}")
    A(f"v_and_b32 v{vL}, 63, v0")
    A(f"v_and_b32 v{vJ}, 15, v0")
    A(f"v_lshrrev_b32 v{vGR}, 4, v{vL}")
    A(f"v_lshrrev_b32 v{vKO}, 2, v{vJ}")
    A(f"v_lshlrev_b32 v{vKO}, 9, v{vKO}")
    A(f"v_lshl_add_u32 v{vKO}, v{vGR}, 6, v{vKO}")
    A(f"v_and_b32 v{vT+3}, 3, v0")
    A(f"v_lshl_add_u32 v{vKO}, v{vT+3}, 4, v{vKO}")
    A(f"v_lshlrev_b32 v{vL16}, 4, v{vL}")
    A(f"s_lshr_b32 s{sN}, s2, 3")
    A(f"s_and_b32 s{sB_}, s{sN}, 3")
    A(f"s_lshr_b32 s{sKVH}, s{sN}, 2")
    A(f"s_lshl_b32 s{sGRP}, s{sB_}, 3")
    A(f"s_add_u32 s{sGRP}, s{sGRP}, s{sKVH}")
    A(f"s_lshl_b32 s{sT0}, s{sGRP}, 21")
    A(f"s_lshl_b32 s{sT1}, s{sS}, 18")
    A(f"s_add_u32 s{sT0}, s{sT0}, s{sT1}")
    A(f"s_lshl_b32 s{sT1}, s{sWAVE}, 15")
    A(f"s_add_u32 s{sKB}, s{sT0}, s{sT1}")
    A(f"s_add_u32 s{sROT}, s{sN}, s{sWAVE}")
    A(f"s_and_b32 s{sROT}, s{sROT}, 3")
    A(f"s_mov_b32 s{sM56}, -1"); A(f"s_mov_b32 s{sM56+1}, 0x00ffffff")
    A(f"s_mov_b32 s{sROLE}, 0")
    A(f"s_mov_b32 s{sK+2}, {64<<20}")
    A(f"s_mov_b32 s{sK+3}, 0x20000")
    A(f"s_cmp_lt_u32 s{sN}, 16")
    A("s_waitcnt lgkmcnt(0)")
    A(f"s_mov_b32 s{sK}, s{P_K}")
    A(f"s_mov_b32 s{sK+1}, s{P_K+1}")
    A("s_cbranch_scc0 L_early")
    g.lbl("L_kload")
    vm = VM(g, W, 1)
    k_tile(g, vm, polK, 0)
    srd(g, sWS, P_WS, WS_SIZE)
    A(f"v_mov_b32 v{vT}, 0")
    A(f"buffer_load_dword v{vE}, v{vT}, s[{sWS}:{sWS+3}], 0 offen sc1")
    vm.n += 1
    if opt.get("stamps"):
        for i in range(NSTAMP): A(f"s_mov_b32 s{92+i}, 0")
    stamp(g, 0)
    srd(g, sV, P_V, 64 << 20)
    A(f"v_lshlrev_b32 v{vVO}, 12, v{vGR}")
    A(f"v_lshl_add_u32 v{vVO}, v{vJ}, 4, v{vVO}")
    A(f"s_mov_b32 s{sRETRY}, 0x40000")
    A(f"s_mov_b32 s{sM1}, 0xffff0000"); A(f"s_mov_b32 s{sM1+1}, 0")
    A(f"s_mov_b32 s{sM2}, 0"); A(f"s_mov_b32 s{sM2+1}, 0xffff")
    A(f"s_mov_b32 s{sM3}, 0"); A(f"s_mov_b32 s{sM3+1}, 0xffff0000")
    A(f"s_mov_b32 s{sQ1}, 0x22222222"); A(f"s_mov_b32 s{sQ1+1}, 0x22222222")
    A(f"s_mov_b32 s{sQ2}, 0x44444444"); A(f"s_mov_b32 s{sQ2+1}, 0x44444444")
    A(f"s_mov_b32 s{sQ3}, 0x88888888"); A(f"s_mov_b32 s{sQ3+1}, 0x88888888")
    A(f"s_mov_b32 s{sR8}, 0xff00ff00"); A(f"s_mov_b32 s{sR8+1}, 0xff00ff00")
    A(f"s_mov_b32 s{sPLO}, 0x05040100"); A(f"s_mov_b32 s{sPHI}, 0x07060302")
    A(f"s_mov_b32 s{sC}, {f2u(0.0625*LOG2E):#x}")
    A(f"s_mov_b32 s{sHI}, 0xffff0000")
    A(f"s_mov_b32 s{sSV}, 0")
    A(f"s_sub_u32 s{sRED}, s2, 144")
    A(f"s_cselect_b32 s{sRED}, 0xffff, s{sRED}")
    A(f"s_cmp_lg_u32 s{sROLE}, 0")
    A("s_cbranch_scc1 L_hook")
    A(f"s_cmp_lt_u32 s{sN}, 16")
    A("s_cbranch_scc0 L_k1")
    A(f"s_lshr_b32 s{sT1}, s{sS}, 1")
    A(f"s_and_b32 s{sT2}, s{sS}, 1")
    A(f"s_lshl_b32 s{sT2}, s{sT2}, 2")
    A(f"s_add_u32 s{sT1}, s{sT1}, s{sT2}")
    A(f"s_bfe_u32 s{sT3}, s{sN}, 0x20001")
    A(f"s_lshl_b32 s{sT3}, s{sT3}, 3")
    A(f"s_add_u32 s{sT1}, s{sT1}, s{sT3}")
    A(f"s_lshl_b32 s{sIDX}, s{sT1}, 1")
    A(f"s_and_b32 s{sT2}, s{sN}, 1")
    A(f"s_add_u32 s{sIDX}, s{sIDX}, s{sT2}")
    A(f"s_cmp_lt_u32 s{sN}, 8")
    A(f"s_cselect_b32 s{sROLE}, 2, 8")
    A(f"s_cmp_lt_u32 s{sT1}, 28")
    A(f"s_cselect_b32 s{sROLE}, s{sROLE}, 0")
    g.lbl("L_k1")
    def svpoll():
        for i, off in enumerate((0, 16, 1792, 1808)):
            A(f"buffer_load_dwordx4 v[{32+4*i}:{35+4*i}], v13, s[{sWS}:{sWS+3}], s{sXO} offen offset:{off} sc1")
    def svtest():
        A(f"v_xor_b32 v{vT}, s{sTAG}, v35")
        for r in (39, 43, 47):
            A(f"v_bitop3_b32 v{vT}, v{vT}, v{r}, s{sTAG} bitop3:0xf6")
        A(f"v_cmp_ne_u32 vcc, 0, v{vT}")
        A(f"s_and_b64 vcc, vcc, s[{sM56}:{sM56+1}]")
    for t in range(1, 4):
        A(f"s_cmp_eq_u32 s{sSV}, 0")
        A(f"s_cbranch_scc1 L_kt{t}")
        svpoll()
        g.lbl(f"L_kt{t}")
        k_tile(g, vm, polK, t)
        A(f"s_cmp_eq_u32 s{sSV}, 0")
        A(f"s_cbranch_scc1 L_kd{t}")
        A("s_waitcnt vmcnt(8)")
        svtest()
        A(f"s_cbranch_vccnz L_kd{t}")
        A(f"s_call_b64 s[{sRET}:{sRET+1}], L_svc")
        g.lbl(f"L_kd{t}")
    A(f"s_cmp_eq_u32 s{sSV}, 0")
    A("s_cbranch_scc1 L_kdone")
    g.lbl("L_hpoll")
    svpoll()
    A("s_waitcnt vmcnt(0)")
    check_tags(g, [35, 39, 43, 47], "L_hpoll", mask=sM56)
    A(f"s_call_b64 s[{sRET}:{sRET+1}], L_svc")
    g.lbl("L_kdone")
    get_tag(g)
    prio(2)
    def qloads():
        for i in range(2):
            A(f"buffer_load_dwordx4 v[{16+4*i}:{19+4*i}], v{vL16}, s[{sWS}:{sWS+3}], s{sXO} offen offset:{1024*i} sc1")
    A(f"s_lshl_b32 s{sT1}, s{sB_}, 14")
    A(f"s_lshl_b32 s{sT2}, s{sKVH}, 11")
    A(f"s_add_u32 s{sT1}, s{sT1}, s{sT2}")
    A(f"s_add_u32 s{sXO}, s{sT1}, {WS_Q}")
    v_loads(g, VM(g, W, W), polV, [0, 1])
    qloads()
    prio(1)
    srd(g, sA, P_WO, 4096*896)
    A(f"s_lshr_b32 s{sT2}, s{sWAVE}, 2")
    A(f"s_lshl_b32 s{sT0}, s{sKVH}, 1")
    A(f"s_add_u32 s{sT0}, s{sT0}, s{sT2}")
    A(f"s_lshl_b32 s{sT0}, s{sT0}, 8")
    A(f"s_lshl_b32 s{sT2}, s{sS}, 5")
    A(f"s_add_u32 s{sT0}, s{sT0}, s{sT2}")
    A(f"s_mul_i32 s{sSTART}, s{sT0}, 896")
    A(f"s_and_b32 s{sT1}, s{sWAVE}, 3")
    A(f"s_mul_i32 s{sT1}, s{sT1}, 7168")
    A(f"s_add_u32 s{sSTART}, s{sSTART}, s{sT1}")
    A(f"s_mul_i32 s{sLDS}, s{sWAVE}, 7168")
    A(f"s_mov_b32 s{sSTEP}, 1024")
    A(f"v_mov_b32 v{vDM}, v{vL16}")
    dma7(g, polWO, VM(g, W, W))
    A(f"s_and_b32 s{sT0}, s{sROLE}, 10")
    A("s_cbranch_scc1 L_md2")
    g.lbl("L_ld_done")
    A("s_waitcnt vmcnt(7)")
    A("s_branch L_qchk")
    g.lbl("L_qpoll")
    qloads()
    A("s_waitcnt vmcnt(0)")
    g.lbl("L_qchk")
    check_tags(g, [19, 23], "L_qpoll")
    stamp(g, 3)
    A(f"v_lshlrev_b32 v{vT+2}, 3, v{vL}")
    A(f"v_add_u32 v{vT+2}, {L_Q}, v{vT+2}")
    A(f"ds_write_b64 v{vT+2}, v[16:17]")
    A(f"ds_write_b64 v{vT+2}, v[20:21] offset:512")
    A(f"v_bfe_u32 v{vT}, v{vJ}, 2, 1")
    A(f"v_lshlrev_b32 v{vT}, 9, v{vT}")
    A(f"v_lshl_add_u32 v{vT}, v{vGR}, 6, v{vT}")
    A(f"v_and_b32 v{vT+1}, 3, v{vL}")
    A(f"v_lshl_add_u32 v{vT}, v{vT+1}, 4, v{vT}")
    A(f"v_add_u32 v{vT}, {L_Q}, v{vT}")
    QL, QH = 48, 56
    A(f"ds_read_b128 v[{QL}:{QL+3}], v{vT}")
    A(f"ds_read_b128 v[{QL+4}:{QL+7}], v{vT} offset:256")
    A(f"s_waitcnt lgkmcnt(0)")
    for i in range(8):
        A(f"v_cndmask_b32 v{QH+i}, 0, v{QL+i}, s[{sR8}:{sR8+1}]")
    for i in range(8):
        A(f"v_cndmask_b32 v{QL+i}, v{QL+i}, 0, s[{sR8}:{sR8+1}]")
    g.nop(2)
    SD = 16
    for t in range(4):
        for jj in range(8):
            kq, blk = jj >> 1, jj & 1
            d = SD + 4*(2*t + (kq >> 1))
            q = (QH if (kq & 1) else QL) + 4*blk
            r = vK + 32*t + 4*jj
            c = "0" if (jj & 3) == 0 else f"v[{d}:{d+3}]"
            A(f"v_mfma_f32_16x16x32_bf16 v[{d}:{d+3}], v[{q}:{q+3}], v[{r}:{r+3}], {c}")
    prio(0)
    A(f"s_cmp_eq_u32 s{sWAVE}, 7")
    A("s_cbranch_scc1 L_par7")
    A(f"s_cmp_eq_u32 s{sROLE}, 2")
    A("s_cbranch_scc1 L_parF")
    g.lbl("L_par_done")
    v_loads(g, VM(g, W2, W2), polV, [2, 3])
    for d in range(8):
        D = SD + 4*d
        sel4(g, D, D, D+1, D+2, D+3, sQ1, sQ2, sQ3)
    for pat in ("quad_perm:[1,0,3,2]", "quad_perm:[2,3,0,1]"):
        for d in range(8):
            D = SD + 4*d
            A(f"v_add_f32 v{D}, v{D}, v{D} {pat} {DPP}")
    S0, S1 = 10, 11
    sel4(g, S0, SD, SD+4, SD+8, SD+12, sQ1, sQ2, sQ3)
    sel4(g, S1, SD+16, SD+20, SD+24, SD+28, sQ1, sQ2, sQ3)
    rnd2(g, S0, S1, vT)
    A(f"v_max_f32 v{vSC}, v{S0}, v{S1}")
    wave_reduce(g, "v_max_f32", [vSC], [17], swaps=("v_permlane32_swap_b32",))
    A(f"v_sub_f32 v{S0}, v{S0}, v{vSC}")
    A(f"v_sub_f32 v{S1}, v{S1}, v{vSC}")
    A(f"v_mul_f32 v{S0}, s{sC}, v{S0}")
    A(f"v_mul_f32 v{S1}, s{sC}, v{S1}")
    A(f"v_exp_f32 v{S0}, v{S0}")
    A(f"v_exp_f32 v{S1}, v{S1}")
    A(f"v_and_b32 v12, 1, v{vGR}")
    A(f"v_bfe_u32 v28, v{vL}, 1, 1")
    A(f"v_add_u32 v28, s{sROT}, v28")
    A(f"v_add_u32 v29, 2, v28")
    A(f"v_and_b32 v28, 3, v28")
    A(f"v_and_b32 v29, 3, v29")
    A(f"v_and_b32 v30, 1, v{vL}")
    A(f"v_lshlrev_b32 v30, 3, v30")
    A(f"v_lshrrev_b32 v31, 1, v{vGR}")
    A(f"v_lshl_add_u32 v30, v31, 2, v30")
    A(f"v_lshrrev_b32 v31, 2, v{vJ}")
    A(f"v_add_u32 v30, v30, v31")
    A(f"v_lshlrev_b32 v30, 1, v30")
    A(f"v_lshl_add_u32 v30, v12, 7, v30")
    A(f"s_lshl_b32 s{sT1}, s{sWAVE}, 8")
    A(f"s_add_u32 s{sT1}, s{sT1}, {L_P}")
    A(f"v_add_u32 v30, s{sT1}, v30")
    A(f"v_lshl_add_u32 v28, v28, 5, v30")
    A(f"v_lshl_add_u32 v29, v29, 5, v30")
    A(f"v_cvt_pk_bf16_f32 v20, v{S0}, v{S1}")
    A(f"v_add_f32 v16, v{S0}, v{S1}")
    A(f"ds_write_b16 v28, v20")
    A(f"ds_write_b16_d16_hi v29, v20")
    A(f"v_and_b32 v{vT}, 1, v{vL}")
    A(f"v_lshlrev_b32 v{vT}, 7, v{vT}")
    A(f"v_lshl_add_u32 v{vT}, v{vGR}, 4, v{vT}")
    A(f"s_and_b32 s{sT0}, s{sROT}, 1")
    A(f"s_lshl_b32 s{sT0}, s{sT0}, 6")
    A(f"s_add_u32 s{sT2}, s{sT1}, s{sT0}")
    A(f"s_xor_b32 s{sT0}, s{sT0}, 64")
    A(f"s_add_u32 s{sT3}, s{sT1}, s{sT0}")
    A(f"v_add_u32 v18, s{sT2}, v{vT}")
    A(f"v_add_u32 v19, s{sT3}, v{vT}")
    PF = 48
    A(f"ds_read_b128 v[{PF}:{PF+3}], v18")
    A(f"ds_read_b128 v[{PF+4}:{PF+7}], v19")
    wave_reduce(g, "v_add_f32", [16], [17], swaps=("v_permlane32_swap_b32",))
    A(f"v_lshlrev_b32 v13, 5, v12")
    A(f"v_add_u32 v13, {L_RED}, v13")
    A(f"s_lshl_b32 s{sT0}, s{sWAVE}, 2")
    A(f"v_add_u32 v14, s{sT0}, v13")
    A(f"ds_write_b32 v14, v{vSC}")
    A(f"ds_write_b32 v14, v16 offset:64")
    A(f"v_lshlrev_b32 v{vOLW}, 10, v12")
    A(f"v_lshl_add_u32 v{vOLW}, v{vJ}, 5, v{vOLW}")
    A(f"v_lshrrev_b32 v12, 1, v{vGR}")
    A(f"v_lshl_add_u32 v{vOLW}, v12, 4, v{vOLW}")
    A(f"s_lshl_b32 s{sT1}, s{sWAVE}, 11")
    A(f"s_add_u32 s{sT1}, s{sT1}, {L_OL}")
    A(f"v_add_u32 v{vOLW}, s{sT1}, v{vOLW}")
    A(f"s_lshl_b32 s{sT0}, s{sWAVE}, 8")
    A(f"s_add_u32 s{sT0}, s{sT0}, {L_OL}")
    A(f"v_lshl_add_u32 v{vOLR}, v{vL}, 3, s{sT0}")
    A(f"s_lshl_b32 s{sO_IN}, s{sGRP}, 15")
    A(f"s_add_u32 s{sO_IN}, s{sO_IN}, {WS_O}")
    A(f"s_and_b32 s{sT1}, s{sWAVE}, 3")
    A(f"s_lshl_b32 s{sT1}, s{sT1}, 13")
    A(f"s_add_u32 s{sO_DST}, s{sO_IN}, s{sT1}")
    A(f"s_lshl_b32 s{sT1}, s{sS}, 9")
    A(f"s_add_u32 s{sO_DST}, s{sO_DST}, s{sT1}")
    A(f"s_lshr_b32 s{sT1}, s{sWAVE}, 2")
    A(f"s_lshl_b32 s{sT1}, s{sT1}, 8")
    A(f"s_add_u32 s{sO_DST}, s{sO_DST}, s{sT1}")
    A(f"s_lshl_b32 s{sT1}, s{sS}, 12")
    A(f"s_add_u32 s{sO_IN}, s{sO_IN}, s{sT1}")
    A(f"s_mul_i32 s{sT0}, s{sB_}, 28")
    A(f"s_lshl_b32 s{sT1}, s{sWAVE}, 2")
    A(f"s_add_u32 s{sT0}, s{sT0}, s{sT1}")
    A(f"s_lshl_b32 s{sT0}, s{sT0}, 6")
    A(f"s_lshl_b32 s{sT1}, s{sKVH}, 3")
    A(f"s_add_u32 s{sT0}, s{sT0}, s{sT1}")
    A(f"s_add_u32 s{sT0}, s{sT0}, s{sS}")
    A(f"s_lshl_b32 s{sT0}, s{sT0}, 7")
    A(f"s_add_u32 s{sY_DST}, s{sT0}, {WS_Y}")
    A(f"v_lshlrev_b32 v{vYO}, 13, v{vGR}")
    A(f"v_lshl_add_u32 v{vYO}, v{vJ}, 3, v{vYO}")
    A(f"v_lshlrev_b32 v{vOBA}, 4, v{vGR}")
    A(f"v_add_u32 v{vOBA}, {L_OB}, v{vOBA}")
    A("s_waitcnt lgkmcnt(0)")
    ACCB = (16, 192)
    PT = 224
    def pv(u):
        gam, eta = u >> 1, u & 1
        A(f"s_waitcnt vmcnt({8*(3-u)})")
        R = v_dst(u)
        for c in range(4):
            T = PT + 8*(c & 1)
            for m in range(4):
                A(f"v_perm_b32 v{T+m}, v{R+4*(2*m+1)+c}, v{R+4*(2*m)+c}, s{sPLO}")
            for m in range(4):
                A(f"v_perm_b32 v{T+4+m}, v{R+4*(2*m+1)+c}, v{R+4*(2*m)+c}, s{sPHI}")
            g.nop(1)
            for hh in range(2):
                acc = ACCB[eta] + 4*(2*c + hh)
                cc = "0" if gam == 0 else f"v[{acc}:{acc+3}]"
                A(f"v_mfma_f32_16x16x32_bf16 v[{acc}:{acc+3}], v[{PF+4*gam}:{PF+4*gam+3}], v[{T+4*hh}:{T+4*hh+3}], {cc}")
    pv(0); pv(1)
    A("s_barrier")
    stamp(g, 4)
    for i in range(4):
        A(f"ds_read_b128 v[{64+4*i}:{67+4*i}], v13 offset:{(0,16,64,80)[i]}")
    A("s_waitcnt lgkmcnt(2)")
    A(f"v_max3_f32 v80, v64, v65, v66")
    A(f"v_max3_f32 v81, v67, v68, v69")
    A(f"v_max3_f32 v80, v80, v70, v71")
    A(f"v_max_f32 v80, v80, v81")
    for i in range(8): A(f"v_sub_f32 v{64+i}, v{64+i}, v80")
    A(f"v_sub_f32 v{vSC}, v{vSC}, v80")
    for i in range(8): A(f"v_mul_f32 v{64+i}, s{sC}, v{64+i}")
    A(f"v_mul_f32 v{vSC}, s{sC}, v{vSC}")
    for i in range(8): A(f"v_exp_f32 v{64+i}, v{64+i}")
    A(f"v_exp_f32 v{vSC}, v{vSC}")
    A("s_waitcnt lgkmcnt(0)")
    A(f"v_mul_f32 v81, v64, v72")
    for i in range(1, 8): A(f"v_fmac_f32 v81, v{64+i}, v{72+i}")
    A(f"v_rcp_f32 v82, v81")
    A(f"v_log_f32 v83, v81")
    PUB = 84
    A(f"v_mov_b32 v{PUB+3}, s{sTAG}")
    A(f"v_mul_f32 v{vSC}, v{vSC}, v82")
    A(f"v_fma_f32 v83, v80, s{sC}, v83")
    A(f"s_lshr_b32 s{sT0}, s{sWAVE}, 2")
    A(f"s_lshl_b32 s{sT0}, s{sT0}, 4")
    A(f"v_readlane_b32 s{sT0}, v83, s{sT0}")
    g.nop(2)
    A(f"v_mov_b32 v{PUB+2}, s{sT0}")
    def outsel(eta, OUT):
        B = ACCB[eta]
        for i in range(4):
            A(f"v_cndmask_b32 v{OUT+i}, v{B+4*i}, v{B+4*i+1}, s[{sM1}:{sM1+1}]")
        g.nop(3)
        for i in range(4):
            A(f"v_cndmask_b32 v{OUT+i}, v{OUT+i}, v{B+4*(4+i)}, s[{sM2}:{sM2+1}]")
        for i in range(4):
            A(f"v_cndmask_b32 v{OUT+i}, v{OUT+i}, v{B+4*(4+i)+1}, s[{sM3}:{sM3+1}]")
        for i in range(4):
            A(f"v_mul_f32 v{OUT+i}, v{OUT+i}, v{vSC}")
        A(f"ds_write_b128 v{vOLW}, v[{OUT}:{OUT+3}] offset:{512*eta}")
    pv(2); outsel(0, 88)
    pv(3)
    stamp(g, 5)
    outsel(1, 92)
    A("s_waitcnt lgkmcnt(0)")
    A("s_barrier")
    for w in range(8):
        A(f"ds_read_b64 v[{16+2*w}:{17+2*w}], v{vOLR} offset:{2048*w}")
    A("s_mov_b32 exec_hi, 0")
    A("s_waitcnt lgkmcnt(6)")
    A(f"v_pk_add_f32 v[16:17], v[16:17], v[18:19]")
    A("s_waitcnt lgkmcnt(4)")
    A(f"v_pk_add_f32 v[20:21], v[20:21], v[22:23]")
    A("s_waitcnt lgkmcnt(2)")
    A(f"v_pk_add_f32 v[24:25], v[24:25], v[26:27]")
    A(f"v_pk_add_f32 v[16:17], v[16:17], v[20:21]")
    A("s_waitcnt lgkmcnt(0)")
    A(f"v_pk_add_f32 v[28:29], v[28:29], v[30:31]")
    A(f"v_pk_add_f32 v[24:25], v[24:25], v[28:29]")
    A(f"v_pk_add_f32 v[{PUB}:{PUB+1}], v[16:17], v[24:25]")
    A(f"buffer_store_dwordx4 v[{PUB}:{PUB+3}], v{vVO}, s[{sWS}:{sWS+3}], s{sO_DST} offen sc1")
    A("s_mov_b64 exec, -1")
    stamp(g, 6)
    A(f"s_cmp_eq_u32 s{sWAVE}, 7")
    A("s_cbranch_scc1 L_w7")

    WB = 128
    A(f"v_lshrrev_b32 v{vT}, 2, v{vJ}")
    A(f"v_lshl_add_u32 v{vT}, v{vGR}, 3, v{vT}")
    A(f"v_mul_u32_u24 v{vT}, 896, v{vT}")
    A(f"v_and_b32 v12, 3, v{vL}")
    A(f"v_lshl_add_u32 v{vT}, v12, 3, v{vT}")
    A(f"s_lshl_b32 s{sT0}, s{sWAVE}, 7")
    A(f"v_add_u32 v13, s{sT0}, v{vT}")
    for t in range(4):
        for ks in range(2):
            r = WB + 8*t + 4*ks
            A(f"ds_read_b64_tr_b16 v[{r}:{r+1}], v13 offset:{L_WO + ks*28672 + t*32}")
            A(f"ds_read_b64_tr_b16 v[{r+2}:{r+3}], v13 offset:{L_WO + ks*28672 + t*32 + 3584}")
        if t == 1: A("s_waitcnt lgkmcnt(0)")
    A(f"v_mov_b32 v41, s{sTAG}")
    A("s_waitcnt lgkmcnt(0)")
    A("s_barrier")
    A(f"ds_read_b128 v[16:19], v{vOBA}")
    A(f"ds_read_b128 v[20:23], v{vOBA} offset:64")
    A("s_waitcnt lgkmcnt(1)")
    for t in range(4):
        A(f"v_mfma_f32_16x16x32_bf16 v[{24+4*t}:{27+4*t}], v[16:19], v[{WB+8*t}:{WB+8*t+3}], 0")
    A("s_waitcnt lgkmcnt(0)")
    for t in range(4):
        A(f"v_mfma_f32_16x16x32_bf16 v[{24+4*t}:{27+4*t}], v[20:23], v[{WB+8*t+4}:{WB+8*t+7}], v[{24+4*t}:{27+4*t}]")
    g.nop(6)
    sel4(g, 40, 24, 28, 32, 36, sM1, sM2, sM3)
    A(f"buffer_store_dwordx2 v[40:41], v{vYO}, s[{sWS}:{sWS+3}], s{sY_DST} offen sc1")
    stamp(g, 7)
    A(f"s_cmp_eq_u32 s{sROLE}, 2")
    A("s_cbranch_scc0 L_fin")
    A(f"v_add_u32 v13, {L_WD}, v13")
    for t in range(4):
        A(f"ds_read_b64_tr_b16 v[{96+4*t}:{97+4*t}], v13 offset:{t*32}")
        A(f"ds_read_b64_tr_b16 v[{98+4*t}:{99+4*t}], v13 offset:{t*32+3584}")
    g.lbl("L_ffn")
    srd(g, sA, P_WG, 448*3584)
    A(f"s_cmp_lt_u32 s{sWAVE}, 4")
    A(f"s_cselect_b32 s{sA}, s{P_WG}, s{P_WU}")
    A(f"s_cselect_b32 s{sA+1}, s{P_WG+1}, s{P_WU+1}")
    A(f"s_and_b32 s{sT1}, s{sWAVE}, 3")
    A(f"s_mul_i32 s{sSTART}, s{sT1}, {112*3584}")
    A(f"s_lshl_b32 s{sT1}, s{sIDX}, 6")
    A(f"s_add_u32 s{sSTART}, s{sSTART}, s{sT1}")
    A(f"s_mov_b32 s{sSTEP}, {16*3584}")
    A(f"s_mul_i32 s{sLDS}, s{sWAVE}, 7168")
    A(f"s_add_u32 s{sLDS}, s{sLDS}, {L_WG}")
    A(f"v_lshrrev_b32 v{vDM}, 2, v{vL}")
    A(f"v_mul_u32_u24 v{vDM}, 3584, v{vDM}")
    A(f"v_and_b32 v{vT}, 3, v{vL}")
    A(f"v_lshl_add_u32 v{vDM}, v{vT}, 4, v{vDM}")
    dma7(g, "", VM(g, 0))
    A("s_waitcnt vmcnt(0)")
    A("s_barrier")
    stamp(g, 9)
    A(f"s_cmp_lt_u32 s{sWAVE}, 4")
    A("s_cbranch_scc1 L_ffn_ln")
    A(f"v_lshrrev_b32 v13, 2, v{vJ}")
    A(f"v_lshl_add_u32 v13, v{vGR}, 3, v13")
    A(f"v_lshlrev_b32 v13, 6, v13")
    A(f"v_and_b32 v14, 1, v{vL}")
    A(f"v_lshl_add_u32 v13, v14, 3, v13")
    A(f"v_bfe_u32 v14, v{vL}, 1, 1")
    A(f"v_mul_u32_u24 v14, 28672, v14")
    A(f"v_add_u32 v13, v13, v14")
    A(f"s_sub_u32 s{sT0}, s{sWAVE}, 4")
    A(f"s_lshl_b32 s{sT0}, s{sT0}, 4")
    A(f"s_add_u32 s{sT1}, s{sT0}, {L_WG}")
    A(f"v_add_u32 v13, s{sT1}, v13")
    A("s_waitcnt lgkmcnt(0)")
    for ks in range(14):
        r = 128 + 4*ks
        A(f"ds_read_b64_tr_b16 v[{r}:{r+1}], v13 offset:{ks*2048}")
        A(f"ds_read_b64_tr_b16 v[{r+2}:{r+3}], v13 offset:{ks*2048+256}")
        if ks % 4 == 3: A("s_waitcnt lgkmcnt(0)")
    A(f"s_add_u32 s{sT0}, s{sT0}, {L_G}")
    A(f"v_lshlrev_b32 v22, 6, v{vGR}")
    A(f"v_lshl_add_u32 v22, v{vJ}, 1, v22")
    A(f"v_add_u32 v22, s{sT0}, v22")
    A(f"v_and_b32 v{vT}, 3, v{vL}")
    A(f"v_mul_u32_u24 v{vT}, 896, v{vT}")
    A(f"v_lshl_add_u32 v{vT}, v{vGR}, 4, v{vT}")
    A(f"v_add_u32 v{vT}, {L_A}, v{vT}")
    A("s_waitcnt lgkmcnt(0)")
    A("s_barrier")
    for ks in range(14):
        A(f"ds_read_b128 v[{192+4*ks}:{195+4*ks}], v{vT} offset:{64*ks}")
    for ks in range(14):
        A(f"s_waitcnt lgkmcnt({13-ks})")
        c = "0" if ks == 0 else "v[16:19]"
        A(f"v_mfma_f32_16x16x32_bf16 v[16:19], v[{192+4*ks}:{195+4*ks}], v[{128+4*ks}:{131+4*ks}], {c}")
    g.nop(8)
    sel4(g, 20, 16, 17, 18, 19, sM1, sM2, sM3)
    rnd1(g, 20)
    kk = -2.0 * math.sqrt(2.0/math.pi) * LOG2E
    A(f"v_mul_f32 v21, v20, v20")
    A(f"v_mul_f32 v21, {f2u(0.044715):#x}, v21")
    A(f"v_fma_f32 v21, v21, v20, v20")
    A(f"v_mul_f32 v21, {f2u(kk):#x}, v21")
    A(f"v_exp_f32 v21, v21")
    A(f"v_mov_b32 v23, v20 row_ror:8 {DPP}")
    A(f"v_add_f32 v21, 1.0, v21")
    A(f"v_rcp_f32 v21, v21")
    g.nop(1)
    A(f"v_mul_f32 v21, v21, v20")
    rnd1(g, 21)
    A(f"v_mul_f32 v21, v21, v23")
    A(f"v_cvt_pk_bf16_f32 v21, v21, v21")
    A(f"s_mov_b32 exec_lo, 0x00ff00ff")
    A(f"s_mov_b32 exec_hi, 0x00ff00ff")
    A(f"ds_write_b16 v22, v21")
    A("s_mov_b64 exec, -1")
    A(f"s_cmp_eq_u32 s{sWAVE}, 7")
    A("s_cbranch_scc0 L_ffn_d")
    A("s_waitcnt lgkmcnt(0)")
    A("s_barrier")
    A("s_branch L_fin")
    g.lbl("L_ffn_ln")
    A("s_branch L_mchk")
    g.lbl("L_mretry")
    for i, off in enumerate((0, 16, 1792, 1808)):
        A(f"buffer_load_dwordx4 v[{vPAR+4*i}:{vPAR+4*i+3}], v{vPA1}, s[{sWS}:{sWS+3}], s{sXO} offen offset:{off} sc1")
    A("s_waitcnt vmcnt(0)")
    g.lbl("L_mchk")
    check_tags(g, [vPAR+3, vPAR+7, vPAR+11, vPAR+15], "L_mretry", mask=sM56)
    for i, r in enumerate((vPAR, vPAR+1, vPAR+4, vPAR+5)):
        unpack(g, r, 120+2*i, 121+2*i)
        unpack(g, r+8, 112+2*i, 113+2*i)
    for i in range(8):
        A(f"v_add_f32 v{112+i}, 1.0, v{112+i}")
    for i in range(0, 8, 2):
        rnd2(g, 112+i, 113+i, vT)
    A(f"s_mul_i32 s{sT0}, s{sWAVE}, 1792")
    A(f"s_add_u32 s{sT0}, s{sT0}, {WS_X1}")
    A(f"s_mul_i32 s{sT1}, s{sWAVE}, 896")
    A(f"s_add_u32 s{sT1}, s{sT1}, {L_A}")
    A(f"v_add_u32 v13, s{sT1}, v{vL16}")
    g.lbl("L_x1poll")
    A(f"buffer_load_dwordx4 v[16:19], v{vPA1}, s[{sWS}:{sWS+3}], s{sT0} offen sc1")
    A(f"buffer_load_dwordx4 v[20:23], v{vPA1}, s[{sWS}:{sWS+3}], s{sT0} offen offset:16 sc1")
    A("s_waitcnt vmcnt(0)")
    check_tags(g, [17, 19, 21, 23], "L_x1poll", mask=sM56)
    for i in range(4):
        unpack(g, 16+2*i, 24+2*i, 25+2*i)
    layernorm(g, 24, vT, vT+1, vT+2)
    modulate_pack(g, 24, 112, 120, 24, vT)
    A(f"s_mov_b64 exec, s[{sM56}:{sM56+1}]")
    A(f"ds_write_b128 v13, v[24:27]")
    A("s_mov_b64 exec, -1")
    A("s_waitcnt lgkmcnt(0)")
    A("s_barrier")
    g.lbl("L_ffn_d")
    A(f"v_and_b32 v{vT}, 3, v{vL}")
    A(f"v_lshlrev_b32 v{vT}, 6, v{vT}")
    A(f"v_lshl_add_u32 v{vT}, v{vGR}, 4, v{vT}")
    A(f"v_add_u32 v{vT}, {L_G}, v{vT}")
    A(f"s_mul_i32 s{sT0}, s{sWAVE}, {4*56*128}")
    A(f"s_lshl_b32 s{sT1}, s{sIDX}, 7")
    A(f"s_add_u32 s{sT0}, s{sT0}, s{sT1}")
    A(f"s_add_u32 s{sT0}, s{sT0}, {WS_Z}")
    A(f"s_add_u32 s{sT1}, s{sT0}, {28*56*128}")
    A(f"s_add_u32 s{sT2}, s{sT1}, {28*56*128}")
    A(f"s_add_u32 s{sT3}, s{sT2}, {28*56*128}")
    A(f"v_mul_u32_u24 v12, {56*128}, v{vGR}")
    A(f"v_lshl_add_u32 v12, v{vJ}, 3, v12")
    for b in range(4):
        A(f"v_mov_b32 v{41+2*b}, s{sTAG}")
    A("s_waitcnt lgkmcnt(0)")
    A("s_barrier")
    A(f"ds_read_b128 v[16:19], v{vT}")
    A("s_waitcnt lgkmcnt(0)")
    for t in range(4):
        A(f"v_mfma_f32_16x16x32_bf16 v[{24+4*t}:{27+4*t}], v[16:19], v[{96+4*t}:{99+4*t}], 0")
    g.nop(6)
    for b in range(4):
        A(f"v_cndmask_b32 v{40+2*b}, v{24+b}, v{28+b}, s[{sM1}:{sM1+1}]")
    for b in range(4):
        A(f"v_cndmask_b32 v{40+2*b}, v{40+2*b}, v{32+b}, s[{sM2}:{sM2+1}]")
    for b in range(4):
        A(f"v_cndmask_b32 v{40+2*b}, v{40+2*b}, v{36+b}, s[{sM3}:{sM3+1}]")
        A(f"buffer_store_dwordx2 v[{40+2*b}:{41+2*b}], v12, s[{sWS}:{sWS+3}], s{sT0+b} offen sc1")
    stamp(g, 8)
    A("s_branch L_fin")

    g.lbl("L_w7")
    A(f"v_and_b32 v13, 31, v{vL}")
    A(f"v_lshlrev_b32 v13, 2, v13")
    A(f"v_add_u32 v13, {L_OB}, v13")
    g.lbl("L_opoll")
    for i in range(4):
        A(f"buffer_load_dwordx4 v[{16+4*i}:{19+4*i}], v{vL16}, s[{sWS}:{sWS+3}], s{sO_IN} offen offset:{1024*i} sc1")
    A("s_waitcnt vmcnt(0)")
    check_tags(g, [19, 23, 27, 31], "L_opoll")
    A(f"v_max3_f32 v32, v18, v22, v26")
    A(f"v_max_f32 v32, v32, v30")
    A(f"v_mov_b32 v33, v32")
    g.nop(2)
    A(f"v_permlane32_swap_b32 v32, v33")
    g.nop(1)
    A(f"v_max_f32 v32, v32, v33")
    for i in range(4): A(f"v_sub_f32 v{18+4*i}, v{18+4*i}, v32")
    for i in range(4): A(f"v_exp_f32 v{18+4*i}, v{18+4*i}")
    A(f"v_mul_f32 v34, v16, v18")
    A(f"v_mul_f32 v35, v17, v18")
    A(f"v_add_f32 v36, v18, v22")
    for i in range(1, 4):
        A(f"v_fmac_f32 v34, v{16+4*i}, v{18+4*i}")
        A(f"v_fmac_f32 v35, v{17+4*i}, v{18+4*i}")
    A(f"v_add_f32 v36, v36, v26")
    A(f"v_add_f32 v36, v36, v30")
    for i in range(3): A(f"v_mov_b32 v{37+i}, v{34+i}")
    g.nop(2)
    for i in range(3): A(f"v_permlane32_swap_b32 v{34+i}, v{37+i}")
    g.nop(1)
    A(f"v_add_f32 v36, v36, v39")
    A(f"v_rcp_f32 v36, v36")
    A(f"v_add_f32 v34, v34, v37")
    A(f"v_add_f32 v35, v35, v38")
    A(f"v_mul_f32 v34, v34, v36")
    A(f"v_mul_f32 v35, v35, v36")
    A(f"v_cvt_pk_bf16_f32 v34, v34, v35")
    A(f"ds_write_b32 v13, v34")
    A("s_waitcnt lgkmcnt(0)")
    A("s_barrier")
    stamp(g, 7)
    A(f"s_cmp_eq_u32 s{sROLE}, 2")
    A("s_cbranch_scc1 L_ffn")
    A(f"s_cmp_lt_u32 s{sRED}, 112")
    A("s_cbranch_scc0 L_fin")
    A("s_branch L_gchk")
    g.lbl("L_gretry")
    A(f"s_add_u32 s{sT0}, s{sPX}, {3*1792}")
    A(f"buffer_load_dwordx4 v[{vPAR}:{vPAR+3}], v{vPA1}, s[{sWS}:{sWS+3}], s{sPX} offen sc1")
    A(f"buffer_load_dwordx4 v[{vPAR+4}:{vPAR+7}], v{vPA1}, s[{sWS}:{sWS+3}], s{sT0} offen sc1")
    A("s_waitcnt vmcnt(0)")
    g.lbl("L_gchk")
    check_tags(g, [vPAR+3, vPAR+7], "L_gretry")
    A(f"v_and_b32 v12, 1, v{vL}")
    A(f"v_cmp_eq_u32 vcc, 1, v12")
    g.nop(2)
    A(f"v_cndmask_b32 v100, v{vPAR}, v{vPAR+1}, vcc")
    A(f"v_cndmask_b32 v101, v{vPAR+4}, v{vPAR+5}, vcc")
    unpack(g, 100, 120, 121)
    unpack(g, 101, 122, 123)
    unpack(g, vPAR+8, 124, 125)
    def reduce_stage(nld, base_sreg, lab):
        A(f"s_add_u32 s{sT1}, s{base_sreg}, 4096")
        g.lbl(lab)
        for i in range(nld):
            A(f"buffer_load_dwordx4 v[{16+4*i}:{19+4*i}], v{vL16}, s[{sWS}:{sWS+3}], s{base_sreg if i < 4 else sT1} offen offset:{(i%4)*1024} sc1")
        A("s_waitcnt vmcnt(0)")
        check_tags(g, [17+2*i for i in range(2*nld)], lab)
        regs = [16+4*i for i in range(nld)]
        while len(regs) > 1:
            nxt = []
            for i in range(0, len(regs)-1, 2):
                A(f"v_add_f32 v{regs[i]}, v{regs[i]}, v{regs[i+1]}")
                A(f"v_add_f32 v{regs[i]+2}, v{regs[i]+2}, v{regs[i+1]+2}")
                nxt.append(regs[i])
            if len(regs) % 2: nxt.append(regs[-1])
            regs = nxt
        g.nop(1)
        A(f"v_add_f32 v16, v16, v16 row_ror:8 {DPP}")
        A(f"v_add_f32 v18, v18, v18 row_ror:8 {DPP}")
        for sw in ("v_permlane16_swap_b32", "v_permlane32_swap_b32"):
            A(f"v_mov_b32 v17, v16"); A(f"v_mov_b32 v19, v18")
            g.nop(2)
            A(f"{sw} v16, v17"); A(f"{sw} v18, v19")
            g.nop(1)
            A(f"v_add_f32 v16, v16, v17"); A(f"v_add_f32 v18, v18, v19")
    def resid(gate):
        rnd2(g, 16, 18, 17)
        A(f"v_mul_f32 v16, v16, v{gate}")
        A(f"v_mul_f32 v18, v18, v{gate+1}")
        rnd2(g, 16, 18, 17)
        A(f"v_add_f32 v124, v124, v16")
        A(f"v_add_f32 v125, v125, v18")
        A(f"v_cvt_pk_bf16_f32 v126, v124, v125")
    A(f"s_lshl_b32 s{sT0}, s{sRED}, 13")
    A(f"s_add_u32 s{sT0}, s{sT0}, {WS_Y}")
    A(f"v_mov_b32 v127, s{sTAG}")
    A(f"v_lshlrev_b32 v13, 1, v{vPA2}")
    A(f"s_lshl_b32 s{sT2}, s{sXO}, 1")
    A(f"s_add_u32 s{sT2}, s{sT2}, {WS_X1}")
    reduce_stage(8, sT0, "L_ypoll")
    resid(120)
    A("s_mov_b64 exec, 0xff")
    A(f"buffer_store_dwordx2 v[126:127], v13, s[{sWS}:{sWS+3}], s{sT2} offen sc1")
    A("s_mov_b64 exec, -1")
    stamp(g, 8)
    unpack(g, 126, 124, 125)
    A(f"s_mul_i32 s{sT0}, s{sRED}, {56*128}")
    A(f"s_add_u32 s{sT0}, s{sT0}, {WS_Z}")
    reduce_stage(7, sT0, "L_zpoll")
    resid(122)
    A("s_mov_b64 exec, 0xff")
    A(f"buffer_store_dword v126, v{vPA2}, s[{sA}:{sA+3}], s{sXO} offen")
    stamp(g, 9)
    A(f"s_cmp_eq_u32 s{sRED}, 0")
    A("s_cbranch_scc0 L_fin")
    A("s_mov_b64 exec, 1")
    A(f"v_mov_b32 v{vT}, 0")
    A(f"buffer_store_dword v127, v{vT}, s[{sWS}:{sWS+3}], 0 offen sc1")

    A("s_branch L_fin")
    g.lbl("L_early")
    A(f"s_mov_b32 s{sROLE}, 1")
    A(f"s_sub_u32 s{sIDX}, s2, 128")
    A(f"v_lshrrev_b32 v{vT}, 3, v{vL}")
    A(f"v_and_b32 v{vT+1}, 7, v{vL}")
    A(f"s_cmp_lt_u32 s{sN}, 24")
    A("s_cbranch_scc1 L_ed_q")
    A(f"s_sub_u32 s{sIDX}, s{sN}, 24")
    A(f"s_lshl_b32 s{sIDX}, s{sIDX}, 2")
    A(f"s_lshr_b32 s{sT1}, s{sS}, 1")
    A(f"s_add_u32 s{sIDX}, s{sIDX}, s{sT1}")
    A(f"s_and_b32 s{sT2}, s{sS}, 1")
    A(f"s_lshl_b32 s{sT2}, s{sT2}, 5")
    A(f"s_add_u32 s{sIDX}, s{sIDX}, s{sT2}")
    A(f"s_cmp_lt_u32 s{sIDX}, 42")
    A(f"s_cselect_b32 s{sROLE}, 4, 0")
    A("s_cbranch_scc0 L_kload")
    srd(g, sB, P_C, 3584)
    A(f"s_lshl_b32 s{sT0}, s{sWAVE}, 10")
    A(f"buffer_load_dwordx4 v[16:19], v{vL16}, s[{sB}:{sB+3}], s{sT0} offen")
    srd(g, sA, P_WM, 448*5376)
    A(f"v_mul_u32_u24 v{vDM}, 5376, v{vT}")
    A(f"s_mov_b32 s{sSTEP}, {8*5376}")
    A("s_branch L_ed_go")
    g.lbl("L_ed_q")
    srd(g, sB, P_X, 3584)
    A(f"s_mul_i32 s{sT0}, s{sWAVE}, 896")
    A(f"v_mov_b32 v{vT+2}, 0x100000")
    A(f"v_cndmask_b32 v{vT+2}, v{vT+2}, v{vL16}, s[{sM56}:{sM56+1}]")
    A(f"buffer_load_dwordx4 v[16:19], v{vT+2}, s[{sB}:{sB+3}], s{sT0} offen")
    srd(g, sA, P_WQ, 448*8192)
    A(f"v_lshlrev_b32 v{vDM}, 13, v{vT}")
    A(f"s_mov_b32 s{sSTEP}, {8*8192}")
    g.lbl("L_ed_go")
    A(f"v_lshl_add_u32 v{vDM}, v{vT+1}, 4, v{vDM}")
    A(f"s_lshl_b32 s{sSTART}, s{sIDX}, 7")
    A(f"s_mul_i32 s{sT0}, s{sWAVE}, 7")
    A(f"s_mul_i32 s{sT1}, s{sT0}, s{sSTEP}")
    A(f"s_add_u32 s{sSTART}, s{sSTART}, s{sT1}")
    A(f"s_lshl_b32 s{sLDS}, s{sT0}, 10")
    A(f"s_add_u32 s{sLDS}, s{sLDS}, {L_IMG}")
    dma7(g, polW, VM(g, 0))
    srd(g, sWS, P_WS, WS_SIZE)
    A(f"v_mov_b32 v{vT}, 0")
    A(f"buffer_load_dword v14, v{vT}, s[{sWS}:{sWS+3}], 0 offen sc1")
    A(f"v_mov_b32 v{vT+1}, {L_FLAG}")
    A(f"ds_write_b32 v{vT+1}, v{vT} offset:4")
    A("s_waitcnt lgkmcnt(0)")
    A("s_barrier")
    A("s_branch L_kload")

    g.lbl("L_hook")
    A(f"s_cmp_lt_u32 s{sWAVE}, 4")
    A("s_cbranch_scc0 L_p1")
    A(f"s_waitcnt vmcnt(17)")
    for i in range(4):
        unpack(g, 16+i, 24+2*i, 25+2*i)
    A(f"s_cmp_eq_u32 s{sROLE}, 1")
    A("s_cbranch_scc1 L_p_ln")
    for i in range(8): A(f"v_mul_f32 v{32+i}, {f2u(-LOG2E):#x}, v{24+i}")
    for i in range(8): A(f"v_exp_f32 v{32+i}, v{32+i}")
    for i in range(8): A(f"v_add_f32 v{32+i}, 1.0, v{32+i}")
    for i in range(8): A(f"v_rcp_f32 v{32+i}, v{32+i}")
    for i in range(8): A(f"v_mul_f32 v{24+i}, v{24+i}, v{32+i}")
    A(f"s_lshl_b32 s{sT2}, s{sWAVE}, 10")
    A(f"s_add_u32 s{sT2}, s{sT2}, {L_A}")
    for i in range(4): A(f"v_cvt_pk_bf16_f32 v{24+i}, v{24+2*i}, v{25+2*i}")
    A(f"v_add_u32 v{vT}, s{sT2}, v{vL16}")
    A(f"ds_write_b128 v{vT}, v[24:27]")
    A("s_branch L_p1")
    g.lbl("L_p_ln")
    layernorm(g, 24, vT, vT+1, vT+2)
    g.lbl("L_p1")
    A(f"s_waitcnt vmcnt(9) lgkmcnt(0)")
    A("s_barrier")
    A(f"s_cmp_lt_u32 s{sWAVE}, 4")
    A("s_cbranch_scc0 L_k1")
    A(f"v_readfirstlane_b32 s{sTAG}, v14")
    A(f"s_add_u32 s{sTAG}, s{sTAG}, 0x9e3779b9")
    A(f"v_lshrrev_b32 v{vT+2}, 2, v{vJ}")
    A(f"v_lshl_add_u32 v{vT+2}, v{vGR}, 3, v{vT+2}")
    A(f"v_lshlrev_b32 v{vT+2}, 7, v{vT+2}")
    A(f"v_and_b32 v{vT+3}, 3, v{vL}")
    A(f"v_lshl_add_u32 v{vT+2}, v{vT+3}, 3, v{vT+2}")
    A(f"s_lshl_b32 s{sT2}, s{sWAVE}, 5")
    A(f"s_add_u32 s{sT2}, s{sT2}, {L_IMG}")
    A(f"v_add_u32 v{vT+2}, s{sT2}, v{vT+2}")
    for ks in range(14):
        r = 64 + 4*ks
        A(f"ds_read_b64_tr_b16 v[{r}:{r+1}], v{vT+2} offset:{ks*4096}")
        A(f"ds_read_b64_tr_b16 v[{r+2}:{r+3}], v{vT+2} offset:{ks*4096+512}")
        if ks % 4 == 3: A("s_waitcnt lgkmcnt(6)")
    A(f"s_cmp_eq_u32 s{sROLE}, 1")
    A("s_cbranch_scc1 L_p_q")
    A(f"s_call_b64 s[{sRET}:{sRET+1}], L_svc_mm")
    A("s_branch L_k1")
    g.lbl("L_p_q")
    A(f"v_lshlrev_b32 v13, 5, v{vL}")
    A(f"v_mov_b32 v{vT}, {WS_SIZE}")
    A(f"v_cndmask_b32 v13, v{vT}, v13, s[{sM56}:{sM56+1}]")
    A(f"s_mul_i32 s{sXO}, s{sWAVE}, {MB}")
    A(f"s_add_u32 s{sXO}, s{sXO}, {WS_M}")
    A(f"s_mov_b32 s{sSV}, 1")
    A("s_branch L_k1")

    g.lbl("L_svc")
    A(f"s_mov_b32 s{sSV}, 0")
    for i, r in enumerate((32, 33, 36, 37)):
        unpack(g, r, 56+2*i, 57+2*i)
        unpack(g, r+8, 48+2*i, 49+2*i)
    for i in range(8): A(f"v_add_f32 v{48+i}, 1.0, v{48+i}")
    for i in range(0, 8, 2): rnd2(g, 48+i, 49+i, vT)
    modulate_pack(g, 24, 48, 56, 24, vT)
    A(f"s_mul_i32 s{sT2}, s{sWAVE}, 896")
    A(f"s_add_u32 s{sT2}, s{sT2}, {L_A}")
    A(f"v_add_u32 v{vT}, s{sT2}, v{vL16}")
    A(f"s_mov_b64 exec, s[{sM56}:{sM56+1}]")
    A(f"ds_write_b128 v{vT}, v[24:27]")
    A("s_mov_b64 exec, -1")
    A("s_waitcnt lgkmcnt(0)")
    lds_inc(g, 4)
    lds_spin(g, 4, 4, "L_p2spin")
    g.lbl("L_svc_mm")
    stamp(g, 1)
    A(f"v_mul_u32_u24 v{vT+2}, 896, v{vT+3}")
    A(f"v_lshl_add_u32 v{vT+1}, v{vGR}, 4, v{vT+2}")
    A(f"v_add_u32 v{vT+1}, {L_A}, v{vT+1}")
    A("s_waitcnt lgkmcnt(0)")
    AF = lambda ks: (20 + 4*ks) if ks < 11 else (120 + 4*(ks-11)) if ks < 13 else 20
    for ks in range(13):
        A(f"ds_read_b128 v[{AF(ks)}:{AF(ks)+3}], v{vT+1} offset:{64*ks}")
    for ks in range(14):
        if ks == 1:
            A(f"ds_read_b128 v[{AF(13)}:{AF(13)+3}], v{vT+1} offset:{64*13}")
        A(f"s_waitcnt lgkmcnt({12 if ks == 0 else 13-ks})")
        c = "0" if ks == 0 else "v[16:19]"
        A(f"v_mfma_f32_16x16x32_bf16 v[16:19], v[{64+4*ks}:{67+4*ks}], v[{AF(ks)}:{AF(ks)+3}], {c}")
    A(f"s_cmp_eq_u32 s{sROLE}, 1")
    A(f"s_mov_b32 s{sT2}, {MB}")
    A(f"s_cselect_b32 s{sT2}, 16384, s{sT2}")
    A(f"s_mov_b32 s{sT3}, {WS_M}")
    A(f"s_cselect_b32 s{sT3}, {WS_Q}, s{sT3}")
    A(f"s_lshl_b32 s{sLDS}, s{sIDX}, 8")
    A(f"s_add_u32 s{sT3}, s{sT3}, s{sLDS}")
    A(f"s_lshl_b32 s{sLDS}, s{sWAVE}, 6")
    A(f"s_add_u32 s{sT3}, s{sT3}, s{sLDS}")
    A(f"v_mul_u32_u24 v{vT+1}, s{sT2}, v{vT+3}")
    A(f"v_lshl_add_u32 v{vT+1}, v{vGR}, 4, v{vT+1}")
    A(f"v_mov_b32 v22, 0")
    A(f"v_mov_b32 v23, s{sTAG}")
    A(f"v_cvt_pk_bf16_f32 v20, v16, v17")
    A(f"v_cvt_pk_bf16_f32 v21, v18, v19")
    A(f"s_mov_b32 exec_lo, 0x000f000f")
    A(f"s_mov_b32 exec_hi, 0x000f000f")
    A(f"buffer_store_dwordx4 v[20:23], v{vT+1}, s[{sWS}:{sWS+3}], s{sT3} offen sc1")
    A("s_mov_b64 exec, -1")
    stamp(g, 2)
    A(f"s_setpc_b64 s[{sRET}:{sRET+1}]")

    g.lbl("L_md2")
    A(f"s_cmp_eq_u32 s{sROLE}, 8")
    A("s_cbranch_scc1 L_md_p")
    A(f"s_cmp_lt_u32 s{sWAVE}, 4")
    A("s_cbranch_scc0 L_ld_done")
    srd(g, sA, P_WD, 1792*896)
    A(f"s_mul_i32 s{sSTART}, s{sIDX}, 28672")
    A(f"s_mul_i32 s{sLDS}, s{sWAVE}, 7168")
    A(f"s_add_u32 s{sSTART}, s{sSTART}, s{sLDS}")
    A(f"s_add_u32 s{sLDS}, s{sLDS}, {L_WD}")
    A("s_branch L_md_go")
    g.lbl("L_md_p")
    srd(g, sA, P_WG, 448*3584)
    A(f"s_and_b32 s{sT1}, s{sIDX}, 1")
    A(f"s_cselect_b32 s{sA}, s{P_WU}, s{P_WG}")
    A(f"s_cselect_b32 s{sA+1}, s{P_WU+1}, s{P_WG+1}")
    A(f"s_lshr_b32 s{sT1}, s{sIDX}, 1")
    A(f"s_lshl_b32 s{sT1}, s{sT1}, 7")
    A(f"s_mul_i32 s{sSTART}, s{sWAVE}, {56*3584}")
    A(f"s_add_u32 s{sSTART}, s{sSTART}, s{sT1}")
    A(f"s_mov_b32 s{sSTEP}, {8*3584}")
    A(f"s_mov_b32 s{sLDS}, {L_PD}")
    A(f"v_lshrrev_b32 v{vDM}, 3, v{vL}")
    A(f"v_mul_u32_u24 v{vDM}, 3584, v{vDM}")
    A(f"v_and_b32 v{vT}, 7, v{vL}")
    A(f"v_lshl_add_u32 v{vDM}, v{vT}, 4, v{vDM}")
    g.lbl("L_md_go")
    dma7(g, polP, VM(g, W, W))
    A("s_branch L_ld_done")

    g.lbl("L_parF")
    A(f"s_cmp_lt_u32 s{sWAVE}, 4")
    A("s_cbranch_scc0 L_par_done")
    A(f"v_lshlrev_b32 v{vPA1}, 5, v{vL}")
    A(f"v_mov_b32 v{vT}, {WS_SIZE}")
    A(f"v_cndmask_b32 v{vPA1}, v{vT}, v{vPA1}, s[{sM56}:{sM56+1}]")
    A(f"s_mul_i32 s{sXO}, s{sWAVE}, {MB}")
    A(f"s_add_u32 s{sXO}, s{sXO}, {WS_M + 3*1792}")
    for i, off in enumerate((0, 16, 1792, 1808)):
        A(f"buffer_load_dwordx4 v[{vPAR+4*i}:{vPAR+4*i+3}], v{vPA1}, s[{sWS}:{sWS+3}], s{sXO} offen offset:{off} sc1")
    A("s_branch L_par_done")
    g.lbl("L_par7")
    A(f"s_cmp_lt_u32 s{sRED}, 112")
    A("s_cbranch_scc0 L_par_done")
    A(f"s_mul_i32 s{sRB}, s{sRED}, 2341")
    A(f"s_lshr_b32 s{sRB}, s{sRB}, 16")
    A(f"s_mul_i32 s{sT0}, s{sRB}, 28")
    A(f"s_sub_u32 s{sT0}, s{sRED}, s{sT0}")
    A(f"s_mul_i32 s{sT2}, s{sRB}, 896")
    A(f"s_lshl_b32 s{sT3}, s{sT0}, 5")
    A(f"s_add_u32 s{sXO}, s{sT2}, s{sT3}")
    srd(g, sB, P_X, 3584)
    srd(g, sA, P_OUT, 3584)
    A(f"v_and_b32 v{vPA2}, 7, v{vL}")
    A(f"v_lshlrev_b32 v{vPA2}, 2, v{vPA2}")
    A(f"buffer_load_dword v{vPAR+8}, v{vPA2}, s[{sB}:{sB+3}], s{sXO} offen")
    A(f"buffer_load_dword v{vPAR+9}, v{vPA2}, s[{sA}:{sA+3}], s{sXO} offen")
    A(f"v_bfe_u32 v{vPA1}, v{vL}, 1, 2")
    A(f"v_lshlrev_b32 v{vPA1}, 4, v{vPA1}")
    A(f"s_mul_i32 s{sT2}, s{sRB}, {MB}")
    A(f"s_lshl_b32 s{sT3}, s{sT0}, 6")
    A(f"s_add_u32 s{sPX}, s{sT2}, s{sT3}")
    A(f"s_add_u32 s{sPX}, s{sPX}, {WS_M + 2*1792}")
    A(f"s_add_u32 s{sT0}, s{sPX}, {3*1792}")
    A(f"buffer_load_dwordx4 v[{vPAR}:{vPAR+3}], v{vPA1}, s[{sWS}:{sWS+3}], s{sPX} offen sc1")
    A(f"buffer_load_dwordx4 v[{vPAR+4}:{vPAR+7}], v{vPA1}, s[{sWS}:{sWS+3}], s{sT0} offen sc1")
    A("s_branch L_par_done")
    g.lbl("L_fin")
    flush_stamps(g, NSTAMP)
    g.lbl("L_end")
    A("s_endpgm")
    g.L += ['.section .rodata,"a"', ".p2align 6", f".amdhsa_kernel {NAME}_kernel",
            "  .amdhsa_next_free_vgpr 256", "  .amdhsa_next_free_sgpr 102", "  .amdhsa_accum_offset 256",
            "  .amdhsa_group_segment_fixed_size 0", "  .amdhsa_kernarg_size 112", "  .amdhsa_user_sgpr_count 2",
            "  .amdhsa_user_sgpr_kernarg_segment_ptr 1", "  .amdhsa_system_sgpr_workgroup_id_x 1", ".end_amdhsa_kernel"]
    return "\n".join(g.L) + "\n"

if __name__ == "__main__":
    out = sys.argv[1] if len(sys.argv) > 1 else f"cdna_kernels/{NAME}.s"
    opt = {}
    for a in sys.argv[2:]:
        k, val = a.split("=", 1)
        try: val = int(val)
        except ValueError: val = (" " + val.replace("+", " ")) if val else ""
        opt[k] = val
    open(out, "w").write(build(opt))
```

```python
import sys, math, struct

NAME = "adaLN_cond__gqa_block_cached__geglu_ffn__decode"

WS_E   = 0x0
WS_X1  = 0x3000
WS_M   = 0x5000
MB = 10752
WS_Q   = 0x10000
WS_O   = 0x20000
WS_Y   = 0x120000
WS_Z   = 0x200000
WS_STAMP = 0x400000
WS_SIZE = 0x800000

L_WO = 0
L_WG = 57344
L_WU = L_WG + 28672
L_WD = L_WU + 28672
L_IMG = L_WG
L_A  = L_WD + 28672
L_Q  = L_A + 3584
L_P  = L_Q + 1024
L_RED = L_P + 2048
L_OL = L_WG
L_PD = L_WU + 20480
L_OB = L_RED + 128
L_G  = L_OB + 128
L_FLAG = L_G + 256
L_END = L_FLAG + 64

LOG2E = 1.4426950408889634
def f2u(x): return struct.unpack("<I", struct.pack("<f", x))[0]

class G:
    def __init__(self, opt):
        self.L = []; self.o = opt; self.lab = 0
    def A(self, s): self.L.append("    " + s)
    def lbl(self, s): self.L.append(s + ":")
    def newlab(self, p="L"):
        self.lab += 1
        return f"{p}_{self.lab}"
    def nop(self, n):
        while n > 0:
            k = min(n, 16)
            self.A(f"s_nop {k-1}")
            n -= k

sWAVE = 3
sK, sV, sWS, sA, sB = 4, 8, 12, 16, 20
sS, sB_, sKVH, sN = 24, 25, 26, 27
sTAG, sRETRY = 28, 29
sKB, sSV = 30, 31
sROT = 32
sT0, sT1, sT2, sT3 = 33, 34, 35, 36
sIDX = 37
sM1, sM2, sM3 = 38, 40, 42
sM56 = 44
sQ1, sQ2, sQ3 = 46, 48, 50
sR8 = 52
sSTART, sSTEP, sLDS = 54, 55, 56
sPLO, sPHI = 57, 58
sC = 59
sHI = 60
sROLE = 61
sRED = 62
sGRP = 63
P_X, P_K, P_V, P_WQ, P_WO, P_BX, P_WG, P_WU, P_WD, P_C, P_WM, P_OUT, P_DBG, P_WS = [64 + 2*i for i in range(14)]
sPX = 74
sXO = 75
sRET = 0
sST = 88
sO_DST, sY_DST = 66, 67
sO_IN, sRB = 68, 69

vTID, vL, vJ, vGR, vKO, vVO, vL16, vDM = 0, 1, 2, 3, 4, 5, 6, 7
vE = 8
vT = 9
vQF = 16
vSD = 48
vVE = 64
vK = 128
vPAR = 240
vPA1, vPA2 = 56, 57
vOLW, vOLR, vYO, vOBA = 58, 59, 60, 61
vSC = 62

def srd(g, r, ptr, size):
    g.A(f"s_mov_b32 s{r}, s{ptr}")
    g.A(f"s_mov_b32 s{r+1}, s{ptr+1}")
    g.A(f"s_mov_b32 s{r+2}, {size}")
    g.A(f"s_mov_b32 s{r+3}, 0x20000")

DPP = "row_mask:0xf bank_mask:0xf"
def wave_reduce(g, op, regs, tmps, swaps=("v_permlane16_swap_b32", "v_permlane32_swap_b32")):
    n = len(regs)
    for pat in ("quad_perm:[1,0,3,2]", "quad_perm:[2,3,0,1]", "row_half_mirror", "row_mirror"):
        g.nop(max(0, 2 - (n - 1)))
        for r in regs:
            g.A(f"{op} v{r}, v{r}, v{r} {pat} {DPP}")
    for sw in swaps:
        for r, t in zip(regs, tmps):
            g.A(f"v_mov_b32 v{t}, v{r}")
        g.nop(2)
        for r, t in zip(regs, tmps):
            g.A(f"{sw} v{r}, v{t}")
        g.nop(1)
        for r, t in zip(regs, tmps):
            g.A(f"{op} v{r}, v{r}, v{t}")

def rnd2(g, a, b, t):
    g.A(f"v_cvt_pk_bf16_f32 v{t}, v{a}, v{b}")
    g.A(f"v_lshlrev_b32 v{a}, 16, v{t}")
    g.A(f"v_and_b32 v{b}, s{sHI}, v{t}")
def rnd1(g, a):
    g.A(f"v_cvt_pk_bf16_f32 v{a}, v{a}, v{a}")
    g.A(f"v_lshlrev_b32 v{a}, 16, v{a}")
def unpack(g, src, lo, hi):
    g.A(f"v_lshlrev_b32 v{lo}, 16, v{src}")
    g.A(f"v_and_b32 v{hi}, s{sHI}, v{src}")

def layernorm(g, X, t0, t1, t2, last_round=True):
    g.A(f"v_add_f32 v{t0}, v{X}, v{X+1}")
    g.A(f"v_add_f32 v{t1}, v{X+2}, v{X+3}")
    g.A(f"v_add_f32 v{t0}, v{t0}, v{X+4}")
    g.A(f"v_add_f32 v{t1}, v{t1}, v{X+5}")
    g.A(f"v_add_f32 v{t0}, v{t0}, v{X+6}")
    g.A(f"v_add_f32 v{t1}, v{t1}, v{X+7}")
    g.A(f"v_add_f32 v{t0}, v{t0}, v{t1}")
    wave_reduce(g, "v_add_f32", [t0], [t1])
    g.A(f"v_mul_f32 v{t0}, {f2u(1.0/448):#x}, v{t0}")
    g.A(f"v_sub_f32 v{t2}, v{X}, v{t0}")
    g.A(f"v_mul_f32 v{t1}, v{t2}, v{t2}")
    for i in range(1, 8):
        g.A(f"v_sub_f32 v{t2}, v{X+i}, v{t0}")
        g.A(f"v_fmac_f32 v{t1}, v{t2}, v{t2}")
    g.A(f"v_cndmask_b32 v{t1}, 0, v{t1}, s[{sM56}:{sM56+1}]")
    wave_reduce(g, "v_add_f32", [t1], [t2])
    g.A(f"v_mul_f32 v{t1}, {f2u(1.0/448):#x}, v{t1}")
    rnd2(g, t0, t1, t2)
    g.A(f"v_add_f32 v{t1}, {f2u(1e-5):#x}, v{t1}")
    rnd1(g, t1)
    g.A(f"v_sqrt_f32 v{t1}, v{t1}")
    g.nop(1)
    rnd1(g, t1)
    g.A(f"v_rcp_f32 v{t1}, v{t1}")
    for i in range(8):
        g.A(f"v_sub_f32 v{X+i}, v{X+i}, v{t0}")
    for i in range(0, 8, 2):
        rnd2(g, X+i, X+i+1, t2)
    for i in range(8):
        g.A(f"v_mul_f32 v{X+i}, v{X+i}, v{t1}")
    if last_round:
        for i in range(0, 8, 2):
            rnd2(g, X+i, X+i+1, t2)

def modulate_pack(g, X, OC, SH, D, t, n=8):
    for i in range(n):
        g.A(f"v_mul_f32 v{X+i}, v{X+i}, v{OC+i}")
    for i in range(0, n, 2):
        rnd2(g, X+i, X+i+1, t)
    for i in range(n):
        g.A(f"v_add_f32 v{X+i}, v{X+i}, v{SH+i}")
    for i in range(0, n, 2):
        g.A(f"v_cvt_pk_bf16_f32 v{D+i//2}, v{X+i}, v{X+i+1}")

class VM:
    def __init__(self, g, W, n0=0):
        self.g, self.W, self.n = g, W, n0
    def pre(self):
        if self.W and self.n >= self.W:
            self.g.A(f"s_waitcnt vmcnt({self.W-1})")
            self.n = self.W - 1
        self.n += 1

def dma7(g, pol, vm):
    for i in range(7):
        vm.pre()
        g.A(f"s_mov_b32 m0, s{sLDS}")
        g.A(f"s_add_u32 s{sLDS}, s{sLDS}, 1024")
        g.A(f"buffer_load_dwordx4 v{vDM}, s[{sA}:{sA+3}], s{sSTART} offen{pol} lds")
        g.A(f"s_add_u32 s{sSTART}, s{sSTART}, s{sSTEP}")

def k_tile(g, vm, pol, t):
    g.A(f"s_add_u32 s{sT0}, s{sROT}, {t}")
    g.A(f"s_and_b32 s{sT0}, s{sT0}, 3")
    g.A(f"s_lshl_b32 s{sT0}, s{sT0}, 13")
    g.A(f"s_add_u32 s{sT0}, s{sT0}, s{sKB}")
    g.A(f"s_add_u32 s{sT1}, s{sT0}, 4096")
    for jj in range(8):
        vm.pre()
        r = vK + 32*t + 4*jj
        kq, blk = jj >> 1, jj & 1
        so = sT0 if kq < 2 else sT1
        g.A(f"buffer_load_dwordx4 v[{r}:{r+3}], v{vKO}, s[{sK}:{sK+3}], s{so} offen offset:{(kq&1)*2048 + blk*256}{pol}")

def v_dst(u): return vVE + 32*u

def v_loads(g, vm, pol, units):
    for u in units:
        gam, eta = u >> 1, u & 1
        if eta == 0:
            g.A(f"s_add_u32 s{sT0}, s{sROT}, {gam}")
            g.A(f"s_and_b32 s{sT0}, s{sT0}, 1")
            g.A(f"s_lshl_b32 s{sT0}, s{sT0}, 14")
            g.A(f"s_add_u32 s{sT0}, s{sT0}, s{sKB}")
        for r in range(8):
            vm.pre()
            d = v_dst(u) + 4*r
            g.A(f"buffer_load_dwordx4 v[{d}:{d+3}], v{vVO}, s[{sV}:{sV+3}], s{sT0} offen offset:{512*r + 256*eta}{pol}")

def get_tag(g):
    g.A(f"v_readfirstlane_b32 s{sTAG}, v{vE}")
    g.A(f"s_add_u32 s{sTAG}, s{sTAG}, 0x9e3779b9")

def check_tags(g, regs, fail_label, mask=None, t=vT):
    if len(regs) == 1:
        g.A(f"v_cmp_ne_u32 vcc, s{sTAG}, v{regs[0]}")
    else:
        g.A(f"v_xor_b32 v{t}, s{sTAG}, v{regs[0]}")
        for r in regs[1:]:
            g.A(f"v_bitop3_b32 v{t}, v{t}, v{r}, s{sTAG} bitop3:0xf6")
        g.A(f"v_cmp_ne_u32 vcc, 0, v{t}")
    if mask is not None:
        g.A(f"s_and_b64 vcc, vcc, s[{mask}:{mask+1}]")
    ok = g.newlab("L_ok")
    g.A(f"s_cbranch_vccz {ok}")
    g.A(f"s_sub_u32 s{sRETRY}, s{sRETRY}, 1")
    g.A(f"s_cbranch_scc0 {fail_label}")
    g.A(f"s_mov_b32 s{sRETRY}, 0")
    g.lbl(ok)

def lds_spin(g, off, target_sreg_or_imm, lab):
    g.A(f"v_mov_b32 v{vT}, {L_FLAG}")
    g.lbl(lab)
    g.A(f"ds_read_b32 v{vT+1}, v{vT} offset:{off}")
    g.A("s_waitcnt lgkmcnt(0)")
    g.A(f"v_cmp_le_u32 vcc, {target_sreg_or_imm}, v{vT+1}")
    g.A(f"s_cbranch_vccnz {lab}_ok")
    g.A("s_sleep 2")
    g.A(f"s_branch {lab}")
    g.lbl(lab + "_ok")

def lds_inc(g, off):
    g.A(f"v_mov_b32 v{vT}, {L_FLAG}")
    g.A(f"v_mov_b32 v{vT+1}, 1")
    g.A("s_mov_b64 exec, 1")
    g.A(f"ds_add_u32 v{vT}, v{vT+1} offset:{off}")
    g.A("s_mov_b64 exec, -1")

NSTAMP = 10
def stamp(g, idx):
    if not g.o.get("stamps"): return
    g.A(f"s_memrealtime s[{sST}:{sST+1}]")
    g.A("s_waitcnt lgkmcnt(0)")
    g.A(f"s_mov_b32 s{92+idx}, s{sST}")
def flush_stamps(g, n):
    if not g.o.get("stamps"): return
    if g.o.get("dbg"):
        g.A("s_mov_b64 exec, 1")
        g.A("v_mov_b32 v15, 0")
        g.A("s_not_b32 s92, s92")
        for i in range(n):
            g.A(f"v_mov_b32 v14, s{92+i}")
            g.A(f"global_atomic_umax v15, v14, s[82:83] offset:{4*i}")
            g.nop(1)
        return
    g.A(f"s_lshl_b32 s{sT3}, s2, 3")
    g.A(f"s_add_u32 s{sT3}, s{sT3}, s{sWAVE}")
    g.A(f"s_lshl_b32 s{sT3}, s{sT3}, 6")
    g.A(f"s_add_u32 s{sT3}, s{sT3}, {WS_STAMP}")
    g.A("s_mov_b64 exec, 1")
    g.A("v_mov_b32 v15, 0")
    for i in range(n):
        g.A(f"v_mov_b32 v14, s{92+i}")
        g.A(f"buffer_store_dword v14, v15, s[{sWS}:{sWS+3}], s{sT3} offen offset:{4*i}")
        g.nop(1)

def sel4(g, dst, r0, r1, r2, r3, m1, m2, m3):
    g.A(f"v_cndmask_b32 v{dst}, v{r0}, v{r1}, s[{m1}:{m1+1}]")
    g.A(f"v_cndmask_b32 v{dst}, v{dst}, v{r2}, s[{m2}:{m2+1}]")
    g.A(f"v_cndmask_b32 v{dst}, v{dst}, v{r3}, s[{m3}:{m3+1}]")

def build(opt):
    g = G(opt)
    A = g.A
    polK = opt.get("polK", " nt"); polV = opt.get("polV", " nt"); polW = opt.get("polW", " nt")
    polWO = opt.get("polWO", " nt"); polP = opt.get("polP", "")
    W = opt.get("W", 12)
    W2 = opt.get("W2", 24)
    PRIO = opt.get("prio", 1)
    def prio(p):
        if PRIO: A(f"s_setprio {p}")
    hdr = open(f"cdna_kernels/{NAME}.s.ref").read().split("\n")
    for line in hdr:
        if line.startswith("; @launch"):
            g.L.append(f"; @launch grid=(256,1,1) block=(512,1,1) lds={L_END}")
            break
        g.L.append(line)
    g.L += ['.amdgcn_target "amdgcn-amd-amdhsa--gfx950"', ".text", f".globl {NAME}_kernel", ".p2align 8",
            f".type {NAME}_kernel,@function"]
    g.lbl(f"{NAME}_kernel")
    A("s_cmp_ge_u32 s2, 256")
    A("s_cbranch_scc1 L_end")
    A("s_load_dwordx16 s[64:79], s[0:1], 0")
    A("s_load_dwordx8 s[80:87], s[0:1], 64")
    A("s_load_dwordx2 s[90:91], s[0:1], 104")
    if opt.get("dbg"):
        A("s_memrealtime s[92:93]")
        A("s_load_dwordx2 s[74:75], s[0:1], 96") if False else None
    A(f"s_getpc_b64 s[{sST}:{sST+1}]")
    g.lbl("L_pc")
    A(f"v_lshlrev_b32 v{vT}, 5, v0")
    A(f"v_min_u32 v{vT}, L_end - L_pc - 4, v{vT}")
    A(f"global_load_dword v15, v{vT}, s[{sST}:{sST+1}]")
    prio(3)
    A(f"v_lshrrev_b32 v{vL}, 6, v0")
    A(f"s_and_b32 s{sS}, s2, 7")
    A(f"v_readfirstlane_b32 s{sWAVE}, v{vL}")
    A(f"v_and_b32 v{vL}, 63, v0")
    A(f"v_and_b32 v{vJ}, 15, v0")
    A(f"v_lshrrev_b32 v{vGR}, 4, v{vL}")
    A(f"v_lshrrev_b32 v{vKO}, 2, v{vJ}")
    A(f"v_lshlrev_b32 v{vKO}, 9, v{vKO}")
    A(f"v_lshl_add_u32 v{vKO}, v{vGR}, 6, v{vKO}")
    A(f"v_and_b32 v{vT+3}, 3, v0")
    A(f"v_lshl_add_u32 v{vKO}, v{vT+3}, 4, v{vKO}")
    A(f"v_lshlrev_b32 v{vL16}, 4, v{vL}")
    A(f"s_lshr_b32 s{sN}, s2, 3")
    A(f"s_and_b32 s{sB_}, s{sN}, 3")
    A(f"s_lshr_b32 s{sKVH}, s{sN}, 2")
    A(f"s_lshl_b32 s{sGRP}, s{sB_}, 3")
    A(f"s_add_u32 s{sGRP}, s{sGRP}, s{sKVH}")
    A(f"s_lshl_b32 s{sT0}, s{sGRP}, 21")
    A(f"s_lshl_b32 s{sT1}, s{sS}, 18")
    A(f"s_add_u32 s{sT0}, s{sT0}, s{sT1}")
    A(f"s_lshl_b32 s{sT1}, s{sWAVE}, 15")
    A(f"s_add_u32 s{sKB}, s{sT0}, s{sT1}")
    A(f"s_add_u32 s{sROT}, s{sN}, s{sWAVE}")
    A(f"s_and_b32 s{sROT}, s{sROT}, 3")
    A(f"s_mov_b32 s{sM56}, -1"); A(f"s_mov_b32 s{sM56+1}, 0x00ffffff")
    A(f"s_mov_b32 s{sROLE}, 0")
    A(f"s_mov_b32 s{sK+2}, {64<<20}")
    A(f"s_mov_b32 s{sK+3}, 0x20000")
    A(f"s_cmp_lt_u32 s{sN}, 16")
    A("s_waitcnt lgkmcnt(0)")
    A(f"s_mov_b32 s{sK}, s{P_K}")
    A(f"s_mov_b32 s{sK+1}, s{P_K+1}")
    A("s_cbranch_scc0 L_early")
    g.lbl("L_kload")
    vm = VM(g, W, 1)
    k_tile(g, vm, polK, 0)
    srd(g, sWS, P_WS, WS_SIZE)
    A(f"v_mov_b32 v{vT}, 0")
    A(f"buffer_load_dword v{vE}, v{vT}, s[{sWS}:{sWS+3}], 0 offen sc1")
    vm.n += 1
    if opt.get("stamps"):
        for i in range(1 if opt.get("dbg") else 0, NSTAMP): A(f"s_mov_b32 s{92+i}, 0")
    if opt.get("dbg"):
        A("s_load_dwordx2 s[82:83], s[0:1], 96")
        A("s_waitcnt lgkmcnt(0)")
    else:
        stamp(g, 0)
    srd(g, sV, P_V, 64 << 20)
    A(f"v_lshlrev_b32 v{vVO}, 12, v{vGR}")
    A(f"v_lshl_add_u32 v{vVO}, v{vJ}, 4, v{vVO}")
    A(f"s_mov_b32 s{sRETRY}, 0x40000")
    A(f"s_mov_b32 s{sM1}, 0xffff0000"); A(f"s_mov_b32 s{sM1+1}, 0")
    A(f"s_mov_b32 s{sM2}, 0"); A(f"s_mov_b32 s{sM2+1}, 0xffff")
    A(f"s_mov_b32 s{sM3}, 0"); A(f"s_mov_b32 s{sM3+1}, 0xffff0000")
    A(f"s_mov_b32 s{sQ1}, 0x22222222"); A(f"s_mov_b32 s{sQ1+1}, 0x22222222")
    A(f"s_mov_b32 s{sQ2}, 0x44444444"); A(f"s_mov_b32 s{sQ2+1}, 0x44444444")
    A(f"s_mov_b32 s{sQ3}, 0x88888888"); A(f"s_mov_b32 s{sQ3+1}, 0x88888888")
    A(f"s_mov_b32 s{sR8}, 0xff00ff00"); A(f"s_mov_b32 s{sR8+1}, 0xff00ff00")
    A(f"s_mov_b32 s{sPLO}, 0x05040100"); A(f"s_mov_b32 s{sPHI}, 0x07060302")
    A(f"s_mov_b32 s{sC}, {f2u(0.0625*LOG2E):#x}")
    A(f"s_mov_b32 s{sHI}, 0xffff0000")
    A(f"s_mov_b32 s{sSV}, 0")
    A(f"s_sub_u32 s{sRED}, s2, 144")
    A(f"s_cselect_b32 s{sRED}, 0xffff, s{sRED}")
    A(f"s_cmp_lg_u32 s{sROLE}, 0")
    A("s_cbranch_scc1 L_hook")
    A(f"s_cmp_lt_u32 s{sN}, 16")
    A("s_cbranch_scc0 L_k1")
    A(f"s_lshr_b32 s{sT1}, s{sS}, 1")
    A(f"s_and_b32 s{sT2}, s{sS}, 1")
    A(f"s_lshl_b32 s{sT2}, s{sT2}, 2")
    A(f"s_add_u32 s{sT1}, s{sT1}, s{sT2}")
    A(f"s_bfe_u32 s{sT3}, s{sN}, 0x20001")
    A(f"s_lshl_b32 s{sT3}, s{sT3}, 3")
    A(f"s_add_u32 s{sT1}, s{sT1}, s{sT3}")
    A(f"s_lshl_b32 s{sIDX}, s{sT1}, 1")
    A(f"s_and_b32 s{sT2}, s{sN}, 1")
    A(f"s_add_u32 s{sIDX}, s{sIDX}, s{sT2}")
    A(f"s_cmp_lt_u32 s{sN}, 8")
    A(f"s_cselect_b32 s{sROLE}, 2, 8")
    A(f"s_cmp_lt_u32 s{sT1}, 28")
    A(f"s_cselect_b32 s{sROLE}, s{sROLE}, 0")
    g.lbl("L_k1")
    def svpoll():
        for i, off in enumerate((0, 16, 1792, 1808)):
            A(f"buffer_load_dwordx4 v[{32+4*i}:{35+4*i}], v13, s[{sWS}:{sWS+3}], s{sXO} offen offset:{off} sc1")
    def svtest():
        A(f"v_xor_b32 v{vT}, s{sTAG}, v35")
        for r in (39, 43, 47):
            A(f"v_bitop3_b32 v{vT}, v{vT}, v{r}, s{sTAG} bitop3:0xf6")
        A(f"v_cmp_ne_u32 vcc, 0, v{vT}")
        A(f"s_and_b64 vcc, vcc, s[{sM56}:{sM56+1}]")
    for t in range(1, 4):
        A(f"s_cmp_eq_u32 s{sSV}, 0")
        A(f"s_cbranch_scc1 L_kt{t}")
        svpoll()
        g.lbl(f"L_kt{t}")
        k_tile(g, vm, polK, t)
        A(f"s_cmp_eq_u32 s{sSV}, 0")
        A(f"s_cbranch_scc1 L_kd{t}")
        A("s_waitcnt vmcnt(8)")
        svtest()
        A(f"s_cbranch_vccnz L_kd{t}")
        A(f"s_call_b64 s[{sRET}:{sRET+1}], L_svc")
        g.lbl(f"L_kd{t}")
    A(f"s_cmp_eq_u32 s{sSV}, 0")
    A("s_cbranch_scc1 L_kdone")
    g.lbl("L_hpoll")
    svpoll()
    A("s_waitcnt vmcnt(0)")
    check_tags(g, [35, 39, 43, 47], "L_hpoll", mask=sM56)
    A(f"s_call_b64 s[{sRET}:{sRET+1}], L_svc")
    g.lbl("L_kdone")
    get_tag(g)
    prio(2)
    def qloads():
        for i in range(2):
            A(f"buffer_load_dwordx4 v[{16+4*i}:{19+4*i}], v{vL16}, s[{sWS}:{sWS+3}], s{sXO} offen offset:{1024*i} sc1")
    A(f"s_lshl_b32 s{sT1}, s{sB_}, 14")
    A(f"s_lshl_b32 s{sT2}, s{sKVH}, 11")
    A(f"s_add_u32 s{sT1}, s{sT1}, s{sT2}")
    A(f"s_add_u32 s{sXO}, s{sT1}, {WS_Q}")
    v_loads(g, VM(g, W, W), polV, [0, 1])
    qloads()
    prio(1)
    srd(g, sA, P_WO, 4096*896)
    A(f"s_lshr_b32 s{sT2}, s{sWAVE}, 2")
    A(f"s_lshl_b32 s{sT0}, s{sKVH}, 1")
    A(f"s_add_u32 s{sT0}, s{sT0}, s{sT2}")
    A(f"s_lshl_b32 s{sT0}, s{sT0}, 8")
    A(f"s_lshl_b32 s{sT2}, s{sS}, 5")
    A(f"s_add_u32 s{sT0}, s{sT0}, s{sT2}")
    A(f"s_mul_i32 s{sSTART}, s{sT0}, 896")
    A(f"s_and_b32 s{sT1}, s{sWAVE}, 3")
    A(f"s_mul_i32 s{sT1}, s{sT1}, 7168")
    A(f"s_add_u32 s{sSTART}, s{sSTART}, s{sT1}")
    A(f"s_mul_i32 s{sLDS}, s{sWAVE}, 7168")
    A(f"s_mov_b32 s{sSTEP}, 1024")
    A(f"v_mov_b32 v{vDM}, v{vL16}")
    dma7(g, polWO, VM(g, W, W))
    A(f"s_and_b32 s{sT0}, s{sROLE}, 10")
    A("s_cbranch_scc1 L_md2")
    g.lbl("L_ld_done")
    A("s_waitcnt vmcnt(7)")
    A("s_branch L_qchk")
    g.lbl("L_qpoll")
    qloads()
    A("s_waitcnt vmcnt(0)")
    g.lbl("L_qchk")
    check_tags(g, [19, 23], "L_qpoll")
    stamp(g, 3)
    A(f"v_lshlrev_b32 v{vT+2}, 3, v{vL}")
    A(f"v_add_u32 v{vT+2}, {L_Q}, v{vT+2}")
    A(f"ds_write_b64 v{vT+2}, v[16:17]")
    A(f"ds_write_b64 v{vT+2}, v[20:21] offset:512")
    A(f"v_bfe_u32 v{vT}, v{vJ}, 2, 1")
    A(f"v_lshlrev_b32 v{vT}, 9, v{vT}")
    A(f"v_lshl_add_u32 v{vT}, v{vGR}, 6, v{vT}")
    A(f"v_and_b32 v{vT+1}, 3, v{vL}")
    A(f"v_lshl_add_u32 v{vT}, v{vT+1}, 4, v{vT}")
    A(f"v_add_u32 v{vT}, {L_Q}, v{vT}")
    QL, QH = 48, 56
    A(f"ds_read_b128 v[{QL}:{QL+3}], v{vT}")
    A(f"ds_read_b128 v[{QL+4}:{QL+7}], v{vT} offset:256")
    A(f"s_waitcnt lgkmcnt(0)")
    for i in range(8):
        A(f"v_cndmask_b32 v{QH+i}, 0, v{QL+i}, s[{sR8}:{sR8+1}]")
    for i in range(8):
        A(f"v_cndmask_b32 v{QL+i}, v{QL+i}, 0, s[{sR8}:{sR8+1}]")
    g.nop(2)
    SD = 16
    for t in range(4):
        for jj in range(8):
            kq, blk = jj >> 1, jj & 1
            d = SD + 4*(2*t + (kq >> 1))
            q = (QH if (kq & 1) else QL) + 4*blk
            r = vK + 32*t + 4*jj
            c = "0" if (jj & 3) == 0 else f"v[{d}:{d+3}]"
            A(f"v_mfma_f32_16x16x32_bf16 v[{d}:{d+3}], v[{q}:{q+3}], v[{r}:{r+3}], {c}")
    prio(0)
    A(f"s_cmp_eq_u32 s{sWAVE}, 7")
    A("s_cbranch_scc1 L_par7")
    A(f"s_cmp_eq_u32 s{sROLE}, 2")
    A("s_cbranch_scc1 L_parF")
    g.lbl("L_par_done")
    v_loads(g, VM(g, W2, W2), polV, [2, 3])
    for d in range(8):
        D = SD + 4*d
        sel4(g, D, D, D+1, D+2, D+3, sQ1, sQ2, sQ3)
    for pat in ("quad_perm:[1,0,3,2]", "quad_perm:[2,3,0,1]"):
        for d in range(8):
            D = SD + 4*d
            A(f"v_add_f32 v{D}, v{D}, v{D} {pat} {DPP}")
    S0, S1 = 10, 11
    sel4(g, S0, SD, SD+4, SD+8, SD+12, sQ1, sQ2, sQ3)
    sel4(g, S1, SD+16, SD+20, SD+24, SD+28, sQ1, sQ2, sQ3)
    rnd2(g, S0, S1, vT)
    A(f"v_max_f32 v{vSC}, v{S0}, v{S1}")
    wave_reduce(g, "v_max_f32", [vSC], [17], swaps=("v_permlane32_swap_b32",))
    A(f"v_sub_f32 v{S0}, v{S0}, v{vSC}")
    A(f"v_sub_f32 v{S1}, v{S1}, v{vSC}")
    A(f"v_mul_f32 v{S0}, s{sC}, v{S0}")
    A(f"v_mul_f32 v{S1}, s{sC}, v{S1}")
    A(f"v_exp_f32 v{S0}, v{S0}")
    A(f"v_exp_f32 v{S1}, v{S1}")
    A(f"v_and_b32 v12, 1, v{vGR}")
    A(f"v_bfe_u32 v28, v{vL}, 1, 1")
    A(f"v_add_u32 v28, s{sROT}, v28")
    A(f"v_add_u32 v29, 2, v28")
    A(f"v_and_b32 v28, 3, v28")
    A(f"v_and_b32 v29, 3, v29")
    A(f"v_and_b32 v30, 1, v{vL}")
    A(f"v_lshlrev_b32 v30, 3, v30")
    A(f"v_lshrrev_b32 v31, 1, v{vGR}")
    A(f"v_lshl_add_u32 v30, v31, 2, v30")
    A(f"v_lshrrev_b32 v31, 2, v{vJ}")
    A(f"v_add_u32 v30, v30, v31")
    A(f"v_lshlrev_b32 v30, 1, v30")
    A(f"v_lshl_add_u32 v30, v12, 7, v30")
    A(f"s_lshl_b32 s{sT1}, s{sWAVE}, 8")
    A(f"s_add_u32 s{sT1}, s{sT1}, {L_P}")
    A(f"v_add_u32 v30, s{sT1}, v30")
    A(f"v_lshl_add_u32 v28, v28, 5, v30")
    A(f"v_lshl_add_u32 v29, v29, 5, v30")
    A(f"v_cvt_pk_bf16_f32 v20, v{S0}, v{S1}")
    A(f"v_add_f32 v16, v{S0}, v{S1}")
    A(f"ds_write_b16 v28, v20")
    A(f"ds_write_b16_d16_hi v29, v20")
    A(f"v_and_b32 v{vT}, 1, v{vL}")
    A(f"v_lshlrev_b32 v{vT}, 7, v{vT}")
    A(f"v_lshl_add_u32 v{vT}, v{vGR}, 4, v{vT}")
    A(f"s_and_b32 s{sT0}, s{sROT}, 1")
    A(f"s_lshl_b32 s{sT0}, s{sT0}, 6")
    A(f"s_add_u32 s{sT2}, s{sT1}, s{sT0}")
    A(f"s_xor_b32 s{sT0}, s{sT0}, 64")
    A(f"s_add_u32 s{sT3}, s{sT1}, s{sT0}")
    A(f"v_add_u32 v18, s{sT2}, v{vT}")
    A(f"v_add_u32 v19, s{sT3}, v{vT}")
    PF = 48
    A(f"ds_read_b128 v[{PF}:{PF+3}], v18")
    A(f"ds_read_b128 v[{PF+4}:{PF+7}], v19")
    wave_reduce(g, "v_add_f32", [16], [17], swaps=("v_permlane32_swap_b32",))
    A(f"v_lshlrev_b32 v13, 5, v12")
    A(f"v_add_u32 v13, {L_RED}, v13")
    A(f"s_lshl_b32 s{sT0}, s{sWAVE}, 2")
    A(f"v_add_u32 v14, s{sT0}, v13")
    A(f"ds_write_b32 v14, v{vSC}")
    A(f"ds_write_b32 v14, v16 offset:64")
    A(f"v_lshlrev_b32 v{vOLW}, 10, v12")
    A(f"v_lshl_add_u32 v{vOLW}, v{vJ}, 5, v{vOLW}")
    A(f"v_lshrrev_b32 v12, 1, v{vGR}")
    A(f"v_lshl_add_u32 v{vOLW}, v12, 4, v{vOLW}")
    A(f"s_lshl_b32 s{sT1}, s{sWAVE}, 11")
    A(f"s_add_u32 s{sT1}, s{sT1}, {L_OL}")
    A(f"v_add_u32 v{vOLW}, s{sT1}, v{vOLW}")
    A(f"s_lshl_b32 s{sT0}, s{sWAVE}, 8")
    A(f"s_add_u32 s{sT0}, s{sT0}, {L_OL}")
    A(f"v_lshl_add_u32 v{vOLR}, v{vL}, 3, s{sT0}")
    A(f"s_lshl_b32 s{sO_IN}, s{sGRP}, 15")
    A(f"s_add_u32 s{sO_IN}, s{sO_IN}, {WS_O}")
    A(f"s_and_b32 s{sT1}, s{sWAVE}, 3")
    A(f"s_lshl_b32 s{sT1}, s{sT1}, 13")
    A(f"s_add_u32 s{sO_DST}, s{sO_IN}, s{sT1}")
    A(f"s_lshl_b32 s{sT1}, s{sS}, 9")
    A(f"s_add_u32 s{sO_DST}, s{sO_DST}, s{sT1}")
    A(f"s_lshr_b32 s{sT1}, s{sWAVE}, 2")
    A(f"s_lshl_b32 s{sT1}, s{sT1}, 8")
    A(f"s_add_u32 s{sO_DST}, s{sO_DST}, s{sT1}")
    A(f"s_lshl_b32 s{sT1}, s{sS}, 12")
    A(f"s_add_u32 s{sO_IN}, s{sO_IN}, s{sT1}")
    A(f"s_mul_i32 s{sT0}, s{sB_}, 28")
    A(f"s_lshl_b32 s{sT1}, s{sWAVE}, 2")
    A(f"s_add_u32 s{sT0}, s{sT0}, s{sT1}")
    A(f"s_lshl_b32 s{sT0}, s{sT0}, 6")
    A(f"s_lshl_b32 s{sT1}, s{sKVH}, 3")
    A(f"s_add_u32 s{sT0}, s{sT0}, s{sT1}")
    A(f"s_add_u32 s{sT0}, s{sT0}, s{sS}")
    A(f"s_lshl_b32 s{sT0}, s{sT0}, 7")
    A(f"s_add_u32 s{sY_DST}, s{sT0}, {WS_Y}")
    A(f"v_lshlrev_b32 v{vYO}, 13, v{vGR}")
    A(f"v_lshl_add_u32 v{vYO}, v{vJ}, 3, v{vYO}")
    A(f"v_lshlrev_b32 v{vOBA}, 4, v{vGR}")
    A(f"v_add_u32 v{vOBA}, {L_OB}, v{vOBA}")
    A("s_waitcnt lgkmcnt(0)")
    ACCB = (16, 192)
    PT = 224
    def pv(u):
        gam, eta = u >> 1, u & 1
        A(f"s_waitcnt vmcnt({8*(3-u)})")
        R = v_dst(u)
        for c in range(4):
            T = PT + 8*(c & 1)
            for m in range(4):
                A(f"v_perm_b32 v{T+m}, v{R+4*(2*m+1)+c}, v{R+4*(2*m)+c}, s{sPLO}")
            for m in range(4):
                A(f"v_perm_b32 v{T+4+m}, v{R+4*(2*m+1)+c}, v{R+4*(2*m)+c}, s{sPHI}")
            g.nop(1)
            for hh in range(2):
                acc = ACCB[eta] + 4*(2*c + hh)
                cc = "0" if gam == 0 else f"v[{acc}:{acc+3}]"
                A(f"v_mfma_f32_16x16x32_bf16 v[{acc}:{acc+3}], v[{PF+4*gam}:{PF+4*gam+3}], v[{T+4*hh}:{T+4*hh+3}], {cc}")
    pv(0); pv(1)
    A("s_barrier")
    stamp(g, 4)
    for i in range(4):
        A(f"ds_read_b128 v[{64+4*i}:{67+4*i}], v13 offset:{(0,16,64,80)[i]}")
    A("s_waitcnt lgkmcnt(2)")
    A(f"v_max3_f32 v80, v64, v65, v66")
    A(f"v_max3_f32 v81, v67, v68, v69")
    A(f"v_max3_f32 v80, v80, v70, v71")
    A(f"v_max_f32 v80, v80, v81")
    for i in range(8): A(f"v_sub_f32 v{64+i}, v{64+i}, v80")
    A(f"v_sub_f32 v{vSC}, v{vSC}, v80")
    for i in range(8): A(f"v_mul_f32 v{64+i}, s{sC}, v{64+i}")
    A(f"v_mul_f32 v{vSC}, s{sC}, v{vSC}")
    for i in range(8): A(f"v_exp_f32 v{64+i}, v{64+i}")
    A(f"v_exp_f32 v{vSC}, v{vSC}")
    A("s_waitcnt lgkmcnt(0)")
    A(f"v_mul_f32 v81, v64, v72")
    for i in range(1, 8): A(f"v_fmac_f32 v81, v{64+i}, v{72+i}")
    A(f"v_rcp_f32 v82, v81")
    A(f"v_log_f32 v83, v81")
    PUB = 84
    A(f"v_mov_b32 v{PUB+3}, s{sTAG}")
    A(f"v_mul_f32 v{vSC}, v{vSC}, v82")
    A(f"v_fma_f32 v83, v80, s{sC}, v83")
    A(f"s_lshr_b32 s{sT0}, s{sWAVE}, 2")
    A(f"s_lshl_b32 s{sT0}, s{sT0}, 4")
    A(f"v_readlane_b32 s{sT0}, v83, s{sT0}")
    g.nop(2)
    A(f"v_mov_b32 v{PUB+2}, s{sT0}")
    def outsel(eta, OUT):
        B = ACCB[eta]
        for i in range(4):
            A(f"v_cndmask_b32 v{OUT+i}, v{B+4*i}, v{B+4*i+1}, s[{sM1}:{sM1+1}]")
        g.nop(3)
        for i in range(4):
            A(f"v_cndmask_b32 v{OUT+i}, v{OUT+i}, v{B+4*(4+i)}, s[{sM2}:{sM2+1}]")
        for i in range(4):
            A(f"v_cndmask_b32 v{OUT+i}, v{OUT+i}, v{B+4*(4+i)+1}, s[{sM3}:{sM3+1}]")
        for i in range(4):
            A(f"v_mul_f32 v{OUT+i}, v{OUT+i}, v{vSC}")
        A(f"ds_write_b128 v{vOLW}, v[{OUT}:{OUT+3}] offset:{512*eta}")
    pv(2); outsel(0, 88)
    pv(3)
    stamp(g, 5)
    outsel(1, 92)
    A("s_waitcnt lgkmcnt(0)")
    A("s_barrier")
    for w in range(8):
        A(f"ds_read_b64 v[{16+2*w}:{17+2*w}], v{vOLR} offset:{2048*w}")
    A("s_mov_b32 exec_hi, 0")
    A("s_waitcnt lgkmcnt(6)")
    A(f"v_pk_add_f32 v[16:17], v[16:17], v[18:19]")
    A("s_waitcnt lgkmcnt(4)")
    A(f"v_pk_add_f32 v[20:21], v[20:21], v[22:23]")
    A("s_waitcnt lgkmcnt(2)")
    A(f"v_pk_add_f32 v[24:25], v[24:25], v[26:27]")
    A(f"v_pk_add_f32 v[16:17], v[16:17], v[20:21]")
    A("s_waitcnt lgkmcnt(0)")
    A(f"v_pk_add_f32 v[28:29], v[28:29], v[30:31]")
    A(f"v_pk_add_f32 v[24:25], v[24:25], v[28:29]")
    A(f"v_pk_add_f32 v[{PUB}:{PUB+1}], v[16:17], v[24:25]")
    A(f"buffer_store_dwordx4 v[{PUB}:{PUB+3}], v{vVO}, s[{sWS}:{sWS+3}], s{sO_DST} offen sc1")
    A("s_mov_b64 exec, -1")
    stamp(g, 6)
    A(f"s_cmp_eq_u32 s{sWAVE}, 7")
    A("s_cbranch_scc1 L_w7")

    WB = 128
    A(f"v_lshrrev_b32 v{vT}, 2, v{vJ}")
    A(f"v_lshl_add_u32 v{vT}, v{vGR}, 3, v{vT}")
    A(f"v_mul_u32_u24 v{vT}, 896, v{vT}")
    A(f"v_and_b32 v12, 3, v{vL}")
    A(f"v_lshl_add_u32 v{vT}, v12, 3, v{vT}")
    A(f"s_lshl_b32 s{sT0}, s{sWAVE}, 7")
    A(f"v_add_u32 v13, s{sT0}, v{vT}")
    for t in range(4):
        for ks in range(2):
            r = WB + 8*t + 4*ks
            A(f"ds_read_b64_tr_b16 v[{r}:{r+1}], v13 offset:{L_WO + ks*28672 + t*32}")
            A(f"ds_read_b64_tr_b16 v[{r+2}:{r+3}], v13 offset:{L_WO + ks*28672 + t*32 + 3584}")
        if t == 1: A("s_waitcnt lgkmcnt(0)")
    A(f"v_mov_b32 v41, s{sTAG}")
    A("s_waitcnt lgkmcnt(0)")
    A("s_barrier")
    A(f"ds_read_b128 v[16:19], v{vOBA}")
    A(f"ds_read_b128 v[20:23], v{vOBA} offset:64")
    A("s_waitcnt lgkmcnt(1)")
    for t in range(4):
        A(f"v_mfma_f32_16x16x32_bf16 v[{24+4*t}:{27+4*t}], v[16:19], v[{WB+8*t}:{WB+8*t+3}], 0")
    A("s_waitcnt lgkmcnt(0)")
    for t in range(4):
        A(f"v_mfma_f32_16x16x32_bf16 v[{24+4*t}:{27+4*t}], v[20:23], v[{WB+8*t+4}:{WB+8*t+7}], v[{24+4*t}:{27+4*t}]")
    g.nop(6)
    sel4(g, 40, 24, 28, 32, 36, sM1, sM2, sM3)
    A(f"buffer_store_dwordx2 v[40:41], v{vYO}, s[{sWS}:{sWS+3}], s{sY_DST} offen sc1")
    stamp(g, 7)
    A(f"s_cmp_eq_u32 s{sROLE}, 2")
    A("s_cbranch_scc0 L_fin")
    A(f"v_add_u32 v13, {L_WD}, v13")
    for t in range(4):
        A(f"ds_read_b64_tr_b16 v[{96+4*t}:{97+4*t}], v13 offset:{t*32}")
        A(f"ds_read_b64_tr_b16 v[{98+4*t}:{99+4*t}], v13 offset:{t*32+3584}")
    g.lbl("L_ffn")
    srd(g, sA, P_WG, 448*3584)
    A(f"s_cmp_lt_u32 s{sWAVE}, 4")
    A(f"s_cselect_b32 s{sA}, s{P_WG}, s{P_WU}")
    A(f"s_cselect_b32 s{sA+1}, s{P_WG+1}, s{P_WU+1}")
    A(f"s_and_b32 s{sT1}, s{sWAVE}, 3")
    A(f"s_mul_i32 s{sSTART}, s{sT1}, {112*3584}")
    A(f"s_lshl_b32 s{sT1}, s{sIDX}, 6")
    A(f"s_add_u32 s{sSTART}, s{sSTART}, s{sT1}")
    A(f"s_mov_b32 s{sSTEP}, {16*3584}")
    A(f"s_mul_i32 s{sLDS}, s{sWAVE}, 7168")
    A(f"s_add_u32 s{sLDS}, s{sLDS}, {L_WG}")
    A(f"v_lshrrev_b32 v{vDM}, 2, v{vL}")
    A(f"v_mul_u32_u24 v{vDM}, 3584, v{vDM}")
    A(f"v_and_b32 v{vT}, 3, v{vL}")
    A(f"v_lshl_add_u32 v{vDM}, v{vT}, 4, v{vDM}")
    dma7(g, "", VM(g, 0))
    A("s_waitcnt vmcnt(0)")
    A("s_barrier")
    stamp(g, 9)
    A(f"s_cmp_lt_u32 s{sWAVE}, 4")
    A("s_cbranch_scc1 L_ffn_ln")
    A(f"v_lshrrev_b32 v13, 2, v{vJ}")
    A(f"v_lshl_add_u32 v13, v{vGR}, 3, v13")
    A(f"v_lshlrev_b32 v13, 6, v13")
    A(f"v_and_b32 v14, 1, v{vL}")
    A(f"v_lshl_add_u32 v13, v14, 3, v13")
    A(f"v_bfe_u32 v14, v{vL}, 1, 1")
    A(f"v_mul_u32_u24 v14, 28672, v14")
    A(f"v_add_u32 v13, v13, v14")
    A(f"s_sub_u32 s{sT0}, s{sWAVE}, 4")
    A(f"s_lshl_b32 s{sT0}, s{sT0}, 4")
    A(f"s_add_u32 s{sT1}, s{sT0}, {L_WG}")
    A(f"v_add_u32 v13, s{sT1}, v13")
    A("s_waitcnt lgkmcnt(0)")
    for ks in range(14):
        r = 128 + 4*ks
        A(f"ds_read_b64_tr_b16 v[{r}:{r+1}], v13 offset:{ks*2048}")
        A(f"ds_read_b64_tr_b16 v[{r+2}:{r+3}], v13 offset:{ks*2048+256}")
        if ks % 4 == 3: A("s_waitcnt lgkmcnt(0)")
    A(f"s_add_u32 s{sT0}, s{sT0}, {L_G}")
    A(f"v_lshlrev_b32 v22, 6, v{vGR}")
    A(f"v_lshl_add_u32 v22, v{vJ}, 1, v22")
    A(f"v_add_u32 v22, s{sT0}, v22")
    A(f"v_and_b32 v{vT}, 3, v{vL}")
    A(f"v_mul_u32_u24 v{vT}, 896, v{vT}")
    A(f"v_lshl_add_u32 v{vT}, v{vGR}, 4, v{vT}")
    A(f"v_add_u32 v{vT}, {L_A}, v{vT}")
    A("s_waitcnt lgkmcnt(0)")
    A("s_barrier")
    for ks in range(14):
        A(f"ds_read_b128 v[{192+4*ks}:{195+4*ks}], v{vT} offset:{64*ks}")
    for ks in range(14):
        A(f"s_waitcnt lgkmcnt({13-ks})")
        c = "0" if ks == 0 else "v[16:19]"
        A(f"v_mfma_f32_16x16x32_bf16 v[16:19], v[{192+4*ks}:{195+4*ks}], v[{128+4*ks}:{131+4*ks}], {c}")
    g.nop(8)
    sel4(g, 20, 16, 17, 18, 19, sM1, sM2, sM3)
    rnd1(g, 20)
    kk = -2.0 * math.sqrt(2.0/math.pi) * LOG2E
    A(f"v_mul_f32 v21, v20, v20")
    A(f"v_mul_f32 v21, {f2u(0.044715):#x}, v21")
    A(f"v_fma_f32 v21, v21, v20, v20")
    A(f"v_mul_f32 v21, {f2u(kk):#x}, v21")
    A(f"v_exp_f32 v21, v21")
    A(f"v_mov_b32 v23, v20 row_ror:8 {DPP}")
    A(f"v_add_f32 v21, 1.0, v21")
    A(f"v_rcp_f32 v21, v21")
    g.nop(1)
    A(f"v_mul_f32 v21, v21, v20")
    rnd1(g, 21)
    A(f"v_mul_f32 v21, v21, v23")
    A(f"v_cvt_pk_bf16_f32 v21, v21, v21")
    A(f"s_mov_b32 exec_lo, 0x00ff00ff")
    A(f"s_mov_b32 exec_hi, 0x00ff00ff")
    A(f"ds_write_b16 v22, v21")
    A("s_mov_b64 exec, -1")
    A(f"s_cmp_eq_u32 s{sWAVE}, 7")
    A("s_cbranch_scc0 L_ffn_d")
    A("s_waitcnt lgkmcnt(0)")
    A("s_barrier")
    A("s_branch L_fin")
    g.lbl("L_ffn_ln")
    A("s_branch L_mchk")
    g.lbl("L_mretry")
    for i, off in enumerate((0, 16, 1792, 1808)):
        A(f"buffer_load_dwordx4 v[{vPAR+4*i}:{vPAR+4*i+3}], v{vPA1}, s[{sWS}:{sWS+3}], s{sXO} offen offset:{off} sc1")
    A("s_waitcnt vmcnt(0)")
    g.lbl("L_mchk")
    check_tags(g, [vPAR+3, vPAR+7, vPAR+11, vPAR+15], "L_mretry", mask=sM56)
    for i, r in enumerate((vPAR, vPAR+1, vPAR+4, vPAR+5)):
        unpack(g, r, 120+2*i, 121+2*i)
        unpack(g, r+8, 112+2*i, 113+2*i)
    for i in range(8):
        A(f"v_add_f32 v{112+i}, 1.0, v{112+i}")
    for i in range(0, 8, 2):
        rnd2(g, 112+i, 113+i, vT)
    A(f"s_mul_i32 s{sT0}, s{sWAVE}, 1792")
    A(f"s_add_u32 s{sT0}, s{sT0}, {WS_X1}")
    A(f"s_mul_i32 s{sT1}, s{sWAVE}, 896")
    A(f"s_add_u32 s{sT1}, s{sT1}, {L_A}")
    A(f"v_add_u32 v13, s{sT1}, v{vL16}")
    g.lbl("L_x1poll")
    A(f"buffer_load_dwordx4 v[16:19], v{vPA1}, s[{sWS}:{sWS+3}], s{sT0} offen sc1")
    A(f"buffer_load_dwordx4 v[20:23], v{vPA1}, s[{sWS}:{sWS+3}], s{sT0} offen offset:16 sc1")
    A("s_waitcnt vmcnt(0)")
    check_tags(g, [17, 19, 21, 23], "L_x1poll", mask=sM56)
    for i in range(4):
        unpack(g, 16+2*i, 24+2*i, 25+2*i)
    layernorm(g, 24, vT, vT+1, vT+2)
    modulate_pack(g, 24, 112, 120, 24, vT)
    A(f"s_mov_b64 exec, s[{sM56}:{sM56+1}]")
    A(f"ds_write_b128 v13, v[24:27]")
    A("s_mov_b64 exec, -1")
    A("s_waitcnt lgkmcnt(0)")
    A("s_barrier")
    g.lbl("L_ffn_d")
    A(f"v_and_b32 v{vT}, 3, v{vL}")
    A(f"v_lshlrev_b32 v{vT}, 6, v{vT}")
    A(f"v_lshl_add_u32 v{vT}, v{vGR}, 4, v{vT}")
    A(f"v_add_u32 v{vT}, {L_G}, v{vT}")
    A(f"s_mul_i32 s{sT0}, s{sWAVE}, {4*56*128}")
    A(f"s_lshl_b32 s{sT1}, s{sIDX}, 7")
    A(f"s_add_u32 s{sT0}, s{sT0}, s{sT1}")
    A(f"s_add_u32 s{sT0}, s{sT0}, {WS_Z}")
    A(f"s_add_u32 s{sT1}, s{sT0}, {28*56*128}")
    A(f"s_add_u32 s{sT2}, s{sT1}, {28*56*128}")
    A(f"s_add_u32 s{sT3}, s{sT2}, {28*56*128}")
    A(f"v_mul_u32_u24 v12, {56*128}, v{vGR}")
    A(f"v_lshl_add_u32 v12, v{vJ}, 3, v12")
    for b in range(4):
        A(f"v_mov_b32 v{41+2*b}, s{sTAG}")
    A("s_waitcnt lgkmcnt(0)")
    A("s_barrier")
    A(f"ds_read_b128 v[16:19], v{vT}")
    A("s_waitcnt lgkmcnt(0)")
    for t in range(4):
        A(f"v_mfma_f32_16x16x32_bf16 v[{24+4*t}:{27+4*t}], v[16:19], v[{96+4*t}:{99+4*t}], 0")
    g.nop(6)
    for b in range(4):
        A(f"v_cndmask_b32 v{40+2*b}, v{24+b}, v{28+b}, s[{sM1}:{sM1+1}]")
    for b in range(4):
        A(f"v_cndmask_b32 v{40+2*b}, v{40+2*b}, v{32+b}, s[{sM2}:{sM2+1}]")
    for b in range(4):
        A(f"v_cndmask_b32 v{40+2*b}, v{40+2*b}, v{36+b}, s[{sM3}:{sM3+1}]")
        A(f"buffer_store_dwordx2 v[{40+2*b}:{41+2*b}], v12, s[{sWS}:{sWS+3}], s{sT0+b} offen sc1")
    stamp(g, 8)
    A("s_branch L_fin")

    g.lbl("L_w7")
    A(f"v_and_b32 v13, 31, v{vL}")
    A(f"v_lshlrev_b32 v13, 2, v13")
    A(f"v_add_u32 v13, {L_OB}, v13")
    g.lbl("L_opoll")
    for i in range(4):
        A(f"buffer_load_dwordx4 v[{16+4*i}:{19+4*i}], v{vL16}, s[{sWS}:{sWS+3}], s{sO_IN} offen offset:{1024*i} sc1")
    A("s_waitcnt vmcnt(0)")
    check_tags(g, [19, 23, 27, 31], "L_opoll")
    A(f"v_max3_f32 v32, v18, v22, v26")
    A(f"v_max_f32 v32, v32, v30")
    A(f"v_mov_b32 v33, v32")
    g.nop(2)
    A(f"v_permlane32_swap_b32 v32, v33")
    g.nop(1)
    A(f"v_max_f32 v32, v32, v33")
    for i in range(4): A(f"v_sub_f32 v{18+4*i}, v{18+4*i}, v32")
    for i in range(4): A(f"v_exp_f32 v{18+4*i}, v{18+4*i}")
    A(f"v_mul_f32 v34, v16, v18")
    A(f"v_mul_f32 v35, v17, v18")
    A(f"v_add_f32 v36, v18, v22")
    for i in range(1, 4):
        A(f"v_fmac_f32 v34, v{16+4*i}, v{18+4*i}")
        A(f"v_fmac_f32 v35, v{17+4*i}, v{18+4*i}")
    A(f"v_add_f32 v36, v36, v26")
    A(f"v_add_f32 v36, v36, v30")
    for i in range(3): A(f"v_mov_b32 v{37+i}, v{34+i}")
    g.nop(2)
    for i in range(3): A(f"v_permlane32_swap_b32 v{34+i}, v{37+i}")
    g.nop(1)
    A(f"v_add_f32 v36, v36, v39")
    A(f"v_rcp_f32 v36, v36")
    A(f"v_add_f32 v34, v34, v37")
    A(f"v_add_f32 v35, v35, v38")
    A(f"v_mul_f32 v34, v34, v36")
    A(f"v_mul_f32 v35, v35, v36")
    A(f"v_cvt_pk_bf16_f32 v34, v34, v35")
    A(f"ds_write_b32 v13, v34")
    A("s_waitcnt lgkmcnt(0)")
    A("s_barrier")
    stamp(g, 7)
    A(f"s_cmp_eq_u32 s{sROLE}, 2")
    A("s_cbranch_scc1 L_ffn")
    A(f"s_cmp_lt_u32 s{sRED}, 112")
    A("s_cbranch_scc0 L_fin")
    A("s_branch L_gchk")
    g.lbl("L_gretry")
    A(f"s_add_u32 s{sT0}, s{sPX}, {3*1792}")
    A(f"buffer_load_dwordx4 v[{vPAR}:{vPAR+3}], v{vPA1}, s[{sWS}:{sWS+3}], s{sPX} offen sc1")
    A(f"buffer_load_dwordx4 v[{vPAR+4}:{vPAR+7}], v{vPA1}, s[{sWS}:{sWS+3}], s{sT0} offen sc1")
    A("s_waitcnt vmcnt(0)")
    g.lbl("L_gchk")
    check_tags(g, [vPAR+3, vPAR+7], "L_gretry")
    A(f"v_and_b32 v12, 1, v{vL}")
    A(f"v_cmp_eq_u32 vcc, 1, v12")
    g.nop(2)
    A(f"v_cndmask_b32 v100, v{vPAR}, v{vPAR+1}, vcc")
    A(f"v_cndmask_b32 v101, v{vPAR+4}, v{vPAR+5}, vcc")
    unpack(g, 100, 120, 121)
    unpack(g, 101, 122, 123)
    unpack(g, vPAR+8, 124, 125)
    def reduce_stage(nld, base_sreg, lab):
        A(f"s_add_u32 s{sT1}, s{base_sreg}, 4096")
        g.lbl(lab)
        for i in range(nld):
            A(f"buffer_load_dwordx4 v[{16+4*i}:{19+4*i}], v{vL16}, s[{sWS}:{sWS+3}], s{base_sreg if i < 4 else sT1} offen offset:{(i%4)*1024} sc1")
        A("s_waitcnt vmcnt(0)")
        check_tags(g, [17+2*i for i in range(2*nld)], lab)
        regs = [16+4*i for i in range(nld)]
        while len(regs) > 1:
            nxt = []
            for i in range(0, len(regs)-1, 2):
                A(f"v_add_f32 v{regs[i]}, v{regs[i]}, v{regs[i+1]}")
                A(f"v_add_f32 v{regs[i]+2}, v{regs[i]+2}, v{regs[i+1]+2}")
                nxt.append(regs[i])
            if len(regs) % 2: nxt.append(regs[-1])
            regs = nxt
        g.nop(1)
        A(f"v_add_f32 v16, v16, v16 row_ror:8 {DPP}")
        A(f"v_add_f32 v18, v18, v18 row_ror:8 {DPP}")
        for sw in ("v_permlane16_swap_b32", "v_permlane32_swap_b32"):
            A(f"v_mov_b32 v17, v16"); A(f"v_mov_b32 v19, v18")
            g.nop(2)
            A(f"{sw} v16, v17"); A(f"{sw} v18, v19")
            g.nop(1)
            A(f"v_add_f32 v16, v16, v17"); A(f"v_add_f32 v18, v18, v19")
    def resid(gate):
        rnd2(g, 16, 18, 17)
        A(f"v_mul_f32 v16, v16, v{gate}")
        A(f"v_mul_f32 v18, v18, v{gate+1}")
        rnd2(g, 16, 18, 17)
        A(f"v_add_f32 v124, v124, v16")
        A(f"v_add_f32 v125, v125, v18")
        A(f"v_cvt_pk_bf16_f32 v126, v124, v125")
    A(f"s_lshl_b32 s{sT0}, s{sRED}, 13")
    A(f"s_add_u32 s{sT0}, s{sT0}, {WS_Y}")
    A(f"v_mov_b32 v127, s{sTAG}")
    A(f"v_lshlrev_b32 v13, 1, v{vPA2}")
    A(f"s_lshl_b32 s{sT2}, s{sXO}, 1")
    A(f"s_add_u32 s{sT2}, s{sT2}, {WS_X1}")
    reduce_stage(8, sT0, "L_ypoll")
    resid(120)
    A("s_mov_b64 exec, 0xff")
    A(f"buffer_store_dwordx2 v[126:127], v13, s[{sWS}:{sWS+3}], s{sT2} offen sc1")
    A("s_mov_b64 exec, -1")
    stamp(g, 8)
    unpack(g, 126, 124, 125)
    A(f"s_mul_i32 s{sT0}, s{sRED}, {56*128}")
    A(f"s_add_u32 s{sT0}, s{sT0}, {WS_Z}")
    reduce_stage(7, sT0, "L_zpoll")
    resid(122)
    A("s_mov_b64 exec, 0xff")
    A(f"buffer_store_dword v126, v{vPA2}, s[{sA}:{sA+3}], s{sXO} offen")
    stamp(g, 9)
    A(f"s_cmp_eq_u32 s{sRED}, 0")
    A("s_cbranch_scc0 L_fin")
    A("s_mov_b64 exec, 1")
    A(f"v_mov_b32 v{vT}, 0")
    A(f"buffer_store_dword v127, v{vT}, s[{sWS}:{sWS+3}], 0 offen sc1")

    A("s_branch L_fin")
    g.lbl("L_early")
    A(f"s_mov_b32 s{sROLE}, 1")
    A(f"s_sub_u32 s{sIDX}, s2, 128")
    A(f"v_lshrrev_b32 v{vT}, 3, v{vL}")
    A(f"v_and_b32 v{vT+1}, 7, v{vL}")
    A(f"s_cmp_lt_u32 s{sN}, 24")
    A("s_cbranch_scc1 L_ed_q")
    A(f"s_sub_u32 s{sIDX}, s{sN}, 24")
    A(f"s_lshl_b32 s{sIDX}, s{sIDX}, 2")
    A(f"s_lshr_b32 s{sT1}, s{sS}, 1")
    A(f"s_add_u32 s{sIDX}, s{sIDX}, s{sT1}")
    A(f"s_and_b32 s{sT2}, s{sS}, 1")
    A(f"s_lshl_b32 s{sT2}, s{sT2}, 5")
    A(f"s_add_u32 s{sIDX}, s{sIDX}, s{sT2}")
    A(f"s_cmp_lt_u32 s{sIDX}, 42")
    A(f"s_cselect_b32 s{sROLE}, 4, 0")
    A("s_cbranch_scc0 L_kload")
    srd(g, sB, P_C, 3584)
    A(f"s_lshl_b32 s{sT0}, s{sWAVE}, 10")
    A(f"buffer_load_dwordx4 v[16:19], v{vL16}, s[{sB}:{sB+3}], s{sT0} offen")
    srd(g, sA, P_WM, 448*5376)
    A(f"v_mul_u32_u24 v{vDM}, 5376, v{vT}")
    A(f"s_mov_b32 s{sSTEP}, {8*5376}")
    A("s_branch L_ed_go")
    g.lbl("L_ed_q")
    srd(g, sB, P_X, 3584)
    A(f"s_mul_i32 s{sT0}, s{sWAVE}, 896")
    A(f"v_mov_b32 v{vT+2}, 0x100000")
    A(f"v_cndmask_b32 v{vT+2}, v{vT+2}, v{vL16}, s[{sM56}:{sM56+1}]")
    A(f"buffer_load_dwordx4 v[16:19], v{vT+2}, s[{sB}:{sB+3}], s{sT0} offen")
    srd(g, sA, P_WQ, 448*8192)
    A(f"v_lshlrev_b32 v{vDM}, 13, v{vT}")
    A(f"s_mov_b32 s{sSTEP}, {8*8192}")
    g.lbl("L_ed_go")
    A(f"v_lshl_add_u32 v{vDM}, v{vT+1}, 4, v{vDM}")
    A(f"s_lshl_b32 s{sSTART}, s{sIDX}, 7")
    A(f"s_mul_i32 s{sT0}, s{sWAVE}, 7")
    A(f"s_mul_i32 s{sT1}, s{sT0}, s{sSTEP}")
    A(f"s_add_u32 s{sSTART}, s{sSTART}, s{sT1}")
    A(f"s_lshl_b32 s{sLDS}, s{sT0}, 10")
    A(f"s_add_u32 s{sLDS}, s{sLDS}, {L_IMG}")
    dma7(g, polW, VM(g, 0))
    srd(g, sWS, P_WS, WS_SIZE)
    A(f"v_mov_b32 v{vT}, 0")
    A(f"buffer_load_dword v14, v{vT}, s[{sWS}:{sWS+3}], 0 offen sc1")
    A(f"v_mov_b32 v{vT+1}, {L_FLAG}")
    A(f"ds_write_b32 v{vT+1}, v{vT} offset:4")
    A("s_waitcnt lgkmcnt(0)")
    A("s_barrier")
    A("s_branch L_kload")

    g.lbl("L_hook")
    A(f"s_cmp_lt_u32 s{sWAVE}, 4")
    A("s_cbranch_scc0 L_p1")
    A(f"s_waitcnt vmcnt(17)")
    for i in range(4):
        unpack(g, 16+i, 24+2*i, 25+2*i)
    A(f"s_cmp_eq_u32 s{sROLE}, 1")
    A("s_cbranch_scc1 L_p_ln")
    for i in range(8): A(f"v_mul_f32 v{32+i}, {f2u(-LOG2E):#x}, v{24+i}")
    for i in range(8): A(f"v_exp_f32 v{32+i}, v{32+i}")
    for i in range(8): A(f"v_add_f32 v{32+i}, 1.0, v{32+i}")
    for i in range(8): A(f"v_rcp_f32 v{32+i}, v{32+i}")
    for i in range(8): A(f"v_mul_f32 v{24+i}, v{24+i}, v{32+i}")
    A(f"s_lshl_b32 s{sT2}, s{sWAVE}, 10")
    A(f"s_add_u32 s{sT2}, s{sT2}, {L_A}")
    for i in range(4): A(f"v_cvt_pk_bf16_f32 v{24+i}, v{24+2*i}, v{25+2*i}")
    A(f"v_add_u32 v{vT}, s{sT2}, v{vL16}")
    A(f"ds_write_b128 v{vT}, v[24:27]")
    A("s_branch L_p1")
    g.lbl("L_p_ln")
    layernorm(g, 24, vT, vT+1, vT+2)
    g.lbl("L_p1")
    A(f"s_waitcnt vmcnt(9) lgkmcnt(0)")
    A("s_barrier")
    A(f"s_cmp_lt_u32 s{sWAVE}, 4")
    A("s_cbranch_scc0 L_k1")
    A(f"v_readfirstlane_b32 s{sTAG}, v14")
    A(f"s_add_u32 s{sTAG}, s{sTAG}, 0x9e3779b9")
    A(f"v_lshrrev_b32 v{vT+2}, 2, v{vJ}")
    A(f"v_lshl_add_u32 v{vT+2}, v{vGR}, 3, v{vT+2}")
    A(f"v_lshlrev_b32 v{vT+2}, 7, v{vT+2}")
    A(f"v_and_b32 v{vT+3}, 3, v{vL}")
    A(f"v_lshl_add_u32 v{vT+2}, v{vT+3}, 3, v{vT+2}")
    A(f"s_lshl_b32 s{sT2}, s{sWAVE}, 5")
    A(f"s_add_u32 s{sT2}, s{sT2}, {L_IMG}")
    A(f"v_add_u32 v{vT+2}, s{sT2}, v{vT+2}")
    for ks in range(14):
        r = 64 + 4*ks
        A(f"ds_read_b64_tr_b16 v[{r}:{r+1}], v{vT+2} offset:{ks*4096}")
        A(f"ds_read_b64_tr_b16 v[{r+2}:{r+3}], v{vT+2} offset:{ks*4096+512}")
        if ks % 4 == 3: A("s_waitcnt lgkmcnt(6)")
    A(f"s_cmp_eq_u32 s{sROLE}, 1")
    A("s_cbranch_scc1 L_p_q")
    A(f"s_call_b64 s[{sRET}:{sRET+1}], L_svc_mm")
    A("s_branch L_k1")
    g.lbl("L_p_q")
    A(f"v_lshlrev_b32 v13, 5, v{vL}")
    A(f"v_mov_b32 v{vT}, {WS_SIZE}")
    A(f"v_cndmask_b32 v13, v{vT}, v13, s[{sM56}:{sM56+1}]")
    A(f"s_mul_i32 s{sXO}, s{sWAVE}, {MB}")
    A(f"s_add_u32 s{sXO}, s{sXO}, {WS_M}")
    A(f"s_mov_b32 s{sSV}, 1")
    A("s_branch L_k1")

    g.lbl("L_svc")
    A(f"s_mov_b32 s{sSV}, 0")
    for i, r in enumerate((32, 33, 36, 37)):
        unpack(g, r, 56+2*i, 57+2*i)
        unpack(g, r+8, 48+2*i, 49+2*i)
    for i in range(8): A(f"v_add_f32 v{48+i}, 1.0, v{48+i}")
    for i in range(0, 8, 2): rnd2(g, 48+i, 49+i, vT)
    modulate_pack(g, 24, 48, 56, 24, vT)
    A(f"s_mul_i32 s{sT2}, s{sWAVE}, 896")
    A(f"s_add_u32 s{sT2}, s{sT2}, {L_A}")
    A(f"v_add_u32 v{vT}, s{sT2}, v{vL16}")
    A(f"s_mov_b64 exec, s[{sM56}:{sM56+1}]")
    A(f"ds_write_b128 v{vT}, v[24:27]")
    A("s_mov_b64 exec, -1")
    A("s_waitcnt lgkmcnt(0)")
    lds_inc(g, 4)
    lds_spin(g, 4, 4, "L_p2spin")
    g.lbl("L_svc_mm")
    stamp(g, 1)
    A(f"v_mul_u32_u24 v{vT+2}, 896, v{vT+3}")
    A(f"v_lshl_add_u32 v{vT+1}, v{vGR}, 4, v{vT+2}")
    A(f"v_add_u32 v{vT+1}, {L_A}, v{vT+1}")
    A("s_waitcnt lgkmcnt(0)")
    AF = lambda ks: (20 + 4*ks) if ks < 11 else (120 + 4*(ks-11)) if ks < 13 else 20
    for ks in range(13):
        A(f"ds_read_b128 v[{AF(ks)}:{AF(ks)+3}], v{vT+1} offset:{64*ks}")
    for ks in range(14):
        if ks == 1:
            A(f"ds_read_b128 v[{AF(13)}:{AF(13)+3}], v{vT+1} offset:{64*13}")
        A(f"s_waitcnt lgkmcnt({12 if ks == 0 else 13-ks})")
        c = "0" if ks == 0 else "v[16:19]"
        A(f"v_mfma_f32_16x16x32_bf16 v[16:19], v[{64+4*ks}:{67+4*ks}], v[{AF(ks)}:{AF(ks)+3}], {c}")
    A(f"s_cmp_eq_u32 s{sROLE}, 1")
    A(f"s_mov_b32 s{sT2}, {MB}")
    A(f"s_cselect_b32 s{sT2}, 16384, s{sT2}")
    A(f"s_mov_b32 s{sT3}, {WS_M}")
    A(f"s_cselect_b32 s{sT3}, {WS_Q}, s{sT3}")
    A(f"s_lshl_b32 s{sLDS}, s{sIDX}, 8")
    A(f"s_add_u32 s{sT3}, s{sT3}, s{sLDS}")
    A(f"s_lshl_b32 s{sLDS}, s{sWAVE}, 6")
    A(f"s_add_u32 s{sT3}, s{sT3}, s{sLDS}")
    A(f"v_mul_u32_u24 v{vT+1}, s{sT2}, v{vT+3}")
    A(f"v_lshl_add_u32 v{vT+1}, v{vGR}, 4, v{vT+1}")
    A(f"v_mov_b32 v22, 0")
    A(f"v_mov_b32 v23, s{sTAG}")
    A(f"v_cvt_pk_bf16_f32 v20, v16, v17")
    A(f"v_cvt_pk_bf16_f32 v21, v18, v19")
    A(f"s_mov_b32 exec_lo, 0x000f000f")
    A(f"s_mov_b32 exec_hi, 0x000f000f")
    A(f"buffer_store_dwordx4 v[20:23], v{vT+1}, s[{sWS}:{sWS+3}], s{sT3} offen sc1")
    A("s_mov_b64 exec, -1")
    stamp(g, 2)
    A(f"s_setpc_b64 s[{sRET}:{sRET+1}]")

    g.lbl("L_md2")
    A(f"s_cmp_eq_u32 s{sROLE}, 8")
    A("s_cbranch_scc1 L_md_p")
    A(f"s_cmp_lt_u32 s{sWAVE}, 4")
    A("s_cbranch_scc0 L_ld_done")
    srd(g, sA, P_WD, 1792*896)
    A(f"s_mul_i32 s{sSTART}, s{sIDX}, 28672")
    A(f"s_mul_i32 s{sLDS}, s{sWAVE}, 7168")
    A(f"s_add_u32 s{sSTART}, s{sSTART}, s{sLDS}")
    A(f"s_add_u32 s{sLDS}, s{sLDS}, {L_WD}")
    A("s_branch L_md_go")
    g.lbl("L_md_p")
    srd(g, sA, P_WG, 448*3584)
    A(f"s_and_b32 s{sT1}, s{sIDX}, 1")
    A(f"s_cselect_b32 s{sA}, s{P_WU}, s{P_WG}")
    A(f"s_cselect_b32 s{sA+1}, s{P_WU+1}, s{P_WG+1}")
    A(f"s_lshr_b32 s{sT1}, s{sIDX}, 1")
    A(f"s_lshl_b32 s{sT1}, s{sT1}, 7")
    A(f"s_mul_i32 s{sSTART}, s{sWAVE}, {56*3584}")
    A(f"s_add_u32 s{sSTART}, s{sSTART}, s{sT1}")
    A(f"s_mov_b32 s{sSTEP}, {8*3584}")
    A(f"s_mov_b32 s{sLDS}, {L_PD}")
    A(f"v_lshrrev_b32 v{vDM}, 3, v{vL}")
    A(f"v_mul_u32_u24 v{vDM}, 3584, v{vDM}")
    A(f"v_and_b32 v{vT}, 7, v{vL}")
    A(f"v_lshl_add_u32 v{vDM}, v{vT}, 4, v{vDM}")
    g.lbl("L_md_go")
    dma7(g, polP, VM(g, W, W))
    A("s_branch L_ld_done")

    g.lbl("L_parF")
    A(f"s_cmp_lt_u32 s{sWAVE}, 4")
    A("s_cbranch_scc0 L_par_done")
    A(f"v_lshlrev_b32 v{vPA1}, 5, v{vL}")
    A(f"v_mov_b32 v{vT}, {WS_SIZE}")
    A(f"v_cndmask_b32 v{vPA1}, v{vT}, v{vPA1}, s[{sM56}:{sM56+1}]")
    A(f"s_mul_i32 s{sXO}, s{sWAVE}, {MB}")
    A(f"s_add_u32 s{sXO}, s{sXO}, {WS_M + 3*1792}")
    for i, off in enumerate((0, 16, 1792, 1808)):
        A(f"buffer_load_dwordx4 v[{vPAR+4*i}:{vPAR+4*i+3}], v{vPA1}, s[{sWS}:{sWS+3}], s{sXO} offen offset:{off} sc1")
    A("s_branch L_par_done")
    g.lbl("L_par7")
    A(f"s_cmp_lt_u32 s{sRED}, 112")
    A("s_cbranch_scc0 L_par_done")
    A(f"s_mul_i32 s{sRB}, s{sRED}, 2341")
    A(f"s_lshr_b32 s{sRB}, s{sRB}, 16")
    A(f"s_mul_i32 s{sT0}, s{sRB}, 28")
    A(f"s_sub_u32 s{sT0}, s{sRED}, s{sT0}")
    A(f"s_mul_i32 s{sT2}, s{sRB}, 896")
    A(f"s_lshl_b32 s{sT3}, s{sT0}, 5")
    A(f"s_add_u32 s{sXO}, s{sT2}, s{sT3}")
    srd(g, sB, P_X, 3584)
    srd(g, sA, P_OUT, 3584)
    A(f"v_and_b32 v{vPA2}, 7, v{vL}")
    A(f"v_lshlrev_b32 v{vPA2}, 2, v{vPA2}")
    A(f"buffer_load_dword v{vPAR+8}, v{vPA2}, s[{sB}:{sB+3}], s{sXO} offen")
    A(f"buffer_load_dword v{vPAR+9}, v{vPA2}, s[{sA}:{sA+3}], s{sXO} offen")
    A(f"v_bfe_u32 v{vPA1}, v{vL}, 1, 2")
    A(f"v_lshlrev_b32 v{vPA1}, 4, v{vPA1}")
    A(f"s_mul_i32 s{sT2}, s{sRB}, {MB}")
    A(f"s_lshl_b32 s{sT3}, s{sT0}, 6")
    A(f"s_add_u32 s{sPX}, s{sT2}, s{sT3}")
    A(f"s_add_u32 s{sPX}, s{sPX}, {WS_M + 2*1792}")
    A(f"s_add_u32 s{sT0}, s{sPX}, {3*1792}")
    A(f"buffer_load_dwordx4 v[{vPAR}:{vPAR+3}], v{vPA1}, s[{sWS}:{sWS+3}], s{sPX} offen sc1")
    A(f"buffer_load_dwordx4 v[{vPAR+4}:{vPAR+7}], v{vPA1}, s[{sWS}:{sWS+3}], s{sT0} offen sc1")
    A("s_branch L_par_done")
    g.lbl("L_fin")
    flush_stamps(g, NSTAMP)
    g.lbl("L_end")
    A("s_endpgm")
    g.L += ['.section .rodata,"a"', ".p2align 6", f".amdhsa_kernel {NAME}_kernel",
            "  .amdhsa_next_free_vgpr 256", "  .amdhsa_next_free_sgpr 102", "  .amdhsa_accum_offset 256",
            "  .amdhsa_group_segment_fixed_size 0", "  .amdhsa_kernarg_size 112", "  .amdhsa_user_sgpr_count 2",
            "  .amdhsa_user_sgpr_kernarg_segment_ptr 1", "  .amdhsa_system_sgpr_workgroup_id_x 1", ".end_amdhsa_kernel"]
    return "\n".join(g.L) + "\n"

if __name__ == "__main__":
    out = sys.argv[1] if len(sys.argv) > 1 else f"cdna_kernels/{NAME}.s"
    opt = {}
    for a in sys.argv[2:]:
        k, val = a.split("=", 1)
        try: val = int(val)
        except ValueError: val = (" " + val.replace("+", " ")) if val else ""
        opt[k] = val
    open(out, "w").write(build(opt))
```

```python
import sys, math, struct

NAME = "adaLN_cond__gqa_block_cached__geglu_ffn__decode"

WS_E   = 0x0
WS_X1  = 0x300000
WS_M   = 0x5000
MB = 10752
WS_Q   = 0x10000
WS_O   = 0x20000
WS_Y   = 0x120000
WS_Z   = 0x200000
WS_STAMP = 0x400000
WS_SIZE = 0x800000

L_WO = 0
L_WG = 57344
L_WU = L_WG + 28672
L_WD = L_WU + 28672
L_IMG = L_WG
L_A  = L_WD + 28672
L_Q  = L_A + 3584
L_P  = L_Q + 1024
L_RED = L_P + 2048
L_OL = L_WG
L_PD = L_WU + 20480
L_OB = L_RED + 128
L_G  = L_OB + 128
L_RB = L_G + 256
L_FLAG = L_RB + 512
L_END = L_FLAG + 64

LOG2E = 1.4426950408889634
def f2u(x): return struct.unpack("<I", struct.pack("<f", x))[0]

class G:
    def __init__(self, opt):
        self.L = []; self.o = opt; self.lab = 0
    def A(self, s): self.L.append("    " + s)
    def lbl(self, s): self.L.append(s + ":")
    def newlab(self, p="L"):
        self.lab += 1
        return f"{p}_{self.lab}"
    def nop(self, n):
        while n > 0:
            k = min(n, 16)
            self.A(f"s_nop {k-1}")
            n -= k

sWAVE = 3
sK, sV, sWS, sA, sB = 4, 8, 12, 16, 20
sS, sB_, sKVH, sN = 24, 25, 26, 27
sTAG, sRETRY = 28, 29
sKB, sSV = 30, 31
sROT = 32
sT0, sT1, sT2, sT3 = 33, 34, 35, 36
sIDX = 37
sM1, sM2, sM3 = 38, 40, 42
sM48 = 44
sQ1, sQ2, sQ3 = 46, 48, 50
sR8 = 52
sSTART, sSTEP, sLDS = 54, 55, 56
sPLO, sPHI = 57, 58
sC = 59
sHI = 60
sROLE = 61
sRED = 62
sGRP = 63
P_X, P_K, P_V, P_WQ, P_WO, P_BX, P_WG, P_WU, P_WD, P_C, P_WM, P_OUT, P_DBG, P_WS = [64 + 2*i for i in range(14)]
sPX = 74
sXO = 75
sRET = 0
sST = 88
sO_DST, sY_DST = 66, 67
sO_IN, sRB = 68, 69
sMH = 70
sLN = 84

vTID, vL, vJ, vGR, vKO, vVO, vL16, vDM = 0, 1, 2, 3, 4, 5, 6, 7
vE = 8
vT = 9
vQF = 16
vSD = 48
vVE = 64
vK = 128
vPAR = 240
vPA1, vPA2 = 56, 57
vOLW, vOLR, vYO, vOBA = 58, 59, 60, 61
vSC = 62

def srd(g, r, ptr, size):
    g.A(f"s_mov_b32 s{r}, s{ptr}")
    g.A(f"s_mov_b32 s{r+1}, s{ptr+1}")
    g.A(f"s_mov_b32 s{r+2}, {size}")
    g.A(f"s_mov_b32 s{r+3}, 0x20000")

DPP = "row_mask:0xf bank_mask:0xf"
def wave_reduce(g, op, regs, tmps, swaps=("v_permlane16_swap_b32", "v_permlane32_swap_b32")):
    n = len(regs)
    for pat in ("quad_perm:[1,0,3,2]", "quad_perm:[2,3,0,1]", "row_half_mirror", "row_mirror"):
        g.nop(max(0, 2 - (n - 1)))
        for r in regs:
            g.A(f"{op} v{r}, v{r}, v{r} {pat} {DPP}")
    for sw in swaps:
        for r, t in zip(regs, tmps):
            g.A(f"v_mov_b32 v{t}, v{r}")
        g.nop(2)
        for r, t in zip(regs, tmps):
            g.A(f"{sw} v{r}, v{t}")
        g.nop(1)
        for r, t in zip(regs, tmps):
            g.A(f"{op} v{r}, v{r}, v{t}")

def rnd2(g, a, b, t):
    g.A(f"v_cvt_pk_bf16_f32 v{t}, v{a}, v{b}")
    g.A(f"v_lshlrev_b32 v{a}, 16, v{t}")
    g.A(f"v_and_b32 v{b}, s{sHI}, v{t}")
def rnd1(g, a):
    g.A(f"v_cvt_pk_bf16_f32 v{a}, v{a}, v{a}")
    g.A(f"v_lshlrev_b32 v{a}, 16, v{a}")
def unpack(g, src, lo, hi):
    g.A(f"v_lshlrev_b32 v{lo}, 16, v{src}")
    g.A(f"v_and_b32 v{hi}, s{sHI}, v{src}")

def red63(g, r, fill):
    fill = list(fill)
    def pad(n):
        for _ in range(n):
            if fill: g.A(fill.pop(0))
            else:
                g.nop(n - _); break
    for pat in ("quad_perm:[1,0,3,2] " + DPP, "quad_perm:[2,3,0,1] " + DPP, "row_half_mirror " + DPP, "row_mirror " + DPP,
                "row_bcast:15 row_mask:0xa bank_mask:0xf", "row_bcast:31 row_mask:0xc bank_mask:0xf"):
        pad(2)
        g.A(f"v_add_f32 v{r}, v{r}, v{r} {pat}")
    pad(1)
    g.A(f"v_readlane_b32 s{sLN}, v{r}, 63")
    pad(2)
    for f in fill: g.A(f)

def pk(op, d, a, b, bc=False, neg=False):
    m = ""
    if bc: m += " op_sel_hi:[1,0]"
    if neg: m += " neg_lo:[0,1] neg_hi:[0,1]"
    return f"v_pk_{op}_f32 v[{d}:{d+1}], v[{a}:{a+1}], v[{b}:{b+1}]{m}"

def rnd2s(a, b, t):
    return [f"v_cvt_pk_bf16_f32 v{t}, v{a}, v{b}", f"v_lshlrev_b32 v{a}, 16, v{t}", f"v_and_b32 v{b}, s{sHI}, v{t}"]

def layernorm(g, X, T, E, n, presel=()):
    A = g.A
    A(pk("add", T, X, X+2)); A(pk("add", T+2, X+4, X+6)); A(pk("add", T, T, T+2))
    A(f"v_add_f32 v{T}, v{T}, v{T+1}")
    red63(g, T, presel)
    A(f"v_mov_b32 v{T+8}, {f2u(1.0/448):#x}")
    A(f"v_mul_f32 v{T}, s{sLN}, v{T+8}")
    A(pk("add", T+2, X, T, True, True)); A(pk("add", T+4, X+2, T, True, True))
    A(f"v_pk_mul_f32 v[{T+6}:{T+7}], v[{T+2}:{T+3}], v[{T+2}:{T+3}]")
    A(pk("add", T+2, X+4, T, True, True))
    A(f"v_pk_fma_f32 v[{T+6}:{T+7}], v[{T+4}:{T+5}], v[{T+4}:{T+5}], v[{T+6}:{T+7}]")
    A(pk("add", T+4, X+6, T, True, True))
    A(f"s_mov_b64 exec, s[{sM48}:{sM48+1}]")
    A(f"v_pk_fma_f32 v[{T+6}:{T+7}], v[{T+2}:{T+3}], v[{T+2}:{T+3}], v[{T+6}:{T+7}]")
    A(f"v_pk_fma_f32 v[{T+6}:{T+7}], v[{T+4}:{T+5}], v[{T+4}:{T+5}], v[{T+6}:{T+7}]")
    A("s_mov_b64 exec, -1")
    A(f"v_add_f32 v{T+6}, v{T+6}, v{T+7}")
    fill = [f"v_cvt_pk_bf16_f32 v{T}, v{T}, v{T}", f"v_lshlrev_b32 v{T}, 16, v{T}"]
    fill += [pk("add", E+i, E+i, T, True, True) for i in range(0, n, 2)]
    for i in range(0, n, 2): fill += rnd2s(E+i, E+i+1, T+2)
    red63(g, T+6, fill)
    A(f"v_mul_f32 v{T+6}, s{sLN}, v{T+8}")
    rnd1(g, T+6)
    A(f"v_add_f32 v{T+6}, {f2u(1e-5):#x}, v{T+6}")
    rnd1(g, T+6)
    A(f"v_sqrt_f32 v{T+6}, v{T+6}")
    g.nop(1)
    rnd1(g, T+6)
    A(f"v_rcp_f32 v{T+6}, v{T+6}")
    g.nop(1)
    for i in range(0, n, 2): A(pk("mul", E+i, E+i, T+6, True))

def modulate_pack(g, X, OC, SH, D, t, n):
    for i in range(0, n, 2): g.A(pk("mul", X+i, X+i, OC+i))
    for i in range(0, n, 2): rnd2(g, X+i, X+i+1, t)
    for i in range(0, n, 2): g.A(pk("add", X+i, X+i, SH+i))
    for i in range(0, n, 2): g.A(f"v_cvt_pk_bf16_f32 v{D+i//2}, v{X+i}, v{X+i+1}")

def retry_branch(g, fail_label):
    ok = g.newlab("L_ok")
    g.A(f"s_cbranch_vccz {ok}")
    g.A(f"s_sub_u32 s{sRETRY}, s{sRETRY}, 1")
    g.A(f"s_cbranch_scc0 {fail_label}")
    g.A(f"s_mov_b32 s{sRETRY}, 0")
    g.lbl(ok)

def tags_ab(g, ra, rb):
    t = vT
    g.A(f"v_xor_b32 v{t}, s{sTAG}, v{rb[0]}")
    for r in rb[1:]: g.A(f"v_bitop3_b32 v{t}, v{t}, v{r}, s{sTAG} bitop3:0xf6")
    g.A(f"v_cndmask_b32 v{t}, 0, v{t}, s[{sM48}:{sM48+1}]")
    for r in ra: g.A(f"v_bitop3_b32 v{t}, v{t}, v{r}, s{sTAG} bitop3:0xf6")
    g.A(f"v_cmp_ne_u32 vcc, 0, v{t}")

class VM:
    def __init__(self, g, W, n0=0):
        self.g, self.W, self.n = g, W, n0
    def pre(self):
        if self.W and self.n >= self.W:
            self.g.A(f"s_waitcnt vmcnt({self.W-1})")
            self.n = self.W - 1
        self.n += 1

def dma7(g, pol, vm, srd_=None):
    srd_ = srd_ or sA
    for i in range(7):
        vm.pre()
        g.A(f"s_mov_b32 m0, s{sLDS}")
        g.A(f"s_add_u32 s{sLDS}, s{sLDS}, 1024")
        g.A(f"buffer_load_dwordx4 v{vDM}, s[{srd_}:{srd_+3}], s{sSTART} offen{pol} lds")
        g.A(f"s_add_u32 s{sSTART}, s{sSTART}, s{sSTEP}")

def k_tile(g, vm, pol, t, lo=0, hi=8):
    g.A(f"s_add_u32 s{sT0}, s{sROT}, {t}")
    g.A(f"s_and_b32 s{sT0}, s{sT0}, 3")
    g.A(f"s_lshl_b32 s{sT0}, s{sT0}, 13")
    g.A(f"s_add_u32 s{sT0}, s{sT0}, s{sKB}")
    g.A(f"s_add_u32 s{sT1}, s{sT0}, 4096")
    for jj in range(lo, hi):
        vm.pre()
        r = vK + 32*t + 4*jj
        kq, blk = jj >> 1, jj & 1
        so = sT0 if kq < 2 else sT1
        g.A(f"buffer_load_dwordx4 v[{r}:{r+3}], v{vKO}, s[{sK}:{sK+3}], s{so} offen offset:{(kq&1)*2048 + blk*256}{pol}")

def v_dst(u): return vVE + 32*u

def v_loads(g, vm, pol, units):
    for u in units:
        gam, eta = u >> 1, u & 1
        if True:
            g.A(f"s_add_u32 s{sT0}, s{sROT}, {gam}")
            g.A(f"s_and_b32 s{sT0}, s{sT0}, 1")
            g.A(f"s_lshl_b32 s{sT0}, s{sT0}, 14")
            g.A(f"s_add_u32 s{sT0}, s{sT0}, s{sKB}")
        for r in range(8):
            vm.pre()
            d = v_dst(u) + 4*r
            g.A(f"buffer_load_dwordx4 v[{d}:{d+3}], v{vVO}, s[{sV}:{sV+3}], s{sT0} offen offset:{512*r + 256*eta}{pol}")

def get_tag(g):
    g.A(f"v_readfirstlane_b32 s{sTAG}, v{vE}")
    g.A(f"s_add_u32 s{sTAG}, s{sTAG}, 0x9e3779b9")

def check_tags(g, regs, fail_label, mask=None, t=vT):
    if len(regs) == 1:
        g.A(f"v_cmp_ne_u32 vcc, s{sTAG}, v{regs[0]}")
    else:
        g.A(f"v_xor_b32 v{t}, s{sTAG}, v{regs[0]}")
        for r in regs[1:]:
            g.A(f"v_bitop3_b32 v{t}, v{t}, v{r}, s{sTAG} bitop3:0xf6")
        g.A(f"v_cmp_ne_u32 vcc, 0, v{t}")
    if mask is not None:
        g.A(f"s_and_b64 vcc, vcc, s[{mask}:{mask+1}]")
    ok = g.newlab("L_ok")
    g.A(f"s_cbranch_vccz {ok}")
    g.A(f"s_sub_u32 s{sRETRY}, s{sRETRY}, 1")
    g.A(f"s_cbranch_scc0 {fail_label}")
    g.A(f"s_mov_b32 s{sRETRY}, 0")
    g.lbl(ok)

def lds_spin(g, off, target_sreg_or_imm, lab, sleep=2):
    g.A(f"v_mov_b32 v{vT}, {L_FLAG}")
    g.lbl(lab)
    g.A(f"ds_read_b32 v{vT+1}, v{vT} offset:{off}")
    g.A("s_waitcnt lgkmcnt(0)")
    g.A(f"v_cmp_le_u32 vcc, {target_sreg_or_imm}, v{vT+1}")
    g.A(f"s_cbranch_vccnz {lab}_ok")
    if sleep: g.A(f"s_sleep {sleep}")
    g.A(f"s_branch {lab}")
    g.lbl(lab + "_ok")

def lds_inc(g, off):
    g.A(f"v_mov_b32 v{vT}, {L_FLAG}")
    g.A(f"v_mov_b32 v{vT+1}, 1")
    g.A("s_mov_b64 exec, 1")
    g.A(f"ds_add_u32 v{vT}, v{vT+1} offset:{off}")
    g.A("s_mov_b64 exec, -1")

NSTAMP = 10
def tstamp(g, idx):
    if g.o.get("tst"): stamp(g, idx, True)
def stamp(g, idx, force=False):
    if not g.o.get("stamps"): return
    if g.o.get("tst") and not force and idx in (1, 2, 3, 4): return
    g.A(f"s_memrealtime s[{sST}:{sST+1}]")
    g.A("s_waitcnt lgkmcnt(0)")
    g.A(f"s_mov_b32 s{92+idx}, s{sST}")
def flush_stamps(g, n):
    if not g.o.get("stamps"): return
    if g.o.get("dbg"):
        g.A("s_mov_b64 exec, 1")
        g.A("v_mov_b32 v15, 0")
        g.A("s_not_b32 s92, s92")
        for i in range(n):
            g.A(f"v_mov_b32 v14, s{92+i}")
            g.A(f"global_atomic_umax v15, v14, s[82:83] offset:{4*i}")
            g.nop(1)
        return
    g.A(f"s_lshl_b32 s{sT3}, s2, 3")
    g.A(f"s_add_u32 s{sT3}, s{sT3}, s{sWAVE}")
    g.A(f"s_lshl_b32 s{sT3}, s{sT3}, 6")
    g.A(f"s_add_u32 s{sT3}, s{sT3}, {WS_STAMP}")
    g.A("s_mov_b64 exec, 1")
    g.A("v_mov_b32 v15, 0")
    for i in range(n):
        g.A(f"v_mov_b32 v14, s{92+i}")
        g.A(f"buffer_store_dword v14, v15, s[{sWS}:{sWS+3}], s{sT3} offen offset:{4*i}")
        g.nop(1)

def sel4(g, dst, r0, r1, r2, r3, m1, m2, m3):
    g.A(f"v_cndmask_b32 v{dst}, v{r0}, v{r1}, s[{m1}:{m1+1}]")
    g.A(f"v_cndmask_b32 v{dst}, v{dst}, v{r2}, s[{m2}:{m2+1}]")
    g.A(f"v_cndmask_b32 v{dst}, v{dst}, v{r3}, s[{m3}:{m3+1}]")

def build(opt):
    g = G(opt)
    A = g.A
    polK = opt.get("polK", " nt"); polV = opt.get("polV", " nt"); polW = opt.get("polW", " nt")
    polWO = opt.get("polWO", " nt"); polP = opt.get("polP", " nt")
    W = opt.get("W", 16)
    W2 = opt.get("W2", 24)
    PRIO = opt.get("prio", 1)
    XR = opt.get("XR", 1)
    def prio(p):
        if PRIO: A(f"s_setprio {p}")
    hdr = open(f"cdna_kernels/{NAME}.s.ref").read().split("\n")
    for line in hdr:
        if line.startswith("; @launch"):
            g.L.append(f"; @launch grid=(256,1,1) block=(512,1,1) lds={L_END}")
            break
        g.L.append(line)
    g.L += ['.amdgcn_target "amdgcn-amd-amdhsa--gfx950"', ".text", f".globl {NAME}_kernel", ".p2align 8",
            f".type {NAME}_kernel,@function"]
    g.lbl(f"{NAME}_kernel")
    A("s_cmp_ge_u32 s2, 256")
    A("s_cbranch_scc1 L_end")
    A("s_load_dwordx16 s[64:79], s[0:1], 0")
    A("s_load_dwordx8 s[80:87], s[0:1], 64")
    A("s_load_dwordx2 s[90:91], s[0:1], 104")
    if opt.get("dbg"):
        A("s_memrealtime s[92:93]")
        A("s_load_dwordx2 s[74:75], s[0:1], 96") if False else None
    A(f"s_getpc_b64 s[{sST}:{sST+1}]")
    g.lbl("L_pc")
    A(f"v_lshlrev_b32 v{vT}, 5, v0")
    A(f"v_min_u32 v{vT}, L_end - L_pc - 4, v{vT}")
    A(f"global_load_dword v15, v{vT}, s[{sST}:{sST+1}]")
    prio(3)
    A(f"v_lshrrev_b32 v{vL}, 6, v0")
    A(f"s_and_b32 s{sS}, s2, 7")
    A(f"v_readfirstlane_b32 s{sWAVE}, v{vL}")
    A(f"v_and_b32 v{vL}, 63, v0")
    A(f"v_and_b32 v{vJ}, 15, v0")
    A(f"v_lshrrev_b32 v{vGR}, 4, v{vL}")
    A(f"v_lshrrev_b32 v{vKO}, 2, v{vJ}")
    A(f"v_lshlrev_b32 v{vKO}, 9, v{vKO}")
    A(f"v_lshl_add_u32 v{vKO}, v{vGR}, 6, v{vKO}")
    A(f"v_and_b32 v{vT+3}, 3, v0")
    A(f"v_lshl_add_u32 v{vKO}, v{vT+3}, 4, v{vKO}")
    A(f"v_lshlrev_b32 v{vL16}, 4, v{vL}")
    A(f"s_lshr_b32 s{sN}, s2, 3")
    A(f"s_and_b32 s{sB_}, s{sN}, 3")
    A(f"s_lshr_b32 s{sKVH}, s{sN}, 2")
    A(f"s_lshl_b32 s{sGRP}, s{sB_}, 3")
    A(f"s_add_u32 s{sGRP}, s{sGRP}, s{sKVH}")
    A(f"s_lshl_b32 s{sT0}, s{sGRP}, 21")
    A(f"s_lshl_b32 s{sT1}, s{sS}, 18")
    A(f"s_add_u32 s{sT0}, s{sT0}, s{sT1}")
    A(f"s_lshl_b32 s{sT1}, s{sWAVE}, 15")
    A(f"s_add_u32 s{sKB}, s{sT0}, s{sT1}")
    A(f"s_add_u32 s{sROT}, s{sN}, s{sWAVE}")
    A(f"s_and_b32 s{sROT}, s{sROT}, 3")
    A(f"s_mov_b32 s{sM48}, -1"); A(f"s_mov_b32 s{sM48+1}, 0x0000ffff")
    A(f"s_mov_b32 s{sROLE}, 0")
    A(f"s_mov_b32 s{sK+2}, {64<<20}")
    A(f"s_mov_b32 s{sK+3}, 0x20000")
    A(f"s_cmp_lt_u32 s{sN}, 16")
    A("s_waitcnt lgkmcnt(0)")
    A(f"s_mov_b32 s{sK}, s{P_K}")
    A(f"s_mov_b32 s{sK+1}, s{P_K+1}")
    if not opt.get("noqm"): A("s_cbranch_scc0 L_early")
    g.lbl("L_kload")
    vm = VM(g, W, 1)
    HK = opt.get('HK', 4)
    k_tile(g, vm, polK, 0, 0, HK)
    srd(g, sWS, P_WS, WS_SIZE)
    A(f"v_mov_b32 v{vT}, 0")
    A(f"buffer_load_dword v{vE}, v{vT}, s[{sWS}:{sWS+3}], 0 offen sc1")
    vm.n += 1
    if opt.get("stamps"):
        for i in range(1 if opt.get("dbg") else 0, NSTAMP): A(f"s_mov_b32 s{92+i}, 0")
    if opt.get("dbg"):
        A("s_load_dwordx2 s[82:83], s[0:1], 96")
        A("s_waitcnt lgkmcnt(0)")
    else:
        stamp(g, 0)
    srd(g, sV, P_V, 64 << 20)
    A(f"v_lshlrev_b32 v{vVO}, 12, v{vGR}")
    A(f"v_lshl_add_u32 v{vVO}, v{vJ}, 4, v{vVO}")
    A(f"s_mov_b32 s{sRETRY}, 0x40000")
    A(f"s_mov_b32 s{sM1}, 0xffff0000"); A(f"s_mov_b32 s{sM1+1}, 0")
    A(f"s_mov_b32 s{sM2}, 0"); A(f"s_mov_b32 s{sM2+1}, 0xffff")
    A(f"s_mov_b32 s{sM3}, 0"); A(f"s_mov_b32 s{sM3+1}, 0xffff0000")
    A(f"s_mov_b32 s{sQ1}, 0x22222222"); A(f"s_mov_b32 s{sQ1+1}, 0x22222222")
    A(f"s_mov_b32 s{sQ2}, 0x44444444"); A(f"s_mov_b32 s{sQ2+1}, 0x44444444")
    A(f"s_mov_b32 s{sQ3}, 0x88888888"); A(f"s_mov_b32 s{sQ3+1}, 0x88888888")
    A(f"s_mov_b32 s{sR8}, 0xff00ff00"); A(f"s_mov_b32 s{sR8+1}, 0xff00ff00")
    A(f"s_mov_b32 s{sPLO}, 0x05040100"); A(f"s_mov_b32 s{sPHI}, 0x07060302")
    A(f"s_mov_b32 s{sC}, {f2u(0.0625*LOG2E):#x}")
    A(f"s_mov_b32 s{sHI}, 0xffff0000")
    A(f"s_mov_b32 s{sSV}, 0")
    A(f"s_sub_u32 s{sRED}, s2, 144")
    A(f"s_cselect_b32 s{sRED}, 0xffff, s{sRED}")
    A(f"s_cmp_lg_u32 s{sROLE}, 0")
    A("s_cbranch_scc1 L_hook")
    A(f"s_cmp_lt_u32 s{sN}, 16")
    A("s_cbranch_scc0 L_k1")
    A(f"s_lshr_b32 s{sT1}, s{sS}, 1")
    A(f"s_and_b32 s{sT2}, s{sS}, 1")
    A(f"s_lshl_b32 s{sT2}, s{sT2}, 2")
    A(f"s_add_u32 s{sT1}, s{sT1}, s{sT2}")
    A(f"s_bfe_u32 s{sT3}, s{sN}, 0x20001")
    A(f"s_lshl_b32 s{sT3}, s{sT3}, 3")
    A(f"s_add_u32 s{sT1}, s{sT1}, s{sT3}")
    A(f"s_lshl_b32 s{sIDX}, s{sT1}, 1")
    A(f"s_and_b32 s{sT2}, s{sN}, 1")
    A(f"s_add_u32 s{sIDX}, s{sIDX}, s{sT2}")
    A(f"s_cmp_lt_u32 s{sN}, 8")
    A(f"s_cselect_b32 s{sROLE}, 2, {8 if opt.get('PL', 0) else 0}")
    A(f"s_cmp_lt_u32 s{sT1}, 28")
    A(f"s_cselect_b32 s{sROLE}, s{sROLE}, 0")
    g.lbl("L_k1")
    k_tile(g, vm, polK, 0, HK, 8)
    def svpoll():
        for i, (va, off) in enumerate(((vL16, 0), (13, 0), (vL16, 1792), (13, 1792))):
            A(f"buffer_load_dwordx4 v[{32+4*i}:{35+4*i}], v{va}, s[{sWS}:{sWS+3}], s{sXO} offen offset:{off} sc1")
    def with_poll(name, body):
        A(f"s_cmp_eq_u32 s{sSV}, 0")
        A(f"s_cbranch_scc1 L_a{name}")
        svpoll()
        g.lbl(f"L_a{name}")
        body()
        A(f"s_cmp_eq_u32 s{sSV}, 0")
        A(f"s_cbranch_scc1 L_b{name}")
        A("s_waitcnt vmcnt(8)")
        tags_ab(g, [35, 43], [39, 47])
        A(f"s_cbranch_vccnz L_b{name}")
        A(f"s_call_b64 s[{sRET}:{sRET+1}], L_svc")
        g.lbl(f"L_b{name}")
    P0 = opt.get("P0", 2)
    for t in range(1, 4):
        if t >= P0: with_poll(f"k{t}", lambda: k_tile(g, vm, polK, t))
        else: k_tile(g, vm, polK, t)
    get_tag(g)
    A(f"s_cmp_lg_u32 s{sSV}, 0")
    A("s_cbranch_scc1 L_keep3")
    prio(2)
    g.lbl("L_keep3")
    with_poll("u0", lambda: v_loads(g, VM(g, W, W), polV, [0]))
    def qloads():
        for i in range(2):
            A(f"buffer_load_dwordx4 v[{16+4*i}:{19+4*i}], v{vL16}, s[{sWS}:{sWS+3}], s{sPX} offen offset:{1024*i} sc1")
    A(f"s_lshl_b32 s{sT1}, s{sB_}, 14")
    A(f"s_lshl_b32 s{sT2}, s{sKVH}, 11")
    A(f"s_add_u32 s{sT1}, s{sT1}, s{sT2}")
    A(f"s_add_u32 s{sPX}, s{sT1}, {WS_Q}")
    A(f"s_cmp_lg_u32 s{sSV}, 0")
    A("s_cbranch_scc1 L_noq")
    qloads()
    g.lbl("L_noq")
    with_poll("u1", lambda: v_loads(g, VM(g, W, W), polV, [1]))
    A(f"s_cmp_eq_u32 s{sSV}, 0")
    A("s_cbranch_scc1 L_kdone")
    g.lbl("L_hpoll")
    svpoll()
    A("s_waitcnt vmcnt(0)")
    tags_ab(g, [35, 43], [39, 47])
    retry_branch(g, "L_hpoll")
    A(f"s_call_b64 s[{sRET}:{sRET+1}], L_svc")
    g.lbl("L_kdone")
    prio(1)
    WOL = 0
    def wo_dma(vmx):
        srd(g, sB, P_WO, 4096*896)
        A(f"s_lshr_b32 s{sT2}, s{sWAVE}, 2")
        A(f"s_lshl_b32 s{sT0}, s{sKVH}, 1")
        A(f"s_add_u32 s{sT0}, s{sT0}, s{sT2}")
        A(f"s_lshl_b32 s{sT0}, s{sT0}, 8")
        A(f"s_lshl_b32 s{sT2}, s{sS}, 5")
        A(f"s_add_u32 s{sT0}, s{sT0}, s{sT2}")
        A(f"s_mul_i32 s{sSTART}, s{sT0}, 896")
        A(f"s_and_b32 s{sT1}, s{sWAVE}, 3")
        A(f"s_mul_i32 s{sT1}, s{sT1}, 7168")
        A(f"s_add_u32 s{sSTART}, s{sSTART}, s{sT1}")
        A(f"s_mul_i32 s{sLDS}, s{sWAVE}, 7168")
        A(f"s_mov_b32 s{sSTEP}, 1024")
        A(f"v_mov_b32 v{vDM}, v{vL16}")
        dma7(g, polWO, vmx, sB)
    LW = opt.get("LW", 2)
    if LW:
        A(f"s_and_b32 s{sT0}, s{sROLE}, 7")
        A("s_cbranch_scc1 L_md2")
    wo_dma(VM(g, W, W))
    if not LW:
        A(f"s_cmp_eq_u32 s{sROLE}, 2")
        A("s_cbranch_scc1 L_md2")
    g.lbl("L_ld_done")
    A(f"s_waitcnt vmcnt(15)")
    A("s_branch L_qchk")
    g.lbl("L_qpoll")
    qloads()
    A("s_waitcnt vmcnt(0)")
    g.lbl("L_qchk")
    if not opt.get("noqm"): check_tags(g, [19, 23], "L_qpoll")
    stamp(g, 3)
    A(f"v_lshlrev_b32 v{vT+2}, 3, v{vL}")
    A(f"v_add_u32 v{vT+2}, {L_Q}, v{vT+2}")
    A(f"ds_write_b64 v{vT+2}, v[16:17]")
    A(f"ds_write_b64 v{vT+2}, v[20:21] offset:512")
    A(f"v_bfe_u32 v{vT}, v{vJ}, 2, 1")
    A(f"v_lshlrev_b32 v{vT}, 9, v{vT}")
    A(f"v_lshl_add_u32 v{vT}, v{vGR}, 6, v{vT}")
    A(f"v_and_b32 v{vT+1}, 3, v{vL}")
    A(f"v_lshl_add_u32 v{vT}, v{vT+1}, 4, v{vT}")
    A(f"v_add_u32 v{vT}, {L_Q}, v{vT}")
    QL, QH = 48, 56
    A(f"ds_read_b128 v[{QL}:{QL+3}], v{vT}")
    A(f"ds_read_b128 v[{QL+4}:{QL+7}], v{vT} offset:256")
    A(f"s_waitcnt lgkmcnt(0)")
    for i in range(8):
        A(f"v_cndmask_b32 v{QH+i}, 0, v{QL+i}, s[{sR8}:{sR8+1}]")
    for i in range(8):
        A(f"v_cndmask_b32 v{QL+i}, v{QL+i}, 0, s[{sR8}:{sR8+1}]")
    g.nop(2)
    SD = 16
    for t in range(4):
        for jj in range(8):
            kq, blk = jj >> 1, jj & 1
            d = SD + 4*(2*t + (kq >> 1))
            q = (QH if (kq & 1) else QL) + 4*blk
            r = vK + 32*t + 4*jj
            c = "0" if (jj & 3) == 0 else f"v[{d}:{d+3}]"
            A(f"v_mfma_f32_16x16x32_bf16 v[{d}:{d+3}], v[{q}:{q+3}], v[{r}:{r+3}], {c}")
    prio(0)
    A(f"s_cmp_lt_u32 s{sRED}, 112")
    A("s_cbranch_scc1 L_parR")
    A(f"s_cmp_eq_u32 s{sROLE}, 2")
    A("s_cbranch_scc1 L_parF")
    g.lbl("L_par_done")
    v_loads(g, VM(g, W2, W2), polV, [2])
    for d in range(8):
        D = SD + 4*d
        sel4(g, D, D, D+1, D+2, D+3, sQ1, sQ2, sQ3)
    for pat in ("quad_perm:[1,0,3,2]", "quad_perm:[2,3,0,1]"):
        for d in range(8):
            D = SD + 4*d
            A(f"v_add_f32 v{D}, v{D}, v{D} {pat} {DPP}")
    S0, S1 = 10, 11
    sel4(g, S0, SD, SD+4, SD+8, SD+12, sQ1, sQ2, sQ3)
    sel4(g, S1, SD+16, SD+20, SD+24, SD+28, sQ1, sQ2, sQ3)
    rnd2(g, S0, S1, vT)
    A(f"v_max_f32 v{vSC}, v{S0}, v{S1}")
    wave_reduce(g, "v_max_f32", [vSC], [17], swaps=("v_permlane32_swap_b32",))
    A(f"v_sub_f32 v{S0}, v{S0}, v{vSC}")
    A(f"v_sub_f32 v{S1}, v{S1}, v{vSC}")
    A(f"v_mul_f32 v{S0}, s{sC}, v{S0}")
    A(f"v_mul_f32 v{S1}, s{sC}, v{S1}")
    A(f"v_exp_f32 v{S0}, v{S0}")
    A(f"v_exp_f32 v{S1}, v{S1}")
    A(f"v_and_b32 v12, 1, v{vGR}")
    A(f"v_bfe_u32 v28, v{vL}, 1, 1")
    A(f"v_add_u32 v28, s{sROT}, v28")
    A(f"v_add_u32 v29, 2, v28")
    A(f"v_and_b32 v28, 3, v28")
    A(f"v_and_b32 v29, 3, v29")
    A(f"v_and_b32 v30, 1, v{vL}")
    A(f"v_lshlrev_b32 v30, 3, v30")
    A(f"v_lshrrev_b32 v31, 1, v{vGR}")
    A(f"v_lshl_add_u32 v30, v31, 2, v30")
    A(f"v_lshrrev_b32 v31, 2, v{vJ}")
    A(f"v_add_u32 v30, v30, v31")
    A(f"v_lshlrev_b32 v30, 1, v30")
    A(f"v_lshl_add_u32 v30, v12, 7, v30")
    A(f"s_lshl_b32 s{sT1}, s{sWAVE}, 8")
    A(f"s_add_u32 s{sT1}, s{sT1}, {L_P}")
    A(f"v_add_u32 v30, s{sT1}, v30")
    A(f"v_lshl_add_u32 v28, v28, 5, v30")
    A(f"v_lshl_add_u32 v29, v29, 5, v30")
    A(f"v_cvt_pk_bf16_f32 v20, v{S0}, v{S1}")
    A(f"v_add_f32 v16, v{S0}, v{S1}")
    A(f"ds_write_b16 v28, v20")
    A(f"ds_write_b16_d16_hi v29, v20")
    A(f"v_and_b32 v{vT}, 1, v{vL}")
    A(f"v_lshlrev_b32 v{vT}, 7, v{vT}")
    A(f"v_lshl_add_u32 v{vT}, v{vGR}, 4, v{vT}")
    A(f"s_and_b32 s{sT0}, s{sROT}, 1")
    A(f"s_lshl_b32 s{sT0}, s{sT0}, 6")
    A(f"s_add_u32 s{sT2}, s{sT1}, s{sT0}")
    A(f"s_xor_b32 s{sT0}, s{sT0}, 64")
    A(f"s_add_u32 s{sT3}, s{sT1}, s{sT0}")
    A(f"v_add_u32 v18, s{sT2}, v{vT}")
    A(f"v_add_u32 v19, s{sT3}, v{vT}")
    PF = 48
    A(f"ds_read_b128 v[{PF}:{PF+3}], v18")
    A(f"ds_read_b128 v[{PF+4}:{PF+7}], v19")
    wave_reduce(g, "v_add_f32", [16], [17], swaps=("v_permlane32_swap_b32",))
    A(f"v_lshlrev_b32 v13, 5, v12")
    A(f"v_add_u32 v13, {L_RED}, v13")
    A(f"s_lshl_b32 s{sT0}, s{sWAVE}, 2")
    A(f"v_add_u32 v14, s{sT0}, v13")
    A(f"ds_write_b32 v14, v{vSC}")
    A(f"ds_write_b32 v14, v16 offset:64")
    A(f"v_mov_b32 v17, {L_FLAG}")
    A(f"v_mov_b32 v18, 0")
    A(f"ds_write_b32 v17, v18")
    A(f"v_lshlrev_b32 v{vOLW}, 10, v12")
    A(f"v_lshl_add_u32 v{vOLW}, v{vJ}, 5, v{vOLW}")
    A(f"v_lshrrev_b32 v12, 1, v{vGR}")
    A(f"v_lshl_add_u32 v{vOLW}, v12, 4, v{vOLW}")
    A(f"s_lshl_b32 s{sT1}, s{sWAVE}, 11")
    A(f"s_add_u32 s{sT1}, s{sT1}, {L_OL}")
    A(f"v_add_u32 v{vOLW}, s{sT1}, v{vOLW}")
    A(f"s_lshl_b32 s{sT0}, s{sWAVE}, 8")
    A(f"s_add_u32 s{sT0}, s{sT0}, {L_OL}")
    A(f"v_lshl_add_u32 v{vOLR}, v{vL}, 3, s{sT0}")
    A(f"s_lshl_b32 s{sO_IN}, s{sGRP}, 15")
    A(f"s_add_u32 s{sO_IN}, s{sO_IN}, {WS_O}")
    A(f"s_and_b32 s{sT1}, s{sWAVE}, 3")
    A(f"s_lshl_b32 s{sT1}, s{sT1}, 13")
    A(f"s_add_u32 s{sO_DST}, s{sO_IN}, s{sT1}")
    A(f"s_lshl_b32 s{sT1}, s{sS}, 9")
    A(f"s_add_u32 s{sO_DST}, s{sO_DST}, s{sT1}")
    A(f"s_lshr_b32 s{sT1}, s{sWAVE}, 2")
    A(f"s_lshl_b32 s{sT1}, s{sT1}, 8")
    A(f"s_add_u32 s{sO_DST}, s{sO_DST}, s{sT1}")
    A(f"s_lshl_b32 s{sT1}, s{sS}, 12")
    A(f"s_add_u32 s{sO_IN}, s{sO_IN}, s{sT1}")
    A(f"s_mul_i32 s{sT0}, s{sB_}, 28")
    A(f"s_lshl_b32 s{sT1}, s{sWAVE}, 2")
    A(f"s_add_u32 s{sT0}, s{sT0}, s{sT1}")
    A(f"s_lshl_b32 s{sT0}, s{sT0}, 6")
    A(f"s_lshl_b32 s{sT1}, s{sKVH}, 3")
    A(f"s_add_u32 s{sT0}, s{sT0}, s{sT1}")
    A(f"s_add_u32 s{sT0}, s{sT0}, s{sS}")
    A(f"s_lshl_b32 s{sT0}, s{sT0}, 7")
    A(f"s_add_u32 s{sY_DST}, s{sT0}, {WS_Y}")
    A(f"v_lshlrev_b32 v{vYO}, 13, v{vGR}")
    A(f"v_lshl_add_u32 v{vYO}, v{vJ}, 4, v{vYO}")
    A(f"v_lshlrev_b32 v{vOBA}, 4, v{vGR}")
    A(f"v_add_u32 v{vOBA}, {L_OB}, v{vOBA}")
    A("s_waitcnt lgkmcnt(0)")
    ACCB = (16, 192)
    PT = 224
    def pv(u):
        gam, eta = u >> 1, u & 1
        NW = 7 if WOL == 1 else 0
        if WOL == 2 and u == 3:
            A(f"s_cmp_lt_u32 s{sWAVE}, 4")
            A("s_cbranch_scc1 L_wo2")
            A("s_waitcnt vmcnt(0)")
            g.lbl("L_wo2_ret")
        else:
            A(f"s_waitcnt vmcnt({(8, 8, 8+NW, NW)[u]})")
        R = v_dst(u)
        for c in range(4):
            T = PT + 8*(c & 1)
            for m in range(4):
                A(f"v_perm_b32 v{T+m}, v{R+4*(2*m+1)+c}, v{R+4*(2*m)+c}, s{sPLO}")
            for m in range(4):
                A(f"v_perm_b32 v{T+4+m}, v{R+4*(2*m+1)+c}, v{R+4*(2*m)+c}, s{sPHI}")
            g.nop(1)
            for hh in range(2):
                acc = ACCB[eta] + 4*(2*c + hh)
                cc = "0" if gam == 0 else f"v[{acc}:{acc+3}]"
                A(f"v_mfma_f32_16x16x32_bf16 v[{acc}:{acc+3}], v[{PF+4*gam}:{PF+4*gam+3}], v[{T+4*hh}:{T+4*hh+3}], {cc}")
    pv(0); pv(1)
    v_loads(g, VM(g, W2, W2), polV, [3])
    if WOL == 1: wo_dma(VM(g, 0))
    A("s_barrier")
    if LW == 2:
        A(f"s_cmp_lg_u32 s{sROLE}, 0")
        A(f"s_cselect_b32 s{sSV}, 4, 0")
    stamp(g, 4)
    for i in range(4):
        A(f"ds_read_b128 v[{64+4*i}:{67+4*i}], v13 offset:{(0,16,64,80)[i]}")
    A("s_waitcnt lgkmcnt(2)")
    A(f"v_max3_f32 v80, v64, v65, v66")
    A(f"v_max3_f32 v81, v67, v68, v69")
    A(f"v_max3_f32 v80, v80, v70, v71")
    A(f"v_max_f32 v80, v80, v81")
    for i in range(8): A(f"v_sub_f32 v{64+i}, v{64+i}, v80")
    A(f"v_sub_f32 v{vSC}, v{vSC}, v80")
    for i in range(8): A(f"v_mul_f32 v{64+i}, s{sC}, v{64+i}")
    A(f"v_mul_f32 v{vSC}, s{sC}, v{vSC}")
    for i in range(8): A(f"v_exp_f32 v{64+i}, v{64+i}")
    A(f"v_exp_f32 v{vSC}, v{vSC}")
    A("s_waitcnt lgkmcnt(0)")
    A(f"v_mul_f32 v81, v64, v72")
    for i in range(1, 8): A(f"v_fmac_f32 v81, v{64+i}, v{72+i}")
    A(f"v_rcp_f32 v82, v81")
    A(f"v_log_f32 v83, v81")
    PUB = 84
    A(f"v_mov_b32 v{PUB+3}, s{sTAG}")
    A(f"v_mul_f32 v{vSC}, v{vSC}, v82")
    A(f"v_fma_f32 v83, v80, s{sC}, v83")
    A(f"s_lshr_b32 s{sT0}, s{sWAVE}, 2")
    A(f"s_lshl_b32 s{sT0}, s{sT0}, 4")
    A(f"v_readlane_b32 s{sT0}, v83, s{sT0}")
    g.nop(2)
    A(f"v_mov_b32 v{PUB+2}, s{sT0}")
    def outsel(eta, OUT):
        B = ACCB[eta]
        for i in range(4):
            A(f"v_cndmask_b32 v{OUT+i}, v{B+4*i}, v{B+4*i+1}, s[{sM1}:{sM1+1}]")
        g.nop(3)
        for i in range(4):
            A(f"v_cndmask_b32 v{OUT+i}, v{OUT+i}, v{B+4*(4+i)}, s[{sM2}:{sM2+1}]")
        for i in range(4):
            A(f"v_cndmask_b32 v{OUT+i}, v{OUT+i}, v{B+4*(4+i)+1}, s[{sM3}:{sM3+1}]")
        for i in range(4):
            A(f"v_mul_f32 v{OUT+i}, v{OUT+i}, v{vSC}")
        A(f"ds_write_b128 v{vOLW}, v[{OUT}:{OUT+3}] offset:{512*eta}")
    pv(2); outsel(0, 88)
    pv(3)
    stamp(g, 5)
    outsel(1, 92)
    if LW == 2:
        A(f"s_cmp_lt_u32 s{sWAVE}, s{sSV}")
        A("s_cbranch_scc1 L_wo2")
        g.lbl("L_wo2_ret")
    A("s_waitcnt lgkmcnt(0)")
    A("s_barrier")
    for w in range(8):
        A(f"ds_read_b64 v[{16+2*w}:{17+2*w}], v{vOLR} offset:{2048*w}")
    A("s_mov_b32 exec_hi, 0")
    A("s_waitcnt lgkmcnt(6)")
    A(f"v_pk_add_f32 v[16:17], v[16:17], v[18:19]")
    A("s_waitcnt lgkmcnt(4)")
    A(f"v_pk_add_f32 v[20:21], v[20:21], v[22:23]")
    A("s_waitcnt lgkmcnt(2)")
    A(f"v_pk_add_f32 v[24:25], v[24:25], v[26:27]")
    A(f"v_pk_add_f32 v[16:17], v[16:17], v[20:21]")
    A("s_waitcnt lgkmcnt(0)")
    A(f"v_pk_add_f32 v[28:29], v[28:29], v[30:31]")
    A(f"v_pk_add_f32 v[24:25], v[24:25], v[28:29]")
    A(f"v_pk_add_f32 v[{PUB}:{PUB+1}], v[16:17], v[24:25]")
    A(f"buffer_store_dwordx4 v[{PUB}:{PUB+3}], v{vVO}, s[{sWS}:{sWS+3}], s{sO_DST} offen sc1")
    A("s_mov_b64 exec, -1")
    stamp(g, 6)
    if opt.get("notail"): A("s_branch L_fin")
    if LW == 1:
        A(f"s_cmp_eq_u32 s{sROLE}, 0")
        A("s_cbranch_scc1 L_wo_ok")
        wo_dma(VM(g, 0))
        A("s_waitcnt vmcnt(0)")
        A("s_barrier")
        g.lbl("L_wo_ok")
    A(f"s_cmp_eq_u32 s{sWAVE}, 7")
    A("s_cbranch_scc1 L_w7")
    if LW == 2:
        A(f"s_and_b32 s{sT0}, s{sROLE}, 7")
        A("s_cbranch_scc0 L_wo_ok")
        A(f"s_cmp_lt_u32 s{sWAVE}, 4")
        A("s_cbranch_scc0 L_wo_w")
        A("s_waitcnt vmcnt(0)")
        lds_inc(g, 0)
        g.lbl("L_wo_w")
        lds_spin(g, 0, 4, "L_wospin", sleep=0)
        g.lbl("L_wo_ok")

    WB = 128
    A(f"v_lshrrev_b32 v{vT}, 2, v{vJ}")
    A(f"v_lshl_add_u32 v{vT}, v{vGR}, 3, v{vT}")
    A(f"v_mul_u32_u24 v{vT}, 896, v{vT}")
    A(f"v_and_b32 v12, 3, v{vL}")
    A(f"v_lshl_add_u32 v{vT}, v12, 5, v{vT}")
    A(f"s_lshl_b32 s{sT0}, s{sWAVE}, 7")
    A(f"v_add_u32 v13, s{sT0}, v{vT}")
    for t in range(4):
        for ks in range(2):
            r = WB + 8*t + 4*ks
            A(f"ds_read_b64_tr_b16 v[{r}:{r+1}], v13 offset:{L_WO + ks*28672 + t*8}")
            A(f"ds_read_b64_tr_b16 v[{r+2}:{r+3}], v13 offset:{L_WO + ks*28672 + t*8 + 3584}")
        if t == 1: A("s_waitcnt lgkmcnt(0)")
    A(f"v_mov_b32 v43, s{sTAG}")
    A(f"v_mov_b32 v42, 0")
    A(f"s_mov_b32 vcc_lo, 0xaaaaaaaa"); A(f"s_mov_b32 vcc_hi, 0xaaaaaaaa")
    A(f"s_mov_b32 s{sK}, 0x0c0c0c0c"); A(f"s_mov_b32 s{sK+1}, 0x0c0c0c0c")
    A(f"s_mov_b32 s{sV}, 0x30303030"); A(f"s_mov_b32 s{sV+1}, 0x30303030")
    A(f"s_mov_b32 s{sB}, 0xc0c0c0c0"); A(f"s_mov_b32 s{sB+1}, 0xc0c0c0c0")
    A("s_waitcnt lgkmcnt(0)")
    A("s_barrier")
    A(f"ds_read_b128 v[16:19], v{vOBA}")
    A(f"ds_read_b128 v[20:23], v{vOBA} offset:64")
    A("s_waitcnt lgkmcnt(1)")
    for t in range(4):
        A(f"v_mfma_f32_16x16x32_bf16 v[{24+4*t}:{27+4*t}], v[{WB+8*t}:{WB+8*t+3}], v[16:19], 0")
    A("s_waitcnt lgkmcnt(0)")
    for t in range(4):
        A(f"v_mfma_f32_16x16x32_bf16 v[{24+4*t}:{27+4*t}], v[{WB+8*t+4}:{WB+8*t+7}], v[20:23], v[{24+4*t}:{27+4*t}]")
    A(f"s_mov_b32 exec_lo, 0x00ff00ff")
    A(f"s_mov_b32 exec_hi, 0x00ff00ff")
    g.nop(3)
    A(f"v_cndmask_b32 v40, v24, v26, vcc")
    A(f"v_cndmask_b32 v41, v25, v27, vcc")
    for t, m in ((1, sK), (2, sV), (3, sB)):
        A(f"v_cndmask_b32 v44, v{24+4*t}, v{26+4*t}, vcc")
        A(f"v_cndmask_b32 v45, v{25+4*t}, v{27+4*t}, vcc")
        A(f"v_cndmask_b32 v40, v40, v44, s[{m}:{m+1}]")
        A(f"v_cndmask_b32 v41, v41, v45, s[{m}:{m+1}]")
    A(f"buffer_store_dwordx4 v[40:43], v{vYO}, s[{sWS}:{sWS+3}], s{sY_DST} offen sc1")
    A("s_mov_b64 exec, -1")
    stamp(g, 7)
    A(f"s_cmp_lt_u32 s{sRED}, 112")
    A("s_cbranch_scc1 L_red")
    A(f"s_cmp_eq_u32 s{sROLE}, 2")
    A("s_cbranch_scc0 L_fin")
    A(f"v_add_u32 v126, {L_WD}, v13")
    g.lbl("L_ffn")
    A(f"v_and_b32 v12, 3, v{vL}")
    A(f"s_cmp_lt_u32 s{sWAVE}, 4")
    A("s_cbranch_scc0 L_ffn_dn")
    srd(g, sA, P_WG, 448*3584)
    A(f"s_mul_i32 s{sSTART}, s{sWAVE}, {112*3584}")
    A(f"s_lshl_b32 s{sT1}, s{sIDX}, 6")
    A(f"s_add_u32 s{sSTART}, s{sSTART}, s{sT1}")
    A(f"s_mov_b32 s{sSTEP}, {16*3584}")
    A(f"s_mul_i32 s{sLDS}, s{sWAVE}, 7168")
    A(f"s_add_u32 s{sLDS}, s{sLDS}, {L_WG}")
    A(f"v_lshrrev_b32 v{vDM}, 2, v{vL}")
    A(f"v_mul_u32_u24 v{vDM}, 3584, v{vDM}")
    A(f"v_lshl_add_u32 v{vDM}, v12, 4, v{vDM}")
    A("s_branch L_ffn_go")
    g.lbl("L_ffn_dn")
    srd(g, sA, P_WD, 1792*896)
    A(f"s_and_b32 s{sT1}, s{sWAVE}, 3")
    A(f"s_mul_i32 s{sSTART}, s{sIDX}, 28672")
    A(f"s_mul_i32 s{sLDS}, s{sT1}, 7168")
    A(f"s_add_u32 s{sSTART}, s{sSTART}, s{sLDS}")
    A(f"s_add_u32 s{sLDS}, s{sLDS}, {L_WD}")
    A(f"s_mov_b32 s{sSTEP}, 1024")
    A(f"v_mov_b32 v{vDM}, v{vL16}")
    g.lbl("L_ffn_go")
    dma7(g, polW, VM(g, 0))
    A("s_branch L_mchk")
    g.lbl("L_mretry")
    for i in range(2):
        A(f"buffer_load_dwordx4 v[{vPAR+4*i}:{vPAR+4*i+3}], v{vPA1}, s[{sWS}:{sWS+3}], s{sXO} offen offset:{1792*i} sc1")
    A("s_waitcnt vmcnt(0)")
    g.lbl("L_mchk")
    check_tags(g, [vPAR+3, vPAR+7], "L_mretry", mask=sMH)
    OC, SH = 112, 116
    for i in range(2):
        unpack(g, vPAR+i, SH+2*i, SH+2*i+1)
        unpack(g, vPAR+4+i, OC+2*i, OC+2*i+1)
    for i in range(4): A(f"v_add_f32 v{OC+i}, 1.0, v{OC+i}")
    for i in range(0, 4, 2): rnd2(g, OC+i, OC+i+1, vT)
    vHW, vAF, vGW, vGR_, vZO, vXB = 120, 121, 122, 123, 124, 125
    A(f"s_and_b32 s{sT1}, s{sWAVE}, 3")
    A(f"s_mul_i32 s{sT0}, s{sT1}, 896")
    A(f"s_lshl_b32 s{sXO}, s{sT0}, 1")
    A(f"s_add_u32 s{sXO}, s{sXO}, {WS_X1}")
    if XR:
        A(f"s_lshl_b32 s{sT2}, s{sS}, 13")
        A(f"s_add_u32 s{sXO}, s{sXO}, s{sT2}")
    A(f"s_lshr_b32 s{sT2}, s{sWAVE}, 2")
    A(f"s_lshl_b32 s{sT2}, s{sT2}, 9")
    A(f"s_add_u32 s{sT0}, s{sT0}, s{sT2}")
    A(f"s_add_u32 s{sT0}, s{sT0}, {L_A}")
    A(f"v_lshl_add_u32 v{vHW}, v{vL}, 3, s{sT0}")
    A(f"v_mul_u32_u24 v{vAF}, 896, v12")
    A(f"v_lshl_add_u32 v{vAF}, v{vGR}, 4, v{vAF}")
    A(f"v_add_u32 v{vAF}, {L_A}, v{vAF}")
    A(f"s_lshl_b32 s{sT1}, s{sT1}, 4")
    A(f"s_add_u32 s{sT0}, s{sT1}, {L_G}")
    A(f"v_lshlrev_b32 v{vGW}, 6, v{vGR}")
    A(f"v_lshl_add_u32 v{vGW}, v{vJ}, 1, v{vGW}")
    A(f"v_add_u32 v{vGW}, s{sT0}, v{vGW}")
    A(f"v_lshrrev_b32 v{vT}, 2, v{vJ}")
    A(f"v_lshlrev_b32 v{vGR_}, 6, v{vT}")
    A(f"v_lshl_add_u32 v{vGR_}, v{vGR}, 4, v{vGR_}")
    A(f"v_add_u32 v{vGR_}, {L_G}, v{vGR_}")
    A(f"v_mul_u32_u24 v{vZO}, 28, v{vT}")
    A(f"v_add_u32 v{vZO}, v{vZO}, v{vGR}")
    A(f"v_mul_u32_u24 v{vZO}, 3584, v{vZO}")
    A(f"v_lshl_add_u32 v{vZO}, v12, 4, v{vZO}")
    A(f"s_mul_i32 s{sY_DST}, s{sWAVE}, {4*3584}")
    A(f"s_lshl_b32 s{sT0}, s{sIDX}, 6")
    A(f"s_add_u32 s{sY_DST}, s{sY_DST}, s{sT0}")
    A(f"s_add_u32 s{sY_DST}, s{sY_DST}, {WS_Z}")
    A(f"v_add_u32 v{vXB}, 1024, v{vL16}")
    A(f"v_mov_b32 v{vT}, {WS_SIZE}")
    A(f"v_cndmask_b32 v{vXB}, v{vT}, v{vXB}, s[{sM48}:{sM48+1}]")
    A(f"s_cmp_ge_u32 s{sWAVE}, 4")
    A(f"s_cselect_b64 s[{sR8}:{sR8+1}], -1, 0")
    A(f"v_lshrrev_b32 v13, 2, v{vJ}")
    A(f"v_lshl_add_u32 v13, v{vGR}, 3, v13")
    A(f"v_lshlrev_b32 v13, 6, v13")
    A(f"v_and_b32 v14, 1, v{vL}")
    A(f"v_lshl_add_u32 v13, v14, 3, v13")
    A(f"v_bfe_u32 v14, v{vL}, 1, 1")
    A(f"v_mul_u32_u24 v14, 28672, v14")
    A(f"v_add_u32 v13, v13, v14")
    A(f"s_add_u32 s{sT1}, s{sT1}, {L_WG}")
    A(f"v_add_u32 v13, s{sT1}, v13")
    A("s_waitcnt vmcnt(0) lgkmcnt(0)")
    A("s_barrier")
    stamp(g, 9)
    def x1loads():
        A(f"buffer_load_dwordx4 v[16:19], v{vL16}, s[{sWS}:{sWS+3}], s{sXO} offen sc1")
        A(f"buffer_load_dwordx4 v[20:23], v{vXB}, s[{sWS}:{sWS+3}], s{sXO} offen sc1")
    A(f"s_cmp_eq_u32 s{sWAVE}, 7")
    A("s_cbranch_scc1 L_x1poll")
    x1loads()
    for t in range(4):
        A(f"ds_read_b64_tr_b16 v[{96+4*t}:{97+4*t}], v126 offset:{t*8}")
        A(f"ds_read_b64_tr_b16 v[{98+4*t}:{99+4*t}], v126 offset:{t*8+3584}")
    A(f"s_cmp_lt_u32 s{sWAVE}, 4")
    A("s_cbranch_scc0 L_x1wait")
    A("s_waitcnt lgkmcnt(6)")
    for ks in range(14):
        r = 128 + 4*ks
        A(f"ds_read_b64_tr_b16 v[{r}:{r+1}], v13 offset:{ks*2048}")
        A(f"ds_read_b64_tr_b16 v[{r+2}:{r+3}], v13 offset:{ks*2048+256}")
        if ks % 4 == 3: A("s_waitcnt lgkmcnt(6)")
    A("s_branch L_x1wait")
    g.lbl("L_x1poll")
    x1loads()
    g.lbl("L_x1wait")
    A("s_waitcnt vmcnt(0)")
    tags_ab(g, [19], [23])
    retry_branch(g, "L_x1poll")
    tstamp(g, 2)
    for i, r in enumerate((16, 17, 20, 21)):
        unpack(g, r, 24+2*i, 25+2*i)
    E = 44
    layernorm(g, 24, 32, E, 4, presel=[f"v_cndmask_b32 v{E+i}, v{24+i}, v{28+i}, s[{sR8}:{sR8+1}]" for i in range(4)])
    rnd2(g, E, E+1, vT); rnd2(g, E+2, E+3, vT)
    modulate_pack(g, E, OC, SH, E, vT, 4)
    A(f"s_mov_b64 exec, s[{sMH}:{sMH+1}]")
    A(f"ds_write_b64 v{vHW}, v[{E}:{E+1}]")
    A("s_mov_b64 exec, -1")
    A("s_waitcnt lgkmcnt(0)")
    A("s_barrier")
    tstamp(g, 3)
    A(f"s_cmp_lt_u32 s{sWAVE}, 4")
    A("s_cbranch_scc0 L_ffn_d")
    for ks in range(14):
        A(f"ds_read_b128 v[{192+4*ks}:{195+4*ks}], v{vAF} offset:{64*ks}")
    for ks in range(14):
        A(f"s_waitcnt lgkmcnt({13-ks})")
        c = "0" if ks == 0 else "v[16:19]"
        A(f"v_mfma_f32_16x16x32_bf16 v[16:19], v[{192+4*ks}:{195+4*ks}], v[{128+4*ks}:{131+4*ks}], {c}")
    kk = -2.0 * math.sqrt(2.0/math.pi) * LOG2E
    A(f"v_mov_b32 v24, {f2u(kk*0.044715):#x}")
    A(f"v_mov_b32 v25, {f2u(kk):#x}")
    g.nop(6)
    sel4(g, 20, 16, 17, 18, 19, sM1, sM2, sM3)
    rnd1(g, 20)
    A(f"v_mul_f32 v21, v20, v20")
    A(f"v_fma_f32 v21, v21, v24, v25")
    A(f"v_mul_f32 v21, v21, v20")
    A(f"v_exp_f32 v21, v21")
    A(f"v_mov_b32 v23, v20 row_ror:8 {DPP}")
    A(f"v_add_f32 v21, 1.0, v21")
    A(f"v_rcp_f32 v21, v21")
    A(f"s_mov_b32 exec_lo, 0x00ff00ff")
    A(f"s_mov_b32 exec_hi, 0x00ff00ff")
    A(f"v_mul_f32 v21, v21, v20")
    rnd1(g, 21)
    A(f"v_mul_f32 v21, v21, v23")
    A(f"v_cvt_pk_bf16_f32 v21, v21, v21")
    A(f"ds_write_b16 v{vGW}, v21")
    A("s_mov_b64 exec, -1")
    A("s_waitcnt lgkmcnt(0)")
    g.lbl("L_ffn_d")
    A(f"s_cmp_eq_u32 s{sWAVE}, 7")
    A("s_cbranch_scc1 L_fin")
    A("s_barrier")
    tstamp(g, 4)
    A(f"ds_read_b128 v[16:19], v{vGR_}")
    A("s_waitcnt lgkmcnt(0)")
    for t in range(4):
        A(f"v_mfma_f32_16x16x32_bf16 v[{24+4*t}:{27+4*t}], v[{96+4*t}:{99+4*t}], v[16:19], 0")
    g.nop(6)
    for i in range(4): A(f"v_cndmask_b32 v{40+i}, v{24+i}, v{28+i}, s[{sQ1}:{sQ1+1}]")
    for i in range(4): A(f"v_cndmask_b32 v{40+i}, v{40+i}, v{32+i}, s[{sQ2}:{sQ2+1}]")
    for i in range(4): A(f"v_cndmask_b32 v{40+i}, v{40+i}, v{36+i}, s[{sQ3}:{sQ3+1}]")
    for i in range(4): A(f"v_min_u32 v{40+i}, -2, v{40+i}")
    A(f"buffer_store_dwordx4 v[40:43], v{vZO}, s[{sWS}:{sWS+3}], s{sY_DST} offen sc1")
    stamp(g, 8)
    A("s_branch L_fin")

    g.lbl("L_w7")
    A(f"v_and_b32 v13, 31, v{vL}")
    A(f"v_lshlrev_b32 v13, 2, v13")
    A(f"v_add_u32 v13, {L_OB}, v13")
    g.lbl("L_opoll")
    for i in range(4):
        A(f"buffer_load_dwordx4 v[{16+4*i}:{19+4*i}], v{vL16}, s[{sWS}:{sWS+3}], s{sO_IN} offen offset:{1024*i} sc1")
    A("s_waitcnt vmcnt(0)")
    check_tags(g, [19, 23, 27, 31], "L_opoll")
    tstamp(g, 1)
    A(f"v_max3_f32 v32, v18, v22, v26")
    A(f"v_max_f32 v32, v32, v30")
    A(f"v_mov_b32 v33, v32")
    g.nop(2)
    A(f"v_permlane32_swap_b32 v32, v33")
    g.nop(1)
    A(f"v_max_f32 v32, v32, v33")
    for i in range(4): A(f"v_sub_f32 v{18+4*i}, v{18+4*i}, v32")
    for i in range(4): A(f"v_exp_f32 v{18+4*i}, v{18+4*i}")
    A(f"v_pk_mul_f32 v[34:35], v[16:17], v[18:19] op_sel_hi:[1,0]")
    A(f"v_add_f32 v36, v18, v22")
    for i in range(1, 4):
        A(f"v_pk_fma_f32 v[34:35], v[{16+4*i}:{17+4*i}], v[{18+4*i}:{19+4*i}], v[34:35] op_sel_hi:[1,0,1]")
    A(f"v_add_f32 v37, v26, v30")
    A(f"v_add_f32 v36, v36, v37")
    A(f"v_mov_b32 v38, v34"); A(f"v_mov_b32 v39, v35"); A(f"v_mov_b32 v37, v36")
    g.nop(1)
    A(f"v_permlane32_swap_b32 v34, v38")
    A(f"v_permlane32_swap_b32 v35, v39")
    A(f"v_permlane32_swap_b32 v36, v37")
    A(f"v_pk_add_f32 v[34:35], v[34:35], v[38:39]")
    A(f"v_add_f32 v36, v36, v37")
    A(f"v_rcp_f32 v36, v36")
    g.nop(1)
    A(f"v_pk_mul_f32 v[34:35], v[34:35], v[36:37] op_sel_hi:[1,0]")
    A(f"v_cvt_pk_bf16_f32 v34, v34, v35")
    A(f"ds_write_b32 v13, v34")
    A("s_waitcnt lgkmcnt(0)")
    A("s_barrier")
    stamp(g, 7)
    A(f"s_cmp_eq_u32 s{sROLE}, 2")
    A("s_cbranch_scc1 L_ffn")
    A(f"s_cmp_lt_u32 s{sRED}, 112")
    A("s_cbranch_scc0 L_fin")
    A("s_branch L_gchk")
    g.lbl("L_gretry")
    A(f"s_add_u32 s{sT0}, s{sPX}, {3*1792}")
    A(f"buffer_load_dwordx4 v[{vPAR}:{vPAR+3}], v{vPA1}, s[{sWS}:{sWS+3}], s{sPX} offen sc1")
    A(f"buffer_load_dwordx4 v[{vPAR+4}:{vPAR+7}], v{vPA1}, s[{sWS}:{sWS+3}], s{sT0} offen sc1")
    A("s_waitcnt vmcnt(0)")
    g.lbl("L_gchk")
    check_tags(g, [vPAR+3, vPAR+7], "L_gretry")
    A(f"s_mov_b32 vcc_lo, 0xf0f0f0f0"); A(f"s_mov_b32 vcc_hi, 0xf0f0f0f0")
    A(f"v_cndmask_b32 v100, v{vPAR}, v{vPAR+1}, vcc")
    A(f"v_cndmask_b32 v101, v{vPAR+4}, v{vPAR+5}, vcc")
    unpack(g, 100, 120, 121)
    unpack(g, 101, 122, 123)
    unpack(g, vPAR+8, 124, 125)
    A(f"v_mov_b32 v107, s{sTAG}")
    A(f"v_mov_b32 v106, 0")
    A(f"v_lshlrev_b32 v108, 1, v{vPA2}")
    if XR:
        A(f"v_lshrrev_b32 v{vT}, 3, v{vL}")
        A(f"v_lshl_add_u32 v108, v{vT}, 13, v108")
    A(f"v_lshlrev_b32 v109, 4, v{vPA2}")
    A(f"v_add_u32 v109, {L_RB}, v109")
    A(f"v_lshlrev_b32 v110, 3, v{vPA2}")
    A(f"v_add_u32 v110, {L_RB}, v110")
    A(f"s_lshl_b32 s{sT2}, s{sXO}, 1")
    A(f"s_add_u32 s{sPX}, s{sT2}, {WS_X1}")

    g.lbl("L_red")
    A(f"s_lshl_b32 s{sT0}, s{sRED}, 13")
    A(f"s_lshl_b32 s{sT1}, s{sWAVE}, 10")
    A(f"s_add_u32 s{sT0}, s{sT0}, s{sT1}")
    A(f"s_add_u32 s{sT0}, s{sT0}, {WS_Y}")
    A(f"v_and_b32 v12, 7, v{vL}")
    A(f"v_lshrrev_b32 v13, 5, v{vL}")
    A(f"v_lshl_add_u32 v12, v12, 1, v13")
    A(f"s_lshl_b32 s{sT1}, s{sWAVE}, 2")
    A(f"s_add_u32 s{sT1}, s{sT1}, {L_RB}")
    A(f"v_lshl_add_u32 v12, v12, 5, s{sT1}")
    g.lbl("L_ypoll")
    A(f"buffer_load_dwordx4 v[16:19], v{vL16}, s[{sWS}:{sWS+3}], s{sT0} offen sc1")
    A("s_waitcnt vmcnt(0)")
    check_tags(g, [19], "L_ypoll")
    tstamp(g, 2)
    A(f"v_permlane32_swap_b32 v16, v17")
    g.nop(1)
    A(f"v_add_f32 v16, v16, v17")
    A(f"v_mov_b32 v17, v16")
    g.nop(2)
    A(f"v_permlane16_swap_b32 v16, v17")
    g.nop(1)
    A(f"v_add_f32 v16, v16, v17")
    g.nop(2)
    A(f"v_add_f32 v16, v16, v16 row_ror:8 {DPP}")
    A(f"ds_write_b32 v12, v16")
    A("s_waitcnt lgkmcnt(0)")
    A("s_barrier")
    A(f"s_cmp_eq_u32 s{sWAVE}, 7")
    A("s_cbranch_scc0 L_red_z")
    for i in range(4):
        A(f"ds_read_b128 v[{16+4*i}:{19+4*i}], v109 offset:{16*i}")
    A("s_waitcnt lgkmcnt(2)")
    A(pk("add", 16, 16, 18)); A(pk("add", 20, 20, 22))
    A("s_waitcnt lgkmcnt(0)")
    A(pk("add", 24, 24, 26)); A(pk("add", 28, 28, 30))
    A(pk("add", 16, 16, 20)); A(pk("add", 24, 24, 28))
    A(f"v_add_f32 v16, v16, v17"); A(f"v_add_f32 v17, v24, v25")
    def resid(gate):
        rnd2(g, 16, 17, 18)
        A(pk("mul", 16, 16, gate))
        rnd2(g, 16, 17, 18)
        A(pk("add", 124, 124, 16))
        A(f"v_cvt_pk_bf16_f32 v104, v124, v125")
    resid(120)
    g.nop(2)
    A(f"v_mov_b32 v105, v104 row_shl:4 {DPP}")
    if XR:
        A("s_mov_b32 exec_lo, 0x0f0f0f0f"); A("s_mov_b32 exec_hi, 0x0f0f0f0f")
    else:
        A("s_mov_b64 exec, 0xf")
    A(f"buffer_store_dwordx4 v[104:107], v108, s[{sWS}:{sWS+3}], s{sPX} offen sc1")
    A("s_mov_b64 exec, -1")
    stamp(g, 8)
    unpack(g, 104, 124, 125)
    A("s_barrier")
    A(f"ds_read_b128 v[16:19], v110 offset:0")
    A(f"ds_read_b128 v[20:23], v110 offset:16")
    A("s_waitcnt lgkmcnt(0)")
    A(pk("add", 16, 16, 18)); A(pk("add", 20, 20, 22))
    A(f"v_add_f32 v16, v16, v17"); A(f"v_add_f32 v17, v20, v21")
    resid(122)
    A("s_mov_b64 exec, 0xff")
    A(f"buffer_store_dword v104, v{vPA2}, s[{sA}:{sA+3}], s{sXO} offen{opt.get('polO', '')}")
    stamp(g, 9)
    A(f"s_cmp_eq_u32 s{sRED}, 0")
    A("s_cbranch_scc0 L_fin")
    A("s_mov_b64 exec, 1")
    A(f"v_mov_b32 v{vT}, 0")
    A(f"buffer_store_dword v107, v{vT}, s[{sWS}:{sWS+3}], 0 offen sc1")
    A("s_branch L_fin")
    g.lbl("L_red_z")
    A(f"s_cmp_lt_u32 s{sWAVE}, 4")
    A("s_cbranch_scc0 L_fin")
    A(f"v_and_b32 v12, 3, v{vL}")
    A(f"v_lshlrev_b32 v12, 2, v12")
    A(f"v_and_b32 v13, 1, v{vGR}")
    A(f"v_lshl_add_u32 v12, v13, 1, v12")
    A(f"v_lshrrev_b32 v13, 1, v{vGR}")
    A(f"v_add_u32 v12, v12, v13")
    A(f"v_lshl_add_u32 v12, v12, 4, s{sT1}")
    g.lbl("L_zpoll")
    A(f"buffer_load_dwordx4 v[16:19], v{vPA1}, s[{sWS}:{sWS+3}], s{sPX} offen sc1")
    A("s_waitcnt vmcnt(0)")
    A(f"v_max3_u32 v{vT}, v16, v17, v18")
    A(f"v_max_u32 v{vT}, v{vT}, v19")
    A(f"v_cmp_eq_u32 vcc, -1, v{vT}")
    retry_branch(g, "L_zpoll")
    tstamp(g, 3)
    A(f"v_permlane32_swap_b32 v16, v17")
    A(f"v_permlane32_swap_b32 v18, v19")
    g.nop(1)
    A(f"v_add_f32 v16, v16, v17")
    A(f"v_add_f32 v18, v18, v19")
    g.nop(2)
    A(f"v_permlane16_swap_b32 v16, v18")
    g.nop(1)
    A(f"v_add_f32 v16, v16, v18")
    g.nop(2)
    A(f"v_add_f32 v16, v16, v16 row_ror:4 {DPP}")
    g.nop(2)
    A(f"v_add_f32 v16, v16, v16 row_ror:8 {DPP}")
    A(f"ds_write_b32 v12, v16")
    A("s_waitcnt lgkmcnt(0)")
    A("s_barrier")
    A("s_branch L_fin")

    g.lbl("L_early")
    A(f"s_mov_b32 s{sROLE}, 1")
    A(f"s_sub_u32 s{sIDX}, s2, 128")
    A(f"v_lshrrev_b32 v{vT}, 3, v{vL}")
    A(f"v_and_b32 v{vT+1}, 7, v{vL}")
    A(f"s_cmp_lt_u32 s{sN}, 24")
    A("s_cbranch_scc1 L_ed_q")
    A(f"s_sub_u32 s{sIDX}, s{sN}, 24")
    A(f"s_lshl_b32 s{sIDX}, s{sIDX}, 2")
    A(f"s_lshr_b32 s{sT1}, s{sS}, 1")
    A(f"s_add_u32 s{sIDX}, s{sIDX}, s{sT1}")
    A(f"s_and_b32 s{sT2}, s{sS}, 1")
    A(f"s_lshl_b32 s{sT2}, s{sT2}, 5")
    A(f"s_add_u32 s{sIDX}, s{sIDX}, s{sT2}")
    A(f"s_cmp_lt_u32 s{sIDX}, 42")
    A(f"s_cselect_b32 s{sROLE}, 4, 0")
    A("s_cbranch_scc0 L_kload")
    srd(g, sB, P_C, 3584)
    A(f"s_lshl_b32 s{sT0}, s{sWAVE}, 10")
    A(f"buffer_load_dwordx4 v[16:19], v{vL16}, s[{sB}:{sB+3}], s{sT0} offen")
    srd(g, sA, P_WM, 448*5376)
    A(f"v_mul_u32_u24 v{vDM}, 5376, v{vT}")
    A(f"s_mov_b32 s{sSTEP}, {8*5376}")
    A("s_branch L_ed_go")
    g.lbl("L_ed_q")
    srd(g, sB, P_X, 3584)
    A(f"s_mul_i32 s{sT0}, s{sWAVE}, 896")
    A(f"v_lshlrev_b32 v13, 3, v{vL}")
    A(f"v_mov_b32 v{vT+2}, 0x100000")
    A(f"v_cndmask_b32 v{vT+2}, v{vT+2}, v13, s[{sM48}:{sM48+1}]")
    A(f"buffer_load_dwordx2 v[16:17], v13, s[{sB}:{sB+3}], s{sT0} offen")
    A(f"buffer_load_dwordx2 v[18:19], v{vT+2}, s[{sB}:{sB+3}], s{sT0} offen offset:512")
    srd(g, sA, P_WQ, 448*8192)
    A(f"v_lshlrev_b32 v{vDM}, 13, v{vT}")
    A(f"s_mov_b32 s{sSTEP}, {8*8192}")
    g.lbl("L_ed_go")
    A(f"v_lshl_add_u32 v{vDM}, v{vT+1}, 4, v{vDM}")
    A(f"s_lshl_b32 s{sSTART}, s{sIDX}, 7")
    A(f"s_mul_i32 s{sT0}, s{sWAVE}, 7")
    A(f"s_mul_i32 s{sT1}, s{sT0}, s{sSTEP}")
    A(f"s_add_u32 s{sSTART}, s{sSTART}, s{sT1}")
    A(f"s_lshl_b32 s{sLDS}, s{sT0}, 10")
    A(f"s_add_u32 s{sLDS}, s{sLDS}, {L_IMG}")
    dma7(g, polW, VM(g, 0))
    srd(g, sWS, P_WS, WS_SIZE)
    A(f"v_mov_b32 v{vT}, 0")
    A(f"buffer_load_dword v14, v{vT}, s[{sWS}:{sWS+3}], 0 offen sc1")
    A(f"v_mov_b32 v{vT+1}, {L_FLAG}")
    A(f"ds_write_b32 v{vT+1}, v{vT} offset:4")
    A("s_waitcnt lgkmcnt(0)")
    A("s_barrier")
    A("s_branch L_kload")

    g.lbl("L_hook")
    A(f"s_cmp_lt_u32 s{sWAVE}, 4")
    A("s_cbranch_scc0 L_p1")
    A(f"s_waitcnt vmcnt({HK+9})")
    for i in range(4):
        unpack(g, 16+i, 24+2*i, 25+2*i)
    A(f"s_cmp_eq_u32 s{sROLE}, 1")
    A("s_cbranch_scc1 L_p_ln")
    for i in range(8): A(f"v_mul_f32 v{32+i}, {f2u(-LOG2E):#x}, v{24+i}")
    for i in range(8): A(f"v_exp_f32 v{32+i}, v{32+i}")
    for i in range(8): A(f"v_add_f32 v{32+i}, 1.0, v{32+i}")
    for i in range(8): A(f"v_rcp_f32 v{32+i}, v{32+i}")
    for i in range(8): A(f"v_mul_f32 v{24+i}, v{24+i}, v{32+i}")
    A(f"s_lshl_b32 s{sT2}, s{sWAVE}, 10")
    A(f"s_add_u32 s{sT2}, s{sT2}, {L_A}")
    for i in range(4): A(f"v_cvt_pk_bf16_f32 v{24+i}, v{24+2*i}, v{25+2*i}")
    A(f"v_add_u32 v{vT}, s{sT2}, v{vL16}")
    A(f"ds_write_b128 v{vT}, v[24:27]")
    A("s_branch L_p1")
    g.lbl("L_p_ln")
    layernorm(g, 24, 32, 24, 8)
    for i in range(4): A(f"v_cvt_pk_bf16_f32 v{60+i}, v{24+2*i}, v{25+2*i}")
    g.lbl("L_p1")
    A(f"s_waitcnt vmcnt({HK+1}) lgkmcnt(0)")
    A("s_barrier")
    A(f"s_cmp_lt_u32 s{sWAVE}, 4")
    A("s_cbranch_scc0 L_k1")
    A(f"v_readfirstlane_b32 s{sTAG}, v14")
    A(f"s_add_u32 s{sTAG}, s{sTAG}, 0x9e3779b9")
    A(f"s_cmp_eq_u32 s{sROLE}, 1")
    A("s_cbranch_scc1 L_p_q")
    A(f"s_call_b64 s[{sRET}:{sRET+1}], L_svc_mm")
    A("s_branch L_k1")
    g.lbl("L_p_q")
    A(f"v_add_u32 v13, 1024, v{vL16}")
    A(f"v_mov_b32 v{vT}, {WS_SIZE}")
    A(f"v_cndmask_b32 v13, v{vT}, v13, s[{sM48}:{sM48+1}]")
    A(f"s_mul_i32 s{sXO}, s{sWAVE}, {MB}")
    A(f"s_add_u32 s{sXO}, s{sXO}, {WS_M}")
    A(f"s_mov_b32 s{sSV}, 1")
    A("s_branch L_k1")

    g.lbl("L_svc")
    A(f"s_mov_b32 s{sSV}, 0")
    for i, r in enumerate((32, 33, 36, 37)):
        unpack(g, r, 16+2*i, 17+2*i)
        unpack(g, r+8, 48+2*i, 49+2*i)
        unpack(g, 60+i, 24+2*i, 25+2*i)
    for i in range(8): A(f"v_add_f32 v{48+i}, 1.0, v{48+i}")
    for i in range(0, 8, 2): rnd2(g, 48+i, 49+i, vT)
    modulate_pack(g, 24, 48, 16, 24, vT, 8)
    A(f"s_mul_i32 s{sT2}, s{sWAVE}, 896")
    A(f"s_add_u32 s{sT2}, s{sT2}, {L_A}")
    A(f"v_lshl_add_u32 v{vT}, v{vL}, 3, s{sT2}")
    A(f"ds_write_b64 v{vT}, v[24:25]")
    A(f"s_mov_b64 exec, s[{sM48}:{sM48+1}]")
    A(f"ds_write_b64 v{vT}, v[26:27] offset:512")
    A("s_mov_b64 exec, -1")
    A("s_waitcnt lgkmcnt(0)")
    lds_inc(g, 4)
    lds_spin(g, 4, 4, "L_p2spin")
    g.lbl("L_svc_mm")
    stamp(g, 1)
    A(f"v_lshrrev_b32 v{vT+2}, 2, v{vJ}")
    A(f"v_lshl_add_u32 v{vT+2}, v{vGR}, 3, v{vT+2}")
    A(f"v_lshlrev_b32 v{vT+2}, 7, v{vT+2}")
    A(f"v_and_b32 v{vT+3}, 3, v{vL}")
    A(f"v_lshl_add_u32 v{vT+2}, v{vT+3}, 3, v{vT+2}")
    A(f"s_lshl_b32 s{sT2}, s{sWAVE}, 5")
    A(f"s_add_u32 s{sT2}, s{sT2}, {L_IMG}")
    A(f"v_add_u32 v{vT+2}, s{sT2}, v{vT+2}")
    A(f"v_mul_u32_u24 v{vT+1}, 896, v{vT+3}")
    A(f"v_lshl_add_u32 v{vT+1}, v{vGR}, 4, v{vT+1}")
    A(f"v_add_u32 v{vT+1}, {L_A}, v{vT+1}")
    A("s_waitcnt lgkmcnt(0)")
    def slot(ks): return 24 + 8*(ks % 5)
    def rd(ks):
        r = slot(ks)
        A(f"ds_read_b64_tr_b16 v[{r}:{r+1}], v{vT+2} offset:{ks*4096}")
        A(f"ds_read_b64_tr_b16 v[{r+2}:{r+3}], v{vT+2} offset:{ks*4096+512}")
        A(f"ds_read_b128 v[{r+4}:{r+7}], v{vT+1} offset:{64*ks}")
    for ks in range(5): rd(ks)
    for ks in range(14):
        ahead = min(13 - ks, 4)
        A(f"s_waitcnt lgkmcnt({3*ahead})")
        r = slot(ks)
        c = "0" if ks == 0 else "v[16:19]"
        A(f"v_mfma_f32_16x16x32_bf16 v[16:19], v[{r}:{r+3}], v[{r+4}:{r+7}], {c}")
        if ks + 5 < 14: rd(ks + 5)
    A(f"s_cmp_eq_u32 s{sROLE}, 1")
    A(f"s_mov_b32 s{sT2}, {MB}")
    A(f"s_cselect_b32 s{sT2}, 16384, s{sT2}")
    A(f"s_mov_b32 s{sT3}, {WS_M}")
    A(f"s_cselect_b32 s{sT3}, {WS_Q}, s{sT3}")
    A(f"s_lshl_b32 s{sLDS}, s{sIDX}, 8")
    A(f"s_add_u32 s{sT3}, s{sT3}, s{sLDS}")
    A(f"s_lshl_b32 s{sLDS}, s{sWAVE}, 6")
    A(f"s_add_u32 s{sT3}, s{sT3}, s{sLDS}")
    A(f"v_mul_u32_u24 v{vT+1}, s{sT2}, v{vT+3}")
    A(f"v_lshl_add_u32 v{vT+1}, v{vGR}, 4, v{vT+1}")
    A(f"v_mov_b32 v22, 0")
    A(f"v_mov_b32 v23, s{sTAG}")
    A(f"v_cvt_pk_bf16_f32 v20, v16, v17")
    A(f"v_cvt_pk_bf16_f32 v21, v18, v19")
    A(f"s_mov_b32 exec_lo, 0x000f000f")
    A(f"s_mov_b32 exec_hi, 0x000f000f")
    A(f"buffer_store_dwordx4 v[20:23], v{vT+1}, s[{sWS}:{sWS+3}], s{sT3} offen sc1")
    A("s_mov_b64 exec, -1")
    A(f"v_not_b32 v19, s{sTAG}")
    stamp(g, 2)
    A(f"s_setpc_b64 s[{sRET}:{sRET+1}]")

    if LW == 2:
        g.lbl("L_wo2")
        A(f"s_cmp_eq_u32 s{sROLE}, 8")
        A("s_cbranch_scc1 L_pf")
        srd(g, sB, P_WO, 4096*896)
        A(f"s_lshr_b32 s{sT2}, s{sWAVE}, 1")
        A(f"s_lshl_b32 s{sT0}, s{sKVH}, 1")
        A(f"s_add_u32 s{sT0}, s{sT0}, s{sT2}")
        A(f"s_lshl_b32 s{sT0}, s{sT0}, 8")
        A(f"s_lshl_b32 s{sT2}, s{sS}, 5")
        A(f"s_add_u32 s{sT0}, s{sT0}, s{sT2}")
        A(f"s_mul_i32 s{sSTART}, s{sT0}, 896")
        A(f"s_and_b32 s{sT1}, s{sWAVE}, 1")
        A(f"s_mul_i32 s{sT1}, s{sT1}, 14336")
        A(f"s_add_u32 s{sSTART}, s{sSTART}, s{sT1}")
        A(f"s_mul_i32 s{sLDS}, s{sWAVE}, 14336")
        A(f"s_mov_b32 s{sSTEP}, 1024")
        A(f"v_mov_b32 v{vDM}, v{vL16}")
        dma7(g, polWO, VM(g, 0), sB)
        dma7(g, polWO, VM(g, 0), sB)
        A("s_branch L_wo2_ret")
        g.lbl("L_pf")
        A(f"s_lshr_b32 s{sT1}, s{sIDX}, 1")
        A(f"s_and_b32 s{sT0}, s{sIDX}, 1")
        A("s_cbranch_scc1 L_pf_d")
        srd(g, sB, P_WG, 448*3584)
        A(f"s_lshl_b32 s{sT1}, s{sT1}, 7")
        A(f"s_mul_i32 s{sSTART}, s{sWAVE}, {112*3584}")
        A(f"s_add_u32 s{sSTART}, s{sSTART}, s{sT1}")
        A(f"s_mov_b32 s{sSTEP}, {8*3584}")
        A(f"v_lshrrev_b32 v{vDM}, 3, v{vL}")
        A(f"v_mul_u32_u24 v{vDM}, 3584, v{vDM}")
        A(f"v_and_b32 v{vT}, 7, v{vL}")
        A(f"v_lshl_add_u32 v{vDM}, v{vT}, 4, v{vDM}")
        A("s_branch L_pf_go")
        g.lbl("L_pf_d")
        srd(g, sB, P_WD, 1792*896)
        A(f"s_mul_i32 s{sSTART}, s{sT1}, 57344")
        A(f"s_mul_i32 s{sT1}, s{sWAVE}, 14336")
        A(f"s_add_u32 s{sSTART}, s{sSTART}, s{sT1}")
        A(f"s_mov_b32 s{sSTEP}, 1024")
        A(f"v_mov_b32 v{vDM}, v{vL16}")
        g.lbl("L_pf_go")
        A(f"s_mov_b32 s{sLDS}, {L_WD}")
        dma7(g, polP, VM(g, 0), sB)
        dma7(g, polP, VM(g, 0), sB)
        A("s_branch L_wo2_ret")
    g.lbl("L_md2")
    A(f"s_cmp_eq_u32 s{sROLE}, 2")
    A("s_cbranch_scc1 L_md_f")
    g.lbl("L_md_none")
    A("s_waitcnt vmcnt(8)")
    A("s_branch L_qchk")
    g.lbl("L_md_f")
    A(f"s_cmp_lt_u32 s{sWAVE}, 4")
    A(f"s_cbranch_scc0 {'L_md_none' if LW else 'L_ld_done'}")
    srd(g, sA, P_WU, 448*3584)
    A(f"s_mul_i32 s{sSTART}, s{sWAVE}, {112*3584}")
    A(f"s_lshl_b32 s{sT1}, s{sIDX}, 6")
    A(f"s_add_u32 s{sSTART}, s{sSTART}, s{sT1}")
    A(f"s_mov_b32 s{sSTEP}, {16*3584}")
    A(f"s_mul_i32 s{sLDS}, s{sWAVE}, 7168")
    A(f"s_add_u32 s{sLDS}, s{sLDS}, {L_WU}")
    A(f"v_lshrrev_b32 v{vDM}, 2, v{vL}")
    A(f"v_mul_u32_u24 v{vDM}, 3584, v{vDM}")
    A(f"v_and_b32 v{vT}, 3, v{vL}")
    A(f"v_lshl_add_u32 v{vDM}, v{vT}, 4, v{vDM}")
    dma7(g, polW, VM(g, W, W))
    A("s_branch L_ld_done")

    g.lbl("L_parF")
    if opt.get("TT", 0):
        srd(g, sA, P_WG, 448*3584)
        A(f"s_cmp_lt_u32 s{sWAVE}, 4")
        A(f"s_cselect_b32 s{sA}, s{P_WG}, s{P_WD}")
        A(f"s_cselect_b32 s{sA+1}, s{P_WG+1}, s{P_WD+1}")
        A(f"v_mul_u32_u24 v{vT}, {opt['TT']}, v{vL}")
        A(f"buffer_load_dword v{vPAR+12}, v{vT}, s[{sA}:{sA+3}], 0 offen nt")
    A(f"s_cmp_lt_u32 s{sWAVE}, 4")
    A(f"s_cselect_b64 s[{sMH}:{sMH+1}], -1, s[{sM48}:{sM48+1}]")
    A(f"s_cselect_b32 s{sT0}, 0, 1024")
    A(f"v_add_u32 v{vPA1}, s{sT0}, v{vL16}")
    A(f"v_mov_b32 v{vT}, {WS_SIZE}")
    A(f"v_cndmask_b32 v{vPA1}, v{vT}, v{vPA1}, s[{sMH}:{sMH+1}]")
    A(f"s_and_b32 s{sT0}, s{sWAVE}, 3")
    A(f"s_mul_i32 s{sXO}, s{sT0}, {MB}")
    A(f"s_add_u32 s{sXO}, s{sXO}, {WS_M + 3*1792}")
    for i in range(2):
        A(f"buffer_load_dwordx4 v[{vPAR+4*i}:{vPAR+4*i+3}], v{vPA1}, s[{sWS}:{sWS+3}], s{sXO} offen offset:{1792*i} sc1")
    A("s_branch L_par_done")
    g.lbl("L_parR")
    A(f"s_cmp_eq_u32 s{sWAVE}, 7")
    A("s_cbranch_scc1 L_par7")
    A(f"s_cmp_lt_u32 s{sWAVE}, 4")
    A("s_cbranch_scc0 L_par_done")
    A(f"s_mul_i32 s{sPX}, s{sRED}, 3584")
    A(f"s_add_u32 s{sPX}, s{sPX}, {WS_Z}")
    A(f"s_lshl_b32 s{sT0}, s{sWAVE}, 10")
    A(f"v_add_u32 v{vPA1}, s{sT0}, v{vL16}")
    A(f"v_mov_b32 v{vT}, {WS_SIZE}")
    A(f"v_cmp_gt_u32 vcc, 3584, v{vPA1}")
    for i in range(4): A(f"v_mov_b32 v{vPAR+i}, -1")
    A(f"v_cndmask_b32 v{vPA1}, v{vT}, v{vPA1}, vcc")
    A(f"buffer_store_dwordx4 v[{vPAR}:{vPAR+3}], v{vPA1}, s[{sWS}:{sWS+3}], s{sPX} offen sc1")
    A("s_branch L_par_done")
    g.lbl("L_par7")
    A(f"s_mul_i32 s{sRB}, s{sRED}, 2341")
    A(f"s_lshr_b32 s{sRB}, s{sRB}, 16")
    A(f"s_mul_i32 s{sT0}, s{sRB}, 28")
    A(f"s_sub_u32 s{sT0}, s{sRED}, s{sT0}")
    A(f"s_mul_i32 s{sT2}, s{sRB}, 896")
    A(f"s_lshl_b32 s{sT3}, s{sT0}, 5")
    A(f"s_add_u32 s{sXO}, s{sT2}, s{sT3}")
    srd(g, sB, P_X, 3584)
    srd(g, sA, P_OUT, 3584)
    A(f"v_and_b32 v{vPA2}, 3, v{vL}")
    A(f"v_bfe_u32 v{vT}, v{vL}, 2, 1")
    A(f"v_lshl_add_u32 v{vPA2}, v{vPA2}, 1, v{vT}")
    A(f"v_lshlrev_b32 v{vPA2}, 2, v{vPA2}")
    A(f"buffer_load_dword v{vPAR+8}, v{vPA2}, s[{sB}:{sB+3}], s{sXO} offen")
    A(f"buffer_load_dword v{vPAR+9}, v{vPA2}, s[{sA}:{sA+3}], s{sXO} offen")
    A(f"v_and_b32 v{vPA1}, 3, v{vL}")
    A(f"v_lshlrev_b32 v{vPA1}, 4, v{vPA1}")
    A(f"s_mul_i32 s{sT2}, s{sRB}, {MB}")
    A(f"s_lshl_b32 s{sT3}, s{sT0}, 6")
    A(f"s_add_u32 s{sPX}, s{sT2}, s{sT3}")
    A(f"s_add_u32 s{sPX}, s{sPX}, {WS_M + 2*1792}")
    A(f"s_add_u32 s{sT0}, s{sPX}, {3*1792}")
    A(f"buffer_load_dwordx4 v[{vPAR}:{vPAR+3}], v{vPA1}, s[{sWS}:{sWS+3}], s{sPX} offen sc1")
    A(f"buffer_load_dwordx4 v[{vPAR+4}:{vPAR+7}], v{vPA1}, s[{sWS}:{sWS+3}], s{sT0} offen sc1")
    A("s_branch L_par_done")
    g.lbl("L_fin")
    flush_stamps(g, NSTAMP)
    g.lbl("L_end")
    A("s_endpgm")
    g.L += ['.section .rodata,"a"', ".p2align 6", f".amdhsa_kernel {NAME}_kernel",
            "  .amdhsa_next_free_vgpr 256", "  .amdhsa_next_free_sgpr 102", "  .amdhsa_accum_offset 256",
            "  .amdhsa_group_segment_fixed_size 0", "  .amdhsa_kernarg_size 112", "  .amdhsa_user_sgpr_count 2",
            "  .amdhsa_user_sgpr_kernarg_segment_ptr 1", "  .amdhsa_system_sgpr_workgroup_id_x 1", ".end_amdhsa_kernel"]
    return "\n".join(g.L) + "\n"

if __name__ == "__main__":
    out = sys.argv[1] if len(sys.argv) > 1 else f"cdna_kernels/{NAME}.s"
    opt = {}
    for a in sys.argv[2:]:
        k, val = a.split("=", 1)
        try: val = int(val)
        except ValueError: val = (" " + val.replace("+", " ")) if val else ""
        opt[k] = val
    open(out, "w").write(build(opt))
```

```python
import sys, math, struct

NAME = "adaLN_cond__gqa_block_cached__geglu_ffn__decode"

WS_E   = 0x0
WS_X1  = 0x300000
WS_M   = 0x5000
MB = 10752
WS_Q   = 0x10000
WS_O   = 0x20000
WS_Y   = 0x120000
WS_Z   = 0x200000
WS_STAMP = 0x400000
WS_SIZE = 0x800000

L_WO = 0
L_WG = 57344
L_WU = L_WG + 28672
L_WD = L_WU + 28672
L_IMG = L_WG
L_A  = L_WD + 28672
L_Q  = L_A + 3584
L_P  = L_Q + 1024
L_RED = L_P + 2048
L_OL = L_WG
L_PD = L_WU + 20480
L_OB = L_RED + 128
L_G  = L_OB + 128
L_RB = L_G + 256
L_FLAG = L_RB + 512
L_END = L_FLAG + 64

LOG2E = 1.4426950408889634
def f2u(x): return struct.unpack("<I", struct.pack("<f", x))[0]

class G:
    def __init__(self, opt):
        self.L = []; self.o = opt; self.lab = 0
    def A(self, s): self.L.append("    " + s)
    def lbl(self, s): self.L.append(s + ":")
    def newlab(self, p="L"):
        self.lab += 1
        return f"{p}_{self.lab}"
    def nop(self, n):
        while n > 0:
            k = min(n, 16)
            self.A(f"s_nop {k-1}")
            n -= k

sWAVE = 3
sK, sV, sWS, sA, sB = 4, 8, 12, 16, 20
sS, sB_, sKVH, sN = 24, 25, 26, 27
sTAG, sRETRY = 28, 29
sKB, sSV = 30, 31
sROT = 32
sT0, sT1, sT2, sT3 = 33, 34, 35, 36
sIDX = 37
sM1, sM2, sM3 = 38, 40, 42
sM48 = 44
sQ1, sQ2, sQ3 = 46, 48, 50
sR8 = 52
sSTART, sSTEP, sLDS = 54, 55, 56
sPLO, sPHI = 57, 58
sC = 59
sHI = 60
sROLE = 61
sRED = 62
sGRP = 63
P_X, P_K, P_V, P_WQ, P_WO, P_BX, P_WG, P_WU, P_WD, P_C, P_WM, P_OUT, P_DBG, P_WS = [64 + 2*i for i in range(14)]
sPX = 74
sXO = 75
sRET = 0
sST = 88
sO_DST, sY_DST = 66, 67
sO_IN, sRB = 68, 69
sMH = 70
sLN = 84

vTID, vL, vJ, vGR, vKO, vVO, vL16, vDM = 0, 1, 2, 3, 4, 5, 6, 7
vE = 8
vT = 9
vQF = 16
vSD = 48
vVE = 64
vK = 128
vPAR = 240
vPA1, vPA2 = 56, 57
vOLW, vOLR, vYO, vOBA = 58, 59, 60, 61
vSC = 62

def srd(g, r, ptr, size):
    g.A(f"s_mov_b32 s{r}, s{ptr}")
    g.A(f"s_mov_b32 s{r+1}, s{ptr+1}")
    g.A(f"s_mov_b32 s{r+2}, {size}")
    g.A(f"s_mov_b32 s{r+3}, 0x20000")

DPP = "row_mask:0xf bank_mask:0xf"
def wave_reduce(g, op, regs, tmps, swaps=("v_permlane16_swap_b32", "v_permlane32_swap_b32")):
    n = len(regs)
    for pat in ("quad_perm:[1,0,3,2]", "quad_perm:[2,3,0,1]", "row_half_mirror", "row_mirror"):
        g.nop(max(0, 2 - (n - 1)))
        for r in regs:
            g.A(f"{op} v{r}, v{r}, v{r} {pat} {DPP}")
    for sw in swaps:
        for r, t in zip(regs, tmps):
            g.A(f"v_mov_b32 v{t}, v{r}")
        g.nop(2)
        for r, t in zip(regs, tmps):
            g.A(f"{sw} v{r}, v{t}")
        g.nop(1)
        for r, t in zip(regs, tmps):
            g.A(f"{op} v{r}, v{r}, v{t}")

def rnd2(g, a, b, t):
    g.A(f"v_cvt_pk_bf16_f32 v{t}, v{a}, v{b}")
    g.A(f"v_lshlrev_b32 v{a}, 16, v{t}")
    g.A(f"v_and_b32 v{b}, s{sHI}, v{t}")
def rnd1(g, a):
    g.A(f"v_cvt_pk_bf16_f32 v{a}, v{a}, v{a}")
    g.A(f"v_lshlrev_b32 v{a}, 16, v{a}")
def unpack(g, src, lo, hi):
    g.A(f"v_lshlrev_b32 v{lo}, 16, v{src}")
    g.A(f"v_and_b32 v{hi}, s{sHI}, v{src}")

def red63(g, r, fill):
    fill = list(fill)
    def pad(n):
        for _ in range(n):
            if fill: g.A(fill.pop(0))
            else:
                g.nop(n - _); break
    for pat in ("quad_perm:[1,0,3,2] " + DPP, "quad_perm:[2,3,0,1] " + DPP, "row_half_mirror " + DPP, "row_mirror " + DPP,
                "row_bcast:15 row_mask:0xa bank_mask:0xf", "row_bcast:31 row_mask:0xc bank_mask:0xf"):
        pad(2)
        g.A(f"v_add_f32 v{r}, v{r}, v{r} {pat}")
    pad(1)
    g.A(f"v_readlane_b32 s{sLN}, v{r}, 63")
    pad(2)
    for f in fill: g.A(f)

def pk(op, d, a, b, bc=False, neg=False):
    m = ""
    if bc: m += " op_sel_hi:[1,0]"
    if neg: m += " neg_lo:[0,1] neg_hi:[0,1]"
    return f"v_pk_{op}_f32 v[{d}:{d+1}], v[{a}:{a+1}], v[{b}:{b+1}]{m}"

def rnd2s(a, b, t):
    return [f"v_cvt_pk_bf16_f32 v{t}, v{a}, v{b}", f"v_lshlrev_b32 v{a}, 16, v{t}", f"v_and_b32 v{b}, s{sHI}, v{t}"]

def layernorm(g, X, T, E, n, presel=()):
    A = g.A
    A(pk("add", T, X, X+2)); A(pk("add", T+2, X+4, X+6)); A(pk("add", T, T, T+2))
    A(f"v_add_f32 v{T}, v{T}, v{T+1}")
    red63(g, T, presel)
    A(f"v_mov_b32 v{T+8}, {f2u(1.0/448):#x}")
    A(f"v_mul_f32 v{T}, s{sLN}, v{T+8}")
    A(pk("add", T+2, X, T, True, True)); A(pk("add", T+4, X+2, T, True, True))
    A(f"v_pk_mul_f32 v[{T+6}:{T+7}], v[{T+2}:{T+3}], v[{T+2}:{T+3}]")
    A(pk("add", T+2, X+4, T, True, True))
    A(f"v_pk_fma_f32 v[{T+6}:{T+7}], v[{T+4}:{T+5}], v[{T+4}:{T+5}], v[{T+6}:{T+7}]")
    A(pk("add", T+4, X+6, T, True, True))
    A(f"s_mov_b64 exec, s[{sM48}:{sM48+1}]")
    A(f"v_pk_fma_f32 v[{T+6}:{T+7}], v[{T+2}:{T+3}], v[{T+2}:{T+3}], v[{T+6}:{T+7}]")
    A(f"v_pk_fma_f32 v[{T+6}:{T+7}], v[{T+4}:{T+5}], v[{T+4}:{T+5}], v[{T+6}:{T+7}]")
    A("s_mov_b64 exec, -1")
    A(f"v_add_f32 v{T+6}, v{T+6}, v{T+7}")
    fill = [f"v_cvt_pk_bf16_f32 v{T}, v{T}, v{T}", f"v_lshlrev_b32 v{T}, 16, v{T}"]
    fill += [pk("add", E+i, E+i, T, True, True) for i in range(0, n, 2)]
    for i in range(0, n, 2): fill += rnd2s(E+i, E+i+1, T+2)
    red63(g, T+6, fill)
    A(f"v_mul_f32 v{T+6}, s{sLN}, v{T+8}")
    rnd1(g, T+6)
    A(f"v_add_f32 v{T+6}, {f2u(1e-5):#x}, v{T+6}")
    rnd1(g, T+6)
    A(f"v_sqrt_f32 v{T+6}, v{T+6}")
    g.nop(1)
    rnd1(g, T+6)
    A(f"v_rcp_f32 v{T+6}, v{T+6}")
    g.nop(1)
    for i in range(0, n, 2): A(pk("mul", E+i, E+i, T+6, True))

def modulate_pack(g, X, OC, SH, D, t, n):
    for i in range(0, n, 2): g.A(pk("mul", X+i, X+i, OC+i))
    for i in range(0, n, 2): rnd2(g, X+i, X+i+1, t)
    for i in range(0, n, 2): g.A(pk("add", X+i, X+i, SH+i))
    for i in range(0, n, 2): g.A(f"v_cvt_pk_bf16_f32 v{D+i//2}, v{X+i}, v{X+i+1}")

def retry_branch(g, fail_label):
    ok = g.newlab("L_ok")
    g.A(f"s_cbranch_vccz {ok}")
    g.A(f"s_sub_u32 s{sRETRY}, s{sRETRY}, 1")
    g.A(f"s_cbranch_scc0 {fail_label}")
    g.A(f"s_mov_b32 s{sRETRY}, 0")
    g.lbl(ok)

def tags_ab(g, ra, rb):
    t = vT
    g.A(f"v_xor_b32 v{t}, s{sTAG}, v{rb[0]}")
    for r in rb[1:]: g.A(f"v_bitop3_b32 v{t}, v{t}, v{r}, s{sTAG} bitop3:0xf6")
    g.A(f"v_cndmask_b32 v{t}, 0, v{t}, s[{sM48}:{sM48+1}]")
    for r in ra: g.A(f"v_bitop3_b32 v{t}, v{t}, v{r}, s{sTAG} bitop3:0xf6")
    g.A(f"v_cmp_ne_u32 vcc, 0, v{t}")

class VM:
    def __init__(self, g, W, n0=0):
        self.g, self.W, self.n = g, W, n0
    def pre(self):
        if self.W and self.n >= self.W:
            self.g.A(f"s_waitcnt vmcnt({self.W-1})")
            self.n = self.W - 1
        self.n += 1

def dma7(g, pol, vm, srd_=None):
    srd_ = srd_ or sA
    for i in range(7):
        vm.pre()
        g.A(f"s_mov_b32 m0, s{sLDS}")
        g.A(f"s_add_u32 s{sLDS}, s{sLDS}, 1024")
        g.A(f"buffer_load_dwordx4 v{vDM}, s[{srd_}:{srd_+3}], s{sSTART} offen{pol} lds")
        g.A(f"s_add_u32 s{sSTART}, s{sSTART}, s{sSTEP}")

def k_tile(g, vm, pol, t, lo=0, hi=8):
    g.A(f"s_add_u32 s{sT0}, s{sROT}, {t}")
    g.A(f"s_and_b32 s{sT0}, s{sT0}, 3")
    g.A(f"s_lshl_b32 s{sT0}, s{sT0}, 13")
    g.A(f"s_add_u32 s{sT0}, s{sT0}, s{sKB}")
    g.A(f"s_add_u32 s{sT1}, s{sT0}, 4096")
    for jj in range(lo, hi):
        vm.pre()
        r = vK + 32*t + 4*jj
        kq, blk = jj >> 1, jj & 1
        so = sT0 if kq < 2 else sT1
        g.A(f"buffer_load_dwordx4 v[{r}:{r+3}], v{vKO}, s[{sK}:{sK+3}], s{so} offen offset:{(kq&1)*2048 + blk*256}{pol}")

def v_dst(u): return vVE + 32*u

def v_loads(g, vm, pol, units):
    for u in units:
        gam, eta = u >> 1, u & 1
        if True:
            g.A(f"s_add_u32 s{sT0}, s{sROT}, {gam}")
            g.A(f"s_and_b32 s{sT0}, s{sT0}, 1")
            g.A(f"s_lshl_b32 s{sT0}, s{sT0}, 14")
            g.A(f"s_add_u32 s{sT0}, s{sT0}, s{sKB}")
        for r in range(8):
            vm.pre()
            d = v_dst(u) + 4*r
            g.A(f"buffer_load_dwordx4 v[{d}:{d+3}], v{vVO}, s[{sV}:{sV+3}], s{sT0} offen offset:{512*r + 256*eta}{pol}")

def get_tag(g):
    g.A(f"v_readfirstlane_b32 s{sTAG}, v{vE}")
    g.A(f"s_add_u32 s{sTAG}, s{sTAG}, 0x9e3779b9")

def check_tags(g, regs, fail_label, mask=None, t=vT):
    if len(regs) == 1:
        g.A(f"v_cmp_ne_u32 vcc, s{sTAG}, v{regs[0]}")
    else:
        g.A(f"v_xor_b32 v{t}, s{sTAG}, v{regs[0]}")
        for r in regs[1:]:
            g.A(f"v_bitop3_b32 v{t}, v{t}, v{r}, s{sTAG} bitop3:0xf6")
        g.A(f"v_cmp_ne_u32 vcc, 0, v{t}")
    if mask is not None:
        g.A(f"s_and_b64 vcc, vcc, s[{mask}:{mask+1}]")
    ok = g.newlab("L_ok")
    g.A(f"s_cbranch_vccz {ok}")
    g.A(f"s_sub_u32 s{sRETRY}, s{sRETRY}, 1")
    g.A(f"s_cbranch_scc0 {fail_label}")
    g.A(f"s_mov_b32 s{sRETRY}, 0")
    g.lbl(ok)

def lds_spin(g, off, target_sreg_or_imm, lab, sleep=2):
    g.A(f"v_mov_b32 v{vT}, {L_FLAG}")
    g.lbl(lab)
    g.A(f"ds_read_b32 v{vT+1}, v{vT} offset:{off}")
    g.A("s_waitcnt lgkmcnt(0)")
    g.A(f"v_cmp_le_u32 vcc, {target_sreg_or_imm}, v{vT+1}")
    g.A(f"s_cbranch_vccnz {lab}_ok")
    if sleep: g.A(f"s_sleep {sleep}")
    g.A(f"s_branch {lab}")
    g.lbl(lab + "_ok")

def lds_inc(g, off):
    g.A(f"v_mov_b32 v{vT}, {L_FLAG}")
    g.A(f"v_mov_b32 v{vT+1}, 1")
    g.A("s_mov_b64 exec, 1")
    g.A(f"ds_add_u32 v{vT}, v{vT+1} offset:{off}")
    g.A("s_mov_b64 exec, -1")

NSTAMP = 10
def tstamp(g, idx):
    if g.o.get("tst"): stamp(g, idx, True)
def stamp(g, idx, force=False):
    if not g.o.get("stamps"): return
    if g.o.get("tst") and not force and idx in (1, 2, 3, 4): return
    g.A(f"s_memrealtime s[{sST}:{sST+1}]")
    g.A("s_waitcnt lgkmcnt(0)")
    g.A(f"s_mov_b32 s{92+idx}, s{sST}")
def flush_stamps(g, n):
    if not g.o.get("stamps"): return
    if g.o.get("dbg"):
        g.A("s_mov_b64 exec, 1")
        g.A("v_mov_b32 v15, 0")
        g.A(f"s_lshl_b32 s{sT3}, s2, 3")
        g.A(f"s_add_u32 s{sT3}, s{sT3}, s{sWAVE}")
        g.A(f"s_cmp_eq_u32 s{sT3}, 0")
        g.A("s_cbranch_scc1 L_dbg0")
        g.A(f"s_cmp_eq_u32 s{sT3}, {144*8+7}")
        g.A("s_cbranch_scc0 L_end")
        for k, i in enumerate((6, 1, 7, 2, 8, 9)):
            g.A(f"s_sub_u32 s{sT3}, s{92+i}, s92")
            g.A(f"v_mov_b32 v14, s{sT3}")
            g.A(f"global_store_dword v15, v14, s[82:83] offset:{4*k}")
            g.nop(1)
        g.A("s_branch L_end")
        g.lbl("L_dbg0")
        for k, i in enumerate((6, 7, 9, 2, 3, 4, 8)):
            g.A(f"s_sub_u32 s{sT3}, s{92+i}, s92")
            g.A(f"v_mov_b32 v14, s{sT3}")
            g.A(f"global_store_dword v15, v14, s[82:83] offset:{32+4*k}")
            g.nop(1)
        return
    g.A(f"s_lshl_b32 s{sT3}, s2, 3")
    g.A(f"s_add_u32 s{sT3}, s{sT3}, s{sWAVE}")
    g.A(f"s_lshl_b32 s{sT3}, s{sT3}, 6")
    g.A(f"s_add_u32 s{sT3}, s{sT3}, {WS_STAMP}")
    g.A("s_mov_b64 exec, 1")
    g.A("v_mov_b32 v15, 0")
    for i in range(n):
        g.A(f"v_mov_b32 v14, s{92+i}")
        g.A(f"buffer_store_dword v14, v15, s[{sWS}:{sWS+3}], s{sT3} offen offset:{4*i}")
        g.nop(1)

def sel4(g, dst, r0, r1, r2, r3, m1, m2, m3):
    g.A(f"v_cndmask_b32 v{dst}, v{r0}, v{r1}, s[{m1}:{m1+1}]")
    g.A(f"v_cndmask_b32 v{dst}, v{dst}, v{r2}, s[{m2}:{m2+1}]")
    g.A(f"v_cndmask_b32 v{dst}, v{dst}, v{r3}, s[{m3}:{m3+1}]")

def build(opt):
    g = G(opt)
    A = g.A
    polK = opt.get("polK", " nt"); polV = opt.get("polV", " nt"); polW = opt.get("polW", " nt")
    polWO = opt.get("polWO", " nt"); polP = opt.get("polP", " nt")
    W = opt.get("W", 16)
    W2 = opt.get("W2", 24)
    PRIO = opt.get("prio", 1)
    XR = opt.get("XR", 1)
    def prio(p):
        if PRIO: A(f"s_setprio {p}")
    hdr = open(f"cdna_kernels/{NAME}.s.ref").read().split("\n")
    for line in hdr:
        if line.startswith("; @launch"):
            g.L.append(f"; @launch grid=(256,1,1) block=(512,1,1) lds={L_END}")
            break
        g.L.append(line)
    g.L += ['.amdgcn_target "amdgcn-amd-amdhsa--gfx950"', ".text", f".globl {NAME}_kernel", ".p2align 8",
            f".type {NAME}_kernel,@function"]
    g.lbl(f"{NAME}_kernel")
    A("s_cmp_ge_u32 s2, 256")
    A("s_cbranch_scc1 L_end")
    A("s_load_dwordx16 s[64:79], s[0:1], 0")
    A("s_load_dwordx8 s[80:87], s[0:1], 64")
    A("s_load_dwordx2 s[90:91], s[0:1], 104")
    if opt.get("dbg"):
        A("s_memrealtime s[92:93]")
        A("s_load_dwordx2 s[74:75], s[0:1], 96") if False else None
    A(f"s_getpc_b64 s[{sST}:{sST+1}]")
    g.lbl("L_pc")
    A(f"v_lshlrev_b32 v{vT}, 5, v0")
    A(f"v_min_u32 v{vT}, L_end - L_pc - 4, v{vT}")
    A(f"global_load_dword v15, v{vT}, s[{sST}:{sST+1}]")
    prio(3)
    A(f"v_lshrrev_b32 v{vL}, 6, v0")
    A(f"s_and_b32 s{sS}, s2, 7")
    A(f"v_readfirstlane_b32 s{sWAVE}, v{vL}")
    A(f"v_and_b32 v{vL}, 63, v0")
    A(f"v_and_b32 v{vJ}, 15, v0")
    A(f"v_lshrrev_b32 v{vGR}, 4, v{vL}")
    A(f"v_lshrrev_b32 v{vKO}, 2, v{vJ}")
    A(f"v_lshlrev_b32 v{vKO}, 9, v{vKO}")
    A(f"v_lshl_add_u32 v{vKO}, v{vGR}, 6, v{vKO}")
    A(f"v_and_b32 v{vT+3}, 3, v0")
    A(f"v_lshl_add_u32 v{vKO}, v{vT+3}, 4, v{vKO}")
    A(f"v_lshlrev_b32 v{vL16}, 4, v{vL}")
    A(f"s_lshr_b32 s{sN}, s2, 3")
    A(f"s_and_b32 s{sB_}, s{sN}, 3")
    A(f"s_lshr_b32 s{sKVH}, s{sN}, 2")
    A(f"s_lshl_b32 s{sGRP}, s{sB_}, 3")
    A(f"s_add_u32 s{sGRP}, s{sGRP}, s{sKVH}")
    A(f"s_lshl_b32 s{sT0}, s{sGRP}, 21")
    A(f"s_lshl_b32 s{sT1}, s{sS}, 18")
    A(f"s_add_u32 s{sT0}, s{sT0}, s{sT1}")
    A(f"s_lshl_b32 s{sT1}, s{sWAVE}, 15")
    A(f"s_add_u32 s{sKB}, s{sT0}, s{sT1}")
    A(f"s_add_u32 s{sROT}, s{sN}, s{sWAVE}")
    A(f"s_and_b32 s{sROT}, s{sROT}, 3")
    A(f"s_mov_b32 s{sM48}, -1"); A(f"s_mov_b32 s{sM48+1}, 0x0000ffff")
    A(f"s_mov_b32 s{sROLE}, 0")
    A(f"s_mov_b32 s{sK+2}, {64<<20}")
    A(f"s_mov_b32 s{sK+3}, 0x20000")
    A(f"s_cmp_lt_u32 s{sN}, 16")
    A("s_waitcnt lgkmcnt(0)")
    A(f"s_mov_b32 s{sK}, s{P_K}")
    A(f"s_mov_b32 s{sK+1}, s{P_K+1}")
    if not opt.get("noqm"): A("s_cbranch_scc0 L_early")
    g.lbl("L_kload")
    vm = VM(g, W, 1)
    HK = opt.get('HK', 4)
    k_tile(g, vm, polK, 0, 0, HK)
    srd(g, sWS, P_WS, WS_SIZE)
    A(f"v_mov_b32 v{vT}, 0")
    A(f"buffer_load_dword v{vE}, v{vT}, s[{sWS}:{sWS+3}], 0 offen sc1")
    vm.n += 1
    if opt.get("stamps"):
        for i in range(1 if opt.get("dbg") else 0, NSTAMP): A(f"s_mov_b32 s{92+i}, 0")
    if opt.get("dbg"):
        A("s_load_dwordx2 s[82:83], s[0:1], 96")
        A("s_waitcnt lgkmcnt(0)")
    else:
        stamp(g, 0)
    srd(g, sV, P_V, 64 << 20)
    A(f"v_lshlrev_b32 v{vVO}, 12, v{vGR}")
    A(f"v_lshl_add_u32 v{vVO}, v{vJ}, 4, v{vVO}")
    A(f"s_mov_b32 s{sRETRY}, 0x40000")
    A(f"s_mov_b32 s{sM1}, 0xffff0000"); A(f"s_mov_b32 s{sM1+1}, 0")
    A(f"s_mov_b32 s{sM2}, 0"); A(f"s_mov_b32 s{sM2+1}, 0xffff")
    A(f"s_mov_b32 s{sM3}, 0"); A(f"s_mov_b32 s{sM3+1}, 0xffff0000")
    A(f"s_mov_b32 s{sQ1}, 0x22222222"); A(f"s_mov_b32 s{sQ1+1}, 0x22222222")
    A(f"s_mov_b32 s{sQ2}, 0x44444444"); A(f"s_mov_b32 s{sQ2+1}, 0x44444444")
    A(f"s_mov_b32 s{sQ3}, 0x88888888"); A(f"s_mov_b32 s{sQ3+1}, 0x88888888")
    A(f"s_mov_b32 s{sR8}, 0xff00ff00"); A(f"s_mov_b32 s{sR8+1}, 0xff00ff00")
    A(f"s_mov_b32 s{sPLO}, 0x05040100"); A(f"s_mov_b32 s{sPHI}, 0x07060302")
    A(f"s_mov_b32 s{sC}, {f2u(0.0625*LOG2E):#x}")
    A(f"s_mov_b32 s{sHI}, 0xffff0000")
    A(f"s_mov_b32 s{sSV}, 0")
    A(f"s_sub_u32 s{sRED}, s2, 144")
    A(f"s_cselect_b32 s{sRED}, 0xffff, s{sRED}")
    A(f"s_cmp_lg_u32 s{sROLE}, 0")
    A("s_cbranch_scc1 L_hook")
    A(f"s_cmp_lt_u32 s{sN}, 16")
    A("s_cbranch_scc0 L_k1")
    A(f"s_lshr_b32 s{sT1}, s{sS}, 1")
    A(f"s_and_b32 s{sT2}, s{sS}, 1")
    A(f"s_lshl_b32 s{sT2}, s{sT2}, 2")
    A(f"s_add_u32 s{sT1}, s{sT1}, s{sT2}")
    A(f"s_bfe_u32 s{sT3}, s{sN}, 0x20001")
    A(f"s_lshl_b32 s{sT3}, s{sT3}, 3")
    A(f"s_add_u32 s{sT1}, s{sT1}, s{sT3}")
    A(f"s_lshl_b32 s{sIDX}, s{sT1}, 1")
    A(f"s_and_b32 s{sT2}, s{sN}, 1")
    A(f"s_add_u32 s{sIDX}, s{sIDX}, s{sT2}")
    A(f"s_cmp_lt_u32 s{sN}, 8")
    A(f"s_cselect_b32 s{sROLE}, 2, {8 if opt.get('PL', 0) else 0}")
    A(f"s_cmp_lt_u32 s{sT1}, 28")
    A(f"s_cselect_b32 s{sROLE}, s{sROLE}, 0")
    g.lbl("L_k1")
    k_tile(g, vm, polK, 0, HK, 8)
    def svpoll():
        for i, (va, off) in enumerate(((vL16, 0), (13, 0), (vL16, 1792), (13, 1792))):
            A(f"buffer_load_dwordx4 v[{32+4*i}:{35+4*i}], v{va}, s[{sWS}:{sWS+3}], s{sXO} offen offset:{off} sc1")
    def with_poll(name, body):
        A(f"s_cmp_eq_u32 s{sSV}, 0")
        A(f"s_cbranch_scc1 L_a{name}")
        svpoll()
        g.lbl(f"L_a{name}")
        body()
        A(f"s_cmp_eq_u32 s{sSV}, 0")
        A(f"s_cbranch_scc1 L_b{name}")
        A("s_waitcnt vmcnt(8)")
        tags_ab(g, [35, 43], [39, 47])
        A(f"s_cbranch_vccnz L_b{name}")
        A(f"s_call_b64 s[{sRET}:{sRET+1}], L_svc")
        g.lbl(f"L_b{name}")
    P0 = opt.get("P0", 2)
    for t in range(1, 4):
        if t >= P0: with_poll(f"k{t}", lambda: k_tile(g, vm, polK, t))
        else: k_tile(g, vm, polK, t)
    get_tag(g)
    A(f"s_cmp_lg_u32 s{sSV}, 0")
    A("s_cbranch_scc1 L_keep3")
    prio(2)
    g.lbl("L_keep3")
    with_poll("u0", lambda: v_loads(g, VM(g, W, W), polV, [0]))
    def qloads():
        for i in range(2):
            A(f"buffer_load_dwordx4 v[{16+4*i}:{19+4*i}], v{vL16}, s[{sWS}:{sWS+3}], s{sPX} offen offset:{1024*i} sc1")
    A(f"s_lshl_b32 s{sT1}, s{sB_}, 14")
    A(f"s_lshl_b32 s{sT2}, s{sKVH}, 11")
    A(f"s_add_u32 s{sT1}, s{sT1}, s{sT2}")
    A(f"s_add_u32 s{sPX}, s{sT1}, {WS_Q}")
    A(f"s_cmp_lg_u32 s{sSV}, 0")
    A("s_cbranch_scc1 L_noq")
    qloads()
    g.lbl("L_noq")
    with_poll("u1", lambda: v_loads(g, VM(g, W, W), polV, [1]))
    A(f"s_cmp_eq_u32 s{sSV}, 0")
    A("s_cbranch_scc1 L_kdone")
    g.lbl("L_hpoll")
    svpoll()
    A("s_waitcnt vmcnt(0)")
    tags_ab(g, [35, 43], [39, 47])
    retry_branch(g, "L_hpoll")
    A(f"s_call_b64 s[{sRET}:{sRET+1}], L_svc")
    g.lbl("L_kdone")
    prio(1)
    WOL = 0
    def wo_dma(vmx):
        srd(g, sB, P_WO, 4096*896)
        A(f"s_lshr_b32 s{sT2}, s{sWAVE}, 2")
        A(f"s_lshl_b32 s{sT0}, s{sKVH}, 1")
        A(f"s_add_u32 s{sT0}, s{sT0}, s{sT2}")
        A(f"s_lshl_b32 s{sT0}, s{sT0}, 8")
        A(f"s_lshl_b32 s{sT2}, s{sS}, 5")
        A(f"s_add_u32 s{sT0}, s{sT0}, s{sT2}")
        A(f"s_mul_i32 s{sSTART}, s{sT0}, 896")
        A(f"s_and_b32 s{sT1}, s{sWAVE}, 3")
        A(f"s_mul_i32 s{sT1}, s{sT1}, 7168")
        A(f"s_add_u32 s{sSTART}, s{sSTART}, s{sT1}")
        A(f"s_mul_i32 s{sLDS}, s{sWAVE}, 7168")
        A(f"s_mov_b32 s{sSTEP}, 1024")
        A(f"v_mov_b32 v{vDM}, v{vL16}")
        dma7(g, polWO, vmx, sB)
    LW = opt.get("LW", 2)
    if LW:
        A(f"s_and_b32 s{sT0}, s{sROLE}, 7")
        A("s_cbranch_scc1 L_md2")
    wo_dma(VM(g, W, W))
    if not LW:
        A(f"s_cmp_eq_u32 s{sROLE}, 2")
        A("s_cbranch_scc1 L_md2")
    g.lbl("L_ld_done")
    A(f"s_waitcnt vmcnt(15)")
    A("s_branch L_qchk")
    g.lbl("L_qpoll")
    qloads()
    A("s_waitcnt vmcnt(0)")
    g.lbl("L_qchk")
    if not opt.get("noqm"): check_tags(g, [19, 23], "L_qpoll")
    stamp(g, 3)
    A(f"v_lshlrev_b32 v{vT+2}, 3, v{vL}")
    A(f"v_add_u32 v{vT+2}, {L_Q}, v{vT+2}")
    A(f"ds_write_b64 v{vT+2}, v[16:17]")
    A(f"ds_write_b64 v{vT+2}, v[20:21] offset:512")
    A(f"v_bfe_u32 v{vT}, v{vJ}, 2, 1")
    A(f"v_lshlrev_b32 v{vT}, 9, v{vT}")
    A(f"v_lshl_add_u32 v{vT}, v{vGR}, 6, v{vT}")
    A(f"v_and_b32 v{vT+1}, 3, v{vL}")
    A(f"v_lshl_add_u32 v{vT}, v{vT+1}, 4, v{vT}")
    A(f"v_add_u32 v{vT}, {L_Q}, v{vT}")
    QL, QH = 48, 56
    A(f"ds_read_b128 v[{QL}:{QL+3}], v{vT}")
    A(f"ds_read_b128 v[{QL+4}:{QL+7}], v{vT} offset:256")
    A(f"s_waitcnt lgkmcnt(0)")
    for i in range(8):
        A(f"v_cndmask_b32 v{QH+i}, 0, v{QL+i}, s[{sR8}:{sR8+1}]")
    for i in range(8):
        A(f"v_cndmask_b32 v{QL+i}, v{QL+i}, 0, s[{sR8}:{sR8+1}]")
    g.nop(2)
    SD = 16
    for t in range(4):
        for jj in range(8):
            kq, blk = jj >> 1, jj & 1
            d = SD + 4*(2*t + (kq >> 1))
            q = (QH if (kq & 1) else QL) + 4*blk
            r = vK + 32*t + 4*jj
            c = "0" if (jj & 3) == 0 else f"v[{d}:{d+3}]"
            A(f"v_mfma_f32_16x16x32_bf16 v[{d}:{d+3}], v[{q}:{q+3}], v[{r}:{r+3}], {c}")
    prio(0)
    A(f"s_cmp_lt_u32 s{sRED}, 112")
    A("s_cbranch_scc1 L_parR")
    A(f"s_cmp_eq_u32 s{sROLE}, 2")
    A("s_cbranch_scc1 L_parF")
    g.lbl("L_par_done")
    v_loads(g, VM(g, W2, W2), polV, [2])
    for d in range(8):
        D = SD + 4*d
        sel4(g, D, D, D+1, D+2, D+3, sQ1, sQ2, sQ3)
    for pat in ("quad_perm:[1,0,3,2]", "quad_perm:[2,3,0,1]"):
        for d in range(8):
            D = SD + 4*d
            A(f"v_add_f32 v{D}, v{D}, v{D} {pat} {DPP}")
    S0, S1 = 10, 11
    sel4(g, S0, SD, SD+4, SD+8, SD+12, sQ1, sQ2, sQ3)
    sel4(g, S1, SD+16, SD+20, SD+24, SD+28, sQ1, sQ2, sQ3)
    rnd2(g, S0, S1, vT)
    A(f"v_max_f32 v{vSC}, v{S0}, v{S1}")
    wave_reduce(g, "v_max_f32", [vSC], [17], swaps=("v_permlane32_swap_b32",))
    A(f"v_sub_f32 v{S0}, v{S0}, v{vSC}")
    A(f"v_sub_f32 v{S1}, v{S1}, v{vSC}")
    A(f"v_mul_f32 v{S0}, s{sC}, v{S0}")
    A(f"v_mul_f32 v{S1}, s{sC}, v{S1}")
    A(f"v_exp_f32 v{S0}, v{S0}")
    A(f"v_exp_f32 v{S1}, v{S1}")
    A(f"v_and_b32 v12, 1, v{vGR}")
    A(f"v_bfe_u32 v28, v{vL}, 1, 1")
    A(f"v_add_u32 v28, s{sROT}, v28")
    A(f"v_add_u32 v29, 2, v28")
    A(f"v_and_b32 v28, 3, v28")
    A(f"v_and_b32 v29, 3, v29")
    A(f"v_and_b32 v30, 1, v{vL}")
    A(f"v_lshlrev_b32 v30, 3, v30")
    A(f"v_lshrrev_b32 v31, 1, v{vGR}")
    A(f"v_lshl_add_u32 v30, v31, 2, v30")
    A(f"v_lshrrev_b32 v31, 2, v{vJ}")
    A(f"v_add_u32 v30, v30, v31")
    A(f"v_lshlrev_b32 v30, 1, v30")
    A(f"v_lshl_add_u32 v30, v12, 7, v30")
    A(f"s_lshl_b32 s{sT1}, s{sWAVE}, 8")
    A(f"s_add_u32 s{sT1}, s{sT1}, {L_P}")
    A(f"v_add_u32 v30, s{sT1}, v30")
    A(f"v_lshl_add_u32 v28, v28, 5, v30")
    A(f"v_lshl_add_u32 v29, v29, 5, v30")
    A(f"v_cvt_pk_bf16_f32 v20, v{S0}, v{S1}")
    A(f"v_add_f32 v16, v{S0}, v{S1}")
    A(f"ds_write_b16 v28, v20")
    A(f"ds_write_b16_d16_hi v29, v20")
    A(f"v_and_b32 v{vT}, 1, v{vL}")
    A(f"v_lshlrev_b32 v{vT}, 7, v{vT}")
    A(f"v_lshl_add_u32 v{vT}, v{vGR}, 4, v{vT}")
    A(f"s_and_b32 s{sT0}, s{sROT}, 1")
    A(f"s_lshl_b32 s{sT0}, s{sT0}, 6")
    A(f"s_add_u32 s{sT2}, s{sT1}, s{sT0}")
    A(f"s_xor_b32 s{sT0}, s{sT0}, 64")
    A(f"s_add_u32 s{sT3}, s{sT1}, s{sT0}")
    A(f"v_add_u32 v18, s{sT2}, v{vT}")
    A(f"v_add_u32 v19, s{sT3}, v{vT}")
    PF = 48
    A(f"ds_read_b128 v[{PF}:{PF+3}], v18")
    A(f"ds_read_b128 v[{PF+4}:{PF+7}], v19")
    wave_reduce(g, "v_add_f32", [16], [17], swaps=("v_permlane32_swap_b32",))
    A(f"v_lshlrev_b32 v13, 5, v12")
    A(f"v_add_u32 v13, {L_RED}, v13")
    A(f"s_lshl_b32 s{sT0}, s{sWAVE}, 2")
    A(f"v_add_u32 v14, s{sT0}, v13")
    A(f"ds_write_b32 v14, v{vSC}")
    A(f"ds_write_b32 v14, v16 offset:64")
    A(f"v_mov_b32 v17, {L_FLAG}")
    A(f"v_mov_b32 v18, 0")
    A(f"ds_write_b32 v17, v18")
    A(f"v_lshlrev_b32 v{vOLW}, 10, v12")
    A(f"v_lshl_add_u32 v{vOLW}, v{vJ}, 5, v{vOLW}")
    A(f"v_lshrrev_b32 v12, 1, v{vGR}")
    A(f"v_lshl_add_u32 v{vOLW}, v12, 4, v{vOLW}")
    A(f"s_lshl_b32 s{sT1}, s{sWAVE}, 11")
    A(f"s_add_u32 s{sT1}, s{sT1}, {L_OL}")
    A(f"v_add_u32 v{vOLW}, s{sT1}, v{vOLW}")
    A(f"s_lshl_b32 s{sT0}, s{sWAVE}, 8")
    A(f"s_add_u32 s{sT0}, s{sT0}, {L_OL}")
    A(f"v_lshl_add_u32 v{vOLR}, v{vL}, 3, s{sT0}")
    A(f"s_lshl_b32 s{sO_IN}, s{sGRP}, 15")
    A(f"s_add_u32 s{sO_IN}, s{sO_IN}, {WS_O}")
    A(f"s_and_b32 s{sT1}, s{sWAVE}, 3")
    A(f"s_lshl_b32 s{sT1}, s{sT1}, 13")
    A(f"s_add_u32 s{sO_DST}, s{sO_IN}, s{sT1}")
    A(f"s_lshl_b32 s{sT1}, s{sS}, 9")
    A(f"s_add_u32 s{sO_DST}, s{sO_DST}, s{sT1}")
    A(f"s_lshr_b32 s{sT1}, s{sWAVE}, 2")
    A(f"s_lshl_b32 s{sT1}, s{sT1}, 8")
    A(f"s_add_u32 s{sO_DST}, s{sO_DST}, s{sT1}")
    A(f"s_lshl_b32 s{sT1}, s{sS}, 12")
    A(f"s_add_u32 s{sO_IN}, s{sO_IN}, s{sT1}")
    A(f"s_mul_i32 s{sT0}, s{sB_}, 28")
    A(f"s_lshl_b32 s{sT1}, s{sWAVE}, 2")
    A(f"s_add_u32 s{sT0}, s{sT0}, s{sT1}")
    A(f"s_lshl_b32 s{sT0}, s{sT0}, 6")
    A(f"s_lshl_b32 s{sT1}, s{sKVH}, 3")
    A(f"s_add_u32 s{sT0}, s{sT0}, s{sT1}")
    A(f"s_add_u32 s{sT0}, s{sT0}, s{sS}")
    A(f"s_lshl_b32 s{sT0}, s{sT0}, 7")
    A(f"s_add_u32 s{sY_DST}, s{sT0}, {WS_Y}")
    A(f"v_lshlrev_b32 v{vYO}, 13, v{vGR}")
    A(f"v_lshl_add_u32 v{vYO}, v{vJ}, 4, v{vYO}")
    A(f"v_lshlrev_b32 v{vOBA}, 4, v{vGR}")
    A(f"v_add_u32 v{vOBA}, {L_OB}, v{vOBA}")
    A("s_waitcnt lgkmcnt(0)")
    ACCB = (16, 192)
    PT = 224
    def pv(u):
        gam, eta = u >> 1, u & 1
        NW = 7 if WOL == 1 else 0
        if WOL == 2 and u == 3:
            A(f"s_cmp_lt_u32 s{sWAVE}, 4")
            A("s_cbranch_scc1 L_wo2")
            A("s_waitcnt vmcnt(0)")
            g.lbl("L_wo2_ret")
        else:
            A(f"s_waitcnt vmcnt({(8, 8, 8+NW, NW)[u]})")
        R = v_dst(u)
        for c in range(4):
            T = PT + 8*(c & 1)
            for m in range(4):
                A(f"v_perm_b32 v{T+m}, v{R+4*(2*m+1)+c}, v{R+4*(2*m)+c}, s{sPLO}")
            for m in range(4):
                A(f"v_perm_b32 v{T+4+m}, v{R+4*(2*m+1)+c}, v{R+4*(2*m)+c}, s{sPHI}")
            g.nop(1)
            for hh in range(2):
                acc = ACCB[eta] + 4*(2*c + hh)
                cc = "0" if gam == 0 else f"v[{acc}:{acc+3}]"
                A(f"v_mfma_f32_16x16x32_bf16 v[{acc}:{acc+3}], v[{PF+4*gam}:{PF+4*gam+3}], v[{T+4*hh}:{T+4*hh+3}], {cc}")
    pv(0); pv(1)
    v_loads(g, VM(g, W2, W2), polV, [3])
    if WOL == 1: wo_dma(VM(g, 0))
    A("s_barrier")
    if LW == 2:
        A(f"s_cmp_lg_u32 s{sROLE}, 0")
        A(f"s_cselect_b32 s{sSV}, 4, 0")
    stamp(g, 4)
    for i in range(4):
        A(f"ds_read_b128 v[{64+4*i}:{67+4*i}], v13 offset:{(0,16,64,80)[i]}")
    A("s_waitcnt lgkmcnt(2)")
    A(f"v_max3_f32 v80, v64, v65, v66")
    A(f"v_max3_f32 v81, v67, v68, v69")
    A(f"v_max3_f32 v80, v80, v70, v71")
    A(f"v_max_f32 v80, v80, v81")
    for i in range(8): A(f"v_sub_f32 v{64+i}, v{64+i}, v80")
    A(f"v_sub_f32 v{vSC}, v{vSC}, v80")
    for i in range(8): A(f"v_mul_f32 v{64+i}, s{sC}, v{64+i}")
    A(f"v_mul_f32 v{vSC}, s{sC}, v{vSC}")
    for i in range(8): A(f"v_exp_f32 v{64+i}, v{64+i}")
    A(f"v_exp_f32 v{vSC}, v{vSC}")
    A("s_waitcnt lgkmcnt(0)")
    A(f"v_mul_f32 v81, v64, v72")
    for i in range(1, 8): A(f"v_fmac_f32 v81, v{64+i}, v{72+i}")
    A(f"v_rcp_f32 v82, v81")
    A(f"v_log_f32 v83, v81")
    PUB = 84
    A(f"v_mov_b32 v{PUB+3}, s{sTAG}")
    A(f"v_mul_f32 v{vSC}, v{vSC}, v82")
    A(f"v_fma_f32 v83, v80, s{sC}, v83")
    A(f"s_lshr_b32 s{sT0}, s{sWAVE}, 2")
    A(f"s_lshl_b32 s{sT0}, s{sT0}, 4")
    A(f"v_readlane_b32 s{sT0}, v83, s{sT0}")
    g.nop(2)
    A(f"v_mov_b32 v{PUB+2}, s{sT0}")
    def outsel(eta, OUT):
        B = ACCB[eta]
        for i in range(4):
            A(f"v_cndmask_b32 v{OUT+i}, v{B+4*i}, v{B+4*i+1}, s[{sM1}:{sM1+1}]")
        g.nop(3)
        for i in range(4):
            A(f"v_cndmask_b32 v{OUT+i}, v{OUT+i}, v{B+4*(4+i)}, s[{sM2}:{sM2+1}]")
        for i in range(4):
            A(f"v_cndmask_b32 v{OUT+i}, v{OUT+i}, v{B+4*(4+i)+1}, s[{sM3}:{sM3+1}]")
        for i in range(4):
            A(f"v_mul_f32 v{OUT+i}, v{OUT+i}, v{vSC}")
        A(f"ds_write_b128 v{vOLW}, v[{OUT}:{OUT+3}] offset:{512*eta}")
    pv(2); outsel(0, 88)
    pv(3)
    stamp(g, 5)
    outsel(1, 92)
    if LW == 2:
        A(f"s_cmp_lt_u32 s{sWAVE}, s{sSV}")
        A("s_cbranch_scc1 L_wo2")
        g.lbl("L_wo2_ret")
    A("s_waitcnt lgkmcnt(0)")
    A("s_barrier")
    for w in range(8):
        A(f"ds_read_b64 v[{16+2*w}:{17+2*w}], v{vOLR} offset:{2048*w}")
    A("s_mov_b32 exec_hi, 0")
    A("s_waitcnt lgkmcnt(6)")
    A(f"v_pk_add_f32 v[16:17], v[16:17], v[18:19]")
    A("s_waitcnt lgkmcnt(4)")
    A(f"v_pk_add_f32 v[20:21], v[20:21], v[22:23]")
    A("s_waitcnt lgkmcnt(2)")
    A(f"v_pk_add_f32 v[24:25], v[24:25], v[26:27]")
    A(f"v_pk_add_f32 v[16:17], v[16:17], v[20:21]")
    A("s_waitcnt lgkmcnt(0)")
    A(f"v_pk_add_f32 v[28:29], v[28:29], v[30:31]")
    A(f"v_pk_add_f32 v[24:25], v[24:25], v[28:29]")
    A(f"v_pk_add_f32 v[{PUB}:{PUB+1}], v[16:17], v[24:25]")
    A(f"buffer_store_dwordx4 v[{PUB}:{PUB+3}], v{vVO}, s[{sWS}:{sWS+3}], s{sO_DST} offen sc1")
    A("s_mov_b64 exec, -1")
    stamp(g, 6)
    if opt.get("notail"): A("s_branch L_fin")
    if LW == 1:
        A(f"s_cmp_eq_u32 s{sROLE}, 0")
        A("s_cbranch_scc1 L_wo_ok")
        wo_dma(VM(g, 0))
        A("s_waitcnt vmcnt(0)")
        A("s_barrier")
        g.lbl("L_wo_ok")
    A(f"s_cmp_eq_u32 s{sWAVE}, 7")
    A("s_cbranch_scc1 L_w7")
    if LW == 2:
        A(f"s_and_b32 s{sT0}, s{sROLE}, 7")
        A("s_cbranch_scc0 L_wo_ok")
        A(f"s_cmp_lt_u32 s{sWAVE}, 4")
        A("s_cbranch_scc0 L_wo_w")
        A("s_waitcnt vmcnt(0)")
        lds_inc(g, 0)
        g.lbl("L_wo_w")
        lds_spin(g, 0, 4, "L_wospin", sleep=0)
        g.lbl("L_wo_ok")

    WB = 128
    A(f"v_lshrrev_b32 v{vT}, 2, v{vJ}")
    A(f"v_lshl_add_u32 v{vT}, v{vGR}, 3, v{vT}")
    A(f"v_mul_u32_u24 v{vT}, 896, v{vT}")
    A(f"v_and_b32 v12, 3, v{vL}")
    A(f"v_lshl_add_u32 v{vT}, v12, 5, v{vT}")
    A(f"s_lshl_b32 s{sT0}, s{sWAVE}, 7")
    A(f"v_add_u32 v13, s{sT0}, v{vT}")
    for t in range(4):
        for ks in range(2):
            r = WB + 8*t + 4*ks
            A(f"ds_read_b64_tr_b16 v[{r}:{r+1}], v13 offset:{L_WO + ks*28672 + t*8}")
            A(f"ds_read_b64_tr_b16 v[{r+2}:{r+3}], v13 offset:{L_WO + ks*28672 + t*8 + 3584}")
        if t == 1: A("s_waitcnt lgkmcnt(0)")
    A(f"v_mov_b32 v43, s{sTAG}")
    A(f"v_mov_b32 v42, 0")
    A(f"s_mov_b32 vcc_lo, 0xaaaaaaaa"); A(f"s_mov_b32 vcc_hi, 0xaaaaaaaa")
    A(f"s_mov_b32 s{sK}, 0x0c0c0c0c"); A(f"s_mov_b32 s{sK+1}, 0x0c0c0c0c")
    A(f"s_mov_b32 s{sV}, 0x30303030"); A(f"s_mov_b32 s{sV+1}, 0x30303030")
    A(f"s_mov_b32 s{sB}, 0xc0c0c0c0"); A(f"s_mov_b32 s{sB+1}, 0xc0c0c0c0")
    A("s_waitcnt lgkmcnt(0)")
    A("s_barrier")
    A(f"ds_read_b128 v[16:19], v{vOBA}")
    A(f"ds_read_b128 v[20:23], v{vOBA} offset:64")
    A("s_waitcnt lgkmcnt(1)")
    for t in range(4):
        A(f"v_mfma_f32_16x16x32_bf16 v[{24+4*t}:{27+4*t}], v[{WB+8*t}:{WB+8*t+3}], v[16:19], 0")
    A("s_waitcnt lgkmcnt(0)")
    for t in range(4):
        A(f"v_mfma_f32_16x16x32_bf16 v[{24+4*t}:{27+4*t}], v[{WB+8*t+4}:{WB+8*t+7}], v[20:23], v[{24+4*t}:{27+4*t}]")
    A(f"s_mov_b32 exec_lo, 0x00ff00ff")
    A(f"s_mov_b32 exec_hi, 0x00ff00ff")
    g.nop(3)
    A(f"v_cndmask_b32 v40, v24, v26, vcc")
    A(f"v_cndmask_b32 v41, v25, v27, vcc")
    for t, m in ((1, sK), (2, sV), (3, sB)):
        A(f"v_cndmask_b32 v44, v{24+4*t}, v{26+4*t}, vcc")
        A(f"v_cndmask_b32 v45, v{25+4*t}, v{27+4*t}, vcc")
        A(f"v_cndmask_b32 v40, v40, v44, s[{m}:{m+1}]")
        A(f"v_cndmask_b32 v41, v41, v45, s[{m}:{m+1}]")
    A(f"buffer_store_dwordx4 v[40:43], v{vYO}, s[{sWS}:{sWS+3}], s{sY_DST} offen sc1")
    A("s_mov_b64 exec, -1")
    stamp(g, 7)
    A(f"s_cmp_lt_u32 s{sRED}, 112")
    A("s_cbranch_scc1 L_red")
    A(f"s_cmp_eq_u32 s{sROLE}, 2")
    A("s_cbranch_scc0 L_fin")
    A(f"v_add_u32 v126, {L_WD}, v13")
    g.lbl("L_ffn")
    A(f"v_and_b32 v12, 3, v{vL}")
    A(f"s_cmp_lt_u32 s{sWAVE}, 4")
    A("s_cbranch_scc0 L_ffn_dn")
    srd(g, sA, P_WG, 448*3584)
    A(f"s_mul_i32 s{sSTART}, s{sWAVE}, {112*3584}")
    A(f"s_lshl_b32 s{sT1}, s{sIDX}, 6")
    A(f"s_add_u32 s{sSTART}, s{sSTART}, s{sT1}")
    A(f"s_mov_b32 s{sSTEP}, {16*3584}")
    A(f"s_mul_i32 s{sLDS}, s{sWAVE}, 7168")
    A(f"s_add_u32 s{sLDS}, s{sLDS}, {L_WG}")
    A(f"v_lshrrev_b32 v{vDM}, 2, v{vL}")
    A(f"v_mul_u32_u24 v{vDM}, 3584, v{vDM}")
    A(f"v_lshl_add_u32 v{vDM}, v12, 4, v{vDM}")
    A("s_branch L_ffn_go")
    g.lbl("L_ffn_dn")
    srd(g, sA, P_WD, 1792*896)
    A(f"s_and_b32 s{sT1}, s{sWAVE}, 3")
    A(f"s_mul_i32 s{sSTART}, s{sIDX}, 28672")
    A(f"s_mul_i32 s{sLDS}, s{sT1}, 7168")
    A(f"s_add_u32 s{sSTART}, s{sSTART}, s{sLDS}")
    A(f"s_add_u32 s{sLDS}, s{sLDS}, {L_WD}")
    A(f"s_mov_b32 s{sSTEP}, 1024")
    A(f"v_mov_b32 v{vDM}, v{vL16}")
    g.lbl("L_ffn_go")
    dma7(g, polW, VM(g, 0))
    A("s_branch L_mchk")
    g.lbl("L_mretry")
    for i in range(2):
        A(f"buffer_load_dwordx4 v[{vPAR+4*i}:{vPAR+4*i+3}], v{vPA1}, s[{sWS}:{sWS+3}], s{sXO} offen offset:{1792*i} sc1")
    A("s_waitcnt vmcnt(0)")
    g.lbl("L_mchk")
    check_tags(g, [vPAR+3, vPAR+7], "L_mretry", mask=sMH)
    OC, SH = 112, 116
    for i in range(2):
        unpack(g, vPAR+i, SH+2*i, SH+2*i+1)
        unpack(g, vPAR+4+i, OC+2*i, OC+2*i+1)
    for i in range(4): A(f"v_add_f32 v{OC+i}, 1.0, v{OC+i}")
    for i in range(0, 4, 2): rnd2(g, OC+i, OC+i+1, vT)
    vHW, vAF, vGW, vGR_, vZO, vXB = 120, 121, 122, 123, 124, 125
    A(f"s_and_b32 s{sT1}, s{sWAVE}, 3")
    A(f"s_mul_i32 s{sT0}, s{sT1}, 896")
    A(f"s_lshl_b32 s{sXO}, s{sT0}, 1")
    A(f"s_add_u32 s{sXO}, s{sXO}, {WS_X1}")
    if XR:
        A(f"s_lshl_b32 s{sT2}, s{sS}, 13")
        A(f"s_add_u32 s{sXO}, s{sXO}, s{sT2}")
    A(f"s_lshr_b32 s{sT2}, s{sWAVE}, 2")
    A(f"s_lshl_b32 s{sT2}, s{sT2}, 9")
    A(f"s_add_u32 s{sT0}, s{sT0}, s{sT2}")
    A(f"s_add_u32 s{sT0}, s{sT0}, {L_A}")
    A(f"v_lshl_add_u32 v{vHW}, v{vL}, 3, s{sT0}")
    A(f"v_mul_u32_u24 v{vAF}, 896, v12")
    A(f"v_lshl_add_u32 v{vAF}, v{vGR}, 4, v{vAF}")
    A(f"v_add_u32 v{vAF}, {L_A}, v{vAF}")
    A(f"s_lshl_b32 s{sT1}, s{sT1}, 4")
    A(f"s_add_u32 s{sT0}, s{sT1}, {L_G}")
    A(f"v_lshlrev_b32 v{vGW}, 6, v{vGR}")
    A(f"v_lshl_add_u32 v{vGW}, v{vJ}, 1, v{vGW}")
    A(f"v_add_u32 v{vGW}, s{sT0}, v{vGW}")
    A(f"v_lshrrev_b32 v{vT}, 2, v{vJ}")
    A(f"v_lshlrev_b32 v{vGR_}, 6, v{vT}")
    A(f"v_lshl_add_u32 v{vGR_}, v{vGR}, 4, v{vGR_}")
    A(f"v_add_u32 v{vGR_}, {L_G}, v{vGR_}")
    A(f"v_mul_u32_u24 v{vZO}, 28, v{vT}")
    A(f"v_add_u32 v{vZO}, v{vZO}, v{vGR}")
    A(f"v_mul_u32_u24 v{vZO}, 3584, v{vZO}")
    A(f"v_lshl_add_u32 v{vZO}, v12, 4, v{vZO}")
    A(f"s_mul_i32 s{sY_DST}, s{sWAVE}, {4*3584}")
    A(f"s_lshl_b32 s{sT0}, s{sIDX}, 6")
    A(f"s_add_u32 s{sY_DST}, s{sY_DST}, s{sT0}")
    A(f"s_add_u32 s{sY_DST}, s{sY_DST}, {WS_Z}")
    A(f"v_add_u32 v{vXB}, 1024, v{vL16}")
    A(f"v_mov_b32 v{vT}, {WS_SIZE}")
    A(f"v_cndmask_b32 v{vXB}, v{vT}, v{vXB}, s[{sM48}:{sM48+1}]")
    A(f"s_cmp_ge_u32 s{sWAVE}, 4")
    A(f"s_cselect_b64 s[{sR8}:{sR8+1}], -1, 0")
    A(f"v_lshrrev_b32 v13, 2, v{vJ}")
    A(f"v_lshl_add_u32 v13, v{vGR}, 3, v13")
    A(f"v_lshlrev_b32 v13, 6, v13")
    A(f"v_and_b32 v14, 1, v{vL}")
    A(f"v_lshl_add_u32 v13, v14, 3, v13")
    A(f"v_bfe_u32 v14, v{vL}, 1, 1")
    A(f"v_mul_u32_u24 v14, 28672, v14")
    A(f"v_add_u32 v13, v13, v14")
    A(f"s_add_u32 s{sT1}, s{sT1}, {L_WG}")
    A(f"v_add_u32 v13, s{sT1}, v13")
    A("s_waitcnt vmcnt(0) lgkmcnt(0)")
    A("s_barrier")
    stamp(g, 9)
    def x1loads():
        A(f"buffer_load_dwordx4 v[16:19], v{vL16}, s[{sWS}:{sWS+3}], s{sXO} offen sc1")
        A(f"buffer_load_dwordx4 v[20:23], v{vXB}, s[{sWS}:{sWS+3}], s{sXO} offen sc1")
    A(f"s_cmp_eq_u32 s{sWAVE}, 7")
    A("s_cbranch_scc1 L_x1poll")
    x1loads()
    for t in range(4):
        A(f"ds_read_b64_tr_b16 v[{96+4*t}:{97+4*t}], v126 offset:{t*8}")
        A(f"ds_read_b64_tr_b16 v[{98+4*t}:{99+4*t}], v126 offset:{t*8+3584}")
    A(f"s_cmp_lt_u32 s{sWAVE}, 4")
    A("s_cbranch_scc0 L_x1wait")
    A("s_waitcnt lgkmcnt(6)")
    for ks in range(14):
        r = 128 + 4*ks
        A(f"ds_read_b64_tr_b16 v[{r}:{r+1}], v13 offset:{ks*2048}")
        A(f"ds_read_b64_tr_b16 v[{r+2}:{r+3}], v13 offset:{ks*2048+256}")
        if ks % 4 == 3: A("s_waitcnt lgkmcnt(6)")
    A("s_branch L_x1wait")
    g.lbl("L_x1poll")
    x1loads()
    g.lbl("L_x1wait")
    A("s_waitcnt vmcnt(0)")
    tags_ab(g, [19], [23])
    retry_branch(g, "L_x1poll")
    tstamp(g, 2)
    for i, r in enumerate((16, 17, 20, 21)):
        unpack(g, r, 24+2*i, 25+2*i)
    E = 44
    layernorm(g, 24, 32, E, 4, presel=[f"v_cndmask_b32 v{E+i}, v{24+i}, v{28+i}, s[{sR8}:{sR8+1}]" for i in range(4)])
    rnd2(g, E, E+1, vT); rnd2(g, E+2, E+3, vT)
    modulate_pack(g, E, OC, SH, E, vT, 4)
    A(f"s_mov_b64 exec, s[{sMH}:{sMH+1}]")
    A(f"ds_write_b64 v{vHW}, v[{E}:{E+1}]")
    A("s_mov_b64 exec, -1")
    A("s_waitcnt lgkmcnt(0)")
    A("s_barrier")
    tstamp(g, 3)
    A(f"s_cmp_lt_u32 s{sWAVE}, 4")
    A("s_cbranch_scc0 L_ffn_d")
    for ks in range(14):
        A(f"ds_read_b128 v[{192+4*ks}:{195+4*ks}], v{vAF} offset:{64*ks}")
    for ks in range(14):
        A(f"s_waitcnt lgkmcnt({13-ks})")
        c = "0" if ks == 0 else "v[16:19]"
        A(f"v_mfma_f32_16x16x32_bf16 v[16:19], v[{192+4*ks}:{195+4*ks}], v[{128+4*ks}:{131+4*ks}], {c}")
    kk = -2.0 * math.sqrt(2.0/math.pi) * LOG2E
    A(f"v_mov_b32 v24, {f2u(kk*0.044715):#x}")
    A(f"v_mov_b32 v25, {f2u(kk):#x}")
    g.nop(6)
    sel4(g, 20, 16, 17, 18, 19, sM1, sM2, sM3)
    rnd1(g, 20)
    A(f"v_mul_f32 v21, v20, v20")
    A(f"v_fma_f32 v21, v21, v24, v25")
    A(f"v_mul_f32 v21, v21, v20")
    A(f"v_exp_f32 v21, v21")
    A(f"v_mov_b32 v23, v20 row_ror:8 {DPP}")
    A(f"v_add_f32 v21, 1.0, v21")
    A(f"v_rcp_f32 v21, v21")
    A(f"s_mov_b32 exec_lo, 0x00ff00ff")
    A(f"s_mov_b32 exec_hi, 0x00ff00ff")
    A(f"v_mul_f32 v21, v21, v20")
    rnd1(g, 21)
    A(f"v_mul_f32 v21, v21, v23")
    A(f"v_cvt_pk_bf16_f32 v21, v21, v21")
    A(f"ds_write_b16 v{vGW}, v21")
    A("s_mov_b64 exec, -1")
    A("s_waitcnt lgkmcnt(0)")
    g.lbl("L_ffn_d")
    A(f"s_cmp_eq_u32 s{sWAVE}, 7")
    A("s_cbranch_scc1 L_fin")
    A("s_barrier")
    tstamp(g, 4)
    A(f"ds_read_b128 v[16:19], v{vGR_}")
    A("s_waitcnt lgkmcnt(0)")
    for t in range(4):
        A(f"v_mfma_f32_16x16x32_bf16 v[{24+4*t}:{27+4*t}], v[{96+4*t}:{99+4*t}], v[16:19], 0")
    g.nop(6)
    for i in range(4): A(f"v_cndmask_b32 v{40+i}, v{24+i}, v{28+i}, s[{sQ1}:{sQ1+1}]")
    for i in range(4): A(f"v_cndmask_b32 v{40+i}, v{40+i}, v{32+i}, s[{sQ2}:{sQ2+1}]")
    for i in range(4): A(f"v_cndmask_b32 v{40+i}, v{40+i}, v{36+i}, s[{sQ3}:{sQ3+1}]")
    for i in range(4): A(f"v_min_u32 v{40+i}, -2, v{40+i}")
    A(f"buffer_store_dwordx4 v[40:43], v{vZO}, s[{sWS}:{sWS+3}], s{sY_DST} offen sc1")
    stamp(g, 8)
    A("s_branch L_fin")

    g.lbl("L_w7")
    A(f"v_and_b32 v13, 31, v{vL}")
    A(f"v_lshlrev_b32 v13, 2, v13")
    A(f"v_add_u32 v13, {L_OB}, v13")
    g.lbl("L_opoll")
    for i in range(4):
        A(f"buffer_load_dwordx4 v[{16+4*i}:{19+4*i}], v{vL16}, s[{sWS}:{sWS+3}], s{sO_IN} offen offset:{1024*i} sc1")
    A("s_waitcnt vmcnt(0)")
    check_tags(g, [19, 23, 27, 31], "L_opoll")
    tstamp(g, 1)
    A(f"v_max3_f32 v32, v18, v22, v26")
    A(f"v_max_f32 v32, v32, v30")
    A(f"v_mov_b32 v33, v32")
    g.nop(2)
    A(f"v_permlane32_swap_b32 v32, v33")
    g.nop(1)
    A(f"v_max_f32 v32, v32, v33")
    for i in range(4): A(f"v_sub_f32 v{18+4*i}, v{18+4*i}, v32")
    for i in range(4): A(f"v_exp_f32 v{18+4*i}, v{18+4*i}")
    A(f"v_pk_mul_f32 v[34:35], v[16:17], v[18:19] op_sel_hi:[1,0]")
    A(f"v_add_f32 v36, v18, v22")
    for i in range(1, 4):
        A(f"v_pk_fma_f32 v[34:35], v[{16+4*i}:{17+4*i}], v[{18+4*i}:{19+4*i}], v[34:35] op_sel_hi:[1,0,1]")
    A(f"v_add_f32 v37, v26, v30")
    A(f"v_add_f32 v36, v36, v37")
    A(f"v_mov_b32 v38, v34"); A(f"v_mov_b32 v39, v35"); A(f"v_mov_b32 v37, v36")
    g.nop(1)
    A(f"v_permlane32_swap_b32 v34, v38")
    A(f"v_permlane32_swap_b32 v35, v39")
    A(f"v_permlane32_swap_b32 v36, v37")
    A(f"v_pk_add_f32 v[34:35], v[34:35], v[38:39]")
    A(f"v_add_f32 v36, v36, v37")
    A(f"v_rcp_f32 v36, v36")
    g.nop(1)
    A(f"v_pk_mul_f32 v[34:35], v[34:35], v[36:37] op_sel_hi:[1,0]")
    A(f"v_cvt_pk_bf16_f32 v34, v34, v35")
    A(f"ds_write_b32 v13, v34")
    A("s_waitcnt lgkmcnt(0)")
    A("s_barrier")
    stamp(g, 7)
    A(f"s_cmp_eq_u32 s{sROLE}, 2")
    A("s_cbranch_scc1 L_ffn")
    A(f"s_cmp_lt_u32 s{sRED}, 112")
    A("s_cbranch_scc0 L_fin")
    A("s_branch L_gchk")
    g.lbl("L_gretry")
    A(f"s_add_u32 s{sT0}, s{sPX}, {3*1792}")
    A(f"buffer_load_dwordx4 v[{vPAR}:{vPAR+3}], v{vPA1}, s[{sWS}:{sWS+3}], s{sPX} offen sc1")
    A(f"buffer_load_dwordx4 v[{vPAR+4}:{vPAR+7}], v{vPA1}, s[{sWS}:{sWS+3}], s{sT0} offen sc1")
    A("s_waitcnt vmcnt(0)")
    g.lbl("L_gchk")
    check_tags(g, [vPAR+3, vPAR+7], "L_gretry")
    A(f"s_mov_b32 vcc_lo, 0xf0f0f0f0"); A(f"s_mov_b32 vcc_hi, 0xf0f0f0f0")
    A(f"v_cndmask_b32 v100, v{vPAR}, v{vPAR+1}, vcc")
    A(f"v_cndmask_b32 v101, v{vPAR+4}, v{vPAR+5}, vcc")
    unpack(g, 100, 120, 121)
    unpack(g, 101, 122, 123)
    unpack(g, vPAR+8, 124, 125)
    A(f"v_mov_b32 v107, s{sTAG}")
    A(f"v_mov_b32 v106, 0")
    A(f"v_lshlrev_b32 v108, 1, v{vPA2}")
    if XR:
        A(f"v_lshrrev_b32 v{vT}, 3, v{vL}")
        A(f"v_lshl_add_u32 v108, v{vT}, 13, v108")
    A(f"v_lshlrev_b32 v109, 4, v{vPA2}")
    A(f"v_add_u32 v109, {L_RB}, v109")
    A(f"v_lshlrev_b32 v110, 3, v{vPA2}")
    A(f"v_add_u32 v110, {L_RB}, v110")
    A(f"s_lshl_b32 s{sT2}, s{sXO}, 1")
    A(f"s_add_u32 s{sPX}, s{sT2}, {WS_X1}")

    g.lbl("L_red")
    A(f"s_lshl_b32 s{sT0}, s{sRED}, 13")
    A(f"s_lshl_b32 s{sT1}, s{sWAVE}, 10")
    A(f"s_add_u32 s{sT0}, s{sT0}, s{sT1}")
    A(f"s_add_u32 s{sT0}, s{sT0}, {WS_Y}")
    A(f"v_and_b32 v12, 7, v{vL}")
    A(f"v_lshrrev_b32 v13, 5, v{vL}")
    A(f"v_lshl_add_u32 v12, v12, 1, v13")
    A(f"s_lshl_b32 s{sT1}, s{sWAVE}, 2")
    A(f"s_add_u32 s{sT1}, s{sT1}, {L_RB}")
    A(f"v_lshl_add_u32 v12, v12, 5, s{sT1}")
    g.lbl("L_ypoll")
    A(f"buffer_load_dwordx4 v[16:19], v{vL16}, s[{sWS}:{sWS+3}], s{sT0} offen sc1")
    A("s_waitcnt vmcnt(0)")
    check_tags(g, [19], "L_ypoll")
    tstamp(g, 2)
    A(f"v_permlane32_swap_b32 v16, v17")
    g.nop(1)
    A(f"v_add_f32 v16, v16, v17")
    A(f"v_mov_b32 v17, v16")
    g.nop(2)
    A(f"v_permlane16_swap_b32 v16, v17")
    g.nop(1)
    A(f"v_add_f32 v16, v16, v17")
    g.nop(2)
    A(f"v_add_f32 v16, v16, v16 row_ror:8 {DPP}")
    A(f"ds_write_b32 v12, v16")
    A("s_waitcnt lgkmcnt(0)")
    A("s_barrier")
    A(f"s_cmp_eq_u32 s{sWAVE}, 7")
    A("s_cbranch_scc0 L_red_z")
    for i in range(4):
        A(f"ds_read_b128 v[{16+4*i}:{19+4*i}], v109 offset:{16*i}")
    A("s_waitcnt lgkmcnt(2)")
    A(pk("add", 16, 16, 18)); A(pk("add", 20, 20, 22))
    A("s_waitcnt lgkmcnt(0)")
    A(pk("add", 24, 24, 26)); A(pk("add", 28, 28, 30))
    A(pk("add", 16, 16, 20)); A(pk("add", 24, 24, 28))
    A(f"v_add_f32 v16, v16, v17"); A(f"v_add_f32 v17, v24, v25")
    def resid(gate):
        rnd2(g, 16, 17, 18)
        A(pk("mul", 16, 16, gate))
        rnd2(g, 16, 17, 18)
        A(pk("add", 124, 124, 16))
        A(f"v_cvt_pk_bf16_f32 v104, v124, v125")
    resid(120)
    g.nop(2)
    A(f"v_mov_b32 v105, v104 row_shl:4 {DPP}")
    if XR:
        A("s_mov_b32 exec_lo, 0x0f0f0f0f"); A("s_mov_b32 exec_hi, 0x0f0f0f0f")
    else:
        A("s_mov_b64 exec, 0xf")
    A(f"buffer_store_dwordx4 v[104:107], v108, s[{sWS}:{sWS+3}], s{sPX} offen sc1")
    A("s_mov_b64 exec, -1")
    stamp(g, 8)
    unpack(g, 104, 124, 125)
    A("s_barrier")
    A(f"ds_read_b128 v[16:19], v110 offset:0")
    A(f"ds_read_b128 v[20:23], v110 offset:16")
    A("s_waitcnt lgkmcnt(0)")
    A(pk("add", 16, 16, 18)); A(pk("add", 20, 20, 22))
    A(f"v_add_f32 v16, v16, v17"); A(f"v_add_f32 v17, v20, v21")
    resid(122)
    A("s_mov_b64 exec, 0xff")
    A(f"buffer_store_dword v104, v{vPA2}, s[{sA}:{sA+3}], s{sXO} offen{opt.get('polO', '')}")
    stamp(g, 9)
    A(f"s_cmp_eq_u32 s{sRED}, 0")
    A("s_cbranch_scc0 L_fin")
    A("s_mov_b64 exec, 1")
    A(f"v_mov_b32 v{vT}, 0")
    A(f"buffer_store_dword v107, v{vT}, s[{sWS}:{sWS+3}], 0 offen sc1")
    A("s_branch L_fin")
    g.lbl("L_red_z")
    A(f"s_cmp_lt_u32 s{sWAVE}, 4")
    A("s_cbranch_scc0 L_fin")
    A(f"v_and_b32 v12, 3, v{vL}")
    A(f"v_lshlrev_b32 v12, 2, v12")
    A(f"v_and_b32 v13, 1, v{vGR}")
    A(f"v_lshl_add_u32 v12, v13, 1, v12")
    A(f"v_lshrrev_b32 v13, 1, v{vGR}")
    A(f"v_add_u32 v12, v12, v13")
    A(f"v_lshl_add_u32 v12, v12, 4, s{sT1}")
    g.lbl("L_zpoll")
    A(f"buffer_load_dwordx4 v[16:19], v{vPA1}, s[{sWS}:{sWS+3}], s{sPX} offen sc1")
    A("s_waitcnt vmcnt(0)")
    A(f"v_max3_u32 v{vT}, v16, v17, v18")
    A(f"v_max_u32 v{vT}, v{vT}, v19")
    A(f"v_cmp_eq_u32 vcc, -1, v{vT}")
    retry_branch(g, "L_zpoll")
    tstamp(g, 3)
    A(f"v_permlane32_swap_b32 v16, v17")
    A(f"v_permlane32_swap_b32 v18, v19")
    g.nop(1)
    A(f"v_add_f32 v16, v16, v17")
    A(f"v_add_f32 v18, v18, v19")
    g.nop(2)
    A(f"v_permlane16_swap_b32 v16, v18")
    g.nop(1)
    A(f"v_add_f32 v16, v16, v18")
    g.nop(2)
    A(f"v_add_f32 v16, v16, v16 row_ror:4 {DPP}")
    g.nop(2)
    A(f"v_add_f32 v16, v16, v16 row_ror:8 {DPP}")
    A(f"ds_write_b32 v12, v16")
    A("s_waitcnt lgkmcnt(0)")
    A("s_barrier")
    A("s_branch L_fin")

    g.lbl("L_early")
    A(f"s_mov_b32 s{sROLE}, 1")
    A(f"s_sub_u32 s{sIDX}, s2, 128")
    A(f"v_lshrrev_b32 v{vT}, 3, v{vL}")
    A(f"v_and_b32 v{vT+1}, 7, v{vL}")
    A(f"s_cmp_lt_u32 s{sN}, 24")
    A("s_cbranch_scc1 L_ed_q")
    A(f"s_sub_u32 s{sIDX}, s{sN}, 24")
    A(f"s_lshl_b32 s{sIDX}, s{sIDX}, 2")
    A(f"s_lshr_b32 s{sT1}, s{sS}, 1")
    A(f"s_add_u32 s{sIDX}, s{sIDX}, s{sT1}")
    A(f"s_and_b32 s{sT2}, s{sS}, 1")
    A(f"s_lshl_b32 s{sT2}, s{sT2}, 5")
    A(f"s_add_u32 s{sIDX}, s{sIDX}, s{sT2}")
    A(f"s_cmp_lt_u32 s{sIDX}, 42")
    A(f"s_cselect_b32 s{sROLE}, 4, 0")
    A("s_cbranch_scc0 L_kload")
    srd(g, sB, P_C, 3584)
    A(f"s_lshl_b32 s{sT0}, s{sWAVE}, 10")
    A(f"buffer_load_dwordx4 v[16:19], v{vL16}, s[{sB}:{sB+3}], s{sT0} offen")
    srd(g, sA, P_WM, 448*5376)
    A(f"v_mul_u32_u24 v{vDM}, 5376, v{vT}")
    A(f"s_mov_b32 s{sSTEP}, {8*5376}")
    A("s_branch L_ed_go")
    g.lbl("L_ed_q")
    srd(g, sB, P_X, 3584)
    A(f"s_mul_i32 s{sT0}, s{sWAVE}, 896")
    A(f"v_lshlrev_b32 v13, 3, v{vL}")
    A(f"v_mov_b32 v{vT+2}, 0x100000")
    A(f"v_cndmask_b32 v{vT+2}, v{vT+2}, v13, s[{sM48}:{sM48+1}]")
    A(f"buffer_load_dwordx2 v[16:17], v13, s[{sB}:{sB+3}], s{sT0} offen")
    A(f"buffer_load_dwordx2 v[18:19], v{vT+2}, s[{sB}:{sB+3}], s{sT0} offen offset:512")
    srd(g, sA, P_WQ, 448*8192)
    A(f"v_lshlrev_b32 v{vDM}, 13, v{vT}")
    A(f"s_mov_b32 s{sSTEP}, {8*8192}")
    g.lbl("L_ed_go")
    A(f"v_lshl_add_u32 v{vDM}, v{vT+1}, 4, v{vDM}")
    A(f"s_lshl_b32 s{sSTART}, s{sIDX}, 7")
    A(f"s_mul_i32 s{sT0}, s{sWAVE}, 7")
    A(f"s_mul_i32 s{sT1}, s{sT0}, s{sSTEP}")
    A(f"s_add_u32 s{sSTART}, s{sSTART}, s{sT1}")
    A(f"s_lshl_b32 s{sLDS}, s{sT0}, 10")
    A(f"s_add_u32 s{sLDS}, s{sLDS}, {L_IMG}")
    dma7(g, polW, VM(g, 0))
    srd(g, sWS, P_WS, WS_SIZE)
    A(f"v_mov_b32 v{vT}, 0")
    A(f"buffer_load_dword v14, v{vT}, s[{sWS}:{sWS+3}], 0 offen sc1")
    A(f"v_mov_b32 v{vT+1}, {L_FLAG}")
    A(f"ds_write_b32 v{vT+1}, v{vT} offset:4")
    A("s_waitcnt lgkmcnt(0)")
    A("s_barrier")
    A("s_branch L_kload")

    g.lbl("L_hook")
    A(f"s_cmp_lt_u32 s{sWAVE}, 4")
    A("s_cbranch_scc0 L_p1")
    A(f"s_waitcnt vmcnt({HK+9})")
    for i in range(4):
        unpack(g, 16+i, 24+2*i, 25+2*i)
    A(f"s_cmp_eq_u32 s{sROLE}, 1")
    A("s_cbranch_scc1 L_p_ln")
    for i in range(8): A(f"v_mul_f32 v{32+i}, {f2u(-LOG2E):#x}, v{24+i}")
    for i in range(8): A(f"v_exp_f32 v{32+i}, v{32+i}")
    for i in range(8): A(f"v_add_f32 v{32+i}, 1.0, v{32+i}")
    for i in range(8): A(f"v_rcp_f32 v{32+i}, v{32+i}")
    for i in range(8): A(f"v_mul_f32 v{24+i}, v{24+i}, v{32+i}")
    A(f"s_lshl_b32 s{sT2}, s{sWAVE}, 10")
    A(f"s_add_u32 s{sT2}, s{sT2}, {L_A}")
    for i in range(4): A(f"v_cvt_pk_bf16_f32 v{24+i}, v{24+2*i}, v{25+2*i}")
    A(f"v_add_u32 v{vT}, s{sT2}, v{vL16}")
    A(f"ds_write_b128 v{vT}, v[24:27]")
    A("s_branch L_p1")
    g.lbl("L_p_ln")
    layernorm(g, 24, 32, 24, 8)
    for i in range(4): A(f"v_cvt_pk_bf16_f32 v{60+i}, v{24+2*i}, v{25+2*i}")
    g.lbl("L_p1")
    A(f"s_waitcnt vmcnt({HK+1}) lgkmcnt(0)")
    A("s_barrier")
    A(f"s_cmp_lt_u32 s{sWAVE}, 4")
    A("s_cbranch_scc0 L_k1")
    A(f"v_readfirstlane_b32 s{sTAG}, v14")
    A(f"s_add_u32 s{sTAG}, s{sTAG}, 0x9e3779b9")
    A(f"s_cmp_eq_u32 s{sROLE}, 1")
    A("s_cbranch_scc1 L_p_q")
    A(f"s_call_b64 s[{sRET}:{sRET+1}], L_svc_mm")
    A("s_branch L_k1")
    g.lbl("L_p_q")
    A(f"v_add_u32 v13, 1024, v{vL16}")
    A(f"v_mov_b32 v{vT}, {WS_SIZE}")
    A(f"v_cndmask_b32 v13, v{vT}, v13, s[{sM48}:{sM48+1}]")
    A(f"s_mul_i32 s{sXO}, s{sWAVE}, {MB}")
    A(f"s_add_u32 s{sXO}, s{sXO}, {WS_M}")
    A(f"s_mov_b32 s{sSV}, 1")
    A("s_branch L_k1")

    g.lbl("L_svc")
    A(f"s_mov_b32 s{sSV}, 0")
    for i, r in enumerate((32, 33, 36, 37)):
        unpack(g, r, 16+2*i, 17+2*i)
        unpack(g, r+8, 48+2*i, 49+2*i)
        unpack(g, 60+i, 24+2*i, 25+2*i)
    for i in range(8): A(f"v_add_f32 v{48+i}, 1.0, v{48+i}")
    for i in range(0, 8, 2): rnd2(g, 48+i, 49+i, vT)
    modulate_pack(g, 24, 48, 16, 24, vT, 8)
    A(f"s_mul_i32 s{sT2}, s{sWAVE}, 896")
    A(f"s_add_u32 s{sT2}, s{sT2}, {L_A}")
    A(f"v_lshl_add_u32 v{vT}, v{vL}, 3, s{sT2}")
    A(f"ds_write_b64 v{vT}, v[24:25]")
    A(f"s_mov_b64 exec, s[{sM48}:{sM48+1}]")
    A(f"ds_write_b64 v{vT}, v[26:27] offset:512")
    A("s_mov_b64 exec, -1")
    A("s_waitcnt lgkmcnt(0)")
    lds_inc(g, 4)
    lds_spin(g, 4, 4, "L_p2spin")
    g.lbl("L_svc_mm")
    stamp(g, 1)
    A(f"v_lshrrev_b32 v{vT+2}, 2, v{vJ}")
    A(f"v_lshl_add_u32 v{vT+2}, v{vGR}, 3, v{vT+2}")
    A(f"v_lshlrev_b32 v{vT+2}, 7, v{vT+2}")
    A(f"v_and_b32 v{vT+3}, 3, v{vL}")
    A(f"v_lshl_add_u32 v{vT+2}, v{vT+3}, 3, v{vT+2}")
    A(f"s_lshl_b32 s{sT2}, s{sWAVE}, 5")
    A(f"s_add_u32 s{sT2}, s{sT2}, {L_IMG}")
    A(f"v_add_u32 v{vT+2}, s{sT2}, v{vT+2}")
    A(f"v_mul_u32_u24 v{vT+1}, 896, v{vT+3}")
    A(f"v_lshl_add_u32 v{vT+1}, v{vGR}, 4, v{vT+1}")
    A(f"v_add_u32 v{vT+1}, {L_A}, v{vT+1}")
    A("s_waitcnt lgkmcnt(0)")
    def slot(ks): return 24 + 8*(ks % 5)
    def rd(ks):
        r = slot(ks)
        A(f"ds_read_b64_tr_b16 v[{r}:{r+1}], v{vT+2} offset:{ks*4096}")
        A(f"ds_read_b64_tr_b16 v[{r+2}:{r+3}], v{vT+2} offset:{ks*4096+512}")
        A(f"ds_read_b128 v[{r+4}:{r+7}], v{vT+1} offset:{64*ks}")
    for ks in range(5): rd(ks)
    for ks in range(14):
        ahead = min(13 - ks, 4)
        A(f"s_waitcnt lgkmcnt({3*ahead})")
        r = slot(ks)
        c = "0" if ks == 0 else "v[16:19]"
        A(f"v_mfma_f32_16x16x32_bf16 v[16:19], v[{r}:{r+3}], v[{r+4}:{r+7}], {c}")
        if ks + 5 < 14: rd(ks + 5)
    A(f"s_cmp_eq_u32 s{sROLE}, 1")
    A(f"s_mov_b32 s{sT2}, {MB}")
    A(f"s_cselect_b32 s{sT2}, 16384, s{sT2}")
    A(f"s_mov_b32 s{sT3}, {WS_M}")
    A(f"s_cselect_b32 s{sT3}, {WS_Q}, s{sT3}")
    A(f"s_lshl_b32 s{sLDS}, s{sIDX}, 8")
    A(f"s_add_u32 s{sT3}, s{sT3}, s{sLDS}")
    A(f"s_lshl_b32 s{sLDS}, s{sWAVE}, 6")
    A(f"s_add_u32 s{sT3}, s{sT3}, s{sLDS}")
    A(f"v_mul_u32_u24 v{vT+1}, s{sT2}, v{vT+3}")
    A(f"v_lshl_add_u32 v{vT+1}, v{vGR}, 4, v{vT+1}")
    A(f"v_mov_b32 v22, 0")
    A(f"v_mov_b32 v23, s{sTAG}")
    A(f"v_cvt_pk_bf16_f32 v20, v16, v17")
    A(f"v_cvt_pk_bf16_f32 v21, v18, v19")
    A(f"s_mov_b32 exec_lo, 0x000f000f")
    A(f"s_mov_b32 exec_hi, 0x000f000f")
    A(f"buffer_store_dwordx4 v[20:23], v{vT+1}, s[{sWS}:{sWS+3}], s{sT3} offen sc1")
    A("s_mov_b64 exec, -1")
    A(f"v_not_b32 v19, s{sTAG}")
    stamp(g, 2)
    A(f"s_setpc_b64 s[{sRET}:{sRET+1}]")

    if LW == 2:
        g.lbl("L_wo2")
        A(f"s_cmp_eq_u32 s{sROLE}, 8")
        A("s_cbranch_scc1 L_pf")
        srd(g, sB, P_WO, 4096*896)
        A(f"s_lshr_b32 s{sT2}, s{sWAVE}, 1")
        A(f"s_lshl_b32 s{sT0}, s{sKVH}, 1")
        A(f"s_add_u32 s{sT0}, s{sT0}, s{sT2}")
        A(f"s_lshl_b32 s{sT0}, s{sT0}, 8")
        A(f"s_lshl_b32 s{sT2}, s{sS}, 5")
        A(f"s_add_u32 s{sT0}, s{sT0}, s{sT2}")
        A(f"s_mul_i32 s{sSTART}, s{sT0}, 896")
        A(f"s_and_b32 s{sT1}, s{sWAVE}, 1")
        A(f"s_mul_i32 s{sT1}, s{sT1}, 14336")
        A(f"s_add_u32 s{sSTART}, s{sSTART}, s{sT1}")
        A(f"s_mul_i32 s{sLDS}, s{sWAVE}, 14336")
        A(f"s_mov_b32 s{sSTEP}, 1024")
        A(f"v_mov_b32 v{vDM}, v{vL16}")
        dma7(g, polWO, VM(g, 0), sB)
        dma7(g, polWO, VM(g, 0), sB)
        A("s_branch L_wo2_ret")
        g.lbl("L_pf")
        A(f"s_lshr_b32 s{sT1}, s{sIDX}, 1")
        A(f"s_and_b32 s{sT0}, s{sIDX}, 1")
        A("s_cbranch_scc1 L_pf_d")
        srd(g, sB, P_WG, 448*3584)
        A(f"s_lshl_b32 s{sT1}, s{sT1}, 7")
        A(f"s_mul_i32 s{sSTART}, s{sWAVE}, {112*3584}")
        A(f"s_add_u32 s{sSTART}, s{sSTART}, s{sT1}")
        A(f"s_mov_b32 s{sSTEP}, {8*3584}")
        A(f"v_lshrrev_b32 v{vDM}, 3, v{vL}")
        A(f"v_mul_u32_u24 v{vDM}, 3584, v{vDM}")
        A(f"v_and_b32 v{vT}, 7, v{vL}")
        A(f"v_lshl_add_u32 v{vDM}, v{vT}, 4, v{vDM}")
        A("s_branch L_pf_go")
        g.lbl("L_pf_d")
        srd(g, sB, P_WD, 1792*896)
        A(f"s_mul_i32 s{sSTART}, s{sT1}, 57344")
        A(f"s_mul_i32 s{sT1}, s{sWAVE}, 14336")
        A(f"s_add_u32 s{sSTART}, s{sSTART}, s{sT1}")
        A(f"s_mov_b32 s{sSTEP}, 1024")
        A(f"v_mov_b32 v{vDM}, v{vL16}")
        g.lbl("L_pf_go")
        A(f"s_mov_b32 s{sLDS}, {L_WD}")
        dma7(g, polP, VM(g, 0), sB)
        dma7(g, polP, VM(g, 0), sB)
        A("s_branch L_wo2_ret")
    g.lbl("L_md2")
    A(f"s_cmp_eq_u32 s{sROLE}, 2")
    A("s_cbranch_scc1 L_md_f")
    g.lbl("L_md_none")
    A("s_waitcnt vmcnt(8)")
    A("s_branch L_qchk")
    g.lbl("L_md_f")
    A(f"s_cmp_lt_u32 s{sWAVE}, 4")
    A(f"s_cbranch_scc0 {'L_md_none' if LW else 'L_ld_done'}")
    srd(g, sA, P_WU, 448*3584)
    A(f"s_mul_i32 s{sSTART}, s{sWAVE}, {112*3584}")
    A(f"s_lshl_b32 s{sT1}, s{sIDX}, 6")
    A(f"s_add_u32 s{sSTART}, s{sSTART}, s{sT1}")
    A(f"s_mov_b32 s{sSTEP}, {16*3584}")
    A(f"s_mul_i32 s{sLDS}, s{sWAVE}, 7168")
    A(f"s_add_u32 s{sLDS}, s{sLDS}, {L_WU}")
    A(f"v_lshrrev_b32 v{vDM}, 2, v{vL}")
    A(f"v_mul_u32_u24 v{vDM}, 3584, v{vDM}")
    A(f"v_and_b32 v{vT}, 3, v{vL}")
    A(f"v_lshl_add_u32 v{vDM}, v{vT}, 4, v{vDM}")
    dma7(g, polW, VM(g, W, W))
    A("s_branch L_ld_done")

    g.lbl("L_parF")
    if opt.get("TT", 0):
        srd(g, sA, P_WG, 448*3584)
        A(f"s_cmp_lt_u32 s{sWAVE}, 4")
        A(f"s_cselect_b32 s{sA}, s{P_WG}, s{P_WD}")
        A(f"s_cselect_b32 s{sA+1}, s{P_WG+1}, s{P_WD+1}")
        A(f"v_mul_u32_u24 v{vT}, {opt['TT']}, v{vL}")
        A(f"buffer_load_dword v{vPAR+12}, v{vT}, s[{sA}:{sA+3}], 0 offen nt")
    A(f"s_cmp_lt_u32 s{sWAVE}, 4")
    A(f"s_cselect_b64 s[{sMH}:{sMH+1}], -1, s[{sM48}:{sM48+1}]")
    A(f"s_cselect_b32 s{sT0}, 0, 1024")
    A(f"v_add_u32 v{vPA1}, s{sT0}, v{vL16}")
    A(f"v_mov_b32 v{vT}, {WS_SIZE}")
    A(f"v_cndmask_b32 v{vPA1}, v{vT}, v{vPA1}, s[{sMH}:{sMH+1}]")
    A(f"s_and_b32 s{sT0}, s{sWAVE}, 3")
    A(f"s_mul_i32 s{sXO}, s{sT0}, {MB}")
    A(f"s_add_u32 s{sXO}, s{sXO}, {WS_M + 3*1792}")
    for i in range(2):
        A(f"buffer_load_dwordx4 v[{vPAR+4*i}:{vPAR+4*i+3}], v{vPA1}, s[{sWS}:{sWS+3}], s{sXO} offen offset:{1792*i} sc1")
    A("s_branch L_par_done")
    g.lbl("L_parR")
    A(f"s_cmp_eq_u32 s{sWAVE}, 7")
    A("s_cbranch_scc1 L_par7")
    A(f"s_cmp_lt_u32 s{sWAVE}, 4")
    A("s_cbranch_scc0 L_par_done")
    A(f"s_mul_i32 s{sPX}, s{sRED}, 3584")
    A(f"s_add_u32 s{sPX}, s{sPX}, {WS_Z}")
    A(f"s_lshl_b32 s{sT0}, s{sWAVE}, 10")
    A(f"v_add_u32 v{vPA1}, s{sT0}, v{vL16}")
    A(f"v_mov_b32 v{vT}, {WS_SIZE}")
    A(f"v_cmp_gt_u32 vcc, 3584, v{vPA1}")
    for i in range(4): A(f"v_mov_b32 v{vPAR+i}, -1")
    A(f"v_cndmask_b32 v{vPA1}, v{vT}, v{vPA1}, vcc")
    A(f"buffer_store_dwordx4 v[{vPAR}:{vPAR+3}], v{vPA1}, s[{sWS}:{sWS+3}], s{sPX} offen sc1")
    A("s_branch L_par_done")
    g.lbl("L_par7")
    A(f"s_mul_i32 s{sRB}, s{sRED}, 2341")
    A(f"s_lshr_b32 s{sRB}, s{sRB}, 16")
    A(f"s_mul_i32 s{sT0}, s{sRB}, 28")
    A(f"s_sub_u32 s{sT0}, s{sRED}, s{sT0}")
    A(f"s_mul_i32 s{sT2}, s{sRB}, 896")
    A(f"s_lshl_b32 s{sT3}, s{sT0}, 5")
    A(f"s_add_u32 s{sXO}, s{sT2}, s{sT3}")
    srd(g, sB, P_X, 3584)
    srd(g, sA, P_OUT, 3584)
    A(f"v_and_b32 v{vPA2}, 3, v{vL}")
    A(f"v_bfe_u32 v{vT}, v{vL}, 2, 1")
    A(f"v_lshl_add_u32 v{vPA2}, v{vPA2}, 1, v{vT}")
    A(f"v_lshlrev_b32 v{vPA2}, 2, v{vPA2}")
    A(f"buffer_load_dword v{vPAR+8}, v{vPA2}, s[{sB}:{sB+3}], s{sXO} offen")
    A(f"buffer_load_dword v{vPAR+9}, v{vPA2}, s[{sA}:{sA+3}], s{sXO} offen")
    A(f"v_and_b32 v{vPA1}, 3, v{vL}")
    A(f"v_lshlrev_b32 v{vPA1}, 4, v{vPA1}")
    A(f"s_mul_i32 s{sT2}, s{sRB}, {MB}")
    A(f"s_lshl_b32 s{sT3}, s{sT0}, 6")
    A(f"s_add_u32 s{sPX}, s{sT2}, s{sT3}")
    A(f"s_add_u32 s{sPX}, s{sPX}, {WS_M + 2*1792}")
    A(f"s_add_u32 s{sT0}, s{sPX}, {3*1792}")
    A(f"buffer_load_dwordx4 v[{vPAR}:{vPAR+3}], v{vPA1}, s[{sWS}:{sWS+3}], s{sPX} offen sc1")
    A(f"buffer_load_dwordx4 v[{vPAR+4}:{vPAR+7}], v{vPA1}, s[{sWS}:{sWS+3}], s{sT0} offen sc1")
    A("s_branch L_par_done")
    g.lbl("L_fin")
    flush_stamps(g, NSTAMP)
    g.lbl("L_end")
    A("s_endpgm")
    g.L += ['.section .rodata,"a"', ".p2align 6", f".amdhsa_kernel {NAME}_kernel",
            "  .amdhsa_next_free_vgpr 256", "  .amdhsa_next_free_sgpr 102", "  .amdhsa_accum_offset 256",
            "  .amdhsa_group_segment_fixed_size 0", "  .amdhsa_kernarg_size 112", "  .amdhsa_user_sgpr_count 2",
            "  .amdhsa_user_sgpr_kernarg_segment_ptr 1", "  .amdhsa_system_sgpr_workgroup_id_x 1", ".end_amdhsa_kernel"]
    return "\n".join(g.L) + "\n"

if __name__ == "__main__":
    out = sys.argv[1] if len(sys.argv) > 1 else f"cdna_kernels/{NAME}.s"
    opt = {}
    for a in sys.argv[2:]:
        k, val = a.split("=", 1)
        try: val = int(val)
        except ValueError: val = (" " + val.replace("+", " ")) if val else ""
        opt[k] = val
    open(out, "w").write(build(opt))
```

```python
import sys, math, struct

NAME = "adaLN_cond__gqa_block_cached__geglu_ffn__decode"

WS_E   = 0x0
WS_X1  = 0x3000
WS_M   = 0x5000
MB = 10752
WS_Q   = 0x10000
WS_O   = 0x20000
WS_Y   = 0x120000
WS_Z   = 0x200000
WS_STAMP = 0x400000
WS_SIZE = 0x800000

L_WO = 0
L_WG = 57344
L_WU = L_WG + 28672
L_WD = L_WU + 28672
L_IMG = L_WG
L_A  = L_WD + 28672
L_Q  = L_A + 3584
L_P  = L_Q + 1024
L_RED = L_P + 2048
L_OL = L_WG
L_PD = L_WU + 20480
L_OB = L_RED + 128
L_G  = L_OB + 128
L_FLAG = L_G + 256
L_END = L_FLAG + 64

LOG2E = 1.4426950408889634
def f2u(x): return struct.unpack("<I", struct.pack("<f", x))[0]

class G:
    def __init__(self, opt):
        self.L = []; self.o = opt; self.lab = 0
    def A(self, s): self.L.append("    " + s)
    def lbl(self, s): self.L.append(s + ":")
    def newlab(self, p="L"):
        self.lab += 1
        return f"{p}_{self.lab}"
    def nop(self, n):
        while n > 0:
            k = min(n, 16)
            self.A(f"s_nop {k-1}")
            n -= k

sWAVE = 3
sK, sV, sWS, sA, sB = 4, 8, 12, 16, 20
sS, sB_, sKVH, sN = 24, 25, 26, 27
sTAG, sRETRY = 28, 29
sKB, sSV = 30, 31
sROT = 32
sT0, sT1, sT2, sT3 = 33, 34, 35, 36
sIDX = 37
sM1, sM2, sM3 = 38, 40, 42
sM56 = 44
sQ1, sQ2, sQ3 = 46, 48, 50
sR8 = 52
sSTART, sSTEP, sLDS = 54, 55, 56
sPLO, sPHI = 57, 58
sC = 59
sHI = 60
sROLE = 61
sRED = 62
sGRP = 63
P_X, P_K, P_V, P_WQ, P_WO, P_BX, P_WG, P_WU, P_WD, P_C, P_WM, P_OUT, P_DBG, P_WS = [64 + 2*i for i in range(14)]
sPX = 74
sXO = 75
sRET = 0
sST = 88
sO_DST, sY_DST = 66, 67
sO_IN, sRB = 68, 69

vTID, vL, vJ, vGR, vKO, vVO, vL16, vDM = 0, 1, 2, 3, 4, 5, 6, 7
vE = 8
vT = 9
vQF = 16
vSD = 48
vVE = 64
vK = 128
vPAR = 240
vPA1, vPA2 = 56, 57
vOLW, vOLR, vYO, vOBA = 58, 59, 60, 61
vSC = 62

def srd(g, r, ptr, size):
    g.A(f"s_mov_b32 s{r}, s{ptr}")
    g.A(f"s_mov_b32 s{r+1}, s{ptr+1}")
    g.A(f"s_mov_b32 s{r+2}, {size}")
    g.A(f"s_mov_b32 s{r+3}, 0x20000")

DPP = "row_mask:0xf bank_mask:0xf"
def wave_reduce(g, op, regs, tmps, swaps=("v_permlane16_swap_b32", "v_permlane32_swap_b32")):
    n = len(regs)
    for pat in ("quad_perm:[1,0,3,2]", "quad_perm:[2,3,0,1]", "row_half_mirror", "row_mirror"):
        g.nop(max(0, 2 - (n - 1)))
        for r in regs:
            g.A(f"{op} v{r}, v{r}, v{r} {pat} {DPP}")
    for sw in swaps:
        for r, t in zip(regs, tmps):
            g.A(f"v_mov_b32 v{t}, v{r}")
        g.nop(2)
        for r, t in zip(regs, tmps):
            g.A(f"{sw} v{r}, v{t}")
        g.nop(1)
        for r, t in zip(regs, tmps):
            g.A(f"{op} v{r}, v{r}, v{t}")

def rnd2(g, a, b, t):
    g.A(f"v_cvt_pk_bf16_f32 v{t}, v{a}, v{b}")
    g.A(f"v_lshlrev_b32 v{a}, 16, v{t}")
    g.A(f"v_and_b32 v{b}, s{sHI}, v{t}")
def rnd1(g, a):
    g.A(f"v_cvt_pk_bf16_f32 v{a}, v{a}, v{a}")
    g.A(f"v_lshlrev_b32 v{a}, 16, v{a}")
def unpack(g, src, lo, hi):
    g.A(f"v_lshlrev_b32 v{lo}, 16, v{src}")
    g.A(f"v_and_b32 v{hi}, s{sHI}, v{src}")

def layernorm(g, X, t0, t1, t2, last_round=True):
    g.A(f"v_add_f32 v{t0}, v{X}, v{X+1}")
    g.A(f"v_add_f32 v{t1}, v{X+2}, v{X+3}")
    g.A(f"v_add_f32 v{t0}, v{t0}, v{X+4}")
    g.A(f"v_add_f32 v{t1}, v{t1}, v{X+5}")
    g.A(f"v_add_f32 v{t0}, v{t0}, v{X+6}")
    g.A(f"v_add_f32 v{t1}, v{t1}, v{X+7}")
    g.A(f"v_add_f32 v{t0}, v{t0}, v{t1}")
    wave_reduce(g, "v_add_f32", [t0], [t1])
    g.A(f"v_mul_f32 v{t0}, {f2u(1.0/448):#x}, v{t0}")
    g.A(f"v_sub_f32 v{t2}, v{X}, v{t0}")
    g.A(f"v_mul_f32 v{t1}, v{t2}, v{t2}")
    for i in range(1, 8):
        g.A(f"v_sub_f32 v{t2}, v{X+i}, v{t0}")
        g.A(f"v_fmac_f32 v{t1}, v{t2}, v{t2}")
    g.A(f"v_cndmask_b32 v{t1}, 0, v{t1}, s[{sM56}:{sM56+1}]")
    wave_reduce(g, "v_add_f32", [t1], [t2])
    g.A(f"v_mul_f32 v{t1}, {f2u(1.0/448):#x}, v{t1}")
    rnd2(g, t0, t1, t2)
    g.A(f"v_add_f32 v{t1}, {f2u(1e-5):#x}, v{t1}")
    rnd1(g, t1)
    g.A(f"v_sqrt_f32 v{t1}, v{t1}")
    g.nop(1)
    rnd1(g, t1)
    g.A(f"v_rcp_f32 v{t1}, v{t1}")
    for i in range(8):
        g.A(f"v_sub_f32 v{X+i}, v{X+i}, v{t0}")
    for i in range(0, 8, 2):
        rnd2(g, X+i, X+i+1, t2)
    for i in range(8):
        g.A(f"v_mul_f32 v{X+i}, v{X+i}, v{t1}")
    if last_round:
        for i in range(0, 8, 2):
            rnd2(g, X+i, X+i+1, t2)

def modulate_pack(g, X, OC, SH, D, t, n=8):
    for i in range(n):
        g.A(f"v_mul_f32 v{X+i}, v{X+i}, v{OC+i}")
    for i in range(0, n, 2):
        rnd2(g, X+i, X+i+1, t)
    for i in range(n):
        g.A(f"v_add_f32 v{X+i}, v{X+i}, v{SH+i}")
    for i in range(0, n, 2):
        g.A(f"v_cvt_pk_bf16_f32 v{D+i//2}, v{X+i}, v{X+i+1}")

class VM:
    def __init__(self, g, W, n0=0):
        self.g, self.W, self.n = g, W, n0
    def pre(self):
        if self.W and self.n >= self.W:
            self.g.A(f"s_waitcnt vmcnt({self.W-1})")
            self.n = self.W - 1
        self.n += 1

def dma7(g, pol, vm):
    for i in range(7):
        vm.pre()
        g.A(f"s_mov_b32 m0, s{sLDS}")
        g.A(f"s_add_u32 s{sLDS}, s{sLDS}, 1024")
        g.A(f"buffer_load_dwordx4 v{vDM}, s[{sA}:{sA+3}], s{sSTART} offen{pol} lds")
        g.A(f"s_add_u32 s{sSTART}, s{sSTART}, s{sSTEP}")

def k_tile(g, vm, pol, t):
    g.A(f"s_add_u32 s{sT0}, s{sROT}, {t}")
    g.A(f"s_and_b32 s{sT0}, s{sT0}, 3")
    g.A(f"s_lshl_b32 s{sT0}, s{sT0}, 13")
    g.A(f"s_add_u32 s{sT0}, s{sT0}, s{sKB}")
    g.A(f"s_add_u32 s{sT1}, s{sT0}, 4096")
    for jj in range(8):
        vm.pre()
        r = vK + 32*t + 4*jj
        kq, blk = jj >> 1, jj & 1
        so = sT0 if kq < 2 else sT1
        g.A(f"buffer_load_dwordx4 v[{r}:{r+3}], v{vKO}, s[{sK}:{sK+3}], s{so} offen offset:{(kq&1)*2048 + blk*256}{pol}")

def v_dst(u): return vVE + 32*u

def v_loads(g, vm, pol, units):
    for u in units:
        gam, eta = u >> 1, u & 1
        if eta == 0:
            g.A(f"s_add_u32 s{sT0}, s{sROT}, {gam}")
            g.A(f"s_and_b32 s{sT0}, s{sT0}, 1")
            g.A(f"s_lshl_b32 s{sT0}, s{sT0}, 14")
            g.A(f"s_add_u32 s{sT0}, s{sT0}, s{sKB}")
        for r in range(8):
            vm.pre()
            d = v_dst(u) + 4*r
            g.A(f"buffer_load_dwordx4 v[{d}:{d+3}], v{vVO}, s[{sV}:{sV+3}], s{sT0} offen offset:{512*r + 256*eta}{pol}")

def get_tag(g):
    g.A(f"v_readfirstlane_b32 s{sTAG}, v{vE}")
    g.A(f"s_add_u32 s{sTAG}, s{sTAG}, 0x9e3779b9")

def check_tags(g, regs, fail_label, mask=None, t=vT):
    if len(regs) == 1:
        g.A(f"v_cmp_ne_u32 vcc, s{sTAG}, v{regs[0]}")
    else:
        g.A(f"v_xor_b32 v{t}, s{sTAG}, v{regs[0]}")
        for r in regs[1:]:
            g.A(f"v_bitop3_b32 v{t}, v{t}, v{r}, s{sTAG} bitop3:0xf6")
        g.A(f"v_cmp_ne_u32 vcc, 0, v{t}")
    if mask is not None:
        g.A(f"s_and_b64 vcc, vcc, s[{mask}:{mask+1}]")
    ok = g.newlab("L_ok")
    g.A(f"s_cbranch_vccz {ok}")
    g.A(f"s_sub_u32 s{sRETRY}, s{sRETRY}, 1")
    g.A(f"s_cbranch_scc0 {fail_label}")
    g.A(f"s_mov_b32 s{sRETRY}, 0")
    g.lbl(ok)

def lds_spin(g, off, target_sreg_or_imm, lab):
    g.A(f"v_mov_b32 v{vT}, {L_FLAG}")
    g.lbl(lab)
    g.A(f"ds_read_b32 v{vT+1}, v{vT} offset:{off}")
    g.A("s_waitcnt lgkmcnt(0)")
    g.A(f"v_cmp_le_u32 vcc, {target_sreg_or_imm}, v{vT+1}")
    g.A(f"s_cbranch_vccnz {lab}_ok")
    g.A("s_sleep 2")
    g.A(f"s_branch {lab}")
    g.lbl(lab + "_ok")

def lds_inc(g, off):
    g.A(f"v_mov_b32 v{vT}, {L_FLAG}")
    g.A(f"v_mov_b32 v{vT+1}, 1")
    g.A("s_mov_b64 exec, 1")
    g.A(f"ds_add_u32 v{vT}, v{vT+1} offset:{off}")
    g.A("s_mov_b64 exec, -1")

NSTAMP = 10
def tstamp(g, idx):
    if g.o.get("tst"): stamp(g, idx, True)
def stamp(g, idx, force=False):
    if not g.o.get("stamps"): return
    if g.o.get("tst") and not force and idx in (1, 2, 3, 4): return
    g.A(f"s_memrealtime s[{sST}:{sST+1}]")
    g.A("s_waitcnt lgkmcnt(0)")
    g.A(f"s_mov_b32 s{92+idx}, s{sST}")
def flush_stamps(g, n):
    if not g.o.get("stamps"): return
    if g.o.get("dbg"):
        g.A("s_mov_b64 exec, 1")
        g.A("v_mov_b32 v15, 0")
        g.A("s_not_b32 s92, s92")
        for i in range(n):
            g.A(f"v_mov_b32 v14, s{92+i}")
            g.A(f"global_atomic_umax v15, v14, s[82:83] offset:{4*i}")
            g.nop(1)
        return
    g.A(f"s_lshl_b32 s{sT3}, s2, 3")
    g.A(f"s_add_u32 s{sT3}, s{sT3}, s{sWAVE}")
    g.A(f"s_lshl_b32 s{sT3}, s{sT3}, 6")
    g.A(f"s_add_u32 s{sT3}, s{sT3}, {WS_STAMP}")
    g.A("s_mov_b64 exec, 1")
    g.A("v_mov_b32 v15, 0")
    for i in range(n):
        g.A(f"v_mov_b32 v14, s{92+i}")
        g.A(f"buffer_store_dword v14, v15, s[{sWS}:{sWS+3}], s{sT3} offen offset:{4*i}")
        g.nop(1)

def sel4(g, dst, r0, r1, r2, r3, m1, m2, m3):
    g.A(f"v_cndmask_b32 v{dst}, v{r0}, v{r1}, s[{m1}:{m1+1}]")
    g.A(f"v_cndmask_b32 v{dst}, v{dst}, v{r2}, s[{m2}:{m2+1}]")
    g.A(f"v_cndmask_b32 v{dst}, v{dst}, v{r3}, s[{m3}:{m3+1}]")

def build(opt):
    g = G(opt)
    A = g.A
    polK = opt.get("polK", " nt"); polV = opt.get("polV", " nt"); polW = opt.get("polW", " nt")
    polWO = opt.get("polWO", " nt"); polP = opt.get("polP", "")
    W = opt.get("W", 12)
    W2 = opt.get("W2", 24)
    PRIO = opt.get("prio", 1)
    def prio(p):
        if PRIO: A(f"s_setprio {p}")
    hdr = open(f"cdna_kernels/{NAME}.s.ref").read().split("\n")
    for line in hdr:
        if line.startswith("; @launch"):
            g.L.append(f"; @launch grid=(256,1,1) block=(512,1,1) lds={L_END}")
            break
        g.L.append(line)
    g.L += ['.amdgcn_target "amdgcn-amd-amdhsa--gfx950"', ".text", f".globl {NAME}_kernel", ".p2align 8",
            f".type {NAME}_kernel,@function"]
    g.lbl(f"{NAME}_kernel")
    A("s_cmp_ge_u32 s2, 256")
    A("s_cbranch_scc1 L_end")
    A("s_load_dwordx16 s[64:79], s[0:1], 0")
    A("s_load_dwordx8 s[80:87], s[0:1], 64")
    A("s_load_dwordx2 s[90:91], s[0:1], 104")
    if opt.get("dbg"):
        A("s_memrealtime s[92:93]")
        A("s_load_dwordx2 s[74:75], s[0:1], 96") if False else None
    A(f"s_getpc_b64 s[{sST}:{sST+1}]")
    g.lbl("L_pc")
    A(f"v_lshlrev_b32 v{vT}, 5, v0")
    A(f"v_min_u32 v{vT}, L_end - L_pc - 4, v{vT}")
    A(f"global_load_dword v15, v{vT}, s[{sST}:{sST+1}]")
    prio(3)
    A(f"v_lshrrev_b32 v{vL}, 6, v0")
    A(f"s_and_b32 s{sS}, s2, 7")
    A(f"v_readfirstlane_b32 s{sWAVE}, v{vL}")
    A(f"v_and_b32 v{vL}, 63, v0")
    A(f"v_and_b32 v{vJ}, 15, v0")
    A(f"v_lshrrev_b32 v{vGR}, 4, v{vL}")
    A(f"v_lshrrev_b32 v{vKO}, 2, v{vJ}")
    A(f"v_lshlrev_b32 v{vKO}, 9, v{vKO}")
    A(f"v_lshl_add_u32 v{vKO}, v{vGR}, 6, v{vKO}")
    A(f"v_and_b32 v{vT+3}, 3, v0")
    A(f"v_lshl_add_u32 v{vKO}, v{vT+3}, 4, v{vKO}")
    A(f"v_lshlrev_b32 v{vL16}, 4, v{vL}")
    A(f"s_lshr_b32 s{sN}, s2, 3")
    A(f"s_and_b32 s{sB_}, s{sN}, 3")
    A(f"s_lshr_b32 s{sKVH}, s{sN}, 2")
    A(f"s_lshl_b32 s{sGRP}, s{sB_}, 3")
    A(f"s_add_u32 s{sGRP}, s{sGRP}, s{sKVH}")
    A(f"s_lshl_b32 s{sT0}, s{sGRP}, 21")
    A(f"s_lshl_b32 s{sT1}, s{sS}, 18")
    A(f"s_add_u32 s{sT0}, s{sT0}, s{sT1}")
    A(f"s_lshl_b32 s{sT1}, s{sWAVE}, 15")
    A(f"s_add_u32 s{sKB}, s{sT0}, s{sT1}")
    A(f"s_add_u32 s{sROT}, s{sN}, s{sWAVE}")
    A(f"s_and_b32 s{sROT}, s{sROT}, 3")
    A(f"s_mov_b32 s{sM56}, -1"); A(f"s_mov_b32 s{sM56+1}, 0x00ffffff")
    A(f"s_mov_b32 s{sROLE}, 0")
    A(f"s_mov_b32 s{sK+2}, {64<<20}")
    A(f"s_mov_b32 s{sK+3}, 0x20000")
    A(f"s_cmp_lt_u32 s{sN}, 16")
    A("s_waitcnt lgkmcnt(0)")
    A(f"s_mov_b32 s{sK}, s{P_K}")
    A(f"s_mov_b32 s{sK+1}, s{P_K+1}")
    A("s_cbranch_scc0 L_early")
    g.lbl("L_kload")
    vm = VM(g, W, 1)
    k_tile(g, vm, polK, 0)
    srd(g, sWS, P_WS, WS_SIZE)
    A(f"v_mov_b32 v{vT}, 0")
    A(f"buffer_load_dword v{vE}, v{vT}, s[{sWS}:{sWS+3}], 0 offen sc1")
    vm.n += 1
    if opt.get("stamps"):
        for i in range(1 if opt.get("dbg") else 0, NSTAMP): A(f"s_mov_b32 s{92+i}, 0")
    if opt.get("dbg"):
        A("s_load_dwordx2 s[82:83], s[0:1], 96")
        A("s_waitcnt lgkmcnt(0)")
    else:
        stamp(g, 0)
    srd(g, sV, P_V, 64 << 20)
    A(f"v_lshlrev_b32 v{vVO}, 12, v{vGR}")
    A(f"v_lshl_add_u32 v{vVO}, v{vJ}, 4, v{vVO}")
    A(f"s_mov_b32 s{sRETRY}, 0x40000")
    A(f"s_mov_b32 s{sM1}, 0xffff0000"); A(f"s_mov_b32 s{sM1+1}, 0")
    A(f"s_mov_b32 s{sM2}, 0"); A(f"s_mov_b32 s{sM2+1}, 0xffff")
    A(f"s_mov_b32 s{sM3}, 0"); A(f"s_mov_b32 s{sM3+1}, 0xffff0000")
    A(f"s_mov_b32 s{sQ1}, 0x22222222"); A(f"s_mov_b32 s{sQ1+1}, 0x22222222")
    A(f"s_mov_b32 s{sQ2}, 0x44444444"); A(f"s_mov_b32 s{sQ2+1}, 0x44444444")
    A(f"s_mov_b32 s{sQ3}, 0x88888888"); A(f"s_mov_b32 s{sQ3+1}, 0x88888888")
    A(f"s_mov_b32 s{sR8}, 0xff00ff00"); A(f"s_mov_b32 s{sR8+1}, 0xff00ff00")
    A(f"s_mov_b32 s{sPLO}, 0x05040100"); A(f"s_mov_b32 s{sPHI}, 0x07060302")
    A(f"s_mov_b32 s{sC}, {f2u(0.0625*LOG2E):#x}")
    A(f"s_mov_b32 s{sHI}, 0xffff0000")
    A(f"s_mov_b32 s{sSV}, 0")
    A(f"s_sub_u32 s{sRED}, s2, 144")
    A(f"s_cselect_b32 s{sRED}, 0xffff, s{sRED}")
    A(f"s_cmp_lg_u32 s{sROLE}, 0")
    A("s_cbranch_scc1 L_hook")
    A(f"s_cmp_lt_u32 s{sN}, 16")
    A("s_cbranch_scc0 L_k1")
    A(f"s_lshr_b32 s{sT1}, s{sS}, 1")
    A(f"s_and_b32 s{sT2}, s{sS}, 1")
    A(f"s_lshl_b32 s{sT2}, s{sT2}, 2")
    A(f"s_add_u32 s{sT1}, s{sT1}, s{sT2}")
    A(f"s_bfe_u32 s{sT3}, s{sN}, 0x20001")
    A(f"s_lshl_b32 s{sT3}, s{sT3}, 3")
    A(f"s_add_u32 s{sT1}, s{sT1}, s{sT3}")
    A(f"s_lshl_b32 s{sIDX}, s{sT1}, 1")
    A(f"s_and_b32 s{sT2}, s{sN}, 1")
    A(f"s_add_u32 s{sIDX}, s{sIDX}, s{sT2}")
    A(f"s_cmp_lt_u32 s{sN}, 8")
    A(f"s_cselect_b32 s{sROLE}, 2, 8")
    A(f"s_cmp_lt_u32 s{sT1}, 28")
    A(f"s_cselect_b32 s{sROLE}, s{sROLE}, 0")
    g.lbl("L_k1")
    def svpoll():
        for i, off in enumerate((0, 16, 1792, 1808)):
            A(f"buffer_load_dwordx4 v[{32+4*i}:{35+4*i}], v13, s[{sWS}:{sWS+3}], s{sXO} offen offset:{off} sc1")
    def svtest():
        A(f"v_xor_b32 v{vT}, s{sTAG}, v35")
        for r in (39, 43, 47):
            A(f"v_bitop3_b32 v{vT}, v{vT}, v{r}, s{sTAG} bitop3:0xf6")
        A(f"v_cmp_ne_u32 vcc, 0, v{vT}")
        A(f"s_and_b64 vcc, vcc, s[{sM56}:{sM56+1}]")
    for t in range(1, 4):
        A(f"s_cmp_eq_u32 s{sSV}, 0")
        A(f"s_cbranch_scc1 L_kt{t}")
        svpoll()
        g.lbl(f"L_kt{t}")
        k_tile(g, vm, polK, t)
        A(f"s_cmp_eq_u32 s{sSV}, 0")
        A(f"s_cbranch_scc1 L_kd{t}")
        A("s_waitcnt vmcnt(8)")
        svtest()
        A(f"s_cbranch_vccnz L_kd{t}")
        A(f"s_call_b64 s[{sRET}:{sRET+1}], L_svc")
        g.lbl(f"L_kd{t}")
    A(f"s_cmp_eq_u32 s{sSV}, 0")
    A("s_cbranch_scc1 L_kdone")
    g.lbl("L_hpoll")
    svpoll()
    A("s_waitcnt vmcnt(0)")
    check_tags(g, [35, 39, 43, 47], "L_hpoll", mask=sM56)
    A(f"s_call_b64 s[{sRET}:{sRET+1}], L_svc")
    g.lbl("L_kdone")
    get_tag(g)
    prio(2)
    def qloads():
        for i in range(2):
            A(f"buffer_load_dwordx4 v[{16+4*i}:{19+4*i}], v{vL16}, s[{sWS}:{sWS+3}], s{sXO} offen offset:{1024*i} sc1")
    A(f"s_lshl_b32 s{sT1}, s{sB_}, 14")
    A(f"s_lshl_b32 s{sT2}, s{sKVH}, 11")
    A(f"s_add_u32 s{sT1}, s{sT1}, s{sT2}")
    A(f"s_add_u32 s{sXO}, s{sT1}, {WS_Q}")
    v_loads(g, VM(g, W, W), polV, [0, 1])
    qloads()
    prio(1)
    srd(g, sA, P_WO, 4096*896)
    A(f"s_lshr_b32 s{sT2}, s{sWAVE}, 2")
    A(f"s_lshl_b32 s{sT0}, s{sKVH}, 1")
    A(f"s_add_u32 s{sT0}, s{sT0}, s{sT2}")
    A(f"s_lshl_b32 s{sT0}, s{sT0}, 8")
    A(f"s_lshl_b32 s{sT2}, s{sS}, 5")
    A(f"s_add_u32 s{sT0}, s{sT0}, s{sT2}")
    A(f"s_mul_i32 s{sSTART}, s{sT0}, 896")
    A(f"s_and_b32 s{sT1}, s{sWAVE}, 3")
    A(f"s_mul_i32 s{sT1}, s{sT1}, 7168")
    A(f"s_add_u32 s{sSTART}, s{sSTART}, s{sT1}")
    A(f"s_mul_i32 s{sLDS}, s{sWAVE}, 7168")
    A(f"s_mov_b32 s{sSTEP}, 1024")
    A(f"v_mov_b32 v{vDM}, v{vL16}")
    dma7(g, polWO, VM(g, W, W))
    A(f"s_and_b32 s{sT0}, s{sROLE}, 10")
    A("s_cbranch_scc1 L_md2")
    g.lbl("L_ld_done")
    A("s_waitcnt vmcnt(7)")
    A("s_branch L_qchk")
    g.lbl("L_qpoll")
    qloads()
    A("s_waitcnt vmcnt(0)")
    g.lbl("L_qchk")
    check_tags(g, [19, 23], "L_qpoll")
    stamp(g, 3)
    A(f"v_lshlrev_b32 v{vT+2}, 3, v{vL}")
    A(f"v_add_u32 v{vT+2}, {L_Q}, v{vT+2}")
    A(f"ds_write_b64 v{vT+2}, v[16:17]")
    A(f"ds_write_b64 v{vT+2}, v[20:21] offset:512")
    A(f"v_bfe_u32 v{vT}, v{vJ}, 2, 1")
    A(f"v_lshlrev_b32 v{vT}, 9, v{vT}")
    A(f"v_lshl_add_u32 v{vT}, v{vGR}, 6, v{vT}")
    A(f"v_and_b32 v{vT+1}, 3, v{vL}")
    A(f"v_lshl_add_u32 v{vT}, v{vT+1}, 4, v{vT}")
    A(f"v_add_u32 v{vT}, {L_Q}, v{vT}")
    QL, QH = 48, 56
    A(f"ds_read_b128 v[{QL}:{QL+3}], v{vT}")
    A(f"ds_read_b128 v[{QL+4}:{QL+7}], v{vT} offset:256")
    A(f"s_waitcnt lgkmcnt(0)")
    for i in range(8):
        A(f"v_cndmask_b32 v{QH+i}, 0, v{QL+i}, s[{sR8}:{sR8+1}]")
    for i in range(8):
        A(f"v_cndmask_b32 v{QL+i}, v{QL+i}, 0, s[{sR8}:{sR8+1}]")
    g.nop(2)
    SD = 16
    for t in range(4):
        for jj in range(8):
            kq, blk = jj >> 1, jj & 1
            d = SD + 4*(2*t + (kq >> 1))
            q = (QH if (kq & 1) else QL) + 4*blk
            r = vK + 32*t + 4*jj
            c = "0" if (jj & 3) == 0 else f"v[{d}:{d+3}]"
            A(f"v_mfma_f32_16x16x32_bf16 v[{d}:{d+3}], v[{q}:{q+3}], v[{r}:{r+3}], {c}")
    prio(0)
    A(f"s_cmp_eq_u32 s{sWAVE}, 7")
    A("s_cbranch_scc1 L_par7")
    A(f"s_cmp_eq_u32 s{sROLE}, 2")
    A("s_cbranch_scc1 L_parF")
    g.lbl("L_par_done")
    v_loads(g, VM(g, W2, W2), polV, [2, 3])
    for d in range(8):
        D = SD + 4*d
        sel4(g, D, D, D+1, D+2, D+3, sQ1, sQ2, sQ3)
    for pat in ("quad_perm:[1,0,3,2]", "quad_perm:[2,3,0,1]"):
        for d in range(8):
            D = SD + 4*d
            A(f"v_add_f32 v{D}, v{D}, v{D} {pat} {DPP}")
    S0, S1 = 10, 11
    sel4(g, S0, SD, SD+4, SD+8, SD+12, sQ1, sQ2, sQ3)
    sel4(g, S1, SD+16, SD+20, SD+24, SD+28, sQ1, sQ2, sQ3)
    rnd2(g, S0, S1, vT)
    A(f"v_max_f32 v{vSC}, v{S0}, v{S1}")
    wave_reduce(g, "v_max_f32", [vSC], [17], swaps=("v_permlane32_swap_b32",))
    A(f"v_sub_f32 v{S0}, v{S0}, v{vSC}")
    A(f"v_sub_f32 v{S1}, v{S1}, v{vSC}")
    A(f"v_mul_f32 v{S0}, s{sC}, v{S0}")
    A(f"v_mul_f32 v{S1}, s{sC}, v{S1}")
    A(f"v_exp_f32 v{S0}, v{S0}")
    A(f"v_exp_f32 v{S1}, v{S1}")
    A(f"v_and_b32 v12, 1, v{vGR}")
    A(f"v_bfe_u32 v28, v{vL}, 1, 1")
    A(f"v_add_u32 v28, s{sROT}, v28")
    A(f"v_add_u32 v29, 2, v28")
    A(f"v_and_b32 v28, 3, v28")
    A(f"v_and_b32 v29, 3, v29")
    A(f"v_and_b32 v30, 1, v{vL}")
    A(f"v_lshlrev_b32 v30, 3, v30")
    A(f"v_lshrrev_b32 v31, 1, v{vGR}")
    A(f"v_lshl_add_u32 v30, v31, 2, v30")
    A(f"v_lshrrev_b32 v31, 2, v{vJ}")
    A(f"v_add_u32 v30, v30, v31")
    A(f"v_lshlrev_b32 v30, 1, v30")
    A(f"v_lshl_add_u32 v30, v12, 7, v30")
    A(f"s_lshl_b32 s{sT1}, s{sWAVE}, 8")
    A(f"s_add_u32 s{sT1}, s{sT1}, {L_P}")
    A(f"v_add_u32 v30, s{sT1}, v30")
    A(f"v_lshl_add_u32 v28, v28, 5, v30")
    A(f"v_lshl_add_u32 v29, v29, 5, v30")
    A(f"v_cvt_pk_bf16_f32 v20, v{S0}, v{S1}")
    A(f"v_add_f32 v16, v{S0}, v{S1}")
    A(f"ds_write_b16 v28, v20")
    A(f"ds_write_b16_d16_hi v29, v20")
    A(f"v_and_b32 v{vT}, 1, v{vL}")
    A(f"v_lshlrev_b32 v{vT}, 7, v{vT}")
    A(f"v_lshl_add_u32 v{vT}, v{vGR}, 4, v{vT}")
    A(f"s_and_b32 s{sT0}, s{sROT}, 1")
    A(f"s_lshl_b32 s{sT0}, s{sT0}, 6")
    A(f"s_add_u32 s{sT2}, s{sT1}, s{sT0}")
    A(f"s_xor_b32 s{sT0}, s{sT0}, 64")
    A(f"s_add_u32 s{sT3}, s{sT1}, s{sT0}")
    A(f"v_add_u32 v18, s{sT2}, v{vT}")
    A(f"v_add_u32 v19, s{sT3}, v{vT}")
    PF = 48
    A(f"ds_read_b128 v[{PF}:{PF+3}], v18")
    A(f"ds_read_b128 v[{PF+4}:{PF+7}], v19")
    wave_reduce(g, "v_add_f32", [16], [17], swaps=("v_permlane32_swap_b32",))
    A(f"v_lshlrev_b32 v13, 5, v12")
    A(f"v_add_u32 v13, {L_RED}, v13")
    A(f"s_lshl_b32 s{sT0}, s{sWAVE}, 2")
    A(f"v_add_u32 v14, s{sT0}, v13")
    A(f"ds_write_b32 v14, v{vSC}")
    A(f"ds_write_b32 v14, v16 offset:64")
    A(f"v_lshlrev_b32 v{vOLW}, 10, v12")
    A(f"v_lshl_add_u32 v{vOLW}, v{vJ}, 5, v{vOLW}")
    A(f"v_lshrrev_b32 v12, 1, v{vGR}")
    A(f"v_lshl_add_u32 v{vOLW}, v12, 4, v{vOLW}")
    A(f"s_lshl_b32 s{sT1}, s{sWAVE}, 11")
    A(f"s_add_u32 s{sT1}, s{sT1}, {L_OL}")
    A(f"v_add_u32 v{vOLW}, s{sT1}, v{vOLW}")
    A(f"s_lshl_b32 s{sT0}, s{sWAVE}, 8")
    A(f"s_add_u32 s{sT0}, s{sT0}, {L_OL}")
    A(f"v_lshl_add_u32 v{vOLR}, v{vL}, 3, s{sT0}")
    A(f"s_lshl_b32 s{sO_IN}, s{sGRP}, 15")
    A(f"s_add_u32 s{sO_IN}, s{sO_IN}, {WS_O}")
    A(f"s_and_b32 s{sT1}, s{sWAVE}, 3")
    A(f"s_lshl_b32 s{sT1}, s{sT1}, 13")
    A(f"s_add_u32 s{sO_DST}, s{sO_IN}, s{sT1}")
    A(f"s_lshl_b32 s{sT1}, s{sS}, 9")
    A(f"s_add_u32 s{sO_DST}, s{sO_DST}, s{sT1}")
    A(f"s_lshr_b32 s{sT1}, s{sWAVE}, 2")
    A(f"s_lshl_b32 s{sT1}, s{sT1}, 8")
    A(f"s_add_u32 s{sO_DST}, s{sO_DST}, s{sT1}")
    A(f"s_lshl_b32 s{sT1}, s{sS}, 12")
    A(f"s_add_u32 s{sO_IN}, s{sO_IN}, s{sT1}")
    A(f"s_mul_i32 s{sT0}, s{sB_}, 28")
    A(f"s_lshl_b32 s{sT1}, s{sWAVE}, 2")
    A(f"s_add_u32 s{sT0}, s{sT0}, s{sT1}")
    A(f"s_lshl_b32 s{sT0}, s{sT0}, 6")
    A(f"s_lshl_b32 s{sT1}, s{sKVH}, 3")
    A(f"s_add_u32 s{sT0}, s{sT0}, s{sT1}")
    A(f"s_add_u32 s{sT0}, s{sT0}, s{sS}")
    A(f"s_lshl_b32 s{sT0}, s{sT0}, 7")
    A(f"s_add_u32 s{sY_DST}, s{sT0}, {WS_Y}")
    A(f"v_lshlrev_b32 v{vYO}, 13, v{vGR}")
    A(f"v_lshl_add_u32 v{vYO}, v{vJ}, 3, v{vYO}")
    A(f"v_lshlrev_b32 v{vOBA}, 4, v{vGR}")
    A(f"v_add_u32 v{vOBA}, {L_OB}, v{vOBA}")
    A("s_waitcnt lgkmcnt(0)")
    ACCB = (16, 192)
    PT = 224
    def pv(u):
        gam, eta = u >> 1, u & 1
        A(f"s_waitcnt vmcnt({8*(3-u)})")
        R = v_dst(u)
        for c in range(4):
            T = PT + 8*(c & 1)
            for m in range(4):
                A(f"v_perm_b32 v{T+m}, v{R+4*(2*m+1)+c}, v{R+4*(2*m)+c}, s{sPLO}")
            for m in range(4):
                A(f"v_perm_b32 v{T+4+m}, v{R+4*(2*m+1)+c}, v{R+4*(2*m)+c}, s{sPHI}")
            g.nop(1)
            for hh in range(2):
                acc = ACCB[eta] + 4*(2*c + hh)
                cc = "0" if gam == 0 else f"v[{acc}:{acc+3}]"
                A(f"v_mfma_f32_16x16x32_bf16 v[{acc}:{acc+3}], v[{PF+4*gam}:{PF+4*gam+3}], v[{T+4*hh}:{T+4*hh+3}], {cc}")
    pv(0); pv(1)
    A("s_barrier")
    stamp(g, 4)
    for i in range(4):
        A(f"ds_read_b128 v[{64+4*i}:{67+4*i}], v13 offset:{(0,16,64,80)[i]}")
    A("s_waitcnt lgkmcnt(2)")
    A(f"v_max3_f32 v80, v64, v65, v66")
    A(f"v_max3_f32 v81, v67, v68, v69")
    A(f"v_max3_f32 v80, v80, v70, v71")
    A(f"v_max_f32 v80, v80, v81")
    for i in range(8): A(f"v_sub_f32 v{64+i}, v{64+i}, v80")
    A(f"v_sub_f32 v{vSC}, v{vSC}, v80")
    for i in range(8): A(f"v_mul_f32 v{64+i}, s{sC}, v{64+i}")
    A(f"v_mul_f32 v{vSC}, s{sC}, v{vSC}")
    for i in range(8): A(f"v_exp_f32 v{64+i}, v{64+i}")
    A(f"v_exp_f32 v{vSC}, v{vSC}")
    A("s_waitcnt lgkmcnt(0)")
    A(f"v_mul_f32 v81, v64, v72")
    for i in range(1, 8): A(f"v_fmac_f32 v81, v{64+i}, v{72+i}")
    A(f"v_rcp_f32 v82, v81")
    A(f"v_log_f32 v83, v81")
    PUB = 84
    A(f"v_mov_b32 v{PUB+3}, s{sTAG}")
    A(f"v_mul_f32 v{vSC}, v{vSC}, v82")
    A(f"v_fma_f32 v83, v80, s{sC}, v83")
    A(f"s_lshr_b32 s{sT0}, s{sWAVE}, 2")
    A(f"s_lshl_b32 s{sT0}, s{sT0}, 4")
    A(f"v_readlane_b32 s{sT0}, v83, s{sT0}")
    g.nop(2)
    A(f"v_mov_b32 v{PUB+2}, s{sT0}")
    def outsel(eta, OUT):
        B = ACCB[eta]
        for i in range(4):
            A(f"v_cndmask_b32 v{OUT+i}, v{B+4*i}, v{B+4*i+1}, s[{sM1}:{sM1+1}]")
        g.nop(3)
        for i in range(4):
            A(f"v_cndmask_b32 v{OUT+i}, v{OUT+i}, v{B+4*(4+i)}, s[{sM2}:{sM2+1}]")
        for i in range(4):
            A(f"v_cndmask_b32 v{OUT+i}, v{OUT+i}, v{B+4*(4+i)+1}, s[{sM3}:{sM3+1}]")
        for i in range(4):
            A(f"v_mul_f32 v{OUT+i}, v{OUT+i}, v{vSC}")
        A(f"ds_write_b128 v{vOLW}, v[{OUT}:{OUT+3}] offset:{512*eta}")
    pv(2); outsel(0, 88)
    pv(3)
    stamp(g, 5)
    outsel(1, 92)
    A("s_waitcnt lgkmcnt(0)")
    A("s_barrier")
    for w in range(8):
        A(f"ds_read_b64 v[{16+2*w}:{17+2*w}], v{vOLR} offset:{2048*w}")
    A("s_mov_b32 exec_hi, 0")
    A("s_waitcnt lgkmcnt(6)")
    A(f"v_pk_add_f32 v[16:17], v[16:17], v[18:19]")
    A("s_waitcnt lgkmcnt(4)")
    A(f"v_pk_add_f32 v[20:21], v[20:21], v[22:23]")
    A("s_waitcnt lgkmcnt(2)")
    A(f"v_pk_add_f32 v[24:25], v[24:25], v[26:27]")
    A(f"v_pk_add_f32 v[16:17], v[16:17], v[20:21]")
    A("s_waitcnt lgkmcnt(0)")
    A(f"v_pk_add_f32 v[28:29], v[28:29], v[30:31]")
    A(f"v_pk_add_f32 v[24:25], v[24:25], v[28:29]")
    A(f"v_pk_add_f32 v[{PUB}:{PUB+1}], v[16:17], v[24:25]")
    A(f"buffer_store_dwordx4 v[{PUB}:{PUB+3}], v{vVO}, s[{sWS}:{sWS+3}], s{sO_DST} offen sc1")
    A("s_mov_b64 exec, -1")
    stamp(g, 6)
    A(f"s_cmp_eq_u32 s{sWAVE}, 7")
    A("s_cbranch_scc1 L_w7")

    WB = 128
    A(f"v_lshrrev_b32 v{vT}, 2, v{vJ}")
    A(f"v_lshl_add_u32 v{vT}, v{vGR}, 3, v{vT}")
    A(f"v_mul_u32_u24 v{vT}, 896, v{vT}")
    A(f"v_and_b32 v12, 3, v{vL}")
    A(f"v_lshl_add_u32 v{vT}, v12, 3, v{vT}")
    A(f"s_lshl_b32 s{sT0}, s{sWAVE}, 7")
    A(f"v_add_u32 v13, s{sT0}, v{vT}")
    for t in range(4):
        for ks in range(2):
            r = WB + 8*t + 4*ks
            A(f"ds_read_b64_tr_b16 v[{r}:{r+1}], v13 offset:{L_WO + ks*28672 + t*32}")
            A(f"ds_read_b64_tr_b16 v[{r+2}:{r+3}], v13 offset:{L_WO + ks*28672 + t*32 + 3584}")
        if t == 1: A("s_waitcnt lgkmcnt(0)")
    A(f"v_mov_b32 v41, s{sTAG}")
    A("s_waitcnt lgkmcnt(0)")
    A("s_barrier")
    A(f"ds_read_b128 v[16:19], v{vOBA}")
    A(f"ds_read_b128 v[20:23], v{vOBA} offset:64")
    A("s_waitcnt lgkmcnt(1)")
    for t in range(4):
        A(f"v_mfma_f32_16x16x32_bf16 v[{24+4*t}:{27+4*t}], v[16:19], v[{WB+8*t}:{WB+8*t+3}], 0")
    A("s_waitcnt lgkmcnt(0)")
    for t in range(4):
        A(f"v_mfma_f32_16x16x32_bf16 v[{24+4*t}:{27+4*t}], v[20:23], v[{WB+8*t+4}:{WB+8*t+7}], v[{24+4*t}:{27+4*t}]")
    g.nop(6)
    sel4(g, 40, 24, 28, 32, 36, sM1, sM2, sM3)
    A(f"buffer_store_dwordx2 v[40:41], v{vYO}, s[{sWS}:{sWS+3}], s{sY_DST} offen sc1")
    stamp(g, 7)
    A(f"s_cmp_eq_u32 s{sROLE}, 2")
    A("s_cbranch_scc0 L_fin")
    A(f"v_add_u32 v13, {L_WD}, v13")
    for t in range(4):
        A(f"ds_read_b64_tr_b16 v[{96+4*t}:{97+4*t}], v13 offset:{t*32}")
        A(f"ds_read_b64_tr_b16 v[{98+4*t}:{99+4*t}], v13 offset:{t*32+3584}")
    g.lbl("L_ffn")
    srd(g, sA, P_WG, 448*3584)
    A(f"s_cmp_lt_u32 s{sWAVE}, 4")
    A(f"s_cselect_b32 s{sA}, s{P_WG}, s{P_WU}")
    A(f"s_cselect_b32 s{sA+1}, s{P_WG+1}, s{P_WU+1}")
    A(f"s_and_b32 s{sT1}, s{sWAVE}, 3")
    A(f"s_mul_i32 s{sSTART}, s{sT1}, {112*3584}")
    A(f"s_lshl_b32 s{sT1}, s{sIDX}, 6")
    A(f"s_add_u32 s{sSTART}, s{sSTART}, s{sT1}")
    A(f"s_mov_b32 s{sSTEP}, {16*3584}")
    A(f"s_mul_i32 s{sLDS}, s{sWAVE}, 7168")
    A(f"s_add_u32 s{sLDS}, s{sLDS}, {L_WG}")
    A(f"v_lshrrev_b32 v{vDM}, 2, v{vL}")
    A(f"v_mul_u32_u24 v{vDM}, 3584, v{vDM}")
    A(f"v_and_b32 v{vT}, 3, v{vL}")
    A(f"v_lshl_add_u32 v{vDM}, v{vT}, 4, v{vDM}")
    dma7(g, "", VM(g, 0))
    A("s_waitcnt vmcnt(0)")
    A("s_barrier")
    stamp(g, 9)
    A(f"s_cmp_lt_u32 s{sWAVE}, 4")
    A("s_cbranch_scc1 L_ffn_ln")
    A(f"v_lshrrev_b32 v13, 2, v{vJ}")
    A(f"v_lshl_add_u32 v13, v{vGR}, 3, v13")
    A(f"v_lshlrev_b32 v13, 6, v13")
    A(f"v_and_b32 v14, 1, v{vL}")
    A(f"v_lshl_add_u32 v13, v14, 3, v13")
    A(f"v_bfe_u32 v14, v{vL}, 1, 1")
    A(f"v_mul_u32_u24 v14, 28672, v14")
    A(f"v_add_u32 v13, v13, v14")
    A(f"s_sub_u32 s{sT0}, s{sWAVE}, 4")
    A(f"s_lshl_b32 s{sT0}, s{sT0}, 4")
    A(f"s_add_u32 s{sT1}, s{sT0}, {L_WG}")
    A(f"v_add_u32 v13, s{sT1}, v13")
    A("s_waitcnt lgkmcnt(0)")
    for ks in range(14):
        r = 128 + 4*ks
        A(f"ds_read_b64_tr_b16 v[{r}:{r+1}], v13 offset:{ks*2048}")
        A(f"ds_read_b64_tr_b16 v[{r+2}:{r+3}], v13 offset:{ks*2048+256}")
        if ks % 4 == 3: A("s_waitcnt lgkmcnt(0)")
    A(f"s_add_u32 s{sT0}, s{sT0}, {L_G}")
    A(f"v_lshlrev_b32 v22, 6, v{vGR}")
    A(f"v_lshl_add_u32 v22, v{vJ}, 1, v22")
    A(f"v_add_u32 v22, s{sT0}, v22")
    A(f"v_and_b32 v{vT}, 3, v{vL}")
    A(f"v_mul_u32_u24 v{vT}, 896, v{vT}")
    A(f"v_lshl_add_u32 v{vT}, v{vGR}, 4, v{vT}")
    A(f"v_add_u32 v{vT}, {L_A}, v{vT}")
    A("s_waitcnt lgkmcnt(0)")
    A("s_barrier")
    tstamp(g, 3)
    for ks in range(14):
        A(f"ds_read_b128 v[{192+4*ks}:{195+4*ks}], v{vT} offset:{64*ks}")
    for ks in range(14):
        A(f"s_waitcnt lgkmcnt({13-ks})")
        c = "0" if ks == 0 else "v[16:19]"
        A(f"v_mfma_f32_16x16x32_bf16 v[16:19], v[{192+4*ks}:{195+4*ks}], v[{128+4*ks}:{131+4*ks}], {c}")
    g.nop(8)
    sel4(g, 20, 16, 17, 18, 19, sM1, sM2, sM3)
    rnd1(g, 20)
    kk = -2.0 * math.sqrt(2.0/math.pi) * LOG2E
    A(f"v_mul_f32 v21, v20, v20")
    A(f"v_mul_f32 v21, {f2u(0.044715):#x}, v21")
    A(f"v_fma_f32 v21, v21, v20, v20")
    A(f"v_mul_f32 v21, {f2u(kk):#x}, v21")
    A(f"v_exp_f32 v21, v21")
    A(f"v_mov_b32 v23, v20 row_ror:8 {DPP}")
    A(f"v_add_f32 v21, 1.0, v21")
    A(f"v_rcp_f32 v21, v21")
    g.nop(1)
    A(f"v_mul_f32 v21, v21, v20")
    rnd1(g, 21)
    A(f"v_mul_f32 v21, v21, v23")
    A(f"v_cvt_pk_bf16_f32 v21, v21, v21")
    A(f"s_mov_b32 exec_lo, 0x00ff00ff")
    A(f"s_mov_b32 exec_hi, 0x00ff00ff")
    A(f"ds_write_b16 v22, v21")
    A("s_mov_b64 exec, -1")
    A(f"s_cmp_eq_u32 s{sWAVE}, 7")
    A("s_cbranch_scc0 L_ffn_d")
    A("s_waitcnt lgkmcnt(0)")
    A("s_barrier")
    A("s_branch L_fin")
    g.lbl("L_ffn_ln")
    A("s_branch L_mchk")
    g.lbl("L_mretry")
    for i, off in enumerate((0, 16, 1792, 1808)):
        A(f"buffer_load_dwordx4 v[{vPAR+4*i}:{vPAR+4*i+3}], v{vPA1}, s[{sWS}:{sWS+3}], s{sXO} offen offset:{off} sc1")
    A("s_waitcnt vmcnt(0)")
    g.lbl("L_mchk")
    check_tags(g, [vPAR+3, vPAR+7, vPAR+11, vPAR+15], "L_mretry", mask=sM56)
    for i, r in enumerate((vPAR, vPAR+1, vPAR+4, vPAR+5)):
        unpack(g, r, 120+2*i, 121+2*i)
        unpack(g, r+8, 112+2*i, 113+2*i)
    for i in range(8):
        A(f"v_add_f32 v{112+i}, 1.0, v{112+i}")
    for i in range(0, 8, 2):
        rnd2(g, 112+i, 113+i, vT)
    A(f"s_mul_i32 s{sT0}, s{sWAVE}, 1792")
    A(f"s_add_u32 s{sT0}, s{sT0}, {WS_X1}")
    A(f"s_mul_i32 s{sT1}, s{sWAVE}, 896")
    A(f"s_add_u32 s{sT1}, s{sT1}, {L_A}")
    A(f"v_add_u32 v13, s{sT1}, v{vL16}")
    g.lbl("L_x1poll")
    A(f"buffer_load_dwordx4 v[16:19], v{vPA1}, s[{sWS}:{sWS+3}], s{sT0} offen sc1")
    A(f"buffer_load_dwordx4 v[20:23], v{vPA1}, s[{sWS}:{sWS+3}], s{sT0} offen offset:16 sc1")
    A("s_waitcnt vmcnt(0)")
    check_tags(g, [17, 19, 21, 23], "L_x1poll", mask=sM56)
    tstamp(g, 2)
    for i in range(4):
        unpack(g, 16+2*i, 24+2*i, 25+2*i)
    layernorm(g, 24, vT, vT+1, vT+2)
    modulate_pack(g, 24, 112, 120, 24, vT)
    A(f"s_mov_b64 exec, s[{sM56}:{sM56+1}]")
    A(f"ds_write_b128 v13, v[24:27]")
    A("s_mov_b64 exec, -1")
    A("s_waitcnt lgkmcnt(0)")
    A("s_barrier")
    g.lbl("L_ffn_d")
    A(f"v_and_b32 v{vT}, 3, v{vL}")
    A(f"v_lshlrev_b32 v{vT}, 6, v{vT}")
    A(f"v_lshl_add_u32 v{vT}, v{vGR}, 4, v{vT}")
    A(f"v_add_u32 v{vT}, {L_G}, v{vT}")
    A(f"s_mul_i32 s{sT0}, s{sWAVE}, {4*56*128}")
    A(f"s_lshl_b32 s{sT1}, s{sIDX}, 7")
    A(f"s_add_u32 s{sT0}, s{sT0}, s{sT1}")
    A(f"s_add_u32 s{sT0}, s{sT0}, {WS_Z}")
    A(f"s_add_u32 s{sT1}, s{sT0}, {28*56*128}")
    A(f"s_add_u32 s{sT2}, s{sT1}, {28*56*128}")
    A(f"s_add_u32 s{sT3}, s{sT2}, {28*56*128}")
    A(f"v_mul_u32_u24 v12, {56*128}, v{vGR}")
    A(f"v_lshl_add_u32 v12, v{vJ}, 3, v12")
    for b in range(4):
        A(f"v_mov_b32 v{41+2*b}, s{sTAG}")
    A("s_waitcnt lgkmcnt(0)")
    A("s_barrier")
    tstamp(g, 4)
    A(f"ds_read_b128 v[16:19], v{vT}")
    A("s_waitcnt lgkmcnt(0)")
    for t in range(4):
        A(f"v_mfma_f32_16x16x32_bf16 v[{24+4*t}:{27+4*t}], v[16:19], v[{96+4*t}:{99+4*t}], 0")
    g.nop(6)
    for b in range(4):
        A(f"v_cndmask_b32 v{40+2*b}, v{24+b}, v{28+b}, s[{sM1}:{sM1+1}]")
    for b in range(4):
        A(f"v_cndmask_b32 v{40+2*b}, v{40+2*b}, v{32+b}, s[{sM2}:{sM2+1}]")
    for b in range(4):
        A(f"v_cndmask_b32 v{40+2*b}, v{40+2*b}, v{36+b}, s[{sM3}:{sM3+1}]")
        A(f"buffer_store_dwordx2 v[{40+2*b}:{41+2*b}], v12, s[{sWS}:{sWS+3}], s{sT0+b} offen sc1")
    stamp(g, 8)
    A("s_branch L_fin")

    g.lbl("L_w7")
    A(f"v_and_b32 v13, 31, v{vL}")
    A(f"v_lshlrev_b32 v13, 2, v13")
    A(f"v_add_u32 v13, {L_OB}, v13")
    g.lbl("L_opoll")
    for i in range(4):
        A(f"buffer_load_dwordx4 v[{16+4*i}:{19+4*i}], v{vL16}, s[{sWS}:{sWS+3}], s{sO_IN} offen offset:{1024*i} sc1")
    A("s_waitcnt vmcnt(0)")
    check_tags(g, [19, 23, 27, 31], "L_opoll")
    tstamp(g, 1)
    A(f"v_max3_f32 v32, v18, v22, v26")
    A(f"v_max_f32 v32, v32, v30")
    A(f"v_mov_b32 v33, v32")
    g.nop(2)
    A(f"v_permlane32_swap_b32 v32, v33")
    g.nop(1)
    A(f"v_max_f32 v32, v32, v33")
    for i in range(4): A(f"v_sub_f32 v{18+4*i}, v{18+4*i}, v32")
    for i in range(4): A(f"v_exp_f32 v{18+4*i}, v{18+4*i}")
    A(f"v_mul_f32 v34, v16, v18")
    A(f"v_mul_f32 v35, v17, v18")
    A(f"v_add_f32 v36, v18, v22")
    for i in range(1, 4):
        A(f"v_fmac_f32 v34, v{16+4*i}, v{18+4*i}")
        A(f"v_fmac_f32 v35, v{17+4*i}, v{18+4*i}")
    A(f"v_add_f32 v36, v36, v26")
    A(f"v_add_f32 v36, v36, v30")
    for i in range(3): A(f"v_mov_b32 v{37+i}, v{34+i}")
    g.nop(2)
    for i in range(3): A(f"v_permlane32_swap_b32 v{34+i}, v{37+i}")
    g.nop(1)
    A(f"v_add_f32 v36, v36, v39")
    A(f"v_rcp_f32 v36, v36")
    A(f"v_add_f32 v34, v34, v37")
    A(f"v_add_f32 v35, v35, v38")
    A(f"v_mul_f32 v34, v34, v36")
    A(f"v_mul_f32 v35, v35, v36")
    A(f"v_cvt_pk_bf16_f32 v34, v34, v35")
    A(f"ds_write_b32 v13, v34")
    A("s_waitcnt lgkmcnt(0)")
    A("s_barrier")
    stamp(g, 7)
    A(f"s_cmp_eq_u32 s{sROLE}, 2")
    A("s_cbranch_scc1 L_ffn")
    A(f"s_cmp_lt_u32 s{sRED}, 112")
    A("s_cbranch_scc0 L_fin")
    A("s_branch L_gchk")
    g.lbl("L_gretry")
    A(f"s_add_u32 s{sT0}, s{sPX}, {3*1792}")
    A(f"buffer_load_dwordx4 v[{vPAR}:{vPAR+3}], v{vPA1}, s[{sWS}:{sWS+3}], s{sPX} offen sc1")
    A(f"buffer_load_dwordx4 v[{vPAR+4}:{vPAR+7}], v{vPA1}, s[{sWS}:{sWS+3}], s{sT0} offen sc1")
    A("s_waitcnt vmcnt(0)")
    g.lbl("L_gchk")
    check_tags(g, [vPAR+3, vPAR+7], "L_gretry")
    A(f"v_and_b32 v12, 1, v{vL}")
    A(f"v_cmp_eq_u32 vcc, 1, v12")
    g.nop(2)
    A(f"v_cndmask_b32 v100, v{vPAR}, v{vPAR+1}, vcc")
    A(f"v_cndmask_b32 v101, v{vPAR+4}, v{vPAR+5}, vcc")
    unpack(g, 100, 120, 121)
    unpack(g, 101, 122, 123)
    unpack(g, vPAR+8, 124, 125)
    def reduce_stage(nld, base_sreg, lab):
        A(f"s_add_u32 s{sT1}, s{base_sreg}, 4096")
        g.lbl(lab)
        for i in range(nld):
            A(f"buffer_load_dwordx4 v[{16+4*i}:{19+4*i}], v{vL16}, s[{sWS}:{sWS+3}], s{base_sreg if i < 4 else sT1} offen offset:{(i%4)*1024} sc1")
        A("s_waitcnt vmcnt(0)")
        check_tags(g, [17+2*i for i in range(2*nld)], lab)
        tstamp(g, 2 if nld == 8 else 3)
        regs = [16+4*i for i in range(nld)]
        while len(regs) > 1:
            nxt = []
            for i in range(0, len(regs)-1, 2):
                A(f"v_add_f32 v{regs[i]}, v{regs[i]}, v{regs[i+1]}")
                A(f"v_add_f32 v{regs[i]+2}, v{regs[i]+2}, v{regs[i+1]+2}")
                nxt.append(regs[i])
            if len(regs) % 2: nxt.append(regs[-1])
            regs = nxt
        g.nop(1)
        A(f"v_add_f32 v16, v16, v16 row_ror:8 {DPP}")
        A(f"v_add_f32 v18, v18, v18 row_ror:8 {DPP}")
        for sw in ("v_permlane16_swap_b32", "v_permlane32_swap_b32"):
            A(f"v_mov_b32 v17, v16"); A(f"v_mov_b32 v19, v18")
            g.nop(2)
            A(f"{sw} v16, v17"); A(f"{sw} v18, v19")
            g.nop(1)
            A(f"v_add_f32 v16, v16, v17"); A(f"v_add_f32 v18, v18, v19")
    def resid(gate):
        rnd2(g, 16, 18, 17)
        A(f"v_mul_f32 v16, v16, v{gate}")
        A(f"v_mul_f32 v18, v18, v{gate+1}")
        rnd2(g, 16, 18, 17)
        A(f"v_add_f32 v124, v124, v16")
        A(f"v_add_f32 v125, v125, v18")
        A(f"v_cvt_pk_bf16_f32 v126, v124, v125")
    A(f"s_lshl_b32 s{sT0}, s{sRED}, 13")
    A(f"s_add_u32 s{sT0}, s{sT0}, {WS_Y}")
    A(f"v_mov_b32 v127, s{sTAG}")
    A(f"v_lshlrev_b32 v13, 1, v{vPA2}")
    A(f"s_lshl_b32 s{sT2}, s{sXO}, 1")
    A(f"s_add_u32 s{sT2}, s{sT2}, {WS_X1}")
    reduce_stage(8, sT0, "L_ypoll")
    resid(120)
    A("s_mov_b64 exec, 0xff")
    A(f"buffer_store_dwordx2 v[126:127], v13, s[{sWS}:{sWS+3}], s{sT2} offen sc1")
    A("s_mov_b64 exec, -1")
    stamp(g, 8)
    unpack(g, 126, 124, 125)
    A(f"s_mul_i32 s{sT0}, s{sRED}, {56*128}")
    A(f"s_add_u32 s{sT0}, s{sT0}, {WS_Z}")
    reduce_stage(7, sT0, "L_zpoll")
    resid(122)
    A("s_mov_b64 exec, 0xff")
    A(f"buffer_store_dword v126, v{vPA2}, s[{sA}:{sA+3}], s{sXO} offen")
    stamp(g, 9)
    A(f"s_cmp_eq_u32 s{sRED}, 0")
    A("s_cbranch_scc0 L_fin")
    A("s_mov_b64 exec, 1")
    A(f"v_mov_b32 v{vT}, 0")
    A(f"buffer_store_dword v127, v{vT}, s[{sWS}:{sWS+3}], 0 offen sc1")

    A("s_branch L_fin")
    g.lbl("L_early")
    A(f"s_mov_b32 s{sROLE}, 1")
    A(f"s_sub_u32 s{sIDX}, s2, 128")
    A(f"v_lshrrev_b32 v{vT}, 3, v{vL}")
    A(f"v_and_b32 v{vT+1}, 7, v{vL}")
    A(f"s_cmp_lt_u32 s{sN}, 24")
    A("s_cbranch_scc1 L_ed_q")
    A(f"s_sub_u32 s{sIDX}, s{sN}, 24")
    A(f"s_lshl_b32 s{sIDX}, s{sIDX}, 2")
    A(f"s_lshr_b32 s{sT1}, s{sS}, 1")
    A(f"s_add_u32 s{sIDX}, s{sIDX}, s{sT1}")
    A(f"s_and_b32 s{sT2}, s{sS}, 1")
    A(f"s_lshl_b32 s{sT2}, s{sT2}, 5")
    A(f"s_add_u32 s{sIDX}, s{sIDX}, s{sT2}")
    A(f"s_cmp_lt_u32 s{sIDX}, 42")
    A(f"s_cselect_b32 s{sROLE}, 4, 0")
    A("s_cbranch_scc0 L_kload")
    srd(g, sB, P_C, 3584)
    A(f"s_lshl_b32 s{sT0}, s{sWAVE}, 10")
    A(f"buffer_load_dwordx4 v[16:19], v{vL16}, s[{sB}:{sB+3}], s{sT0} offen")
    srd(g, sA, P_WM, 448*5376)
    A(f"v_mul_u32_u24 v{vDM}, 5376, v{vT}")
    A(f"s_mov_b32 s{sSTEP}, {8*5376}")
    A("s_branch L_ed_go")
    g.lbl("L_ed_q")
    srd(g, sB, P_X, 3584)
    A(f"s_mul_i32 s{sT0}, s{sWAVE}, 896")
    A(f"v_mov_b32 v{vT+2}, 0x100000")
    A(f"v_cndmask_b32 v{vT+2}, v{vT+2}, v{vL16}, s[{sM56}:{sM56+1}]")
    A(f"buffer_load_dwordx4 v[16:19], v{vT+2}, s[{sB}:{sB+3}], s{sT0} offen")
    srd(g, sA, P_WQ, 448*8192)
    A(f"v_lshlrev_b32 v{vDM}, 13, v{vT}")
    A(f"s_mov_b32 s{sSTEP}, {8*8192}")
    g.lbl("L_ed_go")
    A(f"v_lshl_add_u32 v{vDM}, v{vT+1}, 4, v{vDM}")
    A(f"s_lshl_b32 s{sSTART}, s{sIDX}, 7")
    A(f"s_mul_i32 s{sT0}, s{sWAVE}, 7")
    A(f"s_mul_i32 s{sT1}, s{sT0}, s{sSTEP}")
    A(f"s_add_u32 s{sSTART}, s{sSTART}, s{sT1}")
    A(f"s_lshl_b32 s{sLDS}, s{sT0}, 10")
    A(f"s_add_u32 s{sLDS}, s{sLDS}, {L_IMG}")
    dma7(g, polW, VM(g, 0))
    srd(g, sWS, P_WS, WS_SIZE)
    A(f"v_mov_b32 v{vT}, 0")
    A(f"buffer_load_dword v14, v{vT}, s[{sWS}:{sWS+3}], 0 offen sc1")
    A(f"v_mov_b32 v{vT+1}, {L_FLAG}")
    A(f"ds_write_b32 v{vT+1}, v{vT} offset:4")
    A("s_waitcnt lgkmcnt(0)")
    A("s_barrier")
    A("s_branch L_kload")

    g.lbl("L_hook")
    A(f"s_cmp_lt_u32 s{sWAVE}, 4")
    A("s_cbranch_scc0 L_p1")
    A(f"s_waitcnt vmcnt(17)")
    for i in range(4):
        unpack(g, 16+i, 24+2*i, 25+2*i)
    A(f"s_cmp_eq_u32 s{sROLE}, 1")
    A("s_cbranch_scc1 L_p_ln")
    for i in range(8): A(f"v_mul_f32 v{32+i}, {f2u(-LOG2E):#x}, v{24+i}")
    for i in range(8): A(f"v_exp_f32 v{32+i}, v{32+i}")
    for i in range(8): A(f"v_add_f32 v{32+i}, 1.0, v{32+i}")
    for i in range(8): A(f"v_rcp_f32 v{32+i}, v{32+i}")
    for i in range(8): A(f"v_mul_f32 v{24+i}, v{24+i}, v{32+i}")
    A(f"s_lshl_b32 s{sT2}, s{sWAVE}, 10")
    A(f"s_add_u32 s{sT2}, s{sT2}, {L_A}")
    for i in range(4): A(f"v_cvt_pk_bf16_f32 v{24+i}, v{24+2*i}, v{25+2*i}")
    A(f"v_add_u32 v{vT}, s{sT2}, v{vL16}")
    A(f"ds_write_b128 v{vT}, v[24:27]")
    A("s_branch L_p1")
    g.lbl("L_p_ln")
    layernorm(g, 24, vT, vT+1, vT+2)
    g.lbl("L_p1")
    A(f"s_waitcnt vmcnt(9) lgkmcnt(0)")
    A("s_barrier")
    A(f"s_cmp_lt_u32 s{sWAVE}, 4")
    A("s_cbranch_scc0 L_k1")
    A(f"v_readfirstlane_b32 s{sTAG}, v14")
    A(f"s_add_u32 s{sTAG}, s{sTAG}, 0x9e3779b9")
    A(f"v_lshrrev_b32 v{vT+2}, 2, v{vJ}")
    A(f"v_lshl_add_u32 v{vT+2}, v{vGR}, 3, v{vT+2}")
    A(f"v_lshlrev_b32 v{vT+2}, 7, v{vT+2}")
    A(f"v_and_b32 v{vT+3}, 3, v{vL}")
    A(f"v_lshl_add_u32 v{vT+2}, v{vT+3}, 3, v{vT+2}")
    A(f"s_lshl_b32 s{sT2}, s{sWAVE}, 5")
    A(f"s_add_u32 s{sT2}, s{sT2}, {L_IMG}")
    A(f"v_add_u32 v{vT+2}, s{sT2}, v{vT+2}")
    for ks in range(14):
        r = 64 + 4*ks
        A(f"ds_read_b64_tr_b16 v[{r}:{r+1}], v{vT+2} offset:{ks*4096}")
        A(f"ds_read_b64_tr_b16 v[{r+2}:{r+3}], v{vT+2} offset:{ks*4096+512}")
        if ks % 4 == 3: A("s_waitcnt lgkmcnt(6)")
    A(f"s_cmp_eq_u32 s{sROLE}, 1")
    A("s_cbranch_scc1 L_p_q")
    A(f"s_call_b64 s[{sRET}:{sRET+1}], L_svc_mm")
    A("s_branch L_k1")
    g.lbl("L_p_q")
    A(f"v_lshlrev_b32 v13, 5, v{vL}")
    A(f"v_mov_b32 v{vT}, {WS_SIZE}")
    A(f"v_cndmask_b32 v13, v{vT}, v13, s[{sM56}:{sM56+1}]")
    A(f"s_mul_i32 s{sXO}, s{sWAVE}, {MB}")
    A(f"s_add_u32 s{sXO}, s{sXO}, {WS_M}")
    A(f"s_mov_b32 s{sSV}, 1")
    A("s_branch L_k1")

    g.lbl("L_svc")
    A(f"s_mov_b32 s{sSV}, 0")
    for i, r in enumerate((32, 33, 36, 37)):
        unpack(g, r, 56+2*i, 57+2*i)
        unpack(g, r+8, 48+2*i, 49+2*i)
    for i in range(8): A(f"v_add_f32 v{48+i}, 1.0, v{48+i}")
    for i in range(0, 8, 2): rnd2(g, 48+i, 49+i, vT)
    modulate_pack(g, 24, 48, 56, 24, vT)
    A(f"s_mul_i32 s{sT2}, s{sWAVE}, 896")
    A(f"s_add_u32 s{sT2}, s{sT2}, {L_A}")
    A(f"v_add_u32 v{vT}, s{sT2}, v{vL16}")
    A(f"s_mov_b64 exec, s[{sM56}:{sM56+1}]")
    A(f"ds_write_b128 v{vT}, v[24:27]")
    A("s_mov_b64 exec, -1")
    A("s_waitcnt lgkmcnt(0)")
    lds_inc(g, 4)
    lds_spin(g, 4, 4, "L_p2spin")
    g.lbl("L_svc_mm")
    stamp(g, 1)
    A(f"v_mul_u32_u24 v{vT+2}, 896, v{vT+3}")
    A(f"v_lshl_add_u32 v{vT+1}, v{vGR}, 4, v{vT+2}")
    A(f"v_add_u32 v{vT+1}, {L_A}, v{vT+1}")
    A("s_waitcnt lgkmcnt(0)")
    AF = lambda ks: (20 + 4*ks) if ks < 11 else (120 + 4*(ks-11)) if ks < 13 else 20
    for ks in range(13):
        A(f"ds_read_b128 v[{AF(ks)}:{AF(ks)+3}], v{vT+1} offset:{64*ks}")
    for ks in range(14):
        if ks == 1:
            A(f"ds_read_b128 v[{AF(13)}:{AF(13)+3}], v{vT+1} offset:{64*13}")
        A(f"s_waitcnt lgkmcnt({12 if ks == 0 else 13-ks})")
        c = "0" if ks == 0 else "v[16:19]"
        A(f"v_mfma_f32_16x16x32_bf16 v[16:19], v[{64+4*ks}:{67+4*ks}], v[{AF(ks)}:{AF(ks)+3}], {c}")
    A(f"s_cmp_eq_u32 s{sROLE}, 1")
    A(f"s_mov_b32 s{sT2}, {MB}")
    A(f"s_cselect_b32 s{sT2}, 16384, s{sT2}")
    A(f"s_mov_b32 s{sT3}, {WS_M}")
    A(f"s_cselect_b32 s{sT3}, {WS_Q}, s{sT3}")
    A(f"s_lshl_b32 s{sLDS}, s{sIDX}, 8")
    A(f"s_add_u32 s{sT3}, s{sT3}, s{sLDS}")
    A(f"s_lshl_b32 s{sLDS}, s{sWAVE}, 6")
    A(f"s_add_u32 s{sT3}, s{sT3}, s{sLDS}")
    A(f"v_mul_u32_u24 v{vT+1}, s{sT2}, v{vT+3}")
    A(f"v_lshl_add_u32 v{vT+1}, v{vGR}, 4, v{vT+1}")
    A(f"v_mov_b32 v22, 0")
    A(f"v_mov_b32 v23, s{sTAG}")
    A(f"v_cvt_pk_bf16_f32 v20, v16, v17")
    A(f"v_cvt_pk_bf16_f32 v21, v18, v19")
    A(f"s_mov_b32 exec_lo, 0x000f000f")
    A(f"s_mov_b32 exec_hi, 0x000f000f")
    A(f"buffer_store_dwordx4 v[20:23], v{vT+1}, s[{sWS}:{sWS+3}], s{sT3} offen sc1")
    A("s_mov_b64 exec, -1")
    stamp(g, 2)
    A(f"s_setpc_b64 s[{sRET}:{sRET+1}]")

    g.lbl("L_md2")
    A(f"s_cmp_eq_u32 s{sROLE}, 8")
    A("s_cbranch_scc1 L_md_p")
    A(f"s_cmp_lt_u32 s{sWAVE}, 4")
    A("s_cbranch_scc0 L_ld_done")
    srd(g, sA, P_WD, 1792*896)
    A(f"s_mul_i32 s{sSTART}, s{sIDX}, 28672")
    A(f"s_mul_i32 s{sLDS}, s{sWAVE}, 7168")
    A(f"s_add_u32 s{sSTART}, s{sSTART}, s{sLDS}")
    A(f"s_add_u32 s{sLDS}, s{sLDS}, {L_WD}")
    A("s_branch L_md_go")
    g.lbl("L_md_p")
    srd(g, sA, P_WG, 448*3584)
    A(f"s_and_b32 s{sT1}, s{sIDX}, 1")
    A(f"s_cselect_b32 s{sA}, s{P_WU}, s{P_WG}")
    A(f"s_cselect_b32 s{sA+1}, s{P_WU+1}, s{P_WG+1}")
    A(f"s_lshr_b32 s{sT1}, s{sIDX}, 1")
    A(f"s_lshl_b32 s{sT1}, s{sT1}, 7")
    A(f"s_mul_i32 s{sSTART}, s{sWAVE}, {56*3584}")
    A(f"s_add_u32 s{sSTART}, s{sSTART}, s{sT1}")
    A(f"s_mov_b32 s{sSTEP}, {8*3584}")
    A(f"s_mov_b32 s{sLDS}, {L_PD}")
    A(f"v_lshrrev_b32 v{vDM}, 3, v{vL}")
    A(f"v_mul_u32_u24 v{vDM}, 3584, v{vDM}")
    A(f"v_and_b32 v{vT}, 7, v{vL}")
    A(f"v_lshl_add_u32 v{vDM}, v{vT}, 4, v{vDM}")
    g.lbl("L_md_go")
    dma7(g, polP, VM(g, W, W))
    A("s_branch L_ld_done")

    g.lbl("L_parF")
    A(f"s_cmp_lt_u32 s{sWAVE}, 4")
    A("s_cbranch_scc0 L_par_done")
    A(f"v_lshlrev_b32 v{vPA1}, 5, v{vL}")
    A(f"v_mov_b32 v{vT}, {WS_SIZE}")
    A(f"v_cndmask_b32 v{vPA1}, v{vT}, v{vPA1}, s[{sM56}:{sM56+1}]")
    A(f"s_mul_i32 s{sXO}, s{sWAVE}, {MB}")
    A(f"s_add_u32 s{sXO}, s{sXO}, {WS_M + 3*1792}")
    for i, off in enumerate((0, 16, 1792, 1808)):
        A(f"buffer_load_dwordx4 v[{vPAR+4*i}:{vPAR+4*i+3}], v{vPA1}, s[{sWS}:{sWS+3}], s{sXO} offen offset:{off} sc1")
    A("s_branch L_par_done")
    g.lbl("L_par7")
    A(f"s_cmp_lt_u32 s{sRED}, 112")
    A("s_cbranch_scc0 L_par_done")
    A(f"s_mul_i32 s{sRB}, s{sRED}, 2341")
    A(f"s_lshr_b32 s{sRB}, s{sRB}, 16")
    A(f"s_mul_i32 s{sT0}, s{sRB}, 28")
    A(f"s_sub_u32 s{sT0}, s{sRED}, s{sT0}")
    A(f"s_mul_i32 s{sT2}, s{sRB}, 896")
    A(f"s_lshl_b32 s{sT3}, s{sT0}, 5")
    A(f"s_add_u32 s{sXO}, s{sT2}, s{sT3}")
    srd(g, sB, P_X, 3584)
    srd(g, sA, P_OUT, 3584)
    A(f"v_and_b32 v{vPA2}, 7, v{vL}")
    A(f"v_lshlrev_b32 v{vPA2}, 2, v{vPA2}")
    A(f"buffer_load_dword v{vPAR+8}, v{vPA2}, s[{sB}:{sB+3}], s{sXO} offen")
    A(f"buffer_load_dword v{vPAR+9}, v{vPA2}, s[{sA}:{sA+3}], s{sXO} offen")
    A(f"v_bfe_u32 v{vPA1}, v{vL}, 1, 2")
    A(f"v_lshlrev_b32 v{vPA1}, 4, v{vPA1}")
    A(f"s_mul_i32 s{sT2}, s{sRB}, {MB}")
    A(f"s_lshl_b32 s{sT3}, s{sT0}, 6")
    A(f"s_add_u32 s{sPX}, s{sT2}, s{sT3}")
    A(f"s_add_u32 s{sPX}, s{sPX}, {WS_M + 2*1792}")
    A(f"s_add_u32 s{sT0}, s{sPX}, {3*1792}")
    A(f"buffer_load_dwordx4 v[{vPAR}:{vPAR+3}], v{vPA1}, s[{sWS}:{sWS+3}], s{sPX} offen sc1")
    A(f"buffer_load_dwordx4 v[{vPAR+4}:{vPAR+7}], v{vPA1}, s[{sWS}:{sWS+3}], s{sT0} offen sc1")
    A("s_branch L_par_done")
    g.lbl("L_fin")
    flush_stamps(g, NSTAMP)
    g.lbl("L_end")
    A("s_endpgm")
    g.L += ['.section .rodata,"a"', ".p2align 6", f".amdhsa_kernel {NAME}_kernel",
            "  .amdhsa_next_free_vgpr 256", "  .amdhsa_next_free_sgpr 102", "  .amdhsa_accum_offset 256",
            "  .amdhsa_group_segment_fixed_size 0", "  .amdhsa_kernarg_size 112", "  .amdhsa_user_sgpr_count 2",
            "  .amdhsa_user_sgpr_kernarg_segment_ptr 1", "  .amdhsa_system_sgpr_workgroup_id_x 1", ".end_amdhsa_kernel"]
    return "\n".join(g.L) + "\n"

if __name__ == "__main__":
    out = sys.argv[1] if len(sys.argv) > 1 else f"cdna_kernels/{NAME}.s"
    opt = {}
    for a in sys.argv[2:]:
        k, val = a.split("=", 1)
        try: val = int(val)
        except ValueError: val = (" " + val.replace("+", " ")) if val else ""
        opt[k] = val
    open(out, "w").write(build(opt))
```

```python
import sys, math, struct

NAME = "adaLN_cond__gqa_block_cached__geglu_ffn__decode"

WS_E   = 0x0
WS_X1  = 0x300000
WS_M   = 0x5000
MB = 10752
WS_Q   = 0x10000
WS_O   = 0x20000
WS_Y   = 0x120000
WS_Z   = 0x200000
WS_STAMP = 0x400000
WS_SIZE = 0x800000

L_WO = 0
L_WG = 57344
L_WU = L_WG + 28672
L_WD = L_WU + 28672
L_IMG = L_WG
L_A  = L_WD + 28672
L_Q  = L_A + 3584
L_P  = L_Q + 1024
L_RED = L_P + 2048
L_OL = L_WG
L_PD = L_WU + 20480
L_OB = L_RED + 128
L_G  = L_OB + 128
L_RB = L_G + 256
L_FLAG = L_RB + 512
L_END = L_FLAG + 64

LOG2E = 1.4426950408889634
def f2u(x): return struct.unpack("<I", struct.pack("<f", x))[0]

class G:
    def __init__(self, opt):
        self.L = []; self.o = opt; self.lab = 0
    def A(self, s): self.L.append("    " + s)
    def lbl(self, s): self.L.append(s + ":")
    def newlab(self, p="L"):
        self.lab += 1
        return f"{p}_{self.lab}"
    def nop(self, n):
        while n > 0:
            k = min(n, 16)
            self.A(f"s_nop {k-1}")
            n -= k

sWAVE = 3
sK, sV, sWS, sA, sB = 4, 8, 12, 16, 20
sS, sB_, sKVH, sN = 24, 25, 26, 27
sTAG, sRETRY = 28, 29
sKB, sSV = 30, 31
sROT = 32
sT0, sT1, sT2, sT3 = 33, 34, 35, 36
sIDX = 37
sM1, sM2, sM3 = 38, 40, 42
sM48 = 44
sQ1, sQ2, sQ3 = 46, 48, 50
sR8 = 52
sSTART, sSTEP, sLDS = 54, 55, 56
sPLO, sPHI = 57, 58
sC = 59
sHI = 60
sROLE = 61
sRED = 62
sGRP = 63
P_X, P_K, P_V, P_WQ, P_WO, P_BX, P_WG, P_WU, P_WD, P_C, P_WM, P_OUT, P_DBG, P_WS = [64 + 2*i for i in range(14)]
sPX = 74
sXO = 75
sRET = 0
sST = 88
sO_DST, sY_DST = 66, 67
sO_IN, sRB = 68, 69
sMH = 70
sLN = 84

vTID, vL, vJ, vGR, vKO, vVO, vL16, vDM = 0, 1, 2, 3, 4, 5, 6, 7
vE = 8
vT = 9
vQF = 16
vSD = 48
vVE = 64
vK = 128
vPAR = 240
vPA1, vPA2 = 56, 57
vOLW, vOLR, vYO, vOBA = 58, 59, 60, 61
vSC = 62

def srd(g, r, ptr, size):
    g.A(f"s_mov_b32 s{r}, s{ptr}")
    g.A(f"s_mov_b32 s{r+1}, s{ptr+1}")
    g.A(f"s_mov_b32 s{r+2}, {size}")
    g.A(f"s_mov_b32 s{r+3}, 0x20000")

DPP = "row_mask:0xf bank_mask:0xf"
def wave_reduce(g, op, regs, tmps, swaps=("v_permlane16_swap_b32", "v_permlane32_swap_b32")):
    n = len(regs)
    for pat in ("quad_perm:[1,0,3,2]", "quad_perm:[2,3,0,1]", "row_half_mirror", "row_mirror"):
        g.nop(max(0, 2 - (n - 1)))
        for r in regs:
            g.A(f"{op} v{r}, v{r}, v{r} {pat} {DPP}")
    for sw in swaps:
        for r, t in zip(regs, tmps):
            g.A(f"v_mov_b32 v{t}, v{r}")
        g.nop(2)
        for r, t in zip(regs, tmps):
            g.A(f"{sw} v{r}, v{t}")
        g.nop(1)
        for r, t in zip(regs, tmps):
            g.A(f"{op} v{r}, v{r}, v{t}")

def rnd2(g, a, b, t):
    g.A(f"v_cvt_pk_bf16_f32 v{t}, v{a}, v{b}")
    g.A(f"v_lshlrev_b32 v{a}, 16, v{t}")
    g.A(f"v_and_b32 v{b}, s{sHI}, v{t}")
def rnd1(g, a):
    g.A(f"v_cvt_pk_bf16_f32 v{a}, v{a}, v{a}")
    g.A(f"v_lshlrev_b32 v{a}, 16, v{a}")
def unpack(g, src, lo, hi):
    g.A(f"v_lshlrev_b32 v{lo}, 16, v{src}")
    g.A(f"v_and_b32 v{hi}, s{sHI}, v{src}")

def red63(g, r, fill):
    fill = list(fill)
    def pad(n):
        for _ in range(n):
            if fill: g.A(fill.pop(0))
            else:
                g.nop(n - _); break
    for pat in ("quad_perm:[1,0,3,2] " + DPP, "quad_perm:[2,3,0,1] " + DPP, "row_half_mirror " + DPP, "row_mirror " + DPP,
                "row_bcast:15 row_mask:0xa bank_mask:0xf", "row_bcast:31 row_mask:0xc bank_mask:0xf"):
        pad(2)
        g.A(f"v_add_f32 v{r}, v{r}, v{r} {pat}")
    pad(1)
    g.A(f"v_readlane_b32 s{sLN}, v{r}, 63")
    pad(2)
    for f in fill: g.A(f)

def pk(op, d, a, b, bc=False, neg=False):
    m = ""
    if bc: m += " op_sel_hi:[1,0]"
    if neg: m += " neg_lo:[0,1] neg_hi:[0,1]"
    return f"v_pk_{op}_f32 v[{d}:{d+1}], v[{a}:{a+1}], v[{b}:{b+1}]{m}"

def rnd2s(a, b, t):
    return [f"v_cvt_pk_bf16_f32 v{t}, v{a}, v{b}", f"v_lshlrev_b32 v{a}, 16, v{t}", f"v_and_b32 v{b}, s{sHI}, v{t}"]

def layernorm(g, X, T, E, n, presel=()):
    A = g.A
    A(pk("add", T, X, X+2)); A(pk("add", T+2, X+4, X+6)); A(pk("add", T, T, T+2))
    A(f"v_add_f32 v{T}, v{T}, v{T+1}")
    red63(g, T, presel)
    A(f"v_mov_b32 v{T+8}, {f2u(1.0/448):#x}")
    A(f"v_mul_f32 v{T}, s{sLN}, v{T+8}")
    A(pk("add", T+2, X, T, True, True)); A(pk("add", T+4, X+2, T, True, True))
    A(f"v_pk_mul_f32 v[{T+6}:{T+7}], v[{T+2}:{T+3}], v[{T+2}:{T+3}]")
    A(pk("add", T+2, X+4, T, True, True))
    A(f"v_pk_fma_f32 v[{T+6}:{T+7}], v[{T+4}:{T+5}], v[{T+4}:{T+5}], v[{T+6}:{T+7}]")
    A(pk("add", T+4, X+6, T, True, True))
    A(f"s_mov_b64 exec, s[{sM48}:{sM48+1}]")
    A(f"v_pk_fma_f32 v[{T+6}:{T+7}], v[{T+2}:{T+3}], v[{T+2}:{T+3}], v[{T+6}:{T+7}]")
    A(f"v_pk_fma_f32 v[{T+6}:{T+7}], v[{T+4}:{T+5}], v[{T+4}:{T+5}], v[{T+6}:{T+7}]")
    A("s_mov_b64 exec, -1")
    A(f"v_add_f32 v{T+6}, v{T+6}, v{T+7}")
    fill = [f"v_cvt_pk_bf16_f32 v{T}, v{T}, v{T}", f"v_lshlrev_b32 v{T}, 16, v{T}"]
    fill += [pk("add", E+i, E+i, T, True, True) for i in range(0, n, 2)]
    for i in range(0, n, 2): fill += rnd2s(E+i, E+i+1, T+2)
    red63(g, T+6, fill)
    A(f"v_mul_f32 v{T+6}, s{sLN}, v{T+8}")
    rnd1(g, T+6)
    A(f"v_add_f32 v{T+6}, {f2u(1e-5):#x}, v{T+6}")
    rnd1(g, T+6)
    A(f"v_sqrt_f32 v{T+6}, v{T+6}")
    g.nop(1)
    rnd1(g, T+6)
    A(f"v_rcp_f32 v{T+6}, v{T+6}")
    g.nop(1)
    for i in range(0, n, 2): A(pk("mul", E+i, E+i, T+6, True))

def modulate_pack(g, X, OC, SH, D, t, n):
    for i in range(0, n, 2): g.A(pk("mul", X+i, X+i, OC+i))
    for i in range(0, n, 2): rnd2(g, X+i, X+i+1, t)
    for i in range(0, n, 2): g.A(pk("add", X+i, X+i, SH+i))
    for i in range(0, n, 2): g.A(f"v_cvt_pk_bf16_f32 v{D+i//2}, v{X+i}, v{X+i+1}")

def retry_branch(g, fail_label):
    ok = g.newlab("L_ok")
    g.A(f"s_cbranch_vccz {ok}")
    g.A(f"s_sub_u32 s{sRETRY}, s{sRETRY}, 1")
    g.A(f"s_cbranch_scc0 {fail_label}")
    g.A(f"s_mov_b32 s{sRETRY}, 0")
    g.lbl(ok)

def tags_ab(g, ra, rb):
    t = vT
    g.A(f"v_xor_b32 v{t}, s{sTAG}, v{rb[0]}")
    for r in rb[1:]: g.A(f"v_bitop3_b32 v{t}, v{t}, v{r}, s{sTAG} bitop3:0xf6")
    g.A(f"v_cndmask_b32 v{t}, 0, v{t}, s[{sM48}:{sM48+1}]")
    for r in ra: g.A(f"v_bitop3_b32 v{t}, v{t}, v{r}, s{sTAG} bitop3:0xf6")
    g.A(f"v_cmp_ne_u32 vcc, 0, v{t}")

class VM:
    def __init__(self, g, W, n0=0):
        self.g, self.W, self.n = g, W, n0
    def pre(self):
        if self.W and self.n >= self.W:
            self.g.A(f"s_waitcnt vmcnt({self.W-1})")
            self.n = self.W - 1
        self.n += 1

def dma7(g, pol, vm, srd_=None):
    srd_ = srd_ or sA
    for i in range(7):
        vm.pre()
        g.A(f"s_mov_b32 m0, s{sLDS}")
        g.A(f"s_add_u32 s{sLDS}, s{sLDS}, 1024")
        g.A(f"buffer_load_dwordx4 v{vDM}, s[{srd_}:{srd_+3}], s{sSTART} offen{pol} lds")
        g.A(f"s_add_u32 s{sSTART}, s{sSTART}, s{sSTEP}")

def k_tile(g, vm, pol, t, lo=0, hi=8):
    g.A(f"s_add_u32 s{sT0}, s{sROT}, {t}")
    g.A(f"s_and_b32 s{sT0}, s{sT0}, 3")
    g.A(f"s_lshl_b32 s{sT0}, s{sT0}, 13")
    g.A(f"s_add_u32 s{sT0}, s{sT0}, s{sKB}")
    g.A(f"s_add_u32 s{sT1}, s{sT0}, 4096")
    for jj in range(lo, hi):
        vm.pre()
        r = vK + 32*t + 4*jj
        kq, blk = jj >> 1, jj & 1
        so = sT0 if kq < 2 else sT1
        g.A(f"buffer_load_dwordx4 v[{r}:{r+3}], v{vKO}, s[{sK}:{sK+3}], s{so} offen offset:{(kq&1)*2048 + blk*256}{pol}")

def v_dst(u): return vVE + 32*u

def v_loads(g, vm, pol, units):
    for u in units:
        gam, eta = u >> 1, u & 1
        if True:
            g.A(f"s_add_u32 s{sT0}, s{sROT}, {gam}")
            g.A(f"s_and_b32 s{sT0}, s{sT0}, 1")
            g.A(f"s_lshl_b32 s{sT0}, s{sT0}, 14")
            g.A(f"s_add_u32 s{sT0}, s{sT0}, s{sKB}")
        for r in range(8):
            vm.pre()
            d = v_dst(u) + 4*r
            g.A(f"buffer_load_dwordx4 v[{d}:{d+3}], v{vVO}, s[{sV}:{sV+3}], s{sT0} offen offset:{512*r + 256*eta}{pol}")

def get_tag(g):
    g.A(f"v_readfirstlane_b32 s{sTAG}, v{vE}")
    g.A(f"s_add_u32 s{sTAG}, s{sTAG}, 0x9e3779b9")

def check_tags(g, regs, fail_label, mask=None, t=vT):
    if len(regs) == 1:
        g.A(f"v_cmp_ne_u32 vcc, s{sTAG}, v{regs[0]}")
    else:
        g.A(f"v_xor_b32 v{t}, s{sTAG}, v{regs[0]}")
        for r in regs[1:]:
            g.A(f"v_bitop3_b32 v{t}, v{t}, v{r}, s{sTAG} bitop3:0xf6")
        g.A(f"v_cmp_ne_u32 vcc, 0, v{t}")
    if mask is not None:
        g.A(f"s_and_b64 vcc, vcc, s[{mask}:{mask+1}]")
    ok = g.newlab("L_ok")
    g.A(f"s_cbranch_vccz {ok}")
    g.A(f"s_sub_u32 s{sRETRY}, s{sRETRY}, 1")
    g.A(f"s_cbranch_scc0 {fail_label}")
    g.A(f"s_mov_b32 s{sRETRY}, 0")
    g.lbl(ok)

def lds_spin(g, off, target_sreg_or_imm, lab, sleep=2):
    g.A(f"v_mov_b32 v{vT}, {L_FLAG}")
    g.lbl(lab)
    g.A(f"ds_read_b32 v{vT+1}, v{vT} offset:{off}")
    g.A("s_waitcnt lgkmcnt(0)")
    g.A(f"v_cmp_le_u32 vcc, {target_sreg_or_imm}, v{vT+1}")
    g.A(f"s_cbranch_vccnz {lab}_ok")
    if sleep: g.A(f"s_sleep {sleep}")
    g.A(f"s_branch {lab}")
    g.lbl(lab + "_ok")

def lds_inc(g, off):
    g.A(f"v_mov_b32 v{vT}, {L_FLAG}")
    g.A(f"v_mov_b32 v{vT+1}, 1")
    g.A("s_mov_b64 exec, 1")
    g.A(f"ds_add_u32 v{vT}, v{vT+1} offset:{off}")
    g.A("s_mov_b64 exec, -1")

NSTAMP = 10
def tstamp(g, idx):
    if g.o.get("tst"): stamp(g, idx, True)
def stamp(g, idx, force=False):
    if not g.o.get("stamps"): return
    if g.o.get("tst") and not force and idx in (1, 2, 3, 4): return
    g.A(f"s_memrealtime s[{sST}:{sST+1}]")
    g.A("s_waitcnt lgkmcnt(0)")
    g.A(f"s_mov_b32 s{92+idx}, s{sST}")
def flush_stamps(g, n):
    if not g.o.get("stamps"): return
    if g.o.get("dbg"):
        g.A("s_mov_b64 exec, 1")
        g.A("v_mov_b32 v15, 0")
        g.A(f"s_lshl_b32 s{sT3}, s2, 3")
        g.A(f"s_add_u32 s{sT3}, s{sT3}, s{sWAVE}")
        g.A(f"s_cmp_eq_u32 s{sT3}, 0")
        g.A("s_cbranch_scc1 L_dbg0")
        g.A(f"s_cmp_eq_u32 s{sT3}, {144*8+7}")
        g.A("s_cbranch_scc0 L_end")
        for k, i in enumerate((6, 1, 7, 2, 8, 9)):
            g.A(f"s_sub_u32 s{sT3}, s{92+i}, s92")
            g.A(f"v_mov_b32 v14, s{sT3}")
            g.A(f"global_store_dword v15, v14, s[82:83] offset:{4*k}")
            g.nop(1)
        g.A("s_branch L_end")
        g.lbl("L_dbg0")
        for k, i in enumerate((6, 7, 9, 2, 3, 4, 8)):
            g.A(f"s_sub_u32 s{sT3}, s{92+i}, s92")
            g.A(f"v_mov_b32 v14, s{sT3}")
            g.A(f"global_store_dword v15, v14, s[82:83] offset:{32+4*k}")
            g.nop(1)
        return
    g.A(f"s_lshl_b32 s{sT3}, s2, 3")
    g.A(f"s_add_u32 s{sT3}, s{sT3}, s{sWAVE}")
    g.A(f"s_lshl_b32 s{sT3}, s{sT3}, 6")
    g.A(f"s_add_u32 s{sT3}, s{sT3}, {WS_STAMP}")
    g.A("s_mov_b64 exec, 1")
    g.A("v_mov_b32 v15, 0")
    for i in range(n):
        g.A(f"v_mov_b32 v14, s{92+i}")
        g.A(f"buffer_store_dword v14, v15, s[{sWS}:{sWS+3}], s{sT3} offen offset:{4*i}")
        g.nop(1)

def sel4(g, dst, r0, r1, r2, r3, m1, m2, m3):
    g.A(f"v_cndmask_b32 v{dst}, v{r0}, v{r1}, s[{m1}:{m1+1}]")
    g.A(f"v_cndmask_b32 v{dst}, v{dst}, v{r2}, s[{m2}:{m2+1}]")
    g.A(f"v_cndmask_b32 v{dst}, v{dst}, v{r3}, s[{m3}:{m3+1}]")

def build(opt):
    g = G(opt)
    A = g.A
    polK = opt.get("polK", " nt"); polV = opt.get("polV", " nt"); polW = opt.get("polW", " nt")
    polWO = opt.get("polWO", " nt"); polP = opt.get("polP", " nt")
    W = opt.get("W", 16)
    W2 = opt.get("W2", 24)
    PRIO = opt.get("prio", 1)
    XR = opt.get("XR", 1)
    def prio(p):
        if PRIO: A(f"s_setprio {p}")
    hdr = open(f"cdna_kernels/{NAME}.s.ref").read().split("\n")
    for line in hdr:
        if line.startswith("; @launch"):
            g.L.append(f"; @launch grid=(256,1,1) block=(512,1,1) lds={L_END}")
            break
        g.L.append(line)
    g.L += ['.amdgcn_target "amdgcn-amd-amdhsa--gfx950"', ".text", f".globl {NAME}_kernel", ".p2align 8",
            f".type {NAME}_kernel,@function"]
    g.lbl(f"{NAME}_kernel")
    A("s_cmp_ge_u32 s2, 256")
    A("s_cbranch_scc1 L_end")
    A("s_load_dwordx16 s[64:79], s[0:1], 0")
    A("s_load_dwordx8 s[80:87], s[0:1], 64")
    A("s_load_dwordx2 s[90:91], s[0:1], 104")
    if opt.get("dbg"):
        A("s_memrealtime s[92:93]")
        A("s_load_dwordx2 s[74:75], s[0:1], 96") if False else None
    A(f"s_getpc_b64 s[{sST}:{sST+1}]")
    g.lbl("L_pc")
    A(f"v_lshlrev_b32 v{vT}, 5, v0")
    A(f"v_min_u32 v{vT}, L_end - L_pc - 4, v{vT}")
    A(f"global_load_dword v15, v{vT}, s[{sST}:{sST+1}]")
    prio(3)
    A(f"v_lshrrev_b32 v{vL}, 6, v0")
    A(f"s_and_b32 s{sS}, s2, 7")
    A(f"v_readfirstlane_b32 s{sWAVE}, v{vL}")
    A(f"v_and_b32 v{vL}, 63, v0")
    A(f"v_and_b32 v{vJ}, 15, v0")
    A(f"v_lshrrev_b32 v{vGR}, 4, v{vL}")
    A(f"v_lshrrev_b32 v{vKO}, 2, v{vJ}")
    A(f"v_lshlrev_b32 v{vKO}, 9, v{vKO}")
    A(f"v_lshl_add_u32 v{vKO}, v{vGR}, 6, v{vKO}")
    A(f"v_and_b32 v{vT+3}, 3, v0")
    A(f"v_lshl_add_u32 v{vKO}, v{vT+3}, 4, v{vKO}")
    A(f"v_lshlrev_b32 v{vL16}, 4, v{vL}")
    A(f"s_lshr_b32 s{sN}, s2, 3")
    A(f"s_and_b32 s{sB_}, s{sN}, 3")
    A(f"s_lshr_b32 s{sKVH}, s{sN}, 2")
    A(f"s_lshl_b32 s{sGRP}, s{sB_}, 3")
    A(f"s_add_u32 s{sGRP}, s{sGRP}, s{sKVH}")
    A(f"s_lshl_b32 s{sT0}, s{sGRP}, 21")
    A(f"s_lshl_b32 s{sT1}, s{sS}, 18")
    A(f"s_add_u32 s{sT0}, s{sT0}, s{sT1}")
    A(f"s_lshl_b32 s{sT1}, s{sWAVE}, 15")
    A(f"s_add_u32 s{sKB}, s{sT0}, s{sT1}")
    A(f"s_add_u32 s{sROT}, s{sN}, s{sWAVE}")
    A(f"s_and_b32 s{sROT}, s{sROT}, 3")
    A(f"s_mov_b32 s{sM48}, -1"); A(f"s_mov_b32 s{sM48+1}, 0x0000ffff")
    A(f"s_mov_b32 s{sROLE}, 0")
    A(f"s_mov_b32 s{sK+2}, {64<<20}")
    A(f"s_mov_b32 s{sK+3}, 0x20000")
    A(f"s_cmp_lt_u32 s{sN}, 16")
    A("s_waitcnt lgkmcnt(0)")
    A(f"s_mov_b32 s{sK}, s{P_K}")
    A(f"s_mov_b32 s{sK+1}, s{P_K+1}")
    if not opt.get("noqm"): A("s_cbranch_scc0 L_early")
    g.lbl("L_kload")
    vm = VM(g, W, 1)
    HK = opt.get('HK', 4)
    k_tile(g, vm, polK, 0, 0, HK)
    srd(g, sWS, P_WS, WS_SIZE)
    A(f"v_mov_b32 v{vT}, 0")
    A(f"buffer_load_dword v{vE}, v{vT}, s[{sWS}:{sWS+3}], 0 offen sc1")
    vm.n += 1
    if opt.get("stamps"):
        for i in range(1 if opt.get("dbg") else 0, NSTAMP): A(f"s_mov_b32 s{92+i}, 0")
    if opt.get("dbg"):
        A("s_load_dwordx2 s[82:83], s[0:1], 96")
        A("s_waitcnt lgkmcnt(0)")
    else:
        stamp(g, 0)
    srd(g, sV, P_V, 64 << 20)
    A(f"v_lshlrev_b32 v{vVO}, 12, v{vGR}")
    A(f"v_lshl_add_u32 v{vVO}, v{vJ}, 4, v{vVO}")
    A(f"s_mov_b32 s{sRETRY}, 0x40000")
    A(f"s_mov_b32 s{sM1}, 0xffff0000"); A(f"s_mov_b32 s{sM1+1}, 0")
    A(f"s_mov_b32 s{sM2}, 0"); A(f"s_mov_b32 s{sM2+1}, 0xffff")
    A(f"s_mov_b32 s{sM3}, 0"); A(f"s_mov_b32 s{sM3+1}, 0xffff0000")
    A(f"s_mov_b32 s{sQ1}, 0x22222222"); A(f"s_mov_b32 s{sQ1+1}, 0x22222222")
    A(f"s_mov_b32 s{sQ2}, 0x44444444"); A(f"s_mov_b32 s{sQ2+1}, 0x44444444")
    A(f"s_mov_b32 s{sQ3}, 0x88888888"); A(f"s_mov_b32 s{sQ3+1}, 0x88888888")
    A(f"s_mov_b32 s{sR8}, 0xff00ff00"); A(f"s_mov_b32 s{sR8+1}, 0xff00ff00")
    A(f"s_mov_b32 s{sPLO}, 0x05040100"); A(f"s_mov_b32 s{sPHI}, 0x07060302")
    A(f"s_mov_b32 s{sC}, {f2u(0.0625*LOG2E):#x}")
    A(f"s_mov_b32 s{sHI}, 0xffff0000")
    A(f"s_mov_b32 s{sSV}, 0")
    A(f"s_sub_u32 s{sRED}, s2, 144")
    A(f"s_cselect_b32 s{sRED}, 0xffff, s{sRED}")
    A(f"s_cmp_lg_u32 s{sROLE}, 0")
    A("s_cbranch_scc1 L_hook")
    A(f"s_cmp_lt_u32 s{sN}, 16")
    A("s_cbranch_scc0 L_k1")
    A(f"s_lshr_b32 s{sT1}, s{sS}, 1")
    A(f"s_and_b32 s{sT2}, s{sS}, 1")
    A(f"s_lshl_b32 s{sT2}, s{sT2}, 2")
    A(f"s_add_u32 s{sT1}, s{sT1}, s{sT2}")
    A(f"s_bfe_u32 s{sT3}, s{sN}, 0x20001")
    A(f"s_lshl_b32 s{sT3}, s{sT3}, 3")
    A(f"s_add_u32 s{sT1}, s{sT1}, s{sT3}")
    A(f"s_lshl_b32 s{sIDX}, s{sT1}, 1")
    A(f"s_and_b32 s{sT2}, s{sN}, 1")
    A(f"s_add_u32 s{sIDX}, s{sIDX}, s{sT2}")
    A(f"s_cmp_lt_u32 s{sN}, 8")
    A(f"s_cselect_b32 s{sROLE}, 2, {8 if opt.get('PL', 0) else 0}")
    A(f"s_cmp_lt_u32 s{sT1}, 28")
    A(f"s_cselect_b32 s{sROLE}, s{sROLE}, 0")
    g.lbl("L_k1")
    k_tile(g, vm, polK, 0, HK, 8)
    def svpoll():
        for i, (va, off) in enumerate(((vL16, 0), (13, 0), (vL16, 1792), (13, 1792))):
            A(f"buffer_load_dwordx4 v[{32+4*i}:{35+4*i}], v{va}, s[{sWS}:{sWS+3}], s{sXO} offen offset:{off} sc1")
    def with_poll(name, body):
        A(f"s_cmp_eq_u32 s{sSV}, 0")
        A(f"s_cbranch_scc1 L_a{name}")
        svpoll()
        g.lbl(f"L_a{name}")
        body()
        A(f"s_cmp_eq_u32 s{sSV}, 0")
        A(f"s_cbranch_scc1 L_b{name}")
        A("s_waitcnt vmcnt(8)")
        tags_ab(g, [35, 43], [39, 47])
        A(f"s_cbranch_vccnz L_b{name}")
        A(f"s_call_b64 s[{sRET}:{sRET+1}], L_svc")
        g.lbl(f"L_b{name}")
    P0 = opt.get("P0", 2)
    for t in range(1, 4):
        if t >= P0: with_poll(f"k{t}", lambda: k_tile(g, vm, polK, t))
        else: k_tile(g, vm, polK, t)
    get_tag(g)
    A(f"s_cmp_lg_u32 s{sSV}, 0")
    A("s_cbranch_scc1 L_keep3")
    prio(2)
    g.lbl("L_keep3")
    with_poll("u0", lambda: v_loads(g, VM(g, W, W), polV, [0]))
    def qloads():
        for i in range(2):
            A(f"buffer_load_dwordx4 v[{16+4*i}:{19+4*i}], v{vL16}, s[{sWS}:{sWS+3}], s{sPX} offen offset:{1024*i} sc1")
    A(f"s_lshl_b32 s{sT1}, s{sB_}, 14")
    A(f"s_lshl_b32 s{sT2}, s{sKVH}, 11")
    A(f"s_add_u32 s{sT1}, s{sT1}, s{sT2}")
    A(f"s_add_u32 s{sPX}, s{sT1}, {WS_Q}")
    A(f"s_cmp_lg_u32 s{sSV}, 0")
    A("s_cbranch_scc1 L_noq")
    qloads()
    g.lbl("L_noq")
    with_poll("u1", lambda: v_loads(g, VM(g, W, W), polV, [1]))
    A(f"s_cmp_eq_u32 s{sSV}, 0")
    A("s_cbranch_scc1 L_kdone")
    g.lbl("L_hpoll")
    svpoll()
    A("s_waitcnt vmcnt(0)")
    tags_ab(g, [35, 43], [39, 47])
    retry_branch(g, "L_hpoll")
    A(f"s_call_b64 s[{sRET}:{sRET+1}], L_svc")
    g.lbl("L_kdone")
    prio(1)
    WOL = 0
    def wo_dma(vmx):
        srd(g, sB, P_WO, 4096*896)
        A(f"s_lshr_b32 s{sT2}, s{sWAVE}, 2")
        A(f"s_lshl_b32 s{sT0}, s{sKVH}, 1")
        A(f"s_add_u32 s{sT0}, s{sT0}, s{sT2}")
        A(f"s_lshl_b32 s{sT0}, s{sT0}, 8")
        A(f"s_lshl_b32 s{sT2}, s{sS}, 5")
        A(f"s_add_u32 s{sT0}, s{sT0}, s{sT2}")
        A(f"s_mul_i32 s{sSTART}, s{sT0}, 896")
        A(f"s_and_b32 s{sT1}, s{sWAVE}, 3")
        A(f"s_mul_i32 s{sT1}, s{sT1}, 7168")
        A(f"s_add_u32 s{sSTART}, s{sSTART}, s{sT1}")
        A(f"s_mul_i32 s{sLDS}, s{sWAVE}, 7168")
        A(f"s_mov_b32 s{sSTEP}, 1024")
        A(f"v_mov_b32 v{vDM}, v{vL16}")
        dma7(g, polWO, vmx, sB)
    LW = opt.get("LW", 2)
    if LW:
        A(f"s_and_b32 s{sT0}, s{sROLE}, 7")
        A("s_cbranch_scc1 L_md2")
    wo_dma(VM(g, W, W))
    if not LW:
        A(f"s_cmp_eq_u32 s{sROLE}, 2")
        A("s_cbranch_scc1 L_md2")
    g.lbl("L_ld_done")
    A(f"s_waitcnt vmcnt(15)")
    A("s_branch L_qchk")
    g.lbl("L_qpoll")
    qloads()
    A("s_waitcnt vmcnt(0)")
    g.lbl("L_qchk")
    if not opt.get("noqm"): check_tags(g, [19, 23], "L_qpoll")
    stamp(g, 3)
    A(f"v_lshlrev_b32 v{vT+2}, 3, v{vL}")
    A(f"v_add_u32 v{vT+2}, {L_Q}, v{vT+2}")
    A(f"ds_write_b64 v{vT+2}, v[16:17]")
    A(f"ds_write_b64 v{vT+2}, v[20:21] offset:512")
    A(f"v_bfe_u32 v{vT}, v{vJ}, 2, 1")
    A(f"v_lshlrev_b32 v{vT}, 9, v{vT}")
    A(f"v_lshl_add_u32 v{vT}, v{vGR}, 6, v{vT}")
    A(f"v_and_b32 v{vT+1}, 3, v{vL}")
    A(f"v_lshl_add_u32 v{vT}, v{vT+1}, 4, v{vT}")
    A(f"v_add_u32 v{vT}, {L_Q}, v{vT}")
    QL, QH = 48, 56
    A(f"ds_read_b128 v[{QL}:{QL+3}], v{vT}")
    A(f"ds_read_b128 v[{QL+4}:{QL+7}], v{vT} offset:256")
    A(f"s_waitcnt lgkmcnt(0)")
    for i in range(8):
        A(f"v_cndmask_b32 v{QH+i}, 0, v{QL+i}, s[{sR8}:{sR8+1}]")
    for i in range(8):
        A(f"v_cndmask_b32 v{QL+i}, v{QL+i}, 0, s[{sR8}:{sR8+1}]")
    g.nop(2)
    SD = 16
    for t in range(4):
        for jj in range(8):
            kq, blk = jj >> 1, jj & 1
            d = SD + 4*(2*t + (kq >> 1))
            q = (QH if (kq & 1) else QL) + 4*blk
            r = vK + 32*t + 4*jj
            c = "0" if (jj & 3) == 0 else f"v[{d}:{d+3}]"
            A(f"v_mfma_f32_16x16x32_bf16 v[{d}:{d+3}], v[{q}:{q+3}], v[{r}:{r+3}], {c}")
    prio(0)
    A(f"s_cmp_lt_u32 s{sRED}, 112")
    A("s_cbranch_scc1 L_parR")
    A(f"s_cmp_eq_u32 s{sROLE}, 2")
    A("s_cbranch_scc1 L_parF")
    g.lbl("L_par_done")
    v_loads(g, VM(g, W2, W2), polV, [2])
    for d in range(8):
        D = SD + 4*d
        sel4(g, D, D, D+1, D+2, D+3, sQ1, sQ2, sQ3)
    for pat in ("quad_perm:[1,0,3,2]", "quad_perm:[2,3,0,1]"):
        for d in range(8):
            D = SD + 4*d
            A(f"v_add_f32 v{D}, v{D}, v{D} {pat} {DPP}")
    S0, S1 = 10, 11
    sel4(g, S0, SD, SD+4, SD+8, SD+12, sQ1, sQ2, sQ3)
    sel4(g, S1, SD+16, SD+20, SD+24, SD+28, sQ1, sQ2, sQ3)
    rnd2(g, S0, S1, vT)
    A(f"v_max_f32 v{vSC}, v{S0}, v{S1}")
    wave_reduce(g, "v_max_f32", [vSC], [17], swaps=("v_permlane32_swap_b32",))
    A(f"v_sub_f32 v{S0}, v{S0}, v{vSC}")
    A(f"v_sub_f32 v{S1}, v{S1}, v{vSC}")
    A(f"v_mul_f32 v{S0}, s{sC}, v{S0}")
    A(f"v_mul_f32 v{S1}, s{sC}, v{S1}")
    A(f"v_exp_f32 v{S0}, v{S0}")
    A(f"v_exp_f32 v{S1}, v{S1}")
    A(f"v_and_b32 v12, 1, v{vGR}")
    A(f"v_bfe_u32 v28, v{vL}, 1, 1")
    A(f"v_add_u32 v28, s{sROT}, v28")
    A(f"v_add_u32 v29, 2, v28")
    A(f"v_and_b32 v28, 3, v28")
    A(f"v_and_b32 v29, 3, v29")
    A(f"v_and_b32 v30, 1, v{vL}")
    A(f"v_lshlrev_b32 v30, 3, v30")
    A(f"v_lshrrev_b32 v31, 1, v{vGR}")
    A(f"v_lshl_add_u32 v30, v31, 2, v30")
    A(f"v_lshrrev_b32 v31, 2, v{vJ}")
    A(f"v_add_u32 v30, v30, v31")
    A(f"v_lshlrev_b32 v30, 1, v30")
    A(f"v_lshl_add_u32 v30, v12, 7, v30")
    A(f"s_lshl_b32 s{sT1}, s{sWAVE}, 8")
    A(f"s_add_u32 s{sT1}, s{sT1}, {L_P}")
    A(f"v_add_u32 v30, s{sT1}, v30")
    A(f"v_lshl_add_u32 v28, v28, 5, v30")
    A(f"v_lshl_add_u32 v29, v29, 5, v30")
    A(f"v_cvt_pk_bf16_f32 v20, v{S0}, v{S1}")
    A(f"v_add_f32 v16, v{S0}, v{S1}")
    A(f"ds_write_b16 v28, v20")
    A(f"ds_write_b16_d16_hi v29, v20")
    A(f"v_and_b32 v{vT}, 1, v{vL}")
    A(f"v_lshlrev_b32 v{vT}, 7, v{vT}")
    A(f"v_lshl_add_u32 v{vT}, v{vGR}, 4, v{vT}")
    A(f"s_and_b32 s{sT0}, s{sROT}, 1")
    A(f"s_lshl_b32 s{sT0}, s{sT0}, 6")
    A(f"s_add_u32 s{sT2}, s{sT1}, s{sT0}")
    A(f"s_xor_b32 s{sT0}, s{sT0}, 64")
    A(f"s_add_u32 s{sT3}, s{sT1}, s{sT0}")
    A(f"v_add_u32 v18, s{sT2}, v{vT}")
    A(f"v_add_u32 v19, s{sT3}, v{vT}")
    PF = 48
    A(f"ds_read_b128 v[{PF}:{PF+3}], v18")
    A(f"ds_read_b128 v[{PF+4}:{PF+7}], v19")
    wave_reduce(g, "v_add_f32", [16], [17], swaps=("v_permlane32_swap_b32",))
    A(f"v_lshlrev_b32 v13, 5, v12")
    A(f"v_add_u32 v13, {L_RED}, v13")
    A(f"s_lshl_b32 s{sT0}, s{sWAVE}, 2")
    A(f"v_add_u32 v14, s{sT0}, v13")
    A(f"ds_write_b32 v14, v{vSC}")
    A(f"ds_write_b32 v14, v16 offset:64")
    A(f"v_mov_b32 v17, {L_FLAG}")
    A(f"v_mov_b32 v18, 0")
    A(f"ds_write_b32 v17, v18")
    A(f"v_lshlrev_b32 v{vOLW}, 10, v12")
    A(f"v_lshl_add_u32 v{vOLW}, v{vJ}, 5, v{vOLW}")
    A(f"v_lshrrev_b32 v12, 1, v{vGR}")
    A(f"v_lshl_add_u32 v{vOLW}, v12, 4, v{vOLW}")
    A(f"s_lshl_b32 s{sT1}, s{sWAVE}, 11")
    A(f"s_add_u32 s{sT1}, s{sT1}, {L_OL}")
    A(f"v_add_u32 v{vOLW}, s{sT1}, v{vOLW}")
    A(f"s_lshl_b32 s{sT0}, s{sWAVE}, 8")
    A(f"s_add_u32 s{sT0}, s{sT0}, {L_OL}")
    A(f"v_lshl_add_u32 v{vOLR}, v{vL}, 3, s{sT0}")
    A(f"s_lshl_b32 s{sO_IN}, s{sGRP}, 15")
    A(f"s_add_u32 s{sO_IN}, s{sO_IN}, {WS_O}")
    A(f"s_and_b32 s{sT1}, s{sWAVE}, 3")
    A(f"s_lshl_b32 s{sT1}, s{sT1}, 13")
    A(f"s_add_u32 s{sO_DST}, s{sO_IN}, s{sT1}")
    A(f"s_lshl_b32 s{sT1}, s{sS}, 9")
    A(f"s_add_u32 s{sO_DST}, s{sO_DST}, s{sT1}")
    A(f"s_lshr_b32 s{sT1}, s{sWAVE}, 2")
    A(f"s_lshl_b32 s{sT1}, s{sT1}, 8")
    A(f"s_add_u32 s{sO_DST}, s{sO_DST}, s{sT1}")
    A(f"s_lshl_b32 s{sT1}, s{sS}, 12")
    A(f"s_add_u32 s{sO_IN}, s{sO_IN}, s{sT1}")
    A(f"s_mul_i32 s{sT0}, s{sB_}, 28")
    A(f"s_lshl_b32 s{sT1}, s{sWAVE}, 2")
    A(f"s_add_u32 s{sT0}, s{sT0}, s{sT1}")
    A(f"s_lshl_b32 s{sT0}, s{sT0}, 6")
    A(f"s_lshl_b32 s{sT1}, s{sKVH}, 3")
    A(f"s_add_u32 s{sT0}, s{sT0}, s{sT1}")
    A(f"s_add_u32 s{sT0}, s{sT0}, s{sS}")
    A(f"s_lshl_b32 s{sT0}, s{sT0}, 7")
    A(f"s_add_u32 s{sY_DST}, s{sT0}, {WS_Y}")
    A(f"v_lshlrev_b32 v{vYO}, 13, v{vGR}")
    A(f"v_lshl_add_u32 v{vYO}, v{vJ}, 4, v{vYO}")
    A(f"v_lshlrev_b32 v{vOBA}, 4, v{vGR}")
    A(f"v_add_u32 v{vOBA}, {L_OB}, v{vOBA}")
    A("s_waitcnt lgkmcnt(0)")
    ACCB = (16, 192)
    PT = 224
    def pv(u):
        gam, eta = u >> 1, u & 1
        NW = 7 if WOL == 1 else 0
        if WOL == 2 and u == 3:
            A(f"s_cmp_lt_u32 s{sWAVE}, 4")
            A("s_cbranch_scc1 L_wo2")
            A("s_waitcnt vmcnt(0)")
            g.lbl("L_wo2_ret")
        else:
            A(f"s_waitcnt vmcnt({(8, 8, 8+NW, NW)[u]})")
        R = v_dst(u)
        for c in range(4):
            T = PT + 8*(c & 1)
            for m in range(4):
                A(f"v_perm_b32 v{T+m}, v{R+4*(2*m+1)+c}, v{R+4*(2*m)+c}, s{sPLO}")
            for m in range(4):
                A(f"v_perm_b32 v{T+4+m}, v{R+4*(2*m+1)+c}, v{R+4*(2*m)+c}, s{sPHI}")
            g.nop(1)
            for hh in range(2):
                acc = ACCB[eta] + 4*(2*c + hh)
                cc = "0" if gam == 0 else f"v[{acc}:{acc+3}]"
                A(f"v_mfma_f32_16x16x32_bf16 v[{acc}:{acc+3}], v[{PF+4*gam}:{PF+4*gam+3}], v[{T+4*hh}:{T+4*hh+3}], {cc}")
    pv(0); pv(1)
    v_loads(g, VM(g, W2, W2), polV, [3])
    if WOL == 1: wo_dma(VM(g, 0))
    A("s_barrier")
    if LW == 2:
        A(f"s_cmp_lg_u32 s{sROLE}, 0")
        A(f"s_cselect_b32 s{sSV}, 4, 0")
    stamp(g, 4)
    for i in range(4):
        A(f"ds_read_b128 v[{64+4*i}:{67+4*i}], v13 offset:{(0,16,64,80)[i]}")
    A("s_waitcnt lgkmcnt(2)")
    A(f"v_max3_f32 v80, v64, v65, v66")
    A(f"v_max3_f32 v81, v67, v68, v69")
    A(f"v_max3_f32 v80, v80, v70, v71")
    A(f"v_max_f32 v80, v80, v81")
    for i in range(8): A(f"v_sub_f32 v{64+i}, v{64+i}, v80")
    A(f"v_sub_f32 v{vSC}, v{vSC}, v80")
    for i in range(8): A(f"v_mul_f32 v{64+i}, s{sC}, v{64+i}")
    A(f"v_mul_f32 v{vSC}, s{sC}, v{vSC}")
    for i in range(8): A(f"v_exp_f32 v{64+i}, v{64+i}")
    A(f"v_exp_f32 v{vSC}, v{vSC}")
    A("s_waitcnt lgkmcnt(0)")
    A(f"v_mul_f32 v81, v64, v72")
    for i in range(1, 8): A(f"v_fmac_f32 v81, v{64+i}, v{72+i}")
    A(f"v_rcp_f32 v82, v81")
    A(f"v_log_f32 v83, v81")
    PUB = 84
    A(f"v_mov_b32 v{PUB+3}, s{sTAG}")
    A(f"v_mul_f32 v{vSC}, v{vSC}, v82")
    A(f"v_fma_f32 v83, v80, s{sC}, v83")
    A(f"s_lshr_b32 s{sT0}, s{sWAVE}, 2")
    A(f"s_lshl_b32 s{sT0}, s{sT0}, 4")
    A(f"v_readlane_b32 s{sT0}, v83, s{sT0}")
    g.nop(2)
    A(f"v_mov_b32 v{PUB+2}, s{sT0}")
    def outsel(eta, OUT):
        B = ACCB[eta]
        for i in range(4):
            A(f"v_cndmask_b32 v{OUT+i}, v{B+4*i}, v{B+4*i+1}, s[{sM1}:{sM1+1}]")
        g.nop(3)
        for i in range(4):
            A(f"v_cndmask_b32 v{OUT+i}, v{OUT+i}, v{B+4*(4+i)}, s[{sM2}:{sM2+1}]")
        for i in range(4):
            A(f"v_cndmask_b32 v{OUT+i}, v{OUT+i}, v{B+4*(4+i)+1}, s[{sM3}:{sM3+1}]")
        for i in range(4):
            A(f"v_mul_f32 v{OUT+i}, v{OUT+i}, v{vSC}")
        A(f"ds_write_b128 v{vOLW}, v[{OUT}:{OUT+3}] offset:{512*eta}")
    pv(2); outsel(0, 88)
    pv(3)
    stamp(g, 5)
    outsel(1, 92)
    if LW == 2:
        A(f"s_cmp_lt_u32 s{sWAVE}, s{sSV}")
        A("s_cbranch_scc1 L_wo2")
        g.lbl("L_wo2_ret")
    A("s_waitcnt lgkmcnt(0)")
    A("s_barrier")
    for w in range(8):
        A(f"ds_read_b64 v[{16+2*w}:{17+2*w}], v{vOLR} offset:{2048*w}")
    A("s_mov_b32 exec_hi, 0")
    A("s_waitcnt lgkmcnt(6)")
    A(f"v_pk_add_f32 v[16:17], v[16:17], v[18:19]")
    A("s_waitcnt lgkmcnt(4)")
    A(f"v_pk_add_f32 v[20:21], v[20:21], v[22:23]")
    A("s_waitcnt lgkmcnt(2)")
    A(f"v_pk_add_f32 v[24:25], v[24:25], v[26:27]")
    A(f"v_pk_add_f32 v[16:17], v[16:17], v[20:21]")
    A("s_waitcnt lgkmcnt(0)")
    A(f"v_pk_add_f32 v[28:29], v[28:29], v[30:31]")
    A(f"v_pk_add_f32 v[24:25], v[24:25], v[28:29]")
    A(f"v_pk_add_f32 v[{PUB}:{PUB+1}], v[16:17], v[24:25]")
    A(f"buffer_store_dwordx4 v[{PUB}:{PUB+3}], v{vVO}, s[{sWS}:{sWS+3}], s{sO_DST} offen sc1")
    A("s_mov_b64 exec, -1")
    stamp(g, 6)
    if opt.get("notail"): A("s_branch L_fin")
    if LW == 1:
        A(f"s_cmp_eq_u32 s{sROLE}, 0")
        A("s_cbranch_scc1 L_wo_ok")
        wo_dma(VM(g, 0))
        A("s_waitcnt vmcnt(0)")
        A("s_barrier")
        g.lbl("L_wo_ok")
    A(f"s_cmp_eq_u32 s{sWAVE}, 7")
    A("s_cbranch_scc1 L_w7")
    if LW == 2:
        A(f"s_and_b32 s{sT0}, s{sROLE}, 7")
        A("s_cbranch_scc0 L_wo_ok")
        A(f"s_cmp_lt_u32 s{sWAVE}, 4")
        A("s_cbranch_scc0 L_wo_w")
        A("s_waitcnt vmcnt(0)")
        lds_inc(g, 0)
        g.lbl("L_wo_w")
        lds_spin(g, 0, 4, "L_wospin", sleep=0)
        g.lbl("L_wo_ok")

    WB = 128
    A(f"v_lshrrev_b32 v{vT}, 2, v{vJ}")
    A(f"v_lshl_add_u32 v{vT}, v{vGR}, 3, v{vT}")
    A(f"v_mul_u32_u24 v{vT}, 896, v{vT}")
    A(f"v_and_b32 v12, 3, v{vL}")
    A(f"v_lshl_add_u32 v{vT}, v12, 5, v{vT}")
    A(f"s_lshl_b32 s{sT0}, s{sWAVE}, 7")
    A(f"v_add_u32 v13, s{sT0}, v{vT}")
    for t in range(4):
        for ks in range(2):
            r = WB + 8*t + 4*ks
            A(f"ds_read_b64_tr_b16 v[{r}:{r+1}], v13 offset:{L_WO + ks*28672 + t*8}")
            A(f"ds_read_b64_tr_b16 v[{r+2}:{r+3}], v13 offset:{L_WO + ks*28672 + t*8 + 3584}")
        if t == 1: A("s_waitcnt lgkmcnt(0)")
    A(f"v_mov_b32 v43, s{sTAG}")
    A(f"v_mov_b32 v42, 0")
    A(f"s_mov_b32 vcc_lo, 0xaaaaaaaa"); A(f"s_mov_b32 vcc_hi, 0xaaaaaaaa")
    A(f"s_mov_b32 s{sK}, 0x0c0c0c0c"); A(f"s_mov_b32 s{sK+1}, 0x0c0c0c0c")
    A(f"s_mov_b32 s{sV}, 0x30303030"); A(f"s_mov_b32 s{sV+1}, 0x30303030")
    A(f"s_mov_b32 s{sB}, 0xc0c0c0c0"); A(f"s_mov_b32 s{sB+1}, 0xc0c0c0c0")
    A("s_waitcnt lgkmcnt(0)")
    A("s_barrier")
    A(f"ds_read_b128 v[16:19], v{vOBA}")
    A(f"ds_read_b128 v[20:23], v{vOBA} offset:64")
    A("s_waitcnt lgkmcnt(1)")
    for t in range(4):
        A(f"v_mfma_f32_16x16x32_bf16 v[{24+4*t}:{27+4*t}], v[{WB+8*t}:{WB+8*t+3}], v[16:19], 0")
    A("s_waitcnt lgkmcnt(0)")
    for t in range(4):
        A(f"v_mfma_f32_16x16x32_bf16 v[{24+4*t}:{27+4*t}], v[{WB+8*t+4}:{WB+8*t+7}], v[20:23], v[{24+4*t}:{27+4*t}]")
    A(f"s_mov_b32 exec_lo, 0x00ff00ff")
    A(f"s_mov_b32 exec_hi, 0x00ff00ff")
    g.nop(3)
    A(f"v_cndmask_b32 v40, v24, v26, vcc")
    A(f"v_cndmask_b32 v41, v25, v27, vcc")
    for t, m in ((1, sK), (2, sV), (3, sB)):
        A(f"v_cndmask_b32 v44, v{24+4*t}, v{26+4*t}, vcc")
        A(f"v_cndmask_b32 v45, v{25+4*t}, v{27+4*t}, vcc")
        A(f"v_cndmask_b32 v40, v40, v44, s[{m}:{m+1}]")
        A(f"v_cndmask_b32 v41, v41, v45, s[{m}:{m+1}]")
    A(f"buffer_store_dwordx4 v[40:43], v{vYO}, s[{sWS}:{sWS+3}], s{sY_DST} offen sc1")
    A("s_mov_b64 exec, -1")
    stamp(g, 7)
    A(f"s_cmp_lt_u32 s{sRED}, 112")
    A("s_cbranch_scc1 L_red")
    A(f"s_cmp_eq_u32 s{sROLE}, 2")
    A("s_cbranch_scc0 L_fin")
    A(f"v_add_u32 v126, {L_WD}, v13")
    g.lbl("L_ffn")
    A(f"v_and_b32 v12, 3, v{vL}")
    A(f"s_cmp_lt_u32 s{sWAVE}, 4")
    A("s_cbranch_scc0 L_ffn_dn")
    srd(g, sA, P_WG, 448*3584)
    A(f"s_mul_i32 s{sSTART}, s{sWAVE}, {112*3584}")
    A(f"s_lshl_b32 s{sT1}, s{sIDX}, 6")
    A(f"s_add_u32 s{sSTART}, s{sSTART}, s{sT1}")
    A(f"s_mov_b32 s{sSTEP}, {16*3584}")
    A(f"s_mul_i32 s{sLDS}, s{sWAVE}, 7168")
    A(f"s_add_u32 s{sLDS}, s{sLDS}, {L_WG}")
    A(f"v_lshrrev_b32 v{vDM}, 2, v{vL}")
    A(f"v_mul_u32_u24 v{vDM}, 3584, v{vDM}")
    A(f"v_lshl_add_u32 v{vDM}, v12, 4, v{vDM}")
    A("s_branch L_ffn_go")
    g.lbl("L_ffn_dn")
    srd(g, sA, P_WD, 1792*896)
    A(f"s_and_b32 s{sT1}, s{sWAVE}, 3")
    A(f"s_mul_i32 s{sSTART}, s{sIDX}, 28672")
    A(f"s_mul_i32 s{sLDS}, s{sT1}, 7168")
    A(f"s_add_u32 s{sSTART}, s{sSTART}, s{sLDS}")
    A(f"s_add_u32 s{sLDS}, s{sLDS}, {L_WD}")
    A(f"s_mov_b32 s{sSTEP}, 1024")
    A(f"v_mov_b32 v{vDM}, v{vL16}")
    g.lbl("L_ffn_go")
    dma7(g, polW, VM(g, 0))
    A("s_branch L_mchk")
    g.lbl("L_mretry")
    for i in range(2):
        A(f"buffer_load_dwordx4 v[{vPAR+4*i}:{vPAR+4*i+3}], v{vPA1}, s[{sWS}:{sWS+3}], s{sXO} offen offset:{1792*i} sc1")
    A("s_waitcnt vmcnt(0)")
    g.lbl("L_mchk")
    check_tags(g, [vPAR+3, vPAR+7], "L_mretry", mask=sMH)
    OC, SH = 112, 116
    for i in range(2):
        unpack(g, vPAR+i, SH+2*i, SH+2*i+1)
        unpack(g, vPAR+4+i, OC+2*i, OC+2*i+1)
    for i in range(4): A(f"v_add_f32 v{OC+i}, 1.0, v{OC+i}")
    for i in range(0, 4, 2): rnd2(g, OC+i, OC+i+1, vT)
    vHW, vAF, vGW, vGR_, vZO, vXB = 120, 121, 122, 123, 124, 125
    A(f"s_and_b32 s{sT1}, s{sWAVE}, 3")
    A(f"s_mul_i32 s{sT0}, s{sT1}, 896")
    A(f"s_lshl_b32 s{sXO}, s{sT0}, 1")
    A(f"s_add_u32 s{sXO}, s{sXO}, {WS_X1}")
    if XR:
        A(f"s_lshl_b32 s{sT2}, s{sS}, 13")
        A(f"s_add_u32 s{sXO}, s{sXO}, s{sT2}")
    A(f"s_lshr_b32 s{sT2}, s{sWAVE}, 2")
    A(f"s_lshl_b32 s{sT2}, s{sT2}, 9")
    A(f"s_add_u32 s{sT0}, s{sT0}, s{sT2}")
    A(f"s_add_u32 s{sT0}, s{sT0}, {L_A}")
    A(f"v_lshl_add_u32 v{vHW}, v{vL}, 3, s{sT0}")
    A(f"v_mul_u32_u24 v{vAF}, 896, v12")
    A(f"v_lshl_add_u32 v{vAF}, v{vGR}, 4, v{vAF}")
    A(f"v_add_u32 v{vAF}, {L_A}, v{vAF}")
    A(f"s_lshl_b32 s{sT1}, s{sT1}, 4")
    A(f"s_add_u32 s{sT0}, s{sT1}, {L_G}")
    A(f"v_lshlrev_b32 v{vGW}, 6, v{vGR}")
    A(f"v_lshl_add_u32 v{vGW}, v{vJ}, 1, v{vGW}")
    A(f"v_add_u32 v{vGW}, s{sT0}, v{vGW}")
    A(f"v_lshrrev_b32 v{vT}, 2, v{vJ}")
    A(f"v_lshlrev_b32 v{vGR_}, 6, v{vT}")
    A(f"v_lshl_add_u32 v{vGR_}, v{vGR}, 4, v{vGR_}")
    A(f"v_add_u32 v{vGR_}, {L_G}, v{vGR_}")
    A(f"v_mul_u32_u24 v{vZO}, 28, v{vT}")
    A(f"v_add_u32 v{vZO}, v{vZO}, v{vGR}")
    A(f"v_mul_u32_u24 v{vZO}, 3584, v{vZO}")
    A(f"v_lshl_add_u32 v{vZO}, v12, 4, v{vZO}")
    A(f"s_mul_i32 s{sY_DST}, s{sWAVE}, {4*3584}")
    A(f"s_lshl_b32 s{sT0}, s{sIDX}, 6")
    A(f"s_add_u32 s{sY_DST}, s{sY_DST}, s{sT0}")
    A(f"s_add_u32 s{sY_DST}, s{sY_DST}, {WS_Z}")
    A(f"v_add_u32 v{vXB}, 1024, v{vL16}")
    A(f"v_mov_b32 v{vT}, {WS_SIZE}")
    A(f"v_cndmask_b32 v{vXB}, v{vT}, v{vXB}, s[{sM48}:{sM48+1}]")
    A(f"s_cmp_ge_u32 s{sWAVE}, 4")
    A(f"s_cselect_b64 s[{sR8}:{sR8+1}], -1, 0")
    A(f"v_lshrrev_b32 v13, 2, v{vJ}")
    A(f"v_lshl_add_u32 v13, v{vGR}, 3, v13")
    A(f"v_lshlrev_b32 v13, 6, v13")
    A(f"v_and_b32 v14, 1, v{vL}")
    A(f"v_lshl_add_u32 v13, v14, 3, v13")
    A(f"v_bfe_u32 v14, v{vL}, 1, 1")
    A(f"v_mul_u32_u24 v14, 28672, v14")
    A(f"v_add_u32 v13, v13, v14")
    A(f"s_add_u32 s{sT1}, s{sT1}, {L_WG}")
    A(f"v_add_u32 v13, s{sT1}, v13")
    A("s_waitcnt vmcnt(0) lgkmcnt(0)")
    A("s_barrier")
    stamp(g, 9)
    def x1loads():
        A(f"buffer_load_dwordx4 v[16:19], v{vL16}, s[{sWS}:{sWS+3}], s{sXO} offen sc1")
        A(f"buffer_load_dwordx4 v[20:23], v{vXB}, s[{sWS}:{sWS+3}], s{sXO} offen sc1")
    A(f"s_cmp_eq_u32 s{sWAVE}, 7")
    A("s_cbranch_scc1 L_x1poll")
    x1loads()
    for t in range(4):
        A(f"ds_read_b64_tr_b16 v[{96+4*t}:{97+4*t}], v126 offset:{t*8}")
        A(f"ds_read_b64_tr_b16 v[{98+4*t}:{99+4*t}], v126 offset:{t*8+3584}")
    A(f"s_cmp_lt_u32 s{sWAVE}, 4")
    A("s_cbranch_scc0 L_x1wait")
    A("s_waitcnt lgkmcnt(6)")
    for ks in range(14):
        r = 128 + 4*ks
        A(f"ds_read_b64_tr_b16 v[{r}:{r+1}], v13 offset:{ks*2048}")
        A(f"ds_read_b64_tr_b16 v[{r+2}:{r+3}], v13 offset:{ks*2048+256}")
        if ks % 4 == 3: A("s_waitcnt lgkmcnt(6)")
    A("s_branch L_x1wait")
    g.lbl("L_x1poll")
    x1loads()
    g.lbl("L_x1wait")
    A("s_waitcnt vmcnt(0)")
    tags_ab(g, [19], [23])
    retry_branch(g, "L_x1poll")
    tstamp(g, 2)
    for i, r in enumerate((16, 17, 20, 21)):
        unpack(g, r, 24+2*i, 25+2*i)
    E = 44
    layernorm(g, 24, 32, E, 4, presel=[f"v_cndmask_b32 v{E+i}, v{24+i}, v{28+i}, s[{sR8}:{sR8+1}]" for i in range(4)])
    rnd2(g, E, E+1, vT); rnd2(g, E+2, E+3, vT)
    modulate_pack(g, E, OC, SH, E, vT, 4)
    A(f"s_mov_b64 exec, s[{sMH}:{sMH+1}]")
    A(f"ds_write_b64 v{vHW}, v[{E}:{E+1}]")
    A("s_mov_b64 exec, -1")
    A("s_waitcnt lgkmcnt(0)")
    A("s_barrier")
    tstamp(g, 3)
    A(f"s_cmp_lt_u32 s{sWAVE}, 4")
    A("s_cbranch_scc0 L_ffn_d")
    for ks in range(14):
        A(f"ds_read_b128 v[{192+4*ks}:{195+4*ks}], v{vAF} offset:{64*ks}")
    for ks in range(14):
        A(f"s_waitcnt lgkmcnt({13-ks})")
        c = "0" if ks == 0 else "v[16:19]"
        A(f"v_mfma_f32_16x16x32_bf16 v[16:19], v[{192+4*ks}:{195+4*ks}], v[{128+4*ks}:{131+4*ks}], {c}")
    kk = -2.0 * math.sqrt(2.0/math.pi) * LOG2E
    A(f"v_mov_b32 v24, {f2u(kk*0.044715):#x}")
    A(f"v_mov_b32 v25, {f2u(kk):#x}")
    g.nop(6)
    sel4(g, 20, 16, 17, 18, 19, sM1, sM2, sM3)
    rnd1(g, 20)
    A(f"v_mul_f32 v21, v20, v20")
    A(f"v_fma_f32 v21, v21, v24, v25")
    A(f"v_mul_f32 v21, v21, v20")
    A(f"v_exp_f32 v21, v21")
    A(f"v_mov_b32 v23, v20 row_ror:8 {DPP}")
    A(f"v_add_f32 v21, 1.0, v21")
    A(f"v_rcp_f32 v21, v21")
    A(f"s_mov_b32 exec_lo, 0x00ff00ff")
    A(f"s_mov_b32 exec_hi, 0x00ff00ff")
    A(f"v_mul_f32 v21, v21, v20")
    rnd1(g, 21)
    A(f"v_mul_f32 v21, v21, v23")
    A(f"v_cvt_pk_bf16_f32 v21, v21, v21")
    A(f"ds_write_b16 v{vGW}, v21")
    A("s_mov_b64 exec, -1")
    A("s_waitcnt lgkmcnt(0)")
    g.lbl("L_ffn_d")
    A(f"s_cmp_eq_u32 s{sWAVE}, 7")
    A("s_cbranch_scc1 L_fin")
    A("s_barrier")
    tstamp(g, 4)
    A(f"ds_read_b128 v[16:19], v{vGR_}")
    A("s_waitcnt lgkmcnt(0)")
    for t in range(4):
        A(f"v_mfma_f32_16x16x32_bf16 v[{24+4*t}:{27+4*t}], v[{96+4*t}:{99+4*t}], v[16:19], 0")
    g.nop(6)
    for i in range(4): A(f"v_cndmask_b32 v{40+i}, v{24+i}, v{28+i}, s[{sQ1}:{sQ1+1}]")
    for i in range(4): A(f"v_cndmask_b32 v{40+i}, v{40+i}, v{32+i}, s[{sQ2}:{sQ2+1}]")
    for i in range(4): A(f"v_cndmask_b32 v{40+i}, v{40+i}, v{36+i}, s[{sQ3}:{sQ3+1}]")
    for i in range(4): A(f"v_min_u32 v{40+i}, -2, v{40+i}")
    A(f"buffer_store_dwordx4 v[40:43], v{vZO}, s[{sWS}:{sWS+3}], s{sY_DST} offen sc1")
    stamp(g, 8)
    A("s_branch L_fin")

    g.lbl("L_w7")
    A(f"v_and_b32 v13, 31, v{vL}")
    A(f"v_lshlrev_b32 v13, 2, v13")
    A(f"v_add_u32 v13, {L_OB}, v13")
    g.lbl("L_opoll")
    for i in range(4):
        A(f"buffer_load_dwordx4 v[{16+4*i}:{19+4*i}], v{vL16}, s[{sWS}:{sWS+3}], s{sO_IN} offen offset:{1024*i} sc1")
    A("s_waitcnt vmcnt(0)")
    check_tags(g, [19, 23, 27, 31], "L_opoll")
    tstamp(g, 1)
    A(f"v_max3_f32 v32, v18, v22, v26")
    A(f"v_max_f32 v32, v32, v30")
    A(f"v_mov_b32 v33, v32")
    g.nop(2)
    A(f"v_permlane32_swap_b32 v32, v33")
    g.nop(1)
    A(f"v_max_f32 v32, v32, v33")
    for i in range(4): A(f"v_sub_f32 v{18+4*i}, v{18+4*i}, v32")
    for i in range(4): A(f"v_exp_f32 v{18+4*i}, v{18+4*i}")
    A(f"v_pk_mul_f32 v[34:35], v[16:17], v[18:19] op_sel_hi:[1,0]")
    A(f"v_add_f32 v36, v18, v22")
    for i in range(1, 4):
        A(f"v_pk_fma_f32 v[34:35], v[{16+4*i}:{17+4*i}], v[{18+4*i}:{19+4*i}], v[34:35] op_sel_hi:[1,0,1]")
    A(f"v_add_f32 v37, v26, v30")
    A(f"v_add_f32 v36, v36, v37")
    A(f"v_mov_b32 v38, v34"); A(f"v_mov_b32 v39, v35"); A(f"v_mov_b32 v37, v36")
    g.nop(1)
    A(f"v_permlane32_swap_b32 v34, v38")
    A(f"v_permlane32_swap_b32 v35, v39")
    A(f"v_permlane32_swap_b32 v36, v37")
    A(f"v_pk_add_f32 v[34:35], v[34:35], v[38:39]")
    A(f"v_add_f32 v36, v36, v37")
    A(f"v_rcp_f32 v36, v36")
    g.nop(1)
    A(f"v_pk_mul_f32 v[34:35], v[34:35], v[36:37] op_sel_hi:[1,0]")
    A(f"v_cvt_pk_bf16_f32 v34, v34, v35")
    A(f"ds_write_b32 v13, v34")
    A("s_waitcnt lgkmcnt(0)")
    A("s_barrier")
    stamp(g, 7)
    A(f"s_cmp_eq_u32 s{sROLE}, 2")
    A("s_cbranch_scc1 L_ffn")
    A(f"s_cmp_lt_u32 s{sRED}, 112")
    A("s_cbranch_scc0 L_fin")
    A("s_branch L_gchk")
    g.lbl("L_gretry")
    A(f"s_add_u32 s{sT0}, s{sPX}, {3*1792}")
    A(f"buffer_load_dwordx4 v[{vPAR}:{vPAR+3}], v{vPA1}, s[{sWS}:{sWS+3}], s{sPX} offen sc1")
    A(f"buffer_load_dwordx4 v[{vPAR+4}:{vPAR+7}], v{vPA1}, s[{sWS}:{sWS+3}], s{sT0} offen sc1")
    A("s_waitcnt vmcnt(0)")
    g.lbl("L_gchk")
    check_tags(g, [vPAR+3, vPAR+7], "L_gretry")
    A(f"s_mov_b32 vcc_lo, 0xf0f0f0f0"); A(f"s_mov_b32 vcc_hi, 0xf0f0f0f0")
    A(f"v_cndmask_b32 v100, v{vPAR}, v{vPAR+1}, vcc")
    A(f"v_cndmask_b32 v101, v{vPAR+4}, v{vPAR+5}, vcc")
    unpack(g, 100, 120, 121)
    unpack(g, 101, 122, 123)
    unpack(g, vPAR+8, 124, 125)
    A(f"v_mov_b32 v107, s{sTAG}")
    A(f"v_mov_b32 v106, 0")
    A(f"v_lshlrev_b32 v108, 1, v{vPA2}")
    if XR:
        A(f"v_lshrrev_b32 v{vT}, 3, v{vL}")
        A(f"v_lshl_add_u32 v108, v{vT}, 13, v108")
    A(f"v_lshlrev_b32 v109, 4, v{vPA2}")
    A(f"v_add_u32 v109, {L_RB}, v109")
    A(f"v_lshlrev_b32 v110, 3, v{vPA2}")
    A(f"v_add_u32 v110, {L_RB}, v110")
    A(f"s_lshl_b32 s{sT2}, s{sXO}, 1")
    A(f"s_add_u32 s{sPX}, s{sT2}, {WS_X1}")

    g.lbl("L_red")
    A(f"s_lshl_b32 s{sT0}, s{sRED}, 13")
    A(f"s_lshl_b32 s{sT1}, s{sWAVE}, 10")
    A(f"s_add_u32 s{sT0}, s{sT0}, s{sT1}")
    A(f"s_add_u32 s{sT0}, s{sT0}, {WS_Y}")
    A(f"v_and_b32 v12, 7, v{vL}")
    A(f"v_lshrrev_b32 v13, 5, v{vL}")
    A(f"v_lshl_add_u32 v12, v12, 1, v13")
    A(f"s_lshl_b32 s{sT1}, s{sWAVE}, 2")
    A(f"s_add_u32 s{sT1}, s{sT1}, {L_RB}")
    A(f"v_lshl_add_u32 v12, v12, 5, s{sT1}")
    g.lbl("L_ypoll")
    A(f"buffer_load_dwordx4 v[16:19], v{vL16}, s[{sWS}:{sWS+3}], s{sT0} offen sc1")
    A("s_waitcnt vmcnt(0)")
    check_tags(g, [19], "L_ypoll")
    tstamp(g, 2)
    A(f"v_permlane32_swap_b32 v16, v17")
    g.nop(1)
    A(f"v_add_f32 v16, v16, v17")
    A(f"v_mov_b32 v17, v16")
    g.nop(2)
    A(f"v_permlane16_swap_b32 v16, v17")
    g.nop(1)
    A(f"v_add_f32 v16, v16, v17")
    g.nop(2)
    A(f"v_add_f32 v16, v16, v16 row_ror:8 {DPP}")
    A(f"ds_write_b32 v12, v16")
    A("s_waitcnt lgkmcnt(0)")
    A("s_barrier")
    A(f"s_cmp_eq_u32 s{sWAVE}, 7")
    A("s_cbranch_scc0 L_red_z")
    for i in range(4):
        A(f"ds_read_b128 v[{16+4*i}:{19+4*i}], v109 offset:{16*i}")
    A("s_waitcnt lgkmcnt(2)")
    A(pk("add", 16, 16, 18)); A(pk("add", 20, 20, 22))
    A("s_waitcnt lgkmcnt(0)")
    A(pk("add", 24, 24, 26)); A(pk("add", 28, 28, 30))
    A(pk("add", 16, 16, 20)); A(pk("add", 24, 24, 28))
    A(f"v_add_f32 v16, v16, v17"); A(f"v_add_f32 v17, v24, v25")
    def resid(gate):
        rnd2(g, 16, 17, 18)
        A(pk("mul", 16, 16, gate))
        rnd2(g, 16, 17, 18)
        A(pk("add", 124, 124, 16))
        A(f"v_cvt_pk_bf16_f32 v104, v124, v125")
    resid(120)
    g.nop(2)
    A(f"v_mov_b32 v105, v104 row_shl:4 {DPP}")
    if XR:
        A("s_mov_b32 exec_lo, 0x0f0f0f0f"); A("s_mov_b32 exec_hi, 0x0f0f0f0f")
    else:
        A("s_mov_b64 exec, 0xf")
    A(f"buffer_store_dwordx4 v[104:107], v108, s[{sWS}:{sWS+3}], s{sPX} offen sc1")
    A("s_mov_b64 exec, -1")
    stamp(g, 8)
    unpack(g, 104, 124, 125)
    A("s_barrier")
    A(f"ds_read_b128 v[16:19], v110 offset:0")
    A(f"ds_read_b128 v[20:23], v110 offset:16")
    A("s_waitcnt lgkmcnt(0)")
    A(pk("add", 16, 16, 18)); A(pk("add", 20, 20, 22))
    A(f"v_add_f32 v16, v16, v17"); A(f"v_add_f32 v17, v20, v21")
    resid(122)
    if "cal" in opt:
        stamp(g, 9)
        A(f"s_add_u32 s{sT0}, s{92+opt['cal']}, 6000")
        g.lbl("L_cal")
        A(f"s_memrealtime s[{sST}:{sST+1}]")
        A("s_waitcnt lgkmcnt(0)")
        A(f"s_sub_u32 s{sT1}, s{sST}, s{sT0}")
        A(f"s_cmp_lt_i32 s{sT1}, 0")
        A("s_cbranch_scc1 L_cal")
    A("s_mov_b64 exec, 0xff")
    A(f"buffer_store_dword v104, v{vPA2}, s[{sA}:{sA+3}], s{sXO} offen{opt.get('polO', '')}")
    stamp(g, 9)
    A(f"s_cmp_eq_u32 s{sRED}, 0")
    A("s_cbranch_scc0 L_fin")
    A("s_mov_b64 exec, 1")
    A(f"v_mov_b32 v{vT}, 0")
    A(f"buffer_store_dword v107, v{vT}, s[{sWS}:{sWS+3}], 0 offen sc1")
    A("s_branch L_fin")
    g.lbl("L_red_z")
    A(f"s_cmp_lt_u32 s{sWAVE}, 4")
    A("s_cbranch_scc0 L_fin")
    A(f"v_and_b32 v12, 3, v{vL}")
    A(f"v_lshlrev_b32 v12, 2, v12")
    A(f"v_and_b32 v13, 1, v{vGR}")
    A(f"v_lshl_add_u32 v12, v13, 1, v12")
    A(f"v_lshrrev_b32 v13, 1, v{vGR}")
    A(f"v_add_u32 v12, v12, v13")
    A(f"v_lshl_add_u32 v12, v12, 4, s{sT1}")
    g.lbl("L_zpoll")
    A(f"buffer_load_dwordx4 v[16:19], v{vPA1}, s[{sWS}:{sWS+3}], s{sPX} offen sc1")
    A("s_waitcnt vmcnt(0)")
    A(f"v_max3_u32 v{vT}, v16, v17, v18")
    A(f"v_max_u32 v{vT}, v{vT}, v19")
    A(f"v_cmp_eq_u32 vcc, -1, v{vT}")
    retry_branch(g, "L_zpoll")
    tstamp(g, 3)
    A(f"v_permlane32_swap_b32 v16, v17")
    A(f"v_permlane32_swap_b32 v18, v19")
    g.nop(1)
    A(f"v_add_f32 v16, v16, v17")
    A(f"v_add_f32 v18, v18, v19")
    g.nop(2)
    A(f"v_permlane16_swap_b32 v16, v18")
    g.nop(1)
    A(f"v_add_f32 v16, v16, v18")
    g.nop(2)
    A(f"v_add_f32 v16, v16, v16 row_ror:4 {DPP}")
    g.nop(2)
    A(f"v_add_f32 v16, v16, v16 row_ror:8 {DPP}")
    A(f"ds_write_b32 v12, v16")
    A("s_waitcnt lgkmcnt(0)")
    A("s_barrier")
    A("s_branch L_fin")

    g.lbl("L_early")
    A(f"s_mov_b32 s{sROLE}, 1")
    A(f"s_sub_u32 s{sIDX}, s2, 128")
    A(f"v_lshrrev_b32 v{vT}, 3, v{vL}")
    A(f"v_and_b32 v{vT+1}, 7, v{vL}")
    A(f"s_cmp_lt_u32 s{sN}, 24")
    A("s_cbranch_scc1 L_ed_q")
    A(f"s_sub_u32 s{sIDX}, s{sN}, 24")
    A(f"s_lshl_b32 s{sIDX}, s{sIDX}, 2")
    A(f"s_lshr_b32 s{sT1}, s{sS}, 1")
    A(f"s_add_u32 s{sIDX}, s{sIDX}, s{sT1}")
    A(f"s_and_b32 s{sT2}, s{sS}, 1")
    A(f"s_lshl_b32 s{sT2}, s{sT2}, 5")
    A(f"s_add_u32 s{sIDX}, s{sIDX}, s{sT2}")
    A(f"s_cmp_lt_u32 s{sIDX}, 42")
    A(f"s_cselect_b32 s{sROLE}, 4, 0")
    A("s_cbranch_scc0 L_kload")
    srd(g, sB, P_C, 3584)
    A(f"s_lshl_b32 s{sT0}, s{sWAVE}, 10")
    A(f"buffer_load_dwordx4 v[16:19], v{vL16}, s[{sB}:{sB+3}], s{sT0} offen")
    srd(g, sA, P_WM, 448*5376)
    A(f"v_mul_u32_u24 v{vDM}, 5376, v{vT}")
    A(f"s_mov_b32 s{sSTEP}, {8*5376}")
    A("s_branch L_ed_go")
    g.lbl("L_ed_q")
    srd(g, sB, P_X, 3584)
    A(f"s_mul_i32 s{sT0}, s{sWAVE}, 896")
    A(f"v_lshlrev_b32 v13, 3, v{vL}")
    A(f"v_mov_b32 v{vT+2}, 0x100000")
    A(f"v_cndmask_b32 v{vT+2}, v{vT+2}, v13, s[{sM48}:{sM48+1}]")
    A(f"buffer_load_dwordx2 v[16:17], v13, s[{sB}:{sB+3}], s{sT0} offen")
    A(f"buffer_load_dwordx2 v[18:19], v{vT+2}, s[{sB}:{sB+3}], s{sT0} offen offset:512")
    srd(g, sA, P_WQ, 448*8192)
    A(f"v_lshlrev_b32 v{vDM}, 13, v{vT}")
    A(f"s_mov_b32 s{sSTEP}, {8*8192}")
    g.lbl("L_ed_go")
    A(f"v_lshl_add_u32 v{vDM}, v{vT+1}, 4, v{vDM}")
    A(f"s_lshl_b32 s{sSTART}, s{sIDX}, 7")
    A(f"s_mul_i32 s{sT0}, s{sWAVE}, 7")
    A(f"s_mul_i32 s{sT1}, s{sT0}, s{sSTEP}")
    A(f"s_add_u32 s{sSTART}, s{sSTART}, s{sT1}")
    A(f"s_lshl_b32 s{sLDS}, s{sT0}, 10")
    A(f"s_add_u32 s{sLDS}, s{sLDS}, {L_IMG}")
    dma7(g, polW, VM(g, 0))
    srd(g, sWS, P_WS, WS_SIZE)
    A(f"v_mov_b32 v{vT}, 0")
    A(f"buffer_load_dword v14, v{vT}, s[{sWS}:{sWS+3}], 0 offen sc1")
    A(f"v_mov_b32 v{vT+1}, {L_FLAG}")
    A(f"ds_write_b32 v{vT+1}, v{vT} offset:4")
    A("s_waitcnt lgkmcnt(0)")
    A("s_barrier")
    A("s_branch L_kload")

    g.lbl("L_hook")
    A(f"s_cmp_lt_u32 s{sWAVE}, 4")
    A("s_cbranch_scc0 L_p1")
    A(f"s_waitcnt vmcnt({HK+9})")
    for i in range(4):
        unpack(g, 16+i, 24+2*i, 25+2*i)
    A(f"s_cmp_eq_u32 s{sROLE}, 1")
    A("s_cbranch_scc1 L_p_ln")
    for i in range(8): A(f"v_mul_f32 v{32+i}, {f2u(-LOG2E):#x}, v{24+i}")
    for i in range(8): A(f"v_exp_f32 v{32+i}, v{32+i}")
    for i in range(8): A(f"v_add_f32 v{32+i}, 1.0, v{32+i}")
    for i in range(8): A(f"v_rcp_f32 v{32+i}, v{32+i}")
    for i in range(8): A(f"v_mul_f32 v{24+i}, v{24+i}, v{32+i}")
    A(f"s_lshl_b32 s{sT2}, s{sWAVE}, 10")
    A(f"s_add_u32 s{sT2}, s{sT2}, {L_A}")
    for i in range(4): A(f"v_cvt_pk_bf16_f32 v{24+i}, v{24+2*i}, v{25+2*i}")
    A(f"v_add_u32 v{vT}, s{sT2}, v{vL16}")
    A(f"ds_write_b128 v{vT}, v[24:27]")
    A("s_branch L_p1")
    g.lbl("L_p_ln")
    layernorm(g, 24, 32, 24, 8)
    for i in range(4): A(f"v_cvt_pk_bf16_f32 v{60+i}, v{24+2*i}, v{25+2*i}")
    g.lbl("L_p1")
    A(f"s_waitcnt vmcnt({HK+1}) lgkmcnt(0)")
    A("s_barrier")
    A(f"s_cmp_lt_u32 s{sWAVE}, 4")
    A("s_cbranch_scc0 L_k1")
    A(f"v_readfirstlane_b32 s{sTAG}, v14")
    A(f"s_add_u32 s{sTAG}, s{sTAG}, 0x9e3779b9")
    A(f"s_cmp_eq_u32 s{sROLE}, 1")
    A("s_cbranch_scc1 L_p_q")
    A(f"s_call_b64 s[{sRET}:{sRET+1}], L_svc_mm")
    A("s_branch L_k1")
    g.lbl("L_p_q")
    A(f"v_add_u32 v13, 1024, v{vL16}")
    A(f"v_mov_b32 v{vT}, {WS_SIZE}")
    A(f"v_cndmask_b32 v13, v{vT}, v13, s[{sM48}:{sM48+1}]")
    A(f"s_mul_i32 s{sXO}, s{sWAVE}, {MB}")
    A(f"s_add_u32 s{sXO}, s{sXO}, {WS_M}")
    A(f"s_mov_b32 s{sSV}, 1")
    A("s_branch L_k1")

    g.lbl("L_svc")
    A(f"s_mov_b32 s{sSV}, 0")
    for i, r in enumerate((32, 33, 36, 37)):
        unpack(g, r, 16+2*i, 17+2*i)
        unpack(g, r+8, 48+2*i, 49+2*i)
        unpack(g, 60+i, 24+2*i, 25+2*i)
    for i in range(8): A(f"v_add_f32 v{48+i}, 1.0, v{48+i}")
    for i in range(0, 8, 2): rnd2(g, 48+i, 49+i, vT)
    modulate_pack(g, 24, 48, 16, 24, vT, 8)
    A(f"s_mul_i32 s{sT2}, s{sWAVE}, 896")
    A(f"s_add_u32 s{sT2}, s{sT2}, {L_A}")
    A(f"v_lshl_add_u32 v{vT}, v{vL}, 3, s{sT2}")
    A(f"ds_write_b64 v{vT}, v[24:25]")
    A(f"s_mov_b64 exec, s[{sM48}:{sM48+1}]")
    A(f"ds_write_b64 v{vT}, v[26:27] offset:512")
    A("s_mov_b64 exec, -1")
    A("s_waitcnt lgkmcnt(0)")
    lds_inc(g, 4)
    lds_spin(g, 4, 4, "L_p2spin")
    g.lbl("L_svc_mm")
    stamp(g, 1)
    A(f"v_lshrrev_b32 v{vT+2}, 2, v{vJ}")
    A(f"v_lshl_add_u32 v{vT+2}, v{vGR}, 3, v{vT+2}")
    A(f"v_lshlrev_b32 v{vT+2}, 7, v{vT+2}")
    A(f"v_and_b32 v{vT+3}, 3, v{vL}")
    A(f"v_lshl_add_u32 v{vT+2}, v{vT+3}, 3, v{vT+2}")
    A(f"s_lshl_b32 s{sT2}, s{sWAVE}, 5")
    A(f"s_add_u32 s{sT2}, s{sT2}, {L_IMG}")
    A(f"v_add_u32 v{vT+2}, s{sT2}, v{vT+2}")
    A(f"v_mul_u32_u24 v{vT+1}, 896, v{vT+3}")
    A(f"v_lshl_add_u32 v{vT+1}, v{vGR}, 4, v{vT+1}")
    A(f"v_add_u32 v{vT+1}, {L_A}, v{vT+1}")
    A("s_waitcnt lgkmcnt(0)")
    def slot(ks): return 24 + 8*(ks % 5)
    def rd(ks):
        r = slot(ks)
        A(f"ds_read_b64_tr_b16 v[{r}:{r+1}], v{vT+2} offset:{ks*4096}")
        A(f"ds_read_b64_tr_b16 v[{r+2}:{r+3}], v{vT+2} offset:{ks*4096+512}")
        A(f"ds_read_b128 v[{r+4}:{r+7}], v{vT+1} offset:{64*ks}")
    for ks in range(5): rd(ks)
    for ks in range(14):
        ahead = min(13 - ks, 4)
        A(f"s_waitcnt lgkmcnt({3*ahead})")
        r = slot(ks)
        c = "0" if ks == 0 else "v[16:19]"
        A(f"v_mfma_f32_16x16x32_bf16 v[16:19], v[{r}:{r+3}], v[{r+4}:{r+7}], {c}")
        if ks + 5 < 14: rd(ks + 5)
    A(f"s_cmp_eq_u32 s{sROLE}, 1")
    A(f"s_mov_b32 s{sT2}, {MB}")
    A(f"s_cselect_b32 s{sT2}, 16384, s{sT2}")
    A(f"s_mov_b32 s{sT3}, {WS_M}")
    A(f"s_cselect_b32 s{sT3}, {WS_Q}, s{sT3}")
    A(f"s_lshl_b32 s{sLDS}, s{sIDX}, 8")
    A(f"s_add_u32 s{sT3}, s{sT3}, s{sLDS}")
    A(f"s_lshl_b32 s{sLDS}, s{sWAVE}, 6")
    A(f"s_add_u32 s{sT3}, s{sT3}, s{sLDS}")
    A(f"v_mul_u32_u24 v{vT+1}, s{sT2}, v{vT+3}")
    A(f"v_lshl_add_u32 v{vT+1}, v{vGR}, 4, v{vT+1}")
    A(f"v_mov_b32 v22, 0")
    A(f"v_mov_b32 v23, s{sTAG}")
    A(f"v_cvt_pk_bf16_f32 v20, v16, v17")
    A(f"v_cvt_pk_bf16_f32 v21, v18, v19")
    A(f"s_mov_b32 exec_lo, 0x000f000f")
    A(f"s_mov_b32 exec_hi, 0x000f000f")
    A(f"buffer_store_dwordx4 v[20:23], v{vT+1}, s[{sWS}:{sWS+3}], s{sT3} offen sc1")
    A("s_mov_b64 exec, -1")
    A(f"v_not_b32 v19, s{sTAG}")
    stamp(g, 2)
    A(f"s_setpc_b64 s[{sRET}:{sRET+1}]")

    if LW == 2:
        g.lbl("L_wo2")
        A(f"s_cmp_eq_u32 s{sROLE}, 8")
        A("s_cbranch_scc1 L_pf")
        srd(g, sB, P_WO, 4096*896)
        A(f"s_lshr_b32 s{sT2}, s{sWAVE}, 1")
        A(f"s_lshl_b32 s{sT0}, s{sKVH}, 1")
        A(f"s_add_u32 s{sT0}, s{sT0}, s{sT2}")
        A(f"s_lshl_b32 s{sT0}, s{sT0}, 8")
        A(f"s_lshl_b32 s{sT2}, s{sS}, 5")
        A(f"s_add_u32 s{sT0}, s{sT0}, s{sT2}")
        A(f"s_mul_i32 s{sSTART}, s{sT0}, 896")
        A(f"s_and_b32 s{sT1}, s{sWAVE}, 1")
        A(f"s_mul_i32 s{sT1}, s{sT1}, 14336")
        A(f"s_add_u32 s{sSTART}, s{sSTART}, s{sT1}")
        A(f"s_mul_i32 s{sLDS}, s{sWAVE}, 14336")
        A(f"s_mov_b32 s{sSTEP}, 1024")
        A(f"v_mov_b32 v{vDM}, v{vL16}")
        dma7(g, polWO, VM(g, 0), sB)
        dma7(g, polWO, VM(g, 0), sB)
        A("s_branch L_wo2_ret")
        g.lbl("L_pf")
        A(f"s_lshr_b32 s{sT1}, s{sIDX}, 1")
        A(f"s_and_b32 s{sT0}, s{sIDX}, 1")
        A("s_cbranch_scc1 L_pf_d")
        srd(g, sB, P_WG, 448*3584)
        A(f"s_lshl_b32 s{sT1}, s{sT1}, 7")
        A(f"s_mul_i32 s{sSTART}, s{sWAVE}, {112*3584}")
        A(f"s_add_u32 s{sSTART}, s{sSTART}, s{sT1}")
        A(f"s_mov_b32 s{sSTEP}, {8*3584}")
        A(f"v_lshrrev_b32 v{vDM}, 3, v{vL}")
        A(f"v_mul_u32_u24 v{vDM}, 3584, v{vDM}")
        A(f"v_and_b32 v{vT}, 7, v{vL}")
        A(f"v_lshl_add_u32 v{vDM}, v{vT}, 4, v{vDM}")
        A("s_branch L_pf_go")
        g.lbl("L_pf_d")
        srd(g, sB, P_WD, 1792*896)
        A(f"s_mul_i32 s{sSTART}, s{sT1}, 57344")
        A(f"s_mul_i32 s{sT1}, s{sWAVE}, 14336")
        A(f"s_add_u32 s{sSTART}, s{sSTART}, s{sT1}")
        A(f"s_mov_b32 s{sSTEP}, 1024")
        A(f"v_mov_b32 v{vDM}, v{vL16}")
        g.lbl("L_pf_go")
        A(f"s_mov_b32 s{sLDS}, {L_WD}")
        dma7(g, polP, VM(g, 0), sB)
        dma7(g, polP, VM(g, 0), sB)
        A("s_branch L_wo2_ret")
    g.lbl("L_md2")
    A(f"s_cmp_eq_u32 s{sROLE}, 2")
    A("s_cbranch_scc1 L_md_f")
    g.lbl("L_md_none")
    A("s_waitcnt vmcnt(8)")
    A("s_branch L_qchk")
    g.lbl("L_md_f")
    A(f"s_cmp_lt_u32 s{sWAVE}, 4")
    A(f"s_cbranch_scc0 {'L_md_none' if LW else 'L_ld_done'}")
    srd(g, sA, P_WU, 448*3584)
    A(f"s_mul_i32 s{sSTART}, s{sWAVE}, {112*3584}")
    A(f"s_lshl_b32 s{sT1}, s{sIDX}, 6")
    A(f"s_add_u32 s{sSTART}, s{sSTART}, s{sT1}")
    A(f"s_mov_b32 s{sSTEP}, {16*3584}")
    A(f"s_mul_i32 s{sLDS}, s{sWAVE}, 7168")
    A(f"s_add_u32 s{sLDS}, s{sLDS}, {L_WU}")
    A(f"v_lshrrev_b32 v{vDM}, 2, v{vL}")
    A(f"v_mul_u32_u24 v{vDM}, 3584, v{vDM}")
    A(f"v_and_b32 v{vT}, 3, v{vL}")
    A(f"v_lshl_add_u32 v{vDM}, v{vT}, 4, v{vDM}")
    dma7(g, polW, VM(g, W, W))
    A("s_branch L_ld_done")

    g.lbl("L_parF")
    if opt.get("TT", 0):
        srd(g, sA, P_WG, 448*3584)
        A(f"s_cmp_lt_u32 s{sWAVE}, 4")
        A(f"s_cselect_b32 s{sA}, s{P_WG}, s{P_WD}")
        A(f"s_cselect_b32 s{sA+1}, s{P_WG+1}, s{P_WD+1}")
        A(f"v_mul_u32_u24 v{vT}, {opt['TT']}, v{vL}")
        A(f"buffer_load_dword v{vPAR+12}, v{vT}, s[{sA}:{sA+3}], 0 offen nt")
    A(f"s_cmp_lt_u32 s{sWAVE}, 4")
    A(f"s_cselect_b64 s[{sMH}:{sMH+1}], -1, s[{sM48}:{sM48+1}]")
    A(f"s_cselect_b32 s{sT0}, 0, 1024")
    A(f"v_add_u32 v{vPA1}, s{sT0}, v{vL16}")
    A(f"v_mov_b32 v{vT}, {WS_SIZE}")
    A(f"v_cndmask_b32 v{vPA1}, v{vT}, v{vPA1}, s[{sMH}:{sMH+1}]")
    A(f"s_and_b32 s{sT0}, s{sWAVE}, 3")
    A(f"s_mul_i32 s{sXO}, s{sT0}, {MB}")
    A(f"s_add_u32 s{sXO}, s{sXO}, {WS_M + 3*1792}")
    for i in range(2):
        A(f"buffer_load_dwordx4 v[{vPAR+4*i}:{vPAR+4*i+3}], v{vPA1}, s[{sWS}:{sWS+3}], s{sXO} offen offset:{1792*i} sc1")
    A("s_branch L_par_done")
    g.lbl("L_parR")
    A(f"s_cmp_eq_u32 s{sWAVE}, 7")
    A("s_cbranch_scc1 L_par7")
    A(f"s_cmp_lt_u32 s{sWAVE}, 4")
    A("s_cbranch_scc0 L_par_done")
    A(f"s_mul_i32 s{sPX}, s{sRED}, 3584")
    A(f"s_add_u32 s{sPX}, s{sPX}, {WS_Z}")
    A(f"s_lshl_b32 s{sT0}, s{sWAVE}, 10")
    A(f"v_add_u32 v{vPA1}, s{sT0}, v{vL16}")
    A(f"v_mov_b32 v{vT}, {WS_SIZE}")
    A(f"v_cmp_gt_u32 vcc, 3584, v{vPA1}")
    for i in range(4): A(f"v_mov_b32 v{vPAR+i}, -1")
    A(f"v_cndmask_b32 v{vPA1}, v{vT}, v{vPA1}, vcc")
    A(f"buffer_store_dwordx4 v[{vPAR}:{vPAR+3}], v{vPA1}, s[{sWS}:{sWS+3}], s{sPX} offen sc1")
    A("s_branch L_par_done")
    g.lbl("L_par7")
    A(f"s_mul_i32 s{sRB}, s{sRED}, 2341")
    A(f"s_lshr_b32 s{sRB}, s{sRB}, 16")
    A(f"s_mul_i32 s{sT0}, s{sRB}, 28")
    A(f"s_sub_u32 s{sT0}, s{sRED}, s{sT0}")
    A(f"s_mul_i32 s{sT2}, s{sRB}, 896")
    A(f"s_lshl_b32 s{sT3}, s{sT0}, 5")
    A(f"s_add_u32 s{sXO}, s{sT2}, s{sT3}")
    srd(g, sB, P_X, 3584)
    srd(g, sA, P_OUT, 3584)
    A(f"v_and_b32 v{vPA2}, 3, v{vL}")
    A(f"v_bfe_u32 v{vT}, v{vL}, 2, 1")
    A(f"v_lshl_add_u32 v{vPA2}, v{vPA2}, 1, v{vT}")
    A(f"v_lshlrev_b32 v{vPA2}, 2, v{vPA2}")
    A(f"buffer_load_dword v{vPAR+8}, v{vPA2}, s[{sB}:{sB+3}], s{sXO} offen")
    A(f"buffer_load_dword v{vPAR+9}, v{vPA2}, s[{sA}:{sA+3}], s{sXO} offen")
    A(f"v_and_b32 v{vPA1}, 3, v{vL}")
    A(f"v_lshlrev_b32 v{vPA1}, 4, v{vPA1}")
    A(f"s_mul_i32 s{sT2}, s{sRB}, {MB}")
    A(f"s_lshl_b32 s{sT3}, s{sT0}, 6")
    A(f"s_add_u32 s{sPX}, s{sT2}, s{sT3}")
    A(f"s_add_u32 s{sPX}, s{sPX}, {WS_M + 2*1792}")
    A(f"s_add_u32 s{sT0}, s{sPX}, {3*1792}")
    A(f"buffer_load_dwordx4 v[{vPAR}:{vPAR+3}], v{vPA1}, s[{sWS}:{sWS+3}], s{sPX} offen sc1")
    A(f"buffer_load_dwordx4 v[{vPAR+4}:{vPAR+7}], v{vPA1}, s[{sWS}:{sWS+3}], s{sT0} offen sc1")
    A("s_branch L_par_done")
    g.lbl("L_fin")
    flush_stamps(g, NSTAMP)
    g.lbl("L_end")
    A("s_endpgm")
    g.L += ['.section .rodata,"a"', ".p2align 6", f".amdhsa_kernel {NAME}_kernel",
            "  .amdhsa_next_free_vgpr 256", "  .amdhsa_next_free_sgpr 102", "  .amdhsa_accum_offset 256",
            "  .amdhsa_group_segment_fixed_size 0", "  .amdhsa_kernarg_size 112", "  .amdhsa_user_sgpr_count 2",
            "  .amdhsa_user_sgpr_kernarg_segment_ptr 1", "  .amdhsa_system_sgpr_workgroup_id_x 1", ".end_amdhsa_kernel"]
    return "\n".join(g.L) + "\n"

if __name__ == "__main__":
    out = sys.argv[1] if len(sys.argv) > 1 else f"cdna_kernels/{NAME}.s"
    opt = {}
    for a in sys.argv[2:]:
        k, val = a.split("=", 1)
        try: val = int(val)
        except ValueError: val = (" " + val.replace("+", " ")) if val else ""
        opt[k] = val
    open(out, "w").write(build(opt))
```

```python
import sys, math, struct

NAME = "adaLN_cond__gqa_block_cached__geglu_ffn__decode"

WS_E   = 0x0
WS_RF  = 0x1000
WS_CNT = 0x2000
WS_M   = 0x5000
MB = 10752
WS_Q   = 0x10000
WS_O   = 0x20000
WS_RI  = 0x120000
WS_X1  = 0x200000
WS_STAMP = 0x400000
WS_SIZE = 0x800000

L_WO = 0
L_IMG = 0
L_WG = 0
L_WU = L_WG + 28672
L_WD = L_WU + 28672
L_OL = L_WD + 28672
L_A  = L_OL + 16384
L_Q  = L_A + 3584
L_P  = L_Q + 1024
L_RED = L_P + 2048
L_OB = L_RED + 128
L_G  = L_OB + 512
L_RB = L_G + 256
L_FLAG = L_RB + 256
L_END = L_FLAG + 64

LOG2E = 1.4426950408889634
def f2u(x): return struct.unpack("<I", struct.pack("<f", x))[0]

class G:
    def __init__(self, opt):
        self.L = []; self.o = opt; self.lab = 0
    def A(self, s): self.L.append("    " + s)
    def lbl(self, s): self.L.append(s + ":")
    def newlab(self, p="L"):
        self.lab += 1
        return f"{p}_{self.lab}"
    def nop(self, n):
        while n > 0:
            k = min(n, 16)
            self.A(f"s_nop {k-1}")
            n -= k

sWAVE = 3
sK, sV, sWS, sA, sB = 4, 8, 12, 16, 20
sS, sB_, sKVH, sN = 24, 25, 26, 27
sTAG, sRETRY = 28, 29
sKB, sSV = 30, 31
sUB = 32
sCNT = 84
sTK = 54
sLIM = 55
sCX = 68
sWG = 2
sT0, sT1, sT2, sT3 = 33, 34, 35, 36
sIDX = 37
sM1, sM2, sM3 = 38, 40, 42
sM48 = 44
sQ1, sQ2, sQ3 = 46, 48, 50
sR8 = 52
sSTART, sSTEP, sLDS = 54, 55, 56
sPLO, sPHI = 57, 58
sC = 59
sHI = 60
sROLE = 61
sRED = 62
sGRP = 63
P_X, P_K, P_V, P_WQ, P_WO, P_BX, P_WG, P_WU, P_WD, P_C, P_WM, P_OUT, P_DBG, P_WS = [64 + 2*i for i in range(14)]
sPX = 74
sXO = 75
sRET = 0
sST = 88
sO_DST, sY_DST = 66, 67
sO_IN, sRB = 68, 69
sMH = 70
sLN = 84

vTID, vL, vJ, vGR, vKO, vVO, vL16, vDM = 0, 1, 2, 3, 4, 5, 6, 7
vE = 8
vT = 9
vQF = 16
vSD = 48
vVE = 64
vK = 128
vPAR = 64
vVU = 0
vM, vLS = 14, 15
vKU, vVB = 192, 224
vPA1, vPA2 = 76, 77
vOLW, vOLR, vRW, vRR, vOBA = 78, 79, 80, 81, 61

def srd(g, r, ptr, size):
    g.A(f"s_mov_b32 s{r}, s{ptr}")
    g.A(f"s_mov_b32 s{r+1}, s{ptr+1}")
    g.A(f"s_mov_b32 s{r+2}, {size}")
    g.A(f"s_mov_b32 s{r+3}, 0x20000")

DPP = "row_mask:0xf bank_mask:0xf"
def wave_reduce(g, op, regs, tmps, swaps=("v_permlane16_swap_b32", "v_permlane32_swap_b32")):
    n = len(regs)
    for pat in ("quad_perm:[1,0,3,2]", "quad_perm:[2,3,0,1]", "row_half_mirror", "row_mirror"):
        g.nop(max(0, 2 - (n - 1)))
        for r in regs:
            g.A(f"{op} v{r}, v{r}, v{r} {pat} {DPP}")
    for sw in swaps:
        for r, t in zip(regs, tmps):
            g.A(f"v_mov_b32 v{t}, v{r}")
        g.nop(2)
        for r, t in zip(regs, tmps):
            g.A(f"{sw} v{r}, v{t}")
        g.nop(1)
        for r, t in zip(regs, tmps):
            g.A(f"{op} v{r}, v{r}, v{t}")

def rnd2(g, a, b, t):
    g.A(f"v_cvt_pk_bf16_f32 v{t}, v{a}, v{b}")
    g.A(f"v_lshlrev_b32 v{a}, 16, v{t}")
    g.A(f"v_and_b32 v{b}, s{sHI}, v{t}")
def rnd1(g, a):
    g.A(f"v_cvt_pk_bf16_f32 v{a}, v{a}, v{a}")
    g.A(f"v_lshlrev_b32 v{a}, 16, v{a}")
def unpack(g, src, lo, hi):
    g.A(f"v_lshlrev_b32 v{lo}, 16, v{src}")
    g.A(f"v_and_b32 v{hi}, s{sHI}, v{src}")

def red63(g, r, fill):
    fill = list(fill)
    def pad(n):
        for _ in range(n):
            if fill: g.A(fill.pop(0))
            else:
                g.nop(n - _); break
    for pat in ("quad_perm:[1,0,3,2] " + DPP, "quad_perm:[2,3,0,1] " + DPP, "row_half_mirror " + DPP, "row_mirror " + DPP,
                "row_bcast:15 row_mask:0xa bank_mask:0xf", "row_bcast:31 row_mask:0xc bank_mask:0xf"):
        pad(2)
        g.A(f"v_add_f32 v{r}, v{r}, v{r} {pat}")
    pad(1)
    g.A(f"v_readlane_b32 s{sLN}, v{r}, 63")
    pad(2)
    for f in fill: g.A(f)

def pk(op, d, a, b, bc=False, neg=False):
    m = ""
    if bc: m += " op_sel_hi:[1,0]"
    if neg: m += " neg_lo:[0,1] neg_hi:[0,1]"
    return f"v_pk_{op}_f32 v[{d}:{d+1}], v[{a}:{a+1}], v[{b}:{b+1}]{m}"

def rnd2s(a, b, t):
    return [f"v_cvt_pk_bf16_f32 v{t}, v{a}, v{b}", f"v_lshlrev_b32 v{a}, 16, v{t}", f"v_and_b32 v{b}, s{sHI}, v{t}"]

def layernorm(g, X, T, E, n, presel=()):
    A = g.A
    A(pk("add", T, X, X+2)); A(pk("add", T+2, X+4, X+6)); A(pk("add", T, T, T+2))
    A(f"v_add_f32 v{T}, v{T}, v{T+1}")
    red63(g, T, presel)
    A(f"v_mov_b32 v{T+8}, {f2u(1.0/448):#x}")
    A(f"v_mul_f32 v{T}, s{sLN}, v{T+8}")
    A(pk("add", T+2, X, T, True, True)); A(pk("add", T+4, X+2, T, True, True))
    A(f"v_pk_mul_f32 v[{T+6}:{T+7}], v[{T+2}:{T+3}], v[{T+2}:{T+3}]")
    A(pk("add", T+2, X+4, T, True, True))
    A(f"v_pk_fma_f32 v[{T+6}:{T+7}], v[{T+4}:{T+5}], v[{T+4}:{T+5}], v[{T+6}:{T+7}]")
    A(pk("add", T+4, X+6, T, True, True))
    A(f"s_mov_b64 exec, s[{sM48}:{sM48+1}]")
    A(f"v_pk_fma_f32 v[{T+6}:{T+7}], v[{T+2}:{T+3}], v[{T+2}:{T+3}], v[{T+6}:{T+7}]")
    A(f"v_pk_fma_f32 v[{T+6}:{T+7}], v[{T+4}:{T+5}], v[{T+4}:{T+5}], v[{T+6}:{T+7}]")
    A("s_mov_b64 exec, -1")
    A(f"v_add_f32 v{T+6}, v{T+6}, v{T+7}")
    fill = [f"v_cvt_pk_bf16_f32 v{T}, v{T}, v{T}", f"v_lshlrev_b32 v{T}, 16, v{T}"]
    fill += [pk("add", E+i, E+i, T, True, True) for i in range(0, n, 2)]
    for i in range(0, n, 2): fill += rnd2s(E+i, E+i+1, T+2)
    red63(g, T+6, fill)
    A(f"v_mul_f32 v{T+6}, s{sLN}, v{T+8}")
    rnd1(g, T+6)
    A(f"v_add_f32 v{T+6}, {f2u(1e-5):#x}, v{T+6}")
    rnd1(g, T+6)
    A(f"v_sqrt_f32 v{T+6}, v{T+6}")
    g.nop(1)
    rnd1(g, T+6)
    A(f"v_rcp_f32 v{T+6}, v{T+6}")
    g.nop(1)
    for i in range(0, n, 2): A(pk("mul", E+i, E+i, T+6, True))

def modulate_pack(g, X, OC, SH, D, t, n):
    for i in range(0, n, 2): g.A(pk("mul", X+i, X+i, OC+i))
    for i in range(0, n, 2): rnd2(g, X+i, X+i+1, t)
    for i in range(0, n, 2): g.A(pk("add", X+i, X+i, SH+i))
    for i in range(0, n, 2): g.A(f"v_cvt_pk_bf16_f32 v{D+i//2}, v{X+i}, v{X+i+1}")

def retry_branch(g, fail_label):
    ok = g.newlab("L_ok")
    g.A(f"s_cbranch_vccz {ok}")
    g.A(f"s_sub_u32 s{sRETRY}, s{sRETRY}, 1")
    g.A(f"s_cbranch_scc0 {fail_label}")
    g.A(f"s_mov_b32 s{sRETRY}, 0")
    g.lbl(ok)

def tags_ab(g, ra, rb):
    t = vT
    g.A(f"v_xor_b32 v{t}, s{sTAG}, v{rb[0]}")
    for r in rb[1:]: g.A(f"v_bitop3_b32 v{t}, v{t}, v{r}, s{sTAG} bitop3:0xf6")
    g.A(f"v_cndmask_b32 v{t}, 0, v{t}, s[{sM48}:{sM48+1}]")
    for r in ra: g.A(f"v_bitop3_b32 v{t}, v{t}, v{r}, s{sTAG} bitop3:0xf6")
    g.A(f"v_cmp_ne_u32 vcc, 0, v{t}")

class VM:
    def __init__(self, g, W, n0=0):
        self.g, self.W, self.n = g, W, n0
    def pre(self):
        if self.W and self.n >= self.W:
            self.g.A(f"s_waitcnt vmcnt({self.W-1})")
            self.n = self.W - 1
        self.n += 1

def dma7(g, pol, vm, srd_=None):
    srd_ = srd_ or sA
    for i in range(7):
        vm.pre()
        g.A(f"s_mov_b32 m0, s{sLDS}")
        g.A(f"s_add_u32 s{sLDS}, s{sLDS}, 1024")
        g.A(f"buffer_load_dwordx4 v{vDM}, s[{srd_}:{srd_+3}], s{sSTART} offen{pol} lds")
        g.A(f"s_add_u32 s{sSTART}, s{sSTART}, s{sSTEP}")

def k_tile(g, vm, pol, base, add, dst, lo=0, hi=8):
    g.A(f"s_add_u32 s{sT0}, s{base}, {add}")
    g.A(f"s_add_u32 s{sT1}, s{base}, {add+4096}")
    for jj in range(lo, hi):
        vm.pre()
        r = dst + 4*jj
        kq, blk = jj >> 1, jj & 1
        so = sT0 if kq < 2 else sT1
        g.A(f"buffer_load_dwordx4 v[{r}:{r+3}], v{vKO}, s[{sK}:{sK+3}], s{so} offen offset:{(kq&1)*2048 + blk*256}{pol}")

def v_group(g, vm, pol, eta):
    for r in range(8):
        vm.pre()
        d = vVE + 32*eta + 4*r
        g.A(f"buffer_load_dwordx4 v[{d}:{d+3}], v{vVO}, s[{sV}:{sV+3}], s{sKB} offen offset:{512*r + 256*eta}{pol}")

def v_unit(g, vm, pol):
    for eta in range(2):
        for r in range(4):
            vm.pre()
            d = vVB + 16*eta + 4*r
            g.A(f"buffer_load_dwordx4 v[{d}:{d+3}], v{vVU}, s[{sV}:{sV+3}], s{sUB} offen offset:{512*r + 256*eta}{pol}")

def get_tag(g):
    g.A(f"v_readfirstlane_b32 s{sTAG}, v{vE}")
    g.A(f"s_add_u32 s{sTAG}, s{sTAG}, 0x9e3779b9")

def check_tags(g, regs, fail_label, mask=None, t=vT):
    if len(regs) == 1:
        g.A(f"v_cmp_ne_u32 vcc, s{sTAG}, v{regs[0]}")
    else:
        g.A(f"v_xor_b32 v{t}, s{sTAG}, v{regs[0]}")
        for r in regs[1:]:
            g.A(f"v_bitop3_b32 v{t}, v{t}, v{r}, s{sTAG} bitop3:0xf6")
        g.A(f"v_cmp_ne_u32 vcc, 0, v{t}")
    if mask is not None:
        g.A(f"s_and_b64 vcc, vcc, s[{mask}:{mask+1}]")
    ok = g.newlab("L_ok")
    g.A(f"s_cbranch_vccz {ok}")
    g.A(f"s_sub_u32 s{sRETRY}, s{sRETRY}, 1")
    g.A(f"s_cbranch_scc0 {fail_label}")
    g.A(f"s_mov_b32 s{sRETRY}, 0")
    g.lbl(ok)

def lds_spin(g, off, target_sreg_or_imm, lab, sleep=2):
    g.A(f"v_mov_b32 v{vT}, {L_FLAG}")
    g.lbl(lab)
    g.A(f"ds_read_b32 v{vT+1}, v{vT} offset:{off}")
    g.A("s_waitcnt lgkmcnt(0)")
    g.A(f"v_cmp_le_u32 vcc, {target_sreg_or_imm}, v{vT+1}")
    g.A(f"s_cbranch_vccnz {lab}_ok")
    if sleep: g.A(f"s_sleep {sleep}")
    g.A(f"s_branch {lab}")
    g.lbl(lab + "_ok")

def lds_inc(g, off):
    g.A(f"v_mov_b32 v{vT}, {L_FLAG}")
    g.A(f"v_mov_b32 v{vT+1}, 1")
    g.A("s_mov_b64 exec, 1")
    g.A(f"ds_add_u32 v{vT}, v{vT+1} offset:{off}")
    g.A("s_mov_b64 exec, -1")

NSTAMP = 10
def tstamp(g, idx):
    if g.o.get("tst"): stamp(g, idx, True)
def stamp(g, idx, force=False):
    if not g.o.get("stamps"): return
    if g.o.get("tst") and not force and idx in (1, 2, 3, 4): return
    g.A(f"s_memrealtime s[{sST}:{sST+1}]")
    g.A("s_waitcnt lgkmcnt(0)")
    g.A(f"s_mov_b32 s{92+idx}, s{sST}")
def flush_stamps(g, n):
    if not g.o.get("stamps"): return
    if g.o.get("dbg"):
        g.A("s_mov_b64 exec, 1")
        g.A("v_mov_b32 v15, 0")
        g.A(f"s_lshl_b32 s{sT3}, s2, 3")
        g.A(f"s_add_u32 s{sT3}, s{sT3}, s{sWAVE}")
        g.A(f"s_cmp_eq_u32 s{sT3}, 0")
        g.A("s_cbranch_scc1 L_dbg0")
        g.A(f"s_cmp_eq_u32 s{sT3}, {144*8+7}")
        g.A("s_cbranch_scc0 L_end")
        for k, i in enumerate((6, 1, 7, 2, 8, 9)):
            g.A(f"s_sub_u32 s{sT3}, s{92+i}, s92")
            g.A(f"v_mov_b32 v14, s{sT3}")
            g.A(f"global_store_dword v15, v14, s[82:83] offset:{4*k}")
            g.nop(1)
        g.A("s_branch L_end")
        g.lbl("L_dbg0")
        for k, i in enumerate((6, 7, 9, 2, 3, 4, 8)):
            g.A(f"s_sub_u32 s{sT3}, s{92+i}, s92")
            g.A(f"v_mov_b32 v14, s{sT3}")
            g.A(f"global_store_dword v15, v14, s[82:83] offset:{32+4*k}")
            g.nop(1)
        return
    g.A(f"s_lshl_b32 s{sT3}, s2, 3")
    g.A(f"s_add_u32 s{sT3}, s{sT3}, s{sWAVE}")
    g.A(f"s_lshl_b32 s{sT3}, s{sT3}, 6")
    g.A(f"s_add_u32 s{sT3}, s{sT3}, {WS_STAMP}")
    g.A("s_mov_b64 exec, 1")
    g.A("v_mov_b32 v15, 0")
    for i in range(n):
        g.A(f"v_mov_b32 v14, s{92+i}")
        g.A(f"buffer_store_dword v14, v15, s[{sWS}:{sWS+3}], s{sT3} offen offset:{4*i}")
        g.nop(1)

def sel4(g, dst, r0, r1, r2, r3, m1, m2, m3):
    g.A(f"v_cndmask_b32 v{dst}, v{r0}, v{r1}, s[{m1}:{m1+1}]")
    g.A(f"v_cndmask_b32 v{dst}, v{dst}, v{r2}, s[{m2}:{m2+1}]")
    g.A(f"v_cndmask_b32 v{dst}, v{dst}, v{r3}, s[{m3}:{m3+1}]")

def build(opt):
    g = G(opt)
    A = g.A
    polK = opt.get("polK", " nt"); polV = opt.get("polV", " nt"); polW = opt.get("polW", " nt")
    polWO = opt.get("polWO", " nt"); polP = opt.get("polP", " nt")
    W = opt.get("W", 16)
    W2 = opt.get("W2", 24)
    PRIO = opt.get("prio", 1)
    XR = opt.get("XR", 1)
    def prio(p):
        if PRIO: A(f"s_setprio {p}")
    hdr = open(f"cdna_kernels/{NAME}.s.ref").read().split("\n")
    for line in hdr:
        if line.startswith("; @launch"):
            g.L.append(f"; @launch grid=(256,1,1) block=(512,1,1) lds={L_END}")
            break
        g.L.append(line)
    g.L += ['.amdgcn_target "amdgcn-amd-amdhsa--gfx950"', ".text", f".globl {NAME}_kernel", ".p2align 8",
            f".type {NAME}_kernel,@function"]
    g.lbl(f"{NAME}_kernel")
    A("s_cmp_ge_u32 s2, 256")
    A("s_cbranch_scc1 L_end")
    A("s_load_dwordx16 s[64:79], s[0:1], 0")
    A("s_load_dwordx8 s[80:87], s[0:1], 64")
    A("s_load_dwordx2 s[90:91], s[0:1], 104")
    if opt.get("dbg"):
        A("s_memrealtime s[92:93]")
        A("s_load_dwordx2 s[74:75], s[0:1], 96") if False else None
    A(f"s_getpc_b64 s[{sST}:{sST+1}]")
    g.lbl("L_pc")
    A(f"v_lshlrev_b32 v{vT}, 5, v0")
    A(f"v_min_u32 v{vT}, L_end - L_pc - 4, v{vT}")
    A(f"global_load_dword v15, v{vT}, s[{sST}:{sST+1}]")
    prio(3)
    A(f"v_lshrrev_b32 v{vL}, 6, v0")
    A(f"s_and_b32 s{sS}, s2, 7")
    A(f"v_readfirstlane_b32 s{sWAVE}, v{vL}")
    A(f"v_and_b32 v{vL}, 63, v0")
    A(f"v_and_b32 v{vJ}, 15, v0")
    A(f"v_lshrrev_b32 v{vGR}, 4, v{vL}")
    A(f"v_lshrrev_b32 v{vKO}, 2, v{vJ}")
    A(f"v_lshlrev_b32 v{vKO}, 9, v{vKO}")
    A(f"v_lshl_add_u32 v{vKO}, v{vGR}, 6, v{vKO}")
    A(f"v_and_b32 v{vT+3}, 3, v0")
    A(f"v_lshl_add_u32 v{vKO}, v{vT+3}, 4, v{vKO}")
    A(f"v_lshlrev_b32 v{vL16}, 4, v{vL}")
    A(f"v_mov_b32 v{vE}, 0")
    A(f"s_lshr_b32 s{sN}, s2, 3")
    A(f"s_and_b32 s{sB_}, s{sN}, 3")
    A(f"s_lshr_b32 s{sKVH}, s{sN}, 2")
    A(f"s_lshl_b32 s{sGRP}, s{sB_}, 3")
    A(f"s_add_u32 s{sGRP}, s{sGRP}, s{sKVH}")
    A(f"s_lshl_b32 s{sT0}, s{sGRP}, 21")
    A(f"s_lshl_b32 s{sT1}, s{sS}, 3")
    A(f"s_add_u32 s{sT1}, s{sT1}, s{sWAVE}")
    A(f"s_mul_i32 s{sT1}, s{sT1}, 24576")
    A(f"s_add_u32 s{sKB}, s{sT0}, s{sT1}")
    A(f"s_lshr_b32 s{sT2}, s{sS}, 2")
    A(f"s_sub_u32 s{sT0}, s{sS}, s{sT2}")
    A(f"s_sub_u32 s{sT0}, s{sT0}, 1")
    A(f"s_mul_i32 s{sT1}, s{sT0}, 5")
    A(f"s_add_u32 s{sT1}, s{sT1}, s{sN}")
    A(f"s_bfe_u32 s{sT3}, s{sT1}, 0x40001")
    A(f"s_mul_i32 s{sT3}, s{sT3}, 6")
    A(f"s_add_u32 s{sT3}, s{sT3}, s{sT0}")
    A(f"s_lshl_b32 s{sT3}, s{sT3}, 1")
    A(f"s_and_b32 s{sT1}, s{sT1}, 1")
    A(f"s_add_u32 s{sIDX}, s{sT3}, s{sT1}")
    A(f"s_lshl_b32 s{sT1}, s{sN}, 1")
    A(f"s_add_u32 s{sT1}, s{sT1}, s{sT2}")
    A(f"s_and_b32 s{sT0}, s{sS}, 3")
    A(f"s_cselect_b32 s{sIDX}, s{sIDX}, s{sT1}")
    A(f"s_cselect_b32 s{sROLE}, 4, 1")
    A(f"s_cselect_b32 s{sT0}, 42, 64")
    A(f"s_mov_b32 s{sK+2}, {64<<20}")
    A(f"s_mov_b32 s{sK+3}, 0x20000")
    A(f"s_cmp_lt_u32 s{sIDX}, s{sT0}")
    A("s_waitcnt lgkmcnt(0)")
    A(f"global_load_dword v{vE}, v{vE}, s[{P_WS}:{P_WS+1}] sc1")
    A(f"s_mov_b32 s{sK}, s{P_K}")
    A(f"s_mov_b32 s{sK+1}, s{P_K+1}")
    A("s_cbranch_scc1 L_early")
    vm = VM(g, W, 1)
    k_tile(g, vm, polK, sKB, 0, vK)
    A("s_branch L_main0")

    g.lbl("L_early")
    A(f"s_cmp_eq_u32 s{sROLE}, 1")
    A(f"s_cselect_b32 s{sB}, s{P_X}, s{P_C}")
    A(f"s_cselect_b32 s{sB+1}, s{P_X+1}, s{P_C+1}")
    A(f"s_mov_b32 s{sB+2}, 3584")
    A(f"s_mov_b32 s{sB+3}, 0x20000")
    A(f"s_mov_b32 s{sT0}, 1024")
    A(f"s_cselect_b32 s{sT0}, 896, s{sT0}")
    A(f"s_cselect_b32 s{sT1}, 3, 4")
    A(f"s_cselect_b32 s{sT2}, 6, 0")
    A(f"s_cselect_b32 s{sT3}, 48, 64")
    A(f"s_mul_i32 s{sT0}, s{sT0}, s{sWAVE}")
    A(f"s_lshl_b32 s{sT2}, 8, s{sT2}")
    A(f"v_lshlrev_b32 v13, s{sT1}, v{vL}")
    A(f"v_cmp_gt_u32 vcc, s{sT3}, v{vL}")
    A(f"buffer_load_dwordx2 v[16:17], v13, s[{sB}:{sB+3}], s{sT0} offen")
    A(f"v_add_u32 v13, s{sT2}, v13")
    A(f"v_mov_b32 v{vT}, 0x100000")
    A(f"v_cndmask_b32 v13, v{vT}, v13, vcc")
    A(f"buffer_load_dwordx2 v[18:19], v13, s[{sB}:{sB+3}], s{sT0} offen")
    A(f"v_lshrrev_b32 v{vT}, 3, v{vL}")
    A(f"s_cmp_eq_u32 s{sROLE}, 1")
    A(f"s_cselect_b32 s{sA}, s{P_WQ}, s{P_WM}")
    A(f"s_cselect_b32 s{sA+1}, s{P_WQ+1}, s{P_WM+1}")
    A(f"s_mov_b32 s{sT0}, 5376")
    A(f"s_cselect_b32 s{sT0}, 8192, s{sT0}")
    A(f"s_mul_i32 s{sA+2}, s{sT0}, 448")
    A(f"s_mov_b32 s{sA+3}, 0x20000")
    A(f"v_mul_u32_u24 v{vDM}, s{sT0}, v{vT}")
    A(f"v_and_b32 v{vT+1}, 7, v{vL}")
    A(f"v_and_b32 v{vT}, 2, v{vT}")
    A(f"v_xor_b32 v{vT+1}, v{vT+1}, v{vT}")
    A(f"v_lshl_add_u32 v{vDM}, v{vT+1}, 4, v{vDM}")
    A(f"s_and_b32 s{sT1}, s{sWAVE}, 1")
    A(f"s_lshl_b32 s{sT1}, s{sT1}, 6")
    A(f"v_xor_b32 v{vDM}, s{sT1}, v{vDM}")
    A(f"s_lshl_b32 s{sSTEP}, s{sT0}, 3")
    A(f"s_mul_i32 s{sT0}, s{sWAVE}, 7")
    A(f"s_mul_i32 s{sT1}, s{sT0}, s{sSTEP}")
    A(f"s_lshl_b32 s{sSTART}, s{sIDX}, 7")
    A(f"s_add_u32 s{sSTART}, s{sSTART}, s{sT1}")
    A(f"s_lshl_b32 s{sLDS}, s{sT0}, 10")
    for i in range(7):
        A(f"s_mov_b32 m0, s{sLDS}")
        A(f"s_add_u32 s{sLDS}, s{sLDS}, 1024")
        A(f"buffer_load_dwordx4 v{vDM}, s[{sA}:{sA+3}], s{sSTART} offen{polW} lds")
        A(f"s_add_u32 s{sSTART}, s{sSTART}, s{sSTEP}")
        A(f"v_xor_b32 v{vDM}, 64, v{vDM}")
    def consts():
        srd(g, sWS, P_WS, WS_SIZE)
        A(f"s_mov_b32 s{sM48}, -1"); A(f"s_mov_b32 s{sM48+1}, 0x0000ffff")
        A(f"s_mov_b32 s{sHI}, 0xffff0000")
        A(f"s_mov_b32 s{sRETRY}, 0x40000")
        if opt.get("stamps"):
            for i in range(1 if opt.get("dbg") else 0, NSTAMP): A(f"s_mov_b32 s{92+i}, 0")
        if not opt.get("dbg"): stamp(g, 0)
    consts()
    A(f"s_cmp_lt_u32 s{sWAVE}, 4")
    A("s_cbranch_scc0 L_p1")
    A("s_waitcnt vmcnt(7)")
    for i in range(4): unpack(g, 16+i, 24+2*i, 25+2*i)
    A(f"s_cmp_eq_u32 s{sROLE}, 1")
    A("s_cbranch_scc1 L_p_ln")
    A(f"s_lshl_b32 s{sT2}, s{sWAVE}, 10")
    A(f"s_add_u32 s{sT2}, s{sT2}, {L_A}")
    A(f"v_add_u32 v{vT}, s{sT2}, v{vL16}")
    for i in range(8): A(f"v_mul_f32 v{32+i}, {f2u(-LOG2E):#x}, v{24+i}")
    for i in range(8): A(f"v_exp_f32 v{32+i}, v{32+i}")
    for i in range(8): A(f"v_add_f32 v{32+i}, 1.0, v{32+i}")
    for i in range(8): A(f"v_rcp_f32 v{32+i}, v{32+i}")
    for i in range(8): A(f"v_mul_f32 v{24+i}, v{24+i}, v{32+i}")
    for i in range(4): A(f"v_cvt_pk_bf16_f32 v{24+i}, v{24+2*i}, v{25+2*i}")
    A(f"ds_write_b128 v{vT}, v[24:27]")
    A("s_branch L_p1")
    g.lbl("L_p_ln")
    layernorm(g, 24, 32, 24, 8)
    for i in range(0, 8, 2): rnd2(g, 24+i, 25+i, vT)
    g.lbl("L_p1")
    A(f"s_waitcnt vmcnt(0) lgkmcnt(0)")
    A("s_barrier")
    A(f"s_cmp_lt_u32 s{sWAVE}, 4")
    A("s_cbranch_scc1 L_p_w")
    A(f"s_cmp_eq_u32 s{sROLE}, 1")
    A("s_cbranch_scc0 L_p_done")
    A("s_barrier")
    A("s_branch L_p_done")
    g.lbl("L_p_w")
    get_tag(g)
    A(f"v_lshrrev_b32 v{vT+2}, 2, v{vJ}")
    A(f"v_lshl_add_u32 v{vT+2}, v{vGR}, 3, v{vT+2}")
    A(f"v_lshlrev_b32 v{vT+2}, 7, v{vT+2}")
    A(f"v_lshl_add_u32 v{vT+2}, v{vT+3}, 3, v{vT+2}")
    A(f"v_bfe_u32 v{vT}, v{vL}, 3, 2")
    A(f"v_xor_b32 v{vT}, s{sWAVE}, v{vT}")
    A(f"v_lshl_add_u32 v{vT+2}, v{vT}, 5, v{vT+2}")
    for ks in range(14):
        r = 64 + 4*ks
        A(f"ds_read_b64_tr_b16 v[{r}:{r+1}], v{vT+2} offset:{L_IMG + ks*4096}")
        A(f"ds_read_b64_tr_b16 v[{r+2}:{r+3}], v{vT+2} offset:{L_IMG + ks*4096+512}")
        if ks % 4 == 3: A("s_waitcnt lgkmcnt(6)")
    A(f"s_cmp_eq_u32 s{sROLE}, 1")
    A("s_cbranch_scc0 L_p_mm")
    A(f"v_add_u32 v13, 1024, v{vL16}")
    A(f"v_mov_b32 v{vT}, {WS_SIZE}")
    A(f"v_cndmask_b32 v13, v{vT}, v13, s[{sM48}:{sM48+1}]")
    A(f"s_mul_i32 s{sXO}, s{sWAVE}, {MB}")
    A(f"s_add_u32 s{sXO}, s{sXO}, {WS_M}")
    g.lbl("L_hpoll")
    for i, (va, off) in enumerate(((vL16, 0), (13, 0), (vL16, 1792), (13, 1792))):
        A(f"buffer_load_dwordx4 v[{32+4*i}:{35+4*i}], v{va}, s[{sWS}:{sWS+3}], s{sXO} offen offset:{off} sc1")
    A("s_waitcnt vmcnt(0)")
    tags_ab(g, [35, 43], [39, 47])
    retry_branch(g, "L_hpoll")
    for i, r in enumerate((32, 33, 36, 37)):
        unpack(g, r, 16+2*i, 17+2*i)
        unpack(g, r+8, 48+2*i, 49+2*i)
    for i in range(8): A(f"v_add_f32 v{48+i}, 1.0, v{48+i}")
    for i in range(0, 8, 2): rnd2(g, 48+i, 49+i, vT)
    modulate_pack(g, 24, 48, 16, 24, vT, 8)
    A(f"s_mul_i32 s{sT2}, s{sWAVE}, 896")
    A(f"s_add_u32 s{sT2}, s{sT2}, {L_A}")
    A(f"v_lshl_add_u32 v{vT}, v{vL}, 3, s{sT2}")
    A(f"ds_write_b64 v{vT}, v[24:25]")
    A(f"s_mov_b64 exec, s[{sM48}:{sM48+1}]")
    A(f"ds_write_b64 v{vT}, v[26:27] offset:512")
    A("s_mov_b64 exec, -1")
    A("s_waitcnt lgkmcnt(0)")
    A("s_barrier")
    g.lbl("L_p_mm")
    stamp(g, 1)
    A(f"v_mul_u32_u24 v{vT+1}, 896, v{vT+3}")
    A(f"v_lshl_add_u32 v{vT+1}, v{vGR}, 4, v{vT+1}")
    A(f"v_add_u32 v{vT+1}, {L_A}, v{vT+1}")
    A("s_waitcnt lgkmcnt(0)")
    for ks in range(14):
        A(f"ds_read_b128 v[{128+4*ks}:{131+4*ks}], v{vT+1} offset:{64*ks}")
    for ks in range(14):
        A(f"s_waitcnt lgkmcnt({13-ks})")
        c = "0" if ks == 0 else "v[16:19]"
        A(f"v_mfma_f32_16x16x32_bf16 v[16:19], v[{64+4*ks}:{67+4*ks}], v[{128+4*ks}:{131+4*ks}], {c}")
    A(f"s_cmp_eq_u32 s{sROLE}, 1")
    A(f"s_mov_b32 s{sT2}, {MB}")
    A(f"s_cselect_b32 s{sT2}, 16384, s{sT2}")
    A(f"s_mov_b32 s{sT3}, {WS_M}")
    A(f"s_cselect_b32 s{sT3}, {WS_Q}, s{sT3}")
    A(f"s_lshl_b32 s{sLDS}, s{sIDX}, 8")
    A(f"s_add_u32 s{sT3}, s{sT3}, s{sLDS}")
    A(f"s_lshl_b32 s{sLDS}, s{sWAVE}, 6")
    A(f"s_add_u32 s{sT3}, s{sT3}, s{sLDS}")
    A(f"v_mul_u32_u24 v{vT+1}, s{sT2}, v{vT+3}")
    A(f"v_lshl_add_u32 v{vT+1}, v{vGR}, 4, v{vT+1}")
    A(f"v_mov_b32 v22, 0")
    A(f"v_mov_b32 v23, s{sTAG}")
    A(f"v_cvt_pk_bf16_f32 v20, v16, v17")
    A(f"v_cvt_pk_bf16_f32 v21, v18, v19")
    A(f"s_mov_b32 exec_lo, 0x000f000f")
    A(f"s_mov_b32 exec_hi, 0x000f000f")
    A(f"buffer_store_dwordx4 v[20:23], v{vT+1}, s[{sWS}:{sWS+3}], s{sT3} offen sc1")
    A("s_mov_b64 exec, -1")
    stamp(g, 2)
    g.lbl("L_p_done")
    k_tile(g, VM(g, 0), polK, sKB, 0, vK)
    A(f"s_lshl_b32 s{sRED}, s{sROLE}, 4")
    A(f"s_and_b32 s{sRED}, s{sRED}, 64")
    A(f"s_add_u32 s{sRED}, s{sRED}, s{sIDX}")
    A("s_branch L_main1")

    g.lbl("L_main0")
    consts()
    A(f"s_mov_b32 s{sRED}, 0xffff")
    A(f"s_mov_b32 s{sROLE}, 2")
    A(f"s_sub_u32 s{sIDX}, s{sIDX}, 42")
    A(f"s_cmp_lt_u32 s{sIDX}, 56")
    A("s_cbranch_scc1 L_main1")
    A(f"s_mov_b32 s{sROLE}, 8")
    A(f"s_sub_u32 s{sIDX}, s{sIDX}, 56")
    A(f"s_cmp_lt_u32 s{sIDX}, 64")
    A("s_cbranch_scc1 L_main1")
    A(f"s_mov_b32 s{sROLE}, 0")
    A(f"s_add_u32 s{sRED}, s{sIDX}, {106-64}")
    g.lbl("L_main1")
    if opt.get("dbg"):
        A("s_load_dwordx2 s[82:83], s[0:1], 96")
        A("s_waitcnt lgkmcnt(0)")
    srd(g, sV, P_V, 64 << 20)
    A(f"v_lshlrev_b32 v{vVO}, 12, v{vGR}")
    A(f"v_lshl_add_u32 v{vVO}, v{vJ}, 4, v{vVO}")
    A(f"v_lshlrev_b32 v{vVU}, 11, v{vGR}")
    A(f"v_lshl_add_u32 v{vVU}, v{vJ}, 4, v{vVU}")
    A(f"s_mov_b32 s{sM1}, 0xffff0000"); A(f"s_mov_b32 s{sM1+1}, 0")
    A(f"s_mov_b32 s{sM2}, 0"); A(f"s_mov_b32 s{sM2+1}, 0xffff")
    A(f"s_mov_b32 s{sM3}, 0"); A(f"s_mov_b32 s{sM3+1}, 0xffff0000")
    A(f"s_mov_b32 s{sQ1}, 0x22222222"); A(f"s_mov_b32 s{sQ1+1}, 0x22222222")
    A(f"s_mov_b32 s{sQ2}, 0x44444444"); A(f"s_mov_b32 s{sQ2+1}, 0x44444444")
    A(f"s_mov_b32 s{sQ3}, 0x88888888"); A(f"s_mov_b32 s{sQ3+1}, 0x88888888")
    A(f"s_mov_b32 s{sR8}, 0xff00ff00"); A(f"s_mov_b32 s{sR8+1}, 0xff00ff00")
    A(f"s_mov_b32 s{sPLO}, 0x05040100"); A(f"s_mov_b32 s{sPHI}, 0x07060302")
    A(f"s_mov_b32 s{sC}, {f2u(0.0625*LOG2E):#x}")
    A(f"s_cmp_eq_u32 s{sWAVE}, 7")
    A("s_cbranch_scc1 L_clr")
    g.lbl("L_k2")
    vm = VM(g, W, 10)
    k_tile(g, vm, polK, sKB, 8192, vK+32)
    prio(opt.get("PV0", 2))
    v_group(g, VM(g, W, W), polV, 0)
    LD = opt.get("LD", 0)
    if not LD:
        A(f"s_and_b32 s{sT0}, s{sROLE}, 10")
        A("s_cbranch_scc1 L_md2")
        g.lbl("L_md_done")
    v_group(g, VM(g, W, W), polV, 1)
    get_tag(g)
    NU = 128
    TY = opt.get("TY", 0)
    A(f"s_lshl_b32 s{sT0}, s{sGRP}, 8")
    A(f"s_add_u32 s{sT0}, s{sT0}, {WS_CNT}")
    A(f"s_add_u32 s{sCNT}, s{P_WS}, s{sT0}")
    A(f"s_addc_u32 s{sCNT+1}, s{P_WS+1}, 0")
    A(f"s_lshl_b32 s{sKB}, s{sGRP}, 21")
    A(f"s_cmp_lt_u32 s{sWAVE}, 4")
    A(f"s_mov_b32 s{sLIM}, {TY}")
    A(f"s_cselect_b32 s{sLIM}, {NU}, s{sLIM}")
    A(f"s_cmp_eq_u32 s{sROLE}, 2")
    A(f"s_cselect_b32 s{sT0}, {opt.get('LF', 100)}, s{sLIM}")
    A(f"s_cmp_eq_u32 s{sROLE}, 8")
    A(f"s_cselect_b32 s{sT0}, {opt.get('LC', 128)}, s{sT0}")
    A(f"s_min_u32 s{sLIM}, s{sLIM}, s{sT0}")
    g.lbl("L_peek")
    A(f"s_mov_b64 s[{sCX+2}:{sCX+3}], 0")
    A(f"s_atomic_add_x2 s[{sCX+2}:{sCX+3}], s[{sCNT}:{sCNT+1}], 0 glc")
    A("s_waitcnt lgkmcnt(0)")
    A(f"s_cmp_eq_u32 s{sCX+3}, s{sTAG}")
    A("s_cbranch_scc1 L_peek_ok")
    A(f"s_mov_b32 s{sCX}, 0")
    A(f"s_mov_b32 s{sCX+1}, s{sTAG}")
    A(f"s_atomic_cmpswap_x2 s[{sCX}:{sCX+3}], s[{sCNT}:{sCNT+1}], 0 glc")
    A("s_waitcnt lgkmcnt(0)")
    A(f"s_sub_u32 s{sRETRY}, s{sRETRY}, 1")
    A("s_cbranch_scc0 L_peek")
    A(f"s_mov_b32 s{sRETRY}, 0")
    g.lbl("L_peek_ok")
    A(f"s_mov_b32 s{sTK}, s{sCX+2}")
    ncl = [0]
    def claim():
        ncl[0] += 1
        A(f"s_cmp_lt_u32 s{sTK}, s{sLIM}")
        A(f"s_mov_b32 s{sTK}, 0xffff")
        A(f"s_cbranch_scc0 L_nc{ncl[0]}")
        A(f"s_mov_b32 s{sTK}, 1")
        A(f"s_atomic_add s{sTK}, s[{sCNT}:{sCNT+1}], 0 glc")
        g.lbl(f"L_nc{ncl[0]}")
    def unit_base():
        A(f"s_mul_i32 s{sT0}, s{sTK}, 24576")
        A(f"s_add_u32 s{sT0}, s{sT0}, 16384")
        A(f"s_lshl_b32 s{sT1}, s{sTK}, 13")
        A(f"s_add_u32 s{sT1}, s{sT1}, {(3072-1024)*512}")
        A(f"s_cmp_lt_u32 s{sTK}, 64")
        A(f"s_cselect_b32 s{sUB}, s{sT0}, s{sT1}")
        A(f"s_add_u32 s{sUB}, s{sUB}, s{sKB}")
    claim()
    def qloads():
        for i in range(2):
            A(f"buffer_load_dwordx4 v[{16+4*i}:{19+4*i}], v{vL16}, s[{sWS}:{sWS+3}], s{sPX} offen offset:{1024*i} sc1")
    A(f"s_lshl_b32 s{sT1}, s{sB_}, 14")
    A(f"s_lshl_b32 s{sT2}, s{sKVH}, 11")
    A(f"s_add_u32 s{sT1}, s{sT1}, s{sT2}")
    A(f"s_add_u32 s{sPX}, s{sT1}, {WS_Q}")
    qloads()
    prio(1)
    A(f"s_cmp_lt_u32 s{sWAVE}, 4")
    A("s_cbranch_scc0 L_yp")
    prio(0)
    g.lbl("L_yp")
    A("s_waitcnt lgkmcnt(0)")
    A(f"s_cmp_lt_u32 s{sTK}, {NU}")
    A("s_cbranch_scc0 L_qwait")
    unit_base()
    k_tile(g, VM(g, W, W), polK, sUB, 0, vKU)
    v_unit(g, VM(g, W, W), polV)
    A("s_waitcnt vmcnt(16)")
    A("s_branch L_qchk")
    g.lbl("L_qpoll")
    qloads()
    g.lbl("L_qwait")
    A("s_waitcnt vmcnt(0)")
    g.lbl("L_qchk")
    check_tags(g, [19, 23], "L_qpoll")
    stamp(g, 3)
    A(f"v_lshlrev_b32 v{vT+2}, 3, v{vL}")
    A(f"v_add_u32 v{vT+2}, {L_Q}, v{vT+2}")
    A(f"ds_write_b64 v{vT+2}, v[16:17]")
    A(f"ds_write_b64 v{vT+2}, v[20:21] offset:512")
    A(f"v_bfe_u32 v{vT}, v{vJ}, 2, 1")
    A(f"v_lshlrev_b32 v{vT}, 9, v{vT}")
    A(f"v_lshl_add_u32 v{vT}, v{vGR}, 6, v{vT}")
    A(f"v_and_b32 v{vT+1}, 3, v{vL}")
    A(f"v_lshl_add_u32 v{vT}, v{vT+1}, 4, v{vT}")
    A(f"v_add_u32 v{vT}, {L_Q}, v{vT}")
    QL, QH = 48, 56
    A(f"ds_read_b128 v[{QL}:{QL+3}], v{vT}")
    A(f"ds_read_b128 v[{QL+4}:{QL+7}], v{vT} offset:256")
    A(f"s_waitcnt lgkmcnt(0)")
    for i in range(8):
        A(f"v_cndmask_b32 v{QH+i}, 0, v{QL+i}, s[{sR8}:{sR8+1}]")
    for i in range(8):
        A(f"v_cndmask_b32 v{QL+i}, v{QL+i}, 0, s[{sR8}:{sR8+1}]")
    g.nop(2)
    def qk_tile(src, D0):
        for jj in range(8):
            kq, blk = jj >> 1, jj & 1
            d = D0 + 4*(kq >> 1)
            q = (QH if (kq & 1) else QL) + 4*blk
            r = src + 4*jj
            c = "0" if (jj & 3) == 0 else f"v[{d}:{d+3}]"
            A(f"v_mfma_f32_16x16x32_bf16 v[{d}:{d+3}], v[{q}:{q+3}], v[{r}:{r+3}], {c}")
    SD = 16
    for t in range(2): qk_tile(vK + 32*t, SD + 8*t)
    PFA, PFU, vPW, vPR, UD = 176, 180, 182, 183, 184
    A(f"v_and_b32 v12, 1, v{vGR}")
    A(f"v_and_b32 v{vT}, 1, v{vL}")
    A(f"v_lshlrev_b32 v{vPW}, 3, v{vT}")
    A(f"v_lshrrev_b32 v13, 1, v{vGR}")
    A(f"v_lshl_add_u32 v{vPW}, v13, 2, v{vPW}")
    A(f"v_lshrrev_b32 v13, 2, v{vJ}")
    A(f"v_add_u32 v{vPW}, v{vPW}, v13")
    A(f"v_lshlrev_b32 v{vPW}, 1, v{vPW}")
    A(f"v_lshl_add_u32 v{vPW}, v12, 7, v{vPW}")
    A(f"s_lshl_b32 s{sT1}, s{sWAVE}, 8")
    A(f"s_add_u32 s{sT1}, s{sT1}, {L_P}")
    A(f"v_add_u32 v{vPW}, s{sT1}, v{vPW}")
    A(f"v_bfe_u32 v13, v{vL}, 1, 1")
    A(f"v_lshl_add_u32 v13, v13, 5, v{vPW}")
    A(f"v_lshlrev_b32 v{vPR}, 7, v{vT}")
    A(f"v_add_u32 v{vPR}, s{sT1}, v{vPR}")
    A(f"v_lshl_add_u32 v12, v{vGR}, 4, v{vPR}")
    A(f"v_lshl_add_u32 v{vPR}, v{vGR}, 3, v{vPR}")
    A(f"s_mov_b32 s{sR8}, 0xaaaaaaaa"); A(f"s_mov_b32 s{sR8+1}, 0xaaaaaaaa")
    for d in range(4):
        D = SD + 4*d
        sel4(g, D, D, D+1, D+2, D+3, sQ1, sQ2, sQ3)
    for pat in ("quad_perm:[1,0,3,2]", "quad_perm:[2,3,0,1]"):
        for d in range(4):
            D = SD + 4*d
            A(f"v_add_f32 v{D}, v{D}, v{D} {pat} {DPP}")
    S0, S1 = 10, 11
    sel4(g, S0, SD, SD+4, SD+8, SD+12, sQ1, sQ2, sQ3)
    rnd1(g, S0)
    A(f"v_mov_b32 v{vM}, v{S0}")
    wave_reduce(g, "v_max_f32", [vM], [17], swaps=("v_permlane32_swap_b32",))
    A(f"v_sub_f32 v{S0}, v{S0}, v{vM}")
    A(f"v_mul_f32 v{S0}, s{sC}, v{S0}")
    A(f"v_exp_f32 v{vLS}, v{S0}")
    g.nop(1)
    A(f"v_cvt_pk_bf16_f32 v20, v{vLS}, v{vLS}")
    A(f"ds_write_b16 v13, v20")
    A(f"ds_read_b128 v[{PFA}:{PFA+3}], v12")
    A("s_waitcnt lgkmcnt(0)")
    ACCB = (16, 128)
    PT = 160
    for eta in range(2):
        R = vVE + 32*eta
        for c in range(4):
            T = PT + 8*(c & 1)
            for m in range(4):
                A(f"v_perm_b32 v{T+m}, v{R+4*(2*m+1)+c}, v{R+4*(2*m)+c}, s{sPLO}")
            for m in range(4):
                A(f"v_perm_b32 v{T+4+m}, v{R+4*(2*m+1)+c}, v{R+4*(2*m)+c}, s{sPHI}")
            g.nop(1)
            for hh in range(2):
                acc = ACCB[eta] + 4*(2*c + hh)
                A(f"v_mfma_f32_16x16x32_bf16 v[{acc}:{acc+3}], v[{PFA}:{PFA+3}], v[{T+4*hh}:{T+4*hh+3}], 0")
        if eta == 0:
            A(f"s_cmp_lt_u32 s{sRED}, 112")
            A("s_cbranch_scc1 L_parR")
            A(f"s_and_b32 s{sT0}, s{sROLE}, 10")
            A("s_cbranch_scc1 L_parF")
            g.lbl("L_par_done")
    A(f"v_and_b32 v12, 1, v{vGR}")
    A(f"v_lshlrev_b32 v{vRW}, 6, v12")
    A(f"s_lshl_b32 s{sT0}, s{sWAVE}, 3")
    A(f"s_add_u32 s{sT0}, s{sT0}, {L_RED}")
    A(f"v_add_u32 v{vRW}, s{sT0}, v{vRW}")
    A(f"s_lshr_b32 s{sT0}, s{sWAVE}, 2")
    A(f"s_lshl_b32 s{sT0}, s{sT0}, 6")
    A(f"s_add_u32 s{sT0}, s{sT0}, {L_RED}")
    A(f"v_and_b32 v{vRR}, 7, v{vL}")
    A(f"v_lshl_add_u32 v{vRR}, v{vRR}, 3, s{sT0}")
    A(f"v_lshlrev_b32 v{vOLW}, 10, v12")
    A(f"v_lshl_add_u32 v{vOLW}, v{vJ}, 5, v{vOLW}")
    A(f"v_lshrrev_b32 v12, 1, v{vGR}")
    A(f"v_lshl_add_u32 v{vOLW}, v12, 4, v{vOLW}")
    A(f"s_lshl_b32 s{sT1}, s{sWAVE}, 11")
    A(f"s_add_u32 s{sT1}, s{sT1}, {L_OL}")
    A(f"v_add_u32 v{vOLW}, s{sT1}, v{vOLW}")
    A(f"s_lshl_b32 s{sT0}, s{sWAVE}, 8")
    A(f"s_add_u32 s{sT0}, s{sT0}, {L_OL}")
    A(f"v_lshl_add_u32 v{vOLR}, v{vL}, 3, s{sT0}")
    A(f"s_lshl_b32 s{sO_IN}, s{sGRP}, 15")
    A(f"s_add_u32 s{sO_IN}, s{sO_IN}, {WS_O}")
    A(f"s_and_b32 s{sT1}, s{sWAVE}, 3")
    A(f"s_lshl_b32 s{sT1}, s{sT1}, 13")
    A(f"s_add_u32 s{sO_DST}, s{sO_IN}, s{sT1}")
    A(f"s_lshl_b32 s{sT1}, s{sS}, 9")
    A(f"s_add_u32 s{sO_DST}, s{sO_DST}, s{sT1}")
    A(f"s_lshr_b32 s{sT1}, s{sWAVE}, 2")
    A(f"s_lshl_b32 s{sT1}, s{sT1}, 8")
    A(f"s_add_u32 s{sO_DST}, s{sO_DST}, s{sT1}")
    PUB = 84
    A(f"v_mov_b32 v{PUB+3}, s{sTAG}")
    A(f"s_cmp_lt_u32 s{sTK}, {NU}")
    A("s_cbranch_scc1 L_top")
    wave_reduce(g, "v_add_f32", [vLS], [12], swaps=("v_permlane32_swap_b32",))
    A(f"ds_write_b64 v{vRW}, v[{vM}:{vLS}]")
    A("s_branch L_exit")

    g.lbl("L_top")
    CE = opt.get("CE", 10)
    A(f"s_waitcnt vmcnt({CE})")
    claim()
    A("s_waitcnt vmcnt(8)")
    qk_tile(vKU, UD)
    g.nop(5)
    sel4(g, UD, UD, UD+1, UD+2, UD+3, sQ1, sQ2, sQ3)
    sel4(g, UD+4, UD+4, UD+5, UD+6, UD+7, sQ1, sQ2, sQ3)
    for pat in ("quad_perm:[1,0,3,2]", "quad_perm:[2,3,0,1]"):
        g.nop(1)
        for D in (UD, UD+4):
            A(f"v_add_f32 v{D}, v{D}, v{D} {pat} {DPP}")
    A(f"v_cndmask_b32 v{S1}, v{UD}, v{UD+4}, s[{sR8}:{sR8+1}]")
    rnd1(g, S1)
    A(f"v_max_f32 v{S0}, v{S1}, v{vM}")
    for pat in ("quad_perm:[1,0,3,2]", "row_half_mirror", "row_mirror"):
        g.nop(2)
        A(f"v_max_f32 v{S0}, v{S0}, v{S0} {pat} {DPP}")
    A(f"v_mov_b32 v12, v{S0}")
    g.nop(2)
    A(f"v_permlane32_swap_b32 v{S0}, v12")
    g.nop(1)
    A(f"v_max_f32 v{S0}, v{S0}, v12")
    A(f"v_sub_f32 v{S1}, v{S1}, v{S0}")
    A(f"v_sub_f32 v12, v{vM}, v{S0}")
    A(f"v_cmp_neq_f32 vcc, v{vM}, v{S0}")
    A(f"v_mul_f32 v{S1}, s{sC}, v{S1}")
    A(f"v_mul_f32 v12, s{sC}, v12")
    A(f"v_exp_f32 v{S1}, v{S1}")
    A(f"v_exp_f32 v12, v12")
    A(f"v_mov_b32 v{vM}, v{S0}")
    A(f"v_cvt_pk_bf16_f32 v13, v{S1}, v{S1}")
    A(f"v_mul_f32 v{vLS}, v{vLS}, v12")
    A(f"ds_write_b16 v{vPW}, v13 offset:64")
    A(f"ds_read_b64 v[{PFU}:{PFU+1}], v{vPR} offset:64")
    A(f"v_fma_f32 v{vLS}, v{S1}, 0.5, v{vLS}")
    A("s_cbranch_vccz L_nors")
    A(f"v_readlane_b32 s{sT1}, v12, 0")
    A(f"v_readlane_b32 s{sT2}, v12, 16")
    g.nop(2)
    for B in ACCB:
        for e in range(8):
            A(f"v_pk_mul_f32 v[{B+4*e}:{B+4*e+1}], v[{B+4*e}:{B+4*e+1}], s[{sT1}:{sT2}]")
    g.lbl("L_nors")
    A("s_waitcnt lgkmcnt(0)")
    A(f"s_cmp_lt_u32 s{sTK}, {NU}")
    A("s_cbranch_scc0 L_last")
    unit_base()
    k_tile(g, VM(g, 0), polK, sUB, 0, vKU)
    g.lbl("L_pv")
    A("s_waitcnt vmcnt(8)")
    for eta in range(2):
        R = vVB + 16*eta
        for c in range(4):
            T = PT + 4*(c & 3)
            A(f"v_perm_b32 v{T}, v{R+4+c}, v{R+c}, s{sPLO}")
            A(f"v_perm_b32 v{T+1}, v{R+12+c}, v{R+8+c}, s{sPLO}")
            A(f"v_perm_b32 v{T+2}, v{R+4+c}, v{R+c}, s{sPHI}")
            A(f"v_perm_b32 v{T+3}, v{R+12+c}, v{R+8+c}, s{sPHI}")
        for c in range(4):
            T = PT + 4*(c & 3)
            for hh in range(2):
                acc = ACCB[eta] + 4*(2*c + hh)
                A(f"v_mfma_f32_16x16x16_bf16 v[{acc}:{acc+3}], v[{PFU}:{PFU+1}], v[{T+2*hh}:{T+2*hh+1}], v[{acc}:{acc+3}]")
    A(f"s_cmp_lt_u32 s{sTK}, {NU}")
    A("s_cbranch_scc0 L_exit")
    v_unit(g, VM(g, 0), polV)
    A("s_branch L_top")

    g.lbl("L_last")
    wave_reduce(g, "v_add_f32", [vLS], [12], swaps=("v_permlane32_swap_b32",))
    A(f"ds_write_b64 v{vRW}, v[{vM}:{vLS}]")
    stamp(g, 4)
    A("s_waitcnt vmcnt(0)")
    A("s_branch L_pv")

    g.lbl("L_exit")
    stamp(g, 5)
    for eta, OUT in ((0, 88), (1, 92)):
        B = ACCB[eta]
        for i in range(4):
            A(f"v_cndmask_b32 v{OUT+i}, v{B+4*i}, v{B+4*i+1}, s[{sM1}:{sM1+1}]")
        for i in range(4):
            A(f"v_cndmask_b32 v{OUT+i}, v{OUT+i}, v{B+4*(4+i)}, s[{sM2}:{sM2+1}]")
        for i in range(4):
            A(f"v_cndmask_b32 v{OUT+i}, v{OUT+i}, v{B+4*(4+i)+1}, s[{sM3}:{sM3+1}]")
        A(f"ds_write_b128 v{vOLW}, v[{OUT}:{OUT+3}] offset:{512*eta}")
    if LD:
        A(f"s_cmp_lt_u32 s{sWAVE}, 4")
        A("s_cbranch_scc0 L_md2")
        g.lbl("L_md_done")
    A("s_waitcnt lgkmcnt(0)")
    A("s_barrier")
    A(f"ds_read_b64 v[32:33], v{vRR}")
    for w in range(8):
        A(f"ds_read_b64 v[{16+2*w}:{17+2*w}], v{vOLR} offset:{2048*w}")
    A("s_waitcnt lgkmcnt(8)")
    A(f"v_max_f32 v34, v32, v32 quad_perm:[1,0,3,2] {DPP}")
    g.nop(2)
    A(f"v_max_f32 v34, v34, v34 quad_perm:[2,3,0,1] {DPP}")
    g.nop(2)
    A(f"v_max_f32 v34, v34, v34 row_half_mirror {DPP}")
    A(f"v_sub_f32 v32, v32, v34")
    A(f"v_mul_f32 v32, s{sC}, v32")
    A(f"v_exp_f32 v32, v32")
    g.nop(1)
    A(f"v_mul_f32 v33, v33, v32")
    SF = 4
    A(f"v_readlane_b32 s{SF}, v32, 0")
    A(f"v_readlane_b32 s{SF+1}, v32, 1")
    A(f"v_add_f32 v33, v33, v33 quad_perm:[1,0,3,2] {DPP}")
    A(f"v_readlane_b32 s{SF+2}, v32, 2")
    A(f"v_readlane_b32 s{SF+3}, v32, 3")
    A(f"v_add_f32 v33, v33, v33 quad_perm:[2,3,0,1] {DPP}")
    A(f"v_readlane_b32 s{SF+4}, v32, 4")
    A(f"v_readlane_b32 s{SF+5}, v32, 5")
    A(f"v_add_f32 v33, v33, v33 row_half_mirror {DPP}")
    A(f"v_readlane_b32 s{SF+6}, v32, 6")
    A(f"v_readlane_b32 s{SF+7}, v32, 7")
    A(f"v_rcp_f32 v36, v33")
    A(f"v_log_f32 v{PUB+2}, v33")
    A("s_mov_b32 exec_hi, 0")
    A("s_waitcnt lgkmcnt(0)")
    def sb(k): return f"s[{SF+(k&~1)}:{SF+(k&~1)+1}]", ("op_sel:[0,1,0] op_sel_hi:[1,1,1]" if k & 1 else "op_sel_hi:[1,0,1]")
    A(f"v_pk_mul_f32 v[16:17], v[16:17], s[{SF}:{SF+1}] op_sel_hi:[1,0]")
    A(f"v_pk_mul_f32 v[18:19], v[18:19], s[{SF}:{SF+1}] op_sel:[0,1] op_sel_hi:[1,1]")
    for k in range(2, 8):
        r, m = sb(k)
        d = 16 + 2*(k & 1)
        A(f"v_pk_fma_f32 v[{d}:{d+1}], v[{16+2*k}:{17+2*k}], {r}, v[{d}:{d+1}] {m}")
    A(f"v_fma_f32 v{PUB+2}, v34, s{sC}, v{PUB+2}")
    A(f"v_pk_add_f32 v[16:17], v[16:17], v[18:19]")
    A(f"v_pk_mul_f32 v[{PUB}:{PUB+1}], v[16:17], v[36:37] op_sel_hi:[1,0]")
    A(f"buffer_store_dwordx4 v[{PUB}:{PUB+3}], v{vVO}, s[{sWS}:{sWS+3}], s{sO_DST} offen sc1")
    A("s_mov_b64 exec, -1")
    stamp(g, 6)
    if opt.get("notail"): A("s_branch L_fin")
    A(f"s_cmp_lt_u32 s{sRED}, 112")
    A("s_cbranch_scc1 L_red")
    A(f"s_and_b32 s{sT0}, s{sROLE}, 10")
    A("s_cbranch_scc0 L_fin")
    vZO, vFA = 124, 126
    A(f"v_and_b32 v12, 3, v{vL}")
    A(f"v_lshrrev_b32 v14, 2, v{vJ}")
    A(f"v_mul_u32_u24 v{vZO}, 28, v14")
    A(f"v_add_u32 v{vZO}, v{vZO}, v{vGR}")
    A(f"v_lshlrev_b32 v{vZO}, 13, v{vZO}")
    A(f"v_lshl_add_u32 v{vZO}, v12, 4, v{vZO}")
    A(f"s_lshl_b32 s{sY_DST}, s{sWAVE}, 15")
    A(f"s_lshl_b32 s{sT0}, s{sIDX}, 6")
    A(f"s_add_u32 s{sY_DST}, s{sY_DST}, s{sT0}")
    A(f"s_add_u32 s{sY_DST}, s{sY_DST}, {WS_RI}")
    A(f"v_lshl_add_u32 v{vFA}, v{vGR}, 3, v14")
    A(f"v_mul_u32_u24 v{vFA}, 896, v{vFA}")
    A(f"v_lshl_add_u32 v{vFA}, v12, 5, v{vFA}")
    A(f"s_lshl_b32 s{sT0}, s{sWAVE}, 7")
    A(f"v_add_u32 v{vFA}, s{sT0}, v{vFA}")
    A(f"s_cmp_eq_u32 s{sROLE}, 2")
    A("s_cbranch_scc1 L_ffn")
    def rec_store():
        for i in range(4): A(f"v_cndmask_b32 v{40+i}, v{24+i}, v{28+i}, s[{sQ1}:{sQ1+1}]")
        for i in range(4): A(f"v_cndmask_b32 v{40+i}, v{40+i}, v{32+i}, s[{sQ2}:{sQ2+1}]")
        for i in range(4): A(f"v_cndmask_b32 v{40+i}, v{40+i}, v{36+i}, s[{sQ3}:{sQ3+1}]")
        for i in range(4): A(f"v_min_u32 v{40+i}, -2, v{40+i}")
        A(f"buffer_store_dwordx4 v[40:43], v{vZO}, s[{sWS}:{sWS+3}], s{sY_DST} offen sc1")

    WB = 128
    A(f"v_lshlrev_b32 v{vOBA}, 7, v14")
    A(f"v_lshl_add_u32 v{vOBA}, v{vGR}, 4, v{vOBA}")
    A(f"v_add_u32 v{vOBA}, {L_OB}, v{vOBA}")
    def oloads():
        for i in range(4):
            A(f"buffer_load_dwordx4 v[{16+4*i}:{19+4*i}], v{vL16}, s[{sWS}:{sWS+3}], s{sO_IN} offen offset:{1024*i} sc1")
    A(f"s_cmp_lt_u32 s{sWAVE}, 4")
    A("s_cbranch_scc1 L_c_fr")
    A(f"s_sub_u32 s{sT0}, s{sWAVE}, 4")
    A(f"s_lshl_b32 s{sO_IN}, s{sT0}, 18")
    A(f"s_lshl_b32 s{sT1}, s{sIDX}, 12")
    A(f"s_add_u32 s{sO_IN}, s{sO_IN}, s{sT1}")
    A(f"s_add_u32 s{sO_IN}, s{sO_IN}, {WS_O}")
    oloads()
    A(f"s_lshl_b32 s{sT0}, s{sT0}, 7")
    A(f"s_add_u32 s{sT0}, s{sT0}, {L_OB}")
    A(f"v_and_b32 v13, 31, v{vL}")
    A(f"v_lshl_add_u32 v13, v13, 2, s{sT0}")
    if LD: A("s_waitcnt vmcnt(5)")
    g.lbl("L_c_fr")
    if LD: A("s_barrier")
    A(f"s_cmp_eq_u32 s{sWAVE}, 7")
    A("s_cbranch_scc1 L_owait")
    for t in range(4):
        for ks in range(2):
            r = WB + 8*t + 4*ks
            A(f"ds_read_b64_tr_b16 v[{r}:{r+1}], v{vFA} offset:{L_WO + ks*28672 + t*8}")
            A(f"ds_read_b64_tr_b16 v[{r+2}:{r+3}], v{vFA} offset:{L_WO + ks*28672 + t*8 + 3584}")
        if t == 1: A("s_waitcnt lgkmcnt(4)")
    A(f"s_cmp_lt_u32 s{sWAVE}, 4")
    A("s_cbranch_scc0 L_owait")
    A(f"s_cmp_eq_u32 s{sWAVE}, 0")
    A("s_cbranch_scc0 L_c_b")
    A("s_waitcnt vmcnt(0)")
    A("s_branch L_fchk")
    g.lbl("L_fretry")
    A(f"buffer_load_dwordx2 v[{vPAR}:{vPAR+1}], v{vPA1}, s[{sWS}:{sWS+3}], 0 offen sc1")
    A("s_waitcnt vmcnt(0)")
    g.lbl("L_fchk")
    check_tags(g, [vPAR, vPAR+1], "L_fretry")
    A("s_branch L_c_b")
    g.lbl("L_opoll")
    oloads()
    g.lbl("L_owait")
    A("s_waitcnt vmcnt(0)")
    check_tags(g, [19, 23, 27, 31], "L_opoll")
    tstamp(g, 1)
    A(f"v_max3_f32 v32, v18, v22, v26")
    A(f"v_max_f32 v32, v32, v30")
    A(f"v_mov_b32 v33, v32")
    g.nop(2)
    A(f"v_permlane32_swap_b32 v32, v33")
    g.nop(1)
    A(f"v_max_f32 v32, v32, v33")
    for i in range(4): A(f"v_sub_f32 v{18+4*i}, v{18+4*i}, v32")
    for i in range(4): A(f"v_exp_f32 v{18+4*i}, v{18+4*i}")
    A(f"v_pk_mul_f32 v[34:35], v[16:17], v[18:19] op_sel_hi:[1,0]")
    A(f"v_add_f32 v36, v18, v22")
    for i in range(1, 4):
        A(f"v_pk_fma_f32 v[34:35], v[{16+4*i}:{17+4*i}], v[{18+4*i}:{19+4*i}], v[34:35] op_sel_hi:[1,0,1]")
    A(f"v_add_f32 v37, v26, v30")
    A(f"v_add_f32 v36, v36, v37")
    A(f"v_mov_b32 v38, v34"); A(f"v_mov_b32 v39, v35"); A(f"v_mov_b32 v37, v36")
    g.nop(1)
    A(f"v_permlane32_swap_b32 v34, v38")
    A(f"v_permlane32_swap_b32 v35, v39")
    A(f"v_permlane32_swap_b32 v36, v37")
    A(f"v_pk_add_f32 v[34:35], v[34:35], v[38:39]")
    A(f"v_add_f32 v36, v36, v37")
    A(f"v_rcp_f32 v36, v36")
    g.nop(1)
    A(f"v_pk_mul_f32 v[34:35], v[34:35], v[36:37] op_sel_hi:[1,0]")
    A(f"v_cvt_pk_bf16_f32 v34, v34, v35")
    A(f"ds_write_b32 v13, v34")
    g.lbl("L_c_b")
    A("s_waitcnt lgkmcnt(0)")
    A("s_barrier")
    A(f"s_cmp_eq_u32 s{sWAVE}, 7")
    A("s_cbranch_scc1 L_fin")
    A(f"ds_read_b128 v[16:19], v{vOBA}")
    A(f"ds_read_b128 v[20:23], v{vOBA} offset:64")
    A("s_waitcnt lgkmcnt(1)")
    for t in range(4):
        A(f"v_mfma_f32_16x16x32_bf16 v[{24+4*t}:{27+4*t}], v[{WB+8*t}:{WB+8*t+3}], v[16:19], 0")
    A("s_waitcnt lgkmcnt(0)")
    for t in range(4):
        A(f"v_mfma_f32_16x16x32_bf16 v[{24+4*t}:{27+4*t}], v[{WB+8*t+4}:{WB+8*t+7}], v[20:23], v[{24+4*t}:{27+4*t}]")
    g.nop(6)
    rec_store()
    stamp(g, 7)
    A("s_branch L_fin")

    g.lbl("L_ffn")
    if not LD: A("s_waitcnt vmcnt(1)")
    A(f"s_cmp_lt_u32 s{sWAVE}, 4")
    A("s_cbranch_scc0 L_ffn_dn")
    A("s_waitcnt vmcnt(1)")
    srd(g, sA, P_WG, 448*3584)
    A(f"s_mul_i32 s{sSTART}, s{sWAVE}, {112*3584}")
    A(f"s_lshl_b32 s{sT1}, s{sIDX}, 6")
    A(f"s_add_u32 s{sSTART}, s{sSTART}, s{sT1}")
    A(f"s_mov_b32 s{sSTEP}, {16*3584}")
    A(f"s_mul_i32 s{sLDS}, s{sWAVE}, 7168")
    A(f"v_lshrrev_b32 v{vDM}, 2, v{vL}")
    A(f"v_mul_u32_u24 v{vDM}, 3584, v{vDM}")
    A(f"v_lshl_add_u32 v{vDM}, v12, 4, v{vDM}")
    A("s_branch L_ffn_go")
    g.lbl("L_ffn_dn")
    srd(g, sA, P_WD, 1792*896)
    A(f"s_and_b32 s{sT1}, s{sWAVE}, 3")
    A(f"s_mul_i32 s{sSTART}, s{sIDX}, 28672")
    A(f"s_mul_i32 s{sLDS}, s{sT1}, 7168")
    A(f"s_add_u32 s{sSTART}, s{sSTART}, s{sLDS}")
    A(f"s_add_u32 s{sLDS}, s{sLDS}, {L_WD}")
    A(f"s_mov_b32 s{sSTEP}, 1024")
    A(f"v_mov_b32 v{vDM}, v{vL16}")
    g.lbl("L_ffn_go")
    dma7(g, polW, VM(g, 0))
    A(f"s_add_u32 s{sY_DST}, s{sY_DST}, 4096")
    A("s_branch L_mchk")
    g.lbl("L_mretry")
    for i in range(2):
        A(f"buffer_load_dwordx4 v[{vPAR+4*i}:{vPAR+4*i+3}], v{vPA1}, s[{sWS}:{sWS+3}], s{sXO} offen offset:{1792*i} sc1")
    A("s_waitcnt vmcnt(0)")
    g.lbl("L_mchk")
    check_tags(g, [vPAR+3, vPAR+7], "L_mretry", mask=sMH)
    OC, SH = 112, 116
    for i in range(2):
        unpack(g, vPAR+i, SH+2*i, SH+2*i+1)
        unpack(g, vPAR+4+i, OC+2*i, OC+2*i+1)
    for i in range(4): A(f"v_add_f32 v{OC+i}, 1.0, v{OC+i}")
    for i in range(0, 4, 2): rnd2(g, OC+i, OC+i+1, vT)
    vHW, vAF, vGW, vGR_, vXB = 120, 121, 122, 123, 125
    A(f"s_and_b32 s{sT1}, s{sWAVE}, 3")
    A(f"s_mul_i32 s{sT0}, s{sT1}, 896")
    A(f"s_lshl_b32 s{sXO}, s{sT0}, 1")
    A(f"s_add_u32 s{sXO}, s{sXO}, {WS_X1}")
    A(f"s_lshl_b32 s{sT2}, s{sS}, 13")
    A(f"s_add_u32 s{sXO}, s{sXO}, s{sT2}")
    A(f"s_lshr_b32 s{sT2}, s{sWAVE}, 2")
    A(f"s_lshl_b32 s{sT2}, s{sT2}, 9")
    A(f"s_add_u32 s{sT0}, s{sT0}, s{sT2}")
    A(f"s_add_u32 s{sT0}, s{sT0}, {L_A}")
    A(f"v_lshl_add_u32 v{vHW}, v{vL}, 3, s{sT0}")
    A(f"v_mul_u32_u24 v{vAF}, 896, v12")
    A(f"v_lshl_add_u32 v{vAF}, v{vGR}, 4, v{vAF}")
    A(f"v_add_u32 v{vAF}, {L_A}, v{vAF}")
    A(f"s_lshl_b32 s{sT1}, s{sT1}, 4")
    A(f"s_add_u32 s{sT0}, s{sT1}, {L_G}")
    A(f"v_lshlrev_b32 v{vGW}, 6, v{vGR}")
    A(f"v_lshl_add_u32 v{vGW}, v{vJ}, 1, v{vGW}")
    A(f"v_add_u32 v{vGW}, s{sT0}, v{vGW}")
    A(f"v_lshlrev_b32 v{vGR_}, 6, v14")
    A(f"v_lshl_add_u32 v{vGR_}, v{vGR}, 4, v{vGR_}")
    A(f"v_add_u32 v{vGR_}, {L_G}, v{vGR_}")
    A(f"v_add_u32 v{vXB}, 1024, v{vL16}")
    A(f"v_mov_b32 v{vT}, {WS_SIZE}")
    A(f"v_cndmask_b32 v{vXB}, v{vT}, v{vXB}, s[{sM48}:{sM48+1}]")
    A(f"s_cmp_ge_u32 s{sWAVE}, 4")
    A(f"s_cselect_b64 s[{sR8}:{sR8+1}], -1, 0")
    A(f"v_lshl_add_u32 v13, v{vGR}, 3, v14")
    A(f"v_lshlrev_b32 v13, 6, v13")
    A(f"v_and_b32 v{vT}, 1, v{vL}")
    A(f"v_lshl_add_u32 v13, v{vT}, 3, v13")
    A(f"v_bfe_u32 v{vT}, v{vL}, 1, 1")
    A(f"v_mul_u32_u24 v{vT}, 28672, v{vT}")
    A(f"v_add3_u32 v13, v13, v{vT}, s{sT1}")
    A("s_waitcnt vmcnt(0)")
    A("s_barrier")
    stamp(g, 9)
    def x1loads():
        A(f"buffer_load_dwordx4 v[16:19], v{vL16}, s[{sWS}:{sWS+3}], s{sXO} offen sc1")
        A(f"buffer_load_dwordx4 v[20:23], v{vXB}, s[{sWS}:{sWS+3}], s{sXO} offen sc1")
    A(f"s_cmp_eq_u32 s{sWAVE}, 7")
    A("s_cbranch_scc1 L_x1poll")
    x1loads()
    for t in range(4):
        A(f"ds_read_b64_tr_b16 v[{96+4*t}:{97+4*t}], v{vFA} offset:{L_WD + t*8}")
        A(f"ds_read_b64_tr_b16 v[{98+4*t}:{99+4*t}], v{vFA} offset:{L_WD + t*8+3584}")
    A(f"s_cmp_lt_u32 s{sWAVE}, 4")
    A("s_cbranch_scc0 L_x1wait")
    A("s_waitcnt lgkmcnt(6)")
    for ks in range(14):
        r = 128 + 4*ks
        A(f"ds_read_b64_tr_b16 v[{r}:{r+1}], v13 offset:{ks*2048}")
        A(f"ds_read_b64_tr_b16 v[{r+2}:{r+3}], v13 offset:{ks*2048+256}")
        if ks % 4 == 3: A("s_waitcnt lgkmcnt(6)")
    A("s_branch L_x1wait")
    g.lbl("L_x1poll")
    x1loads()
    g.lbl("L_x1wait")
    A("s_waitcnt vmcnt(0)")
    tags_ab(g, [19], [23])
    retry_branch(g, "L_x1poll")
    tstamp(g, 2)
    for i, r in enumerate((16, 17, 20, 21)):
        unpack(g, r, 24+2*i, 25+2*i)
    E = 44
    layernorm(g, 24, 32, E, 4, presel=[f"v_cndmask_b32 v{E+i}, v{24+i}, v{28+i}, s[{sR8}:{sR8+1}]" for i in range(4)])
    rnd2(g, E, E+1, vT); rnd2(g, E+2, E+3, vT)
    modulate_pack(g, E, OC, SH, E, vT, 4)
    A(f"s_mov_b64 exec, s[{sMH}:{sMH+1}]")
    A(f"ds_write_b64 v{vHW}, v[{E}:{E+1}]")
    A("s_mov_b64 exec, -1")
    A("s_waitcnt lgkmcnt(0)")
    A("s_barrier")
    tstamp(g, 3)
    A(f"s_cmp_lt_u32 s{sWAVE}, 4")
    A("s_cbranch_scc0 L_ffn_d")
    for ks in range(14):
        A(f"ds_read_b128 v[{192+4*ks}:{195+4*ks}], v{vAF} offset:{64*ks}")
    for ks in range(14):
        A(f"s_waitcnt lgkmcnt({13-ks})")
        c = "0" if ks == 0 else "v[16:19]"
        A(f"v_mfma_f32_16x16x32_bf16 v[16:19], v[{192+4*ks}:{195+4*ks}], v[{128+4*ks}:{131+4*ks}], {c}")
    kk = -2.0 * math.sqrt(2.0/math.pi) * LOG2E
    A(f"v_mov_b32 v24, {f2u(kk*0.044715):#x}")
    A(f"v_mov_b32 v25, {f2u(kk):#x}")
    g.nop(6)
    sel4(g, 20, 16, 17, 18, 19, sM1, sM2, sM3)
    rnd1(g, 20)
    A(f"v_mul_f32 v21, v20, v20")
    A(f"v_fma_f32 v21, v21, v24, v25")
    A(f"v_mul_f32 v21, v21, v20")
    A(f"v_exp_f32 v21, v21")
    A(f"v_mov_b32 v23, v20 row_ror:8 {DPP}")
    A(f"v_add_f32 v21, 1.0, v21")
    A(f"v_rcp_f32 v21, v21")
    A(f"s_mov_b32 exec_lo, 0x00ff00ff")
    A(f"s_mov_b32 exec_hi, 0x00ff00ff")
    A(f"v_mul_f32 v21, v21, v20")
    rnd1(g, 21)
    A(f"v_mul_f32 v21, v21, v23")
    A(f"v_cvt_pk_bf16_f32 v21, v21, v21")
    A(f"ds_write_b16 v{vGW}, v21")
    A("s_mov_b64 exec, -1")
    A("s_waitcnt lgkmcnt(0)")
    g.lbl("L_ffn_d")
    A(f"s_cmp_eq_u32 s{sWAVE}, 7")
    A("s_cbranch_scc1 L_fin")
    A("s_barrier")
    tstamp(g, 4)
    A(f"ds_read_b128 v[16:19], v{vGR_}")
    A("s_waitcnt lgkmcnt(0)")
    for t in range(4):
        A(f"v_mfma_f32_16x16x32_bf16 v[{24+4*t}:{27+4*t}], v[{96+4*t}:{99+4*t}], v[16:19], 0")
    g.nop(6)
    rec_store()
    stamp(g, 8)
    A("s_branch L_fin")

    g.lbl("L_red")
    A(f"s_cmp_eq_u32 s{sWAVE}, 7")
    A("s_cbranch_scc1 L_red7")
    A(f"s_cmp_lt_u32 s{sWAVE}, 4")
    A("s_cbranch_scc0 L_fin")
    A(f"s_lshl_b32 s{sT0}, s{sRED}, 13")
    A(f"s_add_u32 s{sT0}, s{sT0}, {WS_RI}")
    A(f"s_lshl_b32 s{sT1}, s{sWAVE}, 10")
    A(f"v_add_u32 v100, s{sT1}, v{vL16}")
    A(f"v_add_u32 v101, 4096, v100")
    A(f"v_mov_b32 v{vT}, {WS_SIZE}")
    A(f"v_cmp_gt_u32 vcc, 3584, v100")
    A(f"v_and_b32 v12, 3, v{vL}")
    A(f"v_lshlrev_b32 v12, 2, v12")
    A(f"v_cndmask_b32 v101, v{vT}, v101, vcc")
    A(f"v_and_b32 v13, 1, v{vGR}")
    A(f"v_lshl_add_u32 v12, v13, 1, v12")
    A(f"v_lshrrev_b32 v13, 1, v{vGR}")
    A(f"v_add_u32 v12, v12, v13")
    A(f"s_lshl_b32 s{sT1}, s{sWAVE}, 2")
    A(f"s_add_u32 s{sT1}, s{sT1}, {L_RB}")
    A(f"v_lshl_add_u32 v12, v12, 4, s{sT1}")
    A(f"s_mov_b32 s{sT2}, 0")
    g.lbl("L_rpoll")
    A(f"buffer_load_dwordx4 v[16:19], v100, s[{sWS}:{sWS+3}], s{sT0} offen sc1")
    A("s_waitcnt vmcnt(0)")
    A(f"v_max3_u32 v{vT}, v16, v17, v18")
    A(f"v_max_u32 v{vT}, v{vT}, v19")
    A(f"v_cmp_eq_u32 vcc, -1, v{vT}")
    retry_branch(g, "L_rpoll")
    if opt.get("tst"):
        A(f"s_mov_b32 s94, s95")
    tstamp(g, 3)
    A(f"v_permlane32_swap_b32 v16, v17")
    A(f"v_permlane32_swap_b32 v18, v19")
    g.nop(1)
    A(f"v_add_f32 v16, v16, v17")
    A(f"v_add_f32 v18, v18, v19")
    g.nop(2)
    A(f"v_permlane16_swap_b32 v16, v18")
    g.nop(1)
    A(f"v_add_f32 v16, v16, v18")
    g.nop(2)
    A(f"v_add_f32 v16, v16, v16 row_ror:4 {DPP}")
    g.nop(2)
    A(f"v_add_f32 v16, v16, v16 row_ror:8 {DPP}")
    A(f"ds_write_b32 v12, v16")
    A("s_waitcnt lgkmcnt(0)")
    A("s_barrier")
    A(f"v_mov_b32 v100, v101")
    A(f"s_add_u32 s{sT2}, s{sT2}, 1")
    A(f"s_cmp_lt_u32 s{sT2}, 2")
    A("s_cbranch_scc1 L_rpoll")
    A("s_branch L_fin")
    g.lbl("L_gretry")
    A(f"s_add_u32 s{sT0}, s{sPX}, {3*1792}")
    A(f"buffer_load_dwordx4 v[{vPAR}:{vPAR+3}], v{vPA1}, s[{sWS}:{sWS+3}], s{sPX} offen sc1")
    A(f"buffer_load_dwordx4 v[{vPAR+4}:{vPAR+7}], v{vPA1}, s[{sWS}:{sWS+3}], s{sT0} offen sc1")
    g.lbl("L_red7")
    A("s_waitcnt vmcnt(0)")
    check_tags(g, [vPAR+3, vPAR+7], "L_gretry")
    A(f"s_mov_b32 vcc_lo, 0xf0f0f0f0"); A(f"s_mov_b32 vcc_hi, 0xf0f0f0f0")
    A(f"v_cndmask_b32 v100, v{vPAR}, v{vPAR+1}, vcc")
    A(f"v_cndmask_b32 v101, v{vPAR+4}, v{vPAR+5}, vcc")
    unpack(g, 100, 120, 121)
    unpack(g, 101, 122, 123)
    unpack(g, vPAR+8, 124, 125)
    srd(g, sA, P_OUT, 3584)
    A(f"v_mov_b32 v107, s{sTAG}")
    A(f"v_mov_b32 v106, 0")
    A(f"v_lshlrev_b32 v108, 1, v{vPA2}")
    A(f"v_lshrrev_b32 v{vT}, 3, v{vL}")
    A(f"v_lshl_add_u32 v108, v{vT}, 13, v108")
    A(f"v_lshlrev_b32 v110, 3, v{vPA2}")
    A(f"v_add_u32 v110, {L_RB}, v110")
    A(f"s_lshl_b32 s{sT2}, s{sXO}, 1")
    A(f"s_add_u32 s{sPX}, s{sT2}, {WS_X1}")
    def finish(gate):
        A("s_barrier")
        A(f"ds_read_b128 v[16:19], v110 offset:0")
        A(f"ds_read_b128 v[20:23], v110 offset:16")
        A("s_waitcnt lgkmcnt(0)")
        A(pk("add", 16, 16, 18)); A(pk("add", 20, 20, 22))
        A(f"v_add_f32 v16, v16, v17"); A(f"v_add_f32 v17, v20, v21")
        rnd2(g, 16, 17, 18)
        A(pk("mul", 16, 16, gate))
        rnd2(g, 16, 17, 18)
        A(pk("add", 124, 124, 16))
        A(f"v_cvt_pk_bf16_f32 v104, v124, v125")
    finish(120)
    g.nop(2)
    A(f"v_mov_b32 v105, v104 row_shl:4 {DPP}")
    A("s_mov_b32 exec_lo, 0x0f0f0f0f"); A("s_mov_b32 exec_hi, 0x0f0f0f0f")
    A(f"buffer_store_dwordx4 v[104:107], v108, s[{sWS}:{sWS+3}], s{sPX} offen sc1")
    A("s_mov_b64 exec, -1")
    stamp(g, 8)
    unpack(g, 104, 124, 125)
    finish(122)
    if "cal" in opt:
        stamp(g, 9)
        A(f"s_add_u32 s{sT0}, s{92+opt['cal']}, 6000")
        g.lbl("L_cal")
        A(f"s_memrealtime s[{sST}:{sST+1}]")
        A("s_waitcnt lgkmcnt(0)")
        A(f"s_sub_u32 s{sT1}, s{sST}, s{sT0}")
        A(f"s_cmp_lt_i32 s{sT1}, 0")
        A("s_cbranch_scc1 L_cal")
    A("s_mov_b64 exec, 0xff")
    A(f"buffer_store_dword v104, v{vPA2}, s[{sA}:{sA+3}], s{sXO} offen{opt.get('polO', '')}")
    stamp(g, 9)
    A(f"s_cmp_eq_u32 s{sRED}, 0")
    A("s_cbranch_scc0 L_fin")
    A("s_mov_b64 exec, 1")
    A(f"v_mov_b32 v{vT}, 0")
    A(f"buffer_store_dword v107, v{vT}, s[{sWS}:{sWS+3}], 0 offen sc1")
    A("s_branch L_fin")

    g.lbl("L_clr")
    A(f"s_cmp_lt_u32 s{sRED}, 112")
    A("s_cbranch_scc0 L_k2")
    A(f"s_lshl_b32 s{sT2}, s{sRED}, 13")
    A(f"s_add_u32 s{sT2}, s{sT2}, {WS_RI}")
    A(f"s_add_u32 s{sT3}, s{sT2}, 4096")
    for i in range(4): A(f"v_mov_b32 v{16+i}, -1")
    for i in range(8):
        A(f"buffer_store_dwordx4 v[16:19], v{vL16}, s[{sWS}:{sWS+3}], s{sT2 + i//4} offen offset:{1024*(i%4)} sc1")
    A("s_branch L_k2")

    g.lbl("L_md2")
    if LD:
        A(f"s_and_b32 s{sT0}, s{sROLE}, 10")
        A("s_cbranch_scc0 L_md_done")
        A(f"s_cmp_eq_u32 s{sROLE}, 2")
        A(f"s_mov_b32 s{sT2}, {opt.get('TDC', 120)}")
        A(f"s_cselect_b32 s{sT2}, {opt.get('TDF', 110)}, s{sT2}")
        g.lbl("L_lw")
        A(f"s_load_dword s{sT3}, s[{sCNT}:{sCNT+1}], 0 glc")
        A("s_waitcnt lgkmcnt(0)")
        A(f"s_cmp_ge_u32 s{sT3}, s{sT2}")
        A("s_cbranch_scc1 L_lw_ok")
        A("s_sleep 10")
        A(f"s_sub_u32 s{sRETRY}, s{sRETRY}, 1")
        A("s_cbranch_scc0 L_lw")
        A(f"s_mov_b32 s{sRETRY}, 0")
        g.lbl("L_lw_ok")
        A("s_waitcnt vmcnt(0)")
        A(f"s_and_b32 s{sT3}, s{sWAVE}, 3")
        A(f"s_cmp_eq_u32 s{sROLE}, 2")
        A("s_cbranch_scc1 L_md_f")
        srd(g, sA, P_WO, 4096*896)
        A(f"s_lshr_b32 s{sT2}, s{sT3}, 1")
        A(f"s_lshr_b32 s{sT0}, s{sIDX}, 3")
        A(f"s_lshl_b32 s{sT0}, s{sT0}, 1")
        A(f"s_add_u32 s{sT0}, s{sT0}, s{sT2}")
        A(f"s_lshl_b32 s{sT0}, s{sT0}, 8")
        A(f"s_and_b32 s{sT2}, s{sIDX}, 7")
        A(f"s_lshl_b32 s{sT2}, s{sT2}, 5")
        A(f"s_add_u32 s{sT0}, s{sT0}, s{sT2}")
        A(f"s_mul_i32 s{sSTART}, s{sT0}, 896")
        A(f"s_and_b32 s{sT1}, s{sWAVE}, 1")
        A(f"s_mul_i32 s{sT1}, s{sT1}, 14336")
        A(f"s_add_u32 s{sSTART}, s{sSTART}, s{sT1}")
        A(f"s_mul_i32 s{sLDS}, s{sT3}, 14336")
        A(f"s_mov_b32 s{sSTEP}, 1024")
        A(f"v_mov_b32 v{vDM}, v{vL16}")
        dma7(g, polW, VM(g, 0))
        A("s_branch L_md_go")
        g.lbl("L_md_f")
        srd(g, sA, P_WU, 448*3584)
        A(f"s_mul_i32 s{sSTART}, s{sT3}, {112*3584}")
        A(f"s_lshl_b32 s{sT1}, s{sIDX}, 6")
        A(f"s_add_u32 s{sSTART}, s{sSTART}, s{sT1}")
        A(f"s_mov_b32 s{sSTEP}, {16*3584}")
        A(f"s_mul_i32 s{sLDS}, s{sT3}, 7168")
        A(f"s_add_u32 s{sLDS}, s{sLDS}, {L_WU}")
        A(f"v_lshrrev_b32 v{vDM}, 2, v{vL}")
        A(f"v_mul_u32_u24 v{vDM}, 3584, v{vDM}")
        A(f"v_and_b32 v{vT}, 3, v{vL}")
        A(f"v_lshl_add_u32 v{vDM}, v{vT}, 4, v{vDM}")
        g.lbl("L_md_go")
        dma7(g, polW, VM(g, 0))
        A("s_branch L_md_done")
    else:
        A(f"s_cmp_eq_u32 s{sROLE}, 2")
        A("s_cbranch_scc1 L_md_f")
        srd(g, sA, P_WO, 4096*896)
        A(f"s_lshr_b32 s{sT2}, s{sWAVE}, 2")
        A(f"s_lshr_b32 s{sT0}, s{sIDX}, 3")
        A(f"s_lshl_b32 s{sT0}, s{sT0}, 1")
        A(f"s_add_u32 s{sT0}, s{sT0}, s{sT2}")
        A(f"s_lshl_b32 s{sT0}, s{sT0}, 8")
        A(f"s_and_b32 s{sT2}, s{sIDX}, 7")
        A(f"s_lshl_b32 s{sT2}, s{sT2}, 5")
        A(f"s_add_u32 s{sT0}, s{sT0}, s{sT2}")
        A(f"s_mul_i32 s{sSTART}, s{sT0}, 896")
        A(f"s_and_b32 s{sT1}, s{sWAVE}, 3")
        A(f"s_mul_i32 s{sT1}, s{sT1}, 7168")
        A(f"s_add_u32 s{sSTART}, s{sSTART}, s{sT1}")
        A(f"s_mul_i32 s{sLDS}, s{sWAVE}, 7168")
        A(f"s_mov_b32 s{sSTEP}, 1024")
        A(f"v_mov_b32 v{vDM}, v{vL16}")
        A("s_branch L_md_go")
        g.lbl("L_md_f")
        A(f"s_cmp_lt_u32 s{sWAVE}, 4")
        A(f"s_cbranch_scc0 L_md_done")
        srd(g, sA, P_WU, 448*3584)
        A(f"s_mul_i32 s{sSTART}, s{sWAVE}, {112*3584}")
        A(f"s_lshl_b32 s{sT1}, s{sIDX}, 6")
        A(f"s_add_u32 s{sSTART}, s{sSTART}, s{sT1}")
        A(f"s_mov_b32 s{sSTEP}, {16*3584}")
        A(f"s_mul_i32 s{sLDS}, s{sWAVE}, 7168")
        A(f"s_add_u32 s{sLDS}, s{sLDS}, {L_WU}")
        A(f"v_lshrrev_b32 v{vDM}, 2, v{vL}")
        A(f"v_mul_u32_u24 v{vDM}, 3584, v{vDM}")
        A(f"v_and_b32 v{vT}, 3, v{vL}")
        A(f"v_lshl_add_u32 v{vDM}, v{vT}, 4, v{vDM}")
        g.lbl("L_md_go")
        dma7(g, polW, VM(g, W, W))
        A("s_branch L_md_done")


    g.lbl("L_parF")
    A(f"s_cmp_eq_u32 s{sROLE}, 2")
    A("s_cbranch_scc1 L_parF2")
    A(f"s_cmp_eq_u32 s{sWAVE}, 0")
    A("s_cbranch_scc0 L_par_done")
    A(f"v_min_u32 v{vPA1}, 55, v{vL}")
    A(f"v_lshlrev_b32 v{vPA1}, 3, v{vPA1}")
    A(f"v_add_u32 v{vPA1}, {WS_RF}, v{vPA1}")
    A(f"buffer_load_dwordx2 v[{vPAR}:{vPAR+1}], v{vPA1}, s[{sWS}:{sWS+3}], 0 offen sc1")
    A("s_branch L_par_done")
    g.lbl("L_parF2")
    A(f"s_cmp_lt_u32 s{sWAVE}, 4")
    A(f"s_cselect_b64 s[{sMH}:{sMH+1}], -1, s[{sM48}:{sM48+1}]")
    A(f"s_cselect_b32 s{sT0}, 0, 1024")
    A(f"v_add_u32 v{vPA1}, s{sT0}, v{vL16}")
    A(f"v_mov_b32 v{vT}, {WS_SIZE}")
    A(f"v_cndmask_b32 v{vPA1}, v{vT}, v{vPA1}, s[{sMH}:{sMH+1}]")
    A(f"s_and_b32 s{sT0}, s{sWAVE}, 3")
    A(f"s_mul_i32 s{sXO}, s{sT0}, {MB}")
    A(f"s_add_u32 s{sXO}, s{sXO}, {WS_M + 3*1792}")
    for i in range(2):
        A(f"buffer_load_dwordx4 v[{vPAR+4*i}:{vPAR+4*i+3}], v{vPA1}, s[{sWS}:{sWS+3}], s{sXO} offen offset:{1792*i} sc1")
    A("s_branch L_par_done")
    g.lbl("L_parR")
    A(f"s_cmp_eq_u32 s{sWAVE}, 7")
    A("s_cbranch_scc0 L_par_done")
    A(f"s_lshl_b32 s{sT2}, s{sRED}, 2")
    A(f"s_add_u32 s{sT2}, s{sT2}, {WS_RF}")
    A(f"v_mov_b32 v{vT}, s{sTAG}")
    A(f"v_mov_b32 v{vT+1}, 0")
    A("s_mov_b64 exec, 1")
    A(f"buffer_store_dword v{vT}, v{vT+1}, s[{sWS}:{sWS+3}], s{sT2} offen sc1")
    A("s_mov_b64 exec, -1")
    A(f"s_mul_i32 s{sRB}, s{sRED}, 2341")
    A(f"s_lshr_b32 s{sRB}, s{sRB}, 16")
    A(f"s_mul_i32 s{sT0}, s{sRB}, 28")
    A(f"s_sub_u32 s{sT0}, s{sRED}, s{sT0}")
    A(f"s_mul_i32 s{sT2}, s{sRB}, 896")
    A(f"s_lshl_b32 s{sT3}, s{sT0}, 5")
    A(f"s_add_u32 s{sXO}, s{sT2}, s{sT3}")
    srd(g, sB, P_X, 3584)
    srd(g, sA, P_OUT, 3584)
    A(f"v_and_b32 v{vPA2}, 3, v{vL}")
    A(f"v_bfe_u32 v{vT}, v{vL}, 2, 1")
    A(f"v_lshl_add_u32 v{vPA2}, v{vPA2}, 1, v{vT}")
    A(f"v_lshlrev_b32 v{vPA2}, 2, v{vPA2}")
    A(f"buffer_load_dword v{vPAR+8}, v{vPA2}, s[{sB}:{sB+3}], s{sXO} offen")
    A(f"buffer_load_dword v{vPAR+9}, v{vPA2}, s[{sA}:{sA+3}], s{sXO} offen")
    A(f"v_and_b32 v{vPA1}, 3, v{vL}")
    A(f"v_lshlrev_b32 v{vPA1}, 4, v{vPA1}")
    A(f"s_mul_i32 s{sT2}, s{sRB}, {MB}")
    A(f"s_lshl_b32 s{sT3}, s{sT0}, 6")
    A(f"s_add_u32 s{sPX}, s{sT2}, s{sT3}")
    A(f"s_add_u32 s{sPX}, s{sPX}, {WS_M + 2*1792}")
    A(f"s_add_u32 s{sT0}, s{sPX}, {3*1792}")
    A(f"buffer_load_dwordx4 v[{vPAR}:{vPAR+3}], v{vPA1}, s[{sWS}:{sWS+3}], s{sPX} offen sc1")
    A(f"buffer_load_dwordx4 v[{vPAR+4}:{vPAR+7}], v{vPA1}, s[{sWS}:{sWS+3}], s{sT0} offen sc1")
    A("s_branch L_par_done")
    g.lbl("L_fin")
    flush_stamps(g, NSTAMP)
    g.lbl("L_end")
    A("s_endpgm")
    g.L += ['.section .rodata,"a"', ".p2align 6", f".amdhsa_kernel {NAME}_kernel",
            "  .amdhsa_next_free_vgpr 256", "  .amdhsa_next_free_sgpr 102", "  .amdhsa_accum_offset 256",
            "  .amdhsa_group_segment_fixed_size 0", "  .amdhsa_kernarg_size 112", "  .amdhsa_user_sgpr_count 2",
            "  .amdhsa_user_sgpr_kernarg_segment_ptr 1", "  .amdhsa_system_sgpr_workgroup_id_x 1", ".end_amdhsa_kernel"]
    return "\n".join(g.L) + "\n"

if __name__ == "__main__":
    out = sys.argv[1] if len(sys.argv) > 1 else f"cdna_kernels/{NAME}.s"
    opt = {}
    for a in sys.argv[2:]:
        k, val = a.split("=", 1)
        try: val = int(val)
        except ValueError: val = (" " + val.replace("+", " ")) if val else ""
        opt[k] = val
    open(out, "w").write(build(opt))
```

```python
import sys, math, struct

NAME = "adaLN_cond__gqa_block_cached__geglu_ffn__decode"

WS_E   = 0x0
WS_XC  = 0x1000
WS_CNT = 0x2000
WS_X1  = 0x4000
WS_M   = 0x6000
MB = 10752
WS_Q   = 0x20000
WS_O   = 0x30000
WS_RI  = 0x130000
WS_STAMP = 0x400000
WS_SIZE = 0x800000

L_OL = 57344
L_Q  = L_OL + 16384
L_P  = L_Q + 1024
L_RED = L_P + 2048
SB0 = 0
SB1 = 57344 + 16
L_SC = SB1 + 57344 + 48
AS = 928
L_A  = L_SC + 4096
L_OB = L_A + 4*AS
L_G  = L_OB + 1024
L_END = L_G + 512

LOG2E = 1.4426950408889634
def f2u(x): return struct.unpack("<I", struct.pack("<f", x))[0]

class G:
    def __init__(self, opt):
        self.L = []; self.o = opt; self.lab = 0
    def A(self, s): self.L.append("    " + s)
    def lbl(self, s): self.L.append(s + ":")
    def newlab(self, p="L"):
        self.lab += 1
        return f"{p}_{self.lab}"
    def nop(self, n):
        while n > 0:
            k = min(n, 16)
            self.A(f"s_nop {k-1}")
            n -= k

sWAVE = 3
sK, sV, sWS, sA, sB = 4, 8, 12, 16, 20
sS, sB_, sKVH, sN = 24, 25, 26, 27
sTAG, sRETRY = 28, 29
sKB, sFAST = 30, 31
sUB = 32
sT0, sT1, sT2, sT3 = 33, 34, 35, 36
sLN = 37
sM1, sM2, sM3 = 38, 40, 42
sM48 = 44
sQ1, sQ2, sQ3 = 46, 48, 50
sR8 = 52
sSTART, sSTEP, sLDS = 54, 55, 56
sTK, sLIM = 54, 55
sPLO, sPHI = 57, 58
sC = 59
sHI = 60
sXO, sPX = 61, 62
sGRP = 63
P_X, P_K, P_V, P_WQ, P_WO, P_BX, P_WG, P_WU, P_WD, P_C, P_WM, P_OUT, P_DBG, P_WS = [64 + 2*i for i in range(14)]
sCNT = 84
sCX = 68
sST = 88
sO_DST, sY_DST = 66, 67
sO_IN, sRI = 68, 69
sMH = 74

vTID, vL, vJ, vGR, vKO, vVO, vL16, vDM = 0, 1, 2, 3, 4, 5, 6, 7
vE = 8
vT = 9
vVE = 64
vK = 128
vVU = 0
vM, vLS = 14, 15
vKU, vVB = 192, 224
vOLW, vOLR, vRW, vRR = 78, 79, 80, 81

def srd(g, r, ptr, size):
    g.A(f"s_mov_b32 s{r}, s{ptr}")
    g.A(f"s_mov_b32 s{r+1}, s{ptr+1}")
    g.A(f"s_mov_b32 s{r+2}, {size}")
    g.A(f"s_mov_b32 s{r+3}, 0x20000")

DPP = "row_mask:0xf bank_mask:0xf"
def wave_reduce(g, op, regs, tmps, swaps=("v_permlane16_swap_b32", "v_permlane32_swap_b32")):
    n = len(regs)
    for pat in ("quad_perm:[1,0,3,2]", "quad_perm:[2,3,0,1]", "row_half_mirror", "row_mirror"):
        g.nop(max(0, 2 - (n - 1)))
        for r in regs:
            g.A(f"{op} v{r}, v{r}, v{r} {pat} {DPP}")
    for sw in swaps:
        for r, t in zip(regs, tmps):
            g.A(f"v_mov_b32 v{t}, v{r}")
        g.nop(2)
        for r, t in zip(regs, tmps):
            g.A(f"{sw} v{r}, v{t}")
        g.nop(1)
        for r, t in zip(regs, tmps):
            g.A(f"{op} v{r}, v{r}, v{t}")

def rnd2(g, a, b, t):
    g.A(f"v_cvt_pk_bf16_f32 v{t}, v{a}, v{b}")
    g.A(f"v_lshlrev_b32 v{a}, 16, v{t}")
    g.A(f"v_and_b32 v{b}, s{sHI}, v{t}")
def rnd1(g, a):
    g.A(f"v_cvt_pk_bf16_f32 v{a}, v{a}, v{a}")
    g.A(f"v_lshlrev_b32 v{a}, 16, v{a}")
def unpack(g, src, lo, hi):
    g.A(f"v_lshlrev_b32 v{lo}, 16, v{src}")
    g.A(f"v_and_b32 v{hi}, s{sHI}, v{src}")

def red63(g, r, fill):
    fill = list(fill)
    def pad(n):
        for _ in range(n):
            if fill: g.A(fill.pop(0))
            else:
                g.nop(n - _); break
    for pat in ("quad_perm:[1,0,3,2] " + DPP, "quad_perm:[2,3,0,1] " + DPP, "row_half_mirror " + DPP, "row_mirror " + DPP,
                "row_bcast:15 row_mask:0xa bank_mask:0xf", "row_bcast:31 row_mask:0xc bank_mask:0xf"):
        pad(2)
        g.A(f"v_add_f32 v{r}, v{r}, v{r} {pat}")
    pad(1)
    g.A(f"v_readlane_b32 s{sLN}, v{r}, 63")
    pad(2)
    for f in fill: g.A(f)

def pk(op, d, a, b, bc=False, neg=False):
    m = ""
    if bc: m += " op_sel_hi:[1,0]"
    if neg: m += " neg_lo:[0,1] neg_hi:[0,1]"
    return f"v_pk_{op}_f32 v[{d}:{d+1}], v[{a}:{a+1}], v[{b}:{b+1}]{m}"

def rnd2s(a, b, t):
    return [f"v_cvt_pk_bf16_f32 v{t}, v{a}, v{b}", f"v_lshlrev_b32 v{a}, 16, v{t}", f"v_and_b32 v{b}, s{sHI}, v{t}"]

def layernorm(g, X, T, E, n, presel=()):
    A = g.A
    A(pk("add", T, X, X+2)); A(pk("add", T+2, X+4, X+6)); A(pk("add", T, T, T+2))
    A(f"v_add_f32 v{T}, v{T}, v{T+1}")
    red63(g, T, presel)
    A(f"v_mov_b32 v{T+8}, {f2u(1.0/448):#x}")
    A(f"v_mul_f32 v{T}, s{sLN}, v{T+8}")
    A(pk("add", T+2, X, T, True, True)); A(pk("add", T+4, X+2, T, True, True))
    A(f"v_pk_mul_f32 v[{T+6}:{T+7}], v[{T+2}:{T+3}], v[{T+2}:{T+3}]")
    A(pk("add", T+2, X+4, T, True, True))
    A(f"v_pk_fma_f32 v[{T+6}:{T+7}], v[{T+4}:{T+5}], v[{T+4}:{T+5}], v[{T+6}:{T+7}]")
    A(pk("add", T+4, X+6, T, True, True))
    A(f"s_mov_b64 exec, s[{sM48}:{sM48+1}]")
    A(f"v_pk_fma_f32 v[{T+6}:{T+7}], v[{T+2}:{T+3}], v[{T+2}:{T+3}], v[{T+6}:{T+7}]")
    A(f"v_pk_fma_f32 v[{T+6}:{T+7}], v[{T+4}:{T+5}], v[{T+4}:{T+5}], v[{T+6}:{T+7}]")
    A("s_mov_b64 exec, -1")
    A(f"v_add_f32 v{T+6}, v{T+6}, v{T+7}")
    fill = [f"v_cvt_pk_bf16_f32 v{T}, v{T}, v{T}", f"v_lshlrev_b32 v{T}, 16, v{T}"]
    fill += [pk("add", E+i, E+i, T, True, True) for i in range(0, n, 2)]
    for i in range(0, n, 2): fill += rnd2s(E+i, E+i+1, T+2)
    red63(g, T+6, fill)
    A(f"v_mul_f32 v{T+6}, s{sLN}, v{T+8}")
    rnd1(g, T+6)
    A(f"v_add_f32 v{T+6}, {f2u(1e-5):#x}, v{T+6}")
    rnd1(g, T+6)
    A(f"v_sqrt_f32 v{T+6}, v{T+6}")
    g.nop(1)
    rnd1(g, T+6)
    A(f"v_rcp_f32 v{T+6}, v{T+6}")
    g.nop(1)
    for i in range(0, n, 2): A(pk("mul", E+i, E+i, T+6, True))

def modulate_pack(g, X, OC, SH, D, t, n):
    for i in range(0, n, 2): g.A(pk("mul", X+i, X+i, OC+i))
    for i in range(0, n, 2): rnd2(g, X+i, X+i+1, t)
    for i in range(0, n, 2): g.A(pk("add", X+i, X+i, SH+i))
    for i in range(0, n, 2): g.A(f"v_cvt_pk_bf16_f32 v{D+i//2}, v{X+i}, v{X+i+1}")

def retry_branch(g, fail_label):
    ok = g.newlab("L_ok")
    g.A(f"s_cbranch_vccz {ok}")
    g.A(f"s_sub_u32 s{sRETRY}, s{sRETRY}, 1")
    g.A(f"s_cbranch_scc0 {fail_label}")
    g.A(f"s_mov_b32 s{sRETRY}, 0")
    g.lbl(ok)

def tags_ab(g, ra, rb):
    t = vT
    g.A(f"v_xor_b32 v{t}, s{sTAG}, v{rb[0]}")
    for r in rb[1:]: g.A(f"v_bitop3_b32 v{t}, v{t}, v{r}, s{sTAG} bitop3:0xf6")
    g.A(f"v_cndmask_b32 v{t}, 0, v{t}, s[{sM48}:{sM48+1}]")
    for r in ra: g.A(f"v_bitop3_b32 v{t}, v{t}, v{r}, s{sTAG} bitop3:0xf6")
    g.A(f"v_cmp_ne_u32 vcc, 0, v{t}")

class VM:
    def __init__(self, g, W, n0=0):
        self.g, self.W, self.n = g, W, n0
    def pre(self):
        if self.W and self.n >= self.W:
            self.g.A(f"s_waitcnt vmcnt({self.W-1})")
            self.n = self.W - 1
        self.n += 1

def dma7(g, pol, vm, srd_=None):
    srd_ = srd_ or sA
    for i in range(7):
        vm.pre()
        g.A(f"s_mov_b32 m0, s{sLDS}")
        g.A(f"s_add_u32 s{sLDS}, s{sLDS}, 1024")
        g.A(f"buffer_load_dwordx4 v{vDM}, s[{srd_}:{srd_+3}], s{sSTART} offen{pol} lds")
        g.A(f"s_add_u32 s{sSTART}, s{sSTART}, s{sSTEP}")

def k_tile(g, vm, pol, base, add, dst, lo=0, hi=8):
    g.A(f"s_add_u32 s{sT0}, s{base}, {add}")
    g.A(f"s_add_u32 s{sT1}, s{base}, {add+4096}")
    for jj in range(lo, hi):
        vm.pre()
        r = dst + 4*jj
        kq, blk = jj >> 1, jj & 1
        so = sT0 if kq < 2 else sT1
        g.A(f"buffer_load_dwordx4 v[{r}:{r+3}], v{vKO}, s[{sK}:{sK+3}], s{so} offen offset:{(kq&1)*2048 + blk*256}{pol}")

def v_group(g, vm, pol, part):
    il = g.o.get("VIL", 1)
    for k in range(8):
        if il: r, eta = part*4 + (k >> 1), k & 1
        else: r, eta = k, part
        vm.pre()
        d = vVE + 32*eta + 4*r
        g.A(f"buffer_load_dwordx4 v[{d}:{d+3}], v13, s[{sV}:{sV+3}], s{sKB} offen offset:{512*r + 256*eta}{pol}")

def v_unit(g, vm, pol):
    for k in range(8):
        if True:
            r, eta = ((k >> 1, k & 1) if g.o.get("VIL", 1) else (k & 3, k >> 2))
            vm.pre()
            d = vVB + 16*eta + 4*r
            g.A(f"buffer_load_dwordx4 v[{d}:{d+3}], v{vVU}, s[{sV}:{sV+3}], s{sUB} offen offset:{512*r + 256*eta}{pol}")

def get_tag(g):
    g.A(f"v_readfirstlane_b32 s{sTAG}, v{vE}")
    g.A(f"s_add_u32 s{sTAG}, s{sTAG}, 0x9e3779b9")

def check_tags(g, regs, fail_label, mask=None, t=vT):
    if len(regs) == 1:
        g.A(f"v_cmp_ne_u32 vcc, s{sTAG}, v{regs[0]}")
    else:
        g.A(f"v_xor_b32 v{t}, s{sTAG}, v{regs[0]}")
        for r in regs[1:]:
            g.A(f"v_bitop3_b32 v{t}, v{t}, v{r}, s{sTAG} bitop3:0xf6")
        g.A(f"v_cmp_ne_u32 vcc, 0, v{t}")
    if mask is not None:
        g.A(f"s_and_b64 vcc, vcc, s[{mask}:{mask+1}]")
    ok = g.newlab("L_ok")
    g.A(f"s_cbranch_vccz {ok}")
    g.A(f"s_sub_u32 s{sRETRY}, s{sRETRY}, 1")
    g.A(f"s_cbranch_scc0 {fail_label}")
    g.A(f"s_mov_b32 s{sRETRY}, 0")
    g.lbl(ok)

NSTAMP = 10
def tstamp(g, idx):
    if g.o.get("tst"): stamp(g, idx, True)
def stamp(g, idx, force=False):
    if not g.o.get("stamps"): return
    if (g.o.get("tst") or g.o.get("est")) and not force and idx in (1, 2, 3, 4): return
    g.A(f"s_memrealtime s[{sST}:{sST+1}]")
    g.A("s_waitcnt lgkmcnt(0)")
    g.A(f"s_mov_b32 s{92+idx}, s{sST}")
def flush_stamps(g, n):
    if not g.o.get("stamps"): return
    if g.o.get("dbg"):
        g.A("s_mov_b64 exec, 1")
        g.A("v_mov_b32 v15, 0")
        g.A(f"s_lshl_b32 s{sT3}, s2, 3")
        g.A(f"s_add_u32 s{sT3}, s{sT3}, s{sWAVE}")
        g.A(f"s_cmp_eq_u32 s{sT3}, 0")
        g.A("s_cbranch_scc1 L_dbg0")
        g.A(f"s_cmp_eq_u32 s{sT3}, {144*8+7}")
        g.A("s_cbranch_scc0 L_end")
        for k, i in enumerate((6, 1, 7, 2, 8, 9)):
            g.A(f"s_sub_u32 s{sT3}, s{92+i}, s92")
            g.A(f"v_mov_b32 v14, s{sT3}")
            g.A(f"global_store_dword v15, v14, s[82:83] offset:{4*k}")
            g.nop(1)
        g.A("s_branch L_end")
        g.lbl("L_dbg0")
        for k, i in enumerate((6, 7, 9, 2, 3, 4, 8)):
            g.A(f"s_sub_u32 s{sT3}, s{92+i}, s92")
            g.A(f"v_mov_b32 v14, s{sT3}")
            g.A(f"global_store_dword v15, v14, s[82:83] offset:{32+4*k}")
            g.nop(1)
        return
    g.A(f"s_lshl_b32 s{sT3}, s2, 3")
    g.A(f"s_add_u32 s{sT3}, s{sT3}, s{sWAVE}")
    g.A(f"s_lshl_b32 s{sT3}, s{sT3}, 6")
    g.A(f"s_add_u32 s{sT3}, s{sT3}, {WS_STAMP}")
    g.A("s_mov_b64 exec, 1")
    g.A("v_mov_b32 v15, 0")
    for i in range(n):
        g.A(f"v_mov_b32 v14, s{92+i}")
        g.A(f"buffer_store_dword v14, v15, s[{sWS}:{sWS+3}], s{sT3} offen offset:{4*i}")
        g.nop(1)

def sel4(g, dst, r0, r1, r2, r3, m1, m2, m3):
    g.A(f"v_cndmask_b32 v{dst}, v{r0}, v{r1}, s[{m1}:{m1+1}]")
    g.A(f"v_cndmask_b32 v{dst}, v{dst}, v{r2}, s[{m2}:{m2+1}]")
    g.A(f"v_cndmask_b32 v{dst}, v{dst}, v{r3}, s[{m3}:{m3+1}]")

def build(opt):
    g = G(opt)
    A = g.A
    polK = opt.get("polK", " nt"); polV = opt.get("polV", " nt"); polW = opt.get("polW", " nt")
    W = opt.get("W", 16)
    PRIO = opt.get("prio", 1)
    SX = opt.get("SX", 0)
    def prio(p):
        if PRIO: A(f"s_setprio {p}")
    hdr = open(f"cdna_kernels/{NAME}.s.ref").read().split("\n")
    for line in hdr:
        if line.startswith("; @launch"):
            g.L.append(f"; @launch grid=(256,1,1) block=(512,1,1) lds={L_END}")
            break
        g.L.append(line)
    g.L += ['.amdgcn_target "amdgcn-amd-amdhsa--gfx950"', ".text", f".globl {NAME}_kernel", ".p2align 8",
            f".type {NAME}_kernel,@function"]
    g.lbl(f"{NAME}_kernel")
    A("s_cmp_ge_u32 s2, 256")
    A("s_cbranch_scc1 L_end")
    A("s_load_dwordx16 s[64:79], s[0:1], 0")
    A("s_load_dwordx8 s[80:87], s[0:1], 64")
    A("s_load_dwordx2 s[90:91], s[0:1], 104")
    A(f"s_getpc_b64 s[{sST}:{sST+1}]")
    g.lbl("L_pc")
    A(f"v_lshlrev_b32 v{vT}, 6, v0")
    A(f"v_min_u32 v{vT}, L_end - L_pc - 4, v{vT}")
    A(f"global_load_dword v15, v{vT}, s[{sST}:{sST+1}]")
    prio(3)
    A(f"v_lshrrev_b32 v{vL}, 6, v0")
    A(f"s_sub_u32 s{sS}, s2, {SX+1}")
    A(f"v_readfirstlane_b32 s{sWAVE}, v{vL}")
    A(f"v_and_b32 v{vL}, 63, v0")
    A(f"v_and_b32 v{vJ}, 15, v0")
    A(f"v_lshrrev_b32 v{vGR}, 4, v{vL}")
    A(f"v_lshrrev_b32 v{vKO}, 2, v{vJ}")
    A(f"v_lshlrev_b32 v{vKO}, 9, v{vKO}")
    A(f"v_lshl_add_u32 v{vKO}, v{vGR}, 6, v{vKO}")
    A(f"v_and_b32 v12, 3, v0")
    A(f"v_lshl_add_u32 v{vKO}, v12, 4, v{vKO}")
    A(f"v_lshlrev_b32 v{vL16}, 4, v{vL}")
    A(f"v_mov_b32 v{vE}, 0")
    A(f"s_and_b32 s{sS}, s{sS}, 7")
    A(f"s_lshr_b32 s{sN}, s2, 3")
    A(f"s_and_b32 s{sB_}, s{sN}, 3")
    A(f"s_lshr_b32 s{sKVH}, s{sN}, 2")
    A(f"s_lshl_b32 s{sGRP}, s{sB_}, 3")
    A(f"s_add_u32 s{sGRP}, s{sGRP}, s{sKVH}")
    A(f"s_lshl_b32 s{sT0}, s{sGRP}, 21")
    A(f"s_and_b32 s{sT1}, s{sWAVE}, 3")
    A(f"s_lshl_b32 s{sT2}, s{sS}, 2")
    A(f"s_add_u32 s{sT1}, s{sT1}, s{sT2}")
    A(f"s_lshr_b32 s{sT2}, s{sWAVE}, 2")
    A(f"s_mul_i32 s{sT2}, s{sT2}, 28")
    A(f"s_add_u32 s{sT1}, s{sT1}, s{sT2}")
    A(f"s_lshl_b32 s{sT1}, s{sT1}, 14")
    A(f"s_add_u32 s{sKB}, s{sT0}, s{sT1}")
    A(f"s_mul_i32 s{sT1}, s{sS}, 5")
    A(f"s_add_u32 s{sT1}, s{sT1}, s{sN}")
    A(f"s_and_b32 s{sT1}, s{sT1}, 31")
    A(f"s_mul_i32 s{sT1}, s{sT1}, 7")
    A(f"s_add_u32 s{sT1}, s{sT1}, s{sS}")
    A(f"s_cmp_eq_u32 s{sS}, 7")
    A(f"s_cselect_b32 s{sN}, s{sN}, s{sT1}")
    A(f"s_mov_b32 s{sK+2}, {64<<20}")
    A(f"s_mov_b32 s{sK+3}, 0x20000")
    A(f"s_cmp_lt_u32 s{sN}, 42")
    A("s_waitcnt lgkmcnt(0)")
    A(f"global_load_dword v{vE}, v{vE}, s[{P_WS}:{P_WS+1}] sc1")
    A(f"s_mov_b32 s{sK}, s{P_K}")
    A(f"s_mov_b32 s{sK+1}, s{P_K+1}")
    A("s_cbranch_scc1 L_early")
    vm = VM(g, W, 2)
    k_tile(g, vm, polK, sKB, 0, vK)
    A("s_branch L_main0")
    SID = sN
    c4 = 12
    vRO, vSW = 10, 11
    def dma(n, swz):
        for i in range(n):
            A(f"s_mov_b32 m0, s{sLDS}")
            A(f"s_add_u32 s{sLDS}, s{sLDS}, 1024")
            A(f"buffer_load_dwordx4 v{vDM}, s[{sA}:{sA+3}], s{sSTART} offen{polW} lds")
            A(f"s_add_u32 s{sSTART}, s{sSTART}, s{sSTEP}")
            if swz: A(f"v_xor_b32 v{vDM}, 64, v{vDM}")
    g.lbl("L_early")
    A(f"s_cmp_eq_u32 s{sS}, 7")
    A(f"s_cselect_b32 s{sB}, s{P_X}, s{P_C}")
    A(f"s_cselect_b32 s{sB+1}, s{P_X+1}, s{P_C+1}")
    A(f"s_mov_b32 s{sB+2}, 3584")
    A(f"s_mov_b32 s{sB+3}, 0x20000")
    A(f"s_cselect_b32 s{sA}, s{P_WQ}, s{P_WM}")
    A(f"s_cselect_b32 s{sA+1}, s{P_WQ+1}, s{P_WM+1}")
    A(f"s_mov_b32 s{sSTEP}, 5376")
    A(f"s_cselect_b32 s{sSTEP}, 8192, s{sSTEP}")
    A(f"s_mov_b32 s{sT0}, 1024")
    A(f"s_cselect_b32 s{sT0}, 896, s{sT0}")
    A(f"s_cselect_b32 s{sT1}, 3, 4")
    A(f"s_cselect_b32 s{sT2}, 6, 0")
    A(f"s_cselect_b32 s{sT3}, 48, 64")
    A(f"s_cselect_b32 s{sLDS}, 8, 7")
    A(f"s_mul_i32 s{sT0}, s{sT0}, s{sWAVE}")
    A(f"s_lshl_b32 s{sT2}, 8, s{sT2}")
    A(f"v_lshlrev_b32 v13, s{sT1}, v{vL}")
    A(f"v_cmp_gt_u32 vcc, s{sT3}, v{vL}")
    A(f"buffer_load_dwordx2 v[16:17], v13, s[{sB}:{sB+3}], s{sT0} offen")
    A(f"v_add_u32 v13, s{sT2}, v13")
    A(f"v_mov_b32 v{vT}, 0x100000")
    A(f"v_cndmask_b32 v13, v{vT}, v13, vcc")
    A(f"buffer_load_dwordx2 v[18:19], v13, s[{sB}:{sB+3}], s{sT0} offen")
    A(f"s_mul_i32 s{sA+2}, s{sSTEP}, 448")
    A(f"s_mov_b32 s{sA+3}, 0x20000")
    A(f"v_lshrrev_b32 v{vRO}, 3, v{vL}")
    A(f"v_and_b32 v{vSW}, 7, v{vL}")
    A(f"v_and_b32 v{vT}, 2, v{vRO}")
    A(f"v_xor_b32 v{vSW}, v{vSW}, v{vT}")
    A(f"v_lshlrev_b32 v{vSW}, 4, v{vSW}")
    A(f"s_and_b32 s{sT1}, s{sWAVE}, 1")
    A(f"s_lshl_b32 s{sT1}, s{sT1}, 6")
    A(f"v_xor_b32 v{vSW}, s{sT1}, v{vSW}")
    A(f"v_mad_u32_u24 v{vDM}, v{vRO}, s{sSTEP}, v{vSW}")
    A(f"s_lshl_b32 s{sSTART}, s{SID}, s{sLDS}")
    A(f"s_lshl_b32 s{sSTEP}, s{sSTEP}, 3")
    A(f"s_mul_i32 s{sT0}, s{sWAVE}, 7")
    A(f"s_mul_i32 s{sT1}, s{sT0}, s{sSTEP}")
    A(f"s_add_u32 s{sSTART}, s{sSTART}, s{sT1}")
    A(f"s_lshl_b32 s{sLDS}, s{sT0}, 10")
    dma(7, True)
    def consts():
        srd(g, sWS, P_WS, WS_SIZE)
        A(f"s_mov_b32 s{sM48}, -1"); A(f"s_mov_b32 s{sM48+1}, 0x0000ffff")
        A(f"s_mov_b32 s{sHI}, 0xffff0000")
        A(f"s_mov_b32 s{sRETRY}, 0x40000")
        A(f"s_mov_b32 s{sM1}, 0xffff0000"); A(f"s_mov_b32 s{sM1+1}, 0")
        A(f"s_mov_b32 s{sM2}, 0"); A(f"s_mov_b32 s{sM2+1}, 0xffff")
        A(f"s_mov_b32 s{sM3}, 0"); A(f"s_mov_b32 s{sM3+1}, 0xffff0000")
        A(f"s_mov_b32 s{sQ1}, 0x22222222"); A(f"s_mov_b32 s{sQ1+1}, 0x22222222")
        A(f"s_mov_b32 s{sQ2}, 0x44444444"); A(f"s_mov_b32 s{sQ2+1}, 0x44444444")
        A(f"s_mov_b32 s{sQ3}, 0x88888888"); A(f"s_mov_b32 s{sQ3+1}, 0x88888888")
        if opt.get("stamps"):
            for i in range(NSTAMP): A(f"s_mov_b32 s{92+i}, 0")
        stamp(g, 0)
    def wfrags(addr, rowbytes, dst=64):
        for ks in range(14):
            r = dst + 4*ks
            A(f"ds_read_b64_tr_b16 v[{r}:{r+1}], v{addr} offset:{ks*32*rowbytes}")
            A(f"ds_read_b64_tr_b16 v[{r+2}:{r+3}], v{addr} offset:{ks*32*rowbytes + 4*rowbytes}")
            if ks % 4 == 3: A("s_waitcnt lgkmcnt(6)")
    def gemv_pub(abase, astride, bstride):
        A(f"v_mul_u32_u24 v{vT}, {astride}, v{c4}")
        A(f"v_lshl_add_u32 v{vT}, v{vGR}, 4, v{vT}")
        A(f"v_add_u32 v{vT}, {abase}, v{vT}")
        A("s_waitcnt lgkmcnt(0)")
        for ks in range(14):
            A(f"ds_read_b128 v[{128+4*ks}:{131+4*ks}], v{vT} offset:{64*ks}")
        for ks in range(14):
            A(f"s_waitcnt lgkmcnt({13-ks})")
            c = "0" if ks == 0 else "v[16:19]"
            A(f"v_mfma_f32_16x16x32_bf16 v[16:19], v[{64+4*ks}:{67+4*ks}], v[{128+4*ks}:{131+4*ks}], {c}")
        A(f"v_mul_u32_u24 v{vT}, {bstride}, v{c4}")
        A(f"v_lshl_add_u32 v{vT}, v{vGR}, 4, v{vT}")
        A(f"v_mov_b32 v22, 0")
        A(f"v_mov_b32 v23, s{sTAG}")
        A(f"s_mov_b32 exec_lo, 0x000f000f")
        A(f"s_mov_b32 exec_hi, 0x000f000f")
        g.nop(2)
        A(f"v_cvt_pk_bf16_f32 v20, v16, v17")
        A(f"v_cvt_pk_bf16_f32 v21, v18, v19")
        A(f"buffer_store_dwordx4 v[20:23], v{vT}, s[{sWS}:{sWS+3}], s{sT3} offen sc1")
        A("s_mov_b64 exec, -1")
    A(f"s_cmp_eq_u32 s{sS}, 7")
    A("s_cbranch_scc1 L_svc")
    consts()
    A(f"s_cmp_lt_u32 s{sWAVE}, 4")
    A("s_cbranch_scc0 L_m1")
    A("s_waitcnt vmcnt(7)")
    get_tag(g)
    for i in range(4): unpack(g, 16+i, 24+2*i, 25+2*i)
    A(f"s_lshl_b32 s{sT2}, s{sWAVE}, 10")
    A(f"s_add_u32 s{sT2}, s{sT2}, {L_SC}")
    A(f"v_add_u32 v{vT}, s{sT2}, v{vL16}")
    for i in range(8): A(f"v_mul_f32 v{32+i}, {f2u(-LOG2E):#x}, v{24+i}")
    for i in range(8): A(f"v_exp_f32 v{32+i}, v{32+i}")
    for i in range(8): A(f"v_add_f32 v{32+i}, 1.0, v{32+i}")
    for i in range(8): A(f"v_rcp_f32 v{32+i}, v{32+i}")
    for i in range(8): A(f"v_mul_f32 v{24+i}, v{24+i}, v{32+i}")
    for i in range(4): A(f"v_cvt_pk_bf16_f32 v{24+i}, v{24+2*i}, v{25+2*i}")
    A(f"ds_write_b128 v{vT}, v[24:27]")
    A(f"v_lshrrev_b32 v13, 2, v{vJ}")
    A(f"v_lshl_add_u32 v13, v{vGR}, 3, v13")
    A(f"v_lshlrev_b32 v13, 7, v13")
    A(f"v_lshl_add_u32 v13, v{c4}, 3, v13")
    A(f"v_bfe_u32 v{vT}, v{vL}, 3, 2")
    A(f"v_xor_b32 v{vT}, s{sWAVE}, v{vT}")
    A(f"v_lshl_add_u32 v13, v{vT}, 5, v13")
    A(f"s_lshl_b32 s{sT3}, s{SID}, 8")
    A(f"s_lshl_b32 s{sT0}, s{sWAVE}, 6")
    A(f"s_add_u32 s{sT3}, s{sT3}, s{sT0}")
    A(f"s_add_u32 s{sT3}, s{sT3}, {WS_M}")
    g.lbl("L_m1")
    A("s_waitcnt vmcnt(0) lgkmcnt(0)")
    A("s_barrier")
    A(f"s_cmp_lt_u32 s{sWAVE}, 4")
    A("s_cbranch_scc0 L_m2")
    wfrags(13, 128)
    gemv_pub(L_SC, 896, MB)
    stamp(g, 1)
    g.lbl("L_m2")
    k_tile(g, VM(g, 0), polK, sKB, 0, vK)
    A("s_branch L_main1")
    g.lbl("L_main0")
    consts()
    g.lbl("L_main1")
    srd(g, sV, P_V, 64 << 20)
    A(f"v_lshlrev_b32 v13, 12, v{vGR}")
    A(f"v_lshl_add_u32 v13, v{vJ}, 4, v13")
    A(f"v_lshlrev_b32 v{vVU}, 11, v{vGR}")
    A(f"v_lshl_add_u32 v{vVU}, v{vJ}, 4, v{vVU}")
    A(f"s_mov_b32 s{sR8}, 0xff00ff00"); A(f"s_mov_b32 s{sR8+1}, 0xff00ff00")
    A(f"s_mov_b32 s{sPLO}, 0x05040100"); A(f"s_mov_b32 s{sPHI}, 0x07060302")
    A(f"s_mov_b32 s{sC}, {f2u(0.0625*LOG2E):#x}")
    k_tile(g, vm, polK, sKB, 8192, vK+32)
    prio(2)
    v_group(g, VM(g, W, W), polV, 0)
    v_group(g, VM(g, W, W), polV, 1)
    get_tag(g)
    NU = 144
    TY = opt.get("TY", 32)
    A(f"s_lshl_b32 s{sT0}, s{sGRP}, 8")
    A(f"s_add_u32 s{sT0}, s{sT0}, {WS_CNT}")
    A(f"s_add_u32 s{sCNT}, s{P_WS}, s{sT0}")
    A(f"s_addc_u32 s{sCNT+1}, s{P_WS+1}, 0")
    A(f"s_lshl_b32 s{sKB}, s{sGRP}, 21")
    A(f"s_add_u32 s{sKB}, s{sKB}, {1792*512}")
    A(f"s_cmp_lt_u32 s{sWAVE}, 4")
    A(f"s_mov_b32 s{sLIM}, {TY}")
    A(f"s_cselect_b32 s{sLIM}, {NU}, s{sLIM}")
    g.lbl("L_peek")
    A(f"s_mov_b64 s[{sCX+2}:{sCX+3}], 0")
    A(f"s_atomic_add_x2 s[{sCX+2}:{sCX+3}], s[{sCNT}:{sCNT+1}], 0 glc")
    A("s_waitcnt lgkmcnt(0)")
    A(f"s_cmp_eq_u32 s{sCX+3}, s{sTAG}")
    A("s_cbranch_scc1 L_peek_ok")
    A(f"s_mov_b32 s{sCX}, 0")
    A(f"s_mov_b32 s{sCX+1}, s{sTAG}")
    A(f"s_atomic_cmpswap_x2 s[{sCX}:{sCX+3}], s[{sCNT}:{sCNT+1}], 0 glc")
    A("s_waitcnt lgkmcnt(0)")
    A(f"s_sub_u32 s{sRETRY}, s{sRETRY}, 1")
    A("s_cbranch_scc0 L_peek")
    A(f"s_mov_b32 s{sRETRY}, 0")
    g.lbl("L_peek_ok")
    A(f"s_mov_b32 s{sTK}, s{sCX+2}")
    ncl = [0]
    def claim():
        ncl[0] += 1
        A(f"s_cmp_lt_u32 s{sTK}, s{sLIM}")
        A(f"s_mov_b32 s{sTK}, 0xffff")
        A(f"s_cbranch_scc0 L_nc{ncl[0]}")
        A(f"s_mov_b32 s{sTK}, 1")
        A(f"s_atomic_add s{sTK}, s[{sCNT}:{sCNT+1}], 0 glc")
        g.lbl(f"L_nc{ncl[0]}")
    def unit_base():
        A(f"s_lshl_b32 s{sUB}, s{sTK}, 13")
        A(f"s_add_u32 s{sUB}, s{sUB}, s{sKB}")
    claim()
    def qloads():
        for i in range(2):
            A(f"buffer_load_dwordx4 v[{16+4*i}:{19+4*i}], v{vL16}, s[{sWS}:{sWS+3}], s{sPX} offen offset:{1024*i} sc1")
    A(f"s_lshl_b32 s{sT1}, s{sB_}, 14")
    A(f"s_lshl_b32 s{sT2}, s{sKVH}, 11")
    A(f"s_add_u32 s{sT1}, s{sT1}, s{sT2}")
    A(f"s_add_u32 s{sPX}, s{sT1}, {WS_Q}")
    QLATE = opt.get("QLATE", 1)
    if not QLATE: qloads()
    prio(1)
    A(f"s_cmp_lt_u32 s{sWAVE}, 4")
    A("s_cbranch_scc0 L_yp")
    prio(0)
    g.lbl("L_yp")
    A("s_waitcnt lgkmcnt(0)")
    A(f"s_cmp_lt_u32 s{sTK}, {NU}")
    A(f"s_cbranch_scc0 {'L_qpoll' if QLATE else 'L_qwait'}")
    unit_base()
    k_tile(g, VM(g, W, W), polK, sUB, 0, vKU)
    if QLATE: qloads()
    v_unit(g, VM(g, W, W), polV)
    A(f"s_waitcnt vmcnt({8 if QLATE else 16})")
    A("s_branch L_qchk")
    g.lbl("L_qpoll")
    qloads()
    g.lbl("L_qwait")
    A("s_waitcnt vmcnt(0)")
    g.lbl("L_qchk")
    check_tags(g, [19, 23], "L_qpoll")
    stamp(g, 3)
    A(f"v_lshlrev_b32 v{vT+2}, 3, v{vL}")
    A(f"v_add_u32 v{vT+2}, {L_Q}, v{vT+2}")
    A(f"ds_write_b64 v{vT+2}, v[16:17]")
    A(f"ds_write_b64 v{vT+2}, v[20:21] offset:512")
    A(f"v_bfe_u32 v{vT}, v{vJ}, 2, 1")
    A(f"v_lshlrev_b32 v{vT}, 9, v{vT}")
    A(f"v_lshl_add_u32 v{vT}, v{vGR}, 6, v{vT}")
    A(f"v_and_b32 v{vT+1}, 3, v{vL}")
    A(f"v_lshl_add_u32 v{vT}, v{vT+1}, 4, v{vT}")
    A(f"v_add_u32 v{vT}, {L_Q}, v{vT}")
    QL, QH = 48, 56
    A(f"ds_read_b128 v[{QL}:{QL+3}], v{vT}")
    A(f"ds_read_b128 v[{QL+4}:{QL+7}], v{vT} offset:256")
    A(f"s_waitcnt lgkmcnt(0)")
    for i in range(8):
        A(f"v_cndmask_b32 v{QH+i}, 0, v{QL+i}, s[{sR8}:{sR8+1}]")
    for i in range(8):
        A(f"v_cndmask_b32 v{QL+i}, v{QL+i}, 0, s[{sR8}:{sR8+1}]")
    g.nop(2)
    def qk_tile(src, D0):
        for jj in range(8):
            kq, blk = jj >> 1, jj & 1
            d = D0 + 4*(kq >> 1)
            q = (QH if (kq & 1) else QL) + 4*blk
            r = src + 4*jj
            c = "0" if (jj & 3) == 0 else f"v[{d}:{d+3}]"
            A(f"v_mfma_f32_16x16x32_bf16 v[{d}:{d+3}], v[{q}:{q+3}], v[{r}:{r+3}], {c}")
    SD = 16
    for t in range(2): qk_tile(vK + 32*t, SD + 8*t)
    PFA, PFU, vPW, vPR, UD = 176, 180, 182, 183, 184
    A(f"v_and_b32 v12, 1, v{vGR}")
    A(f"v_and_b32 v{vT}, 1, v{vL}")
    A(f"v_lshlrev_b32 v{vPW}, 3, v{vT}")
    A(f"v_lshrrev_b32 v13, 1, v{vGR}")
    A(f"v_lshl_add_u32 v{vPW}, v13, 2, v{vPW}")
    A(f"v_lshrrev_b32 v13, 2, v{vJ}")
    A(f"v_add_u32 v{vPW}, v{vPW}, v13")
    A(f"v_lshlrev_b32 v{vPW}, 1, v{vPW}")
    A(f"v_lshl_add_u32 v{vPW}, v12, 7, v{vPW}")
    A(f"s_lshl_b32 s{sT1}, s{sWAVE}, 8")
    A(f"s_add_u32 s{sT1}, s{sT1}, {L_P}")
    A(f"v_add_u32 v{vPW}, s{sT1}, v{vPW}")
    A(f"v_bfe_u32 v13, v{vL}, 1, 1")
    A(f"v_lshl_add_u32 v13, v13, 5, v{vPW}")
    A(f"v_lshlrev_b32 v{vPR}, 7, v{vT}")
    A(f"v_add_u32 v{vPR}, s{sT1}, v{vPR}")
    A(f"v_lshl_add_u32 v12, v{vGR}, 4, v{vPR}")
    A(f"v_lshl_add_u32 v{vPR}, v{vGR}, 3, v{vPR}")
    A(f"s_mov_b32 s{sR8}, 0xaaaaaaaa"); A(f"s_mov_b32 s{sR8+1}, 0xaaaaaaaa")
    for d in range(4):
        D = SD + 4*d
        sel4(g, D, D, D+1, D+2, D+3, sQ1, sQ2, sQ3)
    for pat in ("quad_perm:[1,0,3,2]", "quad_perm:[2,3,0,1]"):
        for d in range(4):
            D = SD + 4*d
            A(f"v_add_f32 v{D}, v{D}, v{D} {pat} {DPP}")
    S0, S1 = 10, 11
    sel4(g, S0, SD, SD+4, SD+8, SD+12, sQ1, sQ2, sQ3)
    rnd1(g, S0)
    A(f"v_mov_b32 v{vM}, v{S0}")
    wave_reduce(g, "v_max_f32", [vM], [17], swaps=("v_permlane32_swap_b32",))
    A(f"v_sub_f32 v{S0}, v{S0}, v{vM}")
    A(f"v_mul_f32 v{S0}, s{sC}, v{S0}")
    A(f"v_exp_f32 v{vLS}, v{S0}")
    g.nop(1)
    A(f"v_cvt_pk_bf16_f32 v20, v{vLS}, v{vLS}")
    A(f"ds_write_b16 v13, v20")
    A(f"ds_read_b128 v[{PFA}:{PFA+3}], v12")
    A("s_waitcnt lgkmcnt(0)")
    ACCB = (16, 128)
    PT = 160
    for eta in range(2):
        R = vVE + 32*eta
        for c in range(4):
            T = PT + 8*(c & 1)
            for m in range(4):
                A(f"v_perm_b32 v{T+m}, v{R+4*(2*m+1)+c}, v{R+4*(2*m)+c}, s{sPLO}")
            for m in range(4):
                A(f"v_perm_b32 v{T+4+m}, v{R+4*(2*m+1)+c}, v{R+4*(2*m)+c}, s{sPHI}")
            g.nop(1)
            for hh in range(2):
                acc = ACCB[eta] + 4*(2*c + hh)
                A(f"v_mfma_f32_16x16x32_bf16 v[{acc}:{acc+3}], v[{PFA}:{PFA+3}], v[{T+4*hh}:{T+4*hh+3}], 0")
    A(f"v_and_b32 v12, 1, v{vGR}")
    A(f"v_lshlrev_b32 v{vRW}, 6, v12")
    A(f"s_lshl_b32 s{sT0}, s{sWAVE}, 3")
    A(f"s_add_u32 s{sT0}, s{sT0}, {L_RED}")
    A(f"v_add_u32 v{vRW}, s{sT0}, v{vRW}")
    A(f"s_lshr_b32 s{sT0}, s{sWAVE}, 2")
    A(f"s_lshl_b32 s{sT0}, s{sT0}, 6")
    A(f"s_add_u32 s{sT0}, s{sT0}, {L_RED}")
    A(f"v_and_b32 v{vRR}, 7, v{vL}")
    A(f"v_lshl_add_u32 v{vRR}, v{vRR}, 3, s{sT0}")
    A(f"v_lshlrev_b32 v{vOLW}, 10, v12")
    A(f"v_lshl_add_u32 v{vOLW}, v{vJ}, 5, v{vOLW}")
    A(f"v_lshrrev_b32 v12, 1, v{vGR}")
    A(f"v_lshl_add_u32 v{vOLW}, v12, 4, v{vOLW}")
    A(f"s_lshl_b32 s{sT1}, s{sWAVE}, 11")
    A(f"s_add_u32 s{sT1}, s{sT1}, {L_OL}")
    A(f"v_add_u32 v{vOLW}, s{sT1}, v{vOLW}")
    A(f"s_lshl_b32 s{sT0}, s{sWAVE}, 8")
    A(f"s_add_u32 s{sT0}, s{sT0}, {L_OL}")
    A(f"v_lshl_add_u32 v{vOLR}, v{vL}, 3, s{sT0}")
    A(f"s_lshl_b32 s{sO_DST}, s{sGRP}, 15")
    A(f"s_lshl_b32 s{sT1}, s{sWAVE}, 12")
    A(f"s_add_u32 s{sO_DST}, s{sO_DST}, s{sT1}")
    A(f"s_lshl_b32 s{sT1}, s{sS}, 9")
    A(f"s_add_u32 s{sO_DST}, s{sO_DST}, s{sT1}")
    A(f"s_add_u32 s{sO_DST}, s{sO_DST}, {WS_O}")
    PUB = 84
    A(f"v_mov_b32 v{PUB+3}, s{sTAG}")
    A(f"s_cmp_lt_u32 s{sTK}, {NU}")
    A("s_cbranch_scc1 L_top")
    wave_reduce(g, "v_add_f32", [vLS], [12], swaps=("v_permlane32_swap_b32",))
    A(f"ds_write_b64 v{vRW}, v[{vM}:{vLS}]")
    A("s_branch L_exit")

    g.lbl("L_top")
    CE = opt.get("CE", 10)
    A(f"s_waitcnt vmcnt({CE})")
    claim()
    A("s_waitcnt vmcnt(8)")
    qk_tile(vKU, UD)
    g.nop(5)
    sel4(g, UD, UD, UD+1, UD+2, UD+3, sQ1, sQ2, sQ3)
    sel4(g, UD+4, UD+4, UD+5, UD+6, UD+7, sQ1, sQ2, sQ3)
    for pat in ("quad_perm:[1,0,3,2]", "quad_perm:[2,3,0,1]"):
        g.nop(1)
        for D in (UD, UD+4):
            A(f"v_add_f32 v{D}, v{D}, v{D} {pat} {DPP}")
    A(f"v_cndmask_b32 v{S1}, v{UD}, v{UD+4}, s[{sR8}:{sR8+1}]")
    rnd1(g, S1)
    A(f"v_max_f32 v{S0}, v{S1}, v{vM}")
    for pat in ("quad_perm:[1,0,3,2]", "row_half_mirror", "row_mirror"):
        g.nop(2)
        A(f"v_max_f32 v{S0}, v{S0}, v{S0} {pat} {DPP}")
    A(f"v_mov_b32 v12, v{S0}")
    g.nop(2)
    A(f"v_permlane32_swap_b32 v{S0}, v12")
    g.nop(1)
    A(f"v_max_f32 v{S0}, v{S0}, v12")
    A(f"v_sub_f32 v{S1}, v{S1}, v{S0}")
    A(f"v_sub_f32 v12, v{vM}, v{S0}")
    A(f"v_cmp_neq_f32 vcc, v{vM}, v{S0}")
    A(f"v_mul_f32 v{S1}, s{sC}, v{S1}")
    A(f"v_mul_f32 v12, s{sC}, v12")
    A(f"v_exp_f32 v{S1}, v{S1}")
    A(f"v_exp_f32 v12, v12")
    A(f"v_mov_b32 v{vM}, v{S0}")
    A(f"v_cvt_pk_bf16_f32 v13, v{S1}, v{S1}")
    A(f"v_mul_f32 v{vLS}, v{vLS}, v12")
    A(f"ds_write_b16 v{vPW}, v13 offset:64")
    A(f"ds_read_b64 v[{PFU}:{PFU+1}], v{vPR} offset:64")
    A(f"v_fma_f32 v{vLS}, v{S1}, 0.5, v{vLS}")
    A("s_cbranch_vccz L_nors")
    A(f"v_readlane_b32 s{sT1}, v12, 0")
    A(f"v_readlane_b32 s{sT2}, v12, 16")
    g.nop(2)
    for B in ACCB:
        for e in range(8):
            A(f"v_pk_mul_f32 v[{B+4*e}:{B+4*e+1}], v[{B+4*e}:{B+4*e+1}], s[{sT1}:{sT2}]")
    g.lbl("L_nors")
    A("s_waitcnt lgkmcnt(0)")
    A(f"s_cmp_lt_u32 s{sTK}, {NU}")
    A("s_cbranch_scc0 L_last")
    unit_base()
    k_tile(g, VM(g, 0), polK, sUB, 0, vKU)
    g.lbl("L_pv")
    A("s_waitcnt vmcnt(8)")
    for eta in range(2):
        R = vVB + 16*eta
        for c in range(4):
            T = PT + 4*(c & 3)
            A(f"v_perm_b32 v{T}, v{R+4+c}, v{R+c}, s{sPLO}")
            A(f"v_perm_b32 v{T+1}, v{R+12+c}, v{R+8+c}, s{sPLO}")
            A(f"v_perm_b32 v{T+2}, v{R+4+c}, v{R+c}, s{sPHI}")
            A(f"v_perm_b32 v{T+3}, v{R+12+c}, v{R+8+c}, s{sPHI}")
        for c in range(4):
            T = PT + 4*(c & 3)
            for hh in range(2):
                acc = ACCB[eta] + 4*(2*c + hh)
                A(f"v_mfma_f32_16x16x16_bf16 v[{acc}:{acc+3}], v[{PFU}:{PFU+1}], v[{T+2*hh}:{T+2*hh+1}], v[{acc}:{acc+3}]")
    A(f"s_cmp_lt_u32 s{sTK}, {NU}")
    A("s_cbranch_scc0 L_exit")
    v_unit(g, VM(g, 0), polV)
    A("s_branch L_top")

    g.lbl("L_last")
    wave_reduce(g, "v_add_f32", [vLS], [12], swaps=("v_permlane32_swap_b32",))
    A(f"ds_write_b64 v{vRW}, v[{vM}:{vLS}]")
    stamp(g, 4)
    A("s_waitcnt vmcnt(0)")
    A("s_branch L_pv")

    g.lbl("L_exit")
    stamp(g, 5)
    for eta, OUT in ((0, 88), (1, 92)):
        B = ACCB[eta]
        for i in range(4):
            A(f"v_cndmask_b32 v{OUT+i}, v{B+4*i}, v{B+4*i+1}, s[{sM1}:{sM1+1}]")
        for i in range(4):
            A(f"v_cndmask_b32 v{OUT+i}, v{OUT+i}, v{B+4*(4+i)}, s[{sM2}:{sM2+1}]")
        for i in range(4):
            A(f"v_cndmask_b32 v{OUT+i}, v{OUT+i}, v{B+4*(4+i)+1}, s[{sM3}:{sM3+1}]")
        A(f"ds_write_b128 v{vOLW}, v[{OUT}:{OUT+3}] offset:{512*eta}")
    A("s_waitcnt lgkmcnt(0)")
    A("s_barrier")
    A(f"ds_read_b64 v[32:33], v{vRR}")
    for w in range(8):
        A(f"ds_read_b64 v[{16+2*w}:{17+2*w}], v{vOLR} offset:{2048*w}")
    A("s_waitcnt lgkmcnt(8)")
    A(f"v_max_f32 v34, v32, v32 quad_perm:[1,0,3,2] {DPP}")
    g.nop(2)
    A(f"v_max_f32 v34, v34, v34 quad_perm:[2,3,0,1] {DPP}")
    g.nop(2)
    A(f"v_max_f32 v34, v34, v34 row_half_mirror {DPP}")
    A(f"v_sub_f32 v32, v32, v34")
    A(f"v_mul_f32 v32, s{sC}, v32")
    A(f"v_exp_f32 v32, v32")
    g.nop(1)
    A(f"v_mul_f32 v33, v33, v32")
    SF = 4
    A(f"v_readlane_b32 s{SF}, v32, 0")
    A(f"v_readlane_b32 s{SF+1}, v32, 1")
    A(f"v_add_f32 v33, v33, v33 quad_perm:[1,0,3,2] {DPP}")
    A(f"v_readlane_b32 s{SF+2}, v32, 2")
    A(f"v_readlane_b32 s{SF+3}, v32, 3")
    A(f"v_add_f32 v33, v33, v33 quad_perm:[2,3,0,1] {DPP}")
    A(f"v_readlane_b32 s{SF+4}, v32, 4")
    A(f"v_readlane_b32 s{SF+5}, v32, 5")
    A(f"v_add_f32 v33, v33, v33 row_half_mirror {DPP}")
    A(f"v_readlane_b32 s{SF+6}, v32, 6")
    A(f"v_readlane_b32 s{SF+7}, v32, 7")
    A(f"v_rcp_f32 v36, v33")
    A(f"v_log_f32 v{PUB+2}, v33")
    A("s_mov_b32 exec_hi, 0")
    A("s_waitcnt lgkmcnt(0)")
    def sb(k): return f"s[{SF+(k&~1)}:{SF+(k&~1)+1}]", ("op_sel:[0,1,0] op_sel_hi:[1,1,1]" if k & 1 else "op_sel_hi:[1,0,1]")
    A(f"v_pk_mul_f32 v[16:17], v[16:17], s[{SF}:{SF+1}] op_sel_hi:[1,0]")
    A(f"v_pk_mul_f32 v[18:19], v[18:19], s[{SF}:{SF+1}] op_sel:[0,1] op_sel_hi:[1,1]")
    for k in range(2, 8):
        r, m = sb(k)
        d = 16 + 2*(k & 1)
        A(f"v_pk_fma_f32 v[{d}:{d+1}], v[{16+2*k}:{17+2*k}], {r}, v[{d}:{d+1}] {m}")
    A(f"v_fma_f32 v{PUB+2}, v34, s{sC}, v{PUB+2}")
    A(f"v_pk_add_f32 v[16:17], v[16:17], v[18:19]")
    A(f"v_pk_mul_f32 v[{PUB}:{PUB+1}], v[16:17], v[36:37] op_sel_hi:[1,0]")
    A(f"buffer_store_dwordx4 v[{PUB}:{PUB+3}], v{vL16}, s[{sWS}:{sWS+3}], s{sO_DST} offen sc1")
    A("s_mov_b64 exec, -1")
    stamp(g, 6)
    A("s_branch L_fin")

    g.lbl("L_svc")
    A("v_mov_b32 v255, 0")
    A(f"v_mov_b32 v{vKO}, v{vRO}")
    A(f"v_mov_b32 v{vVO}, v{vSW}")
    A(f"s_and_b32 s{sB_}, s{sWAVE}, 3")
    def job_rows(ptr, stride, colshift, coladd, sb):
        srd(g, sA, ptr, 448*stride)
        A(f"s_mov_b32 s{sT0}, {stride}")
        A(f"v_mad_u32_u24 v{vDM}, v{vKO}, s{sT0}, v{vVO}")
        A(f"s_mov_b32 s{sSTEP}, {8*stride}")
        A(f"s_mul_i32 s{sSTART}, s{sWAVE}, {56*stride}")
        A(f"s_lshl_b32 s{sT0}, s{SID}, {colshift}")
        A(f"s_add_u32 s{sSTART}, s{sSTART}, s{sT0}")
        if coladd: A(f"s_add_u32 s{sSTART}, s{sSTART}, {coladd}")
        A(f"s_mul_i32 s{sLDS}, s{sWAVE}, 7168")
        if sb: A(f"s_add_u32 s{sLDS}, s{sLDS}, {sb}")
        dma(7, True)
    def job_lin(ptr, size, mul, add, sb):
        srd(g, sA, ptr, size)
        A(f"v_mov_b32 v{vDM}, v{vL16}")
        A(f"s_mov_b32 s{sSTEP}, 1024")
        A(f"s_mul_i32 s{sLDS}, s{sWAVE}, 7168")
        A(f"s_mul_i32 s{sSTART}, s{SID}, {mul}")
        A(f"s_add_u32 s{sSTART}, s{sSTART}, s{sLDS}")
        if add: A(f"s_add_u32 s{sSTART}, s{sSTART}, {add}")
        if sb: A(f"s_add_u32 s{sLDS}, s{sLDS}, {sb}")
        dma(7, False)
    job_rows(P_WQ, 8192, 8, 128, SB1)
    consts()
    A(f"s_lshr_b32 s{sT0}, s{sWAVE}, 1")
    A(f"s_mul_i32 s{sT0}, s{sT0}, 28")
    A(f"s_add_u32 s{sT0}, s{sT0}, s{SID}")
    A(f"s_lshl_b32 s{sT0}, s{sT0}, 12")
    A(f"s_and_b32 s{sT1}, s{sWAVE}, 1")
    A(f"s_lshl_b32 s{sT1}, s{sT1}, 11")
    A(f"s_add_u32 s{sT0}, s{sT0}, s{sT1}")
    A(f"s_add_u32 s{sT0}, s{sT0}, {WS_RI}")
    A(f"s_cmp_lt_u32 s{SID}, 28")
    A(f"s_cselect_b32 s{sT0}, s{sT0}, {WS_SIZE}")
    for i in range(4): A(f"v_mov_b32 v{20+i}, -1")
    for i in range(2):
        A(f"buffer_store_dwordx4 v[20:23], v{vL16}, s[{sWS}:{sWS+3}], s{sT0} offen offset:{1024*i} sc1")
    vRW8 = 10
    A(f"v_lshrrev_b32 v{vRW8}, 2, v{vJ}")
    A(f"v_lshl_add_u32 v{vRW8}, v{vGR}, 3, v{vRW8}")
    A("s_waitcnt vmcnt(16)")
    get_tag(g)
    A(f"s_cmp_lt_u32 s{sWAVE}, 4")
    A("s_cbranch_scc0 L_s2")
    for i in range(4): unpack(g, 16+i, 24+2*i, 25+2*i)
    layernorm(g, 24, 32, 24, 8)
    for i in range(0, 8, 2): rnd2(g, 24+i, 25+i, vT)
    g.lbl("L_s2")
    A("s_waitcnt vmcnt(0)")
    A("s_barrier")
    vTA = 14
    A(f"v_lshlrev_b32 v{vTA}, 7, v{vRW8}")
    A(f"v_lshl_add_u32 v{vTA}, v{c4}, 3, v{vTA}")
    A(f"v_bfe_u32 v{vT}, v{vL}, 3, 2")
    A(f"v_xor_b32 v{vT}, s{sB_}, v{vT}")
    A(f"v_lshl_add_u32 v{vTA}, v{vT}, 5, v{vTA}")
    A(f"s_cmp_lt_u32 s{sWAVE}, 4")
    A(f"s_cselect_b32 s{sT0}, 0, {SB1}")
    A(f"v_add_u32 v13, s{sT0}, v{vTA}")
    vXB = 15
    A(f"v_add_u32 v{vXB}, 1024, v{vL16}")
    A(f"v_mov_b32 v{vT}, {WS_SIZE}")
    A(f"v_cndmask_b32 v{vXB}, v{vT}, v{vXB}, s[{sM48}:{sM48+1}]")
    A("s_cbranch_scc1 L_s_h")
    A(f"s_cmp_eq_u32 s{sWAVE}, 7")
    A("s_cbranch_scc0 L_s_fr")
    A(f"s_getreg_b32 s{sT0}, hwreg(HW_REG_XCC_ID)")
    A(f"v_mov_b32 v20, s{sT0}")
    A(f"v_mov_b32 v23, s{sTAG}")
    A(f"s_lshl_b32 s{sT1}, s{SID}, 4")
    A(f"s_add_u32 s{sT1}, s{sT1}, {WS_XC}")
    A("s_mov_b64 exec, 1")
    A(f"buffer_store_dwordx4 v[20:23], v{vL16}, s[{sWS}:{sWS+3}], s{sT1} offen sc1")
    A("s_mov_b64 exec, -1")
    g.lbl("L_s_fr")
    wfrags(13, 128)
    A("s_branch L_s3")
    g.lbl("L_s_h")
    A(f"s_mul_i32 s{sXO}, s{sB_}, {MB}")
    A(f"s_add_u32 s{sXO}, s{sXO}, {WS_M}")
    def hloads():
        for i, (va, off) in enumerate(((vL16, 0), (vXB, 0), (vL16, 1792), (vXB, 1792))):
            A(f"buffer_load_dwordx4 v[{32+4*i}:{35+4*i}], v{va}, s[{sWS}:{sWS+3}], s{sXO} offen offset:{off} sc1")
    hloads()
    wfrags(13, 128)
    A("s_branch L_hwait")
    g.lbl("L_hpoll")
    hloads()
    g.lbl("L_hwait")
    A("s_waitcnt vmcnt(0)")
    tags_ab(g, [35, 43], [39, 47])
    retry_branch(g, "L_hpoll")
    for i, r in enumerate((32, 33, 36, 37)):
        unpack(g, r, 16+2*i, 17+2*i)
        unpack(g, r+8, 48+2*i, 49+2*i)
    for i in range(8): A(f"v_add_f32 v{48+i}, 1.0, v{48+i}")
    for i in range(0, 8, 2): rnd2(g, 48+i, 49+i, vT)
    modulate_pack(g, 24, 48, 16, 24, vT, 8)
    A(f"s_mul_i32 s{sT2}, s{sB_}, {AS}")
    A(f"s_add_u32 s{sT2}, s{sT2}, {L_A}")
    A(f"v_lshl_add_u32 v{vT}, v{vL}, 3, s{sT2}")
    A(f"ds_write_b64 v{vT}, v[24:25]")
    A(f"s_mov_b64 exec, s[{sM48}:{sM48+1}]")
    A(f"ds_write_b64 v{vT}, v[26:27] offset:512")
    A("s_mov_b64 exec, -1")
    g.lbl("L_s3")
    A("s_waitcnt lgkmcnt(0)")
    A("s_barrier")
    A(f"s_lshl_b32 s{sT3}, s{SID}, 9")
    A(f"s_lshl_b32 s{sT0}, s{sWAVE}, 6")
    A(f"s_add_u32 s{sT3}, s{sT3}, s{sT0}")
    A(f"s_add_u32 s{sT3}, s{sT3}, {WS_Q}")
    gemv_pub(L_A, AS, 16384)
    stamp(g, 2)
    A("s_barrier")
    vFA = 13
    WOF, GUF, DNF = 64, 128, 184
    def fa():
        A(f"v_mul_u32_u24 v{vFA}, 896, v{vRW8}")
        A(f"v_lshl_add_u32 v{vFA}, v{c4}, 5, v{vFA}")
        A(f"s_lshl_b32 s{sT0}, s{sWAVE}, 7")
        A(f"v_add_u32 v{vFA}, s{sT0}, v{vFA}")
    def rowfrags(dst, per_tile, ks0):
        for t in range(4):
            for ks in range(2):
                r = dst + per_tile*t + 4*(ks0 + ks)
                A(f"ds_read_b64_tr_b16 v[{r}:{r+1}], v{vFA} offset:{ks*28672 + t*8}")
                A(f"ds_read_b64_tr_b16 v[{r+2}:{r+3}], v{vFA} offset:{ks*28672 + t*8 + 3584}")
            if t & 1: A("s_waitcnt lgkmcnt(4)")
    job_lin(P_WO, 4096*896, 114688, 0, SB0)
    job_lin(P_WO, 4096*896, 114688, 57344, SB1)
    fa()
    A("s_waitcnt vmcnt(7)")
    A("s_barrier")
    rowfrags(WOF, 16, 0)
    A("s_waitcnt lgkmcnt(0)")
    A("s_barrier")
    A(f"s_cmp_lt_u32 s{SID}, 28")
    A("s_cbranch_scc1 L_j3")
    A("s_waitcnt vmcnt(0)")
    A("s_branch L_j3b")
    g.lbl("L_j3")
    job_lin(P_WD, 1792*896, 57344, 0, SB0)
    A("s_waitcnt vmcnt(7)")
    g.lbl("L_j3b")
    A("s_barrier")
    A(f"v_add_u32 v{vFA}, {SB1}, v{vFA}")
    rowfrags(WOF, 16, 2)
    A(f"s_cmp_lt_u32 s{SID}, 28")
    A("s_cbranch_scc0 L_p5")
    A("s_waitcnt lgkmcnt(0)")
    A("s_barrier")
    job_rows(P_WU, 3584, 7, 0, SB1)
    A("s_waitcnt vmcnt(7)")
    A("s_barrier")
    A(f"v_subrev_u32 v{vFA}, {SB1}, v{vFA}")
    rowfrags(DNF, 8, 0)
    A("s_waitcnt lgkmcnt(0)")
    A("s_barrier")
    job_rows(P_WG, 3584, 7, 0, SB0)
    A("s_waitcnt vmcnt(0)")
    A("s_barrier")
    A(f"v_lshlrev_b32 v13, 7, v{vRW8}")
    A(f"v_bfe_u32 v{vT}, v{vL}, 3, 2")
    A(f"v_lshlrev_b32 v{vT}, 1, v{vT}")
    A(f"v_xor_b32 v{vT}, s{sWAVE}, v{vT}")
    A(f"v_lshl_add_u32 v13, v{vT}, 4, v13")
    A(f"v_and_b32 v{vT}, 1, v{vL}")
    A(f"v_lshl_add_u32 v13, v{vT}, 3, v13")
    A(f"v_bfe_u32 v{vT}, v{vL}, 1, 1")
    A(f"v_mul_u32_u24 v{vT}, {SB1}, v{vT}")
    A(f"v_add_u32 v13, v13, v{vT}")
    wfrags(13, 128, GUF)
    OC, SH = 240, 244
    GA, GB, XV = 248, 249, 250
    vHW, vAF, vGW, vGRD, vOUT = 251, 252, 253, 254, 255
    A(f"s_cmp_lt_u32 s{sWAVE}, 4")
    A(f"s_cselect_b64 s[{sMH}:{sMH+1}], -1, s[{sM48}:{sM48+1}]")
    A(f"s_cselect_b64 s[{sR8}:{sR8+1}], 0, -1")
    A(f"v_cndmask_b32 v13, v{vL16}, v{vXB}, s[{sR8}:{sR8+1}]")
    A(f"s_mul_i32 s{sXO}, s{sB_}, {MB}")
    A(f"s_add_u32 s{sXO}, s{sXO}, {WS_M + 2*1792}")
    A(f"s_lshl_b32 s{sT0}, s{SID}, 6")
    A(f"v_lshl_add_u32 v{vDM}, v{c4}, 4, s{sT0}")
    A(f"s_add_u32 s{sT1}, s{sXO}, {3*1792}")
    A(f"v_and_b32 v{vT}, 1, v{vGR}")
    A(f"v_lshlrev_b32 v{vOUT}, 2, v{c4}")
    A(f"v_lshl_add_u32 v{vOUT}, v{vT}, 1, v{vOUT}")
    A(f"v_lshrrev_b32 v{vT}, 1, v{vGR}")
    A(f"v_add_u32 v{vOUT}, v{vOUT}, v{vT}")
    A(f"v_lshlrev_b32 v{vOUT}, 1, v{vOUT}")
    A(f"s_mul_i32 s{sPX}, s{sB_}, 896")
    A(f"s_lshl_b32 s{sT0}, s{SID}, 5")
    A(f"s_add_u32 s{sPX}, s{sPX}, s{sT0}")
    srd(g, sB, P_X, 3584)
    A(f"buffer_load_ushort v{XV}, v{vOUT}, s[{sB}:{sB+3}], s{sPX} offen")
    srd(g, sA, P_OUT, 3584)
    A(f"buffer_load_ushort v{GA}, v{vOUT}, s[{sA}:{sA+3}], s{sPX} offen")
    g.lbl("L_mpoll")
    A(f"buffer_load_dwordx4 v[16:19], v13, s[{sWS}:{sWS+3}], s{sXO} offen offset:1792 sc1")
    A(f"buffer_load_dwordx4 v[20:23], v13, s[{sWS}:{sWS+3}], s{sXO} offen offset:3584 sc1")
    A(f"buffer_load_dwordx4 v[24:27], v{vDM}, s[{sWS}:{sWS+3}], s{sXO} offen sc1")
    A(f"buffer_load_dwordx4 v[28:31], v{vDM}, s[{sWS}:{sWS+3}], s{sT1} offen sc1")
    A("s_waitcnt vmcnt(0)")
    check_tags(g, [19, 23, 27, 31], "L_mpoll", mask=sMH)
    for i in range(2):
        unpack(g, 16+i, SH+2*i, SH+2*i+1)
        unpack(g, 20+i, OC+2*i, OC+2*i+1)
    for i in range(4): A(f"v_add_f32 v{OC+i}, 1.0, v{OC+i}")
    for i in range(0, 4, 2): rnd2(g, OC+i, OC+i+1, vT)
    A(f"s_mov_b32 vcc_lo, 0xffff0000"); A(f"s_mov_b32 vcc_hi, 0xffff0000")
    A(f"v_cndmask_b32 v{GA}, v24, v25, vcc")
    A(f"v_cndmask_b32 v{GB}, v28, v29, vcc")
    A(f"v_lshrrev_b32 v{vT}, 1, v{vGR}")
    A(f"v_lshlrev_b32 v{vT}, 4, v{vT}")
    A(f"v_lshrrev_b32 v{GA}, v{vT}, v{GA}")
    A(f"v_lshrrev_b32 v{GB}, v{vT}, v{GB}")
    A(f"v_lshlrev_b32 v{GA}, 16, v{GA}")
    A(f"v_lshlrev_b32 v{GB}, 16, v{GB}")
    A(f"v_lshlrev_b32 v{XV}, 16, v{XV}")
    A(f"s_mul_i32 s{sT0}, s{sB_}, {AS}")
    A(f"s_lshr_b32 s{sT2}, s{sWAVE}, 2")
    A(f"s_lshl_b32 s{sT2}, s{sT2}, 9")
    A(f"s_add_u32 s{sT0}, s{sT0}, s{sT2}")
    A(f"s_add_u32 s{sT0}, s{sT0}, {L_A}")
    A(f"v_lshl_add_u32 v{vHW}, v{vL}, 3, s{sT0}")
    A(f"v_mul_u32_u24 v{vAF}, {AS}, v{c4}")
    A(f"v_lshl_add_u32 v{vAF}, v{vGR}, 4, v{vAF}")
    A(f"v_add_u32 v{vAF}, {L_A}, v{vAF}")
    A(f"s_lshl_b32 s{sT0}, s{sWAVE}, 4")
    A(f"s_add_u32 s{sT0}, s{sT0}, {L_G}")
    A(f"v_lshlrev_b32 v{vGW}, 7, v{vGR}")
    A(f"v_lshl_add_u32 v{vGW}, v{vJ}, 1, v{vGW}")
    A(f"v_add_u32 v{vGW}, s{sT0}, v{vGW}")
    A(f"v_lshrrev_b32 v{vT}, 2, v{vJ}")
    A(f"v_lshlrev_b32 v{vGRD}, 7, v{vT}")
    A(f"v_lshl_add_u32 v{vGRD}, v{vGR}, 4, v{vGRD}")
    A(f"v_add_u32 v{vGRD}, {L_G}, v{vGRD}")
    A(f"s_mul_i32 s{sXO}, s{sB_}, 1792")
    A(f"s_add_u32 s{sXO}, s{sXO}, {WS_X1}")
    A(f"s_mul_i32 s{sRI}, s{sB_}, 28")
    A(f"s_add_u32 s{sRI}, s{sRI}, s{SID}")
    A(f"s_lshl_b32 s{sRI}, s{sRI}, 12")
    A(f"s_add_u32 s{sRI}, s{sRI}, {WS_RI}")
    for i in range(4):
        A(f"buffer_load_dwordx4 v[16:19], v{vL16}, s[{sWS}:{sWS+3}], s{sRI} offen offset:{1024*i} sc1")
    A(f"buffer_load_dwordx4 v[16:19], v{vL16}, s[{sWS}:{sWS+3}], s{sXO} offen sc1")
    A(f"buffer_load_dwordx4 v[16:19], v{vXB}, s[{sWS}:{sWS+3}], s{sXO} offen sc1")
    g.lbl("L_p5")
    A(f"v_and_b32 v13, 0x1f0, v{vL16}")
    A(f"s_mov_b32 s{sT1}, {WS_XC}")
    g.lbl("L_xpoll")
    A(f"buffer_load_dwordx4 v[16:19], v13, s[{sWS}:{sWS+3}], s{sT1} offen sc1")
    A("s_waitcnt vmcnt(0)")
    check_tags(g, [19], "L_xpoll")
    A(f"s_getreg_b32 s{sT0}, hwreg(HW_REG_XCC_ID)")
    A(f"v_cmp_ne_u32 vcc, s{sT0}, v16")
    A(f"s_cmp_eq_u64 vcc, 0")
    A(f"s_cselect_b32 s{sFAST}, {0 if opt.get('nofast') else 1}, 0")
    nst = [0]
    def xstore(ins):
        nst[0] += 1
        k = nst[0]
        A(f"s_cmp_eq_u32 s{sFAST}, 0")
        A(f"s_cbranch_scc1 L_xs{k}")
        A(ins + opt.get("polX", ""))
        A(f"s_branch L_xd{k}")
        g.lbl(f"L_xs{k}")
        A(ins + " sc1")
        g.lbl(f"L_xd{k}")
    vZO, vOBW, vOBR = vKO, vVO, vDM
    A(f"v_lshrrev_b32 v{vT}, 2, v{vJ}")
    A(f"v_mul_u32_u24 v{vZO}, 28, v{vT}")
    A(f"v_add_u32 v{vZO}, v{vZO}, v{vGR}")
    A(f"v_lshlrev_b32 v{vZO}, 12, v{vZO}")
    A(f"v_lshl_add_u32 v{vZO}, v{c4}, 4, v{vZO}")
    A(f"s_lshl_b32 s{sY_DST}, s{sWAVE}, 14")
    A(f"s_lshl_b32 s{sT0}, s{SID}, 6")
    A(f"s_add_u32 s{sY_DST}, s{sY_DST}, s{sT0}")
    A(f"s_add_u32 s{sY_DST}, s{sY_DST}, {WS_RI}")
    A(f"v_lshlrev_b32 v{vOBR}, 8, v{vT}")
    A(f"v_lshl_add_u32 v{vOBR}, v{vGR}, 4, v{vOBR}")
    A(f"v_add_u32 v{vOBR}, {L_OB}, v{vOBR}")
    A(f"s_lshl_b32 s{sT0}, s{sB_}, 8")
    A(f"s_lshr_b32 s{sT2}, s{sWAVE}, 2")
    A(f"s_lshl_b32 s{sT1}, s{sT2}, 7")
    A(f"s_add_u32 s{sT0}, s{sT0}, s{sT1}")
    A(f"s_add_u32 s{sT0}, s{sT0}, {L_OB}")
    A(f"v_and_b32 v{vOBW}, 31, v{vL}")
    A(f"v_lshl_add_u32 v{vOBW}, v{vOBW}, 2, s{sT0}")
    A(f"s_lshl_b32 s{sO_IN}, s{sB_}, 18")
    A(f"s_lshl_b32 s{sT1}, s{SID}, 13")
    A(f"s_add_u32 s{sO_IN}, s{sO_IN}, s{sT1}")
    A(f"s_lshl_b32 s{sT1}, s{sT2}, 12")
    A(f"s_add_u32 s{sO_IN}, s{sO_IN}, s{sT1}")
    A(f"s_add_u32 s{sO_IN}, s{sO_IN}, {WS_O}")
    A(f"v_mov_b32 v28, 0"); A(f"v_mov_b32 v29, 0")
    A(f"v_mov_b32 v30, 0xff7fffff"); A(f"v_mov_b32 v31, s{sTAG}")
    A("s_waitcnt lgkmcnt(0)")
    stamp(g, 9)
    g.lbl("L_opoll")
    for i in range(3):
        A(f"buffer_load_dwordx4 v[{16+4*i}:{19+4*i}], v{vL16}, s[{sWS}:{sWS+3}], s{sO_IN} offen offset:{1024*i} sc1")
    A("s_mov_b32 exec_hi, 0")
    A(f"buffer_load_dwordx4 v[28:31], v{vL16}, s[{sWS}:{sWS+3}], s{sO_IN} offen offset:3072 sc1")
    A("s_mov_b32 exec_hi, -1")
    A("s_waitcnt vmcnt(0)")
    check_tags(g, [19, 23, 27, 31], "L_opoll")
    tstamp(g, 1)
    A(f"v_max3_f32 v32, v18, v22, v26")
    A(f"v_max_f32 v32, v32, v30")
    A(f"v_mov_b32 v33, v32")
    g.nop(2)
    A(f"v_permlane32_swap_b32 v32, v33")
    g.nop(1)
    A(f"v_max_f32 v32, v32, v33")
    for i in range(4): A(f"v_sub_f32 v{18+4*i}, v{18+4*i}, v32")
    for i in range(4): A(f"v_exp_f32 v{18+4*i}, v{18+4*i}")
    A(f"v_pk_mul_f32 v[34:35], v[16:17], v[18:19] op_sel_hi:[1,0]")
    A(f"v_add_f32 v36, v18, v22")
    for i in range(1, 4):
        A(f"v_pk_fma_f32 v[34:35], v[{16+4*i}:{17+4*i}], v[{18+4*i}:{19+4*i}], v[34:35] op_sel_hi:[1,0,1]")
    A(f"v_add_f32 v37, v26, v30")
    A(f"v_add_f32 v36, v36, v37")
    A(f"v_mov_b32 v38, v34"); A(f"v_mov_b32 v39, v35"); A(f"v_mov_b32 v37, v36")
    g.nop(1)
    A(f"v_permlane32_swap_b32 v34, v38")
    A(f"v_permlane32_swap_b32 v35, v39")
    A(f"v_permlane32_swap_b32 v36, v37")
    A(f"v_pk_add_f32 v[34:35], v[34:35], v[38:39]")
    A(f"v_add_f32 v36, v36, v37")
    A(f"v_rcp_f32 v36, v36")
    g.nop(1)
    A(f"v_pk_mul_f32 v[34:35], v[34:35], v[36:37] op_sel_hi:[1,0]")
    A(f"v_cvt_pk_bf16_f32 v34, v34, v35")
    A(f"ds_write_b32 v{vOBW}, v34")
    A("s_waitcnt lgkmcnt(0)")
    A("s_barrier")
    def proj(addr, nks, frags, per_tile, off):
        for ks in range(nks):
            A(f"ds_read_b128 v[{48+4*ks}:{51+4*ks}], v{addr} offset:{64*ks}")
        for ks in range(nks):
            A(f"s_waitcnt lgkmcnt({nks-1-ks})")
            for t in range(4):
                r = frags + per_tile*t + 4*ks
                c = "0" if ks == 0 else f"v[{24+4*t}:{27+4*t}]"
                A(f"v_mfma_f32_16x16x32_bf16 v[{24+4*t}:{27+4*t}], v[{r}:{r+3}], v[{48+4*ks}:{51+4*ks}], {c}")
        g.nop(6)
        for i in range(4): A(f"v_cndmask_b32 v{40+i}, v{24+i}, v{28+i}, s[{sQ1}:{sQ1+1}]")
        for i in range(4): A(f"v_cndmask_b32 v{40+i}, v{40+i}, v{32+i}, s[{sQ2}:{sQ2+1}]")
        for i in range(4): A(f"v_cndmask_b32 v{40+i}, v{40+i}, v{36+i}, s[{sQ3}:{sQ3+1}]")
        for i in range(4): A(f"v_min_u32 v{40+i}, -2, v{40+i}")
        xstore(f"buffer_store_dwordx4 v[40:43], v{vZO}, s[{sWS}:{sWS+3}], s{sY_DST} offen offset:{off}")
    A(f"s_cmp_eq_u32 s{sWAVE}, 7")
    A("s_cbranch_scc1 L_t2")
    proj(vOBR, 4, WOF, 16, 0)
    stamp(g, 7)
    g.lbl("L_t2")
    A(f"s_cmp_lt_u32 s{SID}, 28")
    A(f"s_cbranch_scc0 {'L_wb1' if opt.get('WB', 0) & 1 else 'L_fin'}")
    def reduce(lab, off, vb, offb, gate, st):
        g.lbl(lab)
        A(f"buffer_load_dwordx4 v[16:19], v{vL16}, s[{sWS}:{sWS+3}], s{sRI} offen offset:{off} sc1")
        A(f"buffer_load_dwordx4 v[20:23], v{vb}, s[{sWS}:{sWS+3}], s{sRI} offen offset:{offb} sc1")
        A("s_waitcnt vmcnt(0)")
        A(f"v_max3_u32 v{vT}, v16, v17, v18")
        A(f"v_max3_u32 v10, v19, v20, v21")
        A(f"v_max3_u32 v{vT}, v{vT}, v22, v23")
        A(f"v_max_u32 v{vT}, v{vT}, v10")
        A(f"v_cmp_eq_u32 vcc, -1, v{vT}")
        A(pk("add", 16, 16, 20)); A(pk("add", 18, 18, 22))
        retry_branch(g, lab)
        tstamp(g, st)
        g.nop(1)
        A(f"v_permlane32_swap_b32 v16, v17")
        A(f"v_permlane32_swap_b32 v18, v19")
        g.nop(1)
        A(f"v_add_f32 v16, v16, v17")
        A(f"v_add_f32 v18, v18, v19")
        g.nop(2)
        A(f"v_permlane16_swap_b32 v16, v18")
        g.nop(1)
        A(f"v_add_f32 v16, v16, v18")
        g.nop(2)
        A(f"v_add_f32 v16, v16, v16 row_ror:4 {DPP}")
        g.nop(2)
        A(f"v_add_f32 v16, v16, v16 row_ror:8 {DPP}")
        rnd1(g, 16)
        A(f"v_mul_f32 v16, v16, v{gate}")
        rnd1(g, 16)
        A(f"v_add_f32 v{XV}, v{XV}, v16")
    A(f"s_cmp_lt_u32 s{sWAVE}, 4")
    A("s_cbranch_scc1 L_x1poll")
    A(f"v_mov_b32 v47, s{sTAG}")
    A(f"v_mov_b32 v46, 0")
    A(f"s_lshl_b32 s{sT2}, s{sPX}, 1")
    A(f"s_add_u32 s{sT2}, s{sT2}, {WS_X1}")
    reduce("L_ypoll", 0, vL16, 1024, GA, 5)
    A(f"v_mov_b32 v17, v{XV}")
    A(f"v_mov_b32 v16, v{XV}")
    g.nop(2)
    A(f"v_permlane32_swap_b32 v16, v17")
    g.nop(1)
    A(f"v_cvt_pk_bf16_f32 v44, v16, v17")
    A(f"v_mov_b32 v45, v44")
    g.nop(2)
    A(f"v_permlane16_swap_b32 v44, v45")
    A("s_mov_b64 exec, 0xf")
    xstore(f"buffer_store_dwordx4 v[44:47], v{vL16}, s[{sWS}:{sWS+3}], s{sT2} offen")
    A("s_mov_b64 exec, -1")
    rnd1(g, XV)
    stamp(g, 6)
    g.lbl("L_x1poll")
    A(f"buffer_load_dwordx4 v[16:19], v{vL16}, s[{sWS}:{sWS+3}], s{sXO} offen sc1")
    A(f"buffer_load_dwordx4 v[20:23], v{vXB}, s[{sWS}:{sWS+3}], s{sXO} offen sc1")
    A("s_waitcnt vmcnt(0)")
    tags_ab(g, [19], [23])
    retry_branch(g, "L_x1poll")
    tstamp(g, 2)
    for i, r in enumerate((16, 17, 20, 21)):
        unpack(g, r, 24+2*i, 25+2*i)
    E = 44
    layernorm(g, 24, 32, E, 4, presel=[f"v_cndmask_b32 v{E+i}, v{24+i}, v{28+i}, s[{sR8}:{sR8+1}]" for i in range(4)])
    rnd2(g, E, E+1, vT); rnd2(g, E+2, E+3, vT)
    modulate_pack(g, E, OC, SH, E, vT, 4)
    A(f"s_mov_b64 exec, s[{sMH}:{sMH+1}]")
    A(f"ds_write_b64 v{vHW}, v[{E}:{E+1}]")
    A("s_mov_b64 exec, -1")
    A("s_waitcnt lgkmcnt(0)")
    A("s_barrier")
    tstamp(g, 3)
    for ks in range(14):
        A(f"ds_read_b128 v[{64+4*ks}:{67+4*ks}], v{vAF} offset:{64*ks}")
    for ks in range(14):
        A(f"s_waitcnt lgkmcnt({13-ks})")
        c = "0" if ks == 0 else "v[16:19]"
        A(f"v_mfma_f32_16x16x32_bf16 v[16:19], v[{64+4*ks}:{67+4*ks}], v[{GUF+4*ks}:{GUF+3+4*ks}], {c}")
    kk = -2.0 * math.sqrt(2.0/math.pi) * LOG2E
    A(f"v_mov_b32 v24, {f2u(kk*0.044715):#x}")
    A(f"v_mov_b32 v25, {f2u(kk):#x}")
    g.nop(6)
    sel4(g, 20, 16, 17, 18, 19, sM1, sM2, sM3)
    rnd1(g, 20)
    A(f"v_mul_f32 v21, v20, v20")
    A(f"v_fma_f32 v21, v21, v24, v25")
    A(f"v_mul_f32 v21, v21, v20")
    A(f"v_exp_f32 v21, v21")
    A(f"v_mov_b32 v23, v20 row_ror:8 {DPP}")
    A(f"v_add_f32 v21, 1.0, v21")
    A(f"v_rcp_f32 v21, v21")
    A(f"s_mov_b32 exec_lo, 0x00ff00ff")
    A(f"s_mov_b32 exec_hi, 0x00ff00ff")
    A(f"v_mul_f32 v21, v21, v20")
    rnd1(g, 21)
    A(f"v_mul_f32 v21, v21, v23")
    A(f"v_cvt_pk_bf16_f32 v21, v21, v21")
    A(f"ds_write_b16 v{vGW}, v21")
    A("s_mov_b64 exec, -1")
    A("s_waitcnt lgkmcnt(0)")
    A("s_barrier")
    tstamp(g, 4)
    A(f"s_cmp_eq_u32 s{sWAVE}, 7")
    A("s_cbranch_scc1 L_t4")
    proj(vGRD, 2, DNF, 8, 2048)
    stamp(g, 8)
    A(f"s_cmp_lt_u32 s{sWAVE}, 4")
    A(f"s_cbranch_scc1 {'L_wb2' if opt.get('WB', 0) & 2 else 'L_fin'}")
    g.lbl("L_t4")
    srd(g, sA, P_OUT, 3584)
    reduce("L_zpoll", 2048, vXB, 2048, GB, 7)
    A(f"v_cvt_pk_bf16_f32 v16, v{XV}, v{XV}")
    A("s_mov_b32 exec_lo, 0x000f000f"); A("s_mov_b32 exec_hi, 0x000f000f")
    A(f"buffer_store_short v16, v{vOUT}, s[{sA}:{sA+3}], s{sPX} offen")
    stamp(g, 9)
    A(f"s_cmp_eq_u32 s{sPX}, 0")
    A("s_cbranch_scc0 L_fin")
    A("s_mov_b64 exec, 1")
    A(f"v_mov_b32 v16, s{sTAG}")
    A(f"buffer_store_dword v16, v{vL16}, s[{sWS}:{sWS+3}], 0 offen sc1")
    if opt.get("WB", 0):
        A("s_branch L_fin")
        g.lbl("L_wb1")
        A("s_sleep 16")
        g.lbl("L_wb2")
        A(f"s_cmp_eq_u32 s{sWAVE}, 0")
        A("s_cbranch_scc0 L_fin")
        A(f"s_and_b32 s{sT0}, s{SID}, {opt.get('WBM', 3)}")
        A("s_cbranch_scc1 L_fin")
        A("s_waitcnt vmcnt(0)")
        A("buffer_wbl2 sc1")
        A("s_waitcnt vmcnt(0)")
    g.lbl("L_fin")
    flush_stamps(g, NSTAMP)
    g.lbl("L_end")
    A("s_endpgm")
    g.L += ['.section .rodata,"a"', ".p2align 6", f".amdhsa_kernel {NAME}_kernel",
            "  .amdhsa_next_free_vgpr 256", "  .amdhsa_next_free_sgpr 102", "  .amdhsa_accum_offset 256",
            "  .amdhsa_group_segment_fixed_size 0", "  .amdhsa_kernarg_size 112", "  .amdhsa_user_sgpr_count 2",
            "  .amdhsa_user_sgpr_kernarg_segment_ptr 1", "  .amdhsa_system_sgpr_workgroup_id_x 1", ".end_amdhsa_kernel"]
    return "\n".join(g.L) + "\n"

if __name__ == "__main__":
    out = sys.argv[1] if len(sys.argv) > 1 else f"cdna_kernels/{NAME}.s"
    opt = {}
    for a in sys.argv[2:]:
        k, val = a.split("=", 1)
        try: val = int(val)
        except ValueError: val = (" " + val.replace("+", " ")) if val else ""
        opt[k] = val
    open(out, "w").write(build(opt))
```

```python
import sys, math, struct

NAME = "adaLN_cond__gqa_block_cached__geglu_ffn__decode"

WS_E   = 0x0
WS_XC  = 0x1000
WS_CNT = 0x2000
WS_X1  = 0x4000
WS_M   = 0x6000
MB = 10752
WS_Q   = 0x20000
WS_O   = 0x30000
WS_RI  = 0x130000
WS_STAMP = 0x400000
WS_SIZE = 0x800000

L_OL = 57344
L_Q  = L_OL + 16384
L_P  = L_Q + 1024
L_RED = L_P + 4096
SB0 = 0
SB1 = 57344 + 16
L_SC = SB1 + 57344 + 48
AS = 928
L_A  = L_SC + 4096
L_OB = L_A + 4*AS
L_G  = L_OB + 1024
L_END = L_G + 512

LOG2E = 1.4426950408889634
def f2u(x): return struct.unpack("<I", struct.pack("<f", x))[0]

class G:
    def __init__(self, opt):
        self.L = []; self.o = opt; self.lab = 0
    def A(self, s): self.L.append("    " + s)
    def lbl(self, s): self.L.append(s + ":")
    def newlab(self, p="L"):
        self.lab += 1
        return f"{p}_{self.lab}"
    def nop(self, n):
        while n > 0:
            k = min(n, 16)
            self.A(f"s_nop {k-1}")
            n -= k

sWAVE = 3
sK, sV, sWS, sA, sB = 4, 8, 12, 16, 20
sS, sB_, sKVH, sN = 24, 25, 26, 27
sTAG, sRETRY = 28, 29
sKB, sFAST = 30, 31
sUB = 32
sT0, sT1, sT2, sT3 = 33, 34, 35, 36
sLN = 37
sM1, sM2, sM3 = 38, 40, 42
sM48 = 44
sQ1, sQ2, sQ3 = 46, 48, 50
sR8 = 52
sSTART, sSTEP, sLDS = 54, 55, 56
sTK, sLIM = 54, 55
sPLO, sPHI = 57, 58
sC = 59
sHI = 60
sXO, sPX = 61, 62
sGRP = 63
P_X, P_K, P_V, P_WQ, P_WO, P_BX, P_WG, P_WU, P_WD, P_C, P_WM, P_OUT, P_DBG, P_WS = [64 + 2*i for i in range(14)]
sCNT = 84
sCX = 68
sST = 88
sO_DST, sY_DST = 66, 67
sO_IN, sRI = 68, 69
sMH = 74

vTID, vL, vJ, vGR, vKO, vVO, vL16, vDM = 0, 1, 2, 3, 4, 5, 6, 7
vE = 8
vT = 9
vVE = 64
vK = 128
vVU = 0
vM, vLS = 14, 15
vKU, vVB = 192, 224
vOLW, vOLR, vRW, vRR = 78, 79, 80, 81

def srd(g, r, ptr, size):
    g.A(f"s_mov_b32 s{r}, s{ptr}")
    g.A(f"s_mov_b32 s{r+1}, s{ptr+1}")
    g.A(f"s_mov_b32 s{r+2}, {size}")
    g.A(f"s_mov_b32 s{r+3}, 0x20000")

DPP = "row_mask:0xf bank_mask:0xf"
def wave_reduce(g, op, regs, tmps, swaps=("v_permlane16_swap_b32", "v_permlane32_swap_b32")):
    n = len(regs)
    for pat in ("quad_perm:[1,0,3,2]", "quad_perm:[2,3,0,1]", "row_half_mirror", "row_mirror"):
        g.nop(max(0, 2 - (n - 1)))
        for r in regs:
            g.A(f"{op} v{r}, v{r}, v{r} {pat} {DPP}")
    for sw in swaps:
        for r, t in zip(regs, tmps):
            g.A(f"v_mov_b32 v{t}, v{r}")
        g.nop(2)
        for r, t in zip(regs, tmps):
            g.A(f"{sw} v{r}, v{t}")
        for r, t in zip(regs, tmps):
            g.A(f"{op} v{r}, v{r}, v{t}")

def rnd2(g, a, b, t):
    g.A(f"v_cvt_pk_bf16_f32 v{t}, v{a}, v{b}")
    g.A(f"v_lshlrev_b32 v{a}, 16, v{t}")
    g.A(f"v_and_b32 v{b}, s{sHI}, v{t}")
def rnd1(g, a):
    g.A(f"v_cvt_pk_bf16_f32 v{a}, v{a}, v{a}")
    g.A(f"v_lshlrev_b32 v{a}, 16, v{a}")
def unpack(g, src, lo, hi):
    g.A(f"v_lshlrev_b32 v{lo}, 16, v{src}")
    g.A(f"v_and_b32 v{hi}, s{sHI}, v{src}")

def red63(g, r, fill):
    fill = list(fill)
    def pad(n):
        for _ in range(n):
            if fill: g.A(fill.pop(0))
            else:
                g.nop(n - _); break
    for pat in ("quad_perm:[1,0,3,2] " + DPP, "quad_perm:[2,3,0,1] " + DPP, "row_half_mirror " + DPP, "row_mirror " + DPP,
                "row_bcast:15 row_mask:0xa bank_mask:0xf", "row_bcast:31 row_mask:0xc bank_mask:0xf"):
        pad(2)
        g.A(f"v_add_f32 v{r}, v{r}, v{r} {pat}")
    pad(1)
    g.A(f"v_readlane_b32 s{sLN}, v{r}, 63")
    pad(2)
    for f in fill: g.A(f)

def pk(op, d, a, b, bc=False, neg=False):
    m = ""
    if bc: m += " op_sel_hi:[1,0]"
    if neg: m += " neg_lo:[0,1] neg_hi:[0,1]"
    return f"v_pk_{op}_f32 v[{d}:{d+1}], v[{a}:{a+1}], v[{b}:{b+1}]{m}"

def rnd2s(a, b, t):
    return [f"v_cvt_pk_bf16_f32 v{t}, v{a}, v{b}", f"v_lshlrev_b32 v{a}, 16, v{t}", f"v_and_b32 v{b}, s{sHI}, v{t}"]

def layernorm(g, X, T, E, n, presel=()):
    A = g.A
    A(pk("add", T, X, X+2)); A(pk("add", T+2, X+4, X+6)); A(pk("add", T, T, T+2))
    A(f"v_add_f32 v{T}, v{T}, v{T+1}")
    red63(g, T, presel)
    A(f"v_mov_b32 v{T+8}, {f2u(1.0/448):#x}")
    A(f"v_mul_f32 v{T}, s{sLN}, v{T+8}")
    A(pk("add", T+2, X, T, True, True)); A(pk("add", T+4, X+2, T, True, True))
    A(f"v_pk_mul_f32 v[{T+6}:{T+7}], v[{T+2}:{T+3}], v[{T+2}:{T+3}]")
    A(pk("add", T+2, X+4, T, True, True))
    A(f"v_pk_fma_f32 v[{T+6}:{T+7}], v[{T+4}:{T+5}], v[{T+4}:{T+5}], v[{T+6}:{T+7}]")
    A(pk("add", T+4, X+6, T, True, True))
    A(f"s_mov_b64 exec, s[{sM48}:{sM48+1}]")
    A(f"v_pk_fma_f32 v[{T+6}:{T+7}], v[{T+2}:{T+3}], v[{T+2}:{T+3}], v[{T+6}:{T+7}]")
    A(f"v_pk_fma_f32 v[{T+6}:{T+7}], v[{T+4}:{T+5}], v[{T+4}:{T+5}], v[{T+6}:{T+7}]")
    A("s_mov_b64 exec, -1")
    A(f"v_add_f32 v{T+6}, v{T+6}, v{T+7}")
    fill = [f"v_cvt_pk_bf16_f32 v{T}, v{T}, v{T}", f"v_lshlrev_b32 v{T}, 16, v{T}"]
    fill += [pk("add", E+i, E+i, T, True, True) for i in range(0, n, 2)]
    for i in range(0, n, 2): fill += rnd2s(E+i, E+i+1, T+2)
    red63(g, T+6, fill)
    A(f"v_mul_f32 v{T+6}, s{sLN}, v{T+8}")
    rnd1(g, T+6)
    A(f"v_add_f32 v{T+6}, {f2u(1e-5):#x}, v{T+6}")
    rnd1(g, T+6)
    A(f"v_sqrt_f32 v{T+6}, v{T+6}")
    g.nop(1)
    rnd1(g, T+6)
    A(f"v_rcp_f32 v{T+6}, v{T+6}")
    g.nop(1)
    for i in range(0, n, 2): A(pk("mul", E+i, E+i, T+6, True))

def modulate_pack(g, X, OC, SH, D, t, n):
    for i in range(0, n, 2): g.A(pk("mul", X+i, X+i, OC+i))
    for i in range(0, n, 2): rnd2(g, X+i, X+i+1, t)
    for i in range(0, n, 2): g.A(pk("add", X+i, X+i, SH+i))
    for i in range(0, n, 2): g.A(f"v_cvt_pk_bf16_f32 v{D+i//2}, v{X+i}, v{X+i+1}")

def retry_branch(g, fail_label):
    ok = g.newlab("L_ok")
    g.A(f"s_cbranch_vccz {ok}")
    g.A(f"s_sub_u32 s{sRETRY}, s{sRETRY}, 1")
    g.A(f"s_cbranch_scc0 {fail_label}")
    g.A(f"s_mov_b32 s{sRETRY}, 0")
    g.lbl(ok)

def tags_ab(g, ra, rb):
    t = vT
    g.A(f"v_xor_b32 v{t}, s{sTAG}, v{rb[0]}")
    for r in rb[1:]: g.A(f"v_bitop3_b32 v{t}, v{t}, v{r}, s{sTAG} bitop3:0xf6")
    g.A(f"v_cndmask_b32 v{t}, 0, v{t}, s[{sM48}:{sM48+1}]")
    for r in ra: g.A(f"v_bitop3_b32 v{t}, v{t}, v{r}, s{sTAG} bitop3:0xf6")
    g.A(f"v_cmp_ne_u32 vcc, 0, v{t}")

class VM:
    def __init__(self, g, W, n0=0):
        self.g, self.W, self.n = g, W, n0
    def pre(self):
        if self.W and self.n >= self.W:
            self.g.A(f"s_waitcnt vmcnt({self.W-1})")
            self.n = self.W - 1
        self.n += 1

def dma7(g, pol, vm, srd_=None):
    srd_ = srd_ or sA
    for i in range(7):
        vm.pre()
        g.A(f"s_mov_b32 m0, s{sLDS}")
        g.A(f"s_add_u32 s{sLDS}, s{sLDS}, 1024")
        g.A(f"buffer_load_dwordx4 v{vDM}, s[{srd_}:{srd_+3}], s{sSTART} offen{pol} lds")
        g.A(f"s_add_u32 s{sSTART}, s{sSTART}, s{sSTEP}")

def k_tile(g, vm, pol, base, add, dst, lo=0, hi=8):
    g.A(f"s_add_u32 s{sT0}, s{base}, {add}")
    g.A(f"s_add_u32 s{sT1}, s{base}, {add+4096}")
    for jj in range(lo, hi):
        vm.pre()
        r = dst + 4*jj
        kq, blk = jj >> 1, jj & 1
        so = sT0 if kq < 2 else sT1
        g.A(f"buffer_load_dwordx4 v[{r}:{r+3}], v{vKO}, s[{sK}:{sK+3}], s{so} offen offset:{(kq&1)*2048 + blk*256}{pol}")

def v_group(g, vm, pol, part):
    il = g.o.get("VIL", 1)
    for k in range(8):
        if il: r, eta = part*4 + (k >> 1), k & 1
        else: r, eta = k, part
        vm.pre()
        d = vVE + 32*eta + 4*r
        g.A(f"buffer_load_dwordx4 v[{d}:{d+3}], v13, s[{sV}:{sV+3}], s{sKB} offen offset:{512*r + 256*eta}{pol}")

def k_unit(g, vm, pol):
    RS = g.o.get("RS", 512)
    if RS == 512: return k_tile(g, vm, pol, sUB, 0, vKU)
    for jj in range(8):
        kq, blk = jj >> 1, jj & 1
        if blk == 0: g.A(f"s_add_u32 s{sT0}, s{sUB}, {kq*4*RS}")
        vm.pre()
        r = vKU + 4*jj
        g.A(f"buffer_load_dwordx4 v[{r}:{r+3}], v{vVO}, s[{sK}:{sK+3}], s{sT0} offen offset:{blk*256}{pol}")

def v_unit(g, vm, pol):
    RS = g.o.get("RS", 512)
    if RS != 512:
        for k in range(8):
            r, eta = k >> 1, k & 1
            if eta == 0: g.A(f"s_add_u32 s{sT0}, s{sUB}, {r*RS}")
            vm.pre()
            d = vVB + 16*eta + 4*r
            g.A(f"buffer_load_dwordx4 v[{d}:{d+3}], v{vVU}, s[{sV}:{sV+3}], s{sT0} offen offset:{256*eta}{pol}")
        return
    for k in range(8):
        if True:
            r, eta = ((k >> 1, k & 1) if g.o.get("VIL", 1) else (k & 3, k >> 2))
            vm.pre()
            d = vVB + 16*eta + 4*r
            g.A(f"buffer_load_dwordx4 v[{d}:{d+3}], v{vVU}, s[{sV}:{sV+3}], s{sUB} offen offset:{512*r + 256*eta}{pol}")

def get_tag(g):
    g.A(f"v_readfirstlane_b32 s{sTAG}, v{vE}")
    g.A(f"s_add_u32 s{sTAG}, s{sTAG}, 0x9e3779b9")

def check_tags(g, regs, fail_label, mask=None, t=vT):
    if len(regs) == 1:
        g.A(f"v_cmp_ne_u32 vcc, s{sTAG}, v{regs[0]}")
    else:
        g.A(f"v_xor_b32 v{t}, s{sTAG}, v{regs[0]}")
        for r in regs[1:]:
            g.A(f"v_bitop3_b32 v{t}, v{t}, v{r}, s{sTAG} bitop3:0xf6")
        g.A(f"v_cmp_ne_u32 vcc, 0, v{t}")
    if mask is not None:
        g.A(f"s_and_b64 vcc, vcc, s[{mask}:{mask+1}]")
    ok = g.newlab("L_ok")
    g.A(f"s_cbranch_vccz {ok}")
    g.A(f"s_sub_u32 s{sRETRY}, s{sRETRY}, 1")
    g.A(f"s_cbranch_scc0 {fail_label}")
    g.A(f"s_mov_b32 s{sRETRY}, 0")
    g.lbl(ok)

NSTAMP = 10
def tstamp(g, idx):
    if g.o.get("tst"): stamp(g, idx, True)
def stamp(g, idx, force=False):
    if not g.o.get("stamps") or g.o.get("trace"): return
    if (g.o.get("tst") or g.o.get("est")) and not force and idx in (1, 2, 3, 4): return
    g.A(f"s_memrealtime s[{sST}:{sST+1}]")
    g.A("s_waitcnt lgkmcnt(0)")
    g.A(f"s_mov_b32 s{92+idx}, s{sST}")
def flush_stamps(g, n):
    if not g.o.get("stamps"): return
    if g.o.get("dbg"):
        g.A("s_mov_b64 exec, 1")
        g.A("v_mov_b32 v15, 0")
        g.A(f"s_lshl_b32 s{sT3}, s2, 3")
        g.A(f"s_add_u32 s{sT3}, s{sT3}, s{sWAVE}")
        g.A(f"s_cmp_eq_u32 s{sT3}, 0")
        g.A("s_cbranch_scc1 L_dbg0")
        g.A(f"s_cmp_eq_u32 s{sT3}, {144*8+7}")
        g.A("s_cbranch_scc0 L_end")
        for k, i in enumerate((6, 1, 7, 2, 8, 9)):
            g.A(f"s_sub_u32 s{sT3}, s{92+i}, s92")
            g.A(f"v_mov_b32 v14, s{sT3}")
            g.A(f"global_store_dword v15, v14, s[82:83] offset:{4*k}")
            g.nop(1)
        g.A("s_branch L_end")
        g.lbl("L_dbg0")
        for k, i in enumerate((6, 7, 9, 2, 3, 4, 8)):
            g.A(f"s_sub_u32 s{sT3}, s{92+i}, s92")
            g.A(f"v_mov_b32 v14, s{sT3}")
            g.A(f"global_store_dword v15, v14, s[82:83] offset:{32+4*k}")
            g.nop(1)
        return
    g.A(f"s_lshl_b32 s{sT3}, s2, 3")
    g.A(f"s_add_u32 s{sT3}, s{sT3}, s{sWAVE}")
    g.A(f"s_lshl_b32 s{sT3}, s{sT3}, 6")
    g.A(f"s_add_u32 s{sT3}, s{sT3}, {WS_STAMP}")
    g.A("s_mov_b64 exec, 1")
    g.A("v_mov_b32 v15, 0")
    for i in range(n):
        g.A(f"v_mov_b32 v14, s{92+i}")
        g.A(f"buffer_store_dword v14, v15, s[{sWS}:{sWS+3}], s{sT3} offen offset:{4*i}")
        g.nop(1)

def sel4(g, dst, r0, r1, r2, r3, m1, m2, m3):
    g.A(f"v_cndmask_b32 v{dst}, v{r0}, v{r1}, s[{m1}:{m1+1}]")
    g.A(f"v_cndmask_b32 v{dst}, v{dst}, v{r2}, s[{m2}:{m2+1}]")
    g.A(f"v_cndmask_b32 v{dst}, v{dst}, v{r3}, s[{m3}:{m3+1}]")

def build(opt):
    g = G(opt)
    A = g.A
    polK = opt.get("polK", " nt"); polV = opt.get("polV", " nt"); polW = opt.get("polW", " nt")
    W = opt.get("W", 16)
    PRIO = opt.get("prio", 1)
    SX = opt.get("SX", 0)
    def prio(p):
        if PRIO: A(f"s_setprio {p}")
    hdr = open(f"cdna_kernels/{NAME}.s.ref").read().split("\n")
    for line in hdr:
        if line.startswith("; @launch"):
            g.L.append(f"; @launch grid=(256,1,1) block=(512,1,1) lds={L_END}")
            break
        g.L.append(line)
    g.L += ['.amdgcn_target "amdgcn-amd-amdhsa--gfx950"', ".text", f".globl {NAME}_kernel", ".p2align 8",
            f".type {NAME}_kernel,@function"]
    g.lbl(f"{NAME}_kernel")
    if opt.get("stamps"): A("s_memrealtime s[92:93]")
    A("s_cmp_ge_u32 s2, 256")
    A("s_cbranch_scc1 L_end")
    A("s_load_dwordx16 s[64:79], s[0:1], 0")
    A("s_load_dwordx8 s[80:87], s[0:1], 64")
    A("s_load_dwordx2 s[90:91], s[0:1], 104")
    A(f"s_getpc_b64 s[{sST}:{sST+1}]")
    g.lbl("L_pc")
    A(f"v_lshlrev_b32 v{vT}, 6, v0")
    A(f"v_min_u32 v{vT}, L_end - L_pc - 4, v{vT}")
    A(f"global_load_dword v15, v{vT}, s[{sST}:{sST+1}]")
    prio(3)
    A(f"v_lshrrev_b32 v{vL}, 6, v0")
    A(f"s_sub_u32 s{sS}, s2, {SX+1}")
    A(f"v_readfirstlane_b32 s{sWAVE}, v{vL}")
    A(f"v_and_b32 v{vL}, 63, v0")
    A(f"v_and_b32 v{vJ}, 15, v0")
    A(f"v_lshrrev_b32 v{vGR}, 4, v{vL}")
    A(f"v_lshrrev_b32 v{vKO}, 2, v{vJ}")
    A(f"v_lshlrev_b32 v{vKO}, 9, v{vKO}")
    A(f"v_lshl_add_u32 v{vKO}, v{vGR}, 6, v{vKO}")
    A(f"v_and_b32 v12, 3, v0")
    A(f"v_lshl_add_u32 v{vKO}, v12, 4, v{vKO}")
    A(f"v_lshlrev_b32 v{vL16}, 4, v{vL}")
    A(f"v_mov_b32 v{vE}, 0")
    A(f"v_lshlrev_b32 v{vT}, 2, v{vL}")
    A(f"v_add_u32 v{vT}, {L_RED}, v{vT}")
    A(f"ds_write_b32 v{vT}, v{vE}")
    A(f"s_and_b32 s{sS}, s{sS}, 7")
    A(f"s_lshr_b32 s{sN}, s2, 3")
    A(f"s_and_b32 s{sB_}, s{sN}, 3")
    A(f"s_lshr_b32 s{sKVH}, s{sN}, 2")
    A(f"s_lshl_b32 s{sGRP}, s{sB_}, 3")
    A(f"s_add_u32 s{sGRP}, s{sGRP}, s{sKVH}")
    A(f"s_lshl_b32 s{sT0}, s{sGRP}, 21")
    A(f"s_and_b32 s{sT1}, s{sWAVE}, 3")
    A(f"s_lshl_b32 s{sT2}, s{sS}, 2")
    A(f"s_add_u32 s{sT1}, s{sT1}, s{sT2}")
    A(f"s_lshr_b32 s{sT2}, s{sWAVE}, 2")
    A(f"s_mul_i32 s{sT2}, s{sT2}, 28")
    A(f"s_add_u32 s{sT1}, s{sT1}, s{sT2}")
    GR = opt.get("GR", 0)
    if GR:
        A(f"s_mul_i32 s{sT2}, s{sGRP}, {GR}")
        A(f"s_add_u32 s{sT1}, s{sT1}, s{sT2}")
        A(f"s_and_b32 s{sT1}, s{sT1}, 127")
    A(f"s_lshl_b32 s{sT1}, s{sT1}, 14")
    A(f"s_add_u32 s{sKB}, s{sT0}, s{sT1}")
    A(f"s_mul_i32 s{sT1}, s{sS}, 5")
    A(f"s_add_u32 s{sT1}, s{sT1}, s{sN}")
    A(f"s_and_b32 s{sT1}, s{sT1}, 31")
    A(f"s_mul_i32 s{sT1}, s{sT1}, 7")
    A(f"s_add_u32 s{sT1}, s{sT1}, s{sS}")
    A(f"s_cmp_eq_u32 s{sS}, 7")
    A(f"s_cselect_b32 s{sN}, s{sN}, s{sT1}")
    A(f"s_mov_b32 s{sK+2}, {64<<20}")
    A(f"s_mov_b32 s{sK+3}, 0x20000")
    A(f"s_cmp_lt_u32 s{sN}, 42")
    A("s_waitcnt lgkmcnt(0)")
    A("s_barrier")
    A(f"global_load_dword v{vE}, v{vE}, s[{P_WS}:{P_WS+1}] sc1")
    A(f"s_mov_b32 s{sK}, s{P_K}")
    A(f"s_mov_b32 s{sK+1}, s{P_K+1}")
    A("s_cbranch_scc1 L_early")
    vm = VM(g, W, 2)
    k_tile(g, vm, polK, sKB, 0, vK)
    A("s_branch L_main0")
    SID = sN
    c4 = 12
    vRO, vSW = 10, 11
    def dma(n, swz):
        for i in range(n):
            A(f"s_mov_b32 m0, s{sLDS}")
            A(f"s_add_u32 s{sLDS}, s{sLDS}, 1024")
            A(f"buffer_load_dwordx4 v{vDM}, s[{sA}:{sA+3}], s{sSTART} offen{polW} lds")
            A(f"s_add_u32 s{sSTART}, s{sSTART}, s{sSTEP}")
            if swz: A(f"v_xor_b32 v{vDM}, 64, v{vDM}")
    g.lbl("L_early")
    A(f"s_cmp_eq_u32 s{sS}, 7")
    A(f"s_cselect_b32 s{sB}, s{P_X}, s{P_C}")
    A(f"s_cselect_b32 s{sB+1}, s{P_X+1}, s{P_C+1}")
    A(f"s_mov_b32 s{sB+2}, 3584")
    A(f"s_mov_b32 s{sB+3}, 0x20000")
    A(f"s_cselect_b32 s{sA}, s{P_WQ}, s{P_WM}")
    A(f"s_cselect_b32 s{sA+1}, s{P_WQ+1}, s{P_WM+1}")
    A(f"s_mov_b32 s{sSTEP}, 5376")
    A(f"s_cselect_b32 s{sSTEP}, 8192, s{sSTEP}")
    A(f"s_mov_b32 s{sT0}, 1024")
    A(f"s_cselect_b32 s{sT0}, 896, s{sT0}")
    A(f"s_cselect_b32 s{sT1}, 3, 4")
    A(f"s_cselect_b32 s{sT2}, 6, 0")
    A(f"s_cselect_b32 s{sT3}, 48, 64")
    A(f"s_cselect_b32 s{sLDS}, 8, 7")
    A(f"s_mul_i32 s{sT0}, s{sT0}, s{sWAVE}")
    A(f"s_lshl_b32 s{sT2}, 8, s{sT2}")
    A(f"v_lshlrev_b32 v13, s{sT1}, v{vL}")
    A(f"v_cmp_gt_u32 vcc, s{sT3}, v{vL}")
    A(f"buffer_load_dwordx2 v[16:17], v13, s[{sB}:{sB+3}], s{sT0} offen")
    A(f"v_add_u32 v13, s{sT2}, v13")
    A(f"v_mov_b32 v{vT}, 0x100000")
    A(f"v_cndmask_b32 v13, v{vT}, v13, vcc")
    A(f"buffer_load_dwordx2 v[18:19], v13, s[{sB}:{sB+3}], s{sT0} offen")
    A(f"s_mul_i32 s{sA+2}, s{sSTEP}, 448")
    A(f"s_mov_b32 s{sA+3}, 0x20000")
    A(f"v_lshrrev_b32 v{vRO}, 3, v{vL}")
    A(f"v_and_b32 v{vSW}, 7, v{vL}")
    A(f"v_and_b32 v{vT}, 2, v{vRO}")
    A(f"v_xor_b32 v{vSW}, v{vSW}, v{vT}")
    A(f"v_lshlrev_b32 v{vSW}, 4, v{vSW}")
    A(f"s_and_b32 s{sT1}, s{sWAVE}, 1")
    A(f"s_lshl_b32 s{sT1}, s{sT1}, 6")
    A(f"v_xor_b32 v{vSW}, s{sT1}, v{vSW}")
    A(f"v_mad_u32_u24 v{vDM}, v{vRO}, s{sSTEP}, v{vSW}")
    A(f"s_lshl_b32 s{sSTART}, s{SID}, s{sLDS}")
    A(f"s_lshl_b32 s{sSTEP}, s{sSTEP}, 3")
    A(f"s_mul_i32 s{sT0}, s{sWAVE}, 7")
    A(f"s_mul_i32 s{sT1}, s{sT0}, s{sSTEP}")
    A(f"s_add_u32 s{sSTART}, s{sSTART}, s{sT1}")
    A(f"s_lshl_b32 s{sLDS}, s{sT0}, 10")
    dma(7, True)
    def consts():
        srd(g, sWS, P_WS, WS_SIZE)
        A(f"s_mov_b32 s{sM48}, -1"); A(f"s_mov_b32 s{sM48+1}, 0x0000ffff")
        A(f"s_mov_b32 s{sHI}, 0xffff0000")
        A(f"s_mov_b32 s{sRETRY}, 0x80000")
        A(f"s_mov_b32 s{sM1}, 0xffff0000"); A(f"s_mov_b32 s{sM1+1}, 0")
        A(f"s_mov_b32 s{sM2}, 0"); A(f"s_mov_b32 s{sM2+1}, 0xffff")
        A(f"s_mov_b32 s{sM3}, 0"); A(f"s_mov_b32 s{sM3+1}, 0xffff0000")
        A(f"s_mov_b32 s{sQ1}, 0x22222222"); A(f"s_mov_b32 s{sQ1+1}, 0x22222222")
        A(f"s_mov_b32 s{sQ2}, 0x44444444"); A(f"s_mov_b32 s{sQ2+1}, 0x44444444")
        A(f"s_mov_b32 s{sQ3}, 0x88888888"); A(f"s_mov_b32 s{sQ3+1}, 0x88888888")
        if opt.get("stamps"):
            for i in range(1, NSTAMP): A(f"s_mov_b32 s{92+i}, 0")
    def wfrags(addr, rowbytes, dst=64):
        for ks in range(14):
            r = dst + 4*ks
            A(f"ds_read_b64_tr_b16 v[{r}:{r+1}], v{addr} offset:{ks*32*rowbytes}")
            A(f"ds_read_b64_tr_b16 v[{r+2}:{r+3}], v{addr} offset:{ks*32*rowbytes + 4*rowbytes}")
            if ks % 4 == 3: A("s_waitcnt lgkmcnt(6)")
    def gemv_pub(abase, astride, bstride):
        A(f"v_mul_u32_u24 v{vT}, {astride}, v{c4}")
        A(f"v_lshl_add_u32 v{vT}, v{vGR}, 4, v{vT}")
        A(f"v_add_u32 v{vT}, {abase}, v{vT}")
        A("s_waitcnt lgkmcnt(0)")
        for ks in range(14):
            A(f"ds_read_b128 v[{128+4*ks}:{131+4*ks}], v{vT} offset:{64*ks}")
        for ks in range(14):
            A(f"s_waitcnt lgkmcnt({13-ks})")
            c = "0" if ks == 0 else "v[16:19]"
            A(f"v_mfma_f32_16x16x32_bf16 v[16:19], v[{64+4*ks}:{67+4*ks}], v[{128+4*ks}:{131+4*ks}], {c}")
        A(f"v_mul_u32_u24 v{vT}, {bstride}, v{c4}")
        A(f"v_lshl_add_u32 v{vT}, v{vGR}, 4, v{vT}")
        A(f"v_mov_b32 v22, 0")
        A(f"v_mov_b32 v23, s{sTAG}")
        A(f"s_mov_b32 exec_lo, 0x000f000f")
        A(f"s_mov_b32 exec_hi, 0x000f000f")
        g.nop(2)
        A(f"v_cvt_pk_bf16_f32 v20, v16, v17")
        A(f"v_cvt_pk_bf16_f32 v21, v18, v19")
        A(f"buffer_store_dwordx4 v[20:23], v{vT}, s[{sWS}:{sWS+3}], s{sT3} offen sc1")
        A("s_mov_b64 exec, -1")
    A(f"s_cmp_eq_u32 s{sS}, 7")
    A("s_cbranch_scc1 L_svc")
    consts()
    A(f"s_cmp_lt_u32 s{sWAVE}, 4")
    A("s_cbranch_scc0 L_m1")
    A("s_waitcnt vmcnt(7)")
    get_tag(g)
    for i in range(4): unpack(g, 16+i, 24+2*i, 25+2*i)
    A(f"s_lshl_b32 s{sT2}, s{sWAVE}, 10")
    A(f"s_add_u32 s{sT2}, s{sT2}, {L_SC}")
    A(f"v_add_u32 v{vT}, s{sT2}, v{vL16}")
    for i in range(8): A(f"v_mul_f32 v{32+i}, {f2u(-LOG2E):#x}, v{24+i}")
    for i in range(8): A(f"v_exp_f32 v{32+i}, v{32+i}")
    for i in range(8): A(f"v_add_f32 v{32+i}, 1.0, v{32+i}")
    for i in range(8): A(f"v_rcp_f32 v{32+i}, v{32+i}")
    for i in range(8): A(f"v_mul_f32 v{24+i}, v{24+i}, v{32+i}")
    for i in range(4): A(f"v_cvt_pk_bf16_f32 v{24+i}, v{24+2*i}, v{25+2*i}")
    A(f"ds_write_b128 v{vT}, v[24:27]")
    A(f"v_lshrrev_b32 v13, 2, v{vJ}")
    A(f"v_lshl_add_u32 v13, v{vGR}, 3, v13")
    A(f"v_lshlrev_b32 v13, 7, v13")
    A(f"v_lshl_add_u32 v13, v{c4}, 3, v13")
    A(f"v_bfe_u32 v{vT}, v{vL}, 3, 2")
    A(f"v_xor_b32 v{vT}, s{sWAVE}, v{vT}")
    A(f"v_lshl_add_u32 v13, v{vT}, 5, v13")
    A(f"s_lshl_b32 s{sT3}, s{SID}, 8")
    A(f"s_lshl_b32 s{sT0}, s{sWAVE}, 6")
    A(f"s_add_u32 s{sT3}, s{sT3}, s{sT0}")
    A(f"s_add_u32 s{sT3}, s{sT3}, {WS_M}")
    g.lbl("L_m1")
    A("s_waitcnt vmcnt(0) lgkmcnt(0)")
    A("s_barrier")
    A(f"s_cmp_lt_u32 s{sWAVE}, 4")
    A("s_cbranch_scc0 L_m2")
    wfrags(13, 128)
    gemv_pub(L_SC, 896, MB)
    stamp(g, 1)
    g.lbl("L_m2")
    k_tile(g, VM(g, 0), polK, sKB, 0, vK)
    A("s_branch L_main1")
    g.lbl("L_main0")
    consts()
    g.lbl("L_main1")
    srd(g, sV, P_V, 64 << 20)
    A(f"v_lshlrev_b32 v13, 12, v{vGR}")
    A(f"v_lshl_add_u32 v13, v{vJ}, 4, v13")
    RS = opt.get("RS", 512)
    A(f"v_lshrrev_b32 v{vVO}, 2, v{vJ}")
    A(f"v_mul_u32_u24 v{vVO}, {RS-512}, v{vVO}")
    A(f"v_add_u32 v{vVO}, v{vVO}, v{vKO}")
    A(f"v_mul_u32_u24 v{vVU}, {4*RS}, v{vGR}")
    A(f"v_lshl_add_u32 v{vVU}, v{vJ}, 4, v{vVU}")
    A(f"s_mov_b32 s{sR8}, 0xff00ff00"); A(f"s_mov_b32 s{sR8+1}, 0xff00ff00")
    A(f"s_mov_b32 s{sPLO}, 0x05040100"); A(f"s_mov_b32 s{sPHI}, 0x07060302")
    A(f"s_mov_b32 s{sC}, {f2u(0.0625*LOG2E):#x}")
    k_tile(g, vm, polK, sKB, 8192, vK+32)
    prio(2)
    v_group(g, VM(g, W, W), polV, 0)
    v_group(g, VM(g, W, W), polV, 1)
    get_tag(g)
    NU = 144
    TY = opt.get("TY", 32)
    A(f"s_lshl_b32 s{sT0}, s{sGRP}, 8")
    A(f"s_add_u32 s{sT0}, s{sT0}, {WS_CNT}")
    A(f"s_add_u32 s{sCNT}, s{P_WS}, s{sT0}")
    A(f"s_addc_u32 s{sCNT+1}, s{P_WS+1}, 0")
    A(f"s_lshl_b32 s{sKB}, s{sGRP}, 21")
    if GR:
        A(f"s_mul_i32 s{sXO}, s{sGRP}, {2*GR}")
        A(f"s_add_u32 s{sXO}, s{sXO}, 112")
    else:
        A(f"s_add_u32 s{sKB}, s{sKB}, {1792*512}")
    A(f"s_cmp_lt_u32 s{sWAVE}, 4")
    A(f"s_mov_b32 s{sLIM}, {TY}")
    A(f"s_cselect_b32 s{sLIM}, {NU}, s{sLIM}")
    TB = opt.get("TB", 0)
    sBU = sFAST
    if TB:
        A(f"s_cmp_ge_u32 s{sWAVE}, {8 - opt.get('NB', 4)}")
        A(f"s_cselect_b32 s{sBU}, 1, 0")
    g.lbl("L_peek")
    A(f"s_mov_b64 s[{sCX+2}:{sCX+3}], 0")
    A(f"s_atomic_add_x2 s[{sCX+2}:{sCX+3}], s[{sCNT}:{sCNT+1}], 0 glc")
    A("s_waitcnt lgkmcnt(0)")
    A(f"s_cmp_eq_u32 s{sCX+3}, s{sTAG}")
    A("s_cbranch_scc1 L_peek_ok")
    A(f"s_mov_b32 s{sCX}, 0")
    A(f"s_mov_b32 s{sCX+1}, s{sTAG}")
    A(f"s_atomic_cmpswap_x2 s[{sCX}:{sCX+3}], s[{sCNT}:{sCNT+1}], 0 glc")
    A("s_waitcnt lgkmcnt(0)")
    A(f"s_sub_u32 s{sRETRY}, s{sRETRY}, 1")
    A("s_cbranch_scc0 L_peek")
    A(f"s_mov_b32 s{sRETRY}, 0")
    g.lbl("L_peek_ok")
    A(f"s_mov_b32 s{sTK}, s{sCX+2}")
    ncl = [0]
    def claim():
        ncl[0] += 1
        A(f"s_cmp_lt_u32 s{sTK}, s{sLIM}")
        A(f"s_mov_b32 s{sTK}, 0xffff")
        A(f"s_cbranch_scc0 L_nc{ncl[0]}")
        A(f"s_mov_b32 s{sTK}, 1")
        A(f"s_atomic_add s{sTK}, s[{sCNT}:{sCNT+1}], 0 glc")
        g.lbl(f"L_nc{ncl[0]}")
    def unit_base():
        if GR:
            A(f"s_add_u32 s{sUB}, s{sTK}, s{sXO}")
            A(f"s_and_b32 s{sUB}, s{sUB}, 255")
            A(f"s_lshl_b32 s{sUB}, s{sUB}, 13")
        elif RS != 512:
            n = RS // 512
            A(f"s_and_b32 s{sT0}, s{sTK}, {n-1}")
            A(f"s_lshl_b32 s{sT0}, s{sT0}, 9")
            A(f"s_andn2_b32 s{sUB}, s{sTK}, {n-1}")
            A(f"s_lshl_b32 s{sUB}, s{sUB}, 13")
            A(f"s_add_u32 s{sUB}, s{sUB}, s{sT0}")
        else:
            A(f"s_lshl_b32 s{sUB}, s{sTK}, 13")
        A(f"s_add_u32 s{sUB}, s{sUB}, s{sKB}")
    OS = opt.get("OS", 0)
    if OS:
        A(f"s_cmp_lt_u32 s{sWAVE}, 4")
        A(f"s_cselect_b32 s{sTK}, 0x7fff, s{sTK}")
    claim()
    def qloads():
        for i in range(2):
            A(f"buffer_load_dwordx4 v[{16+4*i}:{19+4*i}], v{vL16}, s[{sWS}:{sWS+3}], s{sPX} offen offset:{1024*i} sc1")
    A(f"s_lshl_b32 s{sT1}, s{sB_}, 14")
    A(f"s_lshl_b32 s{sT2}, s{sKVH}, 11")
    A(f"s_add_u32 s{sT1}, s{sT1}, s{sT2}")
    A(f"s_add_u32 s{sPX}, s{sT1}, {WS_Q}")
    QLATE = opt.get("QLATE", 1)
    if not QLATE: qloads()
    if OS:
        A(f"s_cmp_lt_u32 s{sWAVE}, 4")
        A("s_cbranch_scc1 L_yp")
        prio(1)
    else:
        prio(1)
        A(f"s_cmp_lt_u32 s{sWAVE}, 4")
        A("s_cbranch_scc0 L_yp")
        prio(0)
    g.lbl("L_yp")
    A("s_waitcnt lgkmcnt(0)")
    A(f"s_cmp_lt_u32 s{sTK}, {NU}")
    A(f"s_cbranch_scc0 {'L_qpoll' if QLATE else 'L_qwait'}")
    unit_base()
    k_unit(g, VM(g, W, W), polK)
    if QLATE: qloads()
    v_unit(g, VM(g, W, W), polV)
    A(f"s_waitcnt vmcnt({8 if QLATE else 16})")
    A("s_branch L_qchk")
    g.lbl("L_qpoll")
    qloads()
    g.lbl("L_qwait")
    A("s_waitcnt vmcnt(0)")
    g.lbl("L_qchk")
    check_tags(g, [19, 23], "L_qpoll")
    stamp(g, 3)
    A(f"v_lshlrev_b32 v{vT+2}, 3, v{vL}")
    A(f"v_add_u32 v{vT+2}, {L_Q}, v{vT+2}")
    A(f"ds_write_b64 v{vT+2}, v[16:17]")
    A(f"ds_write_b64 v{vT+2}, v[20:21] offset:512")
    A(f"v_bfe_u32 v{vT}, v{vJ}, 2, 1")
    A(f"v_lshlrev_b32 v{vT}, 9, v{vT}")
    A(f"v_lshl_add_u32 v{vT}, v{vGR}, 6, v{vT}")
    A(f"v_and_b32 v{vT+1}, 3, v{vL}")
    A(f"v_lshl_add_u32 v{vT}, v{vT+1}, 4, v{vT}")
    A(f"v_add_u32 v{vT}, {L_Q}, v{vT}")
    QL, QH = 48, 56
    A(f"ds_read_b128 v[{QL}:{QL+3}], v{vT}")
    A(f"ds_read_b128 v[{QL+4}:{QL+7}], v{vT} offset:256")
    A(f"s_waitcnt lgkmcnt(0)")
    for i in range(8):
        A(f"v_cndmask_b32 v{QH+i}, 0, v{QL+i}, s[{sR8}:{sR8+1}]")
    for i in range(8):
        A(f"v_cndmask_b32 v{QL+i}, v{QL+i}, 0, s[{sR8}:{sR8+1}]")
    g.nop(2)
    def qk_tile(src, D0):
        for jj in range(8):
            kq, blk = jj >> 1, jj & 1
            d = D0 + 4*(kq >> 1)
            q = (QH if (kq & 1) else QL) + 4*blk
            r = src + 4*jj
            c = "0" if (jj & 3) == 0 else f"v[{d}:{d+3}]"
            A(f"v_mfma_f32_16x16x32_bf16 v[{d}:{d+3}], v[{q}:{q+3}], v[{r}:{r+3}], {c}")
    SD = 16
    for t in range(2): qk_tile(vK + 32*t, SD + 8*t)
    PFA, PFU, vPW, vPR, UD = 176, 180, 182, 183, 184
    A(f"v_and_b32 v12, 1, v{vGR}")
    A(f"v_and_b32 v{vT}, 1, v{vL}")
    A(f"v_lshlrev_b32 v{vPW}, 3, v{vT}")
    A(f"v_lshrrev_b32 v13, 1, v{vGR}")
    A(f"v_lshl_add_u32 v{vPW}, v13, 2, v{vPW}")
    A(f"v_lshrrev_b32 v13, 2, v{vJ}")
    A(f"v_add_u32 v{vPW}, v{vPW}, v13")
    A(f"v_lshlrev_b32 v{vPW}, 1, v{vPW}")
    A(f"v_lshl_add_u32 v{vPW}, v12, 7, v{vPW}")
    A(f"s_lshl_b32 s{sT1}, s{sWAVE}, 9")
    A(f"s_add_u32 s{sT1}, s{sT1}, {L_P}")
    A(f"v_lshlrev_b32 v{vPR}, 7, v13")
    A(f"v_add_u32 v{vPW}, s{sT1}, v{vPW}")
    A(f"v_bfe_u32 v13, v{vL}, 1, 1")
    A(f"v_lshl_add_u32 v13, v13, 5, v{vPW}")
    A(f"v_add_u32 v{vPR}, s{sT1}, v{vPR}")
    A(f"v_lshl_add_u32 v12, v{vGR}, 4, v{vPR}")
    A(f"v_lshl_add_u32 v{vPR}, v{vGR}, 3, v{vPR}")
    A(f"s_mov_b32 s{sR8}, 0xaaaaaaaa"); A(f"s_mov_b32 s{sR8+1}, 0xaaaaaaaa")
    for d in range(4):
        D = SD + 4*d
        sel4(g, D, D, D+1, D+2, D+3, sQ1, sQ2, sQ3)
    for pat in ("quad_perm:[1,0,3,2]", "quad_perm:[2,3,0,1]"):
        for d in range(4):
            D = SD + 4*d
            A(f"v_add_f32 v{D}, v{D}, v{D} {pat} {DPP}")
    S0, S1 = 10, 11
    sel4(g, S0, SD, SD+4, SD+8, SD+12, sQ1, sQ2, sQ3)
    rnd1(g, S0)
    A(f"v_mov_b32 v{vM}, v{S0}")
    wave_reduce(g, "v_max_f32", [vM], [17], swaps=("v_permlane32_swap_b32",))
    A(f"v_sub_f32 v{S0}, v{S0}, v{vM}")
    A(f"v_mul_f32 v{S0}, s{sC}, v{S0}")
    A(f"v_exp_f32 v{vLS}, v{S0}")
    g.nop(1)
    A(f"v_cvt_pk_bf16_f32 v20, v{vLS}, v{vLS}")
    A(f"v_lshlrev_b32 v20, 16, v20")
    A(f"v_sub_f32 v20, v{vLS}, v20")
    A(f"v_cvt_pk_bf16_f32 v20, v{vLS}, v20")
    A(f"ds_write_b16 v13, v20")
    A(f"ds_write_b16_d16_hi v13, v20 offset:256")
    A(f"ds_read_b128 v[{PFA}:{PFA+3}], v12")
    A("s_waitcnt lgkmcnt(0)")
    ACCB = (16, 128)
    PT = 160
    for eta in range(2):
        R = vVE + 32*eta
        for c in range(4):
            T = PT + 8*(c & 1)
            for m in range(4):
                A(f"v_perm_b32 v{T+m}, v{R+4*(2*m+1)+c}, v{R+4*(2*m)+c}, s{sPLO}")
            for m in range(4):
                A(f"v_perm_b32 v{T+4+m}, v{R+4*(2*m+1)+c}, v{R+4*(2*m)+c}, s{sPHI}")
            g.nop(1)
            for hh in range(2):
                acc = ACCB[eta] + 4*(2*c + hh)
                A(f"v_mfma_f32_16x16x32_bf16 v[{acc}:{acc+3}], v[{PFA}:{PFA+3}], v[{T+4*hh}:{T+4*hh+3}], 0")
    A(f"v_and_b32 v12, 1, v{vGR}")
    A(f"v_lshlrev_b32 v{vRW}, 6, v12")
    A(f"s_lshl_b32 s{sT0}, s{sWAVE}, 3")
    A(f"s_add_u32 s{sT0}, s{sT0}, {L_RED}")
    A(f"v_add_u32 v{vRW}, s{sT0}, v{vRW}")
    A(f"s_bfe_u32 s{sT0}, s{sWAVE}, 0x10001")
    A(f"s_lshl_b32 s{sT0}, s{sT0}, 6")
    A(f"s_add_u32 s{sT0}, s{sT0}, {L_RED}")
    A(f"v_and_b32 v{vRR}, 7, v{vL}")
    A(f"v_lshl_add_u32 v{vRR}, v{vRR}, 3, s{sT0}")
    A(f"v_lshlrev_b32 v{vOLW}, 10, v12")
    A(f"v_lshl_add_u32 v{vOLW}, v{vJ}, 5, v{vOLW}")
    A(f"v_lshrrev_b32 v12, 1, v{vGR}")
    A(f"v_lshl_add_u32 v{vOLW}, v12, 4, v{vOLW}")
    A(f"s_lshl_b32 s{sT1}, s{sWAVE}, 11")
    A(f"s_add_u32 s{sT1}, s{sT1}, {L_OL}")
    A(f"v_add_u32 v{vOLW}, s{sT1}, v{vOLW}")
    A(f"s_and_b32 s{sT2}, s{sWAVE}, 3")
    A(f"s_lshl_b32 s{sT0}, s{sT2}, 9")
    A(f"s_add_u32 s{sT0}, s{sT0}, {L_OL}")
    A(f"v_lshl_add_u32 v{vOLR}, v{vL}, 3, s{sT0}")
    A(f"v_lshrrev_b32 v82, 5, v{vL}")
    A(f"v_mul_u32_u24 v82, {4096-512}, v82")
    A(f"v_add_u32 v82, v82, v{vL16}")
    A(f"s_lshl_b32 s{sO_DST}, s{sGRP}, 15")
    A(f"s_lshl_b32 s{sT1}, s{sT2}, 13")
    A(f"s_add_u32 s{sO_DST}, s{sO_DST}, s{sT1}")
    A(f"s_lshl_b32 s{sT1}, s{sS}, 9")
    A(f"s_add_u32 s{sO_DST}, s{sO_DST}, s{sT1}")
    A(f"s_add_u32 s{sO_DST}, s{sO_DST}, {WS_O}")
    PUB = 84
    A(f"v_mov_b32 v{PUB+3}, s{sTAG}")
    A(f"s_cmp_lt_u32 s{sTK}, {NU}")
    A("s_cbranch_scc1 L_top")
    if OS:
        A(f"s_cmp_lt_u32 s{sWAVE}, 4")
        A("s_cbranch_scc0 L_nounit")
        prio(0)
        A(f"s_mov_b32 s{sTK}, 0")
        claim()
        A("s_waitcnt lgkmcnt(0)")
        A(f"s_cmp_lt_u32 s{sTK}, {NU}")
        A("s_cbranch_scc0 L_nounit")
        unit_base()
        k_unit(g, VM(g, 0), polK)
        v_unit(g, VM(g, 0), polV)
        A("s_branch L_top")
        g.lbl("L_nounit")
    if TB:
        A(f"s_cmp_eq_u32 s{sBU}, 0")
        A("s_cbranch_scc1 L_nob")
        g.lbl("L_burst")
        A(f"s_mov_b32 s{sBU}, 0")
        g.lbl("L_bw")
        A("s_sleep 8")
        A(f"s_load_dword s{sT3}, s[{sCNT}:{sCNT+1}], 0 glc")
        A("s_waitcnt lgkmcnt(0)")
        A(f"s_cmp_ge_u32 s{sT3}, {TB}")
        A("s_cbranch_scc1 L_bgo")
        A(f"s_sub_u32 s{sRETRY}, s{sRETRY}, 1")
        A("s_cbranch_scc0 L_bw")
        A(f"s_mov_b32 s{sRETRY}, 0")
        g.lbl("L_bgo")
        A(f"s_mov_b32 s{sLIM}, 0")
        A(f"s_mov_b32 s{sTK}, 1")
        A(f"s_atomic_add s{sTK}, s[{sCNT}:{sCNT+1}], 0 glc")
        A("s_waitcnt lgkmcnt(0)")
        A(f"s_cmp_lt_u32 s{sTK}, {NU}")
        A("s_cbranch_scc0 L_nob")
        unit_base()
        k_unit(g, VM(g, 0), polK)
        v_unit(g, VM(g, 0), polV)
        A("s_branch L_top")
        g.lbl("L_nob")
    wave_reduce(g, "v_add_f32", [vLS], [12], swaps=("v_permlane32_swap_b32",))
    A(f"ds_write_b64 v{vRW}, v[{vM}:{vLS}]")
    A("s_branch L_exit2")

    g.lbl("L_top")
    CE = opt.get("CE", 10)
    A(f"s_waitcnt vmcnt({CE})")
    if opt.get("trace"):
        A("s_waitcnt vmcnt(8)")
        A(f"s_memrealtime s[{sST}:{sST+1}]")
        for i in range(101, 93, -1): A(f"s_mov_b32 s{i}, s{i-1}")
        A("s_waitcnt lgkmcnt(0)")
        A(f"s_sub_u32 s93, s{sST}, s92")
        A(f"s_lshl_b32 s93, s93, 8")
        A(f"s_or_b32 s93, s93, s{sTK}")
    claim()
    A("s_waitcnt vmcnt(8)")
    qk_tile(vKU, UD)
    g.nop(5)
    sel4(g, UD, UD, UD+1, UD+2, UD+3, sQ1, sQ2, sQ3)
    sel4(g, UD+4, UD+4, UD+5, UD+6, UD+7, sQ1, sQ2, sQ3)
    for pat in ("quad_perm:[1,0,3,2]", "quad_perm:[2,3,0,1]"):
        g.nop(1)
        for D in (UD, UD+4):
            A(f"v_add_f32 v{D}, v{D}, v{D} {pat} {DPP}")
    A(f"v_cndmask_b32 v{S1}, v{UD}, v{UD+4}, s[{sR8}:{sR8+1}]")
    rnd1(g, S1)
    A(f"v_max_f32 v{S0}, v{S1}, v{vM}")
    for pat in ("quad_perm:[1,0,3,2]", "row_half_mirror", "row_mirror"):
        g.nop(2)
        A(f"v_max_f32 v{S0}, v{S0}, v{S0} {pat} {DPP}")
    A(f"v_mov_b32 v12, v{S0}")
    g.nop(2)
    A(f"v_permlane32_swap_b32 v{S0}, v12")
    A(f"v_max_f32 v{S0}, v{S0}, v12")
    A(f"v_sub_f32 v{S1}, v{S1}, v{S0}")
    A(f"v_sub_f32 v12, v{vM}, v{S0}")
    A(f"v_cmp_neq_f32 vcc, v{vM}, v{S0}")
    A(f"v_mul_f32 v{S1}, s{sC}, v{S1}")
    A(f"v_mul_f32 v12, s{sC}, v12")
    A(f"v_exp_f32 v{S1}, v{S1}")
    A(f"v_exp_f32 v12, v12")
    A(f"v_mov_b32 v{vM}, v{S0}")
    A(f"v_cvt_pk_bf16_f32 v13, v{S1}, v{S1}")
    A(f"v_mul_f32 v{vLS}, v{vLS}, v12")
    A(f"v_lshlrev_b32 v13, 16, v13")
    A(f"v_sub_f32 v13, v{S1}, v13")
    A(f"v_cvt_pk_bf16_f32 v13, v{S1}, v13")
    A(f"ds_write_b16 v{vPW}, v13 offset:64")
    A(f"ds_write_b16_d16_hi v{vPW}, v13 offset:{256+64}")
    A(f"ds_read_b64 v[{PFU}:{PFU+1}], v{vPR} offset:64")
    A(f"v_fma_f32 v{vLS}, v{S1}, 0.5, v{vLS}")
    A("s_cbranch_vccz L_nors")
    for B in ACCB:
        for e in range(8):
            A(f"v_mul_f32 v{B+4*e}, v{B+4*e}, v12")
    g.lbl("L_nors")
    A("s_waitcnt lgkmcnt(0)")
    A(f"s_cmp_lt_u32 s{sTK}, {NU}")
    A("s_cbranch_scc0 L_last")
    unit_base()
    k_unit(g, VM(g, 0), polK)
    g.lbl("L_pv")
    A("s_waitcnt vmcnt(8)")
    for eta in range(2):
        R = vVB + 16*eta
        for c in range(4):
            T = PT + 4*(c & 3)
            A(f"v_perm_b32 v{T}, v{R+4+c}, v{R+c}, s{sPLO}")
            A(f"v_perm_b32 v{T+1}, v{R+12+c}, v{R+8+c}, s{sPLO}")
            A(f"v_perm_b32 v{T+2}, v{R+4+c}, v{R+c}, s{sPHI}")
            A(f"v_perm_b32 v{T+3}, v{R+12+c}, v{R+8+c}, s{sPHI}")
        for c in range(4):
            T = PT + 4*(c & 3)
            for hh in range(2):
                acc = ACCB[eta] + 4*(2*c + hh)
                A(f"v_mfma_f32_16x16x16_bf16 v[{acc}:{acc+3}], v[{PFU}:{PFU+1}], v[{T+2*hh}:{T+2*hh+1}], v[{acc}:{acc+3}]")
    A(f"s_cmp_lt_u32 s{sTK}, {NU}")
    A("s_cbranch_scc0 L_exit")
    v_unit(g, VM(g, 0), polV)
    A("s_branch L_top")

    g.lbl("L_last")
    if TB:
        A(f"s_cmp_lg_u32 s{sBU}, 0")
        A("s_cbranch_scc1 L_last2")
    wave_reduce(g, "v_add_f32", [vLS], [12], swaps=("v_permlane32_swap_b32",))
    A(f"ds_write_b64 v{vRW}, v[{vM}:{vLS}]")
    stamp(g, 4)
    g.lbl("L_last2")
    A("s_waitcnt vmcnt(0)")
    A("s_branch L_pv")

    g.lbl("L_exit")
    if TB:
        A(f"s_cmp_lg_u32 s{sBU}, 0")
        A("s_cbranch_scc1 L_burst")
    g.lbl("L_exit2")
    stamp(g, 5)
    for eta, OUT in ((0, 88), (1, 92)):
        B = ACCB[eta]
        for i in range(4): A(f"v_permlane32_swap_b32 v{B+4*i}, v{B+4*(4+i)}")
        for i in range(4): A(f"v_add_f32 v{OUT+i}, v{B+4*i}, v{B+4*(4+i)}")
        A(f"ds_write_b128 v{vOLW}, v[{OUT}:{OUT+3}] offset:{512*eta}")
    A(f"s_cmp_lt_u32 s{sWAVE}, 4")
    A("s_waitcnt lgkmcnt(0)")
    A("s_cbranch_scc0 L_mlspin")
    A("s_barrier")
    A("s_branch L_fin")
    g.lbl("L_mls")
    A("s_sleep 2")
    g.lbl("L_mlspin")
    A(f"ds_read_b64 v[32:33], v{vRR}")
    A("s_waitcnt lgkmcnt(0)")
    A(f"v_cmp_eq_u32 vcc, 0, v33")
    retry_branch(g, "L_mls")
    A(f"v_max_f32 v34, v32, v32 quad_perm:[1,0,3,2] {DPP}")
    g.nop(2)
    A(f"v_max_f32 v34, v34, v34 quad_perm:[2,3,0,1] {DPP}")
    g.nop(2)
    A(f"v_max_f32 v34, v34, v34 row_half_mirror {DPP}")
    A(f"v_sub_f32 v32, v32, v34")
    A(f"v_mul_f32 v32, s{sC}, v32")
    A(f"v_exp_f32 v32, v32")
    g.nop(1)
    A(f"v_mul_f32 v33, v33, v32")
    SF = 4
    for pat in ("quad_perm:[1,0,3,2]", "quad_perm:[2,3,0,1]", "row_half_mirror"):
        g.nop(2)
        A(f"v_add_f32 v33, v33, v33 {pat} {DPP}")
    A(f"v_rcp_f32 v36, v33")
    A(f"v_log_f32 v{PUB+2}, v33")
    A(f"v_mul_f32 v32, v32, v36")
    A(f"v_fma_f32 v{PUB+2}, v34, s{sC}, v{PUB+2}")
    for k in range(8): A(f"v_readlane_b32 s{SF+k}, v32, {k}")
    A("s_barrier")
    order = (4, 5, 6, 7, 0, 1, 2, 3)
    for w in order:
        A(f"ds_read_b64 v[{16+2*w}:{17+2*w}], v{vOLR} offset:{2048*w}")
    for n, k in enumerate(order):
        r = f"s[{SF+(k&~1)}:{SF+(k&~1)+1}]"
        d = 36 + 2*(k & 1)
        A(f"s_waitcnt lgkmcnt({7-n})")
        if n < 2:
            m = "op_sel:[0,1] op_sel_hi:[1,1]" if k & 1 else "op_sel_hi:[1,0]"
            A(f"v_pk_mul_f32 v[{d}:{d+1}], v[{16+2*k}:{17+2*k}], {r} {m}")
        else:
            m = "op_sel:[0,1,0] op_sel_hi:[1,1,1]" if k & 1 else "op_sel_hi:[1,0,1]"
            A(f"v_pk_fma_f32 v[{d}:{d+1}], v[{16+2*k}:{17+2*k}], {r}, v[{d}:{d+1}] {m}")
    A(f"v_pk_add_f32 v[{PUB}:{PUB+1}], v[36:37], v[38:39]")
    A(f"buffer_store_dwordx4 v[{PUB}:{PUB+3}], v82, s[{sWS}:{sWS+3}], s{sO_DST} offen sc1")
    stamp(g, 6)
    A("s_branch L_fin")

    g.lbl("L_svc")
    A("v_mov_b32 v255, 0")
    A(f"v_mov_b32 v{vKO}, v{vRO}")
    A(f"v_mov_b32 v{vVO}, v{vSW}")
    A(f"s_and_b32 s{sB_}, s{sWAVE}, 3")
    def job_rows(ptr, stride, colshift, coladd, sb):
        srd(g, sA, ptr, 448*stride)
        A(f"s_mov_b32 s{sT0}, {stride}")
        A(f"v_mad_u32_u24 v{vDM}, v{vKO}, s{sT0}, v{vVO}")
        A(f"s_mov_b32 s{sSTEP}, {8*stride}")
        A(f"s_mul_i32 s{sSTART}, s{sWAVE}, {56*stride}")
        A(f"s_lshl_b32 s{sT0}, s{SID}, {colshift}")
        A(f"s_add_u32 s{sSTART}, s{sSTART}, s{sT0}")
        if coladd: A(f"s_add_u32 s{sSTART}, s{sSTART}, {coladd}")
        A(f"s_mul_i32 s{sLDS}, s{sWAVE}, 7168")
        if sb: A(f"s_add_u32 s{sLDS}, s{sLDS}, {sb}")
        dma(7, True)
    def job_lin(ptr, size, mul, add, sb):
        srd(g, sA, ptr, size)
        A(f"v_mov_b32 v{vDM}, v{vL16}")
        A(f"s_mov_b32 s{sSTEP}, 1024")
        A(f"s_mul_i32 s{sLDS}, s{sWAVE}, 7168")
        A(f"s_mul_i32 s{sSTART}, s{SID}, {mul}")
        A(f"s_add_u32 s{sSTART}, s{sSTART}, s{sLDS}")
        if add: A(f"s_add_u32 s{sSTART}, s{sSTART}, {add}")
        if sb: A(f"s_add_u32 s{sLDS}, s{sLDS}, {sb}")
        dma(7, False)
    job_rows(P_WQ, 8192, 8, 128, SB1)
    consts()
    A(f"s_lshr_b32 s{sT0}, s{sWAVE}, 1")
    A(f"s_mul_i32 s{sT0}, s{sT0}, 28")
    A(f"s_add_u32 s{sT0}, s{sT0}, s{SID}")
    A(f"s_lshl_b32 s{sT0}, s{sT0}, 12")
    A(f"s_and_b32 s{sT1}, s{sWAVE}, 1")
    A(f"s_lshl_b32 s{sT1}, s{sT1}, 11")
    A(f"s_add_u32 s{sT0}, s{sT0}, s{sT1}")
    A(f"s_add_u32 s{sT0}, s{sT0}, {WS_RI}")
    A(f"s_cmp_lt_u32 s{SID}, 28")
    A(f"s_cselect_b32 s{sT0}, s{sT0}, {WS_SIZE}")
    for i in range(4): A(f"v_mov_b32 v{20+i}, -1")
    for i in range(2):
        A(f"buffer_store_dwordx4 v[20:23], v{vL16}, s[{sWS}:{sWS+3}], s{sT0} offen offset:{1024*i} sc1")
    vRW8 = 10
    A(f"v_lshrrev_b32 v{vRW8}, 2, v{vJ}")
    A(f"v_lshl_add_u32 v{vRW8}, v{vGR}, 3, v{vRW8}")
    A("s_waitcnt vmcnt(16)")
    get_tag(g)
    A(f"s_cmp_lt_u32 s{sWAVE}, 4")
    A("s_cbranch_scc0 L_s2")
    for i in range(4): unpack(g, 16+i, 24+2*i, 25+2*i)
    layernorm(g, 24, 32, 24, 8)
    for i in range(0, 8, 2): rnd2(g, 24+i, 25+i, vT)
    g.lbl("L_s2")
    A("s_waitcnt vmcnt(0)")
    A("s_barrier")
    vTA = 14
    A(f"v_lshlrev_b32 v{vTA}, 7, v{vRW8}")
    A(f"v_lshl_add_u32 v{vTA}, v{c4}, 3, v{vTA}")
    A(f"v_bfe_u32 v{vT}, v{vL}, 3, 2")
    A(f"v_xor_b32 v{vT}, s{sB_}, v{vT}")
    A(f"v_lshl_add_u32 v{vTA}, v{vT}, 5, v{vTA}")
    A(f"s_cmp_lt_u32 s{sWAVE}, 4")
    A(f"s_cselect_b32 s{sT0}, 0, {SB1}")
    A(f"v_add_u32 v13, s{sT0}, v{vTA}")
    vXB = 15
    A(f"v_add_u32 v{vXB}, 1024, v{vL16}")
    A(f"v_mov_b32 v{vT}, {WS_SIZE}")
    A(f"v_cndmask_b32 v{vXB}, v{vT}, v{vXB}, s[{sM48}:{sM48+1}]")
    A("s_cbranch_scc1 L_s_h")
    A(f"s_cmp_eq_u32 s{sWAVE}, 7")
    A("s_cbranch_scc0 L_s_fr")
    A(f"s_getreg_b32 s{sT0}, hwreg(HW_REG_XCC_ID)")
    A(f"v_mov_b32 v20, s{sT0}")
    A(f"v_mov_b32 v23, s{sTAG}")
    A(f"s_lshl_b32 s{sT1}, s{SID}, 4")
    A(f"s_add_u32 s{sT1}, s{sT1}, {WS_XC}")
    A("s_mov_b64 exec, 1")
    A(f"buffer_store_dwordx4 v[20:23], v{vL16}, s[{sWS}:{sWS+3}], s{sT1} offen sc1")
    A("s_mov_b64 exec, -1")
    g.lbl("L_s_fr")
    wfrags(13, 128)
    A("s_branch L_s3")
    g.lbl("L_s_h")
    A(f"s_mul_i32 s{sXO}, s{sB_}, {MB}")
    A(f"s_add_u32 s{sXO}, s{sXO}, {WS_M}")
    def hloads():
        for i, (va, off) in enumerate(((vL16, 0), (vXB, 0), (vL16, 1792), (vXB, 1792))):
            A(f"buffer_load_dwordx4 v[{32+4*i}:{35+4*i}], v{va}, s[{sWS}:{sWS+3}], s{sXO} offen offset:{off} sc1")
    hloads()
    wfrags(13, 128)
    A("s_branch L_hwait")
    g.lbl("L_hpoll")
    hloads()
    g.lbl("L_hwait")
    A("s_waitcnt vmcnt(0)")
    tags_ab(g, [35, 43], [39, 47])
    retry_branch(g, "L_hpoll")
    for i, r in enumerate((32, 33, 36, 37)):
        unpack(g, r, 16+2*i, 17+2*i)
        unpack(g, r+8, 48+2*i, 49+2*i)
    for i in range(8): A(f"v_add_f32 v{48+i}, 1.0, v{48+i}")
    for i in range(0, 8, 2): rnd2(g, 48+i, 49+i, vT)
    modulate_pack(g, 24, 48, 16, 24, vT, 8)
    A(f"s_mul_i32 s{sT2}, s{sB_}, {AS}")
    A(f"s_add_u32 s{sT2}, s{sT2}, {L_A}")
    A(f"v_lshl_add_u32 v{vT}, v{vL}, 3, s{sT2}")
    A(f"ds_write_b64 v{vT}, v[24:25]")
    A(f"s_mov_b64 exec, s[{sM48}:{sM48+1}]")
    A(f"ds_write_b64 v{vT}, v[26:27] offset:512")
    A("s_mov_b64 exec, -1")
    g.lbl("L_s3")
    A("s_waitcnt lgkmcnt(0)")
    A("s_barrier")
    A(f"s_lshl_b32 s{sT3}, s{SID}, 9")
    A(f"s_lshl_b32 s{sT0}, s{sWAVE}, 6")
    A(f"s_add_u32 s{sT3}, s{sT3}, s{sT0}")
    A(f"s_add_u32 s{sT3}, s{sT3}, {WS_Q}")
    gemv_pub(L_A, AS, 16384)
    stamp(g, 2)
    A("s_barrier")
    vFA = 13
    WOF, GUF, DNF = 64, 128, 184
    def fa():
        A(f"v_mul_u32_u24 v{vFA}, 896, v{vRW8}")
        A(f"v_lshl_add_u32 v{vFA}, v{c4}, 5, v{vFA}")
        A(f"s_lshl_b32 s{sT0}, s{sWAVE}, 7")
        A(f"v_add_u32 v{vFA}, s{sT0}, v{vFA}")
    def rowfrags(dst, per_tile, ks0):
        for t in range(4):
            for ks in range(2):
                r = dst + per_tile*t + 4*(ks0 + ks)
                A(f"ds_read_b64_tr_b16 v[{r}:{r+1}], v{vFA} offset:{ks*28672 + t*8}")
                A(f"ds_read_b64_tr_b16 v[{r+2}:{r+3}], v{vFA} offset:{ks*28672 + t*8 + 3584}")
            if t & 1: A("s_waitcnt lgkmcnt(4)")
    job_lin(P_WO, 4096*896, 114688, 0, SB0)
    job_lin(P_WO, 4096*896, 114688, 57344, SB1)
    fa()
    A("s_waitcnt vmcnt(7)")
    A("s_barrier")
    rowfrags(WOF, 16, 0)
    A("s_waitcnt lgkmcnt(0)")
    A("s_barrier")
    A(f"s_cmp_lt_u32 s{SID}, 28")
    A("s_cbranch_scc1 L_j3")
    A("s_waitcnt vmcnt(0)")
    A("s_branch L_j3b")
    g.lbl("L_j3")
    job_lin(P_WD, 1792*896, 57344, 0, SB0)
    A("s_waitcnt vmcnt(7)")
    g.lbl("L_j3b")
    A("s_barrier")
    A(f"v_add_u32 v{vFA}, {SB1}, v{vFA}")
    rowfrags(WOF, 16, 2)
    A(f"s_cmp_lt_u32 s{SID}, 28")
    A("s_cbranch_scc0 L_p5")
    A("s_waitcnt lgkmcnt(0)")
    A("s_barrier")
    job_rows(P_WU, 3584, 7, 0, SB1)
    A("s_waitcnt vmcnt(7)")
    A("s_barrier")
    A(f"v_subrev_u32 v{vFA}, {SB1}, v{vFA}")
    rowfrags(DNF, 8, 0)
    A("s_waitcnt lgkmcnt(0)")
    A("s_barrier")
    job_rows(P_WG, 3584, 7, 0, SB0)
    A("s_waitcnt vmcnt(0)")
    A("s_barrier")
    A(f"v_lshlrev_b32 v13, 7, v{vRW8}")
    A(f"v_bfe_u32 v{vT}, v{vL}, 3, 2")
    A(f"v_lshlrev_b32 v{vT}, 1, v{vT}")
    A(f"v_xor_b32 v{vT}, s{sWAVE}, v{vT}")
    A(f"v_lshl_add_u32 v13, v{vT}, 4, v13")
    A(f"v_and_b32 v{vT}, 1, v{vL}")
    A(f"v_lshl_add_u32 v13, v{vT}, 3, v13")
    A(f"v_bfe_u32 v{vT}, v{vL}, 1, 1")
    A(f"v_mul_u32_u24 v{vT}, {SB1}, v{vT}")
    A(f"v_add_u32 v13, v13, v{vT}")
    wfrags(13, 128, GUF)
    OC, SH = 240, 244
    GA, GB, XV = 248, 249, 250
    vHW, vAF, vGW, vGRD, vOUT = 251, 252, 253, 254, 255
    A(f"s_cmp_lt_u32 s{sWAVE}, 4")
    A(f"s_cselect_b64 s[{sMH}:{sMH+1}], -1, s[{sM48}:{sM48+1}]")
    A(f"s_cselect_b64 s[{sR8}:{sR8+1}], 0, -1")
    A(f"v_cndmask_b32 v13, v{vL16}, v{vXB}, s[{sR8}:{sR8+1}]")
    A(f"s_mul_i32 s{sXO}, s{sB_}, {MB}")
    A(f"s_add_u32 s{sXO}, s{sXO}, {WS_M + 2*1792}")
    A(f"s_lshl_b32 s{sT0}, s{SID}, 6")
    A(f"v_lshl_add_u32 v{vDM}, v{c4}, 4, s{sT0}")
    A(f"s_add_u32 s{sT1}, s{sXO}, {3*1792}")
    A(f"v_and_b32 v{vT}, 1, v{vGR}")
    A(f"v_lshlrev_b32 v{vOUT}, 2, v{c4}")
    A(f"v_lshl_add_u32 v{vOUT}, v{vT}, 1, v{vOUT}")
    A(f"v_lshrrev_b32 v{vT}, 1, v{vGR}")
    A(f"v_add_u32 v{vOUT}, v{vOUT}, v{vT}")
    A(f"v_lshlrev_b32 v{vOUT}, 1, v{vOUT}")
    A(f"s_mul_i32 s{sPX}, s{sB_}, 896")
    A(f"s_lshl_b32 s{sT0}, s{SID}, 5")
    A(f"s_add_u32 s{sPX}, s{sPX}, s{sT0}")
    srd(g, sB, P_X, 3584)
    A(f"buffer_load_ushort v{XV}, v{vOUT}, s[{sB}:{sB+3}], s{sPX} offen")
    srd(g, sA, P_OUT, 3584)
    A(f"buffer_load_ushort v{GA}, v{vOUT}, s[{sA}:{sA+3}], s{sPX} offen")
    g.lbl("L_mpoll")
    A(f"buffer_load_dwordx4 v[16:19], v13, s[{sWS}:{sWS+3}], s{sXO} offen offset:1792 sc1")
    A(f"buffer_load_dwordx4 v[20:23], v13, s[{sWS}:{sWS+3}], s{sXO} offen offset:3584 sc1")
    A(f"buffer_load_dwordx4 v[24:27], v{vDM}, s[{sWS}:{sWS+3}], s{sXO} offen sc1")
    A(f"buffer_load_dwordx4 v[28:31], v{vDM}, s[{sWS}:{sWS+3}], s{sT1} offen sc1")
    A("s_waitcnt vmcnt(0)")
    check_tags(g, [19, 23, 27, 31], "L_mpoll", mask=sMH)
    for i in range(2):
        unpack(g, 16+i, SH+2*i, SH+2*i+1)
        unpack(g, 20+i, OC+2*i, OC+2*i+1)
    for i in range(4): A(f"v_add_f32 v{OC+i}, 1.0, v{OC+i}")
    for i in range(0, 4, 2): rnd2(g, OC+i, OC+i+1, vT)
    A(f"s_mov_b32 vcc_lo, 0xffff0000"); A(f"s_mov_b32 vcc_hi, 0xffff0000")
    A(f"v_cndmask_b32 v{GA}, v24, v25, vcc")
    A(f"v_cndmask_b32 v{GB}, v28, v29, vcc")
    A(f"v_lshrrev_b32 v{vT}, 1, v{vGR}")
    A(f"v_lshlrev_b32 v{vT}, 4, v{vT}")
    A(f"v_lshrrev_b32 v{GA}, v{vT}, v{GA}")
    A(f"v_lshrrev_b32 v{GB}, v{vT}, v{GB}")
    A(f"v_lshlrev_b32 v{GA}, 16, v{GA}")
    A(f"v_lshlrev_b32 v{GB}, 16, v{GB}")
    A(f"v_lshlrev_b32 v{XV}, 16, v{XV}")
    A(f"s_mul_i32 s{sT0}, s{sB_}, {AS}")
    A(f"s_lshr_b32 s{sT2}, s{sWAVE}, 2")
    A(f"s_lshl_b32 s{sT2}, s{sT2}, 9")
    A(f"s_add_u32 s{sT0}, s{sT0}, s{sT2}")
    A(f"s_add_u32 s{sT0}, s{sT0}, {L_A}")
    A(f"v_lshl_add_u32 v{vHW}, v{vL}, 3, s{sT0}")
    A(f"v_mul_u32_u24 v{vAF}, {AS}, v{c4}")
    A(f"v_lshl_add_u32 v{vAF}, v{vGR}, 4, v{vAF}")
    A(f"v_add_u32 v{vAF}, {L_A}, v{vAF}")
    A(f"s_lshl_b32 s{sT0}, s{sWAVE}, 4")
    A(f"s_add_u32 s{sT0}, s{sT0}, {L_G}")
    A(f"v_lshlrev_b32 v{vGW}, 7, v{vGR}")
    A(f"v_lshl_add_u32 v{vGW}, v{vJ}, 1, v{vGW}")
    A(f"v_add_u32 v{vGW}, s{sT0}, v{vGW}")
    A(f"v_lshrrev_b32 v{vT}, 2, v{vJ}")
    A(f"v_lshlrev_b32 v{vGRD}, 7, v{vT}")
    A(f"v_lshl_add_u32 v{vGRD}, v{vGR}, 4, v{vGRD}")
    A(f"v_add_u32 v{vGRD}, {L_G}, v{vGRD}")
    A(f"s_mul_i32 s{sXO}, s{sB_}, 1792")
    A(f"s_add_u32 s{sXO}, s{sXO}, {WS_X1}")
    A(f"s_mul_i32 s{sRI}, s{sB_}, 28")
    A(f"s_add_u32 s{sRI}, s{sRI}, s{SID}")
    A(f"s_lshl_b32 s{sRI}, s{sRI}, 12")
    A(f"s_add_u32 s{sRI}, s{sRI}, {WS_RI}")
    for i in range(4):
        A(f"buffer_load_dwordx4 v[16:19], v{vL16}, s[{sWS}:{sWS+3}], s{sRI} offen offset:{1024*i} sc1")
    A(f"buffer_load_dwordx4 v[16:19], v{vL16}, s[{sWS}:{sWS+3}], s{sXO} offen sc1")
    A(f"buffer_load_dwordx4 v[16:19], v{vXB}, s[{sWS}:{sWS+3}], s{sXO} offen sc1")
    g.lbl("L_p5")
    A(f"v_and_b32 v13, 0x1f0, v{vL16}")
    A(f"s_mov_b32 s{sT1}, {WS_XC}")
    g.lbl("L_xpoll")
    A(f"buffer_load_dwordx4 v[16:19], v13, s[{sWS}:{sWS+3}], s{sT1} offen sc1")
    A("s_waitcnt vmcnt(0)")
    check_tags(g, [19], "L_xpoll")
    A(f"s_getreg_b32 s{sT0}, hwreg(HW_REG_XCC_ID)")
    A(f"v_cmp_ne_u32 vcc, s{sT0}, v16")
    A(f"s_cmp_eq_u64 vcc, 0")
    A(f"s_cselect_b32 s{sFAST}, {0 if opt.get('nofast') else 1}, 0")
    nst = [0]
    def xstore(ins):
        nst[0] += 1
        k = nst[0]
        A(f"s_cmp_eq_u32 s{sFAST}, 0")
        A(f"s_cbranch_scc1 L_xs{k}")
        A(ins + opt.get("polX", ""))
        A(f"s_branch L_xd{k}")
        g.lbl(f"L_xs{k}")
        A(ins + " sc1")
        g.lbl(f"L_xd{k}")
    vZO, vOBW, vOBR = vKO, vVO, vDM
    A(f"v_lshrrev_b32 v{vT}, 2, v{vJ}")
    A(f"v_mul_u32_u24 v{vZO}, 28, v{vT}")
    A(f"v_add_u32 v{vZO}, v{vZO}, v{vGR}")
    A(f"v_lshlrev_b32 v{vZO}, 12, v{vZO}")
    A(f"v_lshl_add_u32 v{vZO}, v{c4}, 4, v{vZO}")
    A(f"s_lshl_b32 s{sY_DST}, s{sWAVE}, 14")
    A(f"s_lshl_b32 s{sT0}, s{SID}, 6")
    A(f"s_add_u32 s{sY_DST}, s{sY_DST}, s{sT0}")
    A(f"s_add_u32 s{sY_DST}, s{sY_DST}, {WS_RI}")
    A(f"v_lshlrev_b32 v{vOBR}, 8, v{vT}")
    A(f"v_lshl_add_u32 v{vOBR}, v{vGR}, 4, v{vOBR}")
    A(f"v_add_u32 v{vOBR}, {L_OB}, v{vOBR}")
    A(f"s_lshl_b32 s{sT0}, s{sB_}, 8")
    A(f"s_lshr_b32 s{sT2}, s{sWAVE}, 2")
    A(f"s_lshl_b32 s{sT1}, s{sT2}, 7")
    A(f"s_add_u32 s{sT0}, s{sT0}, s{sT1}")
    A(f"s_add_u32 s{sT0}, s{sT0}, {L_OB}")
    A(f"v_and_b32 v{vOBW}, 31, v{vL}")
    A(f"v_lshl_add_u32 v{vOBW}, v{vOBW}, 2, s{sT0}")
    A(f"s_lshl_b32 s{sO_IN}, s{sB_}, 18")
    A(f"s_lshl_b32 s{sT1}, s{SID}, 13")
    A(f"s_add_u32 s{sO_IN}, s{sO_IN}, s{sT1}")
    A(f"s_lshl_b32 s{sT1}, s{sT2}, 12")
    A(f"s_add_u32 s{sO_IN}, s{sO_IN}, s{sT1}")
    A(f"s_add_u32 s{sO_IN}, s{sO_IN}, {WS_O}")
    A(f"v_mov_b32 v28, 0"); A(f"v_mov_b32 v29, 0")
    A(f"v_mov_b32 v30, 0xff7fffff"); A(f"v_mov_b32 v31, s{sTAG}")
    A("s_waitcnt lgkmcnt(0)")
    stamp(g, 9)
    g.lbl("L_opoll")
    for i in range(3):
        A(f"buffer_load_dwordx4 v[{16+4*i}:{19+4*i}], v{vL16}, s[{sWS}:{sWS+3}], s{sO_IN} offen offset:{1024*i} sc1")
    A("s_mov_b32 exec_hi, 0")
    A(f"buffer_load_dwordx4 v[28:31], v{vL16}, s[{sWS}:{sWS+3}], s{sO_IN} offen offset:3072 sc1")
    A("s_mov_b32 exec_hi, -1")
    A("s_waitcnt vmcnt(0)")
    check_tags(g, [19, 23, 27, 31], "L_opoll")
    tstamp(g, 1)
    A(f"v_max3_f32 v32, v18, v22, v26")
    A(f"v_max_f32 v32, v32, v30")
    A(f"v_mov_b32 v33, v32")
    g.nop(2)
    A(f"v_permlane32_swap_b32 v32, v33")
    A(f"v_max_f32 v32, v32, v33")
    for i in range(4): A(f"v_sub_f32 v{18+4*i}, v{18+4*i}, v32")
    for i in range(4): A(f"v_exp_f32 v{18+4*i}, v{18+4*i}")
    A(f"v_pk_mul_f32 v[34:35], v[16:17], v[18:19] op_sel_hi:[1,0]")
    A(f"v_add_f32 v36, v18, v22")
    for i in range(1, 4):
        A(f"v_pk_fma_f32 v[34:35], v[{16+4*i}:{17+4*i}], v[{18+4*i}:{19+4*i}], v[34:35] op_sel_hi:[1,0,1]")
    A(f"v_add_f32 v37, v26, v30")
    A(f"v_add_f32 v36, v36, v37")
    A(f"v_mov_b32 v38, v34"); A(f"v_mov_b32 v39, v35"); A(f"v_mov_b32 v37, v36")
    g.nop(1)
    A(f"v_permlane32_swap_b32 v34, v38")
    A(f"v_permlane32_swap_b32 v35, v39")
    A(f"v_permlane32_swap_b32 v36, v37")
    A(f"v_pk_add_f32 v[34:35], v[34:35], v[38:39]")
    A(f"v_add_f32 v36, v36, v37")
    A(f"v_rcp_f32 v36, v36")
    g.nop(1)
    A(f"v_pk_mul_f32 v[34:35], v[34:35], v[36:37] op_sel_hi:[1,0]")
    A(f"v_cvt_pk_bf16_f32 v34, v34, v35")
    A(f"ds_write_b32 v{vOBW}, v34")
    A("s_waitcnt lgkmcnt(0)")
    A("s_barrier")
    def proj(addr, nks, frags, per_tile, off, O=40):
        for ks in range(nks):
            A(f"ds_read_b128 v[{48+4*ks}:{51+4*ks}], v{addr} offset:{64*ks}")
        for ks in range(nks):
            A(f"s_waitcnt lgkmcnt({nks-1-ks})")
            for t in range(4):
                r = frags + per_tile*t + 4*ks
                c = "0" if ks == 0 else f"v[{24+4*t}:{27+4*t}]"
                A(f"v_mfma_f32_16x16x32_bf16 v[{24+4*t}:{27+4*t}], v[{r}:{r+3}], v[{48+4*ks}:{51+4*ks}], {c}")
        g.nop(6)
        for i in range(4): A(f"v_cndmask_b32 v{O+i}, v{24+i}, v{28+i}, s[{sQ1}:{sQ1+1}]")
        for i in range(4): A(f"v_cndmask_b32 v{O+i}, v{O+i}, v{32+i}, s[{sQ2}:{sQ2+1}]")
        for i in range(4): A(f"v_cndmask_b32 v{O+i}, v{O+i}, v{36+i}, s[{sQ3}:{sQ3+1}]")
        for i in range(4): A(f"v_min_u32 v{O+i}, -2, v{O+i}")
        xstore(f"buffer_store_dwordx4 v[{O}:{O+3}], v{vZO}, s[{sWS}:{sWS+3}], s{sY_DST} offen offset:{off}")
    A(f"s_cmp_eq_u32 s{sWAVE}, 7")
    A("s_cbranch_scc1 L_t2")
    proj(vOBR, 4, WOF, 16, 0)
    stamp(g, 7)
    g.lbl("L_t2")
    A(f"s_cmp_lt_u32 s{SID}, 28")
    A(f"s_cbranch_scc0 {'L_wb1' if opt.get('WB', 0) & 1 else 'L_fin'}")
    def reduce(lab, off, vb, offb, gate, st):
        g.lbl(lab)
        A(f"buffer_load_dwordx4 v[16:19], v{vL16}, s[{sWS}:{sWS+3}], s{sRI} offen offset:{off} sc1")
        A(f"buffer_load_dwordx4 v[20:23], v{vb}, s[{sWS}:{sWS+3}], s{sRI} offen offset:{offb} sc1")
        A("s_waitcnt vmcnt(0)")
        A(f"v_max3_u32 v{vT}, v16, v17, v18")
        A(f"v_max3_u32 v10, v19, v20, v21")
        A(f"v_max3_u32 v{vT}, v{vT}, v22, v23")
        A(f"v_max_u32 v{vT}, v{vT}, v10")
        A(f"v_cmp_eq_u32 vcc, -1, v{vT}")
        A(pk("add", 16, 16, 20)); A(pk("add", 18, 18, 22))
        retry_branch(g, lab)
        tstamp(g, st)
        g.nop(1)
        A(f"v_permlane32_swap_b32 v16, v17")
        A(f"v_permlane32_swap_b32 v18, v19")
        A(f"v_add_f32 v16, v16, v17")
        A(f"v_add_f32 v18, v18, v19")
        g.nop(2)
        A(f"v_permlane16_swap_b32 v16, v18")
        A(f"v_add_f32 v16, v16, v18")
        g.nop(2)
        A(f"v_add_f32 v16, v16, v16 row_ror:4 {DPP}")
        g.nop(2)
        A(f"v_add_f32 v16, v16, v16 row_ror:8 {DPP}")
        rnd1(g, 16)
        A(f"v_mul_f32 v16, v16, v{gate}")
        rnd1(g, 16)
        A(f"v_add_f32 v{XV}, v{XV}, v16")
    A(f"s_cmp_lt_u32 s{sWAVE}, 4")
    A("s_cbranch_scc1 L_x1poll")
    A(f"v_mov_b32 v47, s{sTAG}")
    A(f"v_mov_b32 v46, 0")
    A(f"s_lshl_b32 s{sT2}, s{sPX}, 1")
    A(f"s_add_u32 s{sT2}, s{sT2}, {WS_X1}")
    reduce("L_ypoll", 0, vL16, 1024, GA, 5)
    A(f"v_mov_b32 v17, v{XV}")
    A(f"v_mov_b32 v16, v{XV}")
    g.nop(2)
    A(f"v_permlane32_swap_b32 v16, v17")
    A(f"v_cvt_pk_bf16_f32 v44, v16, v17")
    A(f"v_mov_b32 v45, v44")
    g.nop(2)
    A(f"v_permlane16_swap_b32 v44, v45")
    A("s_mov_b64 exec, 0xf")
    xstore(f"buffer_store_dwordx4 v[44:47], v{vL16}, s[{sWS}:{sWS+3}], s{sT2} offen")
    A("s_mov_b64 exec, -1")
    rnd1(g, XV)
    stamp(g, 6)
    g.lbl("L_x1poll")
    A(f"buffer_load_dwordx4 v[16:19], v{vL16}, s[{sWS}:{sWS+3}], s{sXO} offen sc1")
    A(f"buffer_load_dwordx4 v[20:23], v{vXB}, s[{sWS}:{sWS+3}], s{sXO} offen sc1")
    A("s_waitcnt vmcnt(0)")
    tags_ab(g, [19], [23])
    retry_branch(g, "L_x1poll")
    tstamp(g, 2)
    if opt.get("YC", 0):
        A(f"s_lshr_b32 s{sT0}, s{sWAVE}, 2")
        A(f"s_lshl_b32 s{sT0}, s{sT0}, 10")
        A(f"s_add_u32 s{sT0}, s{sT0}, s{sRI}")
        A(f"buffer_store_dwordx4 v[64:67], v{vL16}, s[{sWS}:{sWS+3}], s{sT0} offen sc1")
    for i, r in enumerate((16, 17, 20, 21)):
        unpack(g, r, 24+2*i, 25+2*i)
    E = 44
    layernorm(g, 24, 32, E, 4, presel=[f"v_cndmask_b32 v{E+i}, v{24+i}, v{28+i}, s[{sR8}:{sR8+1}]" for i in range(4)])
    rnd2(g, E, E+1, vT); rnd2(g, E+2, E+3, vT)
    modulate_pack(g, E, OC, SH, E, vT, 4)
    A(f"s_mov_b64 exec, s[{sMH}:{sMH+1}]")
    A(f"ds_write_b64 v{vHW}, v[{E}:{E+1}]")
    A("s_mov_b64 exec, -1")
    A("s_waitcnt lgkmcnt(0)")
    A("s_barrier")
    tstamp(g, 3)
    for ks in range(14):
        A(f"ds_read_b128 v[{64+4*ks}:{67+4*ks}], v{vAF} offset:{64*ks}")
    for ks in range(14):
        A(f"s_waitcnt lgkmcnt({13-ks})")
        c = "0" if ks == 0 else "v[16:19]"
        A(f"v_mfma_f32_16x16x32_bf16 v[16:19], v[{64+4*ks}:{67+4*ks}], v[{GUF+4*ks}:{GUF+3+4*ks}], {c}")
    kk = -2.0 * math.sqrt(2.0/math.pi) * LOG2E
    A(f"v_mov_b32 v24, {f2u(kk*0.044715):#x}")
    A(f"v_mov_b32 v25, {f2u(kk):#x}")
    g.nop(6)
    sel4(g, 20, 16, 17, 18, 19, sM1, sM2, sM3)
    rnd1(g, 20)
    A(f"v_mul_f32 v21, v20, v20")
    A(f"v_fma_f32 v21, v21, v24, v25")
    A(f"v_mul_f32 v21, v21, v20")
    A(f"v_exp_f32 v21, v21")
    A(f"v_mov_b32 v23, v20 row_ror:8 {DPP}")
    A(f"v_add_f32 v21, 1.0, v21")
    A(f"v_rcp_f32 v21, v21")
    A(f"s_mov_b32 exec_lo, 0x00ff00ff")
    A(f"s_mov_b32 exec_hi, 0x00ff00ff")
    A(f"v_mul_f32 v21, v21, v20")
    rnd1(g, 21)
    A(f"v_mul_f32 v21, v21, v23")
    A(f"v_cvt_pk_bf16_f32 v21, v21, v21")
    A(f"ds_write_b16 v{vGW}, v21")
    A("s_mov_b64 exec, -1")
    A("s_waitcnt lgkmcnt(0)")
    A("s_barrier")
    tstamp(g, 4)
    A(f"s_cmp_eq_u32 s{sWAVE}, 7")
    A("s_cbranch_scc1 L_t4")
    proj(vGRD, 2, DNF, 8, 2048)
    stamp(g, 8)
    A(f"s_cmp_lt_u32 s{sWAVE}, 4")
    A(f"s_cbranch_scc1 {'L_wb2' if opt.get('WB', 0) & 2 else 'L_fin'}")
    g.lbl("L_t4")
    srd(g, sA, P_OUT, 3584)
    reduce("L_zpoll", 2048, vXB, 2048, GB, 7)
    A(f"v_cvt_pk_bf16_f32 v16, v{XV}, v{XV}")
    A("s_mov_b32 exec_lo, 0x000f000f"); A("s_mov_b32 exec_hi, 0x000f000f")
    A(f"buffer_store_short v16, v{vOUT}, s[{sA}:{sA+3}], s{sPX} offen")
    stamp(g, 9)
    A(f"s_cmp_eq_u32 s{sPX}, 0")
    A("s_cbranch_scc0 L_fin")
    A("s_mov_b64 exec, 1")
    A(f"v_mov_b32 v16, s{sTAG}")
    A(f"buffer_store_dword v16, v{vL16}, s[{sWS}:{sWS+3}], 0 offen sc1")
    if opt.get("WB", 0):
        A("s_branch L_fin")
        g.lbl("L_wb1")
        A("s_sleep 16")
        g.lbl("L_wb2")
        A(f"s_cmp_eq_u32 s{sWAVE}, 0")
        A("s_cbranch_scc0 L_fin")
        A(f"s_and_b32 s{sT0}, s{SID}, {opt.get('WBM', 3)}")
        A("s_cbranch_scc1 L_fin")
        A("s_waitcnt vmcnt(0)")
        A("buffer_wbl2 sc1")
        A("s_waitcnt vmcnt(0)")
    g.lbl("L_fin")
    flush_stamps(g, NSTAMP)
    g.lbl("L_end")
    A("s_endpgm")
    g.L += ['.section .rodata,"a"', ".p2align 6", f".amdhsa_kernel {NAME}_kernel",
            "  .amdhsa_next_free_vgpr 256", "  .amdhsa_next_free_sgpr 102", "  .amdhsa_accum_offset 256",
            "  .amdhsa_group_segment_fixed_size 0", "  .amdhsa_kernarg_size 112", "  .amdhsa_user_sgpr_count 2",
            "  .amdhsa_user_sgpr_kernarg_segment_ptr 1", "  .amdhsa_system_sgpr_workgroup_id_x 1", ".end_amdhsa_kernel"]
    return "\n".join(g.L) + "\n"

if __name__ == "__main__":
    out = sys.argv[1] if len(sys.argv) > 1 else f"cdna_kernels/{NAME}.s"
    opt = {}
    for a in sys.argv[2:]:
        k, val = a.split("=", 1)
        try: val = int(val)
        except ValueError: val = (" " + val.replace("+", " ")) if val else ""
        opt[k] = val
    open(out, "w").write(build(opt))
```

```python
import sys, math, struct

NAME = "adaLN_cond__gqa_block_cached__geglu_ffn__decode"

WS_E   = 0x0
WS_XC  = 0x1000
WS_CNT = 0x2000
WS_X1  = 0x4000
WS_M   = 0x6000
MB = 10752
WS_Q   = 0x20000
WS_O   = 0x30000
WS_RI  = 0x130000
WS_STAMP = 0x400000
WS_SIZE = 0x800000

L_OL = 57344
L_Q  = L_OL + 16384
L_P  = L_Q + 1024
L_RED = L_P + 4096
SB0 = 0
SB1 = 57344 + 16
L_SC = SB1 + 57344 + 48
AS = 928
L_A  = L_SC + 4096
L_OB = L_A + 8*480
L_G  = L_OB + 8*160
L_END = L_G + 8*96

LOG2E = 1.4426950408889634
def f2u(x): return struct.unpack("<I", struct.pack("<f", x))[0]

class G:
    def __init__(self, opt):
        self.L = []; self.o = opt; self.lab = 0
    def A(self, s): self.L.append("    " + s)
    def lbl(self, s): self.L.append(s + ":")
    def newlab(self, p="L"):
        self.lab += 1
        return f"{p}_{self.lab}"
    def nop(self, n):
        while n > 0:
            k = min(n, 16)
            self.A(f"s_nop {k-1}")
            n -= k

sWAVE = 3
sK, sV, sWS, sA, sB = 4, 8, 12, 16, 20
sS, sB_, sKVH, sN = 24, 25, 26, 27
sTAG, sRETRY = 28, 29
sKB, sFAST = 30, 31
sUB = 32
sT0, sT1, sT2, sT3 = 33, 34, 35, 36
sLN = 37
sM1, sM2, sM3 = 38, 40, 42
sM48 = 44
sQ1, sQ2, sQ3 = 46, 48, 50
sR8 = 52
sSTART, sSTEP, sLDS = 54, 55, 56
sTK, sLIM = 54, 55
sPLO, sPHI = 57, 58
sC = 59
sHI = 60
sXO, sPX = 61, 62
sGRP = 63
P_X, P_K, P_V, P_WQ, P_WO, P_BX, P_WG, P_WU, P_WD, P_C, P_WM, P_OUT, P_DBG, P_WS = [64 + 2*i for i in range(14)]
sCNT = 84
sCX = 68
sST = 88
sO_DST, sY_DST = 66, 67
sO_IN, sRI = 68, 69
sMH = 74

vTID, vL, vJ, vGR, vKO, vVO, vL16, vDM = 0, 1, 2, 3, 4, 5, 6, 7
vE = 8
vT = 9
vVE = 64
vK = 128
vVU = 0
vM, vLS = 14, 15
vKU, vVB = 192, 224
vOLW, vOLR, vRW, vRR = 78, 79, 80, 81

def srd(g, r, ptr, size):
    g.A(f"s_mov_b32 s{r}, s{ptr}")
    g.A(f"s_mov_b32 s{r+1}, s{ptr+1}")
    g.A(f"s_mov_b32 s{r+2}, {size}")
    g.A(f"s_mov_b32 s{r+3}, 0x20000")

DPP = "row_mask:0xf bank_mask:0xf"
def wave_reduce(g, op, regs, tmps, swaps=("v_permlane16_swap_b32", "v_permlane32_swap_b32")):
    n = len(regs)
    for pat in ("quad_perm:[1,0,3,2]", "quad_perm:[2,3,0,1]", "row_half_mirror", "row_mirror"):
        g.nop(max(0, 2 - (n - 1)))
        for r in regs:
            g.A(f"{op} v{r}, v{r}, v{r} {pat} {DPP}")
    for sw in swaps:
        for r, t in zip(regs, tmps):
            g.A(f"v_mov_b32 v{t}, v{r}")
        g.nop(2)
        for r, t in zip(regs, tmps):
            g.A(f"{sw} v{r}, v{t}")
        for r, t in zip(regs, tmps):
            g.A(f"{op} v{r}, v{r}, v{t}")

def rnd2(g, a, b, t):
    g.A(f"v_cvt_pk_bf16_f32 v{t}, v{a}, v{b}")
    g.A(f"v_lshlrev_b32 v{a}, 16, v{t}")
    g.A(f"v_and_b32 v{b}, s{sHI}, v{t}")
def rnd1(g, a):
    g.A(f"v_cvt_pk_bf16_f32 v{a}, v{a}, v{a}")
    g.A(f"v_lshlrev_b32 v{a}, 16, v{a}")
def unpack(g, src, lo, hi):
    g.A(f"v_lshlrev_b32 v{lo}, 16, v{src}")
    g.A(f"v_and_b32 v{hi}, s{sHI}, v{src}")

def red63(g, r, fill):
    fill = list(fill)
    def pad(n):
        for _ in range(n):
            if fill: g.A(fill.pop(0))
            else:
                g.nop(n - _); break
    for pat in ("quad_perm:[1,0,3,2] " + DPP, "quad_perm:[2,3,0,1] " + DPP, "row_half_mirror " + DPP, "row_mirror " + DPP,
                "row_bcast:15 row_mask:0xa bank_mask:0xf", "row_bcast:31 row_mask:0xc bank_mask:0xf"):
        pad(2)
        g.A(f"v_add_f32 v{r}, v{r}, v{r} {pat}")
    pad(1)
    g.A(f"v_readlane_b32 s{sLN}, v{r}, 63")
    pad(2)
    for f in fill: g.A(f)

def pk(op, d, a, b, bc=False, neg=False):
    m = ""
    if bc: m += " op_sel_hi:[1,0]"
    if neg: m += " neg_lo:[0,1] neg_hi:[0,1]"
    return f"v_pk_{op}_f32 v[{d}:{d+1}], v[{a}:{a+1}], v[{b}:{b+1}]{m}"

def rnd2s(a, b, t):
    return [f"v_cvt_pk_bf16_f32 v{t}, v{a}, v{b}", f"v_lshlrev_b32 v{a}, 16, v{t}", f"v_and_b32 v{b}, s{sHI}, v{t}"]

def layernorm(g, X, T, E, n, presel=()):
    A = g.A
    A(pk("add", T, X, X+2)); A(pk("add", T+2, X+4, X+6)); A(pk("add", T, T, T+2))
    A(f"v_add_f32 v{T}, v{T}, v{T+1}")
    red63(g, T, presel)
    A(f"v_mov_b32 v{T+8}, {f2u(1.0/448):#x}")
    A(f"v_mul_f32 v{T}, s{sLN}, v{T+8}")
    A(pk("add", T+2, X, T, True, True)); A(pk("add", T+4, X+2, T, True, True))
    A(f"v_pk_mul_f32 v[{T+6}:{T+7}], v[{T+2}:{T+3}], v[{T+2}:{T+3}]")
    A(pk("add", T+2, X+4, T, True, True))
    A(f"v_pk_fma_f32 v[{T+6}:{T+7}], v[{T+4}:{T+5}], v[{T+4}:{T+5}], v[{T+6}:{T+7}]")
    A(pk("add", T+4, X+6, T, True, True))
    A(f"s_mov_b64 exec, s[{sM48}:{sM48+1}]")
    A(f"v_pk_fma_f32 v[{T+6}:{T+7}], v[{T+2}:{T+3}], v[{T+2}:{T+3}], v[{T+6}:{T+7}]")
    A(f"v_pk_fma_f32 v[{T+6}:{T+7}], v[{T+4}:{T+5}], v[{T+4}:{T+5}], v[{T+6}:{T+7}]")
    A("s_mov_b64 exec, -1")
    A(f"v_add_f32 v{T+6}, v{T+6}, v{T+7}")
    fill = [f"v_cvt_pk_bf16_f32 v{T}, v{T}, v{T}", f"v_lshlrev_b32 v{T}, 16, v{T}"]
    fill += [pk("add", E+i, E+i, T, True, True) for i in range(0, n, 2)]
    for i in range(0, n, 2): fill += rnd2s(E+i, E+i+1, T+2)
    red63(g, T+6, fill)
    A(f"v_mul_f32 v{T+6}, s{sLN}, v{T+8}")
    rnd1(g, T+6)
    A(f"v_add_f32 v{T+6}, {f2u(1e-5):#x}, v{T+6}")
    rnd1(g, T+6)
    A(f"v_sqrt_f32 v{T+6}, v{T+6}")
    g.nop(1)
    rnd1(g, T+6)
    A(f"v_rcp_f32 v{T+6}, v{T+6}")
    g.nop(1)
    for i in range(0, n, 2): A(pk("mul", E+i, E+i, T+6, True))

def modulate_pack(g, X, OC, SH, D, t, n):
    for i in range(0, n, 2): g.A(pk("mul", X+i, X+i, OC+i))
    for i in range(0, n, 2): rnd2(g, X+i, X+i+1, t)
    for i in range(0, n, 2): g.A(pk("add", X+i, X+i, SH+i))
    for i in range(0, n, 2): g.A(f"v_cvt_pk_bf16_f32 v{D+i//2}, v{X+i}, v{X+i+1}")

def retry_branch(g, fail_label):
    ok = g.newlab("L_ok")
    g.A(f"s_cbranch_vccz {ok}")
    g.A(f"s_sub_u32 s{sRETRY}, s{sRETRY}, 1")
    g.A(f"s_cbranch_scc0 {fail_label}")
    g.A(f"s_mov_b32 s{sRETRY}, 0")
    g.lbl(ok)

def tags_ab(g, ra, rb):
    t = vT
    g.A(f"v_xor_b32 v{t}, s{sTAG}, v{rb[0]}")
    for r in rb[1:]: g.A(f"v_bitop3_b32 v{t}, v{t}, v{r}, s{sTAG} bitop3:0xf6")
    g.A(f"v_cndmask_b32 v{t}, 0, v{t}, s[{sM48}:{sM48+1}]")
    for r in ra: g.A(f"v_bitop3_b32 v{t}, v{t}, v{r}, s{sTAG} bitop3:0xf6")
    g.A(f"v_cmp_ne_u32 vcc, 0, v{t}")

class VM:
    def __init__(self, g, W, n0=0):
        self.g, self.W, self.n = g, W, n0
    def pre(self):
        if self.W and self.n >= self.W:
            self.g.A(f"s_waitcnt vmcnt({self.W-1})")
            self.n = self.W - 1
        self.n += 1

def dma7(g, pol, vm, srd_=None):
    srd_ = srd_ or sA
    for i in range(7):
        vm.pre()
        g.A(f"s_mov_b32 m0, s{sLDS}")
        g.A(f"s_add_u32 s{sLDS}, s{sLDS}, 1024")
        g.A(f"buffer_load_dwordx4 v{vDM}, s[{srd_}:{srd_+3}], s{sSTART} offen{pol} lds")
        g.A(f"s_add_u32 s{sSTART}, s{sSTART}, s{sSTEP}")

def k_tile(g, vm, pol, base, add, dst, lo=0, hi=8):
    g.A(f"s_add_u32 s{sT0}, s{base}, {add}")
    g.A(f"s_add_u32 s{sT1}, s{base}, {add+4096}")
    for jj in range(lo, hi):
        vm.pre()
        r = dst + 4*jj
        kq, blk = jj >> 1, jj & 1
        so = sT0 if kq < 2 else sT1
        g.A(f"buffer_load_dwordx4 v[{r}:{r+3}], v{vKO}, s[{sK}:{sK+3}], s{so} offen offset:{(kq&1)*2048 + blk*256}{pol}")

def v_group(g, vm, pol, part):
    il = g.o.get("VIL", 1)
    for k in range(8):
        if il: r, eta = part*4 + (k >> 1), k & 1
        else: r, eta = k, part
        vm.pre()
        d = vVE + 32*eta + 4*r
        g.A(f"buffer_load_dwordx4 v[{d}:{d+3}], v13, s[{sV}:{sV+3}], s{sKB} offen offset:{512*r + 256*eta}{pol}")

def k_unit(g, vm, pol):
    RS = g.o.get("RS", 512)
    if RS == 512: return k_tile(g, vm, pol, sUB, 0, vKU)
    for jj in range(8):
        kq, blk = jj >> 1, jj & 1
        if blk == 0: g.A(f"s_add_u32 s{sT0}, s{sUB}, {kq*4*RS}")
        vm.pre()
        r = vKU + 4*jj
        g.A(f"buffer_load_dwordx4 v[{r}:{r+3}], v{vVO}, s[{sK}:{sK+3}], s{sT0} offen offset:{blk*256}{pol}")

def v_unit(g, vm, pol):
    RS = g.o.get("RS", 512)
    if RS != 512:
        for k in range(8):
            r, eta = k >> 1, k & 1
            if eta == 0: g.A(f"s_add_u32 s{sT0}, s{sUB}, {r*RS}")
            vm.pre()
            d = vVB + 16*eta + 4*r
            g.A(f"buffer_load_dwordx4 v[{d}:{d+3}], v{vVU}, s[{sV}:{sV+3}], s{sT0} offen offset:{256*eta}{pol}")
        return
    for k in range(8):
        if True:
            r, eta = ((k >> 1, k & 1) if g.o.get("VIL", 1) else (k & 3, k >> 2))
            vm.pre()
            d = vVB + 16*eta + 4*r
            g.A(f"buffer_load_dwordx4 v[{d}:{d+3}], v{vVU}, s[{sV}:{sV+3}], s{sUB} offen offset:{512*r + 256*eta}{pol}")

def get_tag(g):
    g.A(f"v_readfirstlane_b32 s{sTAG}, v{vE}")
    g.A(f"s_add_u32 s{sTAG}, s{sTAG}, 0x9e3779b9")

def check_tags(g, regs, fail_label, mask=None, t=vT):
    if len(regs) == 1:
        g.A(f"v_cmp_ne_u32 vcc, s{sTAG}, v{regs[0]}")
    else:
        g.A(f"v_xor_b32 v{t}, s{sTAG}, v{regs[0]}")
        for r in regs[1:]:
            g.A(f"v_bitop3_b32 v{t}, v{t}, v{r}, s{sTAG} bitop3:0xf6")
        g.A(f"v_cmp_ne_u32 vcc, 0, v{t}")
    if mask is not None:
        g.A(f"s_and_b64 vcc, vcc, s[{mask}:{mask+1}]")
    ok = g.newlab("L_ok")
    g.A(f"s_cbranch_vccz {ok}")
    g.A(f"s_sub_u32 s{sRETRY}, s{sRETRY}, 1")
    g.A(f"s_cbranch_scc0 {fail_label}")
    g.A(f"s_mov_b32 s{sRETRY}, 0")
    g.lbl(ok)

NSTAMP = 10
def tstamp(g, idx):
    if g.o.get("tst"): stamp(g, idx, True)
def stamp(g, idx, force=False):
    if not g.o.get("stamps") or g.o.get("trace"): return
    if (g.o.get("tst") or g.o.get("est")) and not force and idx in (1, 2, 3, 4): return
    g.A(f"s_memrealtime s[{sST}:{sST+1}]")
    g.A("s_waitcnt lgkmcnt(0)")
    g.A(f"s_mov_b32 s{92+idx}, s{sST}")
def flush_stamps(g, n):
    if not g.o.get("stamps"): return
    if g.o.get("dbg"):
        g.A("s_mov_b64 exec, 1")
        g.A("v_mov_b32 v15, 0")
        g.A(f"s_lshl_b32 s{sT3}, s2, 3")
        g.A(f"s_add_u32 s{sT3}, s{sT3}, s{sWAVE}")
        g.A(f"s_cmp_eq_u32 s{sT3}, 0")
        g.A("s_cbranch_scc1 L_dbg0")
        g.A(f"s_cmp_eq_u32 s{sT3}, {144*8+7}")
        g.A("s_cbranch_scc0 L_end")
        for k, i in enumerate((6, 1, 7, 2, 8, 9)):
            g.A(f"s_sub_u32 s{sT3}, s{92+i}, s92")
            g.A(f"v_mov_b32 v14, s{sT3}")
            g.A(f"global_store_dword v15, v14, s[82:83] offset:{4*k}")
            g.nop(1)
        g.A("s_branch L_end")
        g.lbl("L_dbg0")
        for k, i in enumerate((6, 7, 9, 2, 3, 4, 8)):
            g.A(f"s_sub_u32 s{sT3}, s{92+i}, s92")
            g.A(f"v_mov_b32 v14, s{sT3}")
            g.A(f"global_store_dword v15, v14, s[82:83] offset:{32+4*k}")
            g.nop(1)
        return
    g.A(f"s_lshl_b32 s{sT3}, s2, 3")
    g.A(f"s_add_u32 s{sT3}, s{sT3}, s{sWAVE}")
    g.A(f"s_lshl_b32 s{sT3}, s{sT3}, 6")
    g.A(f"s_add_u32 s{sT3}, s{sT3}, {WS_STAMP}")
    g.A("s_mov_b64 exec, 1")
    g.A("v_mov_b32 v15, 0")
    for i in range(n):
        g.A(f"v_mov_b32 v14, s{92+i}")
        g.A(f"buffer_store_dword v14, v15, s[{sWS}:{sWS+3}], s{sT3} offen offset:{4*i}")
        g.nop(1)

def sel4(g, dst, r0, r1, r2, r3, m1, m2, m3):
    g.A(f"v_cndmask_b32 v{dst}, v{r0}, v{r1}, s[{m1}:{m1+1}]")
    g.A(f"v_cndmask_b32 v{dst}, v{dst}, v{r2}, s[{m2}:{m2+1}]")
    g.A(f"v_cndmask_b32 v{dst}, v{dst}, v{r3}, s[{m3}:{m3+1}]")

def build(opt):
    g = G(opt)
    A = g.A
    polK = opt.get("polK", " nt"); polV = opt.get("polV", " nt"); polW = opt.get("polW", " nt")
    W = opt.get("W", 16)
    PRIO = opt.get("prio", 1)
    SX = opt.get("SX", 0)
    def prio(p):
        if PRIO: A(f"s_setprio {p}")
    hdr = open(f"cdna_kernels/{NAME}.s.ref").read().split("\n")
    for line in hdr:
        if line.startswith("; @launch"):
            g.L.append(f"; @launch grid=(256,1,1) block=(512,1,1) lds={L_END}")
            break
        g.L.append(line)
    g.L += ['.amdgcn_target "amdgcn-amd-amdhsa--gfx950"', ".text", f".globl {NAME}_kernel", ".p2align 8",
            f".type {NAME}_kernel,@function"]
    g.lbl(f"{NAME}_kernel")
    if opt.get("stamps"): A("s_memrealtime s[92:93]")
    A("s_cmp_ge_u32 s2, 256")
    A("s_cbranch_scc1 L_end")
    A("s_load_dwordx16 s[64:79], s[0:1], 0")
    A("s_load_dwordx8 s[80:87], s[0:1], 64")
    A("s_load_dwordx2 s[90:91], s[0:1], 104")
    A(f"s_getpc_b64 s[{sST}:{sST+1}]")
    g.lbl("L_pc")
    A(f"v_lshlrev_b32 v{vT}, 6, v0")
    A(f"v_min_u32 v{vT}, L_end - L_pc - 4, v{vT}")
    A(f"global_load_dword v15, v{vT}, s[{sST}:{sST+1}]")
    prio(3)
    A(f"v_lshrrev_b32 v{vL}, 6, v0")
    A(f"s_sub_u32 s{sS}, s2, {SX+1}")
    A(f"v_readfirstlane_b32 s{sWAVE}, v{vL}")
    A(f"v_and_b32 v{vL}, 63, v0")
    A(f"v_and_b32 v{vJ}, 15, v0")
    A(f"v_lshrrev_b32 v{vGR}, 4, v{vL}")
    A(f"v_lshrrev_b32 v{vKO}, 2, v{vJ}")
    A(f"v_lshlrev_b32 v{vKO}, 9, v{vKO}")
    A(f"v_lshl_add_u32 v{vKO}, v{vGR}, 6, v{vKO}")
    A(f"v_and_b32 v12, 3, v0")
    A(f"v_lshl_add_u32 v{vKO}, v12, 4, v{vKO}")
    A(f"v_lshlrev_b32 v{vL16}, 4, v{vL}")
    A(f"v_mov_b32 v{vE}, 0")
    A(f"v_lshlrev_b32 v{vT}, 2, v{vL}")
    A(f"v_add_u32 v{vT}, {L_RED}, v{vT}")
    A(f"ds_write_b32 v{vT}, v{vE}")
    A(f"s_and_b32 s{sS}, s{sS}, 7")
    A(f"s_lshr_b32 s{sN}, s2, 3")
    A(f"s_and_b32 s{sB_}, s{sN}, 3")
    A(f"s_lshr_b32 s{sKVH}, s{sN}, 2")
    A(f"s_lshl_b32 s{sGRP}, s{sB_}, 3")
    A(f"s_add_u32 s{sGRP}, s{sGRP}, s{sKVH}")
    A(f"s_lshl_b32 s{sT0}, s{sGRP}, 21")
    A(f"s_and_b32 s{sT1}, s{sWAVE}, 3")
    A(f"s_lshl_b32 s{sT2}, s{sS}, 2")
    A(f"s_add_u32 s{sT1}, s{sT1}, s{sT2}")
    A(f"s_lshr_b32 s{sT2}, s{sWAVE}, 2")
    A(f"s_mul_i32 s{sT2}, s{sT2}, 28")
    A(f"s_add_u32 s{sT1}, s{sT1}, s{sT2}")
    GR = opt.get("GR", 0)
    if GR:
        A(f"s_mul_i32 s{sT2}, s{sGRP}, {GR}")
        A(f"s_add_u32 s{sT1}, s{sT1}, s{sT2}")
        A(f"s_and_b32 s{sT1}, s{sT1}, 127")
    A(f"s_lshl_b32 s{sT1}, s{sT1}, 14")
    A(f"s_add_u32 s{sKB}, s{sT0}, s{sT1}")
    A(f"s_mul_i32 s{sT1}, s{sS}, 5")
    A(f"s_add_u32 s{sT1}, s{sT1}, s{sN}")
    A(f"s_and_b32 s{sT1}, s{sT1}, 31")
    A(f"s_mul_i32 s{sT1}, s{sT1}, 7")
    A(f"s_add_u32 s{sT1}, s{sT1}, s{sS}")
    A(f"s_cmp_eq_u32 s{sS}, 7")
    A(f"s_cselect_b32 s{sN}, s{sN}, s{sT1}")
    A(f"s_mov_b32 s{sK+2}, {64<<20}")
    A(f"s_mov_b32 s{sK+3}, 0x20000")
    A(f"s_cmp_lt_u32 s{sN}, 42")
    A("s_waitcnt lgkmcnt(0)")
    A("s_barrier")
    A(f"global_load_dword v{vE}, v{vE}, s[{P_WS}:{P_WS+1}] sc1")
    A(f"s_mov_b32 s{sK}, s{P_K}")
    A(f"s_mov_b32 s{sK+1}, s{P_K+1}")
    A("s_cbranch_scc1 L_early")
    vm = VM(g, W, 2)
    k_tile(g, vm, polK, sKB, 0, vK)
    A("s_branch L_main0")
    SID = sN
    c4 = 12
    vRO, vSW = 10, 11
    def dma(n, swz):
        for i in range(n):
            A(f"s_mov_b32 m0, s{sLDS}")
            A(f"s_add_u32 s{sLDS}, s{sLDS}, 1024")
            A(f"buffer_load_dwordx4 v{vDM}, s[{sA}:{sA+3}], s{sSTART} offen{polW} lds")
            A(f"s_add_u32 s{sSTART}, s{sSTART}, s{sSTEP}")
            if swz: A(f"v_xor_b32 v{vDM}, 64, v{vDM}")
    g.lbl("L_early")
    A(f"s_cmp_eq_u32 s{sS}, 7")
    A(f"s_cselect_b32 s{sB}, s{P_X}, s{P_C}")
    A(f"s_cselect_b32 s{sB+1}, s{P_X+1}, s{P_C+1}")
    A(f"s_mov_b32 s{sB+2}, 3584")
    A(f"s_mov_b32 s{sB+3}, 0x20000")
    A(f"s_cselect_b32 s{sA}, s{P_WQ}, s{P_WM}")
    A(f"s_cselect_b32 s{sA+1}, s{P_WQ+1}, s{P_WM+1}")
    A(f"s_mov_b32 s{sSTEP}, 5376")
    A(f"s_cselect_b32 s{sSTEP}, 8192, s{sSTEP}")
    A(f"s_mov_b32 s{sT0}, 1024")
    A(f"s_cselect_b32 s{sT0}, 896, s{sT0}")
    A(f"s_cselect_b32 s{sT1}, 3, 4")
    A(f"s_cselect_b32 s{sT2}, 6, 0")
    A(f"s_cselect_b32 s{sT3}, 48, 64")
    A(f"s_cselect_b32 s{sLDS}, 8, 7")
    A(f"s_mul_i32 s{sT0}, s{sT0}, s{sWAVE}")
    A(f"s_lshl_b32 s{sT2}, 8, s{sT2}")
    A(f"v_lshlrev_b32 v13, s{sT1}, v{vL}")
    A(f"v_cmp_gt_u32 vcc, s{sT3}, v{vL}")
    A(f"buffer_load_dwordx2 v[16:17], v13, s[{sB}:{sB+3}], s{sT0} offen")
    A(f"v_add_u32 v13, s{sT2}, v13")
    A(f"v_mov_b32 v{vT}, 0x100000")
    A(f"v_cndmask_b32 v13, v{vT}, v13, vcc")
    A(f"buffer_load_dwordx2 v[18:19], v13, s[{sB}:{sB+3}], s{sT0} offen")
    A(f"s_mul_i32 s{sA+2}, s{sSTEP}, 448")
    A(f"s_mov_b32 s{sA+3}, 0x20000")
    A(f"v_lshrrev_b32 v{vRO}, 3, v{vL}")
    A(f"v_and_b32 v{vSW}, 7, v{vL}")
    A(f"v_and_b32 v{vT}, 2, v{vRO}")
    A(f"v_xor_b32 v{vSW}, v{vSW}, v{vT}")
    A(f"v_lshlrev_b32 v{vSW}, 4, v{vSW}")
    A(f"s_and_b32 s{sT1}, s{sWAVE}, 1")
    A(f"s_lshl_b32 s{sT1}, s{sT1}, 6")
    A(f"v_xor_b32 v{vSW}, s{sT1}, v{vSW}")
    A(f"v_mad_u32_u24 v{vDM}, v{vRO}, s{sSTEP}, v{vSW}")
    A(f"s_lshl_b32 s{sSTART}, s{SID}, s{sLDS}")
    A(f"s_lshl_b32 s{sSTEP}, s{sSTEP}, 3")
    A(f"s_mul_i32 s{sT0}, s{sWAVE}, 7")
    A(f"s_mul_i32 s{sT1}, s{sT0}, s{sSTEP}")
    A(f"s_add_u32 s{sSTART}, s{sSTART}, s{sT1}")
    A(f"s_lshl_b32 s{sLDS}, s{sT0}, 10")
    dma(7, True)
    def consts():
        srd(g, sWS, P_WS, WS_SIZE)
        A(f"s_mov_b32 s{sM48}, -1"); A(f"s_mov_b32 s{sM48+1}, 0x0000ffff")
        A(f"s_mov_b32 s{sHI}, 0xffff0000")
        A(f"s_mov_b32 s{sRETRY}, 0x80000")
        A(f"s_mov_b32 s{sM1}, 0xffff0000"); A(f"s_mov_b32 s{sM1+1}, 0")
        A(f"s_mov_b32 s{sM2}, 0"); A(f"s_mov_b32 s{sM2+1}, 0xffff")
        A(f"s_mov_b32 s{sM3}, 0"); A(f"s_mov_b32 s{sM3+1}, 0xffff0000")
        A(f"s_mov_b32 s{sQ1}, 0x22222222"); A(f"s_mov_b32 s{sQ1+1}, 0x22222222")
        A(f"s_mov_b32 s{sQ2}, 0x44444444"); A(f"s_mov_b32 s{sQ2+1}, 0x44444444")
        A(f"s_mov_b32 s{sQ3}, 0x88888888"); A(f"s_mov_b32 s{sQ3+1}, 0x88888888")
        if opt.get("stamps"):
            for i in range(1, NSTAMP): A(f"s_mov_b32 s{92+i}, 0")
    def wfrags(addr, rowbytes, dst=64):
        for ks in range(14):
            r = dst + 4*ks
            A(f"ds_read_b64_tr_b16 v[{r}:{r+1}], v{addr} offset:{ks*32*rowbytes}")
            A(f"ds_read_b64_tr_b16 v[{r+2}:{r+3}], v{addr} offset:{ks*32*rowbytes + 4*rowbytes}")
            if ks % 4 == 3: A("s_waitcnt lgkmcnt(6)")
    def gemv_pub(abase, astride, bstride):
        A(f"v_mul_u32_u24 v{vT}, {astride}, v{c4}")
        A(f"v_lshl_add_u32 v{vT}, v{vGR}, 4, v{vT}")
        A(f"v_add_u32 v{vT}, {abase}, v{vT}")
        A("s_waitcnt lgkmcnt(0)")
        for ks in range(14):
            A(f"ds_read_b128 v[{128+4*ks}:{131+4*ks}], v{vT} offset:{64*ks}")
        for ks in range(14):
            A(f"s_waitcnt lgkmcnt({13-ks})")
            c = "0" if ks == 0 else "v[16:19]"
            A(f"v_mfma_f32_16x16x32_bf16 v[16:19], v[{64+4*ks}:{67+4*ks}], v[{128+4*ks}:{131+4*ks}], {c}")
        A(f"v_mul_u32_u24 v{vT}, {bstride}, v{c4}")
        A(f"v_lshl_add_u32 v{vT}, v{vGR}, 4, v{vT}")
        A(f"v_mov_b32 v22, 0")
        A(f"v_mov_b32 v23, s{sTAG}")
        A(f"s_mov_b32 exec_lo, 0x000f000f")
        A(f"s_mov_b32 exec_hi, 0x000f000f")
        g.nop(2)
        A(f"v_cvt_pk_bf16_f32 v20, v16, v17")
        A(f"v_cvt_pk_bf16_f32 v21, v18, v19")
        A(f"buffer_store_dwordx4 v[20:23], v{vT}, s[{sWS}:{sWS+3}], s{sT3} offen sc1")
        A("s_mov_b64 exec, -1")
    A(f"s_cmp_eq_u32 s{sS}, 7")
    A("s_cbranch_scc1 L_svc")
    consts()
    A(f"s_cmp_lt_u32 s{sWAVE}, 4")
    A("s_cbranch_scc0 L_m1")
    A("s_waitcnt vmcnt(7)")
    get_tag(g)
    for i in range(4): unpack(g, 16+i, 24+2*i, 25+2*i)
    A(f"s_lshl_b32 s{sT2}, s{sWAVE}, 10")
    A(f"s_add_u32 s{sT2}, s{sT2}, {L_SC}")
    A(f"v_add_u32 v{vT}, s{sT2}, v{vL16}")
    for i in range(8): A(f"v_mul_f32 v{32+i}, {f2u(-LOG2E):#x}, v{24+i}")
    for i in range(8): A(f"v_exp_f32 v{32+i}, v{32+i}")
    for i in range(8): A(f"v_add_f32 v{32+i}, 1.0, v{32+i}")
    for i in range(8): A(f"v_rcp_f32 v{32+i}, v{32+i}")
    for i in range(8): A(f"v_mul_f32 v{24+i}, v{24+i}, v{32+i}")
    for i in range(4): A(f"v_cvt_pk_bf16_f32 v{24+i}, v{24+2*i}, v{25+2*i}")
    A(f"ds_write_b128 v{vT}, v[24:27]")
    A(f"v_lshrrev_b32 v13, 2, v{vJ}")
    A(f"v_lshl_add_u32 v13, v{vGR}, 3, v13")
    A(f"v_lshlrev_b32 v13, 7, v13")
    A(f"v_lshl_add_u32 v13, v{c4}, 3, v13")
    A(f"v_bfe_u32 v{vT}, v{vL}, 3, 2")
    A(f"v_xor_b32 v{vT}, s{sWAVE}, v{vT}")
    A(f"v_lshl_add_u32 v13, v{vT}, 5, v13")
    A(f"s_lshl_b32 s{sT3}, s{SID}, 8")
    A(f"s_lshl_b32 s{sT0}, s{sWAVE}, 6")
    A(f"s_add_u32 s{sT3}, s{sT3}, s{sT0}")
    A(f"s_add_u32 s{sT3}, s{sT3}, {WS_M}")
    g.lbl("L_m1")
    A("s_waitcnt vmcnt(0) lgkmcnt(0)")
    A("s_barrier")
    A(f"s_cmp_lt_u32 s{sWAVE}, 4")
    A("s_cbranch_scc0 L_m2")
    wfrags(13, 128)
    gemv_pub(L_SC, 896, MB)
    stamp(g, 1)
    g.lbl("L_m2")
    k_tile(g, VM(g, 0), polK, sKB, 0, vK)
    A("s_branch L_main1")
    g.lbl("L_main0")
    consts()
    g.lbl("L_main1")
    srd(g, sV, P_V, 64 << 20)
    A(f"v_lshlrev_b32 v13, 12, v{vGR}")
    A(f"v_lshl_add_u32 v13, v{vJ}, 4, v13")
    RS = opt.get("RS", 512)
    A(f"v_lshrrev_b32 v{vVO}, 2, v{vJ}")
    A(f"v_mul_u32_u24 v{vVO}, {RS-512}, v{vVO}")
    A(f"v_add_u32 v{vVO}, v{vVO}, v{vKO}")
    A(f"v_mul_u32_u24 v{vVU}, {4*RS}, v{vGR}")
    A(f"v_lshl_add_u32 v{vVU}, v{vJ}, 4, v{vVU}")
    A(f"s_mov_b32 s{sR8}, 0xff00ff00"); A(f"s_mov_b32 s{sR8+1}, 0xff00ff00")
    A(f"s_mov_b32 s{sPLO}, 0x05040100"); A(f"s_mov_b32 s{sPHI}, 0x07060302")
    A(f"s_mov_b32 s{sC}, {f2u(0.0625*LOG2E):#x}")
    k_tile(g, vm, polK, sKB, 8192, vK+32)
    prio(2)
    v_group(g, VM(g, W, W), polV, 0)
    v_group(g, VM(g, W, W), polV, 1)
    get_tag(g)
    NU = 144
    TY = opt.get("TY", 32)
    A(f"s_lshl_b32 s{sT0}, s{sGRP}, 8")
    A(f"s_add_u32 s{sT0}, s{sT0}, {WS_CNT}")
    A(f"s_add_u32 s{sCNT}, s{P_WS}, s{sT0}")
    A(f"s_addc_u32 s{sCNT+1}, s{P_WS+1}, 0")
    A(f"s_lshl_b32 s{sKB}, s{sGRP}, 21")
    if GR:
        A(f"s_mul_i32 s{sXO}, s{sGRP}, {2*GR}")
        A(f"s_add_u32 s{sXO}, s{sXO}, 112")
    else:
        A(f"s_add_u32 s{sKB}, s{sKB}, {1792*512}")
    A(f"s_cmp_lt_u32 s{sWAVE}, 4")
    A(f"s_mov_b32 s{sLIM}, {TY}")
    A(f"s_cselect_b32 s{sLIM}, {NU}, s{sLIM}")
    TB = opt.get("TB", 0)
    sBU = sFAST
    if TB:
        A(f"s_cmp_ge_u32 s{sWAVE}, {8 - opt.get('NB', 4)}")
        A(f"s_cselect_b32 s{sBU}, 1, 0")
    g.lbl("L_peek")
    A(f"s_mov_b64 s[{sCX+2}:{sCX+3}], 0")
    A(f"s_atomic_add_x2 s[{sCX+2}:{sCX+3}], s[{sCNT}:{sCNT+1}], 0 glc")
    A("s_waitcnt lgkmcnt(0)")
    A(f"s_cmp_eq_u32 s{sCX+3}, s{sTAG}")
    A("s_cbranch_scc1 L_peek_ok")
    A(f"s_mov_b32 s{sCX}, 0")
    A(f"s_mov_b32 s{sCX+1}, s{sTAG}")
    A(f"s_atomic_cmpswap_x2 s[{sCX}:{sCX+3}], s[{sCNT}:{sCNT+1}], 0 glc")
    A("s_waitcnt lgkmcnt(0)")
    A(f"s_sub_u32 s{sRETRY}, s{sRETRY}, 1")
    A("s_cbranch_scc0 L_peek")
    A(f"s_mov_b32 s{sRETRY}, 0")
    g.lbl("L_peek_ok")
    A(f"s_mov_b32 s{sTK}, s{sCX+2}")
    ncl = [0]
    def claim():
        ncl[0] += 1
        A(f"s_cmp_lt_u32 s{sTK}, s{sLIM}")
        A(f"s_mov_b32 s{sTK}, 0xffff")
        A(f"s_cbranch_scc0 L_nc{ncl[0]}")
        A(f"s_mov_b32 s{sTK}, 1")
        A(f"s_atomic_add s{sTK}, s[{sCNT}:{sCNT+1}], 0 glc")
        g.lbl(f"L_nc{ncl[0]}")
    def unit_base():
        if GR:
            A(f"s_add_u32 s{sUB}, s{sTK}, s{sXO}")
            A(f"s_and_b32 s{sUB}, s{sUB}, 255")
            A(f"s_lshl_b32 s{sUB}, s{sUB}, 13")
        elif RS != 512:
            n = RS // 512
            A(f"s_and_b32 s{sT0}, s{sTK}, {n-1}")
            A(f"s_lshl_b32 s{sT0}, s{sT0}, 9")
            A(f"s_andn2_b32 s{sUB}, s{sTK}, {n-1}")
            A(f"s_lshl_b32 s{sUB}, s{sUB}, 13")
            A(f"s_add_u32 s{sUB}, s{sUB}, s{sT0}")
        else:
            A(f"s_lshl_b32 s{sUB}, s{sTK}, 13")
        A(f"s_add_u32 s{sUB}, s{sUB}, s{sKB}")
    OS = opt.get("OS", 0)
    if OS:
        A(f"s_cmp_lt_u32 s{sWAVE}, 4")
        A(f"s_cselect_b32 s{sTK}, 0x7fff, s{sTK}")
    claim()
    def qloads():
        for i in range(2):
            A(f"buffer_load_dwordx4 v[{16+4*i}:{19+4*i}], v{vL16}, s[{sWS}:{sWS+3}], s{sPX} offen offset:{1024*i} sc1")
    A(f"s_lshl_b32 s{sT1}, s{sB_}, 14")
    A(f"s_lshl_b32 s{sT2}, s{sKVH}, 11")
    A(f"s_add_u32 s{sT1}, s{sT1}, s{sT2}")
    A(f"s_add_u32 s{sPX}, s{sT1}, {WS_Q}")
    QLATE = opt.get("QLATE", 1)
    if not QLATE: qloads()
    if OS:
        A(f"s_cmp_lt_u32 s{sWAVE}, 4")
        A("s_cbranch_scc1 L_yp")
        prio(1)
    else:
        prio(1)
        A(f"s_cmp_lt_u32 s{sWAVE}, 4")
        A("s_cbranch_scc0 L_yp")
        prio(0)
    g.lbl("L_yp")
    A("s_waitcnt lgkmcnt(0)")
    A(f"s_cmp_lt_u32 s{sTK}, {NU}")
    A(f"s_cbranch_scc0 {'L_qpoll' if QLATE else 'L_qwait'}")
    unit_base()
    k_unit(g, VM(g, W, W), polK)
    if QLATE: qloads()
    v_unit(g, VM(g, W, W), polV)
    A(f"s_waitcnt vmcnt({8 if QLATE else 16})")
    A("s_branch L_qchk")
    g.lbl("L_qpoll")
    qloads()
    g.lbl("L_qwait")
    A("s_waitcnt vmcnt(0)")
    g.lbl("L_qchk")
    check_tags(g, [19, 23], "L_qpoll")
    stamp(g, 3)
    A(f"v_lshlrev_b32 v{vT+2}, 3, v{vL}")
    A(f"v_add_u32 v{vT+2}, {L_Q}, v{vT+2}")
    A(f"ds_write_b64 v{vT+2}, v[16:17]")
    A(f"ds_write_b64 v{vT+2}, v[20:21] offset:512")
    A(f"v_bfe_u32 v{vT}, v{vJ}, 2, 1")
    A(f"v_lshlrev_b32 v{vT}, 9, v{vT}")
    A(f"v_lshl_add_u32 v{vT}, v{vGR}, 6, v{vT}")
    A(f"v_and_b32 v{vT+1}, 3, v{vL}")
    A(f"v_lshl_add_u32 v{vT}, v{vT+1}, 4, v{vT}")
    A(f"v_add_u32 v{vT}, {L_Q}, v{vT}")
    QL, QH = 48, 56
    A(f"ds_read_b128 v[{QL}:{QL+3}], v{vT}")
    A(f"ds_read_b128 v[{QL+4}:{QL+7}], v{vT} offset:256")
    A(f"s_waitcnt lgkmcnt(0)")
    for i in range(8):
        A(f"v_cndmask_b32 v{QH+i}, 0, v{QL+i}, s[{sR8}:{sR8+1}]")
    for i in range(8):
        A(f"v_cndmask_b32 v{QL+i}, v{QL+i}, 0, s[{sR8}:{sR8+1}]")
    g.nop(2)
    def qk_tile(src, D0):
        for jj in range(8):
            kq, blk = jj >> 1, jj & 1
            d = D0 + 4*(kq >> 1)
            q = (QH if (kq & 1) else QL) + 4*blk
            r = src + 4*jj
            c = "0" if (jj & 3) == 0 else f"v[{d}:{d+3}]"
            A(f"v_mfma_f32_16x16x32_bf16 v[{d}:{d+3}], v[{q}:{q+3}], v[{r}:{r+3}], {c}")
    SD = 16
    for t in range(2): qk_tile(vK + 32*t, SD + 8*t)
    PFA, PFU, vPW, vPR, UD = 176, 180, 182, 183, 184
    A(f"v_and_b32 v12, 1, v{vGR}")
    A(f"v_and_b32 v{vT}, 1, v{vL}")
    A(f"v_lshlrev_b32 v{vPW}, 3, v{vT}")
    A(f"v_lshrrev_b32 v13, 1, v{vGR}")
    A(f"v_lshl_add_u32 v{vPW}, v13, 2, v{vPW}")
    A(f"v_lshrrev_b32 v13, 2, v{vJ}")
    A(f"v_add_u32 v{vPW}, v{vPW}, v13")
    A(f"v_lshlrev_b32 v{vPW}, 1, v{vPW}")
    A(f"v_lshl_add_u32 v{vPW}, v12, 7, v{vPW}")
    A(f"s_lshl_b32 s{sT1}, s{sWAVE}, 9")
    A(f"s_add_u32 s{sT1}, s{sT1}, {L_P}")
    A(f"v_lshlrev_b32 v{vPR}, 7, v13")
    A(f"v_add_u32 v{vPW}, s{sT1}, v{vPW}")
    A(f"v_bfe_u32 v13, v{vL}, 1, 1")
    A(f"v_lshl_add_u32 v13, v13, 5, v{vPW}")
    A(f"v_add_u32 v{vPR}, s{sT1}, v{vPR}")
    A(f"v_lshl_add_u32 v12, v{vGR}, 4, v{vPR}")
    A(f"v_lshl_add_u32 v{vPR}, v{vGR}, 3, v{vPR}")
    A(f"s_mov_b32 s{sR8}, 0xaaaaaaaa"); A(f"s_mov_b32 s{sR8+1}, 0xaaaaaaaa")
    for d in range(4):
        D = SD + 4*d
        sel4(g, D, D, D+1, D+2, D+3, sQ1, sQ2, sQ3)
    for pat in ("quad_perm:[1,0,3,2]", "quad_perm:[2,3,0,1]"):
        for d in range(4):
            D = SD + 4*d
            A(f"v_add_f32 v{D}, v{D}, v{D} {pat} {DPP}")
    S0, S1 = 10, 11
    sel4(g, S0, SD, SD+4, SD+8, SD+12, sQ1, sQ2, sQ3)
    rnd1(g, S0)
    A(f"v_mov_b32 v{vM}, v{S0}")
    wave_reduce(g, "v_max_f32", [vM], [17], swaps=("v_permlane32_swap_b32",))
    A(f"v_sub_f32 v{S0}, v{S0}, v{vM}")
    A(f"v_mul_f32 v{S0}, s{sC}, v{S0}")
    A(f"v_exp_f32 v{vLS}, v{S0}")
    g.nop(1)
    A(f"v_cvt_pk_bf16_f32 v20, v{vLS}, v{vLS}")
    A(f"v_lshlrev_b32 v20, 16, v20")
    A(f"v_sub_f32 v20, v{vLS}, v20")
    A(f"v_cvt_pk_bf16_f32 v20, v{vLS}, v20")
    A(f"ds_write_b16 v13, v20")
    A(f"ds_write_b16_d16_hi v13, v20 offset:256")
    A(f"ds_read_b128 v[{PFA}:{PFA+3}], v12")
    A("s_waitcnt lgkmcnt(0)")
    ACCB = (16, 128)
    PT = 160
    for eta in range(2):
        R = vVE + 32*eta
        for c in range(4):
            T = PT + 8*(c & 1)
            for m in range(4):
                A(f"v_perm_b32 v{T+m}, v{R+4*(2*m+1)+c}, v{R+4*(2*m)+c}, s{sPLO}")
            for m in range(4):
                A(f"v_perm_b32 v{T+4+m}, v{R+4*(2*m+1)+c}, v{R+4*(2*m)+c}, s{sPHI}")
            g.nop(1)
            for hh in range(2):
                acc = ACCB[eta] + 4*(2*c + hh)
                A(f"v_mfma_f32_16x16x32_bf16 v[{acc}:{acc+3}], v[{PFA}:{PFA+3}], v[{T+4*hh}:{T+4*hh+3}], 0")
    A(f"v_and_b32 v12, 1, v{vGR}")
    A(f"v_lshlrev_b32 v{vRW}, 6, v12")
    A(f"s_lshl_b32 s{sT0}, s{sWAVE}, 3")
    A(f"s_add_u32 s{sT0}, s{sT0}, {L_RED}")
    A(f"v_add_u32 v{vRW}, s{sT0}, v{vRW}")
    A(f"s_bfe_u32 s{sT0}, s{sWAVE}, 0x10001")
    A(f"s_lshl_b32 s{sT0}, s{sT0}, 6")
    A(f"s_add_u32 s{sT0}, s{sT0}, {L_RED}")
    A(f"v_and_b32 v{vRR}, 7, v{vL}")
    A(f"v_lshl_add_u32 v{vRR}, v{vRR}, 3, s{sT0}")
    A(f"v_lshlrev_b32 v{vOLW}, 10, v12")
    A(f"v_lshl_add_u32 v{vOLW}, v{vJ}, 5, v{vOLW}")
    A(f"v_lshrrev_b32 v12, 1, v{vGR}")
    A(f"v_lshl_add_u32 v{vOLW}, v12, 4, v{vOLW}")
    A(f"s_lshl_b32 s{sT1}, s{sWAVE}, 11")
    A(f"s_add_u32 s{sT1}, s{sT1}, {L_OL}")
    A(f"v_add_u32 v{vOLW}, s{sT1}, v{vOLW}")
    A(f"s_and_b32 s{sT2}, s{sWAVE}, 3")
    A(f"s_lshl_b32 s{sT0}, s{sT2}, 9")
    A(f"s_add_u32 s{sT0}, s{sT0}, {L_OL}")
    A(f"v_lshl_add_u32 v{vOLR}, v{vL}, 3, s{sT0}")
    A(f"v_lshrrev_b32 v82, 5, v{vL}")
    A(f"v_mul_u32_u24 v82, {4096-512}, v82")
    A(f"v_add_u32 v82, v82, v{vL16}")
    A(f"s_lshl_b32 s{sO_DST}, s{sGRP}, 15")
    A(f"s_lshl_b32 s{sT1}, s{sT2}, 13")
    A(f"s_add_u32 s{sO_DST}, s{sO_DST}, s{sT1}")
    A(f"s_lshl_b32 s{sT1}, s{sS}, 9")
    A(f"s_add_u32 s{sO_DST}, s{sO_DST}, s{sT1}")
    A(f"s_add_u32 s{sO_DST}, s{sO_DST}, {WS_O}")
    PUB = 84
    A(f"v_mov_b32 v{PUB+3}, s{sTAG}")
    A(f"s_cmp_lt_u32 s{sTK}, {NU}")
    A("s_cbranch_scc1 L_top")
    if OS:
        A(f"s_cmp_lt_u32 s{sWAVE}, 4")
        A("s_cbranch_scc0 L_nounit")
        prio(0)
        A(f"s_mov_b32 s{sTK}, 0")
        claim()
        A("s_waitcnt lgkmcnt(0)")
        A(f"s_cmp_lt_u32 s{sTK}, {NU}")
        A("s_cbranch_scc0 L_nounit")
        unit_base()
        k_unit(g, VM(g, 0), polK)
        v_unit(g, VM(g, 0), polV)
        A("s_branch L_top")
        g.lbl("L_nounit")
    if TB:
        A(f"s_cmp_eq_u32 s{sBU}, 0")
        A("s_cbranch_scc1 L_nob")
        g.lbl("L_burst")
        A(f"s_mov_b32 s{sBU}, 0")
        g.lbl("L_bw")
        A("s_sleep 8")
        A(f"s_load_dword s{sT3}, s[{sCNT}:{sCNT+1}], 0 glc")
        A("s_waitcnt lgkmcnt(0)")
        A(f"s_cmp_ge_u32 s{sT3}, {TB}")
        A("s_cbranch_scc1 L_bgo")
        A(f"s_sub_u32 s{sRETRY}, s{sRETRY}, 1")
        A("s_cbranch_scc0 L_bw")
        A(f"s_mov_b32 s{sRETRY}, 0")
        g.lbl("L_bgo")
        A(f"s_mov_b32 s{sLIM}, 0")
        A(f"s_mov_b32 s{sTK}, 1")
        A(f"s_atomic_add s{sTK}, s[{sCNT}:{sCNT+1}], 0 glc")
        A("s_waitcnt lgkmcnt(0)")
        A(f"s_cmp_lt_u32 s{sTK}, {NU}")
        A("s_cbranch_scc0 L_nob")
        unit_base()
        k_unit(g, VM(g, 0), polK)
        v_unit(g, VM(g, 0), polV)
        A("s_branch L_top")
        g.lbl("L_nob")
    wave_reduce(g, "v_add_f32", [vLS], [12], swaps=("v_permlane32_swap_b32",))
    A(f"ds_write_b64 v{vRW}, v[{vM}:{vLS}]")
    A("s_branch L_exit2")

    g.lbl("L_top")
    CE = opt.get("CE", 10)
    A(f"s_waitcnt vmcnt({CE})")
    if opt.get("trace"):
        A("s_waitcnt vmcnt(8)")
        A(f"s_memrealtime s[{sST}:{sST+1}]")
        for i in range(101, 93, -1): A(f"s_mov_b32 s{i}, s{i-1}")
        A("s_waitcnt lgkmcnt(0)")
        A(f"s_sub_u32 s93, s{sST}, s92")
        A(f"s_lshl_b32 s93, s93, 8")
        A(f"s_or_b32 s93, s93, s{sTK}")
    claim()
    A("s_waitcnt vmcnt(8)")
    qk_tile(vKU, UD)
    g.nop(5)
    sel4(g, UD, UD, UD+1, UD+2, UD+3, sQ1, sQ2, sQ3)
    sel4(g, UD+4, UD+4, UD+5, UD+6, UD+7, sQ1, sQ2, sQ3)
    for pat in ("quad_perm:[1,0,3,2]", "quad_perm:[2,3,0,1]"):
        g.nop(1)
        for D in (UD, UD+4):
            A(f"v_add_f32 v{D}, v{D}, v{D} {pat} {DPP}")
    A(f"v_cndmask_b32 v{S1}, v{UD}, v{UD+4}, s[{sR8}:{sR8+1}]")
    rnd1(g, S1)
    A(f"v_max_f32 v{S0}, v{S1}, v{vM}")
    for pat in ("quad_perm:[1,0,3,2]", "row_half_mirror", "row_mirror"):
        g.nop(2)
        A(f"v_max_f32 v{S0}, v{S0}, v{S0} {pat} {DPP}")
    A(f"v_mov_b32 v12, v{S0}")
    g.nop(2)
    A(f"v_permlane32_swap_b32 v{S0}, v12")
    A(f"v_max_f32 v{S0}, v{S0}, v12")
    A(f"v_sub_f32 v{S1}, v{S1}, v{S0}")
    A(f"v_sub_f32 v12, v{vM}, v{S0}")
    A(f"v_cmp_neq_f32 vcc, v{vM}, v{S0}")
    A(f"v_mul_f32 v{S1}, s{sC}, v{S1}")
    A(f"v_mul_f32 v12, s{sC}, v12")
    A(f"v_exp_f32 v{S1}, v{S1}")
    A(f"v_exp_f32 v12, v12")
    A(f"v_mov_b32 v{vM}, v{S0}")
    A(f"v_cvt_pk_bf16_f32 v13, v{S1}, v{S1}")
    A(f"v_mul_f32 v{vLS}, v{vLS}, v12")
    A(f"v_lshlrev_b32 v13, 16, v13")
    A(f"v_sub_f32 v13, v{S1}, v13")
    A(f"v_cvt_pk_bf16_f32 v13, v{S1}, v13")
    A(f"ds_write_b16 v{vPW}, v13 offset:64")
    A(f"ds_write_b16_d16_hi v{vPW}, v13 offset:{256+64}")
    A(f"ds_read_b64 v[{PFU}:{PFU+1}], v{vPR} offset:64")
    A(f"v_fma_f32 v{vLS}, v{S1}, 0.5, v{vLS}")
    A("s_cbranch_vccz L_nors")
    for B in ACCB:
        for e in range(8):
            A(f"v_mul_f32 v{B+4*e}, v{B+4*e}, v12")
    g.lbl("L_nors")
    A("s_waitcnt lgkmcnt(0)")
    A(f"s_cmp_lt_u32 s{sTK}, {NU}")
    A("s_cbranch_scc0 L_last")
    unit_base()
    k_unit(g, VM(g, 0), polK)
    g.lbl("L_pv")
    A("s_waitcnt vmcnt(8)")
    for eta in range(2):
        R = vVB + 16*eta
        for c in range(4):
            T = PT + 4*(c & 3)
            A(f"v_perm_b32 v{T}, v{R+4+c}, v{R+c}, s{sPLO}")
            A(f"v_perm_b32 v{T+1}, v{R+12+c}, v{R+8+c}, s{sPLO}")
            A(f"v_perm_b32 v{T+2}, v{R+4+c}, v{R+c}, s{sPHI}")
            A(f"v_perm_b32 v{T+3}, v{R+12+c}, v{R+8+c}, s{sPHI}")
        for c in range(4):
            T = PT + 4*(c & 3)
            for hh in range(2):
                acc = ACCB[eta] + 4*(2*c + hh)
                A(f"v_mfma_f32_16x16x16_bf16 v[{acc}:{acc+3}], v[{PFU}:{PFU+1}], v[{T+2*hh}:{T+2*hh+1}], v[{acc}:{acc+3}]")
    A(f"s_cmp_lt_u32 s{sTK}, {NU}")
    A("s_cbranch_scc0 L_exit")
    v_unit(g, VM(g, 0), polV)
    A("s_branch L_top")

    g.lbl("L_last")
    if TB:
        A(f"s_cmp_lg_u32 s{sBU}, 0")
        A("s_cbranch_scc1 L_last2")
    wave_reduce(g, "v_add_f32", [vLS], [12], swaps=("v_permlane32_swap_b32",))
    A(f"ds_write_b64 v{vRW}, v[{vM}:{vLS}]")
    stamp(g, 4)
    g.lbl("L_last2")
    A("s_waitcnt vmcnt(0)")
    A("s_branch L_pv")

    g.lbl("L_exit")
    if TB:
        A(f"s_cmp_lg_u32 s{sBU}, 0")
        A("s_cbranch_scc1 L_burst")
    g.lbl("L_exit2")
    stamp(g, 5)
    for eta, OUT in ((0, 88), (1, 92)):
        B = ACCB[eta]
        for i in range(4): A(f"v_permlane32_swap_b32 v{B+4*i}, v{B+4*(4+i)}")
        for i in range(4): A(f"v_add_f32 v{OUT+i}, v{B+4*i}, v{B+4*(4+i)}")
        A(f"ds_write_b128 v{vOLW}, v[{OUT}:{OUT+3}] offset:{512*eta}")
    A(f"s_cmp_lt_u32 s{sWAVE}, 4")
    A("s_waitcnt lgkmcnt(0)")
    A("s_cbranch_scc0 L_mlspin")
    A("s_barrier")
    A("s_branch L_fin")
    g.lbl("L_mls")
    A("s_sleep 2")
    g.lbl("L_mlspin")
    A(f"ds_read_b64 v[32:33], v{vRR}")
    A("s_waitcnt lgkmcnt(0)")
    A(f"v_cmp_eq_u32 vcc, 0, v33")
    retry_branch(g, "L_mls")
    A(f"v_max_f32 v34, v32, v32 quad_perm:[1,0,3,2] {DPP}")
    g.nop(2)
    A(f"v_max_f32 v34, v34, v34 quad_perm:[2,3,0,1] {DPP}")
    g.nop(2)
    A(f"v_max_f32 v34, v34, v34 row_half_mirror {DPP}")
    A(f"v_sub_f32 v32, v32, v34")
    A(f"v_mul_f32 v32, s{sC}, v32")
    A(f"v_exp_f32 v32, v32")
    g.nop(1)
    A(f"v_mul_f32 v33, v33, v32")
    SF = 4
    for pat in ("quad_perm:[1,0,3,2]", "quad_perm:[2,3,0,1]", "row_half_mirror"):
        g.nop(2)
        A(f"v_add_f32 v33, v33, v33 {pat} {DPP}")
    A(f"v_rcp_f32 v36, v33")
    A(f"v_log_f32 v{PUB+2}, v33")
    A(f"v_mul_f32 v32, v32, v36")
    A(f"v_fma_f32 v{PUB+2}, v34, s{sC}, v{PUB+2}")
    for k in range(8): A(f"v_readlane_b32 s{SF+k}, v32, {k}")
    A("s_barrier")
    order = (4, 5, 6, 7, 0, 1, 2, 3)
    for w in order:
        A(f"ds_read_b64 v[{16+2*w}:{17+2*w}], v{vOLR} offset:{2048*w}")
    for n, k in enumerate(order):
        r = f"s[{SF+(k&~1)}:{SF+(k&~1)+1}]"
        d = 36 + 2*(k & 1)
        A(f"s_waitcnt lgkmcnt({7-n})")
        if n < 2:
            m = "op_sel:[0,1] op_sel_hi:[1,1]" if k & 1 else "op_sel_hi:[1,0]"
            A(f"v_pk_mul_f32 v[{d}:{d+1}], v[{16+2*k}:{17+2*k}], {r} {m}")
        else:
            m = "op_sel:[0,1,0] op_sel_hi:[1,1,1]" if k & 1 else "op_sel_hi:[1,0,1]"
            A(f"v_pk_fma_f32 v[{d}:{d+1}], v[{16+2*k}:{17+2*k}], {r}, v[{d}:{d+1}] {m}")
    A(f"v_pk_add_f32 v[{PUB}:{PUB+1}], v[36:37], v[38:39]")
    A(f"buffer_store_dwordx4 v[{PUB}:{PUB+3}], v82, s[{sWS}:{sWS+3}], s{sO_DST} offen sc1")
    stamp(g, 6)
    A("s_branch L_fin")

    g.lbl("L_svc")
    A("v_mov_b32 v255, 0")
    A("v_mov_b32 v239, 0")
    A(f"v_mov_b32 v{vKO}, v{vRO}")
    A(f"v_mov_b32 v{vVO}, v{vSW}")
    A(f"s_and_b32 s{sB_}, s{sWAVE}, 3")
    def job_rows(ptr, stride, colshift, coladd, sb):
        srd(g, sA, ptr, 448*stride)
        A(f"s_mov_b32 s{sT0}, {stride}")
        A(f"v_mad_u32_u24 v{vDM}, v{vKO}, s{sT0}, v{vVO}")
        A(f"s_mov_b32 s{sSTEP}, {8*stride}")
        A(f"s_mul_i32 s{sSTART}, s{sWAVE}, {56*stride}")
        A(f"s_lshl_b32 s{sT0}, s{SID}, {colshift}")
        A(f"s_add_u32 s{sSTART}, s{sSTART}, s{sT0}")
        if coladd: A(f"s_add_u32 s{sSTART}, s{sSTART}, {coladd}")
        A(f"s_mul_i32 s{sLDS}, s{sWAVE}, 7168")
        if sb: A(f"s_add_u32 s{sLDS}, s{sLDS}, {sb}")
        dma(7, True)
    def job_lin(ptr, size, mul, add, sb):
        srd(g, sA, ptr, size)
        A(f"v_mov_b32 v{vDM}, v{vL16}")
        A(f"s_mov_b32 s{sSTEP}, 1024")
        A(f"s_mul_i32 s{sLDS}, s{sWAVE}, 7168")
        A(f"s_mul_i32 s{sSTART}, s{SID}, {mul}")
        A(f"s_add_u32 s{sSTART}, s{sSTART}, s{sLDS}")
        if add: A(f"s_add_u32 s{sSTART}, s{sSTART}, {add}")
        if sb: A(f"s_add_u32 s{sLDS}, s{sLDS}, {sb}")
        dma(7, False)
    job_rows(P_WQ, 8192, 8, 128, SB1)
    consts()
    A(f"s_lshr_b32 s{sT0}, s{sWAVE}, 1")
    A(f"s_mul_i32 s{sT0}, s{sT0}, 28")
    A(f"s_add_u32 s{sT0}, s{sT0}, s{SID}")
    RIS = opt.get("RIS", 2048)
    A(f"s_mul_i32 s{sT0}, s{sT0}, {RIS}")
    A(f"s_and_b32 s{sT1}, s{sWAVE}, 1")
    A(f"s_lshl_b32 s{sT1}, s{sT1}, 10")
    A(f"s_add_u32 s{sT0}, s{sT0}, s{sT1}")
    A(f"s_add_u32 s{sT0}, s{sT0}, {WS_RI}")
    A(f"s_cmp_lt_u32 s{SID}, 28")
    A(f"s_cselect_b32 s{sT0}, s{sT0}, {WS_SIZE}")
    for i in range(4): A(f"v_mov_b32 v{20+i}, -1")
    A(f"buffer_store_dwordx4 v[20:23], v{vL16}, s[{sWS}:{sWS+3}], s{sT0} offen sc1")
    vRW8 = 10
    A(f"v_lshrrev_b32 v{vRW8}, 2, v{vJ}")
    A(f"v_lshl_add_u32 v{vRW8}, v{vGR}, 3, v{vRW8}")
    A("s_waitcnt vmcnt(15)")
    get_tag(g)
    A(f"s_cmp_lt_u32 s{sWAVE}, 4")
    A("s_cbranch_scc0 L_s2")
    for i in range(4): unpack(g, 16+i, 24+2*i, 25+2*i)
    layernorm(g, 24, 32, 24, 8)
    for i in range(0, 8, 2): rnd2(g, 24+i, 25+i, vT)
    g.lbl("L_s2")
    A("s_waitcnt vmcnt(0)")
    A("s_barrier")
    vTA = 14
    A(f"v_lshlrev_b32 v{vTA}, 7, v{vRW8}")
    A(f"v_lshl_add_u32 v{vTA}, v{c4}, 3, v{vTA}")
    A(f"v_bfe_u32 v{vT}, v{vL}, 3, 2")
    A(f"v_xor_b32 v{vT}, s{sB_}, v{vT}")
    A(f"v_lshl_add_u32 v{vTA}, v{vT}, 5, v{vTA}")
    A(f"s_cmp_lt_u32 s{sWAVE}, 4")
    A(f"s_cselect_b32 s{sT0}, 0, {SB1}")
    A(f"v_add_u32 v13, s{sT0}, v{vTA}")
    vXB = 15
    A(f"v_add_u32 v{vXB}, 1024, v{vL16}")
    A(f"v_mov_b32 v{vT}, {WS_SIZE}")
    A(f"v_cndmask_b32 v{vXB}, v{vT}, v{vXB}, s[{sM48}:{sM48+1}]")
    A("s_cbranch_scc1 L_s_h")
    A(f"s_cmp_eq_u32 s{sWAVE}, 7")
    A("s_cbranch_scc0 L_s_fr")
    A(f"s_getreg_b32 s{sT0}, hwreg(HW_REG_XCC_ID)")
    A(f"v_mov_b32 v20, s{sT0}")
    A(f"v_mov_b32 v23, s{sTAG}")
    A(f"s_lshl_b32 s{sT1}, s{SID}, 4")
    A(f"s_add_u32 s{sT1}, s{sT1}, {WS_XC}")
    A("s_mov_b64 exec, 1")
    A(f"buffer_store_dwordx4 v[20:23], v{vL16}, s[{sWS}:{sWS+3}], s{sT1} offen sc1")
    A("s_mov_b64 exec, -1")
    g.lbl("L_s_fr")
    wfrags(13, 128)
    A("s_branch L_s3")
    g.lbl("L_s_h")
    A(f"s_mul_i32 s{sXO}, s{sB_}, {MB}")
    A(f"s_add_u32 s{sXO}, s{sXO}, {WS_M}")
    def hloads():
        for i, (va, off) in enumerate(((vL16, 0), (vXB, 0), (vL16, 1792), (vXB, 1792))):
            A(f"buffer_load_dwordx4 v[{32+4*i}:{35+4*i}], v{va}, s[{sWS}:{sWS+3}], s{sXO} offen offset:{off} sc1")
    hloads()
    wfrags(13, 128)
    A("s_branch L_hwait")
    g.lbl("L_hpoll")
    hloads()
    g.lbl("L_hwait")
    A("s_waitcnt vmcnt(0)")
    tags_ab(g, [35, 43], [39, 47])
    retry_branch(g, "L_hpoll")
    for i, r in enumerate((32, 33, 36, 37)):
        unpack(g, r, 16+2*i, 17+2*i)
        unpack(g, r+8, 48+2*i, 49+2*i)
    for i in range(8): A(f"v_add_f32 v{48+i}, 1.0, v{48+i}")
    for i in range(0, 8, 2): rnd2(g, 48+i, 49+i, vT)
    modulate_pack(g, 24, 48, 16, 24, vT, 8)
    A(f"s_mul_i32 s{sT2}, s{sB_}, {AS}")
    A(f"s_add_u32 s{sT2}, s{sT2}, {L_A}")
    A(f"v_lshl_add_u32 v{vT}, v{vL}, 3, s{sT2}")
    A(f"ds_write_b64 v{vT}, v[24:25]")
    A(f"s_mov_b64 exec, s[{sM48}:{sM48+1}]")
    A(f"ds_write_b64 v{vT}, v[26:27] offset:512")
    A("s_mov_b64 exec, -1")
    g.lbl("L_s3")
    A("s_waitcnt lgkmcnt(0)")
    A("s_barrier")
    A(f"s_lshl_b32 s{sT3}, s{SID}, 9")
    A(f"s_lshl_b32 s{sT0}, s{sWAVE}, 6")
    A(f"s_add_u32 s{sT3}, s{sT3}, s{sT0}")
    A(f"s_add_u32 s{sT3}, s{sT3}, {WS_Q}")
    gemv_pub(L_A, AS, 16384)
    stamp(g, 2)
    A("s_barrier")
    vFA = 13
    WOF, GUF, DNF = 64, 128, 184
    def fa():
        A(f"v_mul_u32_u24 v{vFA}, 896, v{vRW8}")
        A(f"v_lshl_add_u32 v{vFA}, v{c4}, 5, v{vFA}")
        A(f"s_lshl_b32 s{sT0}, s{sWAVE}, 7")
        A(f"v_add_u32 v{vFA}, s{sT0}, v{vFA}")
    def rowfrags(dst, per_tile, ks0):
        for t in range(4):
            for ks in range(2):
                r = dst + per_tile*t + 4*(ks0 + ks)
                A(f"ds_read_b64_tr_b16 v[{r}:{r+1}], v{vFA} offset:{ks*28672 + t*8}")
                A(f"ds_read_b64_tr_b16 v[{r+2}:{r+3}], v{vFA} offset:{ks*28672 + t*8 + 3584}")
            if t & 1: A("s_waitcnt lgkmcnt(4)")
    job_lin(P_WO, 4096*896, 114688, 0, SB0)
    job_lin(P_WO, 4096*896, 114688, 57344, SB1)
    fa()
    A("s_waitcnt vmcnt(7)")
    A("s_barrier")
    rowfrags(WOF, 16, 0)
    A("s_waitcnt lgkmcnt(0)")
    A("s_barrier")
    A(f"s_cmp_lt_u32 s{SID}, 28")
    A("s_cbranch_scc1 L_j3")
    A("s_waitcnt vmcnt(0)")
    A("s_branch L_j3b")
    g.lbl("L_j3")
    job_lin(P_WD, 1792*896, 57344, 0, SB0)
    A("s_waitcnt vmcnt(7)")
    g.lbl("L_j3b")
    A("s_barrier")
    A(f"v_add_u32 v{vFA}, {SB1}, v{vFA}")
    rowfrags(WOF, 16, 2)
    A(f"s_cmp_lt_u32 s{SID}, 28")
    A("s_cbranch_scc0 L_p5")
    A("s_waitcnt lgkmcnt(0)")
    A("s_barrier")
    job_rows(P_WU, 3584, 7, 0, SB1)
    A("s_waitcnt vmcnt(7)")
    A("s_barrier")
    A(f"v_subrev_u32 v{vFA}, {SB1}, v{vFA}")
    rowfrags(DNF, 8, 0)
    A("s_waitcnt lgkmcnt(0)")
    A("s_barrier")
    job_rows(P_WG, 3584, 7, 0, SB0)
    A("s_waitcnt vmcnt(0)")
    A("s_barrier")
    A(f"v_lshlrev_b32 v13, 7, v{vRW8}")
    A(f"v_bfe_u32 v{vT}, v{vL}, 3, 2")
    A(f"v_lshlrev_b32 v{vT}, 1, v{vT}")
    A(f"v_xor_b32 v{vT}, s{sWAVE}, v{vT}")
    A(f"v_lshl_add_u32 v13, v{vT}, 4, v13")
    A(f"v_and_b32 v{vT}, 1, v{vL}")
    A(f"v_lshl_add_u32 v13, v{vT}, 3, v13")
    A(f"v_bfe_u32 v{vT}, v{vL}, 1, 1")
    A(f"v_mul_u32_u24 v{vT}, {SB1}, v{vT}")
    A(f"v_add_u32 v13, v13, v{vT}")
    wfrags(13, 128, GUF)
    OC, SH = 240, 244
    GA, GB, XV = 248, 249, 250
    vHW, vAF, vGW, vGRD, vOUT = 251, 252, 253, 254, 255
    vX1, vIX = 239, 238
    A(f"s_cmp_lt_u32 s{sWAVE}, 4")
    A(f"s_cselect_b64 s[{sMH}:{sMH+1}], -1, s[{sM48}:{sM48+1}]")
    A(f"s_cselect_b64 s[{sR8}:{sR8+1}], 0, -1")
    A(f"v_cndmask_b32 v13, v{vL16}, v{vXB}, s[{sR8}:{sR8+1}]")
    A(f"s_mul_i32 s{sXO}, s{sB_}, {MB}")
    A(f"s_add_u32 s{sXO}, s{sXO}, {WS_M + 2*1792}")
    A(f"v_and_b32 v{vT}, 1, v{vGR}")
    A(f"v_lshrrev_b32 v{vX1}, 1, v{vGR}")
    A(f"v_lshl_add_u32 v{vX1}, v{vT}, 1, v{vX1}")
    A(f"v_lshl_add_u32 v{vOUT}, v{vX1}, 2, v{c4}")
    A(f"v_lshlrev_b32 v{vOUT}, 1, v{vOUT}")
    A(f"v_lshlrev_b32 v{vX1}, 4, v{vX1}")
    A(f"s_lshl_b32 s{sT0}, s{SID}, 6")
    A(f"v_add_u32 v{vDM}, s{sT0}, v{vX1}")
    A(f"s_add_u32 s{sT1}, s{sXO}, {3*1792}")
    A(f"s_mul_i32 s{sPX}, s{sB_}, 896")
    A(f"s_lshl_b32 s{sT0}, s{SID}, 5")
    A(f"s_add_u32 s{sPX}, s{sPX}, s{sT0}")
    srd(g, sB, P_X, 3584)
    A(f"buffer_load_ushort v{XV}, v{vOUT}, s[{sB}:{sB+3}], s{sPX} offen")
    if opt.get("OT", 0):
        srd(g, sA, P_OUT, 3584)
        A(f"buffer_load_ushort v{GA}, v{vOUT}, s[{sA}:{sA+3}], s{sPX} offen")
    g.lbl("L_mpoll")
    A(f"buffer_load_dwordx4 v[16:19], v13, s[{sWS}:{sWS+3}], s{sXO} offen offset:1792 sc1")
    A(f"buffer_load_dwordx4 v[20:23], v13, s[{sWS}:{sWS+3}], s{sXO} offen offset:3584 sc1")
    A(f"buffer_load_dwordx4 v[24:27], v{vDM}, s[{sWS}:{sWS+3}], s{sXO} offen sc1")
    A(f"buffer_load_dwordx4 v[28:31], v{vDM}, s[{sWS}:{sWS+3}], s{sT1} offen sc1")
    A("s_waitcnt vmcnt(0)")
    A(f"v_xor_b32 v{vT}, s{sTAG}, v19")
    A(f"v_bitop3_b32 v{vT}, v{vT}, v23, s{sTAG} bitop3:0xf6")
    A(f"v_cndmask_b32 v{vT}, 0, v{vT}, s[{sMH}:{sMH+1}]")
    A(f"v_bitop3_b32 v{vT}, v{vT}, v27, s{sTAG} bitop3:0xf6")
    A(f"v_bitop3_b32 v{vT}, v{vT}, v31, s{sTAG} bitop3:0xf6")
    A(f"v_cmp_ne_u32 vcc, 0, v{vT}")
    retry_branch(g, "L_mpoll")
    for i in range(2):
        unpack(g, 16+i, SH+2*i, SH+2*i+1)
        unpack(g, 20+i, OC+2*i, OC+2*i+1)
    for i in range(4): A(f"v_add_f32 v{OC+i}, 1.0, v{OC+i}")
    for i in range(0, 4, 2): rnd2(g, OC+i, OC+i+1, vT)
    A(f"s_mov_b32 vcc_lo, 0xcccccccc"); A(f"s_mov_b32 vcc_hi, 0xcccccccc")
    A(f"v_cndmask_b32 v{GA}, v24, v25, vcc")
    A(f"v_cndmask_b32 v{GB}, v28, v29, vcc")
    A(f"v_and_b32 v{vT}, 1, v{vL}")
    A(f"v_lshlrev_b32 v{vT}, 4, v{vT}")
    A(f"v_lshrrev_b32 v{GA}, v{vT}, v{GA}")
    A(f"v_lshrrev_b32 v{GB}, v{vT}, v{GB}")
    A(f"v_lshlrev_b32 v{GA}, 16, v{GA}")
    A(f"v_lshlrev_b32 v{GB}, 16, v{GB}")
    A(f"v_lshlrev_b32 v{XV}, 16, v{XV}")
    A(f"s_mul_i32 s{sT0}, s{sB_}, 960")
    A(f"s_lshr_b32 s{sT2}, s{sWAVE}, 2")
    A(f"s_lshl_b32 s{sT2}, s{sT2}, 8")
    A(f"s_add_u32 s{sT0}, s{sT0}, s{sT2}")
    A(f"s_add_u32 s{sT0}, s{sT0}, {L_A}")
    A(f"v_lshl_add_u32 v{vHW}, v{vL}, 2, s{sT0}")
    A(f"v_bfe_u32 v{vT}, v{vL}, 1, 1")
    A(f"v_lshl_add_u32 v{vT}, v{vGR}, 1, v{vT}")
    A(f"v_mul_u32_u24 v{vGW}, 96, v{vT}")
    A(f"v_and_b32 v{vT}, 12, v{vJ}")
    A(f"v_add_u32 v{vGW}, v{vGW}, v{vT}")
    A(f"v_and_b32 v{vT}, 1, v{vL}")
    A(f"v_lshl_add_u32 v{vGW}, v{vT}, 1, v{vGW}")
    A(f"s_lshl_b32 s{sT0}, s{sWAVE}, 3")
    A(f"s_add_u32 s{sT0}, s{sT0}, {L_G}")
    A(f"v_add_u32 v{vGW}, s{sT0}, v{vGW}")
    A(f"s_mul_i32 s{sXO}, s{sB_}, 1792")
    A(f"s_add_u32 s{sXO}, s{sXO}, {WS_X1}")
    A(f"s_mul_i32 s{sRI}, s{sB_}, 28")
    A(f"s_add_u32 s{sRI}, s{sRI}, s{SID}")
    A(f"s_mul_i32 s{sRI}, s{sRI}, {RIS}")
    A(f"s_add_u32 s{sRI}, s{sRI}, {WS_RI}")
    for i in range(2):
        A(f"buffer_load_dwordx4 v[16:19], v{vL16}, s[{sWS}:{sWS+3}], s{sRI} offen offset:{1024*i} sc1")
    A(f"buffer_load_dwordx4 v[16:19], v{vL16}, s[{sWS}:{sWS+3}], s{sXO} offen sc1")
    A(f"buffer_load_dwordx4 v[16:19], v{vXB}, s[{sWS}:{sWS+3}], s{sXO} offen sc1")
    g.lbl("L_p5")
    A(f"v_and_b32 v13, 0x1f0, v{vL16}")
    A(f"s_mov_b32 s{sT1}, {WS_XC}")
    g.lbl("L_xpoll")
    A(f"buffer_load_dwordx4 v[16:19], v13, s[{sWS}:{sWS+3}], s{sT1} offen sc1")
    A("s_waitcnt vmcnt(0)")
    check_tags(g, [19], "L_xpoll")
    A(f"s_getreg_b32 s{sT0}, hwreg(HW_REG_XCC_ID)")
    A(f"v_cmp_ne_u32 vcc, s{sT0}, v16")
    A(f"s_cmp_eq_u64 vcc, 0")
    A(f"s_cselect_b32 s{sFAST}, {0 if opt.get('nofast') else 1}, 0")
    nst = [0]
    def xstore(ins):
        nst[0] += 1
        k = nst[0]
        A(f"s_cmp_eq_u32 s{sFAST}, 0")
        A(f"s_cbranch_scc1 L_xs{k}")
        A(ins + opt.get("polX", ""))
        A(f"s_branch L_xd{k}")
        g.lbl(f"L_xs{k}")
        A(ins + " sc1")
        g.lbl(f"L_xd{k}")
    vZO, vOBW, vOBR = vKO, vVO, vDM
    A(f"v_lshrrev_b32 v{vT}, 2, v{vJ}")
    A(f"v_mul_u32_u24 v{vZO}, 28, v{vGR}")
    A(f"v_add_u32 v{vZO}, v{vZO}, v{vT}")
    A(f"v_mul_u32_u24 v{vZO}, {RIS}, v{vZO}")
    A(f"v_lshl_add_u32 v{vZO}, v{c4}, 4, v{vZO}")
    A(f"s_mul_i32 s{sY_DST}, s{sWAVE}, {4*RIS}")
    A(f"s_lshl_b32 s{sT0}, s{SID}, 6")
    A(f"s_add_u32 s{sY_DST}, s{sY_DST}, s{sT0}")
    A(f"s_add_u32 s{sY_DST}, s{sY_DST}, {WS_RI}")
    A(f"v_and_b32 v13, 1, v{vL}")
    A(f"v_lshl_add_u32 v{vT}, v{vT}, 1, v13")
    A(f"v_lshlrev_b32 v10, 4, v{vGR}")
    for reg, stride, base in ((vOBR, 160, L_OB), (vAF, 480, L_A), (vGRD, 96, L_G)):
        A(f"v_mul_u32_u24 v{reg}, {stride}, v{vT}")
        A(f"v_add_u32 v{reg}, v{reg}, v10")
        A(f"v_add_u32 v{reg}, {base}, v{reg}")
    A(f"v_mul_u32_u24 v{vIX}, 0xaaaa, v13")
    A(f"v_add_u32 v{vIX}, 0x4444, v{vIX}")
    A(f"s_mul_i32 s{sT0}, s{sB_}, 320")
    A(f"s_lshr_b32 s{sT2}, s{sWAVE}, 2")
    A(f"s_lshl_b32 s{sT1}, s{sT2}, 6")
    A(f"s_add_u32 s{sT0}, s{sT0}, s{sT1}")
    A(f"s_add_u32 s{sT0}, s{sT0}, {L_OB}")
    A(f"v_mul_u32_u24 v{vOBW}, 160, v13")
    A(f"v_bfe_u32 v{vT}, v{vL}, 1, 4")
    A(f"v_lshl_add_u32 v{vOBW}, v{vT}, 2, v{vOBW}")
    A(f"v_add_u32 v{vOBW}, s{sT0}, v{vOBW}")
    YD, GD = 216, 232
    for i in range(20): A(f"v_mov_b32 v{YD+i}, 0")
    A(f"s_lshl_b32 s{sO_IN}, s{sB_}, 18")
    A(f"s_lshl_b32 s{sT1}, s{SID}, 13")
    A(f"s_add_u32 s{sO_IN}, s{sO_IN}, s{sT1}")
    A(f"s_lshl_b32 s{sT1}, s{sT2}, 12")
    A(f"s_add_u32 s{sO_IN}, s{sO_IN}, s{sT1}")
    A(f"s_add_u32 s{sO_IN}, s{sO_IN}, {WS_O}")
    A(f"v_mov_b32 v28, 0"); A(f"v_mov_b32 v29, 0")
    A(f"v_mov_b32 v30, 0xff7fffff"); A(f"v_mov_b32 v31, s{sTAG}")
    A("s_waitcnt lgkmcnt(0)")
    stamp(g, 9)
    if opt.get("SEL", 1):
        MK = (4, 6, 8, 10)
        for m in MK: A(f"s_mov_b64 s[{m}:{m+1}], -1")
        A(f"s_mov_b32 s{MK[3]+1}, 0")
        g.lbl("L_opoll")
        for i, m in enumerate(MK):
            A(f"s_mov_b64 exec, s[{m}:{m+1}]")
            A(f"s_cbranch_execz L_os{i}")
            A(f"buffer_load_dwordx4 v[{16+4*i}:{19+4*i}], v{vL16}, s[{sWS}:{sWS+3}], s{sO_IN} offen offset:{1024*i} sc1")
            g.lbl(f"L_os{i}")
        A("s_mov_b64 exec, -1")
        A("s_waitcnt vmcnt(0)")
        for i, m in enumerate(MK):
            A(f"v_cmp_ne_u32 s[{m}:{m+1}], s{sTAG}, v{19+4*i}")
        A(f"s_or_b64 vcc, s[{MK[0]}:{MK[0]+1}], s[{MK[1]}:{MK[1]+1}]")
        A(f"s_or_b64 vcc, vcc, s[{MK[2]}:{MK[2]+1}]")
        A(f"s_or_b64 vcc, vcc, s[{MK[3]}:{MK[3]+1}]")
        retry_branch(g, "L_opoll")
    else:
        g.lbl("L_opoll")
        for i in range(3):
            A(f"buffer_load_dwordx4 v[{16+4*i}:{19+4*i}], v{vL16}, s[{sWS}:{sWS+3}], s{sO_IN} offen offset:{1024*i} sc1")
        A("s_mov_b32 exec_hi, 0")
        A(f"buffer_load_dwordx4 v[28:31], v{vL16}, s[{sWS}:{sWS+3}], s{sO_IN} offen offset:3072 sc1")
        A("s_mov_b32 exec_hi, -1")
        A("s_waitcnt vmcnt(0)")
        check_tags(g, [19, 23, 27, 31], "L_opoll")
    tstamp(g, 1)
    A(f"v_max3_f32 v32, v18, v22, v26")
    A(f"v_max_f32 v32, v32, v30")
    A(f"v_mov_b32 v33, v32")
    g.nop(2)
    A(f"v_permlane32_swap_b32 v32, v33")
    A(f"v_max_f32 v32, v32, v33")
    for i in range(4): A(f"v_sub_f32 v{18+4*i}, v{18+4*i}, v32")
    for i in range(4): A(f"v_exp_f32 v{18+4*i}, v{18+4*i}")
    A(f"v_pk_mul_f32 v[34:35], v[16:17], v[18:19] op_sel_hi:[1,0]")
    A(f"v_add_f32 v36, v18, v22")
    for i in range(1, 4):
        A(f"v_pk_fma_f32 v[34:35], v[{16+4*i}:{17+4*i}], v[{18+4*i}:{19+4*i}], v[34:35] op_sel_hi:[1,0,1]")
    A(f"v_add_f32 v37, v26, v30")
    A(f"v_add_f32 v36, v36, v37")
    A(f"v_mov_b32 v38, v34"); A(f"v_mov_b32 v39, v35"); A(f"v_mov_b32 v37, v36")
    g.nop(1)
    A(f"v_permlane32_swap_b32 v34, v38")
    A(f"v_permlane32_swap_b32 v35, v39")
    A(f"v_permlane32_swap_b32 v36, v37")
    A(f"v_pk_add_f32 v[34:35], v[34:35], v[38:39]")
    A(f"v_add_f32 v36, v36, v37")
    A(f"v_rcp_f32 v36, v36")
    g.nop(1)
    A(f"v_pk_mul_f32 v[34:35], v[34:35], v[36:37] op_sel_hi:[1,0]")
    A(f"v_cvt_pk_bf16_f32 v34, v34, v35")
    A(f"ds_write_b32 v{vOBW}, v34")
    A("s_waitcnt lgkmcnt(0)")
    A("s_barrier")
    def proj(addr, nks, frags, per_tile, off, O=40):
        for ks in range(nks):
            A(f"ds_read_b128 v[{48+4*ks}:{51+4*ks}], v{addr} offset:{64*ks}")
        for ks in range(nks):
            A(f"s_waitcnt lgkmcnt({nks-1-ks})")
            for t in range(4):
                r = frags + per_tile*t + 8*ks
                A(f"v_smfmac_f32_16x16x64_bf16 v[{YD+4*t}:{YD+4*t+3}], v[{48+4*ks}:{51+4*ks}], v[{r}:{r+7}], v{vIX}")
        g.nop(5)
        for t in range(4):
            A(f"v_add_f32 v{O+t}, v{YD+4*t}, v{YD+4*t+1}")
        for i in range(4): A(f"v_or_b32 v{O+i}, 1, v{O+i}" if off else f"v_and_b32 v{O+i}, -2, v{O+i}")
        xstore(f"buffer_store_dwordx4 v[{O}:{O+3}], v{vZO}, s[{sWS}:{sWS+3}], s{sY_DST} offen")
    A(f"s_cmp_eq_u32 s{sWAVE}, 7")
    A("s_cbranch_scc1 L_t2")
    proj(vOBR, 2, WOF, 16, 0)
    for t in range(4):
        A(f"v_mov_b32 v{YD+4*t}, 0"); A(f"v_mov_b32 v{YD+4*t+1}, 0")
    stamp(g, 7)
    g.lbl("L_t2")
    A(f"s_cmp_lt_u32 s{SID}, 28")
    A(f"s_cbranch_scc0 {'L_wb1' if opt.get('WB', 0) & 1 else 'L_fin'}")
    def reduce(lab, z, gate, st):
        if z:
            for i in range(4): A(f"v_mov_b32 v{20+i}, 1")
        g.lbl(lab)
        A(f"buffer_load_dwordx4 v[24:27], v{vL16}, s[{sWS}:{sWS+3}], s{sRI} offen sc1")
        if z: A("s_mov_b32 exec_hi, 0xffff")
        A(f"buffer_load_dwordx4 v[20:23], v{vL16}, s[{sWS}:{sWS+3}], s{sRI} offen offset:1024 sc1")
        if z: A("s_mov_b32 exec_hi, -1")
        A("s_waitcnt vmcnt(0)")
        bo = "0x80" if z else "0xfe"
        A(f"v_bitop3_b32 v{vT}, v24, v25, v26 bitop3:{bo}")
        A(f"v_bitop3_b32 v10, v27, v20, v21 bitop3:{bo}")
        A(f"v_bitop3_b32 v{vT}, v{vT}, v22, v23 bitop3:{bo}")
        A(f"v_bitop3_b32 v{vT}, v{vT}, v10, 1 bitop3:{'0x80' if z else '0xa8'}")
        A(f"v_cmp_ne_u32 vcc, {1 if z else 0}, v{vT}")
        A(pk("add", 16, 24, 20)); A(pk("add", 18, 26, 22))
        retry_branch(g, lab)
        tstamp(g, st)
        g.nop(1)
        A(f"v_permlane32_swap_b32 v16, v17")
        A(f"v_permlane32_swap_b32 v18, v19")
        A(f"v_add_f32 v16, v16, v17")
        A(f"v_add_f32 v18, v18, v19")
        g.nop(2)
        A(f"v_permlane16_swap_b32 v16, v18")
        A(f"v_add_f32 v16, v16, v18")
        g.nop(2)
        A(f"v_add_f32 v16, v16, v16 row_ror:4 {DPP}")
        g.nop(2)
        A(f"v_add_f32 v16, v16, v16 row_ror:8 {DPP}")
        rnd1(g, 16)
        A(f"v_mul_f32 v16, v16, v{gate}")
        rnd1(g, 16)
        A(f"v_add_f32 v{XV}, v{XV}, v16")
    XB = opt.get("XB", 1)
    A(f"s_cmp_lt_u32 s{sWAVE}, 4")
    A(f"s_cbranch_scc1 {'L_x1b' if XB else 'L_x1poll'}")
    A(f"v_mov_b32 v47, s{sTAG}")
    A(f"v_mov_b32 v46, 0")
    A(f"s_lshl_b32 s{sT2}, s{sPX}, 1")
    A(f"s_add_u32 s{sT2}, s{sT2}, {WS_X1}")
    reduce("L_ypoll", 0, GA, 5)
    g.nop(2)
    A(f"v_mov_b32 v17, v{XV} quad_perm:[1,1,3,3] {DPP}")
    A(f"v_cvt_pk_bf16_f32 v44, v{XV}, v17")
    g.nop(2)
    A(f"v_mov_b32 v45, v44 quad_perm:[2,2,2,2] {DPP}")
    A("s_mov_b32 exec_lo, 0x00010001"); A("s_mov_b32 exec_hi, 0x00010001")
    xstore(f"buffer_store_dwordx4 v[44:47], v{vX1}, s[{sWS}:{sWS+3}], s{sT2} offen")
    A("s_mov_b64 exec, -1")
    rnd1(g, XV)
    stamp(g, 6)
    if XB:
        g.lbl("L_x1b")
        A("s_barrier")
    g.lbl("L_x1poll")
    A(f"buffer_load_dwordx4 v[16:19], v{vL16}, s[{sWS}:{sWS+3}], s{sXO} offen sc1")
    A(f"buffer_load_dwordx4 v[20:23], v{vXB}, s[{sWS}:{sWS+3}], s{sXO} offen sc1")
    A("s_waitcnt vmcnt(0)")
    tags_ab(g, [19], [23])
    retry_branch(g, "L_x1poll")
    tstamp(g, 2)
    if opt.get("YC", 0):
        A(f"s_lshr_b32 s{sT0}, s{sWAVE}, 2")
        A(f"s_lshl_b32 s{sT0}, s{sT0}, 10")
        A(f"s_add_u32 s{sT0}, s{sT0}, s{sRI}")
        A(f"buffer_store_dwordx4 v[64:67], v{vL16}, s[{sWS}:{sWS+3}], s{sT0} offen sc1")
    for i, r in enumerate((16, 17, 20, 21)):
        unpack(g, r, 24+2*i, 25+2*i)
    E = 44
    layernorm(g, 24, 32, E, 4, presel=[f"v_cndmask_b32 v{E+i}, v{24+i}, v{28+i}, s[{sR8}:{sR8+1}]" for i in range(4)])
    rnd2(g, E, E+1, vT); rnd2(g, E+2, E+3, vT)
    modulate_pack(g, E, OC, SH, E, vT, 4)
    A(f"s_mov_b64 exec, s[{sMH}:{sMH+1}]")
    A(f"ds_write2_b32 v{vHW}, v{E}, v{E+1} offset0:0 offset1:120")
    A("s_mov_b64 exec, -1")
    A("s_waitcnt lgkmcnt(0)")
    A("s_barrier")
    tstamp(g, 3)
    for ks in range(7):
        A(f"ds_read_b128 v[{64+4*ks}:{67+4*ks}], v{vAF} offset:{64*ks}")
    for ks in range(7):
        A(f"s_waitcnt lgkmcnt({6-ks})")
        A(f"v_smfmac_f32_16x16x64_bf16 v[{GD}:{GD+3}], v[{64+4*ks}:{67+4*ks}], v[{GUF+8*ks}:{GUF+7+8*ks}], v{vIX}")
    kk = -2.0 * math.sqrt(2.0/math.pi) * LOG2E
    A(f"v_mov_b32 v24, {f2u(kk*0.044715):#x}")
    A(f"v_mov_b32 v25, {f2u(kk):#x}")
    g.nop(6)
    A(f"v_add_f32 v20, v{GD}, v{GD+1}")
    rnd1(g, 20)
    A(f"v_mul_f32 v21, v20, v20")
    A(f"v_fma_f32 v21, v21, v24, v25")
    A(f"v_mul_f32 v21, v21, v20")
    A(f"v_exp_f32 v21, v21")
    A(f"v_mov_b32 v23, v20 row_ror:8 {DPP}")
    A(f"v_add_f32 v21, 1.0, v21")
    A(f"v_rcp_f32 v21, v21")
    A(f"s_mov_b32 exec_lo, 0x00ff00ff")
    A(f"s_mov_b32 exec_hi, 0x00ff00ff")
    A(f"v_mul_f32 v21, v21, v20")
    rnd1(g, 21)
    A(f"v_mul_f32 v21, v21, v23")
    A(f"v_cvt_pk_bf16_f32 v21, v21, v21")
    A(f"ds_write_b16 v{vGW}, v21")
    A("s_mov_b64 exec, -1")
    A("s_waitcnt lgkmcnt(0)")
    A("s_barrier")
    tstamp(g, 4)
    A(f"s_cmp_eq_u32 s{sWAVE}, 7")
    A("s_cbranch_scc1 L_t4")
    proj(vGRD, 1, DNF, 8, 2048)
    stamp(g, 8)
    A(f"s_cmp_lt_u32 s{sWAVE}, 4")
    A(f"s_cbranch_scc1 {'L_wb2' if opt.get('WB', 0) & 2 else 'L_fin'}")
    g.lbl("L_t4")
    srd(g, sA, P_OUT, 3584)
    reduce("L_zpoll", 1, GB, 7)
    A(f"v_cvt_pk_bf16_f32 v16, v{XV}, v{XV}")
    A("s_mov_b32 exec_lo, 0x000f000f"); A("s_mov_b32 exec_hi, 0x000f000f")
    A(f"buffer_store_short v16, v{vOUT}, s[{sA}:{sA+3}], s{sPX} offen{opt.get('polO', '')}")
    stamp(g, 9)
    A(f"s_cmp_eq_u32 s{sPX}, 0")
    A("s_cbranch_scc0 L_fin")
    A("s_mov_b64 exec, 1")
    A(f"v_mov_b32 v16, s{sTAG}")
    A(f"buffer_store_dword v16, v{vL16}, s[{sWS}:{sWS+3}], 0 offen sc1")
    if opt.get("WB", 0):
        A("s_branch L_fin")
        g.lbl("L_wb1")
        A("s_sleep 16")
        g.lbl("L_wb2")
        A(f"s_cmp_eq_u32 s{sWAVE}, 0")
        A("s_cbranch_scc0 L_fin")
        A(f"s_and_b32 s{sT0}, s{SID}, {opt.get('WBM', 3)}")
        A("s_cbranch_scc1 L_fin")
        A("s_waitcnt vmcnt(0)")
        A("buffer_wbl2 sc1")
        A("s_waitcnt vmcnt(0)")
    g.lbl("L_fin")
    flush_stamps(g, NSTAMP)
    g.lbl("L_end")
    A("s_endpgm")
    g.L += ['.section .rodata,"a"', ".p2align 6", f".amdhsa_kernel {NAME}_kernel",
            "  .amdhsa_next_free_vgpr 256", "  .amdhsa_next_free_sgpr 102", "  .amdhsa_accum_offset 256",
            "  .amdhsa_group_segment_fixed_size 0", "  .amdhsa_kernarg_size 112", "  .amdhsa_user_sgpr_count 2",
            "  .amdhsa_user_sgpr_kernarg_segment_ptr 1", "  .amdhsa_system_sgpr_workgroup_id_x 1", ".end_amdhsa_kernel"]
    return "\n".join(g.L) + "\n"

if __name__ == "__main__":
    out = sys.argv[1] if len(sys.argv) > 1 else f"cdna_kernels/{NAME}.s"
    opt = {}
    for a in sys.argv[2:]:
        k, val = a.split("=", 1)
        try: val = int(val)
        except ValueError: val = (" " + val.replace("+", " ")) if val else ""
        opt[k] = val
    open(out, "w").write(build(opt))
```

```python
import sys, math, struct

NAME = "adaLN_cond__gqa_block_cached__geglu_ffn__decode"

WS_E   = 0x0
WS_XC  = 0x1000
WS_CNT = 0x2000
WS_X1  = 0x4000
WS_M   = 0x6000
MB = 10752
WS_Q   = 0x20000
WS_O   = 0x30000
WS_RI  = 0x130000
WS_STAMP = 0x400000
WS_SIZE = 0x800000

L_OL = 57344
L_Q  = L_OL + 16384
L_P  = L_Q + 1024
L_RED = L_P + 4096
SB0 = 0
SB1 = 57344 + 16
L_SC = SB1 + 57344 + 48
AS = 928
L_A  = L_SC + 4096
L_OB = L_A + 8*480
L_G  = L_OB + 8*160
L_END = L_G + 8*96

LOG2E = 1.4426950408889634
def f2u(x): return struct.unpack("<I", struct.pack("<f", x))[0]


DOC = """
; ---------------------------------------------------------------------------------------------------
; ---------------------------------------------------------------------------------------------------
"""
NOTES = {
 "L_early": "mod-slice and service workgroups: small operand load + first weight image (LDS DMA, xor-swizzled rows)",
 "L_m1": "mod slice: image + silu(c) ready -> 14 MFMAs per wave, publish bf16",
 "L_main0": "attention main path",
 "L_peek": "unit counter {count, tag}: first visitor of this launch resets it",
 "L_qpoll": "wait for q, then scores / softmax / PV of the 32 fixed keys",
 "L_top": "dynamic unit loop: QK -> running max -> p (hi + lo bf16) -> next K -> PV -> next V",
 "L_last": "no unit left: publish (m, l) of this wave",
 "L_exit": "partial o of this wave -> LDS; waves 4..7 merge the 8 partials and publish {o, lse}",
 "L_svc": "service workgroup",
 "L_hpoll": "wait for shift / scale, h = LN(x) * (1 + ca) + sa",
 "L_s3": "q = h @ wq slice, then stage the remaining weights into registers",
 "L_mpoll": "tail parameters sb, cb, ga, gb",
 "L_xpoll": "placement check (also: every inbox has been cleared)",
 "L_opoll": "wait for the 7 partial results, combine, project with wo",
 "L_ypoll": "sum the 32 wo partials, x1 = x + ga * attn",
 "L_x1poll": "LayerNorm + modulate, gate / up, gelu, down partials",
 "L_zpoll": "sum the 28 down partials, out = x1 + gb * ffn",
}

class G:
    def __init__(self, opt):
        self.L = []; self.o = opt; self.lab = 0
    def A(self, s): self.L.append("    " + s)
    def lbl(self, s):
        if s in NOTES: self.L.append("; ---- " + NOTES[s])
        self.L.append(s + ":")
    def newlab(self, p="L"):
        self.lab += 1
        return f"{p}_{self.lab}"
    def nop(self, n):
        while n > 0:
            k = min(n, 16)
            self.A(f"s_nop {k-1}")
            n -= k

sWAVE = 3
sK, sV, sWS, sA, sB = 4, 8, 12, 16, 20
sS, sB_, sKVH, sN = 24, 25, 26, 27
sTAG, sRETRY = 28, 29
sKB, sFAST = 30, 31
sUB = 32
sT0, sT1, sT2, sT3 = 33, 34, 35, 36
sLN = 37
sM1, sM2, sM3 = 38, 40, 42
sM48 = 44
sQ1, sQ2, sQ3 = 46, 48, 50
sR8 = 52
sSTART, sSTEP, sLDS = 54, 55, 56
sTK, sLIM = 54, 55
sPLO, sPHI = 57, 58
sC = 59
sHI = 60
sXO, sPX = 61, 62
sGRP = 63
P_X, P_K, P_V, P_WQ, P_WO, P_BX, P_WG, P_WU, P_WD, P_C, P_WM, P_OUT, P_DBG, P_WS = [64 + 2*i for i in range(14)]
sCNT = 84
sCX = 68
sST = 88
sO_DST, sY_DST = 66, 67
sO_IN, sRI = 68, 69
sMH = 74

vTID, vL, vJ, vGR, vKO, vVO, vL16, vDM = 0, 1, 2, 3, 4, 5, 6, 7
vE = 8
vT = 9
vVE = 64
vK = 128
vVU = 0
vM, vLS = 14, 15
vKU, vVB = 192, 224
vOLW, vOLR, vRW, vRR = 78, 79, 80, 81

def srd(g, r, ptr, size):
    g.A(f"s_mov_b32 s{r}, s{ptr}")
    g.A(f"s_mov_b32 s{r+1}, s{ptr+1}")
    g.A(f"s_mov_b32 s{r+2}, {size}")
    g.A(f"s_mov_b32 s{r+3}, 0x20000")

DPP = "row_mask:0xf bank_mask:0xf"
def wave_reduce(g, op, regs, tmps, swaps=("v_permlane16_swap_b32", "v_permlane32_swap_b32")):
    n = len(regs)
    for pat in ("quad_perm:[1,0,3,2]", "quad_perm:[2,3,0,1]", "row_half_mirror", "row_mirror"):
        g.nop(max(0, 2 - (n - 1)))
        for r in regs:
            g.A(f"{op} v{r}, v{r}, v{r} {pat} {DPP}")
    for sw in swaps:
        for r, t in zip(regs, tmps):
            g.A(f"v_mov_b32 v{t}, v{r}")
        g.nop(2)
        for r, t in zip(regs, tmps):
            g.A(f"{sw} v{r}, v{t}")
        for r, t in zip(regs, tmps):
            g.A(f"{op} v{r}, v{r}, v{t}")

def rnd2(g, a, b, t):
    g.A(f"v_cvt_pk_bf16_f32 v{t}, v{a}, v{b}")
    g.A(f"v_lshlrev_b32 v{a}, 16, v{t}")
    g.A(f"v_and_b32 v{b}, s{sHI}, v{t}")
def rnd1(g, a):
    g.A(f"v_cvt_pk_bf16_f32 v{a}, v{a}, v{a}")
    g.A(f"v_lshlrev_b32 v{a}, 16, v{a}")
def unpack(g, src, lo, hi):
    g.A(f"v_lshlrev_b32 v{lo}, 16, v{src}")
    g.A(f"v_and_b32 v{hi}, s{sHI}, v{src}")

def red63(g, r, fill):
    fill = list(fill)
    def pad(n):
        for _ in range(n):
            if fill: g.A(fill.pop(0))
            else:
                g.nop(n - _); break
    for pat in ("quad_perm:[1,0,3,2] " + DPP, "quad_perm:[2,3,0,1] " + DPP, "row_half_mirror " + DPP, "row_mirror " + DPP,
                "row_bcast:15 row_mask:0xa bank_mask:0xf", "row_bcast:31 row_mask:0xc bank_mask:0xf"):
        pad(2)
        g.A(f"v_add_f32 v{r}, v{r}, v{r} {pat}")
    pad(1)
    g.A(f"v_readlane_b32 s{sLN}, v{r}, 63")
    pad(2)
    for f in fill: g.A(f)

def pk(op, d, a, b, bc=False, neg=False):
    m = ""
    if bc: m += " op_sel_hi:[1,0]"
    if neg: m += " neg_lo:[0,1] neg_hi:[0,1]"
    return f"v_pk_{op}_f32 v[{d}:{d+1}], v[{a}:{a+1}], v[{b}:{b+1}]{m}"

def rnd2s(a, b, t):
    return [f"v_cvt_pk_bf16_f32 v{t}, v{a}, v{b}", f"v_lshlrev_b32 v{a}, 16, v{t}", f"v_and_b32 v{b}, s{sHI}, v{t}"]

def layernorm(g, X, T, E, n, presel=()):
    A = g.A
    A(pk("add", T, X, X+2)); A(pk("add", T+2, X+4, X+6)); A(pk("add", T, T, T+2))
    A(f"v_add_f32 v{T}, v{T}, v{T+1}")
    red63(g, T, presel)
    A(f"v_mov_b32 v{T+8}, {f2u(1.0/448):#x}")
    A(f"v_mul_f32 v{T}, s{sLN}, v{T+8}")
    A(pk("add", T+2, X, T, True, True)); A(pk("add", T+4, X+2, T, True, True))
    A(f"v_pk_mul_f32 v[{T+6}:{T+7}], v[{T+2}:{T+3}], v[{T+2}:{T+3}]")
    A(pk("add", T+2, X+4, T, True, True))
    A(f"v_pk_fma_f32 v[{T+6}:{T+7}], v[{T+4}:{T+5}], v[{T+4}:{T+5}], v[{T+6}:{T+7}]")
    A(pk("add", T+4, X+6, T, True, True))
    A(f"s_mov_b64 exec, s[{sM48}:{sM48+1}]")
    A(f"v_pk_fma_f32 v[{T+6}:{T+7}], v[{T+2}:{T+3}], v[{T+2}:{T+3}], v[{T+6}:{T+7}]")
    A(f"v_pk_fma_f32 v[{T+6}:{T+7}], v[{T+4}:{T+5}], v[{T+4}:{T+5}], v[{T+6}:{T+7}]")
    A("s_mov_b64 exec, -1")
    A(f"v_add_f32 v{T+6}, v{T+6}, v{T+7}")
    fill = [f"v_cvt_pk_bf16_f32 v{T}, v{T}, v{T}", f"v_lshlrev_b32 v{T}, 16, v{T}"]
    fill += [pk("add", E+i, E+i, T, True, True) for i in range(0, n, 2)]
    for i in range(0, n, 2): fill += rnd2s(E+i, E+i+1, T+2)
    red63(g, T+6, fill)
    A(f"v_mul_f32 v{T+6}, s{sLN}, v{T+8}")
    rnd1(g, T+6)
    A(f"v_add_f32 v{T+6}, {f2u(1e-5):#x}, v{T+6}")
    rnd1(g, T+6)
    A(f"v_sqrt_f32 v{T+6}, v{T+6}")
    g.nop(1)
    rnd1(g, T+6)
    A(f"v_rcp_f32 v{T+6}, v{T+6}")
    g.nop(1)
    for i in range(0, n, 2): A(pk("mul", E+i, E+i, T+6, True))

def modulate_pack(g, X, OC, SH, D, t, n):
    for i in range(0, n, 2): g.A(pk("mul", X+i, X+i, OC+i))
    for i in range(0, n, 2): rnd2(g, X+i, X+i+1, t)
    for i in range(0, n, 2): g.A(pk("add", X+i, X+i, SH+i))
    for i in range(0, n, 2): g.A(f"v_cvt_pk_bf16_f32 v{D+i//2}, v{X+i}, v{X+i+1}")

def retry_branch(g, fail_label):
    ok = g.newlab("L_ok")
    g.A(f"s_cbranch_vccz {ok}")
    g.A(f"s_sub_u32 s{sRETRY}, s{sRETRY}, 1")
    g.A(f"s_cbranch_scc0 {fail_label}")
    g.A(f"s_mov_b32 s{sRETRY}, 0")
    g.lbl(ok)

def tags_ab(g, ra, rb):
    t = vT
    g.A(f"v_xor_b32 v{t}, s{sTAG}, v{rb[0]}")
    for r in rb[1:]: g.A(f"v_bitop3_b32 v{t}, v{t}, v{r}, s{sTAG} bitop3:0xf6")
    g.A(f"v_cndmask_b32 v{t}, 0, v{t}, s[{sM48}:{sM48+1}]")
    for r in ra: g.A(f"v_bitop3_b32 v{t}, v{t}, v{r}, s{sTAG} bitop3:0xf6")
    g.A(f"v_cmp_ne_u32 vcc, 0, v{t}")

class VM:
    def __init__(self, g, W, n0=0):
        self.g, self.W, self.n = g, W, n0
    def pre(self):
        if self.W and self.n >= self.W:
            self.g.A(f"s_waitcnt vmcnt({self.W-1})")
            self.n = self.W - 1
        self.n += 1

def dma7(g, pol, vm, srd_=None):
    srd_ = srd_ or sA
    for i in range(7):
        vm.pre()
        g.A(f"s_mov_b32 m0, s{sLDS}")
        g.A(f"s_add_u32 s{sLDS}, s{sLDS}, 1024")
        g.A(f"buffer_load_dwordx4 v{vDM}, s[{srd_}:{srd_+3}], s{sSTART} offen{pol} lds")
        g.A(f"s_add_u32 s{sSTART}, s{sSTART}, s{sSTEP}")

def k_tile(g, vm, pol, base, add, dst, lo=0, hi=8):
    so = base
    if g.o.get("KS", 0) and dst != vKU:
        for jj in range(lo, hi):
            vm.pre()
            r = dst + 4*jj
            g.A(f"buffer_load_dwordx4 v[{r}:{r+3}], v{vKO}, s[{sK}:{sK+3}], s{so} offen offset:{jj*256 + (2048 if add else 0)}{pol}")
        return
    if add:
        g.A(f"s_add_u32 s{sT0}, s{base}, {add}")
        so = sT0
    for jj in range(lo, hi):
        vm.pre()
        r = dst + 4*jj
        g.A(f"buffer_load_dwordx4 v[{r}:{r+3}], v{vVO if dst == vKU else vKO}, s[{sK}:{sK+3}], s{so} offen offset:{jj*256}{pol}")

def v_group(g, vm, pol, part):
    il = g.o.get("VIL", 1)
    for k in range(8):
        if il: r, eta = part*4 + (k >> 1), k & 1
        else: r, eta = k, part
        vm.pre()
        d = vVE + 32*eta + 4*r
        g.A(f"buffer_load_dwordx4 v[{d}:{d+3}], v13, s[{sV}:{sV+3}], s{sKB} offen offset:{512*r + 256*eta}{pol}")

def k_unit(g, vm, pol):
    RS = g.o.get("RS", 512)
    if RS == 512: return k_tile(g, vm, pol, sUB, 0, vKU)
    for jj in range(8):
        kq, blk = jj >> 1, jj & 1
        if blk == 0: g.A(f"s_add_u32 s{sT0}, s{sUB}, {kq*RS}")
        vm.pre()
        r = vKU + 4*jj
        g.A(f"buffer_load_dwordx4 v[{r}:{r+3}], v{vVO}, s[{sK}:{sK+3}], s{sT0} offen offset:{blk*256}{pol}")

def v_unit(g, vm, pol):
    RS = g.o.get("RS", 512)
    if RS != 512:
        for k in range(8):
            r, eta = k >> 1, k & 1
            if eta == 0: g.A(f"s_add_u32 s{sT0}, s{sUB}, {r*RS}")
            vm.pre()
            d = vVB + 16*eta + 4*r
            g.A(f"buffer_load_dwordx4 v[{d}:{d+3}], v{vVU}, s[{sV}:{sV+3}], s{sT0} offen offset:{256*eta}{pol}")
        return
    for k in range(8):
        if True:
            r, eta = ((k >> 1, k & 1) if g.o.get("VIL", 1) else (k & 3, k >> 2))
            vm.pre()
            d = vVB + 16*eta + 4*r
            g.A(f"buffer_load_dwordx4 v[{d}:{d+3}], v{vVU}, s[{sV}:{sV+3}], s{sUB} offen offset:{512*r + 256*eta}{pol}")

def get_tag(g):
    g.A(f"v_readfirstlane_b32 s{sTAG}, v{vE}")
    g.A(f"s_add_u32 s{sTAG}, s{sTAG}, 0x9e3779b9")

def check_tags(g, regs, fail_label, mask=None, t=vT):
    if len(regs) == 1:
        g.A(f"v_cmp_ne_u32 vcc, s{sTAG}, v{regs[0]}")
    else:
        g.A(f"v_xor_b32 v{t}, s{sTAG}, v{regs[0]}")
        for r in regs[1:]:
            g.A(f"v_bitop3_b32 v{t}, v{t}, v{r}, s{sTAG} bitop3:0xf6")
        g.A(f"v_cmp_ne_u32 vcc, 0, v{t}")
    if mask is not None:
        g.A(f"s_and_b64 vcc, vcc, s[{mask}:{mask+1}]")
    ok = g.newlab("L_ok")
    g.A(f"s_cbranch_vccz {ok}")
    g.A(f"s_sub_u32 s{sRETRY}, s{sRETRY}, 1")
    g.A(f"s_cbranch_scc0 {fail_label}")
    g.A(f"s_mov_b32 s{sRETRY}, 0")
    g.lbl(ok)

NSTAMP = 10
def tstamp(g, idx):
    if g.o.get("tst"): stamp(g, idx, True)
def stamp(g, idx, force=False):
    if not g.o.get("stamps") or g.o.get("trace"): return
    if (g.o.get("tst") or g.o.get("est")) and not force and idx in (1, 2, 3, 4): return
    g.A(f"s_memrealtime s[{sST}:{sST+1}]")
    g.A("s_waitcnt lgkmcnt(0)")
    g.A(f"s_mov_b32 s{92+idx}, s{sST}")
def flush_stamps(g, n):
    if not g.o.get("stamps"): return
    if g.o.get("dbg"):
        g.A("s_mov_b64 exec, 1")
        g.A("v_mov_b32 v15, 0")
        g.A(f"s_lshl_b32 s{sT3}, s2, 3")
        g.A(f"s_add_u32 s{sT3}, s{sT3}, s{sWAVE}")
        g.A(f"s_cmp_eq_u32 s{sT3}, 0")
        g.A("s_cbranch_scc1 L_dbg0")
        g.A(f"s_cmp_eq_u32 s{sT3}, {144*8+7}")
        g.A("s_cbranch_scc0 L_end")
        for k, i in enumerate((6, 1, 7, 2, 8, 9)):
            g.A(f"s_sub_u32 s{sT3}, s{92+i}, s92")
            g.A(f"v_mov_b32 v14, s{sT3}")
            g.A(f"global_store_dword v15, v14, s[82:83] offset:{4*k}")
            g.nop(1)
        g.A("s_branch L_end")
        g.lbl("L_dbg0")
        for k, i in enumerate((6, 7, 9, 2, 3, 4, 8)):
            g.A(f"s_sub_u32 s{sT3}, s{92+i}, s92")
            g.A(f"v_mov_b32 v14, s{sT3}")
            g.A(f"global_store_dword v15, v14, s[82:83] offset:{32+4*k}")
            g.nop(1)
        return
    g.A(f"s_lshl_b32 s{sT3}, s2, 3")
    g.A(f"s_add_u32 s{sT3}, s{sT3}, s{sWAVE}")
    g.A(f"s_lshl_b32 s{sT3}, s{sT3}, 6")
    g.A(f"s_add_u32 s{sT3}, s{sT3}, {WS_STAMP}")
    g.A("s_mov_b64 exec, 1")
    g.A("v_mov_b32 v15, 0")
    for i in range(n):
        g.A(f"v_mov_b32 v14, s{92+i}")
        g.A(f"buffer_store_dword v14, v15, s[{sWS}:{sWS+3}], s{sT3} offen offset:{4*i}")
        g.nop(1)

def sel4(g, dst, r0, r1, r2, r3, m1, m2, m3):
    g.A(f"v_cndmask_b32 v{dst}, v{r0}, v{r1}, s[{m1}:{m1+1}]")
    g.A(f"v_cndmask_b32 v{dst}, v{dst}, v{r2}, s[{m2}:{m2+1}]")
    g.A(f"v_cndmask_b32 v{dst}, v{dst}, v{r3}, s[{m3}:{m3+1}]")

def build(opt):
    g = G(opt)
    A = g.A
    polK = opt.get("polK", " nt"); polV = opt.get("polV", " nt"); polW = opt.get("polW", " nt")
    W = opt.get("W", 16)
    PRIO = opt.get("prio", 1)
    SX = opt.get("SX", 0)
    def prio(p):
        if PRIO: A(f"s_setprio {p}")
    hdr = open(f"cdna_kernels/{NAME}.s.ref").read().split("\n")
    for line in hdr:
        if line.startswith("; @launch"):
            g.L.append(f"; @launch grid=(256,1,1) block=(512,1,1) lds={L_END}")
            break
        g.L.append(line)
    g.L += ['.amdgcn_target "amdgcn-amd-amdhsa--gfx950"'] + DOC.strip().split("\n") + [".text", f".globl {NAME}_kernel", ".p2align 8",
            f".type {NAME}_kernel,@function"]
    g.lbl(f"{NAME}_kernel")
    if opt.get("stamps"): A("s_memrealtime s[92:93]")
    A("s_cmp_ge_u32 s2, 256")
    A("s_cbranch_scc1 L_end")
    A("s_load_dwordx16 s[64:79], s[0:1], 0")
    A("s_load_dwordx8 s[80:87], s[0:1], 64")
    A("s_load_dwordx2 s[90:91], s[0:1], 104")
    A(f"s_getpc_b64 s[{sST}:{sST+1}]")
    g.lbl("L_pc")
    A(f"v_lshlrev_b32 v{vT}, 6, v0")
    A(f"v_min_u32 v{vT}, L_end - L_pc - 4, v{vT}")
    A(f"global_load_dword v15, v{vT}, s[{sST}:{sST+1}]")
    prio(3)
    A(f"v_lshrrev_b32 v{vL}, 6, v0")
    A(f"s_sub_u32 s{sS}, s2, {SX+1}")
    A(f"v_readfirstlane_b32 s{sWAVE}, v{vL}")
    A(f"v_and_b32 v{vL}, 63, v0")
    A(f"v_and_b32 v{vJ}, 15, v0")
    A(f"v_lshrrev_b32 v{vGR}, 4, v{vL}")
    A(f"v_lshrrev_b32 v{vKO}, 2, v{vJ}")
    A(f"v_lshlrev_b32 v{vKO}, {12 if opt.get('KS', 0) else 11}, v{vKO}")
    A(f"v_lshl_add_u32 v{vKO}, v{vGR}, 6, v{vKO}")
    A(f"v_and_b32 v12, 3, v0")
    A(f"v_lshl_add_u32 v{vKO}, v12, 4, v{vKO}")
    A(f"v_lshlrev_b32 v{vL16}, 4, v{vL}")
    A(f"v_mov_b32 v{vE}, 0")
    A(f"v_lshlrev_b32 v{vT}, 2, v{vL}")
    A(f"v_add_u32 v{vT}, {L_RED}, v{vT}")
    A(f"ds_write_b32 v{vT}, v{vE}")
    A(f"s_and_b32 s{sS}, s{sS}, 7")
    A(f"s_lshr_b32 s{sN}, s2, 3")
    A(f"s_and_b32 s{sB_}, s{sN}, 3")
    A(f"s_lshr_b32 s{sKVH}, s{sN}, 2")
    A(f"s_lshl_b32 s{sGRP}, s{sB_}, 3")
    A(f"s_add_u32 s{sGRP}, s{sGRP}, s{sKVH}")
    A(f"s_lshl_b32 s{sT0}, s{sGRP}, 21")
    A(f"s_and_b32 s{sT1}, s{sWAVE}, 3")
    A(f"s_lshl_b32 s{sT2}, s{sS}, 2")
    A(f"s_add_u32 s{sT1}, s{sT1}, s{sT2}")
    A(f"s_lshr_b32 s{sT2}, s{sWAVE}, 2")
    A(f"s_mul_i32 s{sT2}, s{sT2}, 28")
    A(f"s_add_u32 s{sT1}, s{sT1}, s{sT2}")
    GR = opt.get("GR", 0)
    if GR:
        A(f"s_mul_i32 s{sT2}, s{sGRP}, {GR}")
        A(f"s_add_u32 s{sT1}, s{sT1}, s{sT2}")
        A(f"s_and_b32 s{sT1}, s{sT1}, 127")
    A(f"s_lshl_b32 s{sT1}, s{sT1}, 14")
    A(f"s_add_u32 s{sKB}, s{sT0}, s{sT1}")
    A(f"s_mul_i32 s{sT1}, s{sS}, 5")
    A(f"s_add_u32 s{sT1}, s{sT1}, s{sN}")
    A(f"s_and_b32 s{sT1}, s{sT1}, 31")
    A(f"s_mul_i32 s{sT1}, s{sT1}, 7")
    A(f"s_add_u32 s{sT1}, s{sT1}, s{sS}")
    A(f"s_cmp_eq_u32 s{sS}, 7")
    A(f"s_cselect_b32 s{sN}, s{sN}, s{sT1}")
    A(f"s_mov_b32 s{sK+2}, {64<<20}")
    A(f"s_mov_b32 s{sK+3}, 0x20000")
    A(f"s_cmp_lt_u32 s{sN}, 42")
    A("s_waitcnt lgkmcnt(0)")
    A("s_barrier")
    A(f"global_load_dword v{vE}, v{vE}, s[{P_WS}:{P_WS+1}] sc1")
    A(f"s_mov_b32 s{sK}, s{P_K}")
    A(f"s_mov_b32 s{sK+1}, s{P_K+1}")
    A("s_cbranch_scc1 L_early")
    VF = opt.get("VF", 0)
    vm = VM(g, W, 2)
    if VF:
        A(f"s_and_b32 s{sXO}, s{sGRP if VF == 1 else (sS if VF == 2 else sWAVE)}, {opt.get('VFM', 1)}")
        A("s_cbranch_scc1 L_main0")
    k_tile(g, vm, polK, sKB, 0, vK)
    A("s_branch L_main0")
    SID = sN
    c4 = 12
    vRO, vSW = 10, 11
    def dma(n, swz):
        for i in range(n):
            A(f"s_mov_b32 m0, s{sLDS}")
            A(f"s_add_u32 s{sLDS}, s{sLDS}, 1024")
            A(f"buffer_load_dwordx4 v{vDM}, s[{sA}:{sA+3}], s{sSTART} offen{polW} lds")
            A(f"s_add_u32 s{sSTART}, s{sSTART}, s{sSTEP}")
            if swz: A(f"v_xor_b32 v{vDM}, 64, v{vDM}")
    g.lbl("L_early")
    A(f"s_cmp_eq_u32 s{sS}, 7")
    A(f"s_cselect_b32 s{sB}, s{P_X}, s{P_C}")
    A(f"s_cselect_b32 s{sB+1}, s{P_X+1}, s{P_C+1}")
    A(f"s_mov_b32 s{sB+2}, 3584")
    A(f"s_mov_b32 s{sB+3}, 0x20000")
    A(f"s_cselect_b32 s{sA}, s{P_WQ}, s{P_WM}")
    A(f"s_cselect_b32 s{sA+1}, s{P_WQ+1}, s{P_WM+1}")
    A(f"s_mov_b32 s{sSTEP}, 5376")
    A(f"s_cselect_b32 s{sSTEP}, 8192, s{sSTEP}")
    A(f"s_mov_b32 s{sT0}, 1024")
    A(f"s_cselect_b32 s{sT0}, 896, s{sT0}")
    A(f"s_cselect_b32 s{sT1}, 3, 4")
    A(f"s_cselect_b32 s{sT2}, 6, 0")
    A(f"s_cselect_b32 s{sT3}, 48, 64")
    A(f"s_cselect_b32 s{sLDS}, 8, 7")
    A(f"s_mul_i32 s{sT0}, s{sT0}, s{sWAVE}")
    A(f"s_lshl_b32 s{sT2}, 8, s{sT2}")
    A(f"v_lshlrev_b32 v13, s{sT1}, v{vL}")
    A(f"v_cmp_gt_u32 vcc, s{sT3}, v{vL}")
    A(f"buffer_load_dwordx2 v[16:17], v13, s[{sB}:{sB+3}], s{sT0} offen")
    A(f"v_add_u32 v13, s{sT2}, v13")
    A(f"v_mov_b32 v{vT}, 0x100000")
    A(f"v_cndmask_b32 v13, v{vT}, v13, vcc")
    A(f"buffer_load_dwordx2 v[18:19], v13, s[{sB}:{sB+3}], s{sT0} offen")
    A(f"s_mul_i32 s{sA+2}, s{sSTEP}, {0 if opt.get('skip', 0) & 1 else 448}")
    A(f"s_mov_b32 s{sA+3}, 0x20000")
    A(f"v_lshrrev_b32 v{vRO}, 3, v{vL}")
    A(f"v_and_b32 v{vSW}, 7, v{vL}")
    A(f"v_and_b32 v{vT}, 2, v{vRO}")
    A(f"v_xor_b32 v{vSW}, v{vSW}, v{vT}")
    A(f"v_lshlrev_b32 v{vSW}, 4, v{vSW}")
    A(f"s_and_b32 s{sT1}, s{sWAVE}, 1")
    A(f"s_lshl_b32 s{sT1}, s{sT1}, 6")
    A(f"v_xor_b32 v{vSW}, s{sT1}, v{vSW}")
    A(f"v_mad_u32_u24 v{vDM}, v{vRO}, s{sSTEP}, v{vSW}")
    A(f"s_lshl_b32 s{sSTART}, s{SID}, s{sLDS}")
    JS = opt.get("JS", 0)
    if JS:
        A(f"s_lshr_b32 s{sT0}, s{sLDS}, 3")
        A(f"s_and_b32 s{sT0}, s{sT0}, s{SID}")
        A(f"s_lshl_b32 s{sXO}, s{sT0}, 7")
        A(f"s_add_u32 s{sSTART}, s{sSTART}, s{sXO}")
    A(f"s_lshl_b32 s{sSTEP}, s{sSTEP}, 3")
    A(f"s_mul_i32 s{sT0}, s{sWAVE}, 7")
    A(f"s_mul_i32 s{sT1}, s{sT0}, s{sSTEP}")
    A(f"s_add_u32 s{sSTART}, s{sSTART}, s{sT1}")
    A(f"s_lshl_b32 s{sLDS}, s{sT0}, 10")
    dma(7, True)
    def consts():
        srd(g, sWS, P_WS, WS_SIZE)
        A(f"s_mov_b32 s{sM48}, -1"); A(f"s_mov_b32 s{sM48+1}, 0x0000ffff")
        A(f"s_mov_b32 s{sHI}, 0xffff0000")
        A(f"s_mov_b32 s{sRETRY}, 0x80000")
        A(f"s_mov_b32 s{sM1}, 0xffff0000"); A(f"s_mov_b32 s{sM1+1}, 0")
        A(f"s_mov_b32 s{sM2}, 0"); A(f"s_mov_b32 s{sM2+1}, 0xffff")
        A(f"s_mov_b32 s{sM3}, 0"); A(f"s_mov_b32 s{sM3+1}, 0xffff0000")
        A(f"s_mov_b32 s{sQ1}, 0x22222222"); A(f"s_mov_b32 s{sQ1+1}, 0x22222222")
        A(f"s_mov_b32 s{sQ2}, 0x44444444"); A(f"s_mov_b32 s{sQ2+1}, 0x44444444")
        A(f"s_mov_b32 s{sQ3}, 0x88888888"); A(f"s_mov_b32 s{sQ3+1}, 0x88888888")
        if opt.get("stamps"):
            for i in range(1, NSTAMP): A(f"s_mov_b32 s{92+i}, 0")
    def wfrags(addr, rowbytes, dst=64):
        for ks in range(14):
            r = dst + 4*ks
            A(f"ds_read_b64_tr_b16 v[{r}:{r+1}], v{addr} offset:{ks*32*rowbytes}")
            A(f"ds_read_b64_tr_b16 v[{r+2}:{r+3}], v{addr} offset:{ks*32*rowbytes + 4*rowbytes}")
            if ks % 4 == 3: A("s_waitcnt lgkmcnt(6)")
    def gemv_pub(abase, astride, bstride):
        A(f"v_mul_u32_u24 v{vT}, {astride}, v{c4}")
        A(f"v_lshl_add_u32 v{vT}, v{vGR}, 4, v{vT}")
        A(f"v_add_u32 v{vT}, {abase}, v{vT}")
        A("s_waitcnt lgkmcnt(0)")
        for ks in range(14):
            A(f"ds_read_b128 v[{128+4*ks}:{131+4*ks}], v{vT} offset:{64*ks}")
        for ks in range(14):
            A(f"s_waitcnt lgkmcnt({13-ks})")
            c = "0" if ks == 0 else "v[16:19]"
            A(f"v_mfma_f32_16x16x32_bf16 v[16:19], v[{64+4*ks}:{67+4*ks}], v[{128+4*ks}:{131+4*ks}], {c}")
        A(f"v_mul_u32_u24 v{vT}, {bstride}, v{c4}")
        A(f"v_lshl_add_u32 v{vT}, v{vGR}, 4, v{vT}")
        A(f"v_mov_b32 v22, 0")
        A(f"v_mov_b32 v23, s{sTAG}")
        A(f"s_mov_b32 exec_lo, 0x000f000f")
        A(f"s_mov_b32 exec_hi, 0x000f000f")
        g.nop(2)
        A(f"v_cvt_pk_bf16_f32 v20, v16, v17")
        A(f"v_cvt_pk_bf16_f32 v21, v18, v19")
        A(f"buffer_store_dwordx4 v[20:23], v{vT}, s[{sWS}:{sWS+3}], s{sT3} offen sc1")
        A("s_mov_b64 exec, -1")
    A(f"s_cmp_eq_u32 s{sS}, 7")
    A("s_cbranch_scc1 L_svc")
    consts()
    A(f"s_cmp_lt_u32 s{sWAVE}, 4")
    A("s_cbranch_scc0 L_m1")
    A("s_waitcnt vmcnt(7)")
    get_tag(g)
    for i in range(4): unpack(g, 16+i, 24+2*i, 25+2*i)
    A(f"s_lshl_b32 s{sT2}, s{sWAVE}, 10")
    A(f"s_add_u32 s{sT2}, s{sT2}, {L_SC}")
    A(f"v_add_u32 v{vT}, s{sT2}, v{vL16}")
    for i in range(8): A(f"v_mul_f32 v{32+i}, {f2u(-LOG2E):#x}, v{24+i}")
    for i in range(8): A(f"v_exp_f32 v{32+i}, v{32+i}")
    for i in range(8): A(f"v_add_f32 v{32+i}, 1.0, v{32+i}")
    for i in range(8): A(f"v_rcp_f32 v{32+i}, v{32+i}")
    for i in range(8): A(f"v_mul_f32 v{24+i}, v{24+i}, v{32+i}")
    for i in range(4): A(f"v_cvt_pk_bf16_f32 v{24+i}, v{24+2*i}, v{25+2*i}")
    A(f"ds_write_b128 v{vT}, v[24:27]")
    A(f"v_lshrrev_b32 v13, 2, v{vJ}")
    A(f"v_lshl_add_u32 v13, v{vGR}, 3, v13")
    A(f"v_lshlrev_b32 v13, 7, v13")
    A(f"v_lshl_add_u32 v13, v{c4}, 3, v13")
    A(f"v_bfe_u32 v{vT}, v{vL}, 3, 2")
    A(f"v_xor_b32 v{vT}, s{sWAVE}, v{vT}")
    A(f"v_lshl_add_u32 v13, v{vT}, 5, v13")
    A(f"s_lshl_b32 s{sT3}, s{SID}, 8")
    A(f"s_lshl_b32 s{sT0}, s{sWAVE}, 6")
    A(f"s_add_u32 s{sT3}, s{sT3}, s{sT0}")
    A(f"s_add_u32 s{sT3}, s{sT3}, {WS_M}")
    g.lbl("L_m1")
    A("s_waitcnt vmcnt(0) lgkmcnt(0)")
    A("s_barrier")
    A(f"s_cmp_lt_u32 s{sWAVE}, 4")
    A("s_cbranch_scc0 L_m2")
    wfrags(13, 128)
    gemv_pub(L_SC, 896, MB)
    stamp(g, 1)
    g.lbl("L_m2")
    if VF: A(f"s_mov_b32 s{sXO}, 0")
    k_tile(g, VM(g, 0), polK, sKB, 0, vK)
    A("s_branch L_main1")
    g.lbl("L_main0")
    consts()
    g.lbl("L_main1")
    srd(g, sV, P_V, 64 << 20)
    A(f"v_lshlrev_b32 v13, 12, v{vGR}")
    A(f"v_lshl_add_u32 v13, v{vJ}, 4, v13")
    RS = opt.get("RS", 512)
    A(f"v_lshrrev_b32 v{vVO}, 2, v{vJ}")
    A(f"v_mul_u32_u24 v{vVO}, {4*RS}, v{vVO}")
    A(f"v_and_b32 v{vT}, 255, v{vKO}")
    A(f"v_add_u32 v{vVO}, v{vVO}, v{vT}")
    A(f"v_mul_u32_u24 v{vVU}, {4*RS}, v{vGR}")
    A(f"v_lshl_add_u32 v{vVU}, v{vJ}, 4, v{vVU}")
    A(f"s_mov_b32 s{sR8}, 0xff00ff00"); A(f"s_mov_b32 s{sR8+1}, 0xff00ff00")
    A(f"s_mov_b32 s{sPLO}, 0x05040100"); A(f"s_mov_b32 s{sPHI}, 0x07060302")
    A(f"s_mov_b32 s{sC}, {f2u(0.0625*LOG2E):#x}")
    if VF:
        A(f"s_cmp_eq_u32 s{sXO}, 0")
        A("s_cbranch_scc1 L_kfirst")
        vm2 = VM(g, W, 2)
        v_group(g, vm2, polV, 0)
        v_group(g, vm2, polV, 1)
        prio(2)
        k_tile(g, VM(g, W, W), polK, sKB, 0, vK)
        k_tile(g, VM(g, W, W), polK, sKB, 8192, vK+32)
        A("s_branch L_sdone")
        g.lbl("L_kfirst")
    k_tile(g, vm, polK, sKB, 8192, vK+32)
    prio(2)
    v_group(g, VM(g, W, W), polV, 0)
    v_group(g, VM(g, W, W), polV, 1)
    g.lbl("L_sdone")
    get_tag(g)
    NU = 144
    TY = opt.get("TY", 32)
    A(f"s_lshl_b32 s{sT0}, s{sGRP}, 8")
    A(f"s_add_u32 s{sT0}, s{sT0}, {WS_CNT}")
    A(f"s_add_u32 s{sCNT}, s{P_WS}, s{sT0}")
    A(f"s_addc_u32 s{sCNT+1}, s{P_WS+1}, 0")
    A(f"s_lshl_b32 s{sKB}, s{sGRP}, 21")
    if GR:
        A(f"s_mul_i32 s{sXO}, s{sGRP}, {2*GR}")
        A(f"s_add_u32 s{sXO}, s{sXO}, 112")
    else:
        A(f"s_add_u32 s{sKB}, s{sKB}, {1792*512}")
    A(f"s_cmp_lt_u32 s{sWAVE}, 4")
    A(f"s_mov_b32 s{sLIM}, {TY}")
    A(f"s_cselect_b32 s{sLIM}, {NU}, s{sLIM}")
    TB = opt.get("TB", 0)
    sBU = sFAST
    if TB:
        A(f"s_cmp_ge_u32 s{sWAVE}, {8 - opt.get('NB', 4)}")
        A(f"s_cselect_b32 s{sBU}, 1, 0")
    g.lbl("L_peek")
    A(f"s_mov_b64 s[{sCX+2}:{sCX+3}], 0")
    A(f"s_atomic_add_x2 s[{sCX+2}:{sCX+3}], s[{sCNT}:{sCNT+1}], 0 glc")
    A("s_waitcnt lgkmcnt(0)")
    A(f"s_cmp_eq_u32 s{sCX+3}, s{sTAG}")
    A("s_cbranch_scc1 L_peek_ok")
    A(f"s_mov_b32 s{sCX}, 0")
    A(f"s_mov_b32 s{sCX+1}, s{sTAG}")
    A(f"s_atomic_cmpswap_x2 s[{sCX}:{sCX+3}], s[{sCNT}:{sCNT+1}], 0 glc")
    A("s_waitcnt lgkmcnt(0)")
    A(f"s_sub_u32 s{sRETRY}, s{sRETRY}, 1")
    A("s_cbranch_scc0 L_peek")
    A(f"s_mov_b32 s{sRETRY}, 0")
    g.lbl("L_peek_ok")
    A(f"s_mov_b32 s{sTK}, s{sCX+2}")
    ncl = [0]
    def claim():
        ncl[0] += 1
        A(f"s_cmp_lt_u32 s{sTK}, s{sLIM}")
        A(f"s_mov_b32 s{sTK}, 0xffff")
        A(f"s_cbranch_scc0 L_nc{ncl[0]}")
        A(f"s_mov_b32 s{sTK}, 1")
        A(f"s_atomic_add s{sTK}, s[{sCNT}:{sCNT+1}], 0 glc")
        g.lbl(f"L_nc{ncl[0]}")
    def unit_base():
        if GR:
            A(f"s_add_u32 s{sUB}, s{sTK}, s{sXO}")
            A(f"s_and_b32 s{sUB}, s{sUB}, 255")
            A(f"s_lshl_b32 s{sUB}, s{sUB}, 13")
        elif RS != 512:
            n = RS // 512
            A(f"s_and_b32 s{sT0}, s{sTK}, {n-1}")
            A(f"s_lshl_b32 s{sT0}, s{sT0}, 9")
            A(f"s_andn2_b32 s{sUB}, s{sTK}, {n-1}")
            A(f"s_lshl_b32 s{sUB}, s{sUB}, 13")
            A(f"s_add_u32 s{sUB}, s{sUB}, s{sT0}")
        else:
            A(f"s_lshl_b32 s{sUB}, s{sTK}, 13")
        A(f"s_add_u32 s{sUB}, s{sUB}, s{sKB}")
    OS = opt.get("OS", 0)
    if OS:
        A(f"s_cmp_lt_u32 s{sWAVE}, 4")
        A(f"s_cselect_b32 s{sTK}, 0x7fff, s{sTK}")
    claim()
    def qloads():
        for i in range(2):
            A(f"buffer_load_dwordx4 v[{16+4*i}:{19+4*i}], v{vL16}, s[{sWS}:{sWS+3}], s{sPX} offen offset:{1024*i} sc1")
    A(f"s_lshl_b32 s{sT1}, s{sB_}, 14")
    A(f"s_lshl_b32 s{sT2}, s{sKVH}, 11")
    A(f"s_add_u32 s{sT1}, s{sT1}, s{sT2}")
    A(f"s_add_u32 s{sPX}, s{sT1}, {WS_Q}")
    QLATE = opt.get("QLATE", 1)
    if not QLATE: qloads()
    if OS:
        A(f"s_cmp_lt_u32 s{sWAVE}, 4")
        A("s_cbranch_scc1 L_yp")
        prio(1)
    else:
        prio(1)
        A(f"s_cmp_lt_u32 s{sWAVE}, 4")
        A("s_cbranch_scc0 L_yp")
        prio(0)
    g.lbl("L_yp")
    A("s_waitcnt lgkmcnt(0)")
    A(f"s_cmp_lt_u32 s{sTK}, {NU}")
    A(f"s_cbranch_scc0 {'L_qpoll' if QLATE else 'L_qwait'}")
    unit_base()
    k_unit(g, VM(g, W, W), polK)
    if QLATE: qloads()
    v_unit(g, VM(g, W, W), polV)
    A(f"s_waitcnt vmcnt({8 if QLATE else 16})")
    A("s_branch L_qchk")
    g.lbl("L_qpoll")
    qloads()
    g.lbl("L_qwait")
    A("s_waitcnt vmcnt(0)")
    g.lbl("L_qchk")
    if not opt.get("noq"): check_tags(g, [19, 23], "L_qpoll")
    stamp(g, 3)
    A(f"v_lshlrev_b32 v{vT+2}, 3, v{vL}")
    A(f"v_add_u32 v{vT+2}, {L_Q}, v{vT+2}")
    A(f"ds_write_b64 v{vT+2}, v[16:17]")
    A(f"ds_write_b64 v{vT+2}, v[20:21] offset:512")
    A(f"v_bfe_u32 v{vT}, v{vJ}, 2, 1")
    A(f"v_lshlrev_b32 v{vT}, 9, v{vT}")
    A(f"v_lshl_add_u32 v{vT}, v{vGR}, 6, v{vT}")
    A(f"v_and_b32 v{vT+1}, 3, v{vL}")
    A(f"v_lshl_add_u32 v{vT}, v{vT+1}, 4, v{vT}")
    A(f"v_add_u32 v{vT}, {L_Q}, v{vT}")
    QL, QH = 48, 56
    A(f"ds_read_b128 v[{QL}:{QL+3}], v{vT}")
    A(f"ds_read_b128 v[{QL+4}:{QL+7}], v{vT} offset:256")
    A(f"s_waitcnt lgkmcnt(0)")
    for i in range(8):
        A(f"v_cndmask_b32 v{QH+i}, 0, v{QL+i}, s[{sR8}:{sR8+1}]")
    for i in range(8):
        A(f"v_cndmask_b32 v{QL+i}, v{QL+i}, 0, s[{sR8}:{sR8+1}]")
    g.nop(2)
    def qk_tile(src, D0):
        for jj in range(8):
            kq, blk = jj >> 1, jj & 1
            d = D0 + 4*(kq >> 1)
            q = (QH if (kq & 1) else QL) + 4*blk
            r = src + 4*jj
            c = "0" if (jj & 3) == 0 else f"v[{d}:{d+3}]"
            A(f"v_mfma_f32_16x16x32_bf16 v[{d}:{d+3}], v[{q}:{q+3}], v[{r}:{r+3}], {c}")
    SD = 16
    for t in range(2): qk_tile(vK + 32*t, SD + 8*t)
    PFA, PFU, vPW, vPR, UD = 176, 180, 182, 183, 184
    A(f"v_and_b32 v12, 1, v{vGR}")
    A(f"v_and_b32 v{vT}, 1, v{vL}")
    A(f"v_lshrrev_b32 v13, 1, v{vGR}")
    A(f"v_lshl_add_u32 v{vPW}, v{vT}, 1, v13")
    A(f"v_lshrrev_b32 v13, 2, v{vJ}")
    A(f"v_lshl_add_u32 v{vPW}, v13, 2, v{vPW}")
    A(f"v_lshlrev_b32 v{vPW}, 1, v{vPW}")
    A(f"v_lshl_add_u32 v{vPW}, v12, 7, v{vPW}")
    A(f"s_lshl_b32 s{sT1}, s{sWAVE}, 9")
    A(f"s_add_u32 s{sT1}, s{sT1}, {L_P}")
    A(f"v_lshlrev_b32 v{vPR}, 7, v13")
    A(f"v_add_u32 v{vPW}, s{sT1}, v{vPW}")
    if opt.get("KS", 0):
        A(f"v_lshl_add_u32 v{vT}, v13, 3, v{vPW}")
        A(f"v_bfe_u32 v13, v{vL}, 1, 1")
        A(f"v_lshl_add_u32 v13, v13, 3, v{vT}")
    else:
        A(f"v_bfe_u32 v13, v{vL}, 1, 1")
        A(f"v_lshl_add_u32 v13, v13, 5, v{vPW}")
    A(f"v_add_u32 v{vPR}, s{sT1}, v{vPR}")
    A(f"v_lshl_add_u32 v12, v{vGR}, 4, v{vPR}")
    A(f"v_lshl_add_u32 v{vPR}, v{vGR}, 3, v{vPR}")
    A(f"s_mov_b32 s{sR8}, 0xaaaaaaaa"); A(f"s_mov_b32 s{sR8+1}, 0xaaaaaaaa")
    for d in range(4):
        D = SD + 4*d
        sel4(g, D, D, D+1, D+2, D+3, sQ1, sQ2, sQ3)
    for pat in ("quad_perm:[1,0,3,2]", "quad_perm:[2,3,0,1]"):
        for d in range(4):
            D = SD + 4*d
            A(f"v_add_f32 v{D}, v{D}, v{D} {pat} {DPP}")
    S0, S1 = 10, 11
    sel4(g, S0, SD, SD+4, SD+8, SD+12, sQ1, sQ2, sQ3)
    rnd1(g, S0)
    A(f"v_mov_b32 v{vM}, v{S0}")
    wave_reduce(g, "v_max_f32", [vM], [17], swaps=("v_permlane32_swap_b32",))
    A(f"v_sub_f32 v{S0}, v{S0}, v{vM}")
    A(f"v_mul_f32 v{S0}, s{sC}, v{S0}")
    A(f"v_exp_f32 v{vLS}, v{S0}")
    g.nop(1)
    A(f"v_cvt_pk_bf16_f32 v20, v{vLS}, v{vLS}")
    A(f"v_lshlrev_b32 v20, 16, v20")
    A(f"v_sub_f32 v20, v{vLS}, v20")
    A(f"v_cvt_pk_bf16_f32 v20, v{vLS}, v20")
    A(f"ds_write_b16 v13, v20")
    A(f"ds_write_b16_d16_hi v13, v20 offset:256")
    A(f"ds_read_b128 v[{PFA}:{PFA+3}], v12")
    A("s_waitcnt lgkmcnt(0)")
    ACCB = (16, 128)
    PT = 160
    for eta in range(2):
        R = vVE + 32*eta
        for c in range(4):
            T = PT + 8*(c & 1)
            for m in range(4):
                A(f"v_perm_b32 v{T+m}, v{R+4*(2*m+1)+c}, v{R+4*(2*m)+c}, s{sPLO}")
            for m in range(4):
                A(f"v_perm_b32 v{T+4+m}, v{R+4*(2*m+1)+c}, v{R+4*(2*m)+c}, s{sPHI}")
            g.nop(1)
            for hh in range(2):
                acc = ACCB[eta] + 4*(2*c + hh)
                A(f"v_mfma_f32_16x16x32_bf16 v[{acc}:{acc+3}], v[{PFA}:{PFA+3}], v[{T+4*hh}:{T+4*hh+3}], 0")
    A(f"v_and_b32 v12, 1, v{vGR}")
    A(f"v_lshlrev_b32 v{vRW}, 6, v12")
    A(f"s_lshl_b32 s{sT0}, s{sWAVE}, 3")
    A(f"s_add_u32 s{sT0}, s{sT0}, {L_RED}")
    A(f"v_add_u32 v{vRW}, s{sT0}, v{vRW}")
    A(f"s_bfe_u32 s{sT0}, s{sWAVE}, 0x10001")
    A(f"s_lshl_b32 s{sT0}, s{sT0}, 6")
    A(f"s_add_u32 s{sT0}, s{sT0}, {L_RED}")
    A(f"v_and_b32 v{vRR}, 7, v{vL}")
    A(f"v_lshl_add_u32 v{vRR}, v{vRR}, 3, s{sT0}")
    A(f"v_lshlrev_b32 v{vOLW}, 10, v12")
    A(f"v_lshl_add_u32 v{vOLW}, v{vJ}, 5, v{vOLW}")
    A(f"v_lshrrev_b32 v12, 1, v{vGR}")
    A(f"v_lshl_add_u32 v{vOLW}, v12, 4, v{vOLW}")
    A(f"s_lshl_b32 s{sT1}, s{sWAVE}, 11")
    A(f"s_add_u32 s{sT1}, s{sT1}, {L_OL}")
    A(f"v_add_u32 v{vOLW}, s{sT1}, v{vOLW}")
    A(f"s_and_b32 s{sT2}, s{sWAVE}, 3")
    A(f"s_lshl_b32 s{sT0}, s{sT2}, 9")
    A(f"s_add_u32 s{sT0}, s{sT0}, {L_OL}")
    A(f"v_lshl_add_u32 v{vOLR}, v{vL}, 3, s{sT0}")
    A(f"v_lshrrev_b32 v82, 5, v{vL}")
    A(f"v_mul_u32_u24 v82, {4096-512}, v82")
    A(f"v_add_u32 v82, v82, v{vL16}")
    A(f"s_lshl_b32 s{sO_DST}, s{sGRP}, 15")
    A(f"s_lshl_b32 s{sT1}, s{sT2}, 13")
    A(f"s_add_u32 s{sO_DST}, s{sO_DST}, s{sT1}")
    A(f"s_lshl_b32 s{sT1}, s{sS}, 9")
    A(f"s_add_u32 s{sO_DST}, s{sO_DST}, s{sT1}")
    A(f"s_add_u32 s{sO_DST}, s{sO_DST}, {WS_O}")
    PUB = 84
    A(f"v_mov_b32 v{PUB+3}, s{sTAG}")
    A(f"s_cmp_lt_u32 s{sTK}, {NU}")
    A("s_cbranch_scc1 L_top")
    if OS:
        A(f"s_cmp_lt_u32 s{sWAVE}, 4")
        A("s_cbranch_scc0 L_nounit")
        prio(0)
        A(f"s_mov_b32 s{sTK}, 0")
        claim()
        A("s_waitcnt lgkmcnt(0)")
        A(f"s_cmp_lt_u32 s{sTK}, {NU}")
        A("s_cbranch_scc0 L_nounit")
        unit_base()
        k_unit(g, VM(g, 0), polK)
        v_unit(g, VM(g, 0), polV)
        A("s_branch L_top")
        g.lbl("L_nounit")
    if TB:
        A(f"s_cmp_eq_u32 s{sBU}, 0")
        A("s_cbranch_scc1 L_nob")
        g.lbl("L_burst")
        A(f"s_mov_b32 s{sBU}, 0")
        g.lbl("L_bw")
        A("s_sleep 8")
        A(f"s_load_dword s{sT3}, s[{sCNT}:{sCNT+1}], 0 glc")
        A("s_waitcnt lgkmcnt(0)")
        A(f"s_cmp_ge_u32 s{sT3}, {TB}")
        A("s_cbranch_scc1 L_bgo")
        A(f"s_sub_u32 s{sRETRY}, s{sRETRY}, 1")
        A("s_cbranch_scc0 L_bw")
        A(f"s_mov_b32 s{sRETRY}, 0")
        g.lbl("L_bgo")
        A(f"s_mov_b32 s{sLIM}, 0")
        A(f"s_mov_b32 s{sTK}, 1")
        A(f"s_atomic_add s{sTK}, s[{sCNT}:{sCNT+1}], 0 glc")
        A("s_waitcnt lgkmcnt(0)")
        A(f"s_cmp_lt_u32 s{sTK}, {NU}")
        A("s_cbranch_scc0 L_nob")
        unit_base()
        k_unit(g, VM(g, 0), polK)
        v_unit(g, VM(g, 0), polV)
        A("s_branch L_top")
        g.lbl("L_nob")
    wave_reduce(g, "v_add_f32", [vLS], [12], swaps=("v_permlane32_swap_b32",))
    A(f"ds_write_b64 v{vRW}, v[{vM}:{vLS}]")
    A("s_branch L_exit2")

    g.lbl("L_top")
    CE = opt.get("CE", 10)
    A(f"s_waitcnt vmcnt({CE})")
    if opt.get("trace"):
        A("s_waitcnt vmcnt(8)")
        A(f"s_memrealtime s[{sST}:{sST+1}]")
        for i in range(101, 93, -1): A(f"s_mov_b32 s{i}, s{i-1}")
        A("s_waitcnt lgkmcnt(0)")
        A(f"s_sub_u32 s93, s{sST}, s92")
        A(f"s_lshl_b32 s93, s93, 8")
        A(f"s_or_b32 s93, s93, s{sTK}")
    claim()
    A("s_waitcnt vmcnt(8)")
    qk_tile(vKU, UD)
    g.nop(5)
    sel4(g, UD, UD, UD+1, UD+2, UD+3, sQ1, sQ2, sQ3)
    sel4(g, UD+4, UD+4, UD+5, UD+6, UD+7, sQ1, sQ2, sQ3)
    for pat in ("quad_perm:[1,0,3,2]", "quad_perm:[2,3,0,1]"):
        g.nop(1)
        for D in (UD, UD+4):
            A(f"v_add_f32 v{D}, v{D}, v{D} {pat} {DPP}")
    A(f"v_cndmask_b32 v{S1}, v{UD}, v{UD+4}, s[{sR8}:{sR8+1}]")
    rnd1(g, S1)
    A(f"v_max_f32 v{S0}, v{S1}, v{vM}")
    for pat in ("quad_perm:[1,0,3,2]", "row_half_mirror", "row_mirror"):
        g.nop(2)
        A(f"v_max_f32 v{S0}, v{S0}, v{S0} {pat} {DPP}")
    A(f"v_mov_b32 v12, v{S0}")
    g.nop(2)
    A(f"v_permlane32_swap_b32 v{S0}, v12")
    A(f"v_max_f32 v{S0}, v{S0}, v12")
    A(f"v_sub_f32 v{S1}, v{S1}, v{S0}")
    A(f"v_sub_f32 v12, v{vM}, v{S0}")
    A(f"v_cmp_neq_f32 vcc, v{vM}, v{S0}")
    A(f"v_mul_f32 v{S1}, s{sC}, v{S1}")
    A(f"v_mul_f32 v12, s{sC}, v12")
    A(f"v_exp_f32 v{S1}, v{S1}")
    A(f"v_exp_f32 v12, v12")
    A(f"v_mov_b32 v{vM}, v{S0}")
    A(f"v_cvt_pk_bf16_f32 v13, v{S1}, v{S1}")
    A(f"v_mul_f32 v{vLS}, v{vLS}, v12")
    A(f"v_lshlrev_b32 v13, 16, v13")
    A(f"v_sub_f32 v13, v{S1}, v13")
    A(f"v_cvt_pk_bf16_f32 v13, v{S1}, v13")
    A(f"ds_write_b16 v{vPW}, v13 offset:64")
    A(f"ds_write_b16_d16_hi v{vPW}, v13 offset:{256+64}")
    A(f"ds_read_b64 v[{PFU}:{PFU+1}], v{vPR} offset:64")
    A(f"v_fma_f32 v{vLS}, v{S1}, 0.5, v{vLS}")
    A("s_cbranch_vccz L_nors")
    for B in ACCB:
        for e in range(8):
            A(f"v_mul_f32 v{B+4*e}, v{B+4*e}, v12")
    g.lbl("L_nors")
    A("s_waitcnt lgkmcnt(0)")
    A(f"s_cmp_lt_u32 s{sTK}, {NU}")
    A("s_cbranch_scc0 L_last")
    unit_base()
    k_unit(g, VM(g, 0), polK)
    g.lbl("L_pv")
    A("s_waitcnt vmcnt(8)")
    for eta in range(2):
        R = vVB + 16*eta
        for c in range(4):
            T = PT + 4*(c & 3)
            A(f"v_perm_b32 v{T}, v{R+4+c}, v{R+c}, s{sPLO}")
            A(f"v_perm_b32 v{T+1}, v{R+12+c}, v{R+8+c}, s{sPLO}")
            A(f"v_perm_b32 v{T+2}, v{R+4+c}, v{R+c}, s{sPHI}")
            A(f"v_perm_b32 v{T+3}, v{R+12+c}, v{R+8+c}, s{sPHI}")
        for c in range(4):
            T = PT + 4*(c & 3)
            for hh in range(2):
                acc = ACCB[eta] + 4*(2*c + hh)
                A(f"v_mfma_f32_16x16x16_bf16 v[{acc}:{acc+3}], v[{PFU}:{PFU+1}], v[{T+2*hh}:{T+2*hh+1}], v[{acc}:{acc+3}]")
    A(f"s_cmp_lt_u32 s{sTK}, {NU}")
    A("s_cbranch_scc0 L_exit")
    v_unit(g, VM(g, 0), polV)
    A("s_branch L_top")

    g.lbl("L_last")
    if TB:
        A(f"s_cmp_lg_u32 s{sBU}, 0")
        A("s_cbranch_scc1 L_last2")
    wave_reduce(g, "v_add_f32", [vLS], [12], swaps=("v_permlane32_swap_b32",))
    A(f"ds_write_b64 v{vRW}, v[{vM}:{vLS}]")
    stamp(g, 4)
    g.lbl("L_last2")
    A("s_waitcnt vmcnt(0)")
    A("s_branch L_pv")

    g.lbl("L_exit")
    if TB:
        A(f"s_cmp_lg_u32 s{sBU}, 0")
        A("s_cbranch_scc1 L_burst")
    g.lbl("L_exit2")
    stamp(g, 5)
    for eta, OUT in ((0, 88), (1, 92)):
        B = ACCB[eta]
        for i in range(4): A(f"v_permlane32_swap_b32 v{B+4*i}, v{B+4*(4+i)}")
        for i in range(4): A(f"v_add_f32 v{OUT+i}, v{B+4*i}, v{B+4*(4+i)}")
        A(f"ds_write_b128 v{vOLW}, v[{OUT}:{OUT+3}] offset:{512*eta}")
    A(f"s_cmp_lt_u32 s{sWAVE}, 4")
    A("s_waitcnt lgkmcnt(0)")
    A("s_cbranch_scc0 L_mlspin")
    A("s_barrier")
    A("s_branch L_fin")
    g.lbl("L_mls")
    A("s_sleep 2")
    g.lbl("L_mlspin")
    A(f"ds_read_b64 v[32:33], v{vRR}")
    A("s_waitcnt lgkmcnt(0)")
    A(f"v_cmp_eq_u32 vcc, 0, v33")
    retry_branch(g, "L_mls")
    A(f"v_max_f32 v34, v32, v32 quad_perm:[1,0,3,2] {DPP}")
    g.nop(2)
    A(f"v_max_f32 v34, v34, v34 quad_perm:[2,3,0,1] {DPP}")
    g.nop(2)
    A(f"v_max_f32 v34, v34, v34 row_half_mirror {DPP}")
    A(f"v_sub_f32 v32, v32, v34")
    A(f"v_mul_f32 v32, s{sC}, v32")
    A(f"v_exp_f32 v32, v32")
    g.nop(1)
    A(f"v_mul_f32 v33, v33, v32")
    SF = 4
    for pat in ("quad_perm:[1,0,3,2]", "quad_perm:[2,3,0,1]", "row_half_mirror"):
        g.nop(2)
        A(f"v_add_f32 v33, v33, v33 {pat} {DPP}")
    A(f"v_rcp_f32 v36, v33")
    A(f"v_log_f32 v{PUB+2}, v33")
    A(f"v_mul_f32 v32, v32, v36")
    A(f"v_fma_f32 v{PUB+2}, v34, s{sC}, v{PUB+2}")
    for k in range(8): A(f"v_readlane_b32 s{SF+k}, v32, {k}")
    A("s_barrier")
    order = (4, 5, 6, 7, 0, 1, 2, 3)
    for w in order:
        A(f"ds_read_b64 v[{16+2*w}:{17+2*w}], v{vOLR} offset:{2048*w}")
    for n, k in enumerate(order):
        r = f"s[{SF+(k&~1)}:{SF+(k&~1)+1}]"
        d = 36 + 2*(k & 1)
        A(f"s_waitcnt lgkmcnt({7-n})")
        if n < 2:
            m = "op_sel:[0,1] op_sel_hi:[1,1]" if k & 1 else "op_sel_hi:[1,0]"
            A(f"v_pk_mul_f32 v[{d}:{d+1}], v[{16+2*k}:{17+2*k}], {r} {m}")
        else:
            m = "op_sel:[0,1,0] op_sel_hi:[1,1,1]" if k & 1 else "op_sel_hi:[1,0,1]"
            A(f"v_pk_fma_f32 v[{d}:{d+1}], v[{16+2*k}:{17+2*k}], {r}, v[{d}:{d+1}] {m}")
    A(f"v_pk_add_f32 v[{PUB}:{PUB+1}], v[36:37], v[38:39]")
    A(f"buffer_store_dwordx4 v[{PUB}:{PUB+3}], v82, s[{sWS}:{sWS+3}], s{sO_DST} offen sc1")
    stamp(g, 6)
    A("s_branch L_fin")

    g.lbl("L_svc")
    A("v_mov_b32 v255, 0")
    A("v_mov_b32 v239, 0")
    A(f"v_mov_b32 v{vKO}, v{vRO}")
    A(f"v_mov_b32 v{vVO}, v{vSW}")
    A(f"s_and_b32 s{sB_}, s{sWAVE}, 3")
    def job_rows(ptr, stride, colshift, coladd, sb):
        srd(g, sA, ptr, 0 if (opt.get("skip", 0) & (1 if stride == 8192 else 2)) else 448*stride)
        A(f"s_mov_b32 s{sT0}, {stride}")
        A(f"v_mad_u32_u24 v{vDM}, v{vKO}, s{sT0}, v{vVO}")
        A(f"s_mov_b32 s{sSTEP}, {8*stride}")
        A(f"s_mul_i32 s{sSTART}, s{sWAVE}, {56*stride}")
        A(f"s_lshl_b32 s{sT0}, s{SID}, {colshift}")
        A(f"s_add_u32 s{sSTART}, s{sSTART}, s{sT0}")
        if coladd: A(f"s_add_u32 s{sSTART}, s{sSTART}, {coladd}")
        if ptr == P_WQ and JS: A(f"s_sub_u32 s{sSTART}, s{sSTART}, s{sXO}")
        A(f"s_mul_i32 s{sLDS}, s{sWAVE}, 7168")
        if sb: A(f"s_add_u32 s{sLDS}, s{sLDS}, {sb}")
        dma(7, True)
    def job_lin(ptr, size, mul, add, sb):
        srd(g, sA, ptr, 0 if opt.get("skip", 0) & 4 else size)
        A(f"v_mov_b32 v{vDM}, v{vL16}")
        A(f"s_mov_b32 s{sSTEP}, 1024")
        A(f"s_mul_i32 s{sLDS}, s{sWAVE}, 7168")
        A(f"s_mul_i32 s{sSTART}, s{SID}, {mul}")
        A(f"s_add_u32 s{sSTART}, s{sSTART}, s{sLDS}")
        if add: A(f"s_add_u32 s{sSTART}, s{sSTART}, {add}")
        if sb: A(f"s_add_u32 s{sLDS}, s{sLDS}, {sb}")
        dma(7, False)
    job_rows(P_WQ, 8192, 8, 128, SB1)
    consts()
    A(f"s_lshr_b32 s{sT0}, s{sWAVE}, 1")
    A(f"s_mul_i32 s{sT0}, s{sT0}, 28")
    A(f"s_add_u32 s{sT0}, s{sT0}, s{SID}")
    RIS = opt.get("RIS", 2048)
    A(f"s_mul_i32 s{sT0}, s{sT0}, {RIS}")
    A(f"s_and_b32 s{sT1}, s{sWAVE}, 1")
    A(f"s_lshl_b32 s{sT1}, s{sT1}, 10")
    A(f"s_add_u32 s{sT0}, s{sT0}, s{sT1}")
    A(f"s_add_u32 s{sT0}, s{sT0}, {WS_RI}")
    A(f"s_cmp_lt_u32 s{SID}, 28")
    A(f"s_cselect_b32 s{sT0}, s{sT0}, {WS_SIZE}")
    for i in range(4): A(f"v_mov_b32 v{20+i}, -1")
    A(f"buffer_store_dwordx4 v[20:23], v{vL16}, s[{sWS}:{sWS+3}], s{sT0} offen sc1")
    vRW8 = 10
    A(f"v_lshrrev_b32 v{vRW8}, 2, v{vJ}")
    A(f"v_lshl_add_u32 v{vRW8}, v{vGR}, 3, v{vRW8}")
    A("s_waitcnt vmcnt(15)")
    get_tag(g)
    A(f"s_cmp_lt_u32 s{sWAVE}, 4")
    A("s_cbranch_scc0 L_s2")
    for i in range(4): unpack(g, 16+i, 24+2*i, 25+2*i)
    layernorm(g, 24, 32, 24, 8)
    for i in range(0, 8, 2): rnd2(g, 24+i, 25+i, vT)
    g.lbl("L_s2")
    A("s_waitcnt vmcnt(0)")
    A("s_barrier")
    vTA = 14
    A(f"v_lshlrev_b32 v{vTA}, 7, v{vRW8}")
    A(f"v_lshl_add_u32 v{vTA}, v{c4}, 3, v{vTA}")
    A(f"v_bfe_u32 v{vT}, v{vL}, 3, 2")
    A(f"v_xor_b32 v{vT}, s{sB_}, v{vT}")
    A(f"v_lshl_add_u32 v{vTA}, v{vT}, 5, v{vTA}")
    A(f"s_cmp_lt_u32 s{sWAVE}, 4")
    A(f"s_cselect_b32 s{sT0}, 0, {SB1}")
    A(f"v_add_u32 v13, s{sT0}, v{vTA}")
    vXB = 15
    A(f"v_add_u32 v{vXB}, 1024, v{vL16}")
    A(f"v_mov_b32 v{vT}, {WS_SIZE}")
    A(f"v_cndmask_b32 v{vXB}, v{vT}, v{vXB}, s[{sM48}:{sM48+1}]")
    A("s_cbranch_scc1 L_s_h")
    A(f"s_cmp_eq_u32 s{sWAVE}, 7")
    A("s_cbranch_scc0 L_s_fr")
    A(f"s_getreg_b32 s{sT0}, hwreg(HW_REG_XCC_ID)")
    A(f"v_mov_b32 v20, s{sT0}")
    A(f"v_mov_b32 v23, s{sTAG}")
    A(f"s_lshl_b32 s{sT1}, s{SID}, 4")
    A(f"s_add_u32 s{sT1}, s{sT1}, {WS_XC}")
    A("s_mov_b64 exec, 1")
    A(f"buffer_store_dwordx4 v[20:23], v{vL16}, s[{sWS}:{sWS+3}], s{sT1} offen sc1")
    A("s_mov_b64 exec, -1")
    g.lbl("L_s_fr")
    wfrags(13, 128)
    EW = opt.get("EW", 0)
    if EW:
        A("s_waitcnt lgkmcnt(0)")
        A("s_barrier")
        srd(g, sA, P_WO, 4096*896)
        A(f"v_mov_b32 v{vDM}, v{vL16}")
        A(f"s_mov_b32 s{sSTEP}, 1024")
        A(f"s_mul_i32 s{sLDS}, s{sB_}, 14336")
        A(f"s_mul_i32 s{sSTART}, s{SID}, 114688")
        A(f"s_add_u32 s{sSTART}, s{sSTART}, s{sLDS}")
        dma(14, False)
    A("s_branch L_s3")
    g.lbl("L_s_h")
    A(f"s_mul_i32 s{sXO}, s{sB_}, {MB}")
    A(f"s_add_u32 s{sXO}, s{sXO}, {WS_M}")
    def hloads():
        for i, (va, off) in enumerate(((vL16, 0), (vXB, 0), (vL16, 1792), (vXB, 1792))):
            A(f"buffer_load_dwordx4 v[{32+4*i}:{35+4*i}], v{va}, s[{sWS}:{sWS+3}], s{sXO} offen offset:{off} sc1")
    hloads()
    wfrags(13, 128)
    if EW:
        A("s_waitcnt lgkmcnt(0)")
        A("s_barrier")
    A("s_branch L_hwait")
    g.lbl("L_hpoll")
    hloads()
    g.lbl("L_hwait")
    A("s_waitcnt vmcnt(0)")
    tags_ab(g, [35, 43], [39, 47])
    retry_branch(g, "L_hpoll")
    for i, r in enumerate((32, 33, 36, 37)):
        unpack(g, r, 16+2*i, 17+2*i)
        unpack(g, r+8, 48+2*i, 49+2*i)
    for i in range(8): A(f"v_add_f32 v{48+i}, 1.0, v{48+i}")
    for i in range(0, 8, 2): rnd2(g, 48+i, 49+i, vT)
    modulate_pack(g, 24, 48, 16, 24, vT, 8)
    A(f"s_mul_i32 s{sT2}, s{sB_}, {AS}")
    A(f"s_add_u32 s{sT2}, s{sT2}, {L_A}")
    A(f"v_lshl_add_u32 v{vT}, v{vL}, 3, s{sT2}")
    A(f"ds_write_b64 v{vT}, v[24:25]")
    A(f"s_mov_b64 exec, s[{sM48}:{sM48+1}]")
    A(f"ds_write_b64 v{vT}, v[26:27] offset:512")
    A("s_mov_b64 exec, -1")
    g.lbl("L_s3")
    A("s_waitcnt lgkmcnt(0)")
    A("s_barrier")
    A(f"s_lshl_b32 s{sT3}, s{SID}, 9")
    A(f"s_lshl_b32 s{sT0}, s{sWAVE}, 6")
    if JS:
        A(f"s_and_b32 s{sT1}, s{SID}, 1")
        A(f"s_lshl_b32 s{sT1}, s{sT1}, 8")
        A(f"s_xor_b32 s{sT0}, s{sT0}, s{sT1}")
    A(f"s_add_u32 s{sT3}, s{sT3}, s{sT0}")
    A(f"s_add_u32 s{sT3}, s{sT3}, {WS_Q}")
    gemv_pub(L_A, AS, 16384)
    stamp(g, 2)
    A("s_barrier")
    vFA = 13
    WOF, GUF, DNF = 64, 128, 184
    def fa():
        A(f"v_mul_u32_u24 v{vFA}, 896, v{vRW8}")
        A(f"v_lshl_add_u32 v{vFA}, v{c4}, 5, v{vFA}")
        A(f"s_lshl_b32 s{sT0}, s{sWAVE}, 7")
        A(f"v_add_u32 v{vFA}, s{sT0}, v{vFA}")
    def rowfrags(dst, per_tile, ks0):
        for t in range(4):
            for ks in range(2):
                r = dst + per_tile*t + 4*(ks0 + ks)
                A(f"ds_read_b64_tr_b16 v[{r}:{r+1}], v{vFA} offset:{ks*28672 + t*8}")
                A(f"ds_read_b64_tr_b16 v[{r+2}:{r+3}], v{vFA} offset:{ks*28672 + t*8 + 3584}")
            if t & 1: A("s_waitcnt lgkmcnt(4)")
    if not EW: job_lin(P_WO, 4096*896, 114688, 0, SB0)
    job_lin(P_WO, 4096*896, 114688, 57344, SB1)
    fa()
    A("s_waitcnt vmcnt(7)")
    A("s_barrier")
    rowfrags(WOF, 16, 0)
    A("s_waitcnt lgkmcnt(0)")
    A("s_barrier")
    A(f"s_cmp_lt_u32 s{SID}, 28")
    A("s_cbranch_scc1 L_j3")
    A("s_waitcnt vmcnt(0)")
    A("s_branch L_j3b")
    g.lbl("L_j3")
    job_lin(P_WD, 1792*896, 57344, 0, SB0)
    A("s_waitcnt vmcnt(7)")
    g.lbl("L_j3b")
    A("s_barrier")
    A(f"v_add_u32 v{vFA}, {SB1}, v{vFA}")
    rowfrags(WOF, 16, 2)
    A(f"s_cmp_lt_u32 s{SID}, 28")
    A("s_cbranch_scc0 L_p5")
    A("s_waitcnt lgkmcnt(0)")
    A("s_barrier")
    job_rows(P_WU, 3584, 7, 0, SB1)
    A("s_waitcnt vmcnt(7)")
    A("s_barrier")
    A(f"v_subrev_u32 v{vFA}, {SB1}, v{vFA}")
    rowfrags(DNF, 8, 0)
    A("s_waitcnt lgkmcnt(0)")
    A("s_barrier")
    job_rows(P_WG, 3584, 7, 0, SB0)
    A("s_waitcnt vmcnt(0)")
    A("s_barrier")
    A(f"v_lshlrev_b32 v13, 7, v{vRW8}")
    A(f"v_bfe_u32 v{vT}, v{vL}, 3, 2")
    A(f"v_lshlrev_b32 v{vT}, 1, v{vT}")
    A(f"v_xor_b32 v{vT}, s{sWAVE}, v{vT}")
    A(f"v_lshl_add_u32 v13, v{vT}, 4, v13")
    A(f"v_and_b32 v{vT}, 1, v{vL}")
    A(f"v_lshl_add_u32 v13, v{vT}, 3, v13")
    A(f"v_bfe_u32 v{vT}, v{vL}, 1, 1")
    A(f"v_mul_u32_u24 v{vT}, {SB1}, v{vT}")
    A(f"v_add_u32 v13, v13, v{vT}")
    wfrags(13, 128, GUF)
    OC, SH = 240, 244
    GA, GB, XV = 248, 249, 250
    vHW, vAF, vGW, vGRD, vOUT = 251, 252, 253, 254, 255
    vX1, vIX = 239, 238
    A(f"s_cmp_lt_u32 s{sWAVE}, 4")
    A(f"s_cselect_b64 s[{sMH}:{sMH+1}], -1, s[{sM48}:{sM48+1}]")
    A(f"s_cselect_b64 s[{sR8}:{sR8+1}], 0, -1")
    A(f"v_cndmask_b32 v13, v{vL16}, v{vXB}, s[{sR8}:{sR8+1}]")
    A(f"s_mul_i32 s{sXO}, s{sB_}, {MB}")
    A(f"s_add_u32 s{sXO}, s{sXO}, {WS_M + 2*1792}")
    A(f"v_and_b32 v{vT}, 1, v{vGR}")
    A(f"v_lshrrev_b32 v{vX1}, 1, v{vGR}")
    A(f"v_lshl_add_u32 v{vX1}, v{vT}, 1, v{vX1}")
    A(f"v_lshl_add_u32 v{vOUT}, v{vX1}, 2, v{c4}")
    A(f"v_lshlrev_b32 v{vOUT}, 1, v{vOUT}")
    A(f"v_lshlrev_b32 v{vX1}, 4, v{vX1}")
    A(f"s_lshl_b32 s{sT0}, s{SID}, 6")
    A(f"v_add_u32 v{vDM}, s{sT0}, v{vX1}")
    A(f"s_add_u32 s{sT1}, s{sXO}, {3*1792}")
    A(f"s_mul_i32 s{sPX}, s{sB_}, 896")
    A(f"s_lshl_b32 s{sT0}, s{SID}, 5")
    A(f"s_add_u32 s{sPX}, s{sPX}, s{sT0}")
    srd(g, sB, P_X, 3584)
    A(f"buffer_load_ushort v{XV}, v{vOUT}, s[{sB}:{sB+3}], s{sPX} offen")
    if opt.get("OT", 0):
        srd(g, sA, P_OUT, 3584)
        A(f"buffer_load_ushort v{GA}, v{vOUT}, s[{sA}:{sA+3}], s{sPX} offen")
    g.lbl("L_mpoll")
    A(f"buffer_load_dwordx4 v[16:19], v13, s[{sWS}:{sWS+3}], s{sXO} offen offset:1792 sc1")
    A(f"buffer_load_dwordx4 v[20:23], v13, s[{sWS}:{sWS+3}], s{sXO} offen offset:3584 sc1")
    A(f"buffer_load_dwordx4 v[24:27], v{vDM}, s[{sWS}:{sWS+3}], s{sXO} offen sc1")
    A(f"buffer_load_dwordx4 v[28:31], v{vDM}, s[{sWS}:{sWS+3}], s{sT1} offen sc1")
    A("s_waitcnt vmcnt(0)")
    A(f"v_xor_b32 v{vT}, s{sTAG}, v19")
    A(f"v_bitop3_b32 v{vT}, v{vT}, v23, s{sTAG} bitop3:0xf6")
    A(f"v_cndmask_b32 v{vT}, 0, v{vT}, s[{sMH}:{sMH+1}]")
    A(f"v_bitop3_b32 v{vT}, v{vT}, v27, s{sTAG} bitop3:0xf6")
    A(f"v_bitop3_b32 v{vT}, v{vT}, v31, s{sTAG} bitop3:0xf6")
    A(f"v_cmp_ne_u32 vcc, 0, v{vT}")
    retry_branch(g, "L_mpoll")
    for i in range(2):
        unpack(g, 16+i, SH+2*i, SH+2*i+1)
        unpack(g, 20+i, OC+2*i, OC+2*i+1)
    for i in range(4): A(f"v_add_f32 v{OC+i}, 1.0, v{OC+i}")
    for i in range(0, 4, 2): rnd2(g, OC+i, OC+i+1, vT)
    A(f"s_mov_b32 vcc_lo, 0xcccccccc"); A(f"s_mov_b32 vcc_hi, 0xcccccccc")
    A(f"v_cndmask_b32 v{GA}, v24, v25, vcc")
    A(f"v_cndmask_b32 v{GB}, v28, v29, vcc")
    A(f"v_and_b32 v{vT}, 1, v{vL}")
    A(f"v_lshlrev_b32 v{vT}, 4, v{vT}")
    A(f"v_lshrrev_b32 v{GA}, v{vT}, v{GA}")
    A(f"v_lshrrev_b32 v{GB}, v{vT}, v{GB}")
    A(f"v_lshlrev_b32 v{GA}, 16, v{GA}")
    A(f"v_lshlrev_b32 v{GB}, 16, v{GB}")
    A(f"v_lshlrev_b32 v{XV}, 16, v{XV}")
    A(f"s_mul_i32 s{sT0}, s{sB_}, 960")
    A(f"s_lshr_b32 s{sT2}, s{sWAVE}, 2")
    A(f"s_lshl_b32 s{sT2}, s{sT2}, 8")
    A(f"s_add_u32 s{sT0}, s{sT0}, s{sT2}")
    A(f"s_add_u32 s{sT0}, s{sT0}, {L_A}")
    A(f"v_lshl_add_u32 v{vHW}, v{vL}, 2, s{sT0}")
    A(f"v_bfe_u32 v{vT}, v{vL}, 1, 1")
    A(f"v_lshl_add_u32 v{vT}, v{vGR}, 1, v{vT}")
    A(f"v_mul_u32_u24 v{vGW}, 96, v{vT}")
    A(f"v_and_b32 v{vT}, 12, v{vJ}")
    A(f"v_add_u32 v{vGW}, v{vGW}, v{vT}")
    A(f"v_and_b32 v{vT}, 1, v{vL}")
    A(f"v_lshl_add_u32 v{vGW}, v{vT}, 1, v{vGW}")
    A(f"s_lshl_b32 s{sT0}, s{sWAVE}, 3")
    A(f"s_add_u32 s{sT0}, s{sT0}, {L_G}")
    A(f"v_add_u32 v{vGW}, s{sT0}, v{vGW}")
    A(f"s_mul_i32 s{sXO}, s{sB_}, 1792")
    A(f"s_add_u32 s{sXO}, s{sXO}, {WS_X1}")
    A(f"s_mul_i32 s{sRI}, s{sB_}, 28")
    A(f"s_add_u32 s{sRI}, s{sRI}, s{SID}")
    A(f"s_mul_i32 s{sRI}, s{sRI}, {RIS}")
    A(f"s_add_u32 s{sRI}, s{sRI}, {WS_RI}")
    for i in range(2):
        A(f"buffer_load_dwordx4 v[16:19], v{vL16}, s[{sWS}:{sWS+3}], s{sRI} offen offset:{1024*i} sc1")
    A(f"buffer_load_dwordx4 v[16:19], v{vL16}, s[{sWS}:{sWS+3}], s{sXO} offen sc1")
    A(f"buffer_load_dwordx4 v[16:19], v{vXB}, s[{sWS}:{sWS+3}], s{sXO} offen sc1")
    g.lbl("L_p5")
    A(f"v_and_b32 v13, 0x1f0, v{vL16}")
    A(f"s_mov_b32 s{sT1}, {WS_XC}")
    g.lbl("L_xpoll")
    A(f"buffer_load_dwordx4 v[16:19], v13, s[{sWS}:{sWS+3}], s{sT1} offen sc1")
    A("s_waitcnt vmcnt(0)")
    check_tags(g, [19], "L_xpoll")
    A(f"s_getreg_b32 s{sT0}, hwreg(HW_REG_XCC_ID)")
    A(f"v_cmp_ne_u32 vcc, s{sT0}, v16")
    A(f"s_cmp_eq_u64 vcc, 0")
    A(f"s_cselect_b32 s{sFAST}, {0 if opt.get('nofast') else 1}, 0")
    nst = [0]
    def xstore(ins):
        nst[0] += 1
        k = nst[0]
        A(f"s_cmp_eq_u32 s{sFAST}, 0")
        A(f"s_cbranch_scc1 L_xs{k}")
        A(ins + opt.get("polX", ""))
        A(f"s_branch L_xd{k}")
        g.lbl(f"L_xs{k}")
        A(ins + " sc1")
        g.lbl(f"L_xd{k}")
    vZO, vOBW, vOBR = vKO, vVO, vDM
    A(f"v_lshrrev_b32 v{vT}, 2, v{vJ}")
    A(f"v_mul_u32_u24 v{vZO}, 28, v{vGR}")
    A(f"v_add_u32 v{vZO}, v{vZO}, v{vT}")
    A(f"v_mul_u32_u24 v{vZO}, {RIS}, v{vZO}")
    A(f"v_lshl_add_u32 v{vZO}, v{c4}, 4, v{vZO}")
    A(f"s_mul_i32 s{sY_DST}, s{sWAVE}, {4*RIS}")
    A(f"s_lshl_b32 s{sT0}, s{SID}, 6")
    A(f"s_add_u32 s{sY_DST}, s{sY_DST}, s{sT0}")
    A(f"s_add_u32 s{sY_DST}, s{sY_DST}, {WS_RI}")
    A(f"v_and_b32 v13, 1, v{vL}")
    A(f"v_lshl_add_u32 v{vT}, v{vT}, 1, v13")
    A(f"v_lshlrev_b32 v10, 4, v{vGR}")
    for reg, stride, base in ((vOBR, 160, L_OB), (vAF, 480, L_A), (vGRD, 96, L_G)):
        A(f"v_mul_u32_u24 v{reg}, {stride}, v{vT}")
        A(f"v_add_u32 v{reg}, v{reg}, v10")
        A(f"v_add_u32 v{reg}, {base}, v{reg}")
    A(f"v_mul_u32_u24 v{vIX}, 0xaaaa, v13")
    A(f"v_add_u32 v{vIX}, 0x4444, v{vIX}")
    A(f"s_mul_i32 s{sT0}, s{sB_}, 320")
    A(f"s_lshr_b32 s{sT2}, s{sWAVE}, 2")
    A(f"s_lshl_b32 s{sT1}, s{sT2}, 6")
    A(f"s_add_u32 s{sT0}, s{sT0}, s{sT1}")
    A(f"s_add_u32 s{sT0}, s{sT0}, {L_OB}")
    A(f"v_mul_u32_u24 v{vOBW}, 160, v13")
    A(f"v_bfe_u32 v{vT}, v{vL}, 1, 4")
    A(f"v_lshl_add_u32 v{vOBW}, v{vT}, 2, v{vOBW}")
    A(f"v_add_u32 v{vOBW}, s{sT0}, v{vOBW}")
    YD, GD = 216, 232
    for i in range(20): A(f"v_mov_b32 v{YD+i}, 0")
    A(f"s_lshl_b32 s{sO_IN}, s{sB_}, 18")
    A(f"s_lshl_b32 s{sT1}, s{SID}, 13")
    A(f"s_add_u32 s{sO_IN}, s{sO_IN}, s{sT1}")
    A(f"s_lshl_b32 s{sT1}, s{sT2}, 12")
    A(f"s_add_u32 s{sO_IN}, s{sO_IN}, s{sT1}")
    A(f"s_add_u32 s{sO_IN}, s{sO_IN}, {WS_O}")
    A(f"v_mov_b32 v28, 0"); A(f"v_mov_b32 v29, 0")
    A(f"v_mov_b32 v30, 0xff7fffff"); A(f"v_mov_b32 v31, s{sTAG}")
    A("s_waitcnt lgkmcnt(0)")
    stamp(g, 9)
    if opt.get("SEL", 1):
        MK = (4, 6, 8, 10)
        for m in MK: A(f"s_mov_b64 s[{m}:{m+1}], -1")
        A(f"s_mov_b32 s{MK[3]+1}, 0")
        g.lbl("L_opoll")
        for i, m in enumerate(MK):
            A(f"s_mov_b64 exec, s[{m}:{m+1}]")
            A(f"s_cbranch_execz L_os{i}")
            A(f"buffer_load_dwordx4 v[{16+4*i}:{19+4*i}], v{vL16}, s[{sWS}:{sWS+3}], s{sO_IN} offen offset:{1024*i} sc1")
            g.lbl(f"L_os{i}")
        A("s_mov_b64 exec, -1")
        A("s_waitcnt vmcnt(0)")
        for i, m in enumerate(MK):
            A(f"v_cmp_ne_u32 s[{m}:{m+1}], s{sTAG}, v{19+4*i}")
        A(f"s_or_b64 vcc, s[{MK[0]}:{MK[0]+1}], s[{MK[1]}:{MK[1]+1}]")
        A(f"s_or_b64 vcc, vcc, s[{MK[2]}:{MK[2]+1}]")
        A(f"s_or_b64 vcc, vcc, s[{MK[3]}:{MK[3]+1}]")
        retry_branch(g, "L_opoll")
    else:
        g.lbl("L_opoll")
        for i in range(3):
            A(f"buffer_load_dwordx4 v[{16+4*i}:{19+4*i}], v{vL16}, s[{sWS}:{sWS+3}], s{sO_IN} offen offset:{1024*i} sc1")
        A("s_mov_b32 exec_hi, 0")
        A(f"buffer_load_dwordx4 v[28:31], v{vL16}, s[{sWS}:{sWS+3}], s{sO_IN} offen offset:3072 sc1")
        A("s_mov_b32 exec_hi, -1")
        A("s_waitcnt vmcnt(0)")
        check_tags(g, [19, 23, 27, 31], "L_opoll")
    tstamp(g, 1)
    A(f"v_max3_f32 v32, v18, v22, v26")
    A(f"v_max_f32 v32, v32, v30")
    A(f"v_mov_b32 v33, v32")
    g.nop(2)
    A(f"v_permlane32_swap_b32 v32, v33")
    A(f"v_max_f32 v32, v32, v33")
    for i in range(4): A(f"v_sub_f32 v{18+4*i}, v{18+4*i}, v32")
    for i in range(4): A(f"v_exp_f32 v{18+4*i}, v{18+4*i}")
    A(f"v_pk_mul_f32 v[34:35], v[16:17], v[18:19] op_sel_hi:[1,0]")
    A(f"v_add_f32 v36, v18, v22")
    for i in range(1, 4):
        A(f"v_pk_fma_f32 v[34:35], v[{16+4*i}:{17+4*i}], v[{18+4*i}:{19+4*i}], v[34:35] op_sel_hi:[1,0,1]")
    A(f"v_add_f32 v37, v26, v30")
    A(f"v_add_f32 v36, v36, v37")
    A(f"v_mov_b32 v38, v34"); A(f"v_mov_b32 v39, v35"); A(f"v_mov_b32 v37, v36")
    g.nop(1)
    A(f"v_permlane32_swap_b32 v34, v38")
    A(f"v_permlane32_swap_b32 v35, v39")
    A(f"v_permlane32_swap_b32 v36, v37")
    A(f"v_pk_add_f32 v[34:35], v[34:35], v[38:39]")
    A(f"v_add_f32 v36, v36, v37")
    A(f"v_rcp_f32 v36, v36")
    g.nop(1)
    A(f"v_pk_mul_f32 v[34:35], v[34:35], v[36:37] op_sel_hi:[1,0]")
    A(f"v_cvt_pk_bf16_f32 v34, v34, v35")
    A(f"ds_write_b32 v{vOBW}, v34")
    A("s_waitcnt lgkmcnt(0)")
    A("s_barrier")
    def proj(addr, nks, frags, per_tile, off, O=40):
        for ks in range(nks):
            A(f"ds_read_b128 v[{48+4*ks}:{51+4*ks}], v{addr} offset:{64*ks}")
        for ks in range(nks):
            A(f"s_waitcnt lgkmcnt({nks-1-ks})")
            for t in range(4):
                r = frags + per_tile*t + 8*ks
                A(f"v_smfmac_f32_16x16x64_bf16 v[{YD+4*t}:{YD+4*t+3}], v[{48+4*ks}:{51+4*ks}], v[{r}:{r+7}], v{vIX}")
        g.nop(5)
        for t in range(4):
            A(f"v_add_f32 v{O+t}, v{YD+4*t}, v{YD+4*t+1}")
        for i in range(4): A(f"v_or_b32 v{O+i}, 1, v{O+i}" if off else f"v_and_b32 v{O+i}, -2, v{O+i}")
        xstore(f"buffer_store_dwordx4 v[{O}:{O+3}], v{vZO}, s[{sWS}:{sWS+3}], s{sY_DST} offen")
    A(f"s_cmp_eq_u32 s{sWAVE}, 7")
    A("s_cbranch_scc1 L_t2")
    proj(vOBR, 2, WOF, 16, 0)
    for t in range(4):
        A(f"v_mov_b32 v{YD+4*t}, 0"); A(f"v_mov_b32 v{YD+4*t+1}, 0")
    stamp(g, 7)
    g.lbl("L_t2")
    A(f"s_cmp_lt_u32 s{SID}, 28")
    A(f"s_cbranch_scc0 {'L_wb1' if opt.get('WB', 0) & 1 else 'L_fin'}")
    def reduce(lab, z, gate, st):
        if z:
            for i in range(4): A(f"v_mov_b32 v{20+i}, 1")
        g.lbl(lab)
        A(f"buffer_load_dwordx4 v[24:27], v{vL16}, s[{sWS}:{sWS+3}], s{sRI} offen sc1")
        if z: A("s_mov_b32 exec_hi, 0xffff")
        A(f"buffer_load_dwordx4 v[20:23], v{vL16}, s[{sWS}:{sWS+3}], s{sRI} offen offset:1024 sc1")
        if z: A("s_mov_b32 exec_hi, -1")
        A("s_waitcnt vmcnt(0)")
        bo = "0x80" if z else "0xfe"
        A(f"v_bitop3_b32 v{vT}, v24, v25, v26 bitop3:{bo}")
        A(f"v_bitop3_b32 v10, v27, v20, v21 bitop3:{bo}")
        A(f"v_bitop3_b32 v{vT}, v{vT}, v22, v23 bitop3:{bo}")
        A(f"v_bitop3_b32 v{vT}, v{vT}, v10, 1 bitop3:{'0x80' if z else '0xa8'}")
        A(f"v_cmp_ne_u32 vcc, {1 if z else 0}, v{vT}")
        A(pk("add", 16, 24, 20)); A(pk("add", 18, 26, 22))
        retry_branch(g, lab)
        tstamp(g, st)
        g.nop(1)
        A(f"v_permlane32_swap_b32 v16, v17")
        A(f"v_permlane32_swap_b32 v18, v19")
        A(f"v_add_f32 v16, v16, v17")
        A(f"v_add_f32 v18, v18, v19")
        g.nop(2)
        A(f"v_permlane16_swap_b32 v16, v18")
        A(f"v_add_f32 v16, v16, v18")
        g.nop(2)
        A(f"v_add_f32 v16, v16, v16 row_ror:4 {DPP}")
        g.nop(2)
        A(f"v_add_f32 v16, v16, v16 row_ror:8 {DPP}")
        rnd1(g, 16)
        A(f"v_mul_f32 v16, v16, v{gate}")
        rnd1(g, 16)
        A(f"v_add_f32 v{XV}, v{XV}, v16")
    XB = opt.get("XB", 1)
    A(f"s_cmp_lt_u32 s{sWAVE}, 4")
    A(f"s_cbranch_scc1 {'L_x1b' if XB else 'L_x1poll'}")
    A(f"v_mov_b32 v47, s{sTAG}")
    A(f"v_mov_b32 v46, 0")
    A(f"s_lshl_b32 s{sT2}, s{sPX}, 1")
    A(f"s_add_u32 s{sT2}, s{sT2}, {WS_X1}")
    reduce("L_ypoll", 0, GA, 5)
    g.nop(2)
    A(f"v_mov_b32 v17, v{XV} quad_perm:[1,1,3,3] {DPP}")
    A(f"v_cvt_pk_bf16_f32 v44, v{XV}, v17")
    g.nop(2)
    A(f"v_mov_b32 v45, v44 quad_perm:[2,2,2,2] {DPP}")
    A("s_mov_b32 exec_lo, 0x00010001"); A("s_mov_b32 exec_hi, 0x00010001")
    xstore(f"buffer_store_dwordx4 v[44:47], v{vX1}, s[{sWS}:{sWS+3}], s{sT2} offen")
    A("s_mov_b64 exec, -1")
    rnd1(g, XV)
    stamp(g, 6)
    if XB:
        g.lbl("L_x1b")
        A("s_barrier")
    g.lbl("L_x1poll")
    A(f"buffer_load_dwordx4 v[16:19], v{vL16}, s[{sWS}:{sWS+3}], s{sXO} offen sc1")
    A(f"buffer_load_dwordx4 v[20:23], v{vXB}, s[{sWS}:{sWS+3}], s{sXO} offen sc1")
    A("s_waitcnt vmcnt(0)")
    tags_ab(g, [19], [23])
    retry_branch(g, "L_x1poll")
    tstamp(g, 2)
    if opt.get("YC", 0):
        A(f"s_lshr_b32 s{sT0}, s{sWAVE}, 2")
        A(f"s_lshl_b32 s{sT0}, s{sT0}, 10")
        A(f"s_add_u32 s{sT0}, s{sT0}, s{sRI}")
        A(f"buffer_store_dwordx4 v[64:67], v{vL16}, s[{sWS}:{sWS+3}], s{sT0} offen sc1")
    for i, r in enumerate((16, 17, 20, 21)):
        unpack(g, r, 24+2*i, 25+2*i)
    E = 44
    layernorm(g, 24, 32, E, 4, presel=[f"v_cndmask_b32 v{E+i}, v{24+i}, v{28+i}, s[{sR8}:{sR8+1}]" for i in range(4)])
    rnd2(g, E, E+1, vT); rnd2(g, E+2, E+3, vT)
    modulate_pack(g, E, OC, SH, E, vT, 4)
    A(f"s_mov_b64 exec, s[{sMH}:{sMH+1}]")
    A(f"ds_write2_b32 v{vHW}, v{E}, v{E+1} offset0:0 offset1:120")
    A("s_mov_b64 exec, -1")
    A("s_waitcnt lgkmcnt(0)")
    A("s_barrier")
    tstamp(g, 3)
    for ks in range(7):
        A(f"ds_read_b128 v[{64+4*ks}:{67+4*ks}], v{vAF} offset:{64*ks}")
    for ks in range(7):
        A(f"s_waitcnt lgkmcnt({6-ks})")
        A(f"v_smfmac_f32_16x16x64_bf16 v[{GD}:{GD+3}], v[{64+4*ks}:{67+4*ks}], v[{GUF+8*ks}:{GUF+7+8*ks}], v{vIX}")
    kk = -2.0 * math.sqrt(2.0/math.pi) * LOG2E
    A(f"v_mov_b32 v24, {f2u(kk*0.044715):#x}")
    A(f"v_mov_b32 v25, {f2u(kk):#x}")
    g.nop(6)
    A(f"v_add_f32 v20, v{GD}, v{GD+1}")
    rnd1(g, 20)
    A(f"v_mul_f32 v21, v20, v20")
    A(f"v_fma_f32 v21, v21, v24, v25")
    A(f"v_mul_f32 v21, v21, v20")
    A(f"v_exp_f32 v21, v21")
    A(f"v_mov_b32 v23, v20 row_ror:8 {DPP}")
    A(f"v_add_f32 v21, 1.0, v21")
    A(f"v_rcp_f32 v21, v21")
    A(f"s_mov_b32 exec_lo, 0x00ff00ff")
    A(f"s_mov_b32 exec_hi, 0x00ff00ff")
    A(f"v_mul_f32 v21, v21, v20")
    rnd1(g, 21)
    A(f"v_mul_f32 v21, v21, v23")
    A(f"v_cvt_pk_bf16_f32 v21, v21, v21")
    A(f"ds_write_b16 v{vGW}, v21")
    A("s_mov_b64 exec, -1")
    A("s_waitcnt lgkmcnt(0)")
    A("s_barrier")
    tstamp(g, 4)
    A(f"s_cmp_eq_u32 s{sWAVE}, 7")
    A("s_cbranch_scc1 L_t4")
    proj(vGRD, 1, DNF, 8, 2048)
    stamp(g, 8)
    A(f"s_cmp_lt_u32 s{sWAVE}, 4")
    A(f"s_cbranch_scc1 {'L_wb2' if opt.get('WB', 0) & 2 else 'L_fin'}")
    g.lbl("L_t4")
    srd(g, sA, P_OUT, 3584)
    reduce("L_zpoll", 1, GB, 7)
    A(f"v_cvt_pk_bf16_f32 v16, v{XV}, v{XV}")
    A("s_mov_b32 exec_lo, 0x000f000f"); A("s_mov_b32 exec_hi, 0x000f000f")
    A(f"buffer_store_short v16, v{vOUT}, s[{sA}:{sA+3}], s{sPX} offen{opt.get('polO', '')}")
    stamp(g, 9)
    A(f"s_cmp_eq_u32 s{sPX}, 0")
    A("s_cbranch_scc0 L_fin")
    A("s_mov_b64 exec, 1")
    A(f"v_mov_b32 v16, s{sTAG}")
    A(f"buffer_store_dword v16, v{vL16}, s[{sWS}:{sWS+3}], 0 offen sc1")
    if opt.get("WB", 0):
        A("s_branch L_fin")
        g.lbl("L_wb1")
        A("s_sleep 16")
        g.lbl("L_wb2")
        A(f"s_cmp_eq_u32 s{sWAVE}, 0")
        A("s_cbranch_scc0 L_fin")
        A(f"s_and_b32 s{sT0}, s{SID}, {opt.get('WBM', 3)}")
        A("s_cbranch_scc1 L_fin")
        A("s_waitcnt vmcnt(0)")
        A("buffer_wbl2 sc1")
        A("s_waitcnt vmcnt(0)")
    g.lbl("L_fin")
    flush_stamps(g, NSTAMP)
    g.lbl("L_end")
    A("s_endpgm")
    g.L += ['.section .rodata,"a"', ".p2align 6", f".amdhsa_kernel {NAME}_kernel",
            "  .amdhsa_next_free_vgpr 256", "  .amdhsa_next_free_sgpr 102", "  .amdhsa_accum_offset 256",
            "  .amdhsa_group_segment_fixed_size 0", "  .amdhsa_kernarg_size 112", "  .amdhsa_user_sgpr_count 2",
            "  .amdhsa_user_sgpr_kernarg_segment_ptr 1", "  .amdhsa_system_sgpr_workgroup_id_x 1", ".end_amdhsa_kernel"]
    return "\n".join(g.L) + "\n"

if __name__ == "__main__":
    out = sys.argv[1] if len(sys.argv) > 1 else f"cdna_kernels/{NAME}.s"
    opt = {}
    for a in sys.argv[2:]:
        k, val = a.split("=", 1)
        try: val = int(val)
        except ValueError: val = (" " + val.replace("+", " ")) if val else ""
        opt[k] = val
    open(out, "w").write(build(opt))
```

```python
import sys, math, struct

NAME = "adaLN_cond__gqa_block_cached__geglu_ffn__decode"

WS_E   = 0x0
WS_XC  = 0x1000
WS_CNT = 0x2000
WS_X1  = 0x4000
WS_M   = 0x6000
MB = 10752
WS_Q   = 0x20000
WS_O   = 0x30000
WS_RI  = 0x130000
WS_STAMP = 0x400000
WS_SIZE = 0x800000

L_OL = 57344
L_Q  = L_OL + 16384
L_P  = L_Q + 1024
SB0 = 0
SB1 = 57344 + 16
L_SC = SB1 + 57344 + 48
AS = 928
L_A  = L_SC + 4096
L_OB = L_A + 8*480
L_G  = L_OB + 8*160
L_RED = L_G + 8*96
L_END = L_RED + 256

LOG2E = 1.4426950408889634
def f2u(x): return struct.unpack("<I", struct.pack("<f", x))[0]


DOC = """
; ---------------------------------------------------------------------------------------------------
; ---------------------------------------------------------------------------------------------------
"""
NOTES = {
 "L_early": "mod-slice and service workgroups: small operand load + first weight image (LDS DMA, xor-swizzled rows)",
 "L_m1": "mod slice: image + silu(c) ready -> 14 MFMAs per wave, publish bf16",
 "L_main0": "attention main path",
 "L_peek": "unit counter {count, tag}: first visitor of this launch resets it",
 "L_qpoll": "wait for q, then scores / softmax / PV of the 32 fixed keys",
 "L_top": "dynamic unit loop: QK -> running max -> p (hi + lo bf16) -> next K -> PV -> next V",
 "L_last": "no unit left: publish (m, l) of this wave",
 "L_exit": "partial o of this wave -> LDS; waves 4..7 merge the 8 partials and publish {o, lse}",
 "L_svc": "service workgroup",
 "L_hpoll": "wait for shift / scale, h = LN(x) * (1 + ca) + sa",
 "L_s3": "q = h @ wq slice, then stage the remaining weights into registers",
 "L_mpoll": "tail parameters sb, cb, ga, gb",
 "L_xpoll": "placement check (also: every inbox has been cleared)",
 "L_opoll": "wait for the 7 partial results, combine, project with wo",
 "L_ypoll": "sum the 32 wo partials, x1 = x + ga * attn",
 "L_x1poll": "LayerNorm + modulate, gate / up, gelu, down partials",
 "L_zpoll": "sum the 28 down partials, out = x1 + gb * ffn",
}

class G:
    def __init__(self, opt):
        self.L = []; self.o = opt; self.lab = 0
    def A(self, s): self.L.append("    " + s)
    def lbl(self, s):
        if s in NOTES: self.L.append("; ---- " + NOTES[s])
        self.L.append(s + ":")
    def newlab(self, p="L"):
        self.lab += 1
        return f"{p}_{self.lab}"
    def nop(self, n):
        while n > 0:
            k = min(n, 16)
            self.A(f"s_nop {k-1}")
            n -= k

sWAVE = 3
sK, sV, sWS, sA, sB = 4, 8, 12, 16, 20
sS, sB_, sKVH, sN = 24, 25, 26, 27
sTAG, sRETRY = 28, 29
sKB, sFAST = 30, 31
sUB = 32
sT0, sT1, sT2, sT3 = 33, 34, 35, 36
sLN = 37
sM1, sM2, sM3 = 38, 40, 42
sM48 = 44
sQ1, sQ2, sQ3 = 46, 48, 50
sR8 = 52
sSTART, sSTEP, sLDS = 54, 55, 56
sTK, sLIM = 54, 55
sPLO, sPHI = 57, 58
sC = 59
sHI = 60
sXO, sPX = 61, 62
sGRP = 63
P_X, P_K, P_V, P_WQ, P_WO, P_BX, P_WG, P_WU, P_WD, P_C, P_WM, P_OUT, P_DBG, P_WS = [64 + 2*i for i in range(14)]
sCNT = 84
sCX = 68
sST = 88
sO_DST, sY_DST = 66, 67
sO_IN, sRI = 68, 69
sMH = 74

vTID, vL, vJ, vGR, vKO, vVO, vL16, vDM = 0, 1, 2, 3, 4, 5, 6, 7
vE = 8
vT = 9
vVE = 64
vK = 128
vVU = 0
vM, vLS = 14, 15
vKU, vVB = 192, 224
vOLW, vOLR, vRW, vRR = 78, 79, 80, 81

def srd(g, r, ptr, size):
    g.A(f"s_mov_b32 s{r}, s{ptr}")
    g.A(f"s_mov_b32 s{r+1}, s{ptr+1}")
    g.A(f"s_mov_b32 s{r+2}, {size}")
    g.A(f"s_mov_b32 s{r+3}, 0x20000")

DPP = "row_mask:0xf bank_mask:0xf"
def wave_reduce(g, op, regs, tmps, swaps=("v_permlane16_swap_b32", "v_permlane32_swap_b32")):
    n = len(regs)
    for pat in ("quad_perm:[1,0,3,2]", "quad_perm:[2,3,0,1]", "row_half_mirror", "row_mirror"):
        g.nop(max(0, 2 - (n - 1)))
        for r in regs:
            g.A(f"{op} v{r}, v{r}, v{r} {pat} {DPP}")
    for sw in swaps:
        for r, t in zip(regs, tmps):
            g.A(f"v_mov_b32 v{t}, v{r}")
        g.nop(2)
        for r, t in zip(regs, tmps):
            g.A(f"{sw} v{r}, v{t}")
        for r, t in zip(regs, tmps):
            g.A(f"{op} v{r}, v{r}, v{t}")

def rnd2(g, a, b, t):
    g.A(f"v_cvt_pk_bf16_f32 v{t}, v{a}, v{b}")
    g.A(f"v_lshlrev_b32 v{a}, 16, v{t}")
    g.A(f"v_and_b32 v{b}, s{sHI}, v{t}")
def rnd1(g, a):
    g.A(f"v_cvt_pk_bf16_f32 v{a}, v{a}, v{a}")
    g.A(f"v_lshlrev_b32 v{a}, 16, v{a}")
def unpack(g, src, lo, hi):
    g.A(f"v_lshlrev_b32 v{lo}, 16, v{src}")
    g.A(f"v_and_b32 v{hi}, s{sHI}, v{src}")

def red63(g, r, fill):
    fill = list(fill)
    def pad(n):
        for _ in range(n):
            if fill: g.A(fill.pop(0))
            else:
                g.nop(n - _); break
    for pat in ("quad_perm:[1,0,3,2] " + DPP, "quad_perm:[2,3,0,1] " + DPP, "row_half_mirror " + DPP, "row_mirror " + DPP,
                "row_bcast:15 row_mask:0xa bank_mask:0xf", "row_bcast:31 row_mask:0xc bank_mask:0xf"):
        pad(2)
        g.A(f"v_add_f32 v{r}, v{r}, v{r} {pat}")
    pad(1)
    g.A(f"v_readlane_b32 s{sLN}, v{r}, 63")
    pad(2)
    for f in fill: g.A(f)

def pk(op, d, a, b, bc=False, neg=False):
    m = ""
    if bc: m += " op_sel_hi:[1,0]"
    if neg: m += " neg_lo:[0,1] neg_hi:[0,1]"
    return f"v_pk_{op}_f32 v[{d}:{d+1}], v[{a}:{a+1}], v[{b}:{b+1}]{m}"

def rnd2s(a, b, t):
    return [f"v_cvt_pk_bf16_f32 v{t}, v{a}, v{b}", f"v_lshlrev_b32 v{a}, 16, v{t}", f"v_and_b32 v{b}, s{sHI}, v{t}"]

def layernorm(g, X, T, E, n, presel=()):
    A = g.A
    A(pk("add", T, X, X+2)); A(pk("add", T+2, X+4, X+6)); A(pk("add", T, T, T+2))
    A(f"v_add_f32 v{T}, v{T}, v{T+1}")
    red63(g, T, presel)
    A(f"v_mov_b32 v{T+8}, {f2u(1.0/448):#x}")
    A(f"v_mul_f32 v{T}, s{sLN}, v{T+8}")
    A(pk("add", T+2, X, T, True, True)); A(pk("add", T+4, X+2, T, True, True))
    A(f"v_pk_mul_f32 v[{T+6}:{T+7}], v[{T+2}:{T+3}], v[{T+2}:{T+3}]")
    A(pk("add", T+2, X+4, T, True, True))
    A(f"v_pk_fma_f32 v[{T+6}:{T+7}], v[{T+4}:{T+5}], v[{T+4}:{T+5}], v[{T+6}:{T+7}]")
    A(pk("add", T+4, X+6, T, True, True))
    A(f"s_mov_b64 exec, s[{sM48}:{sM48+1}]")
    A(f"v_pk_fma_f32 v[{T+6}:{T+7}], v[{T+2}:{T+3}], v[{T+2}:{T+3}], v[{T+6}:{T+7}]")
    A(f"v_pk_fma_f32 v[{T+6}:{T+7}], v[{T+4}:{T+5}], v[{T+4}:{T+5}], v[{T+6}:{T+7}]")
    A("s_mov_b64 exec, -1")
    A(f"v_add_f32 v{T+6}, v{T+6}, v{T+7}")
    fill = [f"v_cvt_pk_bf16_f32 v{T}, v{T}, v{T}", f"v_lshlrev_b32 v{T}, 16, v{T}"]
    fill += [pk("add", E+i, E+i, T, True, True) for i in range(0, n, 2)]
    for i in range(0, n, 2): fill += rnd2s(E+i, E+i+1, T+2)
    red63(g, T+6, fill)
    A(f"v_mul_f32 v{T+6}, s{sLN}, v{T+8}")
    rnd1(g, T+6)
    A(f"v_add_f32 v{T+6}, {f2u(1e-5):#x}, v{T+6}")
    rnd1(g, T+6)
    A(f"v_sqrt_f32 v{T+6}, v{T+6}")
    g.nop(1)
    rnd1(g, T+6)
    A(f"v_rcp_f32 v{T+6}, v{T+6}")
    g.nop(1)
    for i in range(0, n, 2): A(pk("mul", E+i, E+i, T+6, True))

def modulate_pack(g, X, OC, SH, D, t, n):
    for i in range(0, n, 2): g.A(pk("mul", X+i, X+i, OC+i))
    for i in range(0, n, 2): rnd2(g, X+i, X+i+1, t)
    for i in range(0, n, 2): g.A(pk("add", X+i, X+i, SH+i))
    for i in range(0, n, 2): g.A(f"v_cvt_pk_bf16_f32 v{D+i//2}, v{X+i}, v{X+i+1}")

def retry_branch(g, fail_label):
    ok = g.newlab("L_ok")
    g.A(f"s_cbranch_vccz {ok}")
    g.A(f"s_sub_u32 s{sRETRY}, s{sRETRY}, 1")
    g.A(f"s_cbranch_scc0 {fail_label}")
    g.A(f"s_mov_b32 s{sRETRY}, 0")
    g.lbl(ok)

def tags_ab(g, ra, rb):
    t = vT
    g.A(f"v_xor_b32 v{t}, s{sTAG}, v{rb[0]}")
    for r in rb[1:]: g.A(f"v_bitop3_b32 v{t}, v{t}, v{r}, s{sTAG} bitop3:0xf6")
    g.A(f"v_cndmask_b32 v{t}, 0, v{t}, s[{sM48}:{sM48+1}]")
    for r in ra: g.A(f"v_bitop3_b32 v{t}, v{t}, v{r}, s{sTAG} bitop3:0xf6")
    g.A(f"v_cmp_ne_u32 vcc, 0, v{t}")

class VM:
    def __init__(self, g, W, n0=0):
        self.g, self.W, self.n = g, W, n0
    def pre(self):
        if self.W and self.n >= self.W:
            self.g.A(f"s_waitcnt vmcnt({self.W-1})")
            self.n = self.W - 1
        self.n += 1

def dma7(g, pol, vm, srd_=None):
    srd_ = srd_ or sA
    for i in range(7):
        vm.pre()
        g.A(f"s_mov_b32 m0, s{sLDS}")
        g.A(f"s_add_u32 s{sLDS}, s{sLDS}, 1024")
        g.A(f"buffer_load_dwordx4 v{vDM}, s[{srd_}:{srd_+3}], s{sSTART} offen{pol} lds")
        g.A(f"s_add_u32 s{sSTART}, s{sSTART}, s{sSTEP}")

def k_tile(g, vm, pol, base, add, dst, lo=0, hi=8):
    so = base
    if g.o.get("KS", 0) and dst != vKU:
        for jj in range(lo, hi):
            vm.pre()
            r = dst + 4*jj
            g.A(f"buffer_load_dwordx4 v[{r}:{r+3}], v{vKO}, s[{sK}:{sK+3}], s{so} offen offset:{jj*256 + (2048 if add else 0)}{pol}")
        return
    if add:
        g.A(f"s_add_u32 s{sT0}, s{base}, {add}")
        so = sT0
    for jj in range(lo, hi):
        vm.pre()
        r = dst + 4*jj
        g.A(f"buffer_load_dwordx4 v[{r}:{r+3}], v{vVO if dst == vKU else vKO}, s[{sK}:{sK+3}], s{so} offen offset:{jj*256}{pol}")

def v_group(g, vm, pol, part):
    il = g.o.get("VIL", 1)
    for k in range(8):
        if il: r, eta = part*4 + (k >> 1), k & 1
        else: r, eta = k, part
        vm.pre()
        d = vVE + 32*eta + 4*r
        g.A(f"buffer_load_dwordx4 v[{d}:{d+3}], v13, s[{sV}:{sV+3}], s{sKB} offen offset:{512*r + 256*eta}{pol}")

def k_unit(g, vm, pol):
    RS = g.o.get("RS", 512)
    if RS == 512: return k_tile(g, vm, pol, sUB, 0, vKU)
    for jj in range(8):
        kq, blk = jj >> 1, jj & 1
        if blk == 0: g.A(f"s_add_u32 s{sT0}, s{sUB}, {kq*RS}")
        vm.pre()
        r = vKU + 4*jj
        g.A(f"buffer_load_dwordx4 v[{r}:{r+3}], v{vVO}, s[{sK}:{sK+3}], s{sT0} offen offset:{blk*256}{pol}")

def v_unit(g, vm, pol):
    RS = g.o.get("RS", 512)
    if RS != 512:
        for k in range(8):
            r, eta = k >> 1, k & 1
            if eta == 0: g.A(f"s_add_u32 s{sT0}, s{sUB}, {r*RS}")
            vm.pre()
            d = vVB + 16*eta + 4*r
            g.A(f"buffer_load_dwordx4 v[{d}:{d+3}], v{vVU}, s[{sV}:{sV+3}], s{sT0} offen offset:{256*eta}{pol}")
        return
    for k in range(8):
        if True:
            r, eta = ((k >> 1, k & 1) if g.o.get("VIL", 1) else (k & 3, k >> 2))
            vm.pre()
            d = vVB + 16*eta + 4*r
            g.A(f"buffer_load_dwordx4 v[{d}:{d+3}], v{vVU}, s[{sV}:{sV+3}], s{sUB} offen offset:{512*r + 256*eta}{pol}")

def get_tag(g):
    g.A(f"v_readfirstlane_b32 s{sTAG}, v{vE}")
    g.A(f"s_add_u32 s{sTAG}, s{sTAG}, 0x9e3779b9")

def check_tags(g, regs, fail_label, mask=None, t=vT):
    if len(regs) == 1:
        g.A(f"v_cmp_ne_u32 vcc, s{sTAG}, v{regs[0]}")
    else:
        g.A(f"v_xor_b32 v{t}, s{sTAG}, v{regs[0]}")
        for r in regs[1:]:
            g.A(f"v_bitop3_b32 v{t}, v{t}, v{r}, s{sTAG} bitop3:0xf6")
        g.A(f"v_cmp_ne_u32 vcc, 0, v{t}")
    if mask is not None:
        g.A(f"s_and_b64 vcc, vcc, s[{mask}:{mask+1}]")
    ok = g.newlab("L_ok")
    g.A(f"s_cbranch_vccz {ok}")
    g.A(f"s_sub_u32 s{sRETRY}, s{sRETRY}, 1")
    g.A(f"s_cbranch_scc0 {fail_label}")
    g.A(f"s_mov_b32 s{sRETRY}, 0")
    g.lbl(ok)

NSTAMP = 10
def tstamp(g, idx):
    if g.o.get("tst"): stamp(g, idx, True)
def stamp(g, idx, force=False):
    if not g.o.get("stamps") or g.o.get("trace"): return
    if (g.o.get("tst") or g.o.get("est")) and not force and idx in (1, 2, 3, 4): return
    g.A(f"s_memrealtime s[{sST}:{sST+1}]")
    g.A("s_waitcnt lgkmcnt(0)")
    g.A(f"s_mov_b32 s{92+idx}, s{sST}")
def flush_stamps(g, n):
    if not g.o.get("stamps"): return
    if g.o.get("dbg"):
        g.A("s_mov_b64 exec, 1")
        g.A("v_mov_b32 v15, 0")
        g.A(f"s_lshl_b32 s{sT3}, s2, 3")
        g.A(f"s_add_u32 s{sT3}, s{sT3}, s{sWAVE}")
        g.A(f"s_cmp_eq_u32 s{sT3}, 0")
        g.A("s_cbranch_scc1 L_dbg0")
        g.A(f"s_cmp_eq_u32 s{sT3}, {144*8+7}")
        g.A("s_cbranch_scc0 L_end")
        for k, i in enumerate((6, 1, 7, 2, 8, 9)):
            g.A(f"s_sub_u32 s{sT3}, s{92+i}, s92")
            g.A(f"v_mov_b32 v14, s{sT3}")
            g.A(f"global_store_dword v15, v14, s[82:83] offset:{4*k}")
            g.nop(1)
        g.A("s_branch L_end")
        g.lbl("L_dbg0")
        for k, i in enumerate((6, 7, 9, 2, 3, 4, 8)):
            g.A(f"s_sub_u32 s{sT3}, s{92+i}, s92")
            g.A(f"v_mov_b32 v14, s{sT3}")
            g.A(f"global_store_dword v15, v14, s[82:83] offset:{32+4*k}")
            g.nop(1)
        return
    g.A(f"s_lshl_b32 s{sT3}, s2, 3")
    g.A(f"s_add_u32 s{sT3}, s{sT3}, s{sWAVE}")
    g.A(f"s_lshl_b32 s{sT3}, s{sT3}, 6")
    g.A(f"s_add_u32 s{sT3}, s{sT3}, {WS_STAMP}")
    g.A("s_mov_b64 exec, 1")
    g.A("v_mov_b32 v15, 0")
    for i in range(n):
        g.A(f"v_mov_b32 v14, s{92+i}")
        g.A(f"buffer_store_dword v14, v15, s[{sWS}:{sWS+3}], s{sT3} offen offset:{4*i}")
        g.nop(1)

def sel4(g, dst, r0, r1, r2, r3, m1, m2, m3):
    g.A(f"v_cndmask_b32 v{dst}, v{r0}, v{r1}, s[{m1}:{m1+1}]")
    g.A(f"v_cndmask_b32 v{dst}, v{dst}, v{r2}, s[{m2}:{m2+1}]")
    g.A(f"v_cndmask_b32 v{dst}, v{dst}, v{r3}, s[{m3}:{m3+1}]")

def build(opt):
    g = G(opt)
    A = g.A
    polK = opt.get("polK", " nt"); polV = opt.get("polV", " nt"); polW = opt.get("polW", " nt")
    W = opt.get("W", 16)
    PRIO = opt.get("prio", 1)
    SX = opt.get("SX", 0)
    def prio(p):
        if PRIO: A(f"s_setprio {p}")
    hdr = open(f"cdna_kernels/{NAME}.s.ref").read().split("\n")
    for line in hdr:
        if line.startswith("; @launch"):
            g.L.append(f"; @launch grid=(256,1,1) block=(512,1,1) lds={L_END}")
            break
        g.L.append(line)
    g.L += ['.amdgcn_target "amdgcn-amd-amdhsa--gfx950"'] + DOC.strip().split("\n") + [".text", f".globl {NAME}_kernel", ".p2align 8",
            f".type {NAME}_kernel,@function"]
    g.lbl(f"{NAME}_kernel")
    if opt.get("stamps"): A("s_memrealtime s[92:93]")
    A("s_cmp_ge_u32 s2, 256")
    A("s_cbranch_scc1 L_end")
    A("s_load_dwordx16 s[64:79], s[0:1], 0")
    A("s_load_dwordx8 s[80:87], s[0:1], 64")
    A("s_load_dwordx2 s[90:91], s[0:1], 104")
    A(f"s_getpc_b64 s[{sST}:{sST+1}]")
    g.lbl("L_pc")
    A(f"v_lshlrev_b32 v{vT}, 6, v0")
    A(f"v_min_u32 v{vT}, L_end - L_pc - 4, v{vT}")
    A(f"global_load_dword v15, v{vT}, s[{sST}:{sST+1}]")
    prio(3)
    A(f"v_lshrrev_b32 v{vL}, 6, v0")
    A(f"s_sub_u32 s{sS}, s2, {SX+1}")
    A(f"v_readfirstlane_b32 s{sWAVE}, v{vL}")
    A(f"v_and_b32 v{vL}, 63, v0")
    A(f"v_and_b32 v{vJ}, 15, v0")
    A(f"v_lshrrev_b32 v{vGR}, 4, v{vL}")
    A(f"v_lshrrev_b32 v{vKO}, 2, v{vJ}")
    A(f"v_lshlrev_b32 v{vKO}, {12 if opt.get('KS', 0) else 11}, v{vKO}")
    A(f"v_lshl_add_u32 v{vKO}, v{vGR}, 6, v{vKO}")
    A(f"v_and_b32 v12, 3, v0")
    A(f"v_lshl_add_u32 v{vKO}, v12, 4, v{vKO}")
    A(f"v_lshlrev_b32 v{vL16}, 4, v{vL}")
    A(f"v_mov_b32 v{vE}, 0")
    A(f"v_lshlrev_b32 v{vT}, 2, v{vL}")
    A(f"v_add_u32 v{vT}, {L_RED}, v{vT}")
    A(f"ds_write_b32 v{vT}, v{vE}")
    A(f"s_and_b32 s{sS}, s{sS}, 7")
    A(f"s_lshr_b32 s{sN}, s2, 3")
    A(f"s_and_b32 s{sB_}, s{sN}, 3")
    A(f"s_lshr_b32 s{sKVH}, s{sN}, 2")
    A(f"s_lshl_b32 s{sGRP}, s{sB_}, 3")
    A(f"s_add_u32 s{sGRP}, s{sGRP}, s{sKVH}")
    A(f"s_lshl_b32 s{sT0}, s{sGRP}, 21")
    A(f"s_and_b32 s{sT1}, s{sWAVE}, 3")
    A(f"s_lshl_b32 s{sT2}, s{sS}, 2")
    A(f"s_add_u32 s{sT1}, s{sT1}, s{sT2}")
    A(f"s_lshr_b32 s{sT2}, s{sWAVE}, 2")
    A(f"s_mul_i32 s{sT2}, s{sT2}, 28")
    A(f"s_add_u32 s{sT1}, s{sT1}, s{sT2}")
    GR = opt.get("GR", 0)
    if GR:
        A(f"s_mul_i32 s{sT2}, s{sGRP}, {GR}")
        A(f"s_add_u32 s{sT1}, s{sT1}, s{sT2}")
        A(f"s_and_b32 s{sT1}, s{sT1}, 127")
    A(f"s_lshl_b32 s{sT1}, s{sT1}, 14")
    A(f"s_add_u32 s{sKB}, s{sT0}, s{sT1}")
    A(f"s_mul_i32 s{sT1}, s{sS}, 5")
    A(f"s_add_u32 s{sT1}, s{sT1}, s{sN}")
    A(f"s_and_b32 s{sT1}, s{sT1}, 31")
    A(f"s_mul_i32 s{sT1}, s{sT1}, 7")
    A(f"s_add_u32 s{sT1}, s{sT1}, s{sS}")
    A(f"s_cmp_eq_u32 s{sS}, 7")
    A(f"s_cselect_b32 s{sN}, s{sN}, s{sT1}")
    A(f"s_mov_b32 s{sK+2}, {64<<20}")
    A(f"s_mov_b32 s{sK+3}, 0x20000")
    A(f"s_cmp_lt_u32 s{sN}, 42")
    A("s_waitcnt lgkmcnt(0)")
    LB = opt.get("LB", 0)
    if not LB: A("s_barrier")
    A(f"global_load_dword v{vE}, v{vE}, s[{P_WS}:{P_WS+1}] sc1")
    A(f"s_mov_b32 s{sK}, s{P_K}")
    A(f"s_mov_b32 s{sK+1}, s{P_K+1}")
    A("s_cbranch_scc1 L_early")
    VF = opt.get("VF", 0)
    vm = VM(g, W, 2)
    if VF:
        A(f"s_and_b32 s{sXO}, s{sGRP if VF == 1 else (sS if VF == 2 else sWAVE)}, {opt.get('VFM', 1)}")
        A("s_cbranch_scc1 L_main0")
    if LB:
        A(f"s_cmp_lt_u32 s{sWAVE}, 4")
        A("s_cbranch_scc1 L_e1")
        A("s_barrier")
        g.lbl("L_e1")
    k_tile(g, vm, polK, sKB, 0, vK)
    if LB:
        A("s_cbranch_scc0 L_main0")
        A("s_barrier")
    A("s_branch L_main0")
    SID = sN
    c4 = 12
    vRO, vSW = 10, 11
    def dma(n, swz):
        for i in range(n):
            A(f"s_mov_b32 m0, s{sLDS}")
            A(f"s_add_u32 s{sLDS}, s{sLDS}, 1024")
            A(f"buffer_load_dwordx4 v{vDM}, s[{sA}:{sA+3}], s{sSTART} offen{polW} lds")
            A(f"s_add_u32 s{sSTART}, s{sSTART}, s{sSTEP}")
            if swz: A(f"v_xor_b32 v{vDM}, 64, v{vDM}")
    g.lbl("L_early")
    A(f"s_cmp_eq_u32 s{sS}, 7")
    A(f"s_cselect_b32 s{sB}, s{P_X}, s{P_C}")
    A(f"s_cselect_b32 s{sB+1}, s{P_X+1}, s{P_C+1}")
    A(f"s_mov_b32 s{sB+2}, 3584")
    A(f"s_mov_b32 s{sB+3}, 0x20000")
    A(f"s_cselect_b32 s{sA}, s{P_WQ}, s{P_WM}")
    A(f"s_cselect_b32 s{sA+1}, s{P_WQ+1}, s{P_WM+1}")
    A(f"s_mov_b32 s{sSTEP}, 5376")
    A(f"s_cselect_b32 s{sSTEP}, 8192, s{sSTEP}")
    A(f"s_mov_b32 s{sT0}, 1024")
    A(f"s_cselect_b32 s{sT0}, 896, s{sT0}")
    A(f"s_cselect_b32 s{sT1}, 3, 4")
    A(f"s_cselect_b32 s{sT2}, 6, 0")
    A(f"s_cselect_b32 s{sT3}, 48, 64")
    A(f"s_cselect_b32 s{sLDS}, 8, 7")
    A(f"s_mul_i32 s{sT0}, s{sT0}, s{sWAVE}")
    A(f"s_lshl_b32 s{sT2}, 8, s{sT2}")
    A(f"v_lshlrev_b32 v13, s{sT1}, v{vL}")
    A(f"v_cmp_gt_u32 vcc, s{sT3}, v{vL}")
    A(f"buffer_load_dwordx2 v[16:17], v13, s[{sB}:{sB+3}], s{sT0} offen")
    A(f"v_add_u32 v13, s{sT2}, v13")
    A(f"v_mov_b32 v{vT}, 0x100000")
    A(f"v_cndmask_b32 v13, v{vT}, v13, vcc")
    A(f"buffer_load_dwordx2 v[18:19], v13, s[{sB}:{sB+3}], s{sT0} offen")
    A(f"s_mul_i32 s{sA+2}, s{sSTEP}, {0 if opt.get('skip', 0) & 1 else 448}")
    A(f"s_mov_b32 s{sA+3}, 0x20000")
    A(f"v_lshrrev_b32 v{vRO}, 3, v{vL}")
    A(f"v_and_b32 v{vSW}, 7, v{vL}")
    A(f"v_and_b32 v{vT}, 2, v{vRO}")
    A(f"v_xor_b32 v{vSW}, v{vSW}, v{vT}")
    A(f"v_lshlrev_b32 v{vSW}, 4, v{vSW}")
    A(f"s_and_b32 s{sT1}, s{sWAVE}, 1")
    A(f"s_lshl_b32 s{sT1}, s{sT1}, 6")
    A(f"v_xor_b32 v{vSW}, s{sT1}, v{vSW}")
    A(f"v_mad_u32_u24 v{vDM}, v{vRO}, s{sSTEP}, v{vSW}")
    A(f"s_lshl_b32 s{sSTART}, s{SID}, s{sLDS}")
    JS = opt.get("JS", 0)
    if JS:
        A(f"s_lshr_b32 s{sT0}, s{sLDS}, 3")
        A(f"s_and_b32 s{sT0}, s{sT0}, s{SID}")
        A(f"s_lshl_b32 s{sXO}, s{sT0}, 7")
        A(f"s_add_u32 s{sSTART}, s{sSTART}, s{sXO}")
    A(f"s_lshl_b32 s{sSTEP}, s{sSTEP}, 3")
    A(f"s_mul_i32 s{sT0}, s{sWAVE}, 7")
    A(f"s_mul_i32 s{sT1}, s{sT0}, s{sSTEP}")
    A(f"s_add_u32 s{sSTART}, s{sSTART}, s{sT1}")
    A(f"s_lshl_b32 s{sLDS}, s{sT0}, 10")
    dma(7, True)
    def consts():
        srd(g, sWS, P_WS, WS_SIZE)
        A(f"s_mov_b32 s{sM48}, -1"); A(f"s_mov_b32 s{sM48+1}, 0x0000ffff")
        A(f"s_mov_b32 s{sHI}, 0xffff0000")
        A(f"s_mov_b32 s{sRETRY}, 0x80000")
        A(f"s_mov_b32 s{sM1}, 0xffff0000"); A(f"s_mov_b32 s{sM1+1}, 0")
        A(f"s_mov_b32 s{sM2}, 0"); A(f"s_mov_b32 s{sM2+1}, 0xffff")
        A(f"s_mov_b32 s{sM3}, 0"); A(f"s_mov_b32 s{sM3+1}, 0xffff0000")
        A(f"s_mov_b32 s{sQ1}, 0x22222222"); A(f"s_mov_b32 s{sQ1+1}, 0x22222222")
        A(f"s_mov_b32 s{sQ2}, 0x44444444"); A(f"s_mov_b32 s{sQ2+1}, 0x44444444")
        A(f"s_mov_b32 s{sQ3}, 0x88888888"); A(f"s_mov_b32 s{sQ3+1}, 0x88888888")
        if opt.get("stamps"):
            for i in range(1, NSTAMP): A(f"s_mov_b32 s{92+i}, 0")
    def wfrags(addr, rowbytes, dst=64):
        for ks in range(14):
            r = dst + 4*ks
            A(f"ds_read_b64_tr_b16 v[{r}:{r+1}], v{addr} offset:{ks*32*rowbytes}")
            A(f"ds_read_b64_tr_b16 v[{r+2}:{r+3}], v{addr} offset:{ks*32*rowbytes + 4*rowbytes}")
            if ks % 4 == 3: A("s_waitcnt lgkmcnt(6)")
    def gemv_pub(abase, astride, bstride):
        A(f"v_mul_u32_u24 v{vT}, {astride}, v{c4}")
        A(f"v_lshl_add_u32 v{vT}, v{vGR}, 4, v{vT}")
        A(f"v_add_u32 v{vT}, {abase}, v{vT}")
        A("s_waitcnt lgkmcnt(0)")
        for ks in range(14):
            A(f"ds_read_b128 v[{128+4*ks}:{131+4*ks}], v{vT} offset:{64*ks}")
        for ks in range(14):
            A(f"s_waitcnt lgkmcnt({13-ks})")
            c = "0" if ks == 0 else "v[16:19]"
            A(f"v_mfma_f32_16x16x32_bf16 v[16:19], v[{64+4*ks}:{67+4*ks}], v[{128+4*ks}:{131+4*ks}], {c}")
        A(f"v_mul_u32_u24 v{vT}, {bstride}, v{c4}")
        A(f"v_lshl_add_u32 v{vT}, v{vGR}, 4, v{vT}")
        A(f"v_mov_b32 v22, 0")
        A(f"v_mov_b32 v23, s{sTAG}")
        A(f"s_mov_b32 exec_lo, 0x000f000f")
        A(f"s_mov_b32 exec_hi, 0x000f000f")
        g.nop(2)
        A(f"v_cvt_pk_bf16_f32 v20, v16, v17")
        A(f"v_cvt_pk_bf16_f32 v21, v18, v19")
        A(f"buffer_store_dwordx4 v[20:23], v{vT}, s[{sWS}:{sWS+3}], s{sT3} offen sc1")
        A("s_mov_b64 exec, -1")
    A(f"s_cmp_eq_u32 s{sS}, 7")
    A("s_cbranch_scc1 L_svc")
    consts()
    MK_ = opt.get("MK", 1)
    A(f"s_cmp_lt_u32 s{sWAVE}, 4")
    if MK_:
        A("s_cbranch_scc1 L_m0")
        k_tile(g, VM(g, 0), polK, sKB, 0, vK)
        A("s_waitcnt vmcnt(8)")
        A("s_barrier")
        A("s_branch L_main1")
        g.lbl("L_m0")
    else:
        A("s_cbranch_scc0 L_m1")
    A("s_waitcnt vmcnt(7)")
    get_tag(g)
    for i in range(4): unpack(g, 16+i, 24+2*i, 25+2*i)
    A(f"s_lshl_b32 s{sT2}, s{sWAVE}, 10")
    A(f"s_add_u32 s{sT2}, s{sT2}, {L_SC}")
    A(f"v_add_u32 v{vT}, s{sT2}, v{vL16}")
    for i in range(8): A(f"v_mul_f32 v{32+i}, {f2u(-LOG2E):#x}, v{24+i}")
    for i in range(8): A(f"v_exp_f32 v{32+i}, v{32+i}")
    for i in range(8): A(f"v_add_f32 v{32+i}, 1.0, v{32+i}")
    for i in range(8): A(f"v_rcp_f32 v{32+i}, v{32+i}")
    for i in range(8): A(f"v_mul_f32 v{24+i}, v{24+i}, v{32+i}")
    for i in range(4): A(f"v_cvt_pk_bf16_f32 v{24+i}, v{24+2*i}, v{25+2*i}")
    A(f"ds_write_b128 v{vT}, v[24:27]")
    A(f"v_lshrrev_b32 v13, 2, v{vJ}")
    A(f"v_lshl_add_u32 v13, v{vGR}, 3, v13")
    A(f"v_lshlrev_b32 v13, 7, v13")
    A(f"v_lshl_add_u32 v13, v{c4}, 3, v13")
    A(f"v_bfe_u32 v{vT}, v{vL}, 3, 2")
    A(f"v_xor_b32 v{vT}, s{sWAVE}, v{vT}")
    A(f"v_lshl_add_u32 v13, v{vT}, 5, v13")
    A(f"s_lshl_b32 s{sT3}, s{SID}, 8")
    A(f"s_lshl_b32 s{sT0}, s{sWAVE}, 6")
    A(f"s_add_u32 s{sT3}, s{sT3}, s{sT0}")
    A(f"s_add_u32 s{sT3}, s{sT3}, {WS_M}")
    g.lbl("L_m1")
    A("s_waitcnt vmcnt(0) lgkmcnt(0)")
    A("s_barrier")
    A(f"s_cmp_lt_u32 s{sWAVE}, 4")
    A("s_cbranch_scc0 L_m2")
    wfrags(13, 128)
    gemv_pub(L_SC, 896, MB)
    stamp(g, 1)
    g.lbl("L_m2")
    if VF: A(f"s_mov_b32 s{sXO}, 0")
    k_tile(g, VM(g, 0), polK, sKB, 0, vK)
    A("s_branch L_main1")
    g.lbl("L_main0")
    consts()
    g.lbl("L_main1")
    srd(g, sV, P_V, 64 << 20)
    A(f"v_lshlrev_b32 v13, 12, v{vGR}")
    A(f"v_lshl_add_u32 v13, v{vJ}, 4, v13")
    RS = opt.get("RS", 512)
    A(f"v_lshrrev_b32 v{vVO}, 2, v{vJ}")
    A(f"v_mul_u32_u24 v{vVO}, {4*RS}, v{vVO}")
    A(f"v_and_b32 v{vT}, 255, v{vKO}")
    A(f"v_add_u32 v{vVO}, v{vVO}, v{vT}")
    A(f"v_mul_u32_u24 v{vVU}, {4*RS}, v{vGR}")
    A(f"v_lshl_add_u32 v{vVU}, v{vJ}, 4, v{vVU}")
    A(f"s_mov_b32 s{sR8}, 0xff00ff00"); A(f"s_mov_b32 s{sR8+1}, 0xff00ff00")
    A(f"s_mov_b32 s{sPLO}, 0x05040100"); A(f"s_mov_b32 s{sPHI}, 0x07060302")
    A(f"s_mov_b32 s{sC}, {f2u(0.0625*LOG2E):#x}")
    if VF:
        A(f"s_cmp_eq_u32 s{sXO}, 0")
        A("s_cbranch_scc1 L_kfirst")
        vm2 = VM(g, W, 2)
        v_group(g, vm2, polV, 0)
        v_group(g, vm2, polV, 1)
        prio(2)
        k_tile(g, VM(g, W, W), polK, sKB, 0, vK)
        k_tile(g, VM(g, W, W), polK, sKB, 8192, vK+32)
        A("s_branch L_sdone")
        g.lbl("L_kfirst")
    k_tile(g, vm, polK, sKB, 8192, vK+32)
    prio(2)
    v_group(g, VM(g, W, W), polV, 0)
    v_group(g, VM(g, W, W), polV, 1)
    g.lbl("L_sdone")
    get_tag(g)
    NU = 144
    TY = opt.get("TY", 32)
    A(f"s_lshl_b32 s{sT0}, s{sGRP}, 8")
    A(f"s_add_u32 s{sT0}, s{sT0}, {WS_CNT}")
    A(f"s_add_u32 s{sCNT}, s{P_WS}, s{sT0}")
    A(f"s_addc_u32 s{sCNT+1}, s{P_WS+1}, 0")
    A(f"s_lshl_b32 s{sKB}, s{sGRP}, 21")
    if GR:
        A(f"s_mul_i32 s{sXO}, s{sGRP}, {2*GR}")
        A(f"s_add_u32 s{sXO}, s{sXO}, 112")
    else:
        A(f"s_add_u32 s{sKB}, s{sKB}, {1792*512}")
    A(f"s_cmp_lt_u32 s{sWAVE}, 4")
    A(f"s_mov_b32 s{sLIM}, {TY}")
    A(f"s_cselect_b32 s{sLIM}, {NU}, s{sLIM}")
    TB = opt.get("TB", 0)
    sBU = sFAST
    if TB:
        A(f"s_cmp_ge_u32 s{sWAVE}, {8 - opt.get('NB', 4)}")
        A(f"s_cselect_b32 s{sBU}, 1, 0")
    g.lbl("L_peek")
    A(f"s_mov_b64 s[{sCX+2}:{sCX+3}], 0")
    A(f"s_atomic_add_x2 s[{sCX+2}:{sCX+3}], s[{sCNT}:{sCNT+1}], 0 glc")
    A("s_waitcnt lgkmcnt(0)")
    A(f"s_cmp_eq_u32 s{sCX+3}, s{sTAG}")
    A("s_cbranch_scc1 L_peek_ok")
    A(f"s_mov_b32 s{sCX}, 0")
    A(f"s_mov_b32 s{sCX+1}, s{sTAG}")
    A(f"s_atomic_cmpswap_x2 s[{sCX}:{sCX+3}], s[{sCNT}:{sCNT+1}], 0 glc")
    A("s_waitcnt lgkmcnt(0)")
    A(f"s_sub_u32 s{sRETRY}, s{sRETRY}, 1")
    A("s_cbranch_scc0 L_peek")
    A(f"s_mov_b32 s{sRETRY}, 0")
    g.lbl("L_peek_ok")
    A(f"s_mov_b32 s{sTK}, s{sCX+2}")
    ncl = [0]
    def claim():
        ncl[0] += 1
        A(f"s_cmp_lt_u32 s{sTK}, s{sLIM}")
        A(f"s_mov_b32 s{sTK}, 0xffff")
        A(f"s_cbranch_scc0 L_nc{ncl[0]}")
        A(f"s_mov_b32 s{sTK}, 1")
        A(f"s_atomic_add s{sTK}, s[{sCNT}:{sCNT+1}], 0 glc")
        g.lbl(f"L_nc{ncl[0]}")
    def unit_base():
        if GR:
            A(f"s_add_u32 s{sUB}, s{sTK}, s{sXO}")
            A(f"s_and_b32 s{sUB}, s{sUB}, 255")
            A(f"s_lshl_b32 s{sUB}, s{sUB}, 13")
        elif RS != 512:
            n = RS // 512
            A(f"s_and_b32 s{sT0}, s{sTK}, {n-1}")
            A(f"s_lshl_b32 s{sT0}, s{sT0}, 9")
            A(f"s_andn2_b32 s{sUB}, s{sTK}, {n-1}")
            A(f"s_lshl_b32 s{sUB}, s{sUB}, 13")
            A(f"s_add_u32 s{sUB}, s{sUB}, s{sT0}")
        else:
            A(f"s_lshl_b32 s{sUB}, s{sTK}, 13")
        A(f"s_add_u32 s{sUB}, s{sUB}, s{sKB}")
    OS = opt.get("OS", 0)
    if OS:
        A(f"s_cmp_lt_u32 s{sWAVE}, 4")
        A(f"s_cselect_b32 s{sTK}, 0x7fff, s{sTK}")
    claim()
    def qloads():
        for i in range(2):
            A(f"buffer_load_dwordx4 v[{16+4*i}:{19+4*i}], v{vL16}, s[{sWS}:{sWS+3}], s{sPX} offen offset:{1024*i} sc1")
    A(f"s_lshl_b32 s{sT1}, s{sB_}, 14")
    A(f"s_lshl_b32 s{sT2}, s{sKVH}, 11")
    A(f"s_add_u32 s{sT1}, s{sT1}, s{sT2}")
    A(f"s_add_u32 s{sPX}, s{sT1}, {WS_Q}")
    QLATE = opt.get("QLATE", 1)
    if not QLATE: qloads()
    if OS:
        A(f"s_cmp_lt_u32 s{sWAVE}, 4")
        A("s_cbranch_scc1 L_yp")
        prio(1)
    else:
        prio(1)
        A(f"s_cmp_lt_u32 s{sWAVE}, 4")
        A("s_cbranch_scc0 L_yp")
        prio(0)
    g.lbl("L_yp")
    A("s_waitcnt lgkmcnt(0)")
    A(f"s_cmp_lt_u32 s{sTK}, {NU}")
    A(f"s_cbranch_scc0 {'L_qpoll' if QLATE else 'L_qwait'}")
    unit_base()
    k_unit(g, VM(g, W, W), polK)
    if QLATE: qloads()
    v_unit(g, VM(g, W, W), polV)
    A(f"s_waitcnt vmcnt({8 if QLATE else 16})")
    A("s_branch L_qchk")
    g.lbl("L_qpoll")
    qloads()
    g.lbl("L_qwait")
    A("s_waitcnt vmcnt(0)")
    g.lbl("L_qchk")
    if not opt.get("noq"): check_tags(g, [19, 23], "L_qpoll")
    stamp(g, 3)
    A(f"v_lshlrev_b32 v{vT+2}, 3, v{vL}")
    A(f"v_add_u32 v{vT+2}, {L_Q}, v{vT+2}")
    A(f"ds_write_b64 v{vT+2}, v[16:17]")
    A(f"ds_write_b64 v{vT+2}, v[20:21] offset:512")
    A(f"v_bfe_u32 v{vT}, v{vJ}, 2, 1")
    A(f"v_lshlrev_b32 v{vT}, 9, v{vT}")
    A(f"v_lshl_add_u32 v{vT}, v{vGR}, 6, v{vT}")
    A(f"v_and_b32 v{vT+1}, 3, v{vL}")
    A(f"v_lshl_add_u32 v{vT}, v{vT+1}, 4, v{vT}")
    A(f"v_add_u32 v{vT}, {L_Q}, v{vT}")
    QL, QH = 48, 56
    A(f"ds_read_b128 v[{QL}:{QL+3}], v{vT}")
    A(f"ds_read_b128 v[{QL+4}:{QL+7}], v{vT} offset:256")
    A(f"s_waitcnt lgkmcnt(0)")
    for i in range(8):
        A(f"v_cndmask_b32 v{QH+i}, 0, v{QL+i}, s[{sR8}:{sR8+1}]")
    for i in range(8):
        A(f"v_cndmask_b32 v{QL+i}, v{QL+i}, 0, s[{sR8}:{sR8+1}]")
    g.nop(2)
    def qk_tile(src, D0):
        for jj in range(8):
            kq, blk = jj >> 1, jj & 1
            d = D0 + 4*(kq >> 1)
            q = (QH if (kq & 1) else QL) + 4*blk
            r = src + 4*jj
            c = "0" if (jj & 3) == 0 else f"v[{d}:{d+3}]"
            A(f"v_mfma_f32_16x16x32_bf16 v[{d}:{d+3}], v[{q}:{q+3}], v[{r}:{r+3}], {c}")
    SD = 16
    for t in range(2): qk_tile(vK + 32*t, SD + 8*t)
    PFA, PFU, vPW, vPR, UD = 176, 180, 182, 183, 184
    A(f"v_and_b32 v12, 1, v{vGR}")
    A(f"v_and_b32 v{vT}, 1, v{vL}")
    A(f"v_lshrrev_b32 v13, 1, v{vGR}")
    A(f"v_lshl_add_u32 v{vPW}, v{vT}, 1, v13")
    A(f"v_lshrrev_b32 v13, 2, v{vJ}")
    A(f"v_lshl_add_u32 v{vPW}, v13, 2, v{vPW}")
    A(f"v_lshlrev_b32 v{vPW}, 1, v{vPW}")
    A(f"v_lshl_add_u32 v{vPW}, v12, 7, v{vPW}")
    A(f"s_lshl_b32 s{sT1}, s{sWAVE}, 9")
    A(f"s_add_u32 s{sT1}, s{sT1}, {L_P}")
    A(f"v_lshlrev_b32 v{vPR}, 7, v13")
    A(f"v_add_u32 v{vPW}, s{sT1}, v{vPW}")
    if opt.get("KS", 0):
        A(f"v_lshl_add_u32 v{vT}, v13, 3, v{vPW}")
        A(f"v_bfe_u32 v13, v{vL}, 1, 1")
        A(f"v_lshl_add_u32 v13, v13, 3, v{vT}")
    else:
        A(f"v_bfe_u32 v13, v{vL}, 1, 1")
        A(f"v_lshl_add_u32 v13, v13, 5, v{vPW}")
    A(f"v_add_u32 v{vPR}, s{sT1}, v{vPR}")
    A(f"v_lshl_add_u32 v12, v{vGR}, 4, v{vPR}")
    A(f"v_lshl_add_u32 v{vPR}, v{vGR}, 3, v{vPR}")
    A(f"s_mov_b32 s{sR8}, 0xaaaaaaaa"); A(f"s_mov_b32 s{sR8+1}, 0xaaaaaaaa")
    for d in range(4):
        D = SD + 4*d
        sel4(g, D, D, D+1, D+2, D+3, sQ1, sQ2, sQ3)
    for pat in ("quad_perm:[1,0,3,2]", "quad_perm:[2,3,0,1]"):
        for d in range(4):
            D = SD + 4*d
            A(f"v_add_f32 v{D}, v{D}, v{D} {pat} {DPP}")
    S0, S1 = 10, 11
    sel4(g, S0, SD, SD+4, SD+8, SD+12, sQ1, sQ2, sQ3)
    rnd1(g, S0)
    A(f"v_mov_b32 v{vM}, v{S0}")
    wave_reduce(g, "v_max_f32", [vM], [17], swaps=("v_permlane32_swap_b32",))
    A(f"v_sub_f32 v{S0}, v{S0}, v{vM}")
    A(f"v_mul_f32 v{S0}, s{sC}, v{S0}")
    A(f"v_exp_f32 v{vLS}, v{S0}")
    g.nop(1)
    A(f"v_cvt_pk_bf16_f32 v20, v{vLS}, v{vLS}")
    A(f"v_lshlrev_b32 v20, 16, v20")
    A(f"v_sub_f32 v20, v{vLS}, v20")
    A(f"v_cvt_pk_bf16_f32 v20, v{vLS}, v20")
    A(f"ds_write_b16 v13, v20")
    A(f"ds_write_b16_d16_hi v13, v20 offset:256")
    A(f"ds_read_b128 v[{PFA}:{PFA+3}], v12")
    A("s_waitcnt lgkmcnt(0)")
    ACCB = (16, 128)
    PT = 160
    for eta in range(2):
        R = vVE + 32*eta
        for c in range(4):
            T = PT + 8*(c & 1)
            for m in range(4):
                A(f"v_perm_b32 v{T+m}, v{R+4*(2*m+1)+c}, v{R+4*(2*m)+c}, s{sPLO}")
            for m in range(4):
                A(f"v_perm_b32 v{T+4+m}, v{R+4*(2*m+1)+c}, v{R+4*(2*m)+c}, s{sPHI}")
            g.nop(1)
            for hh in range(2):
                acc = ACCB[eta] + 4*(2*c + hh)
                A(f"v_mfma_f32_16x16x32_bf16 v[{acc}:{acc+3}], v[{PFA}:{PFA+3}], v[{T+4*hh}:{T+4*hh+3}], 0")
    A(f"v_and_b32 v12, 1, v{vGR}")
    A(f"v_lshlrev_b32 v{vRW}, 6, v12")
    A(f"s_lshl_b32 s{sT0}, s{sWAVE}, 3")
    A(f"s_add_u32 s{sT0}, s{sT0}, {L_RED}")
    A(f"v_add_u32 v{vRW}, s{sT0}, v{vRW}")
    A(f"s_bfe_u32 s{sT0}, s{sWAVE}, 0x10001")
    A(f"s_lshl_b32 s{sT0}, s{sT0}, 6")
    A(f"s_add_u32 s{sT0}, s{sT0}, {L_RED}")
    A(f"v_and_b32 v{vRR}, 7, v{vL}")
    A(f"v_lshl_add_u32 v{vRR}, v{vRR}, 3, s{sT0}")
    A(f"v_lshlrev_b32 v{vOLW}, 10, v12")
    A(f"v_lshl_add_u32 v{vOLW}, v{vJ}, 5, v{vOLW}")
    A(f"v_lshrrev_b32 v12, 1, v{vGR}")
    A(f"v_lshl_add_u32 v{vOLW}, v12, 4, v{vOLW}")
    A(f"s_lshl_b32 s{sT1}, s{sWAVE}, 11")
    A(f"s_add_u32 s{sT1}, s{sT1}, {L_OL}")
    A(f"v_add_u32 v{vOLW}, s{sT1}, v{vOLW}")
    A(f"s_and_b32 s{sT2}, s{sWAVE}, 3")
    A(f"s_lshl_b32 s{sT0}, s{sT2}, 9")
    A(f"s_add_u32 s{sT0}, s{sT0}, {L_OL}")
    A(f"v_lshl_add_u32 v{vOLR}, v{vL}, 3, s{sT0}")
    A(f"v_lshrrev_b32 v82, 5, v{vL}")
    A(f"v_mul_u32_u24 v82, {4096-512}, v82")
    A(f"v_add_u32 v82, v82, v{vL16}")
    A(f"s_lshl_b32 s{sO_DST}, s{sGRP}, 15")
    A(f"s_lshl_b32 s{sT1}, s{sT2}, 13")
    A(f"s_add_u32 s{sO_DST}, s{sO_DST}, s{sT1}")
    A(f"s_lshl_b32 s{sT1}, s{sS}, 9")
    A(f"s_add_u32 s{sO_DST}, s{sO_DST}, s{sT1}")
    A(f"s_add_u32 s{sO_DST}, s{sO_DST}, {WS_O}")
    PUB = 84
    A(f"v_mov_b32 v{PUB+3}, s{sTAG}")
    A(f"s_cmp_lt_u32 s{sTK}, {NU}")
    A("s_cbranch_scc1 L_top")
    if OS:
        A(f"s_cmp_lt_u32 s{sWAVE}, 4")
        A("s_cbranch_scc0 L_nounit")
        prio(0)
        A(f"s_mov_b32 s{sTK}, 0")
        claim()
        A("s_waitcnt lgkmcnt(0)")
        A(f"s_cmp_lt_u32 s{sTK}, {NU}")
        A("s_cbranch_scc0 L_nounit")
        unit_base()
        k_unit(g, VM(g, 0), polK)
        v_unit(g, VM(g, 0), polV)
        A("s_branch L_top")
        g.lbl("L_nounit")
    if TB:
        A(f"s_cmp_eq_u32 s{sBU}, 0")
        A("s_cbranch_scc1 L_nob")
        g.lbl("L_burst")
        A(f"s_mov_b32 s{sBU}, 0")
        g.lbl("L_bw")
        A("s_sleep 8")
        A(f"s_load_dword s{sT3}, s[{sCNT}:{sCNT+1}], 0 glc")
        A("s_waitcnt lgkmcnt(0)")
        A(f"s_cmp_ge_u32 s{sT3}, {TB}")
        A("s_cbranch_scc1 L_bgo")
        A(f"s_sub_u32 s{sRETRY}, s{sRETRY}, 1")
        A("s_cbranch_scc0 L_bw")
        A(f"s_mov_b32 s{sRETRY}, 0")
        g.lbl("L_bgo")
        A(f"s_mov_b32 s{sLIM}, 0")
        A(f"s_mov_b32 s{sTK}, 1")
        A(f"s_atomic_add s{sTK}, s[{sCNT}:{sCNT+1}], 0 glc")
        A("s_waitcnt lgkmcnt(0)")
        A(f"s_cmp_lt_u32 s{sTK}, {NU}")
        A("s_cbranch_scc0 L_nob")
        unit_base()
        k_unit(g, VM(g, 0), polK)
        v_unit(g, VM(g, 0), polV)
        A("s_branch L_top")
        g.lbl("L_nob")
    wave_reduce(g, "v_add_f32", [vLS], [12], swaps=("v_permlane32_swap_b32",))
    A(f"ds_write_b64 v{vRW}, v[{vM}:{vLS}]")
    A("s_branch L_exit2")

    g.lbl("L_top")
    CE = opt.get("CE", 10)
    A(f"s_waitcnt vmcnt({CE})")
    if opt.get("trace"):
        A("s_waitcnt vmcnt(8)")
        A(f"s_memrealtime s[{sST}:{sST+1}]")
        for i in range(101, 93, -1): A(f"s_mov_b32 s{i}, s{i-1}")
        A("s_waitcnt lgkmcnt(0)")
        A(f"s_sub_u32 s93, s{sST}, s92")
        A(f"s_lshl_b32 s93, s93, 8")
        A(f"s_or_b32 s93, s93, s{sTK}")
    claim()
    A("s_waitcnt vmcnt(8)")
    qk_tile(vKU, UD)
    g.nop(5)
    sel4(g, UD, UD, UD+1, UD+2, UD+3, sQ1, sQ2, sQ3)
    sel4(g, UD+4, UD+4, UD+5, UD+6, UD+7, sQ1, sQ2, sQ3)
    for pat in ("quad_perm:[1,0,3,2]", "quad_perm:[2,3,0,1]"):
        g.nop(1)
        for D in (UD, UD+4):
            A(f"v_add_f32 v{D}, v{D}, v{D} {pat} {DPP}")
    A(f"v_cndmask_b32 v{S1}, v{UD}, v{UD+4}, s[{sR8}:{sR8+1}]")
    rnd1(g, S1)
    A(f"v_max_f32 v{S0}, v{S1}, v{vM}")
    for pat in ("quad_perm:[1,0,3,2]", "row_half_mirror", "row_mirror"):
        g.nop(2)
        A(f"v_max_f32 v{S0}, v{S0}, v{S0} {pat} {DPP}")
    A(f"v_mov_b32 v12, v{S0}")
    g.nop(2)
    A(f"v_permlane32_swap_b32 v{S0}, v12")
    A(f"v_max_f32 v{S0}, v{S0}, v12")
    A(f"v_sub_f32 v{S1}, v{S1}, v{S0}")
    A(f"v_sub_f32 v12, v{vM}, v{S0}")
    A(f"v_cmp_neq_f32 vcc, v{vM}, v{S0}")
    A(f"v_mul_f32 v{S1}, s{sC}, v{S1}")
    A(f"v_mul_f32 v12, s{sC}, v12")
    A(f"v_exp_f32 v{S1}, v{S1}")
    A(f"v_exp_f32 v12, v12")
    A(f"v_mov_b32 v{vM}, v{S0}")
    A(f"v_cvt_pk_bf16_f32 v13, v{S1}, v{S1}")
    A(f"v_mul_f32 v{vLS}, v{vLS}, v12")
    A(f"v_lshlrev_b32 v13, 16, v13")
    A(f"v_sub_f32 v13, v{S1}, v13")
    A(f"v_cvt_pk_bf16_f32 v13, v{S1}, v13")
    A(f"ds_write_b16 v{vPW}, v13 offset:64")
    A(f"ds_write_b16_d16_hi v{vPW}, v13 offset:{256+64}")
    A(f"ds_read_b64 v[{PFU}:{PFU+1}], v{vPR} offset:64")
    A(f"v_fma_f32 v{vLS}, v{S1}, 0.5, v{vLS}")
    A("s_cbranch_vccz L_nors")
    for B in ACCB:
        for e in range(8):
            A(f"v_mul_f32 v{B+4*e}, v{B+4*e}, v12")
    g.lbl("L_nors")
    A("s_waitcnt lgkmcnt(0)")
    A(f"s_cmp_lt_u32 s{sTK}, {NU}")
    A("s_cbranch_scc0 L_last")
    unit_base()
    k_unit(g, VM(g, 0), polK)
    g.lbl("L_pv")
    A("s_waitcnt vmcnt(8)")
    for eta in range(2):
        R = vVB + 16*eta
        for c in range(4):
            T = PT + 4*(c & 3)
            A(f"v_perm_b32 v{T}, v{R+4+c}, v{R+c}, s{sPLO}")
            A(f"v_perm_b32 v{T+1}, v{R+12+c}, v{R+8+c}, s{sPLO}")
            A(f"v_perm_b32 v{T+2}, v{R+4+c}, v{R+c}, s{sPHI}")
            A(f"v_perm_b32 v{T+3}, v{R+12+c}, v{R+8+c}, s{sPHI}")
        for c in range(4):
            T = PT + 4*(c & 3)
            for hh in range(2):
                acc = ACCB[eta] + 4*(2*c + hh)
                A(f"v_mfma_f32_16x16x16_bf16 v[{acc}:{acc+3}], v[{PFU}:{PFU+1}], v[{T+2*hh}:{T+2*hh+1}], v[{acc}:{acc+3}]")
    A(f"s_cmp_lt_u32 s{sTK}, {NU}")
    A("s_cbranch_scc0 L_exit")
    v_unit(g, VM(g, 0), polV)
    A("s_branch L_top")

    g.lbl("L_last")
    if TB:
        A(f"s_cmp_lg_u32 s{sBU}, 0")
        A("s_cbranch_scc1 L_last2")
    wave_reduce(g, "v_add_f32", [vLS], [12], swaps=("v_permlane32_swap_b32",))
    A(f"ds_write_b64 v{vRW}, v[{vM}:{vLS}]")
    stamp(g, 4)
    g.lbl("L_last2")
    A("s_waitcnt vmcnt(0)")
    A("s_branch L_pv")

    g.lbl("L_exit")
    if TB:
        A(f"s_cmp_lg_u32 s{sBU}, 0")
        A("s_cbranch_scc1 L_burst")
    g.lbl("L_exit2")
    stamp(g, 5)
    for eta, OUT in ((0, 88), (1, 92)):
        B = ACCB[eta]
        for i in range(4): A(f"v_permlane32_swap_b32 v{B+4*i}, v{B+4*(4+i)}")
        for i in range(4): A(f"v_add_f32 v{OUT+i}, v{B+4*i}, v{B+4*(4+i)}")
        A(f"ds_write_b128 v{vOLW}, v[{OUT}:{OUT+3}] offset:{512*eta}")
    A(f"s_cmp_lt_u32 s{sWAVE}, 4")
    A("s_waitcnt lgkmcnt(0)")
    A("s_cbranch_scc0 L_mlspin")
    A("s_barrier")
    A("s_branch L_fin")
    g.lbl("L_mls")
    A("s_sleep 2")
    g.lbl("L_mlspin")
    A(f"ds_read_b64 v[32:33], v{vRR}")
    A("s_waitcnt lgkmcnt(0)")
    A(f"v_cmp_eq_u32 vcc, 0, v33")
    retry_branch(g, "L_mls")
    A(f"v_max_f32 v34, v32, v32 quad_perm:[1,0,3,2] {DPP}")
    g.nop(2)
    A(f"v_max_f32 v34, v34, v34 quad_perm:[2,3,0,1] {DPP}")
    g.nop(2)
    A(f"v_max_f32 v34, v34, v34 row_half_mirror {DPP}")
    A(f"v_sub_f32 v32, v32, v34")
    A(f"v_mul_f32 v32, s{sC}, v32")
    A(f"v_exp_f32 v32, v32")
    g.nop(1)
    A(f"v_mul_f32 v33, v33, v32")
    SF = 4
    for pat in ("quad_perm:[1,0,3,2]", "quad_perm:[2,3,0,1]", "row_half_mirror"):
        g.nop(2)
        A(f"v_add_f32 v33, v33, v33 {pat} {DPP}")
    A(f"v_rcp_f32 v36, v33")
    A(f"v_log_f32 v{PUB+2}, v33")
    A(f"v_mul_f32 v32, v32, v36")
    A(f"v_fma_f32 v{PUB+2}, v34, s{sC}, v{PUB+2}")
    for k in range(8): A(f"v_readlane_b32 s{SF+k}, v32, {k}")
    A("s_barrier")
    order = (4, 5, 6, 7, 0, 1, 2, 3)
    for w in order:
        A(f"ds_read_b64 v[{16+2*w}:{17+2*w}], v{vOLR} offset:{2048*w}")
    for n, k in enumerate(order):
        r = f"s[{SF+(k&~1)}:{SF+(k&~1)+1}]"
        d = 36 + 2*(k & 1)
        A(f"s_waitcnt lgkmcnt({7-n})")
        if n < 2:
            m = "op_sel:[0,1] op_sel_hi:[1,1]" if k & 1 else "op_sel_hi:[1,0]"
            A(f"v_pk_mul_f32 v[{d}:{d+1}], v[{16+2*k}:{17+2*k}], {r} {m}")
        else:
            m = "op_sel:[0,1,0] op_sel_hi:[1,1,1]" if k & 1 else "op_sel_hi:[1,0,1]"
            A(f"v_pk_fma_f32 v[{d}:{d+1}], v[{16+2*k}:{17+2*k}], {r}, v[{d}:{d+1}] {m}")
    A(f"v_pk_add_f32 v[{PUB}:{PUB+1}], v[36:37], v[38:39]")
    A(f"buffer_store_dwordx4 v[{PUB}:{PUB+3}], v82, s[{sWS}:{sWS+3}], s{sO_DST} offen sc1")
    stamp(g, 6)
    A("s_branch L_fin")

    g.lbl("L_svc")
    A("v_mov_b32 v255, 0")
    A("v_mov_b32 v239, 0")
    A(f"v_mov_b32 v{vKO}, v{vRO}")
    A(f"v_mov_b32 v{vVO}, v{vSW}")
    A(f"s_and_b32 s{sB_}, s{sWAVE}, 3")
    def job_rows(ptr, stride, colshift, coladd, sb):
        srd(g, sA, ptr, 0 if (opt.get("skip", 0) & (1 if stride == 8192 else 2)) else 448*stride)
        A(f"s_mov_b32 s{sT0}, {stride}")
        A(f"v_mad_u32_u24 v{vDM}, v{vKO}, s{sT0}, v{vVO}")
        A(f"s_mov_b32 s{sSTEP}, {8*stride}")
        A(f"s_mul_i32 s{sSTART}, s{sWAVE}, {56*stride}")
        A(f"s_lshl_b32 s{sT0}, s{SID}, {colshift}")
        A(f"s_add_u32 s{sSTART}, s{sSTART}, s{sT0}")
        if coladd: A(f"s_add_u32 s{sSTART}, s{sSTART}, {coladd}")
        if ptr == P_WQ and JS: A(f"s_sub_u32 s{sSTART}, s{sSTART}, s{sXO}")
        A(f"s_mul_i32 s{sLDS}, s{sWAVE}, 7168")
        if sb: A(f"s_add_u32 s{sLDS}, s{sLDS}, {sb}")
        dma(7, True)
    def job_lin(ptr, size, mul, add, sb):
        srd(g, sA, ptr, 0 if opt.get("skip", 0) & 4 else size)
        A(f"v_mov_b32 v{vDM}, v{vL16}")
        A(f"s_mov_b32 s{sSTEP}, 1024")
        A(f"s_mul_i32 s{sLDS}, s{sWAVE}, 7168")
        A(f"s_mul_i32 s{sSTART}, s{SID}, {mul}")
        A(f"s_add_u32 s{sSTART}, s{sSTART}, s{sLDS}")
        if add: A(f"s_add_u32 s{sSTART}, s{sSTART}, {add}")
        if sb: A(f"s_add_u32 s{sLDS}, s{sLDS}, {sb}")
        dma(7, False)
    job_rows(P_WQ, 8192, 8, 128, SB1)
    consts()
    A(f"s_lshr_b32 s{sT0}, s{sWAVE}, 1")
    A(f"s_mul_i32 s{sT0}, s{sT0}, 28")
    A(f"s_add_u32 s{sT0}, s{sT0}, s{SID}")
    RIS = opt.get("RIS", 2048)
    A(f"s_mul_i32 s{sT0}, s{sT0}, {RIS}")
    A(f"s_and_b32 s{sT1}, s{sWAVE}, 1")
    A(f"s_lshl_b32 s{sT1}, s{sT1}, 10")
    A(f"s_add_u32 s{sT0}, s{sT0}, s{sT1}")
    A(f"s_add_u32 s{sT0}, s{sT0}, {WS_RI}")
    A(f"s_cmp_lt_u32 s{SID}, 28")
    A(f"s_cselect_b32 s{sT0}, s{sT0}, {WS_SIZE}")
    for i in range(4): A(f"v_mov_b32 v{20+i}, -1")
    A(f"buffer_store_dwordx4 v[20:23], v{vL16}, s[{sWS}:{sWS+3}], s{sT0} offen sc1")
    vRW8 = 10
    A(f"v_lshrrev_b32 v{vRW8}, 2, v{vJ}")
    A(f"v_lshl_add_u32 v{vRW8}, v{vGR}, 3, v{vRW8}")
    A("s_waitcnt vmcnt(15)")
    get_tag(g)
    A(f"s_cmp_lt_u32 s{sWAVE}, 4")
    A("s_cbranch_scc0 L_s2")
    for i in range(4): unpack(g, 16+i, 24+2*i, 25+2*i)
    layernorm(g, 24, 32, 24, 8)
    for i in range(0, 8, 2): rnd2(g, 24+i, 25+i, vT)
    g.lbl("L_s2")
    A("s_waitcnt vmcnt(0)")
    A("s_barrier")
    vTA = 14
    A(f"v_lshlrev_b32 v{vTA}, 7, v{vRW8}")
    A(f"v_lshl_add_u32 v{vTA}, v{c4}, 3, v{vTA}")
    A(f"v_bfe_u32 v{vT}, v{vL}, 3, 2")
    A(f"v_xor_b32 v{vT}, s{sB_}, v{vT}")
    A(f"v_lshl_add_u32 v{vTA}, v{vT}, 5, v{vTA}")
    A(f"s_cmp_lt_u32 s{sWAVE}, 4")
    A(f"s_cselect_b32 s{sT0}, 0, {SB1}")
    A(f"v_add_u32 v13, s{sT0}, v{vTA}")
    vXB = 15
    A(f"v_add_u32 v{vXB}, 1024, v{vL16}")
    A(f"v_mov_b32 v{vT}, {WS_SIZE}")
    A(f"v_cndmask_b32 v{vXB}, v{vT}, v{vXB}, s[{sM48}:{sM48+1}]")
    A("s_cbranch_scc1 L_s_h")
    A(f"s_cmp_eq_u32 s{sWAVE}, 7")
    A("s_cbranch_scc0 L_s_fr")
    A(f"s_getreg_b32 s{sT0}, hwreg(HW_REG_XCC_ID)")
    A(f"v_mov_b32 v20, s{sT0}")
    A(f"v_mov_b32 v23, s{sTAG}")
    A(f"s_lshl_b32 s{sT1}, s{SID}, 4")
    A(f"s_add_u32 s{sT1}, s{sT1}, {WS_XC}")
    A("s_mov_b64 exec, 1")
    A(f"buffer_store_dwordx4 v[20:23], v{vL16}, s[{sWS}:{sWS+3}], s{sT1} offen sc1")
    A("s_mov_b64 exec, -1")
    g.lbl("L_s_fr")
    wfrags(13, 128)
    EW = opt.get("EW", 0)
    if EW:
        A("s_waitcnt lgkmcnt(0)")
        A("s_barrier")
        srd(g, sA, P_WO, 4096*896)
        A(f"v_mov_b32 v{vDM}, v{vL16}")
        A(f"s_mov_b32 s{sSTEP}, 1024")
        A(f"s_mul_i32 s{sLDS}, s{sB_}, 14336")
        A(f"s_mul_i32 s{sSTART}, s{SID}, 114688")
        A(f"s_add_u32 s{sSTART}, s{sSTART}, s{sLDS}")
        dma(14, False)
    A("s_branch L_s3")
    g.lbl("L_s_h")
    A(f"s_mul_i32 s{sXO}, s{sB_}, {MB}")
    A(f"s_add_u32 s{sXO}, s{sXO}, {WS_M}")
    def hloads():
        for i, (va, off) in enumerate(((vL16, 0), (vXB, 0), (vL16, 1792), (vXB, 1792))):
            A(f"buffer_load_dwordx4 v[{32+4*i}:{35+4*i}], v{va}, s[{sWS}:{sWS+3}], s{sXO} offen offset:{off} sc1")
    hloads()
    wfrags(13, 128)
    if EW:
        A("s_waitcnt lgkmcnt(0)")
        A("s_barrier")
    A("s_branch L_hwait")
    g.lbl("L_hpoll")
    hloads()
    g.lbl("L_hwait")
    A("s_waitcnt vmcnt(0)")
    tags_ab(g, [35, 43], [39, 47])
    retry_branch(g, "L_hpoll")
    for i, r in enumerate((32, 33, 36, 37)):
        unpack(g, r, 16+2*i, 17+2*i)
        unpack(g, r+8, 48+2*i, 49+2*i)
    for i in range(8): A(f"v_add_f32 v{48+i}, 1.0, v{48+i}")
    for i in range(0, 8, 2): rnd2(g, 48+i, 49+i, vT)
    modulate_pack(g, 24, 48, 16, 24, vT, 8)
    A(f"s_mul_i32 s{sT2}, s{sB_}, {AS}")
    A(f"s_add_u32 s{sT2}, s{sT2}, {L_A}")
    A(f"v_lshl_add_u32 v{vT}, v{vL}, 3, s{sT2}")
    A(f"ds_write_b64 v{vT}, v[24:25]")
    A(f"s_mov_b64 exec, s[{sM48}:{sM48+1}]")
    A(f"ds_write_b64 v{vT}, v[26:27] offset:512")
    A("s_mov_b64 exec, -1")
    g.lbl("L_s3")
    A("s_waitcnt lgkmcnt(0)")
    A("s_barrier")
    A(f"s_lshl_b32 s{sT3}, s{SID}, 9")
    A(f"s_lshl_b32 s{sT0}, s{sWAVE}, 6")
    if JS:
        A(f"s_and_b32 s{sT1}, s{SID}, 1")
        A(f"s_lshl_b32 s{sT1}, s{sT1}, 8")
        A(f"s_xor_b32 s{sT0}, s{sT0}, s{sT1}")
    A(f"s_add_u32 s{sT3}, s{sT3}, s{sT0}")
    A(f"s_add_u32 s{sT3}, s{sT3}, {WS_Q}")
    gemv_pub(L_A, AS, 16384)
    stamp(g, 2)
    A("s_barrier")
    vFA = 13
    WOF, GUF, DNF = 64, 128, 184
    def fa():
        A(f"v_mul_u32_u24 v{vFA}, 896, v{vRW8}")
        A(f"v_lshl_add_u32 v{vFA}, v{c4}, 5, v{vFA}")
        A(f"s_lshl_b32 s{sT0}, s{sWAVE}, 7")
        A(f"v_add_u32 v{vFA}, s{sT0}, v{vFA}")
    def rowfrags(dst, per_tile, ks0):
        for t in range(4):
            for ks in range(2):
                r = dst + per_tile*t + 4*(ks0 + ks)
                A(f"ds_read_b64_tr_b16 v[{r}:{r+1}], v{vFA} offset:{ks*28672 + t*8}")
                A(f"ds_read_b64_tr_b16 v[{r+2}:{r+3}], v{vFA} offset:{ks*28672 + t*8 + 3584}")
            if t & 1: A("s_waitcnt lgkmcnt(4)")
    if not EW: job_lin(P_WO, 4096*896, 114688, 0, SB0)
    job_lin(P_WO, 4096*896, 114688, 57344, SB1)
    fa()
    A("s_waitcnt vmcnt(7)")
    A("s_barrier")
    rowfrags(WOF, 16, 0)
    A("s_waitcnt lgkmcnt(0)")
    A("s_barrier")
    A(f"s_cmp_lt_u32 s{SID}, 28")
    A("s_cbranch_scc1 L_j3")
    A("s_waitcnt vmcnt(0)")
    A("s_branch L_j3b")
    g.lbl("L_j3")
    job_lin(P_WD, 1792*896, 57344, 0, SB0)
    A("s_waitcnt vmcnt(7)")
    g.lbl("L_j3b")
    A("s_barrier")
    A(f"v_add_u32 v{vFA}, {SB1}, v{vFA}")
    rowfrags(WOF, 16, 2)
    A(f"s_cmp_lt_u32 s{SID}, 28")
    A("s_cbranch_scc0 L_p5")
    A("s_waitcnt lgkmcnt(0)")
    A("s_barrier")
    job_rows(P_WU, 3584, 7, 0, SB1)
    A("s_waitcnt vmcnt(7)")
    A("s_barrier")
    A(f"v_subrev_u32 v{vFA}, {SB1}, v{vFA}")
    rowfrags(DNF, 8, 0)
    A("s_waitcnt lgkmcnt(0)")
    A("s_barrier")
    job_rows(P_WG, 3584, 7, 0, SB0)
    A("s_waitcnt vmcnt(0)")
    A("s_barrier")
    A(f"v_lshlrev_b32 v13, 7, v{vRW8}")
    A(f"v_bfe_u32 v{vT}, v{vL}, 3, 2")
    A(f"v_lshlrev_b32 v{vT}, 1, v{vT}")
    A(f"v_xor_b32 v{vT}, s{sWAVE}, v{vT}")
    A(f"v_lshl_add_u32 v13, v{vT}, 4, v13")
    A(f"v_and_b32 v{vT}, 1, v{vL}")
    A(f"v_lshl_add_u32 v13, v{vT}, 3, v13")
    A(f"v_bfe_u32 v{vT}, v{vL}, 1, 1")
    A(f"v_mul_u32_u24 v{vT}, {SB1}, v{vT}")
    A(f"v_add_u32 v13, v13, v{vT}")
    wfrags(13, 128, GUF)
    OC, SH = 240, 244
    GA, GB, XV = 248, 249, 250
    vHW, vAF, vGW, vGRD, vOUT = 251, 252, 253, 254, 255
    vX1, vIX = 239, 238
    A(f"s_cmp_lt_u32 s{sWAVE}, 4")
    A(f"s_cselect_b64 s[{sMH}:{sMH+1}], -1, s[{sM48}:{sM48+1}]")
    A(f"s_cselect_b64 s[{sR8}:{sR8+1}], 0, -1")
    A(f"v_cndmask_b32 v13, v{vL16}, v{vXB}, s[{sR8}:{sR8+1}]")
    A(f"s_mul_i32 s{sXO}, s{sB_}, {MB}")
    A(f"s_add_u32 s{sXO}, s{sXO}, {WS_M + 2*1792}")
    A(f"v_and_b32 v{vT}, 1, v{vGR}")
    A(f"v_lshrrev_b32 v{vX1}, 1, v{vGR}")
    A(f"v_lshl_add_u32 v{vX1}, v{vT}, 1, v{vX1}")
    A(f"v_lshl_add_u32 v{vOUT}, v{vX1}, 2, v{c4}")
    A(f"v_lshlrev_b32 v{vOUT}, 1, v{vOUT}")
    A(f"v_lshlrev_b32 v{vX1}, 4, v{vX1}")
    A(f"s_lshl_b32 s{sT0}, s{SID}, 6")
    A(f"v_add_u32 v{vDM}, s{sT0}, v{vX1}")
    A(f"s_add_u32 s{sT1}, s{sXO}, {3*1792}")
    A(f"s_mul_i32 s{sPX}, s{sB_}, 896")
    A(f"s_lshl_b32 s{sT0}, s{SID}, 5")
    A(f"s_add_u32 s{sPX}, s{sPX}, s{sT0}")
    srd(g, sB, P_X, 3584)
    A(f"buffer_load_ushort v{XV}, v{vOUT}, s[{sB}:{sB+3}], s{sPX} offen")
    if opt.get("OT", 0):
        srd(g, sA, P_OUT, 3584)
        A(f"buffer_load_ushort v{GA}, v{vOUT}, s[{sA}:{sA+3}], s{sPX} offen")
    g.lbl("L_mpoll")
    A(f"buffer_load_dwordx4 v[16:19], v13, s[{sWS}:{sWS+3}], s{sXO} offen offset:1792 sc1")
    A(f"buffer_load_dwordx4 v[20:23], v13, s[{sWS}:{sWS+3}], s{sXO} offen offset:3584 sc1")
    A(f"buffer_load_dwordx4 v[24:27], v{vDM}, s[{sWS}:{sWS+3}], s{sXO} offen sc1")
    A(f"buffer_load_dwordx4 v[28:31], v{vDM}, s[{sWS}:{sWS+3}], s{sT1} offen sc1")
    A("s_waitcnt vmcnt(0)")
    A(f"v_xor_b32 v{vT}, s{sTAG}, v19")
    A(f"v_bitop3_b32 v{vT}, v{vT}, v23, s{sTAG} bitop3:0xf6")
    A(f"v_cndmask_b32 v{vT}, 0, v{vT}, s[{sMH}:{sMH+1}]")
    A(f"v_bitop3_b32 v{vT}, v{vT}, v27, s{sTAG} bitop3:0xf6")
    A(f"v_bitop3_b32 v{vT}, v{vT}, v31, s{sTAG} bitop3:0xf6")
    A(f"v_cmp_ne_u32 vcc, 0, v{vT}")
    retry_branch(g, "L_mpoll")
    for i in range(2):
        unpack(g, 16+i, SH+2*i, SH+2*i+1)
        unpack(g, 20+i, OC+2*i, OC+2*i+1)
    for i in range(4): A(f"v_add_f32 v{OC+i}, 1.0, v{OC+i}")
    for i in range(0, 4, 2): rnd2(g, OC+i, OC+i+1, vT)
    A(f"s_mov_b32 vcc_lo, 0xcccccccc"); A(f"s_mov_b32 vcc_hi, 0xcccccccc")
    A(f"v_cndmask_b32 v{GA}, v24, v25, vcc")
    A(f"v_cndmask_b32 v{GB}, v28, v29, vcc")
    A(f"v_and_b32 v{vT}, 1, v{vL}")
    A(f"v_lshlrev_b32 v{vT}, 4, v{vT}")
    A(f"v_lshrrev_b32 v{GA}, v{vT}, v{GA}")
    A(f"v_lshrrev_b32 v{GB}, v{vT}, v{GB}")
    A(f"v_lshlrev_b32 v{GA}, 16, v{GA}")
    A(f"v_lshlrev_b32 v{GB}, 16, v{GB}")
    A(f"v_lshlrev_b32 v{XV}, 16, v{XV}")
    A(f"s_mul_i32 s{sT0}, s{sB_}, 960")
    A(f"s_lshr_b32 s{sT2}, s{sWAVE}, 2")
    A(f"s_lshl_b32 s{sT2}, s{sT2}, 8")
    A(f"s_add_u32 s{sT0}, s{sT0}, s{sT2}")
    A(f"s_add_u32 s{sT0}, s{sT0}, {L_A}")
    A(f"v_lshl_add_u32 v{vHW}, v{vL}, 2, s{sT0}")
    A(f"v_bfe_u32 v{vT}, v{vL}, 1, 1")
    A(f"v_lshl_add_u32 v{vT}, v{vGR}, 1, v{vT}")
    A(f"v_mul_u32_u24 v{vGW}, 96, v{vT}")
    A(f"v_and_b32 v{vT}, 12, v{vJ}")
    A(f"v_add_u32 v{vGW}, v{vGW}, v{vT}")
    A(f"v_and_b32 v{vT}, 1, v{vL}")
    A(f"v_lshl_add_u32 v{vGW}, v{vT}, 1, v{vGW}")
    A(f"s_lshl_b32 s{sT0}, s{sWAVE}, 3")
    A(f"s_add_u32 s{sT0}, s{sT0}, {L_G}")
    A(f"v_add_u32 v{vGW}, s{sT0}, v{vGW}")
    A(f"s_mul_i32 s{sXO}, s{sB_}, 1792")
    A(f"s_add_u32 s{sXO}, s{sXO}, {WS_X1}")
    A(f"s_mul_i32 s{sRI}, s{sB_}, 28")
    A(f"s_add_u32 s{sRI}, s{sRI}, s{SID}")
    A(f"s_mul_i32 s{sRI}, s{sRI}, {RIS}")
    A(f"s_add_u32 s{sRI}, s{sRI}, {WS_RI}")
    for i in range(2):
        A(f"buffer_load_dwordx4 v[16:19], v{vL16}, s[{sWS}:{sWS+3}], s{sRI} offen offset:{1024*i} sc1")
    A(f"buffer_load_dwordx4 v[16:19], v{vL16}, s[{sWS}:{sWS+3}], s{sXO} offen sc1")
    A(f"buffer_load_dwordx4 v[16:19], v{vXB}, s[{sWS}:{sWS+3}], s{sXO} offen sc1")
    g.lbl("L_p5")
    A(f"v_and_b32 v13, 0x1f0, v{vL16}")
    A(f"s_mov_b32 s{sT1}, {WS_XC}")
    g.lbl("L_xpoll")
    A(f"buffer_load_dwordx4 v[16:19], v13, s[{sWS}:{sWS+3}], s{sT1} offen sc1")
    A("s_waitcnt vmcnt(0)")
    check_tags(g, [19], "L_xpoll")
    A(f"s_getreg_b32 s{sT0}, hwreg(HW_REG_XCC_ID)")
    A(f"v_cmp_ne_u32 vcc, s{sT0}, v16")
    A(f"s_cmp_eq_u64 vcc, 0")
    A(f"s_cselect_b32 s{sFAST}, {0 if opt.get('nofast') else 1}, 0")
    nst = [0]
    def xstore(ins):
        nst[0] += 1
        k = nst[0]
        A(f"s_cmp_eq_u32 s{sFAST}, 0")
        A(f"s_cbranch_scc1 L_xs{k}")
        A(ins + opt.get("polX", ""))
        A(f"s_branch L_xd{k}")
        g.lbl(f"L_xs{k}")
        A(ins + " sc1")
        g.lbl(f"L_xd{k}")
    vZO, vOBW, vOBR = vKO, vVO, vDM
    A(f"v_lshrrev_b32 v{vT}, 2, v{vJ}")
    A(f"v_mul_u32_u24 v{vZO}, 28, v{vGR}")
    A(f"v_add_u32 v{vZO}, v{vZO}, v{vT}")
    A(f"v_mul_u32_u24 v{vZO}, {RIS}, v{vZO}")
    A(f"v_lshl_add_u32 v{vZO}, v{c4}, 4, v{vZO}")
    A(f"s_mul_i32 s{sY_DST}, s{sWAVE}, {4*RIS}")
    A(f"s_lshl_b32 s{sT0}, s{SID}, 6")
    A(f"s_add_u32 s{sY_DST}, s{sY_DST}, s{sT0}")
    A(f"s_add_u32 s{sY_DST}, s{sY_DST}, {WS_RI}")
    A(f"v_and_b32 v13, 1, v{vL}")
    A(f"v_lshl_add_u32 v{vT}, v{vT}, 1, v13")
    A(f"v_lshlrev_b32 v10, 4, v{vGR}")
    for reg, stride, base in ((vOBR, 160, L_OB), (vAF, 480, L_A), (vGRD, 96, L_G)):
        A(f"v_mul_u32_u24 v{reg}, {stride}, v{vT}")
        A(f"v_add_u32 v{reg}, v{reg}, v10")
        A(f"v_add_u32 v{reg}, {base}, v{reg}")
    A(f"v_mul_u32_u24 v{vIX}, 0xaaaa, v13")
    A(f"v_add_u32 v{vIX}, 0x4444, v{vIX}")
    A(f"s_mul_i32 s{sT0}, s{sB_}, 320")
    A(f"s_lshr_b32 s{sT2}, s{sWAVE}, 2")
    A(f"s_lshl_b32 s{sT1}, s{sT2}, 6")
    A(f"s_add_u32 s{sT0}, s{sT0}, s{sT1}")
    A(f"s_add_u32 s{sT0}, s{sT0}, {L_OB}")
    A(f"v_mul_u32_u24 v{vOBW}, 160, v13")
    A(f"v_bfe_u32 v{vT}, v{vL}, 1, 4")
    A(f"v_lshl_add_u32 v{vOBW}, v{vT}, 2, v{vOBW}")
    A(f"v_add_u32 v{vOBW}, s{sT0}, v{vOBW}")
    YD, GD = 216, 232
    for i in range(20): A(f"v_mov_b32 v{YD+i}, 0")
    A(f"s_lshl_b32 s{sO_IN}, s{sB_}, 18")
    A(f"s_lshl_b32 s{sT1}, s{SID}, 13")
    A(f"s_add_u32 s{sO_IN}, s{sO_IN}, s{sT1}")
    A(f"s_lshl_b32 s{sT1}, s{sT2}, 12")
    A(f"s_add_u32 s{sO_IN}, s{sO_IN}, s{sT1}")
    A(f"s_add_u32 s{sO_IN}, s{sO_IN}, {WS_O}")
    A(f"v_mov_b32 v28, 0"); A(f"v_mov_b32 v29, 0")
    A(f"v_mov_b32 v30, 0xff7fffff"); A(f"v_mov_b32 v31, s{sTAG}")
    A("s_waitcnt lgkmcnt(0)")
    stamp(g, 9)
    if opt.get("SEL", 1):
        MK = (4, 6, 8, 10)
        for m in MK: A(f"s_mov_b64 s[{m}:{m+1}], -1")
        A(f"s_mov_b32 s{MK[3]+1}, 0")
        g.lbl("L_opoll")
        for i, m in enumerate(MK):
            A(f"s_mov_b64 exec, s[{m}:{m+1}]")
            A(f"s_cbranch_execz L_os{i}")
            A(f"buffer_load_dwordx4 v[{16+4*i}:{19+4*i}], v{vL16}, s[{sWS}:{sWS+3}], s{sO_IN} offen offset:{1024*i} sc1")
            g.lbl(f"L_os{i}")
        A("s_mov_b64 exec, -1")
        A("s_waitcnt vmcnt(0)")
        for i, m in enumerate(MK):
            A(f"v_cmp_ne_u32 s[{m}:{m+1}], s{sTAG}, v{19+4*i}")
        A(f"s_or_b64 vcc, s[{MK[0]}:{MK[0]+1}], s[{MK[1]}:{MK[1]+1}]")
        A(f"s_or_b64 vcc, vcc, s[{MK[2]}:{MK[2]+1}]")
        A(f"s_or_b64 vcc, vcc, s[{MK[3]}:{MK[3]+1}]")
        retry_branch(g, "L_opoll")
    else:
        g.lbl("L_opoll")
        for i in range(3):
            A(f"buffer_load_dwordx4 v[{16+4*i}:{19+4*i}], v{vL16}, s[{sWS}:{sWS+3}], s{sO_IN} offen offset:{1024*i} sc1")
        A("s_mov_b32 exec_hi, 0")
        A(f"buffer_load_dwordx4 v[28:31], v{vL16}, s[{sWS}:{sWS+3}], s{sO_IN} offen offset:3072 sc1")
        A("s_mov_b32 exec_hi, -1")
        A("s_waitcnt vmcnt(0)")
        check_tags(g, [19, 23, 27, 31], "L_opoll")
    tstamp(g, 1)
    A(f"v_max3_f32 v32, v18, v22, v26")
    A(f"v_max_f32 v32, v32, v30")
    A(f"v_mov_b32 v33, v32")
    g.nop(2)
    A(f"v_permlane32_swap_b32 v32, v33")
    A(f"v_max_f32 v32, v32, v33")
    for i in range(4): A(f"v_sub_f32 v{18+4*i}, v{18+4*i}, v32")
    for i in range(4): A(f"v_exp_f32 v{18+4*i}, v{18+4*i}")
    A(f"v_pk_mul_f32 v[34:35], v[16:17], v[18:19] op_sel_hi:[1,0]")
    A(f"v_add_f32 v36, v18, v22")
    for i in range(1, 4):
        A(f"v_pk_fma_f32 v[34:35], v[{16+4*i}:{17+4*i}], v[{18+4*i}:{19+4*i}], v[34:35] op_sel_hi:[1,0,1]")
    A(f"v_add_f32 v37, v26, v30")
    A(f"v_add_f32 v36, v36, v37")
    A(f"v_mov_b32 v38, v34"); A(f"v_mov_b32 v39, v35"); A(f"v_mov_b32 v37, v36")
    g.nop(1)
    A(f"v_permlane32_swap_b32 v34, v38")
    A(f"v_permlane32_swap_b32 v35, v39")
    A(f"v_permlane32_swap_b32 v36, v37")
    A(f"v_pk_add_f32 v[34:35], v[34:35], v[38:39]")
    A(f"v_add_f32 v36, v36, v37")
    A(f"v_rcp_f32 v36, v36")
    g.nop(1)
    A(f"v_pk_mul_f32 v[34:35], v[34:35], v[36:37] op_sel_hi:[1,0]")
    A(f"v_cvt_pk_bf16_f32 v34, v34, v35")
    A(f"ds_write_b32 v{vOBW}, v34")
    A("s_waitcnt lgkmcnt(0)")
    A("s_barrier")
    def proj(addr, nks, frags, per_tile, off, O=40):
        for ks in range(nks):
            A(f"ds_read_b128 v[{48+4*ks}:{51+4*ks}], v{addr} offset:{64*ks}")
        for ks in range(nks):
            A(f"s_waitcnt lgkmcnt({nks-1-ks})")
            for t in range(4):
                r = frags + per_tile*t + 8*ks
                A(f"v_smfmac_f32_16x16x64_bf16 v[{YD+4*t}:{YD+4*t+3}], v[{48+4*ks}:{51+4*ks}], v[{r}:{r+7}], v{vIX}")
        g.nop(5)
        for t in range(4):
            A(f"v_add_f32 v{O+t}, v{YD+4*t}, v{YD+4*t+1}")
        for i in range(4): A(f"v_or_b32 v{O+i}, 1, v{O+i}" if off else f"v_and_b32 v{O+i}, -2, v{O+i}")
        xstore(f"buffer_store_dwordx4 v[{O}:{O+3}], v{vZO}, s[{sWS}:{sWS+3}], s{sY_DST} offen")
    A(f"s_cmp_eq_u32 s{sWAVE}, 7")
    A("s_cbranch_scc1 L_t2")
    proj(vOBR, 2, WOF, 16, 0)
    for t in range(4):
        A(f"v_mov_b32 v{YD+4*t}, 0"); A(f"v_mov_b32 v{YD+4*t+1}, 0")
    stamp(g, 7)
    g.lbl("L_t2")
    A(f"s_cmp_lt_u32 s{SID}, 28")
    A(f"s_cbranch_scc0 {'L_wb1' if opt.get('WB', 0) & 1 else 'L_fin'}")
    def reduce(lab, z, gate, st):
        if z:
            for i in range(4): A(f"v_mov_b32 v{20+i}, 1")
        if opt.get("SR", 0):
            A("s_mov_b64 s[4:5], -1")
            A("s_mov_b64 s[6:7], -1")
            if z: A("s_mov_b32 s7, 0xffff")
            g.lbl(lab)
            A("s_mov_b64 exec, s[4:5]")
            A(f"s_cbranch_execz {lab}_a")
            A(f"buffer_load_dwordx4 v[24:27], v{vL16}, s[{sWS}:{sWS+3}], s{sRI} offen sc1")
            g.lbl(lab + "_a")
            A("s_mov_b64 exec, s[6:7]")
            A(f"s_cbranch_execz {lab}_b")
            A(f"buffer_load_dwordx4 v[20:23], v{vL16}, s[{sWS}:{sWS+3}], s{sRI} offen offset:1024 sc1")
            g.lbl(lab + "_b")
            A("s_mov_b64 exec, -1")
            A("s_waitcnt vmcnt(0)")
            bo = "0x80" if z else "0xfe"
            bf = "0x80" if z else "0xa8"
            A(f"v_bitop3_b32 v{vT}, v24, v25, v26 bitop3:{bo}")
            A(f"v_bitop3_b32 v10, v20, v21, v22 bitop3:{bo}")
            A(f"v_bitop3_b32 v{vT}, v{vT}, v27, 1 bitop3:{bf}")
            A(f"v_bitop3_b32 v10, v10, v23, 1 bitop3:{bf}")
            A(f"v_cmp_ne_u32 s[4:5], {1 if z else 0}, v{vT}")
            A(f"v_cmp_ne_u32 s[6:7], {1 if z else 0}, v10")
            A("s_or_b64 vcc, s[4:5], s[6:7]")
        else:
            g.lbl(lab)
            A(f"buffer_load_dwordx4 v[24:27], v{vL16}, s[{sWS}:{sWS+3}], s{sRI} offen sc1")
            if z: A("s_mov_b32 exec_hi, 0xffff")
            A(f"buffer_load_dwordx4 v[20:23], v{vL16}, s[{sWS}:{sWS+3}], s{sRI} offen offset:1024 sc1")
            if z: A("s_mov_b32 exec_hi, -1")
            A("s_waitcnt vmcnt(0)")
            bo = "0x80" if z else "0xfe"
            A(f"v_bitop3_b32 v{vT}, v24, v25, v26 bitop3:{bo}")
            A(f"v_bitop3_b32 v10, v27, v20, v21 bitop3:{bo}")
            A(f"v_bitop3_b32 v{vT}, v{vT}, v22, v23 bitop3:{bo}")
            A(f"v_bitop3_b32 v{vT}, v{vT}, v10, 1 bitop3:{'0x80' if z else '0xa8'}")
            A(f"v_cmp_ne_u32 vcc, {1 if z else 0}, v{vT}")
        A(pk("add", 16, 24, 20)); A(pk("add", 18, 26, 22))
        retry_branch(g, lab)
        tstamp(g, st)
        g.nop(1)
        A(f"v_permlane32_swap_b32 v16, v17")
        A(f"v_permlane32_swap_b32 v18, v19")
        A(f"v_add_f32 v16, v16, v17")
        A(f"v_add_f32 v18, v18, v19")
        g.nop(2)
        A(f"v_permlane16_swap_b32 v16, v18")
        A(f"v_add_f32 v16, v16, v18")
        g.nop(2)
        A(f"v_add_f32 v16, v16, v16 row_ror:4 {DPP}")
        g.nop(2)
        A(f"v_add_f32 v16, v16, v16 row_ror:8 {DPP}")
        rnd1(g, 16)
        A(f"v_mul_f32 v16, v16, v{gate}")
        rnd1(g, 16)
        A(f"v_add_f32 v{XV}, v{XV}, v16")
    XB = opt.get("XB", 1)
    RO = opt.get("RO", 0)
    A(f"s_cmp_lt_u32 s{sWAVE}, 4")
    A(f"s_cbranch_scc{0 if RO else 1} {'L_x1b' if XB else 'L_x1poll'}")
    A(f"v_mov_b32 v47, s{sTAG}")
    A(f"v_mov_b32 v46, 0")
    A(f"s_lshl_b32 s{sT2}, s{sPX}, 1")
    A(f"s_add_u32 s{sT2}, s{sT2}, {WS_X1}")
    reduce("L_ypoll", 0, GA, 5)
    g.nop(2)
    A(f"v_mov_b32 v17, v{XV} quad_perm:[1,1,3,3] {DPP}")
    A(f"v_cvt_pk_bf16_f32 v44, v{XV}, v17")
    g.nop(2)
    A(f"v_mov_b32 v45, v44 quad_perm:[2,2,2,2] {DPP}")
    A("s_mov_b32 exec_lo, 0x00010001"); A("s_mov_b32 exec_hi, 0x00010001")
    xstore(f"buffer_store_dwordx4 v[44:47], v{vX1}, s[{sWS}:{sWS+3}], s{sT2} offen")
    A("s_mov_b64 exec, -1")
    rnd1(g, XV)
    stamp(g, 6)
    if XB:
        g.lbl("L_x1b")
        A("s_barrier")
    g.lbl("L_x1poll")
    A(f"buffer_load_dwordx4 v[16:19], v{vL16}, s[{sWS}:{sWS+3}], s{sXO} offen sc1")
    A(f"buffer_load_dwordx4 v[20:23], v{vXB}, s[{sWS}:{sWS+3}], s{sXO} offen sc1")
    A("s_waitcnt vmcnt(0)")
    tags_ab(g, [19], [23])
    retry_branch(g, "L_x1poll")
    tstamp(g, 2)
    if opt.get("YC", 0):
        A(f"s_lshr_b32 s{sT0}, s{sWAVE}, 2")
        A(f"s_lshl_b32 s{sT0}, s{sT0}, 10")
        A(f"s_add_u32 s{sT0}, s{sT0}, s{sRI}")
        A(f"buffer_store_dwordx4 v[64:67], v{vL16}, s[{sWS}:{sWS+3}], s{sT0} offen sc1")
    for i, r in enumerate((16, 17, 20, 21)):
        unpack(g, r, 24+2*i, 25+2*i)
    E = 44
    layernorm(g, 24, 32, E, 4, presel=[f"v_cndmask_b32 v{E+i}, v{24+i}, v{28+i}, s[{sR8}:{sR8+1}]" for i in range(4)])
    rnd2(g, E, E+1, vT); rnd2(g, E+2, E+3, vT)
    modulate_pack(g, E, OC, SH, E, vT, 4)
    A(f"s_mov_b64 exec, s[{sMH}:{sMH+1}]")
    A(f"ds_write2_b32 v{vHW}, v{E}, v{E+1} offset0:0 offset1:120")
    A("s_mov_b64 exec, -1")
    A("s_waitcnt lgkmcnt(0)")
    A("s_barrier")
    tstamp(g, 3)
    for ks in range(7):
        A(f"ds_read_b128 v[{64+4*ks}:{67+4*ks}], v{vAF} offset:{64*ks}")
    for ks in range(7):
        A(f"s_waitcnt lgkmcnt({6-ks})")
        A(f"v_smfmac_f32_16x16x64_bf16 v[{GD}:{GD+3}], v[{64+4*ks}:{67+4*ks}], v[{GUF+8*ks}:{GUF+7+8*ks}], v{vIX}")
    kk = -2.0 * math.sqrt(2.0/math.pi) * LOG2E
    A(f"v_mov_b32 v24, {f2u(kk*0.044715):#x}")
    A(f"v_mov_b32 v25, {f2u(kk):#x}")
    g.nop(6)
    A(f"v_add_f32 v20, v{GD}, v{GD+1}")
    rnd1(g, 20)
    A(f"v_mul_f32 v21, v20, v20")
    A(f"v_fma_f32 v21, v21, v24, v25")
    A(f"v_mul_f32 v21, v21, v20")
    A(f"v_exp_f32 v21, v21")
    A(f"v_mov_b32 v23, v20 row_ror:8 {DPP}")
    A(f"v_add_f32 v21, 1.0, v21")
    A(f"v_rcp_f32 v21, v21")
    A(f"s_mov_b32 exec_lo, 0x00ff00ff")
    A(f"s_mov_b32 exec_hi, 0x00ff00ff")
    A(f"v_mul_f32 v21, v21, v20")
    rnd1(g, 21)
    A(f"v_mul_f32 v21, v21, v23")
    A(f"v_cvt_pk_bf16_f32 v21, v21, v21")
    A(f"ds_write_b16 v{vGW}, v21")
    A("s_mov_b64 exec, -1")
    A("s_waitcnt lgkmcnt(0)")
    A("s_barrier")
    tstamp(g, 4)
    A(f"s_cmp_eq_u32 s{sWAVE}, 7")
    A(f"s_cbranch_scc1 {'L_fin' if RO else 'L_t4'}")
    proj(vGRD, 1, DNF, 8, 2048)
    stamp(g, 8)
    A(f"s_cmp_lt_u32 s{sWAVE}, 4")
    A(f"s_cbranch_scc{0 if RO else 1} L_fin")
    g.lbl("L_t4")
    srd(g, sA, P_OUT, 3584)
    reduce("L_zpoll", 1, GB, 7)
    A(f"v_cvt_pk_bf16_f32 v16, v{XV}, v{XV}")
    A("s_mov_b32 exec_lo, 0x000f000f"); A("s_mov_b32 exec_hi, 0x000f000f")
    A(f"buffer_store_short v16, v{vOUT}, s[{sA}:{sA+3}], s{sPX} offen{opt.get('polO', '')}")
    stamp(g, 9)
    A(f"s_cmp_eq_u32 s{sPX}, 0")
    A("s_cbranch_scc0 L_fin")
    A("s_mov_b64 exec, 1")
    A(f"v_mov_b32 v16, s{sTAG}")
    A(f"buffer_store_dword v16, v{vL16}, s[{sWS}:{sWS+3}], 0 offen sc1")
    if opt.get("WB", 0):
        A("s_branch L_fin")
        g.lbl("L_wb1")
        A("s_sleep 16")
        g.lbl("L_wb2")
        A(f"s_cmp_eq_u32 s{sWAVE}, 0")
        A("s_cbranch_scc0 L_fin")
        A(f"s_and_b32 s{sT0}, s{SID}, {opt.get('WBM', 3)}")
        A("s_cbranch_scc1 L_fin")
        A("s_waitcnt vmcnt(0)")
        A("buffer_wbl2 sc1")
        A("s_waitcnt vmcnt(0)")
    g.lbl("L_fin")
    flush_stamps(g, NSTAMP)
    g.lbl("L_end")
    A("s_endpgm")
    g.L += ['.section .rodata,"a"', ".p2align 6", f".amdhsa_kernel {NAME}_kernel",
            "  .amdhsa_next_free_vgpr 256", "  .amdhsa_next_free_sgpr 102", "  .amdhsa_accum_offset 256",
            "  .amdhsa_group_segment_fixed_size 0", "  .amdhsa_kernarg_size 112", "  .amdhsa_user_sgpr_count 2",
            "  .amdhsa_user_sgpr_kernarg_segment_ptr 1", "  .amdhsa_system_sgpr_workgroup_id_x 1", ".end_amdhsa_kernel"]
    return "\n".join(g.L) + "\n"

if __name__ == "__main__":
    out = sys.argv[1] if len(sys.argv) > 1 else f"cdna_kernels/{NAME}.s"
    opt = {}
    for a in sys.argv[2:]:
        k, val = a.split("=", 1)
        try: val = int(val)
        except ValueError: val = (" " + val.replace("+", " ")) if val else ""
        opt[k] = val
    open(out, "w").write(build(opt))
```

```python
import sys, math, struct

NAME = "adaLN_cond__gqa_block_cached__geglu_ffn__decode"

WS_E   = 0x0
WS_XC  = 0x1000
WS_CNT = 0x2000
WS_X1  = 0x4000
WS_M   = 0x6000
MB = 10752
WS_Q   = 0x20000
WS_O   = 0x30000
WS_RI  = 0x130000
WS_STAMP = 0x400000
WS_SIZE = 0x800000

L_OL = 57344
L_Q  = L_OL + 16384
L_P  = L_Q + 1024
SB0 = 0
SB1 = 57344 + 16
L_SC = SB1 + 57344 + 48
AS = 928
L_A  = L_SC + 4096
L_OB = L_A + 8*480
L_G  = L_OB + 8*160
L_RED = L_G + 8*96
L_END = L_RED + 256

LOG2E = 1.4426950408889634
def f2u(x): return struct.unpack("<I", struct.pack("<f", x))[0]


DOC = """
; ---------------------------------------------------------------------------------------------------
; ---------------------------------------------------------------------------------------------------
"""
NOTES = {
 "L_early": "mod-slice and service workgroups: small operand load + first weight image (LDS DMA, xor-swizzled rows)",
 "L_m1": "mod slice: image + silu(c) ready -> 14 MFMAs per wave, publish bf16",
 "L_main0": "attention main path",
 "L_peek": "unit counter {count, tag}: first visitor of this launch resets it",
 "L_qpoll": "wait for q, then scores / softmax / PV of the 32 fixed keys",
 "L_top": "dynamic unit loop: QK -> running max -> p (hi + lo bf16) -> next K -> PV -> next V",
 "L_last": "no unit left: publish (m, l) of this wave",
 "L_exit": "partial o of this wave -> LDS; waves 4..7 merge the 8 partials and publish {o, lse}",
 "L_svc": "service workgroup",
 "L_hpoll": "wait for shift / scale, h = LN(x) * (1 + ca) + sa",
 "L_s3": "q = h @ wq slice, then stage the remaining weights into registers",
 "L_mpoll": "tail parameters sb, cb, ga, gb",
 "L_xpoll": "placement check (also: every inbox has been cleared)",
 "L_opoll": "wait for the 7 partial results, combine, project with wo",
 "L_ypoll": "sum the 32 wo partials, x1 = x + ga * attn",
 "L_x1poll": "LayerNorm + modulate, gate / up, gelu, down partials",
 "L_zpoll": "sum the 28 down partials, out = x1 + gb * ffn",
}

class G:
    def __init__(self, opt):
        self.L = []; self.o = opt; self.lab = 0
    def A(self, s): self.L.append("    " + s)
    def lbl(self, s):
        if s in NOTES: self.L.append("; ---- " + NOTES[s])
        self.L.append(s + ":")
    def newlab(self, p="L"):
        self.lab += 1
        return f"{p}_{self.lab}"
    def nop(self, n):
        while n > 0:
            k = min(n, 16)
            self.A(f"s_nop {k-1}")
            n -= k

sWAVE = 3
sK, sV, sWS, sA, sB = 4, 8, 12, 16, 20
sS, sB_, sKVH, sN = 24, 25, 26, 27
sTAG, sRETRY = 28, 29
sKB, sFAST = 30, 31
sUB = 32
sT0, sT1, sT2, sT3 = 33, 34, 35, 36
sLN = 37
sM1, sM2, sM3 = 38, 40, 42
sM48 = 44
sQ1, sQ2, sQ3 = 46, 48, 50
sR8 = 52
sSTART, sSTEP, sLDS = 54, 55, 56
sTK, sLIM = 54, 55
sPLO, sPHI = 57, 58
sC = 59
sHI = 60
sXO, sPX = 61, 62
sGRP = 63
P_X, P_K, P_V, P_WQ, P_WO, P_BX, P_WG, P_WU, P_WD, P_C, P_WM, P_OUT, P_DBG, P_WS = [64 + 2*i for i in range(14)]
sCNT = 84
sCX = 68
sST = 88
sO_DST, sY_DST = 66, 67
sO_IN, sRI = 68, 69
sMH = 74

vTID, vL, vJ, vGR, vKO, vVO, vL16, vDM = 0, 1, 2, 3, 4, 5, 6, 7
vE = 8
vT = 9
vVE = 64
vK = 128
vVU = 0
vM, vLS = 14, 15
vKU, vVB = 192, 224
vOLW, vOLR, vRW, vRR = 78, 79, 80, 81

def srd(g, r, ptr, size):
    g.A(f"s_mov_b32 s{r}, s{ptr}")
    g.A(f"s_mov_b32 s{r+1}, s{ptr+1}")
    g.A(f"s_mov_b32 s{r+2}, {size}")
    g.A(f"s_mov_b32 s{r+3}, 0x20000")

DPP = "row_mask:0xf bank_mask:0xf"
def wave_reduce(g, op, regs, tmps, swaps=("v_permlane16_swap_b32", "v_permlane32_swap_b32")):
    n = len(regs)
    for pat in ("quad_perm:[1,0,3,2]", "quad_perm:[2,3,0,1]", "row_half_mirror", "row_mirror"):
        g.nop(max(0, 2 - (n - 1)))
        for r in regs:
            g.A(f"{op} v{r}, v{r}, v{r} {pat} {DPP}")
    for sw in swaps:
        for r, t in zip(regs, tmps):
            g.A(f"v_mov_b32 v{t}, v{r}")
        g.nop(2)
        for r, t in zip(regs, tmps):
            g.A(f"{sw} v{r}, v{t}")
        for r, t in zip(regs, tmps):
            g.A(f"{op} v{r}, v{r}, v{t}")

def rnd2(g, a, b, t):
    g.A(f"v_cvt_pk_bf16_f32 v{t}, v{a}, v{b}")
    g.A(f"v_lshlrev_b32 v{a}, 16, v{t}")
    g.A(f"v_and_b32 v{b}, s{sHI}, v{t}")
def rnd1(g, a):
    g.A(f"v_cvt_pk_bf16_f32 v{a}, v{a}, v{a}")
    g.A(f"v_lshlrev_b32 v{a}, 16, v{a}")
def unpack(g, src, lo, hi):
    g.A(f"v_lshlrev_b32 v{lo}, 16, v{src}")
    g.A(f"v_and_b32 v{hi}, s{sHI}, v{src}")

def red63(g, r, fill):
    fill = list(fill)
    def pad(n):
        for _ in range(n):
            if fill: g.A(fill.pop(0))
            else:
                g.nop(n - _); break
    for pat in ("quad_perm:[1,0,3,2] " + DPP, "quad_perm:[2,3,0,1] " + DPP, "row_half_mirror " + DPP, "row_mirror " + DPP,
                "row_bcast:15 row_mask:0xa bank_mask:0xf", "row_bcast:31 row_mask:0xc bank_mask:0xf"):
        pad(2)
        g.A(f"v_add_f32 v{r}, v{r}, v{r} {pat}")
    pad(1)
    g.A(f"v_readlane_b32 s{sLN}, v{r}, 63")
    pad(2)
    for f in fill: g.A(f)

def pk(op, d, a, b, bc=False, neg=False):
    m = ""
    if bc: m += " op_sel_hi:[1,0]"
    if neg: m += " neg_lo:[0,1] neg_hi:[0,1]"
    return f"v_pk_{op}_f32 v[{d}:{d+1}], v[{a}:{a+1}], v[{b}:{b+1}]{m}"

def rnd2s(a, b, t):
    return [f"v_cvt_pk_bf16_f32 v{t}, v{a}, v{b}", f"v_lshlrev_b32 v{a}, 16, v{t}", f"v_and_b32 v{b}, s{sHI}, v{t}"]

def layernorm(g, X, T, E, n, presel=()):
    A = g.A
    A(pk("add", T, X, X+2)); A(pk("add", T+2, X+4, X+6)); A(pk("add", T, T, T+2))
    A(f"v_add_f32 v{T}, v{T}, v{T+1}")
    red63(g, T, presel)
    A(f"v_mov_b32 v{T+8}, {f2u(1.0/448):#x}")
    A(f"v_mul_f32 v{T}, s{sLN}, v{T+8}")
    A(pk("add", T+2, X, T, True, True)); A(pk("add", T+4, X+2, T, True, True))
    A(f"v_pk_mul_f32 v[{T+6}:{T+7}], v[{T+2}:{T+3}], v[{T+2}:{T+3}]")
    A(pk("add", T+2, X+4, T, True, True))
    A(f"v_pk_fma_f32 v[{T+6}:{T+7}], v[{T+4}:{T+5}], v[{T+4}:{T+5}], v[{T+6}:{T+7}]")
    A(pk("add", T+4, X+6, T, True, True))
    A(f"s_mov_b64 exec, s[{sM48}:{sM48+1}]")
    A(f"v_pk_fma_f32 v[{T+6}:{T+7}], v[{T+2}:{T+3}], v[{T+2}:{T+3}], v[{T+6}:{T+7}]")
    A(f"v_pk_fma_f32 v[{T+6}:{T+7}], v[{T+4}:{T+5}], v[{T+4}:{T+5}], v[{T+6}:{T+7}]")
    A("s_mov_b64 exec, -1")
    A(f"v_add_f32 v{T+6}, v{T+6}, v{T+7}")
    fill = [f"v_cvt_pk_bf16_f32 v{T}, v{T}, v{T}", f"v_lshlrev_b32 v{T}, 16, v{T}"]
    fill += [pk("add", E+i, E+i, T, True, True) for i in range(0, n, 2)]
    for i in range(0, n, 2): fill += rnd2s(E+i, E+i+1, T+2)
    red63(g, T+6, fill)
    A(f"v_mul_f32 v{T+6}, s{sLN}, v{T+8}")
    rnd1(g, T+6)
    A(f"v_add_f32 v{T+6}, {f2u(1e-5):#x}, v{T+6}")
    rnd1(g, T+6)
    A(f"v_sqrt_f32 v{T+6}, v{T+6}")
    g.nop(1)
    rnd1(g, T+6)
    A(f"v_rcp_f32 v{T+6}, v{T+6}")
    g.nop(1)
    for i in range(0, n, 2): A(pk("mul", E+i, E+i, T+6, True))

def modulate_pack(g, X, OC, SH, D, t, n):
    for i in range(0, n, 2): g.A(pk("mul", X+i, X+i, OC+i))
    for i in range(0, n, 2): rnd2(g, X+i, X+i+1, t)
    for i in range(0, n, 2): g.A(pk("add", X+i, X+i, SH+i))
    for i in range(0, n, 2): g.A(f"v_cvt_pk_bf16_f32 v{D+i//2}, v{X+i}, v{X+i+1}")

def retry_branch(g, fail_label):
    ok = g.newlab("L_ok")
    g.A(f"s_cbranch_vccz {ok}")
    g.A(f"s_sub_u32 s{sRETRY}, s{sRETRY}, 1")
    g.A(f"s_cbranch_scc0 {fail_label}")
    g.A(f"s_mov_b32 s{sRETRY}, 0")
    g.lbl(ok)

def tags_ab(g, ra, rb):
    t = vT
    g.A(f"v_xor_b32 v{t}, s{sTAG}, v{rb[0]}")
    for r in rb[1:]: g.A(f"v_bitop3_b32 v{t}, v{t}, v{r}, s{sTAG} bitop3:0xf6")
    g.A(f"v_cndmask_b32 v{t}, 0, v{t}, s[{sM48}:{sM48+1}]")
    for r in ra: g.A(f"v_bitop3_b32 v{t}, v{t}, v{r}, s{sTAG} bitop3:0xf6")
    g.A(f"v_cmp_ne_u32 vcc, 0, v{t}")

class VM:
    def __init__(self, g, W, n0=0):
        self.g, self.W, self.n = g, W, n0
    def pre(self):
        if self.W and self.n >= self.W:
            self.g.A(f"s_waitcnt vmcnt({self.W-1})")
            self.n = self.W - 1
        self.n += 1

def dma7(g, pol, vm, srd_=None):
    srd_ = srd_ or sA
    for i in range(7):
        vm.pre()
        g.A(f"s_mov_b32 m0, s{sLDS}")
        g.A(f"s_add_u32 s{sLDS}, s{sLDS}, 1024")
        g.A(f"buffer_load_dwordx4 v{vDM}, s[{srd_}:{srd_+3}], s{sSTART} offen{pol} lds")
        g.A(f"s_add_u32 s{sSTART}, s{sSTART}, s{sSTEP}")

def k_tile(g, vm, pol, base, add, dst, lo=0, hi=8):
    so = base
    if g.o.get("KS", 0) and dst != vKU:
        for jj in range(lo, hi):
            vm.pre()
            r = dst + 4*jj
            g.A(f"buffer_load_dwordx4 v[{r}:{r+3}], v{vKO}, s[{sK}:{sK+3}], s{so} offen offset:{jj*256 + (2048 if add else 0)}{pol}")
        return
    if add:
        g.A(f"s_add_u32 s{sT0}, s{base}, {add}")
        so = sT0
    for jj in range(lo, hi):
        vm.pre()
        r = dst + 4*jj
        g.A(f"buffer_load_dwordx4 v[{r}:{r+3}], v{vVO if dst == vKU else vKO}, s[{sK}:{sK+3}], s{so} offen offset:{jj*256}{pol}")

def v_group(g, vm, pol, part):
    il = g.o.get("VIL", 1)
    for k in range(8):
        if il: r, eta = part*4 + (k >> 1), k & 1
        else: r, eta = k, part
        vm.pre()
        d = vVE + 32*eta + 4*r
        g.A(f"buffer_load_dwordx4 v[{d}:{d+3}], v13, s[{sV}:{sV+3}], s{sKB} offen offset:{512*r + 256*eta}{pol}")

def k_unit(g, vm, pol):
    RS = g.o.get("RS", 512)
    if RS == 512: return k_tile(g, vm, pol, sUB, 0, vKU)
    for jj in range(8):
        kq, blk = jj >> 1, jj & 1
        if blk == 0: g.A(f"s_add_u32 s{sT0}, s{sUB}, {kq*RS}")
        vm.pre()
        r = vKU + 4*jj
        g.A(f"buffer_load_dwordx4 v[{r}:{r+3}], v{vVO}, s[{sK}:{sK+3}], s{sT0} offen offset:{blk*256}{pol}")

def v_unit(g, vm, pol):
    RS = g.o.get("RS", 512)
    if RS != 512:
        for k in range(8):
            r, eta = k >> 1, k & 1
            if eta == 0: g.A(f"s_add_u32 s{sT0}, s{sUB}, {r*RS}")
            vm.pre()
            d = vVB + 16*eta + 4*r
            g.A(f"buffer_load_dwordx4 v[{d}:{d+3}], v{vVU}, s[{sV}:{sV+3}], s{sT0} offen offset:{256*eta}{pol}")
        return
    for k in range(8):
        if True:
            r, eta = ((k >> 1, k & 1) if g.o.get("VIL", 1) else (k & 3, k >> 2))
            vm.pre()
            d = vVB + 16*eta + 4*r
            g.A(f"buffer_load_dwordx4 v[{d}:{d+3}], v{vVU}, s[{sV}:{sV+3}], s{sUB} offen offset:{512*r + 256*eta}{pol}")

def get_tag(g):
    g.A(f"v_readfirstlane_b32 s{sTAG}, v{vE}")
    g.A(f"s_add_u32 s{sTAG}, s{sTAG}, 0x9e3779b9")

def check_tags(g, regs, fail_label, mask=None, t=vT):
    if len(regs) == 1:
        g.A(f"v_cmp_ne_u32 vcc, s{sTAG}, v{regs[0]}")
    else:
        g.A(f"v_xor_b32 v{t}, s{sTAG}, v{regs[0]}")
        for r in regs[1:]:
            g.A(f"v_bitop3_b32 v{t}, v{t}, v{r}, s{sTAG} bitop3:0xf6")
        g.A(f"v_cmp_ne_u32 vcc, 0, v{t}")
    if mask is not None:
        g.A(f"s_and_b64 vcc, vcc, s[{mask}:{mask+1}]")
    ok = g.newlab("L_ok")
    g.A(f"s_cbranch_vccz {ok}")
    g.A(f"s_sub_u32 s{sRETRY}, s{sRETRY}, 1")
    g.A(f"s_cbranch_scc0 {fail_label}")
    g.A(f"s_mov_b32 s{sRETRY}, 0")
    g.lbl(ok)

NSTAMP = 10
def tstamp(g, idx):
    if g.o.get("tst"): stamp(g, idx, True)
def stamp(g, idx, force=False):
    if not g.o.get("stamps") or g.o.get("trace"): return
    if (g.o.get("tst") or g.o.get("est")) and not force and idx in (1, 2, 3, 4): return
    g.A(f"s_memrealtime s[{sST}:{sST+1}]")
    g.A("s_waitcnt lgkmcnt(0)")
    g.A(f"s_mov_b32 s{92+idx}, s{sST}")
def flush_stamps(g, n):
    if not g.o.get("stamps"): return
    if g.o.get("dbg"):
        g.A("s_mov_b64 exec, 1")
        g.A("v_mov_b32 v15, 0")
        g.A(f"s_lshl_b32 s{sT3}, s2, 3")
        g.A(f"s_add_u32 s{sT3}, s{sT3}, s{sWAVE}")
        g.A(f"s_cmp_eq_u32 s{sT3}, 0")
        g.A("s_cbranch_scc1 L_dbg0")
        g.A(f"s_cmp_eq_u32 s{sT3}, {144*8+7}")
        g.A("s_cbranch_scc0 L_end")
        for k, i in enumerate((6, 1, 7, 2, 8, 9)):
            g.A(f"s_sub_u32 s{sT3}, s{92+i}, s92")
            g.A(f"v_mov_b32 v14, s{sT3}")
            g.A(f"global_store_dword v15, v14, s[82:83] offset:{4*k}")
            g.nop(1)
        g.A("s_branch L_end")
        g.lbl("L_dbg0")
        for k, i in enumerate((6, 7, 9, 2, 3, 4, 8)):
            g.A(f"s_sub_u32 s{sT3}, s{92+i}, s92")
            g.A(f"v_mov_b32 v14, s{sT3}")
            g.A(f"global_store_dword v15, v14, s[82:83] offset:{32+4*k}")
            g.nop(1)
        return
    g.A(f"s_lshl_b32 s{sT3}, s2, 3")
    g.A(f"s_add_u32 s{sT3}, s{sT3}, s{sWAVE}")
    g.A(f"s_lshl_b32 s{sT3}, s{sT3}, 6")
    g.A(f"s_add_u32 s{sT3}, s{sT3}, {WS_STAMP}")
    g.A("s_mov_b64 exec, 1")
    g.A("v_mov_b32 v15, 0")
    for i in range(n):
        g.A(f"v_mov_b32 v14, s{92+i}")
        g.A(f"buffer_store_dword v14, v15, s[{sWS}:{sWS+3}], s{sT3} offen offset:{4*i}")
        g.nop(1)

def sel4(g, dst, r0, r1, r2, r3, m1, m2, m3):
    g.A(f"v_cndmask_b32 v{dst}, v{r0}, v{r1}, s[{m1}:{m1+1}]")
    g.A(f"v_cndmask_b32 v{dst}, v{dst}, v{r2}, s[{m2}:{m2+1}]")
    g.A(f"v_cndmask_b32 v{dst}, v{dst}, v{r3}, s[{m3}:{m3+1}]")

def build(opt):
    g = G(opt)
    A = g.A
    polK = opt.get("polK", " nt"); polV = opt.get("polV", " nt"); polW = opt.get("polW", " nt")
    W = opt.get("W", 16)
    PRIO = opt.get("prio", 1)
    SX = opt.get("SX", 0)
    def prio(p):
        if PRIO: A(f"s_setprio {p}")
    hdr = open(f"cdna_kernels/{NAME}.s.ref").read().split("\n")
    for line in hdr:
        if line.startswith("; @launch"):
            g.L.append(f"; @launch grid=(256,1,1) block=(512,1,1) lds={L_END}")
            break
        g.L.append(line)
    g.L += ['.amdgcn_target "amdgcn-amd-amdhsa--gfx950"'] + DOC.strip().split("\n") + [".text", f".globl {NAME}_kernel", ".p2align 8",
            f".type {NAME}_kernel,@function"]
    g.lbl(f"{NAME}_kernel")
    if opt.get("stamps"): A("s_memrealtime s[92:93]")
    A("s_cmp_ge_u32 s2, 256")
    A("s_cbranch_scc1 L_end")
    A("s_load_dwordx16 s[64:79], s[0:1], 0")
    A("s_load_dwordx8 s[80:87], s[0:1], 64")
    A("s_load_dwordx2 s[90:91], s[0:1], 104")
    A(f"s_getpc_b64 s[{sST}:{sST+1}]")
    g.lbl("L_pc")
    A(f"v_lshlrev_b32 v{vT}, 6, v0")
    A(f"v_min_u32 v{vT}, L_end - L_pc - 4, v{vT}")
    A(f"global_load_dword v15, v{vT}, s[{sST}:{sST+1}]")
    prio(3)
    A(f"v_lshrrev_b32 v{vL}, 6, v0")
    A(f"s_sub_u32 s{sS}, s2, {SX+1}")
    A(f"v_readfirstlane_b32 s{sWAVE}, v{vL}")
    A(f"v_and_b32 v{vL}, 63, v0")
    A(f"v_and_b32 v{vJ}, 15, v0")
    A(f"v_lshrrev_b32 v{vGR}, 4, v{vL}")
    A(f"v_lshrrev_b32 v{vKO}, 2, v{vJ}")
    A(f"v_lshlrev_b32 v{vKO}, {12 if opt.get('KS', 0) else 11}, v{vKO}")
    A(f"v_lshl_add_u32 v{vKO}, v{vGR}, 6, v{vKO}")
    A(f"v_and_b32 v12, 3, v0")
    A(f"v_lshl_add_u32 v{vKO}, v12, 4, v{vKO}")
    A(f"v_lshlrev_b32 v{vL16}, 4, v{vL}")
    A(f"v_mov_b32 v{vE}, 0")
    A(f"v_lshlrev_b32 v{vT}, 2, v{vL}")
    A(f"v_add_u32 v{vT}, {L_RED}, v{vT}")
    A(f"ds_write_b32 v{vT}, v{vE}")
    A(f"s_and_b32 s{sS}, s{sS}, 7")
    A(f"s_lshr_b32 s{sN}, s2, 3")
    A(f"s_and_b32 s{sB_}, s{sN}, 3")
    A(f"s_lshr_b32 s{sKVH}, s{sN}, 2")
    A(f"s_lshl_b32 s{sGRP}, s{sB_}, 3")
    A(f"s_add_u32 s{sGRP}, s{sGRP}, s{sKVH}")
    A(f"s_lshl_b32 s{sT0}, s{sGRP}, 21")
    A(f"s_and_b32 s{sT1}, s{sWAVE}, 3")
    A(f"s_lshl_b32 s{sT2}, s{sS}, 2")
    A(f"s_add_u32 s{sT1}, s{sT1}, s{sT2}")
    A(f"s_lshr_b32 s{sT2}, s{sWAVE}, 2")
    A(f"s_mul_i32 s{sT2}, s{sT2}, 28")
    A(f"s_add_u32 s{sT1}, s{sT1}, s{sT2}")
    GR = opt.get("GR", 0)
    if GR:
        A(f"s_mul_i32 s{sT2}, s{sGRP}, {GR}")
        A(f"s_add_u32 s{sT1}, s{sT1}, s{sT2}")
        A(f"s_and_b32 s{sT1}, s{sT1}, 127")
    A(f"s_lshl_b32 s{sT1}, s{sT1}, 14")
    A(f"s_add_u32 s{sKB}, s{sT0}, s{sT1}")
    A(f"s_mul_i32 s{sT1}, s{sS}, 5")
    A(f"s_add_u32 s{sT1}, s{sT1}, s{sN}")
    A(f"s_and_b32 s{sT1}, s{sT1}, 31")
    A(f"s_mul_i32 s{sT1}, s{sT1}, 7")
    A(f"s_add_u32 s{sT1}, s{sT1}, s{sS}")
    A(f"s_cmp_eq_u32 s{sS}, 7")
    A(f"s_cselect_b32 s{sN}, s{sN}, s{sT1}")
    A(f"s_mov_b32 s{sK+2}, {64<<20}")
    A(f"s_mov_b32 s{sK+3}, 0x20000")
    A(f"s_cmp_lt_u32 s{sN}, 42")
    A("s_waitcnt lgkmcnt(0)")
    LB = opt.get("LB", 0)
    if not LB: A("s_barrier")
    A(f"global_load_dword v{vE}, v{vE}, s[{P_WS}:{P_WS+1}] sc1")
    A(f"s_mov_b32 s{sK}, s{P_K}")
    A(f"s_mov_b32 s{sK+1}, s{P_K+1}")
    A("s_cbranch_scc1 L_early")
    VF = opt.get("VF", 0)
    vm = VM(g, W, 2)
    if VF:
        A(f"s_and_b32 s{sXO}, s{sGRP if VF == 1 else (sS if VF == 2 else sWAVE)}, {opt.get('VFM', 1)}")
        A("s_cbranch_scc1 L_main0")
    if LB:
        A(f"s_cmp_lt_u32 s{sWAVE}, 4")
        A("s_cbranch_scc1 L_e1")
        A("s_barrier")
        g.lbl("L_e1")
    k_tile(g, vm, polK, sKB, 0, vK)
    if LB:
        A("s_cbranch_scc0 L_main0")
        A("s_barrier")
    A("s_branch L_main0")
    SID = sN
    c4 = 12
    vRO, vSW = 10, 11
    def dma(n, swz):
        for i in range(n):
            A(f"s_mov_b32 m0, s{sLDS}")
            A(f"s_add_u32 s{sLDS}, s{sLDS}, 1024")
            A(f"buffer_load_dwordx4 v{vDM}, s[{sA}:{sA+3}], s{sSTART} offen{polW} lds")
            A(f"s_add_u32 s{sSTART}, s{sSTART}, s{sSTEP}")
            if swz: A(f"v_xor_b32 v{vDM}, 64, v{vDM}")
    g.lbl("L_early")
    A(f"s_cmp_eq_u32 s{sS}, 7")
    A(f"s_cselect_b32 s{sB}, s{P_X}, s{P_C}")
    A(f"s_cselect_b32 s{sB+1}, s{P_X+1}, s{P_C+1}")
    A(f"s_mov_b32 s{sB+2}, 3584")
    A(f"s_mov_b32 s{sB+3}, 0x20000")
    A(f"s_cselect_b32 s{sA}, s{P_WQ}, s{P_WM}")
    A(f"s_cselect_b32 s{sA+1}, s{P_WQ+1}, s{P_WM+1}")
    A(f"s_mov_b32 s{sSTEP}, 5376")
    A(f"s_cselect_b32 s{sSTEP}, 8192, s{sSTEP}")
    A(f"s_mov_b32 s{sT0}, 1024")
    A(f"s_cselect_b32 s{sT0}, 896, s{sT0}")
    A(f"s_cselect_b32 s{sT1}, 3, 4")
    A(f"s_cselect_b32 s{sT2}, 6, 0")
    A(f"s_cselect_b32 s{sT3}, 48, 64")
    A(f"s_cselect_b32 s{sLDS}, 8, 7")
    A(f"s_mul_i32 s{sT0}, s{sT0}, s{sWAVE}")
    A(f"s_lshl_b32 s{sT2}, 8, s{sT2}")
    A(f"v_lshlrev_b32 v13, s{sT1}, v{vL}")
    A(f"v_cmp_gt_u32 vcc, s{sT3}, v{vL}")
    A(f"buffer_load_dwordx2 v[16:17], v13, s[{sB}:{sB+3}], s{sT0} offen")
    A(f"v_add_u32 v13, s{sT2}, v13")
    A(f"v_mov_b32 v{vT}, 0x100000")
    A(f"v_cndmask_b32 v13, v{vT}, v13, vcc")
    A(f"buffer_load_dwordx2 v[18:19], v13, s[{sB}:{sB+3}], s{sT0} offen")
    A(f"s_mul_i32 s{sA+2}, s{sSTEP}, {0 if opt.get('skip', 0) & 1 else 448}")
    A(f"s_mov_b32 s{sA+3}, 0x20000")
    A(f"v_lshrrev_b32 v{vRO}, 3, v{vL}")
    A(f"v_and_b32 v{vSW}, 7, v{vL}")
    A(f"v_and_b32 v{vT}, 2, v{vRO}")
    A(f"v_xor_b32 v{vSW}, v{vSW}, v{vT}")
    A(f"v_lshlrev_b32 v{vSW}, 4, v{vSW}")
    A(f"s_and_b32 s{sT1}, s{sWAVE}, 1")
    A(f"s_lshl_b32 s{sT1}, s{sT1}, 6")
    A(f"v_xor_b32 v{vSW}, s{sT1}, v{vSW}")
    A(f"v_mad_u32_u24 v{vDM}, v{vRO}, s{sSTEP}, v{vSW}")
    A(f"s_lshl_b32 s{sSTART}, s{SID}, s{sLDS}")
    JS = opt.get("JS", 0)
    if JS:
        A(f"s_lshr_b32 s{sT0}, s{sLDS}, 3")
        A(f"s_and_b32 s{sT0}, s{sT0}, s{SID}")
        A(f"s_lshl_b32 s{sXO}, s{sT0}, 7")
        A(f"s_add_u32 s{sSTART}, s{sSTART}, s{sXO}")
    A(f"s_lshl_b32 s{sSTEP}, s{sSTEP}, 3")
    A(f"s_mul_i32 s{sT0}, s{sWAVE}, 7")
    A(f"s_mul_i32 s{sT1}, s{sT0}, s{sSTEP}")
    A(f"s_add_u32 s{sSTART}, s{sSTART}, s{sT1}")
    A(f"s_lshl_b32 s{sLDS}, s{sT0}, 10")
    dma(7, True)
    def consts():
        srd(g, sWS, P_WS, WS_SIZE)
        A(f"s_mov_b32 s{sM48}, -1"); A(f"s_mov_b32 s{sM48+1}, 0x0000ffff")
        A(f"s_mov_b32 s{sHI}, 0xffff0000")
        A(f"s_mov_b32 s{sRETRY}, 0x80000")
        A(f"s_mov_b32 s{sM1}, 0xffff0000"); A(f"s_mov_b32 s{sM1+1}, 0")
        A(f"s_mov_b32 s{sM2}, 0"); A(f"s_mov_b32 s{sM2+1}, 0xffff")
        A(f"s_mov_b32 s{sM3}, 0"); A(f"s_mov_b32 s{sM3+1}, 0xffff0000")
        A(f"s_mov_b32 s{sQ1}, 0x22222222"); A(f"s_mov_b32 s{sQ1+1}, 0x22222222")
        A(f"s_mov_b32 s{sQ2}, 0x44444444"); A(f"s_mov_b32 s{sQ2+1}, 0x44444444")
        A(f"s_mov_b32 s{sQ3}, 0x88888888"); A(f"s_mov_b32 s{sQ3+1}, 0x88888888")
        if opt.get("stamps"):
            for i in range(1, NSTAMP): A(f"s_mov_b32 s{92+i}, 0")
    def wfrags(addr, rowbytes, dst=64):
        for ks in range(14):
            r = dst + 4*ks
            A(f"ds_read_b64_tr_b16 v[{r}:{r+1}], v{addr} offset:{ks*32*rowbytes}")
            A(f"ds_read_b64_tr_b16 v[{r+2}:{r+3}], v{addr} offset:{ks*32*rowbytes + 4*rowbytes}")
            if ks % 4 == 3: A("s_waitcnt lgkmcnt(6)")
    def gemv_pub(abase, astride, bstride):
        A(f"v_mul_u32_u24 v{vT}, {astride}, v{c4}")
        A(f"v_lshl_add_u32 v{vT}, v{vGR}, 4, v{vT}")
        A(f"v_add_u32 v{vT}, {abase}, v{vT}")
        A("s_waitcnt lgkmcnt(0)")
        for ks in range(14):
            A(f"ds_read_b128 v[{128+4*ks}:{131+4*ks}], v{vT} offset:{64*ks}")
        for ks in range(14):
            A(f"s_waitcnt lgkmcnt({13-ks})")
            c = "0" if ks == 0 else "v[16:19]"
            A(f"v_mfma_f32_16x16x32_bf16 v[16:19], v[{64+4*ks}:{67+4*ks}], v[{128+4*ks}:{131+4*ks}], {c}")
        A(f"v_mul_u32_u24 v{vT}, {bstride}, v{c4}")
        A(f"v_lshl_add_u32 v{vT}, v{vGR}, 4, v{vT}")
        A(f"v_mov_b32 v22, 0")
        A(f"v_mov_b32 v23, s{sTAG}")
        A(f"s_mov_b32 exec_lo, 0x000f000f")
        A(f"s_mov_b32 exec_hi, 0x000f000f")
        g.nop(2)
        A(f"v_cvt_pk_bf16_f32 v20, v16, v17")
        A(f"v_cvt_pk_bf16_f32 v21, v18, v19")
        A(f"buffer_store_dwordx4 v[20:23], v{vT}, s[{sWS}:{sWS+3}], s{sT3} offen sc1")
        A("s_mov_b64 exec, -1")
    A(f"s_cmp_eq_u32 s{sS}, 7")
    A("s_cbranch_scc1 L_svc")
    consts()
    MK_ = opt.get("MK", 1)
    A(f"s_cmp_lt_u32 s{sWAVE}, 4")
    if MK_:
        A("s_cbranch_scc1 L_m0")
        k_tile(g, VM(g, 0), polK, sKB, 0, vK)
        A("s_waitcnt vmcnt(8)")
        A("s_barrier")
        A("s_branch L_main1")
        g.lbl("L_m0")
    else:
        A("s_cbranch_scc0 L_m1")
    A("s_waitcnt vmcnt(7)")
    get_tag(g)
    for i in range(4): unpack(g, 16+i, 24+2*i, 25+2*i)
    A(f"s_lshl_b32 s{sT2}, s{sWAVE}, 10")
    A(f"s_add_u32 s{sT2}, s{sT2}, {L_SC}")
    A(f"v_add_u32 v{vT}, s{sT2}, v{vL16}")
    for i in range(8): A(f"v_mul_f32 v{32+i}, {f2u(-LOG2E):#x}, v{24+i}")
    for i in range(8): A(f"v_exp_f32 v{32+i}, v{32+i}")
    for i in range(8): A(f"v_add_f32 v{32+i}, 1.0, v{32+i}")
    for i in range(8): A(f"v_rcp_f32 v{32+i}, v{32+i}")
    for i in range(8): A(f"v_mul_f32 v{24+i}, v{24+i}, v{32+i}")
    for i in range(4): A(f"v_cvt_pk_bf16_f32 v{24+i}, v{24+2*i}, v{25+2*i}")
    A(f"ds_write_b128 v{vT}, v[24:27]")
    A(f"v_lshrrev_b32 v13, 2, v{vJ}")
    A(f"v_lshl_add_u32 v13, v{vGR}, 3, v13")
    A(f"v_lshlrev_b32 v13, 7, v13")
    A(f"v_lshl_add_u32 v13, v{c4}, 3, v13")
    A(f"v_bfe_u32 v{vT}, v{vL}, 3, 2")
    A(f"v_xor_b32 v{vT}, s{sWAVE}, v{vT}")
    A(f"v_lshl_add_u32 v13, v{vT}, 5, v13")
    A(f"s_lshl_b32 s{sT3}, s{SID}, 8")
    A(f"s_lshl_b32 s{sT0}, s{sWAVE}, 6")
    A(f"s_add_u32 s{sT3}, s{sT3}, s{sT0}")
    A(f"s_add_u32 s{sT3}, s{sT3}, {WS_M}")
    g.lbl("L_m1")
    A("s_waitcnt vmcnt(0) lgkmcnt(0)")
    A("s_barrier")
    A(f"s_cmp_lt_u32 s{sWAVE}, 4")
    A("s_cbranch_scc0 L_m2")
    wfrags(13, 128)
    gemv_pub(L_SC, 896, MB)
    stamp(g, 1)
    g.lbl("L_m2")
    if VF: A(f"s_mov_b32 s{sXO}, 0")
    k_tile(g, VM(g, 0), polK, sKB, 0, vK)
    A("s_branch L_main1")
    g.lbl("L_main0")
    consts()
    g.lbl("L_main1")
    srd(g, sV, P_V, 64 << 20)
    A(f"v_lshlrev_b32 v13, 12, v{vGR}")
    A(f"v_lshl_add_u32 v13, v{vJ}, 4, v13")
    RS = opt.get("RS", 512)
    A(f"v_lshrrev_b32 v{vVO}, 2, v{vJ}")
    A(f"v_mul_u32_u24 v{vVO}, {4*RS}, v{vVO}")
    A(f"v_and_b32 v{vT}, 255, v{vKO}")
    A(f"v_add_u32 v{vVO}, v{vVO}, v{vT}")
    A(f"v_mul_u32_u24 v{vVU}, {4*RS}, v{vGR}")
    A(f"v_lshl_add_u32 v{vVU}, v{vJ}, 4, v{vVU}")
    A(f"s_mov_b32 s{sR8}, 0xff00ff00"); A(f"s_mov_b32 s{sR8+1}, 0xff00ff00")
    A(f"s_mov_b32 s{sPLO}, 0x05040100"); A(f"s_mov_b32 s{sPHI}, 0x07060302")
    A(f"s_mov_b32 s{sC}, {f2u(0.0625*LOG2E):#x}")
    if VF:
        A(f"s_cmp_eq_u32 s{sXO}, 0")
        A("s_cbranch_scc1 L_kfirst")
        vm2 = VM(g, W, 2)
        v_group(g, vm2, polV, 0)
        v_group(g, vm2, polV, 1)
        prio(2)
        k_tile(g, VM(g, W, W), polK, sKB, 0, vK)
        k_tile(g, VM(g, W, W), polK, sKB, 8192, vK+32)
        A("s_branch L_sdone")
        g.lbl("L_kfirst")
    k_tile(g, vm, polK, sKB, 8192, vK+32)
    prio(2)
    v_group(g, VM(g, W, W), polV, 0)
    v_group(g, VM(g, W, W), polV, 1)
    g.lbl("L_sdone")
    get_tag(g)
    NU = 144
    TY = opt.get("TY", 32)
    A(f"s_lshl_b32 s{sT0}, s{sGRP}, 8")
    A(f"s_add_u32 s{sT0}, s{sT0}, {WS_CNT}")
    A(f"s_add_u32 s{sCNT}, s{P_WS}, s{sT0}")
    A(f"s_addc_u32 s{sCNT+1}, s{P_WS+1}, 0")
    A(f"s_lshl_b32 s{sKB}, s{sGRP}, 21")
    if GR:
        A(f"s_mul_i32 s{sXO}, s{sGRP}, {2*GR}")
        A(f"s_add_u32 s{sXO}, s{sXO}, 112")
    else:
        A(f"s_add_u32 s{sKB}, s{sKB}, {1792*512}")
    A(f"s_cmp_lt_u32 s{sWAVE}, 4")
    A(f"s_mov_b32 s{sLIM}, {TY}")
    A(f"s_cselect_b32 s{sLIM}, {NU}, s{sLIM}")
    TB = opt.get("TB", 0)
    sBU = sFAST
    if TB:
        A(f"s_cmp_ge_u32 s{sWAVE}, {8 - opt.get('NB', 4)}")
        A(f"s_cselect_b32 s{sBU}, 1, 0")
    g.lbl("L_peek")
    A(f"s_mov_b64 s[{sCX+2}:{sCX+3}], 0")
    A(f"s_atomic_add_x2 s[{sCX+2}:{sCX+3}], s[{sCNT}:{sCNT+1}], 0 glc")
    A("s_waitcnt lgkmcnt(0)")
    A(f"s_cmp_eq_u32 s{sCX+3}, s{sTAG}")
    A("s_cbranch_scc1 L_peek_ok")
    A(f"s_mov_b32 s{sCX}, 0")
    A(f"s_mov_b32 s{sCX+1}, s{sTAG}")
    A(f"s_atomic_cmpswap_x2 s[{sCX}:{sCX+3}], s[{sCNT}:{sCNT+1}], 0 glc")
    A("s_waitcnt lgkmcnt(0)")
    A(f"s_sub_u32 s{sRETRY}, s{sRETRY}, 1")
    A("s_cbranch_scc0 L_peek")
    A(f"s_mov_b32 s{sRETRY}, 0")
    g.lbl("L_peek_ok")
    A(f"s_mov_b32 s{sTK}, s{sCX+2}")
    ncl = [0]
    def claim():
        ncl[0] += 1
        A(f"s_cmp_lt_u32 s{sTK}, s{sLIM}")
        A(f"s_mov_b32 s{sTK}, 0xffff")
        A(f"s_cbranch_scc0 L_nc{ncl[0]}")
        A(f"s_mov_b32 s{sTK}, 1")
        A(f"s_atomic_add s{sTK}, s[{sCNT}:{sCNT+1}], 0 glc")
        g.lbl(f"L_nc{ncl[0]}")
    def unit_base():
        if GR:
            A(f"s_add_u32 s{sUB}, s{sTK}, s{sXO}")
            A(f"s_and_b32 s{sUB}, s{sUB}, 255")
            A(f"s_lshl_b32 s{sUB}, s{sUB}, 13")
        elif RS != 512:
            n = RS // 512
            A(f"s_and_b32 s{sT0}, s{sTK}, {n-1}")
            A(f"s_lshl_b32 s{sT0}, s{sT0}, 9")
            A(f"s_andn2_b32 s{sUB}, s{sTK}, {n-1}")
            A(f"s_lshl_b32 s{sUB}, s{sUB}, 13")
            A(f"s_add_u32 s{sUB}, s{sUB}, s{sT0}")
        else:
            A(f"s_lshl_b32 s{sUB}, s{sTK}, 13")
        A(f"s_add_u32 s{sUB}, s{sUB}, s{sKB}")
    OS = opt.get("OS", 0)
    if OS:
        A(f"s_cmp_lt_u32 s{sWAVE}, 4")
        A(f"s_cselect_b32 s{sTK}, 0x7fff, s{sTK}")
    claim()
    def qloads():
        for i in range(2):
            A(f"buffer_load_dwordx4 v[{16+4*i}:{19+4*i}], v{vL16}, s[{sWS}:{sWS+3}], s{sPX} offen offset:{1024*i} sc1")
    A(f"s_lshl_b32 s{sT1}, s{sB_}, 14")
    A(f"s_lshl_b32 s{sT2}, s{sKVH}, 11")
    A(f"s_add_u32 s{sT1}, s{sT1}, s{sT2}")
    A(f"s_add_u32 s{sPX}, s{sT1}, {WS_Q}")
    QLATE = opt.get("QLATE", 1)
    if not QLATE: qloads()
    if OS:
        A(f"s_cmp_lt_u32 s{sWAVE}, 4")
        A("s_cbranch_scc1 L_yp")
        prio(1)
    else:
        prio(1)
        A(f"s_cmp_lt_u32 s{sWAVE}, 4")
        A("s_cbranch_scc0 L_yp")
        prio(0)
    g.lbl("L_yp")
    A("s_waitcnt lgkmcnt(0)")
    A(f"s_cmp_lt_u32 s{sTK}, {NU}")
    A(f"s_cbranch_scc0 {'L_qpoll' if QLATE else 'L_qwait'}")
    unit_base()
    k_unit(g, VM(g, W, W), polK)
    if QLATE: qloads()
    v_unit(g, VM(g, W, W), polV)
    A(f"s_waitcnt vmcnt({8 if QLATE else 16})")
    A("s_branch L_qchk")
    g.lbl("L_qpoll")
    qloads()
    g.lbl("L_qwait")
    A("s_waitcnt vmcnt(0)")
    g.lbl("L_qchk")
    if not opt.get("noq"): check_tags(g, [19, 23], "L_qpoll")
    stamp(g, 3)
    A(f"v_lshlrev_b32 v{vT+2}, 3, v{vL}")
    A(f"v_add_u32 v{vT+2}, {L_Q}, v{vT+2}")
    A(f"ds_write_b64 v{vT+2}, v[16:17]")
    A(f"ds_write_b64 v{vT+2}, v[20:21] offset:512")
    A(f"v_bfe_u32 v{vT}, v{vJ}, 2, 1")
    A(f"v_lshlrev_b32 v{vT}, 9, v{vT}")
    A(f"v_lshl_add_u32 v{vT}, v{vGR}, 6, v{vT}")
    A(f"v_and_b32 v{vT+1}, 3, v{vL}")
    A(f"v_lshl_add_u32 v{vT}, v{vT+1}, 4, v{vT}")
    A(f"v_add_u32 v{vT}, {L_Q}, v{vT}")
    QL, QH = 48, 56
    A(f"ds_read_b128 v[{QL}:{QL+3}], v{vT}")
    A(f"ds_read_b128 v[{QL+4}:{QL+7}], v{vT} offset:256")
    A(f"s_waitcnt lgkmcnt(0)")
    for i in range(8):
        A(f"v_cndmask_b32 v{QH+i}, 0, v{QL+i}, s[{sR8}:{sR8+1}]")
    for i in range(8):
        A(f"v_cndmask_b32 v{QL+i}, v{QL+i}, 0, s[{sR8}:{sR8+1}]")
    g.nop(2)
    def qk_tile(src, D0):
        for jj in range(8):
            kq, blk = jj >> 1, jj & 1
            d = D0 + 4*(kq >> 1)
            q = (QH if (kq & 1) else QL) + 4*blk
            r = src + 4*jj
            c = "0" if (jj & 3) == 0 else f"v[{d}:{d+3}]"
            A(f"v_mfma_f32_16x16x32_bf16 v[{d}:{d+3}], v[{q}:{q+3}], v[{r}:{r+3}], {c}")
    SD = 16
    for t in range(2): qk_tile(vK + 32*t, SD + 8*t)
    PFA, PFU, vPW, vPR, UD = 176, 180, 182, 183, 184
    A(f"v_and_b32 v12, 1, v{vGR}")
    A(f"v_and_b32 v{vT}, 1, v{vL}")
    A(f"v_lshrrev_b32 v13, 1, v{vGR}")
    A(f"v_lshl_add_u32 v{vPW}, v{vT}, 1, v13")
    A(f"v_lshrrev_b32 v13, 2, v{vJ}")
    A(f"v_lshl_add_u32 v{vPW}, v13, 2, v{vPW}")
    A(f"v_lshlrev_b32 v{vPW}, 1, v{vPW}")
    A(f"v_lshl_add_u32 v{vPW}, v12, 7, v{vPW}")
    A(f"s_lshl_b32 s{sT1}, s{sWAVE}, 9")
    A(f"s_add_u32 s{sT1}, s{sT1}, {L_P}")
    A(f"v_lshlrev_b32 v{vPR}, 7, v13")
    A(f"v_add_u32 v{vPW}, s{sT1}, v{vPW}")
    if opt.get("KS", 0):
        A(f"v_lshl_add_u32 v{vT}, v13, 3, v{vPW}")
        A(f"v_bfe_u32 v13, v{vL}, 1, 1")
        A(f"v_lshl_add_u32 v13, v13, 3, v{vT}")
    else:
        A(f"v_bfe_u32 v13, v{vL}, 1, 1")
        A(f"v_lshl_add_u32 v13, v13, 5, v{vPW}")
    A(f"v_add_u32 v{vPR}, s{sT1}, v{vPR}")
    A(f"v_lshl_add_u32 v12, v{vGR}, 4, v{vPR}")
    A(f"v_lshl_add_u32 v{vPR}, v{vGR}, 3, v{vPR}")
    A(f"s_mov_b32 s{sR8}, 0xaaaaaaaa"); A(f"s_mov_b32 s{sR8+1}, 0xaaaaaaaa")
    for d in range(4):
        D = SD + 4*d
        sel4(g, D, D, D+1, D+2, D+3, sQ1, sQ2, sQ3)
    for pat in ("quad_perm:[1,0,3,2]", "quad_perm:[2,3,0,1]"):
        for d in range(4):
            D = SD + 4*d
            A(f"v_add_f32 v{D}, v{D}, v{D} {pat} {DPP}")
    S0, S1 = 10, 11
    sel4(g, S0, SD, SD+4, SD+8, SD+12, sQ1, sQ2, sQ3)
    rnd1(g, S0)
    A(f"v_mov_b32 v{vM}, v{S0}")
    wave_reduce(g, "v_max_f32", [vM], [17], swaps=("v_permlane32_swap_b32",))
    A(f"v_sub_f32 v{S0}, v{S0}, v{vM}")
    A(f"v_mul_f32 v{S0}, s{sC}, v{S0}")
    A(f"v_exp_f32 v{vLS}, v{S0}")
    g.nop(1)
    A(f"v_cvt_pk_bf16_f32 v20, v{vLS}, v{vLS}")
    A(f"v_lshlrev_b32 v20, 16, v20")
    A(f"v_sub_f32 v20, v{vLS}, v20")
    A(f"v_cvt_pk_bf16_f32 v20, v{vLS}, v20")
    A(f"ds_write_b16 v13, v20")
    A(f"ds_write_b16_d16_hi v13, v20 offset:256")
    A(f"ds_read_b128 v[{PFA}:{PFA+3}], v12")
    A("s_waitcnt lgkmcnt(0)")
    ACCB = (16, 128)
    PT = 160
    for eta in range(2):
        R = vVE + 32*eta
        for c in range(4):
            T = PT + 8*(c & 1)
            for m in range(4):
                A(f"v_perm_b32 v{T+m}, v{R+4*(2*m+1)+c}, v{R+4*(2*m)+c}, s{sPLO}")
            for m in range(4):
                A(f"v_perm_b32 v{T+4+m}, v{R+4*(2*m+1)+c}, v{R+4*(2*m)+c}, s{sPHI}")
            g.nop(1)
            for hh in range(2):
                acc = ACCB[eta] + 4*(2*c + hh)
                A(f"v_mfma_f32_16x16x32_bf16 v[{acc}:{acc+3}], v[{PFA}:{PFA+3}], v[{T+4*hh}:{T+4*hh+3}], 0")
    A(f"v_and_b32 v12, 1, v{vGR}")
    A(f"v_lshlrev_b32 v{vRW}, 6, v12")
    A(f"s_lshl_b32 s{sT0}, s{sWAVE}, 3")
    A(f"s_add_u32 s{sT0}, s{sT0}, {L_RED}")
    A(f"v_add_u32 v{vRW}, s{sT0}, v{vRW}")
    A(f"s_bfe_u32 s{sT0}, s{sWAVE}, 0x10001")
    A(f"s_lshl_b32 s{sT0}, s{sT0}, 6")
    A(f"s_add_u32 s{sT0}, s{sT0}, {L_RED}")
    A(f"v_and_b32 v{vRR}, 7, v{vL}")
    A(f"v_lshl_add_u32 v{vRR}, v{vRR}, 3, s{sT0}")
    A(f"v_lshlrev_b32 v{vOLW}, 10, v12")
    A(f"v_lshl_add_u32 v{vOLW}, v{vJ}, 5, v{vOLW}")
    A(f"v_lshrrev_b32 v12, 1, v{vGR}")
    A(f"v_lshl_add_u32 v{vOLW}, v12, 4, v{vOLW}")
    A(f"s_lshl_b32 s{sT1}, s{sWAVE}, 11")
    A(f"s_add_u32 s{sT1}, s{sT1}, {L_OL}")
    A(f"v_add_u32 v{vOLW}, s{sT1}, v{vOLW}")
    A(f"s_and_b32 s{sT2}, s{sWAVE}, 3")
    A(f"s_lshl_b32 s{sT0}, s{sT2}, 9")
    A(f"s_add_u32 s{sT0}, s{sT0}, {L_OL}")
    A(f"v_lshl_add_u32 v{vOLR}, v{vL}, 3, s{sT0}")
    A(f"v_lshrrev_b32 v82, 5, v{vL}")
    A(f"v_mul_u32_u24 v82, {4096-512}, v82")
    A(f"v_add_u32 v82, v82, v{vL16}")
    A(f"s_lshl_b32 s{sO_DST}, s{sGRP}, 15")
    A(f"s_lshl_b32 s{sT1}, s{sT2}, 13")
    A(f"s_add_u32 s{sO_DST}, s{sO_DST}, s{sT1}")
    A(f"s_lshl_b32 s{sT1}, s{sS}, 9")
    A(f"s_add_u32 s{sO_DST}, s{sO_DST}, s{sT1}")
    A(f"s_add_u32 s{sO_DST}, s{sO_DST}, {WS_O}")
    PUB = 84
    A(f"v_mov_b32 v{PUB+3}, s{sTAG}")
    A(f"s_cmp_lt_u32 s{sTK}, {NU}")
    A("s_cbranch_scc1 L_top")
    if OS:
        A(f"s_cmp_lt_u32 s{sWAVE}, 4")
        A("s_cbranch_scc0 L_nounit")
        prio(0)
        A(f"s_mov_b32 s{sTK}, 0")
        claim()
        A("s_waitcnt lgkmcnt(0)")
        A(f"s_cmp_lt_u32 s{sTK}, {NU}")
        A("s_cbranch_scc0 L_nounit")
        unit_base()
        k_unit(g, VM(g, 0), polK)
        v_unit(g, VM(g, 0), polV)
        A("s_branch L_top")
        g.lbl("L_nounit")
    if TB:
        A(f"s_cmp_eq_u32 s{sBU}, 0")
        A("s_cbranch_scc1 L_nob")
        g.lbl("L_burst")
        A(f"s_mov_b32 s{sBU}, 0")
        g.lbl("L_bw")
        A("s_sleep 8")
        A(f"s_load_dword s{sT3}, s[{sCNT}:{sCNT+1}], 0 glc")
        A("s_waitcnt lgkmcnt(0)")
        A(f"s_cmp_ge_u32 s{sT3}, {TB}")
        A("s_cbranch_scc1 L_bgo")
        A(f"s_sub_u32 s{sRETRY}, s{sRETRY}, 1")
        A("s_cbranch_scc0 L_bw")
        A(f"s_mov_b32 s{sRETRY}, 0")
        g.lbl("L_bgo")
        A(f"s_mov_b32 s{sLIM}, 0")
        A(f"s_mov_b32 s{sTK}, 1")
        A(f"s_atomic_add s{sTK}, s[{sCNT}:{sCNT+1}], 0 glc")
        A("s_waitcnt lgkmcnt(0)")
        A(f"s_cmp_lt_u32 s{sTK}, {NU}")
        A("s_cbranch_scc0 L_nob")
        unit_base()
        k_unit(g, VM(g, 0), polK)
        v_unit(g, VM(g, 0), polV)
        A("s_branch L_top")
        g.lbl("L_nob")
    wave_reduce(g, "v_add_f32", [vLS], [12], swaps=("v_permlane32_swap_b32",))
    A(f"ds_write_b64 v{vRW}, v[{vM}:{vLS}]")
    A("s_branch L_exit2")

    g.lbl("L_top")
    CE = opt.get("CE", 10)
    A(f"s_waitcnt vmcnt({CE})")
    if opt.get("trace"):
        A("s_waitcnt vmcnt(8)")
        A(f"s_memrealtime s[{sST}:{sST+1}]")
        for i in range(101, 93, -1): A(f"s_mov_b32 s{i}, s{i-1}")
        A("s_waitcnt lgkmcnt(0)")
        A(f"s_sub_u32 s93, s{sST}, s92")
        A(f"s_lshl_b32 s93, s93, 8")
        A(f"s_or_b32 s93, s93, s{sTK}")
    claim()
    A("s_waitcnt vmcnt(8)")
    qk_tile(vKU, UD)
    g.nop(5)
    sel4(g, UD, UD, UD+1, UD+2, UD+3, sQ1, sQ2, sQ3)
    sel4(g, UD+4, UD+4, UD+5, UD+6, UD+7, sQ1, sQ2, sQ3)
    for pat in ("quad_perm:[1,0,3,2]", "quad_perm:[2,3,0,1]"):
        g.nop(1)
        for D in (UD, UD+4):
            A(f"v_add_f32 v{D}, v{D}, v{D} {pat} {DPP}")
    A(f"v_cndmask_b32 v{S1}, v{UD}, v{UD+4}, s[{sR8}:{sR8+1}]")
    rnd1(g, S1)
    A(f"v_max_f32 v{S0}, v{S1}, v{vM}")
    for pat in ("quad_perm:[1,0,3,2]", "row_half_mirror", "row_mirror"):
        g.nop(2)
        A(f"v_max_f32 v{S0}, v{S0}, v{S0} {pat} {DPP}")
    A(f"v_mov_b32 v12, v{S0}")
    g.nop(2)
    A(f"v_permlane32_swap_b32 v{S0}, v12")
    A(f"v_max_f32 v{S0}, v{S0}, v12")
    A(f"v_sub_f32 v{S1}, v{S1}, v{S0}")
    A(f"v_sub_f32 v12, v{vM}, v{S0}")
    A(f"v_cmp_neq_f32 vcc, v{vM}, v{S0}")
    A(f"v_mul_f32 v{S1}, s{sC}, v{S1}")
    A(f"v_mul_f32 v12, s{sC}, v12")
    A(f"v_exp_f32 v{S1}, v{S1}")
    A(f"v_exp_f32 v12, v12")
    A(f"v_mov_b32 v{vM}, v{S0}")
    A(f"v_cvt_pk_bf16_f32 v13, v{S1}, v{S1}")
    A(f"v_mul_f32 v{vLS}, v{vLS}, v12")
    A(f"v_lshlrev_b32 v13, 16, v13")
    A(f"v_sub_f32 v13, v{S1}, v13")
    A(f"v_cvt_pk_bf16_f32 v13, v{S1}, v13")
    A(f"ds_write_b16 v{vPW}, v13 offset:64")
    A(f"ds_write_b16_d16_hi v{vPW}, v13 offset:{256+64}")
    A(f"ds_read_b64 v[{PFU}:{PFU+1}], v{vPR} offset:64")
    A(f"v_fma_f32 v{vLS}, v{S1}, 0.5, v{vLS}")
    A("s_cbranch_vccz L_nors")
    for B in ACCB:
        for e in range(8):
            A(f"v_mul_f32 v{B+4*e}, v{B+4*e}, v12")
    g.lbl("L_nors")
    A("s_waitcnt lgkmcnt(0)")
    A(f"s_cmp_lt_u32 s{sTK}, {NU}")
    A("s_cbranch_scc0 L_last")
    unit_base()
    k_unit(g, VM(g, 0), polK)
    g.lbl("L_pv")
    A("s_waitcnt vmcnt(8)")
    for eta in range(2):
        R = vVB + 16*eta
        for c in range(4):
            T = PT + 4*(c & 3)
            A(f"v_perm_b32 v{T}, v{R+4+c}, v{R+c}, s{sPLO}")
            A(f"v_perm_b32 v{T+1}, v{R+12+c}, v{R+8+c}, s{sPLO}")
            A(f"v_perm_b32 v{T+2}, v{R+4+c}, v{R+c}, s{sPHI}")
            A(f"v_perm_b32 v{T+3}, v{R+12+c}, v{R+8+c}, s{sPHI}")
        for c in range(4):
            T = PT + 4*(c & 3)
            for hh in range(2):
                acc = ACCB[eta] + 4*(2*c + hh)
                A(f"v_mfma_f32_16x16x16_bf16 v[{acc}:{acc+3}], v[{PFU}:{PFU+1}], v[{T+2*hh}:{T+2*hh+1}], v[{acc}:{acc+3}]")
    A(f"s_cmp_lt_u32 s{sTK}, {NU}")
    A("s_cbranch_scc0 L_exit")
    v_unit(g, VM(g, 0), polV)
    A("s_branch L_top")

    g.lbl("L_last")
    if TB:
        A(f"s_cmp_lg_u32 s{sBU}, 0")
        A("s_cbranch_scc1 L_last2")
    wave_reduce(g, "v_add_f32", [vLS], [12], swaps=("v_permlane32_swap_b32",))
    A(f"ds_write_b64 v{vRW}, v[{vM}:{vLS}]")
    stamp(g, 4)
    g.lbl("L_last2")
    A("s_waitcnt vmcnt(0)")
    A("s_branch L_pv")

    g.lbl("L_exit")
    if TB:
        A(f"s_cmp_lg_u32 s{sBU}, 0")
        A("s_cbranch_scc1 L_burst")
    g.lbl("L_exit2")
    stamp(g, 5)
    for eta, OUT in ((0, 88), (1, 92)):
        B = ACCB[eta]
        for i in range(4): A(f"v_permlane32_swap_b32 v{B+4*i}, v{B+4*(4+i)}")
        for i in range(4): A(f"v_add_f32 v{OUT+i}, v{B+4*i}, v{B+4*(4+i)}")
        A(f"ds_write_b128 v{vOLW}, v[{OUT}:{OUT+3}] offset:{512*eta}")
    A(f"s_cmp_lt_u32 s{sWAVE}, 4")
    A("s_waitcnt lgkmcnt(0)")
    A("s_cbranch_scc0 L_mlspin")
    A("s_barrier")
    A("s_branch L_fin")
    g.lbl("L_mls")
    A("s_sleep 2")
    g.lbl("L_mlspin")
    A(f"ds_read_b64 v[32:33], v{vRR}")
    A("s_waitcnt lgkmcnt(0)")
    A(f"v_cmp_eq_u32 vcc, 0, v33")
    retry_branch(g, "L_mls")
    A(f"v_max_f32 v34, v32, v32 quad_perm:[1,0,3,2] {DPP}")
    g.nop(2)
    A(f"v_max_f32 v34, v34, v34 quad_perm:[2,3,0,1] {DPP}")
    g.nop(2)
    A(f"v_max_f32 v34, v34, v34 row_half_mirror {DPP}")
    A(f"v_sub_f32 v32, v32, v34")
    A(f"v_mul_f32 v32, s{sC}, v32")
    A(f"v_exp_f32 v32, v32")
    g.nop(1)
    A(f"v_mul_f32 v33, v33, v32")
    SF = 4
    for pat in ("quad_perm:[1,0,3,2]", "quad_perm:[2,3,0,1]", "row_half_mirror"):
        g.nop(2)
        A(f"v_add_f32 v33, v33, v33 {pat} {DPP}")
    A(f"v_rcp_f32 v36, v33")
    A(f"v_log_f32 v{PUB+2}, v33")
    A(f"v_mul_f32 v32, v32, v36")
    A(f"v_fma_f32 v{PUB+2}, v34, s{sC}, v{PUB+2}")
    for k in range(8): A(f"v_readlane_b32 s{SF+k}, v32, {k}")
    A("s_barrier")
    order = (4, 5, 6, 7, 0, 1, 2, 3)
    for w in order:
        A(f"ds_read_b64 v[{16+2*w}:{17+2*w}], v{vOLR} offset:{2048*w}")
    for n, k in enumerate(order):
        r = f"s[{SF+(k&~1)}:{SF+(k&~1)+1}]"
        d = 36 + 2*(k & 1)
        A(f"s_waitcnt lgkmcnt({7-n})")
        if n < 2:
            m = "op_sel:[0,1] op_sel_hi:[1,1]" if k & 1 else "op_sel_hi:[1,0]"
            A(f"v_pk_mul_f32 v[{d}:{d+1}], v[{16+2*k}:{17+2*k}], {r} {m}")
        else:
            m = "op_sel:[0,1,0] op_sel_hi:[1,1,1]" if k & 1 else "op_sel_hi:[1,0,1]"
            A(f"v_pk_fma_f32 v[{d}:{d+1}], v[{16+2*k}:{17+2*k}], {r}, v[{d}:{d+1}] {m}")
    A(f"v_pk_add_f32 v[{PUB}:{PUB+1}], v[36:37], v[38:39]")
    A(f"buffer_store_dwordx4 v[{PUB}:{PUB+3}], v82, s[{sWS}:{sWS+3}], s{sO_DST} offen sc1")
    stamp(g, 6)
    A("s_branch L_fin")

    g.lbl("L_svc")
    A("v_mov_b32 v255, 0")
    A("v_mov_b32 v239, 0")
    A(f"v_mov_b32 v{vKO}, v{vRO}")
    A(f"v_mov_b32 v{vVO}, v{vSW}")
    A(f"s_and_b32 s{sB_}, s{sWAVE}, 3")
    def job_rows(ptr, stride, colshift, coladd, sb):
        srd(g, sA, ptr, 0 if (opt.get("skip", 0) & (1 if stride == 8192 else 2)) else 448*stride)
        A(f"s_mov_b32 s{sT0}, {stride}")
        A(f"v_mad_u32_u24 v{vDM}, v{vKO}, s{sT0}, v{vVO}")
        A(f"s_mov_b32 s{sSTEP}, {8*stride}")
        A(f"s_mul_i32 s{sSTART}, s{sWAVE}, {56*stride}")
        A(f"s_lshl_b32 s{sT0}, s{SID}, {colshift}")
        A(f"s_add_u32 s{sSTART}, s{sSTART}, s{sT0}")
        if coladd: A(f"s_add_u32 s{sSTART}, s{sSTART}, {coladd}")
        if ptr == P_WQ and JS: A(f"s_sub_u32 s{sSTART}, s{sSTART}, s{sXO}")
        A(f"s_mul_i32 s{sLDS}, s{sWAVE}, 7168")
        if sb: A(f"s_add_u32 s{sLDS}, s{sLDS}, {sb}")
        dma(7, True)
    def job_lin(ptr, size, mul, add, sb):
        srd(g, sA, ptr, 0 if opt.get("skip", 0) & 4 else size)
        A(f"v_mov_b32 v{vDM}, v{vL16}")
        A(f"s_mov_b32 s{sSTEP}, 1024")
        A(f"s_mul_i32 s{sLDS}, s{sWAVE}, 7168")
        A(f"s_mul_i32 s{sSTART}, s{SID}, {mul}")
        A(f"s_add_u32 s{sSTART}, s{sSTART}, s{sLDS}")
        if add: A(f"s_add_u32 s{sSTART}, s{sSTART}, {add}")
        if sb: A(f"s_add_u32 s{sLDS}, s{sLDS}, {sb}")
        dma(7, False)
    job_rows(P_WQ, 8192, 8, 128, SB1)
    consts()
    A(f"s_lshr_b32 s{sT0}, s{sWAVE}, 1")
    A(f"s_mul_i32 s{sT0}, s{sT0}, 28")
    A(f"s_add_u32 s{sT0}, s{sT0}, s{SID}")
    RIS = opt.get("RIS", 2048)
    A(f"s_mul_i32 s{sT0}, s{sT0}, {RIS}")
    A(f"s_and_b32 s{sT1}, s{sWAVE}, 1")
    A(f"s_lshl_b32 s{sT1}, s{sT1}, 10")
    A(f"s_add_u32 s{sT0}, s{sT0}, s{sT1}")
    A(f"s_add_u32 s{sT0}, s{sT0}, {WS_RI}")
    A(f"s_cmp_lt_u32 s{SID}, 28")
    A(f"s_cselect_b32 s{sT0}, s{sT0}, {WS_SIZE}")
    for i in range(4): A(f"v_mov_b32 v{20+i}, -1")
    A(f"buffer_store_dwordx4 v[20:23], v{vL16}, s[{sWS}:{sWS+3}], s{sT0} offen sc1")
    vRW8 = 10
    A(f"v_lshrrev_b32 v{vRW8}, 2, v{vJ}")
    A(f"v_lshl_add_u32 v{vRW8}, v{vGR}, 3, v{vRW8}")
    A("s_waitcnt vmcnt(15)")
    get_tag(g)
    A(f"s_cmp_lt_u32 s{sWAVE}, 4")
    A("s_cbranch_scc0 L_s2")
    for i in range(4): unpack(g, 16+i, 24+2*i, 25+2*i)
    layernorm(g, 24, 32, 24, 8)
    for i in range(0, 8, 2): rnd2(g, 24+i, 25+i, vT)
    g.lbl("L_s2")
    A("s_waitcnt vmcnt(0)")
    A("s_barrier")
    vTA = 14
    A(f"v_lshlrev_b32 v{vTA}, 7, v{vRW8}")
    A(f"v_lshl_add_u32 v{vTA}, v{c4}, 3, v{vTA}")
    A(f"v_bfe_u32 v{vT}, v{vL}, 3, 2")
    A(f"v_xor_b32 v{vT}, s{sB_}, v{vT}")
    A(f"v_lshl_add_u32 v{vTA}, v{vT}, 5, v{vTA}")
    A(f"s_cmp_lt_u32 s{sWAVE}, 4")
    A(f"s_cselect_b32 s{sT0}, 0, {SB1}")
    A(f"v_add_u32 v13, s{sT0}, v{vTA}")
    vXB = 15
    A(f"v_add_u32 v{vXB}, 1024, v{vL16}")
    A(f"v_mov_b32 v{vT}, {WS_SIZE}")
    A(f"v_cndmask_b32 v{vXB}, v{vT}, v{vXB}, s[{sM48}:{sM48+1}]")
    A("s_cbranch_scc1 L_s_h")
    A(f"s_cmp_eq_u32 s{sWAVE}, 7")
    A("s_cbranch_scc0 L_s_fr")
    A(f"s_getreg_b32 s{sT0}, hwreg(HW_REG_XCC_ID)")
    A(f"v_mov_b32 v20, s{sT0}")
    A(f"v_mov_b32 v23, s{sTAG}")
    A(f"s_lshl_b32 s{sT1}, s{SID}, 4")
    A(f"s_add_u32 s{sT1}, s{sT1}, {WS_XC}")
    A("s_mov_b64 exec, 1")
    A(f"buffer_store_dwordx4 v[20:23], v{vL16}, s[{sWS}:{sWS+3}], s{sT1} offen sc1")
    A("s_mov_b64 exec, -1")
    g.lbl("L_s_fr")
    wfrags(13, 128)
    EW = opt.get("EW", 0)
    if EW:
        A("s_waitcnt lgkmcnt(0)")
        A("s_barrier")
        srd(g, sA, P_WO, 4096*896)
        A(f"v_mov_b32 v{vDM}, v{vL16}")
        A(f"s_mov_b32 s{sSTEP}, 1024")
        A(f"s_mul_i32 s{sLDS}, s{sB_}, 14336")
        A(f"s_mul_i32 s{sSTART}, s{SID}, 114688")
        A(f"s_add_u32 s{sSTART}, s{sSTART}, s{sLDS}")
        dma(14, False)
    A("s_branch L_s3")
    g.lbl("L_s_h")
    A(f"s_mul_i32 s{sXO}, s{sB_}, {MB}")
    A(f"s_add_u32 s{sXO}, s{sXO}, {WS_M}")
    def hloads():
        for i, (va, off) in enumerate(((vL16, 0), (vXB, 0), (vL16, 1792), (vXB, 1792))):
            A(f"buffer_load_dwordx4 v[{32+4*i}:{35+4*i}], v{va}, s[{sWS}:{sWS+3}], s{sXO} offen offset:{off} sc1")
    hloads()
    wfrags(13, 128)
    if EW:
        A("s_waitcnt lgkmcnt(0)")
        A("s_barrier")
    A("s_branch L_hwait")
    g.lbl("L_hpoll")
    hloads()
    g.lbl("L_hwait")
    A("s_waitcnt vmcnt(0)")
    tags_ab(g, [35, 43], [39, 47])
    retry_branch(g, "L_hpoll")
    for i, r in enumerate((32, 33, 36, 37)):
        unpack(g, r, 16+2*i, 17+2*i)
        unpack(g, r+8, 48+2*i, 49+2*i)
    for i in range(8): A(f"v_add_f32 v{48+i}, 1.0, v{48+i}")
    for i in range(0, 8, 2): rnd2(g, 48+i, 49+i, vT)
    modulate_pack(g, 24, 48, 16, 24, vT, 8)
    A(f"s_mul_i32 s{sT2}, s{sB_}, {AS}")
    A(f"s_add_u32 s{sT2}, s{sT2}, {L_A}")
    A(f"v_lshl_add_u32 v{vT}, v{vL}, 3, s{sT2}")
    A(f"ds_write_b64 v{vT}, v[24:25]")
    A(f"s_mov_b64 exec, s[{sM48}:{sM48+1}]")
    A(f"ds_write_b64 v{vT}, v[26:27] offset:512")
    A("s_mov_b64 exec, -1")
    g.lbl("L_s3")
    A("s_waitcnt lgkmcnt(0)")
    A("s_barrier")
    A(f"s_lshl_b32 s{sT3}, s{SID}, 9")
    A(f"s_lshl_b32 s{sT0}, s{sWAVE}, 6")
    if JS:
        A(f"s_and_b32 s{sT1}, s{SID}, 1")
        A(f"s_lshl_b32 s{sT1}, s{sT1}, 8")
        A(f"s_xor_b32 s{sT0}, s{sT0}, s{sT1}")
    A(f"s_add_u32 s{sT3}, s{sT3}, s{sT0}")
    A(f"s_add_u32 s{sT3}, s{sT3}, {WS_Q}")
    gemv_pub(L_A, AS, 16384)
    stamp(g, 2)
    A("s_barrier")
    vFA = 13
    WOF, GUF, DNF = 64, 128, 184
    def fa():
        A(f"v_mul_u32_u24 v{vFA}, 896, v{vRW8}")
        A(f"v_lshl_add_u32 v{vFA}, v{c4}, 5, v{vFA}")
        A(f"s_lshl_b32 s{sT0}, s{sWAVE}, 7")
        A(f"v_add_u32 v{vFA}, s{sT0}, v{vFA}")
    def rowfrags(dst, per_tile, ks0):
        for t in range(4):
            for ks in range(2):
                r = dst + per_tile*t + 4*(ks0 + ks)
                A(f"ds_read_b64_tr_b16 v[{r}:{r+1}], v{vFA} offset:{ks*28672 + t*8}")
                A(f"ds_read_b64_tr_b16 v[{r+2}:{r+3}], v{vFA} offset:{ks*28672 + t*8 + 3584}")
            if t & 1: A("s_waitcnt lgkmcnt(4)")
    if not EW: job_lin(P_WO, 4096*896, 114688, 0, SB0)
    job_lin(P_WO, 4096*896, 114688, 57344, SB1)
    fa()
    A("s_waitcnt vmcnt(7)")
    A("s_barrier")
    rowfrags(WOF, 16, 0)
    A("s_waitcnt lgkmcnt(0)")
    A("s_barrier")
    A(f"s_cmp_lt_u32 s{SID}, 28")
    A("s_cbranch_scc1 L_j3")
    A("s_waitcnt vmcnt(0)")
    A("s_branch L_j3b")
    g.lbl("L_j3")
    job_lin(P_WD, 1792*896, 57344, 0, SB0)
    A("s_waitcnt vmcnt(7)")
    g.lbl("L_j3b")
    A("s_barrier")
    A(f"v_add_u32 v{vFA}, {SB1}, v{vFA}")
    rowfrags(WOF, 16, 2)
    A(f"s_cmp_lt_u32 s{SID}, 28")
    A("s_cbranch_scc0 L_p5")
    A("s_waitcnt lgkmcnt(0)")
    A("s_barrier")
    job_rows(P_WU, 3584, 7, 0, SB1)
    A("s_waitcnt vmcnt(7)")
    A("s_barrier")
    A(f"v_subrev_u32 v{vFA}, {SB1}, v{vFA}")
    rowfrags(DNF, 8, 0)
    A("s_waitcnt lgkmcnt(0)")
    A("s_barrier")
    job_rows(P_WG, 3584, 7, 0, SB0)
    A("s_waitcnt vmcnt(0)")
    A("s_barrier")
    A(f"v_lshlrev_b32 v13, 7, v{vRW8}")
    A(f"v_bfe_u32 v{vT}, v{vL}, 3, 2")
    A(f"v_lshlrev_b32 v{vT}, 1, v{vT}")
    A(f"v_xor_b32 v{vT}, s{sWAVE}, v{vT}")
    A(f"v_lshl_add_u32 v13, v{vT}, 4, v13")
    A(f"v_and_b32 v{vT}, 1, v{vL}")
    A(f"v_lshl_add_u32 v13, v{vT}, 3, v13")
    A(f"v_bfe_u32 v{vT}, v{vL}, 1, 1")
    A(f"v_mul_u32_u24 v{vT}, {SB1}, v{vT}")
    A(f"v_add_u32 v13, v13, v{vT}")
    wfrags(13, 128, GUF)
    OC, SH = 240, 244
    GA, GB, XV = 248, 249, 250
    vHW, vAF, vGW, vGRD, vOUT = 251, 252, 253, 254, 255
    vX1, vIX = 239, 238
    A(f"s_cmp_lt_u32 s{sWAVE}, 4")
    A(f"s_cselect_b64 s[{sMH}:{sMH+1}], -1, s[{sM48}:{sM48+1}]")
    A(f"s_cselect_b64 s[{sR8}:{sR8+1}], 0, -1")
    A(f"v_cndmask_b32 v13, v{vL16}, v{vXB}, s[{sR8}:{sR8+1}]")
    A(f"s_mul_i32 s{sXO}, s{sB_}, {MB}")
    A(f"s_add_u32 s{sXO}, s{sXO}, {WS_M + 2*1792}")
    A(f"v_and_b32 v{vT}, 1, v{vGR}")
    A(f"v_lshrrev_b32 v{vX1}, 1, v{vGR}")
    A(f"v_lshl_add_u32 v{vX1}, v{vT}, 1, v{vX1}")
    A(f"v_lshl_add_u32 v{vOUT}, v{vX1}, 2, v{c4}")
    A(f"v_lshlrev_b32 v{vOUT}, 1, v{vOUT}")
    A(f"v_lshlrev_b32 v{vX1}, 4, v{vX1}")
    A(f"s_lshl_b32 s{sT0}, s{SID}, 6")
    A(f"v_add_u32 v{vDM}, s{sT0}, v{vX1}")
    A(f"s_add_u32 s{sT1}, s{sXO}, {3*1792}")
    A(f"s_mul_i32 s{sPX}, s{sB_}, 896")
    A(f"s_lshl_b32 s{sT0}, s{SID}, 5")
    A(f"s_add_u32 s{sPX}, s{sPX}, s{sT0}")
    srd(g, sB, P_X, 3584)
    A(f"buffer_load_ushort v{XV}, v{vOUT}, s[{sB}:{sB+3}], s{sPX} offen")
    if opt.get("OT", 0):
        srd(g, sA, P_OUT, 3584)
        A(f"buffer_load_ushort v{GA}, v{vOUT}, s[{sA}:{sA+3}], s{sPX} offen")
    g.lbl("L_mpoll")
    A(f"buffer_load_dwordx4 v[16:19], v13, s[{sWS}:{sWS+3}], s{sXO} offen offset:1792 sc1")
    A(f"buffer_load_dwordx4 v[20:23], v13, s[{sWS}:{sWS+3}], s{sXO} offen offset:3584 sc1")
    A(f"buffer_load_dwordx4 v[24:27], v{vDM}, s[{sWS}:{sWS+3}], s{sXO} offen sc1")
    A(f"buffer_load_dwordx4 v[28:31], v{vDM}, s[{sWS}:{sWS+3}], s{sT1} offen sc1")
    A("s_waitcnt vmcnt(0)")
    A(f"v_xor_b32 v{vT}, s{sTAG}, v19")
    A(f"v_bitop3_b32 v{vT}, v{vT}, v23, s{sTAG} bitop3:0xf6")
    A(f"v_cndmask_b32 v{vT}, 0, v{vT}, s[{sMH}:{sMH+1}]")
    A(f"v_bitop3_b32 v{vT}, v{vT}, v27, s{sTAG} bitop3:0xf6")
    A(f"v_bitop3_b32 v{vT}, v{vT}, v31, s{sTAG} bitop3:0xf6")
    A(f"v_cmp_ne_u32 vcc, 0, v{vT}")
    retry_branch(g, "L_mpoll")
    for i in range(2):
        unpack(g, 16+i, SH+2*i, SH+2*i+1)
        unpack(g, 20+i, OC+2*i, OC+2*i+1)
    for i in range(4): A(f"v_add_f32 v{OC+i}, 1.0, v{OC+i}")
    for i in range(0, 4, 2): rnd2(g, OC+i, OC+i+1, vT)
    A(f"s_mov_b32 vcc_lo, 0xcccccccc"); A(f"s_mov_b32 vcc_hi, 0xcccccccc")
    A(f"v_cndmask_b32 v{GA}, v24, v25, vcc")
    A(f"v_cndmask_b32 v{GB}, v28, v29, vcc")
    A(f"v_and_b32 v{vT}, 1, v{vL}")
    A(f"v_lshlrev_b32 v{vT}, 4, v{vT}")
    A(f"v_lshrrev_b32 v{GA}, v{vT}, v{GA}")
    A(f"v_lshrrev_b32 v{GB}, v{vT}, v{GB}")
    A(f"v_lshlrev_b32 v{GA}, 16, v{GA}")
    A(f"v_lshlrev_b32 v{GB}, 16, v{GB}")
    A(f"v_lshlrev_b32 v{XV}, 16, v{XV}")
    A(f"s_mul_i32 s{sT0}, s{sB_}, 960")
    A(f"s_lshr_b32 s{sT2}, s{sWAVE}, 2")
    A(f"s_lshl_b32 s{sT2}, s{sT2}, 8")
    A(f"s_add_u32 s{sT0}, s{sT0}, s{sT2}")
    A(f"s_add_u32 s{sT0}, s{sT0}, {L_A}")
    A(f"v_lshl_add_u32 v{vHW}, v{vL}, 2, s{sT0}")
    A(f"v_bfe_u32 v{vT}, v{vL}, 1, 1")
    A(f"v_lshl_add_u32 v{vT}, v{vGR}, 1, v{vT}")
    A(f"v_mul_u32_u24 v{vGW}, 96, v{vT}")
    A(f"v_and_b32 v{vT}, 12, v{vJ}")
    A(f"v_add_u32 v{vGW}, v{vGW}, v{vT}")
    A(f"v_and_b32 v{vT}, 1, v{vL}")
    A(f"v_lshl_add_u32 v{vGW}, v{vT}, 1, v{vGW}")
    A(f"s_lshl_b32 s{sT0}, s{sWAVE}, 3")
    A(f"s_add_u32 s{sT0}, s{sT0}, {L_G}")
    A(f"v_add_u32 v{vGW}, s{sT0}, v{vGW}")
    A(f"s_mul_i32 s{sXO}, s{sB_}, 1792")
    A(f"s_add_u32 s{sXO}, s{sXO}, {WS_X1}")
    A(f"s_mul_i32 s{sRI}, s{sB_}, 28")
    A(f"s_add_u32 s{sRI}, s{sRI}, s{SID}")
    A(f"s_mul_i32 s{sRI}, s{sRI}, {RIS}")
    A(f"s_add_u32 s{sRI}, s{sRI}, {WS_RI}")
    for i in range(2):
        A(f"buffer_load_dwordx4 v[16:19], v{vL16}, s[{sWS}:{sWS+3}], s{sRI} offen offset:{1024*i} sc1")
    A(f"buffer_load_dwordx4 v[16:19], v{vL16}, s[{sWS}:{sWS+3}], s{sXO} offen sc1")
    A(f"buffer_load_dwordx4 v[16:19], v{vXB}, s[{sWS}:{sWS+3}], s{sXO} offen sc1")
    g.lbl("L_p5")
    A(f"v_and_b32 v13, 0x1f0, v{vL16}")
    A(f"s_mov_b32 s{sT1}, {WS_XC}")
    g.lbl("L_xpoll")
    A(f"buffer_load_dwordx4 v[16:19], v13, s[{sWS}:{sWS+3}], s{sT1} offen sc1")
    A("s_waitcnt vmcnt(0)")
    check_tags(g, [19], "L_xpoll")
    A(f"s_getreg_b32 s{sT0}, hwreg(HW_REG_XCC_ID)")
    A(f"v_cmp_ne_u32 vcc, s{sT0}, v16")
    A(f"s_cmp_eq_u64 vcc, 0")
    A(f"s_cselect_b32 s{sFAST}, {0 if opt.get('nofast') else 1}, 0")
    nst = [0]
    def xstore(ins):
        nst[0] += 1
        k = nst[0]
        A(f"s_cmp_eq_u32 s{sFAST}, 0")
        A(f"s_cbranch_scc1 L_xs{k}")
        A(ins + opt.get("polX", ""))
        A(f"s_branch L_xd{k}")
        g.lbl(f"L_xs{k}")
        A(ins + " sc1")
        g.lbl(f"L_xd{k}")
    vZO, vOBW, vOBR = vKO, vVO, vDM
    A(f"v_lshrrev_b32 v{vT}, 2, v{vJ}")
    A(f"v_mul_u32_u24 v{vZO}, 28, v{vGR}")
    A(f"v_add_u32 v{vZO}, v{vZO}, v{vT}")
    A(f"v_mul_u32_u24 v{vZO}, {RIS}, v{vZO}")
    A(f"v_lshl_add_u32 v{vZO}, v{c4}, 4, v{vZO}")
    A(f"s_mul_i32 s{sY_DST}, s{sWAVE}, {4*RIS}")
    A(f"s_lshl_b32 s{sT0}, s{SID}, 6")
    A(f"s_add_u32 s{sY_DST}, s{sY_DST}, s{sT0}")
    A(f"s_add_u32 s{sY_DST}, s{sY_DST}, {WS_RI}")
    A(f"v_and_b32 v13, 1, v{vL}")
    A(f"v_lshl_add_u32 v{vT}, v{vT}, 1, v13")
    A(f"v_lshlrev_b32 v10, 4, v{vGR}")
    for reg, stride, base in ((vOBR, 160, L_OB), (vAF, 480, L_A), (vGRD, 96, L_G)):
        A(f"v_mul_u32_u24 v{reg}, {stride}, v{vT}")
        A(f"v_add_u32 v{reg}, v{reg}, v10")
        A(f"v_add_u32 v{reg}, {base}, v{reg}")
    A(f"v_mul_u32_u24 v{vIX}, 0xaaaa, v13")
    A(f"v_add_u32 v{vIX}, 0x4444, v{vIX}")
    A(f"s_mul_i32 s{sT0}, s{sB_}, 320")
    A(f"s_lshr_b32 s{sT2}, s{sWAVE}, 2")
    A(f"s_lshl_b32 s{sT1}, s{sT2}, 6")
    A(f"s_add_u32 s{sT0}, s{sT0}, s{sT1}")
    A(f"s_add_u32 s{sT0}, s{sT0}, {L_OB}")
    A(f"v_mul_u32_u24 v{vOBW}, 160, v13")
    A(f"v_bfe_u32 v{vT}, v{vL}, 1, 4")
    A(f"v_lshl_add_u32 v{vOBW}, v{vT}, 2, v{vOBW}")
    A(f"v_add_u32 v{vOBW}, s{sT0}, v{vOBW}")
    YD, GD = 216, 232
    for i in range(20): A(f"v_mov_b32 v{YD+i}, 0")
    A(f"s_lshl_b32 s{sO_IN}, s{sB_}, 18")
    A(f"s_lshl_b32 s{sT1}, s{SID}, 13")
    A(f"s_add_u32 s{sO_IN}, s{sO_IN}, s{sT1}")
    A(f"s_lshl_b32 s{sT1}, s{sT2}, 12")
    A(f"s_add_u32 s{sO_IN}, s{sO_IN}, s{sT1}")
    A(f"s_add_u32 s{sO_IN}, s{sO_IN}, {WS_O}")
    A(f"v_mov_b32 v28, 0"); A(f"v_mov_b32 v29, 0")
    A(f"v_mov_b32 v30, 0xff7fffff"); A(f"v_mov_b32 v31, s{sTAG}")
    A("s_waitcnt lgkmcnt(0)")
    stamp(g, 9)
    if opt.get("SEL", 1):
        MK = (4, 6, 8, 10)
        for m in MK: A(f"s_mov_b64 s[{m}:{m+1}], -1")
        A(f"s_mov_b32 s{MK[3]+1}, 0")
        g.lbl("L_opoll")
        for i, m in enumerate(MK):
            A(f"s_mov_b64 exec, s[{m}:{m+1}]")
            A(f"s_cbranch_execz L_os{i}")
            A(f"buffer_load_dwordx4 v[{16+4*i}:{19+4*i}], v{vL16}, s[{sWS}:{sWS+3}], s{sO_IN} offen offset:{1024*i} sc1")
            g.lbl(f"L_os{i}")
        A("s_mov_b64 exec, -1")
        A("s_waitcnt vmcnt(0)")
        for i, m in enumerate(MK):
            A(f"v_cmp_ne_u32 s[{m}:{m+1}], s{sTAG}, v{19+4*i}")
        A(f"s_or_b64 vcc, s[{MK[0]}:{MK[0]+1}], s[{MK[1]}:{MK[1]+1}]")
        A(f"s_or_b64 vcc, vcc, s[{MK[2]}:{MK[2]+1}]")
        A(f"s_or_b64 vcc, vcc, s[{MK[3]}:{MK[3]+1}]")
        retry_branch(g, "L_opoll")
    else:
        g.lbl("L_opoll")
        for i in range(3):
            A(f"buffer_load_dwordx4 v[{16+4*i}:{19+4*i}], v{vL16}, s[{sWS}:{sWS+3}], s{sO_IN} offen offset:{1024*i} sc1")
        A("s_mov_b32 exec_hi, 0")
        A(f"buffer_load_dwordx4 v[28:31], v{vL16}, s[{sWS}:{sWS+3}], s{sO_IN} offen offset:3072 sc1")
        A("s_mov_b32 exec_hi, -1")
        A("s_waitcnt vmcnt(0)")
        check_tags(g, [19, 23, 27, 31], "L_opoll")
    tstamp(g, 1)
    A(f"v_max3_f32 v32, v18, v22, v26")
    A(f"v_max_f32 v32, v32, v30")
    A(f"v_mov_b32 v33, v32")
    g.nop(2)
    A(f"v_permlane32_swap_b32 v32, v33")
    A(f"v_max_f32 v32, v32, v33")
    for i in range(4): A(f"v_sub_f32 v{18+4*i}, v{18+4*i}, v32")
    for i in range(4): A(f"v_exp_f32 v{18+4*i}, v{18+4*i}")
    A(f"v_pk_mul_f32 v[34:35], v[16:17], v[18:19] op_sel_hi:[1,0]")
    A(f"v_add_f32 v36, v18, v22")
    for i in range(1, 4):
        A(f"v_pk_fma_f32 v[34:35], v[{16+4*i}:{17+4*i}], v[{18+4*i}:{19+4*i}], v[34:35] op_sel_hi:[1,0,1]")
    A(f"v_add_f32 v37, v26, v30")
    A(f"v_add_f32 v36, v36, v37")
    A(f"v_mov_b32 v38, v34"); A(f"v_mov_b32 v39, v35"); A(f"v_mov_b32 v37, v36")
    g.nop(1)
    A(f"v_permlane32_swap_b32 v34, v38")
    A(f"v_permlane32_swap_b32 v35, v39")
    A(f"v_permlane32_swap_b32 v36, v37")
    A(f"v_pk_add_f32 v[34:35], v[34:35], v[38:39]")
    A(f"v_add_f32 v36, v36, v37")
    A(f"v_rcp_f32 v36, v36")
    g.nop(1)
    A(f"v_pk_mul_f32 v[34:35], v[34:35], v[36:37] op_sel_hi:[1,0]")
    A(f"v_cvt_pk_bf16_f32 v34, v34, v35")
    A(f"ds_write_b32 v{vOBW}, v34")
    A("s_waitcnt lgkmcnt(0)")
    A("s_barrier")
    def proj(addr, nks, frags, per_tile, off, O=40):
        for ks in range(nks):
            A(f"ds_read_b128 v[{48+4*ks}:{51+4*ks}], v{addr} offset:{64*ks}")
        for ks in range(nks):
            A(f"s_waitcnt lgkmcnt({nks-1-ks})")
            for t in range(4):
                r = frags + per_tile*t + 8*ks
                A(f"v_smfmac_f32_16x16x64_bf16 v[{YD+4*t}:{YD+4*t+3}], v[{48+4*ks}:{51+4*ks}], v[{r}:{r+7}], v{vIX}")
        g.nop(5)
        for t in range(4):
            A(f"v_add_f32 v{O+t}, v{YD+4*t}, v{YD+4*t+1}")
        for i in range(4): A(f"v_or_b32 v{O+i}, 1, v{O+i}" if off else f"v_and_b32 v{O+i}, -2, v{O+i}")
        xstore(f"buffer_store_dwordx4 v[{O}:{O+3}], v{vZO}, s[{sWS}:{sWS+3}], s{sY_DST} offen")
    A(f"s_cmp_eq_u32 s{sWAVE}, 7")
    A("s_cbranch_scc1 L_t2")
    proj(vOBR, 2, WOF, 16, 0)
    for t in range(4):
        A(f"v_mov_b32 v{YD+4*t}, 0"); A(f"v_mov_b32 v{YD+4*t+1}, 0")
    stamp(g, 7)
    g.lbl("L_t2")
    A(f"s_cmp_lt_u32 s{SID}, 28")
    A(f"s_cbranch_scc0 {'L_wb1' if opt.get('WB', 0) & 1 else 'L_fin'}")
    def reduce(lab, z, gate, st):
        if z:
            for i in range(4): A(f"v_mov_b32 v{20+i}, 1")
        if opt.get("SR", 0):
            A("s_mov_b64 s[4:5], -1")
            A("s_mov_b64 s[6:7], -1")
            if z: A("s_mov_b32 s7, 0xffff")
            g.lbl(lab)
            A("s_mov_b64 exec, s[4:5]")
            A(f"s_cbranch_execz {lab}_a")
            A(f"buffer_load_dwordx4 v[24:27], v{vL16}, s[{sWS}:{sWS+3}], s{sRI} offen sc1")
            g.lbl(lab + "_a")
            A("s_mov_b64 exec, s[6:7]")
            A(f"s_cbranch_execz {lab}_b")
            A(f"buffer_load_dwordx4 v[20:23], v{vL16}, s[{sWS}:{sWS+3}], s{sRI} offen offset:1024 sc1")
            g.lbl(lab + "_b")
            A("s_mov_b64 exec, -1")
            A("s_waitcnt vmcnt(0)")
            bo = "0x80" if z else "0xfe"
            bf = "0x80" if z else "0xa8"
            A(f"v_bitop3_b32 v{vT}, v24, v25, v26 bitop3:{bo}")
            A(f"v_bitop3_b32 v10, v20, v21, v22 bitop3:{bo}")
            A(f"v_bitop3_b32 v{vT}, v{vT}, v27, 1 bitop3:{bf}")
            A(f"v_bitop3_b32 v10, v10, v23, 1 bitop3:{bf}")
            A(f"v_cmp_ne_u32 s[4:5], {1 if z else 0}, v{vT}")
            A(f"v_cmp_ne_u32 s[6:7], {1 if z else 0}, v10")
            A("s_or_b64 vcc, s[4:5], s[6:7]")
        else:
            g.lbl(lab)
            A(f"buffer_load_dwordx4 v[24:27], v{vL16}, s[{sWS}:{sWS+3}], s{sRI} offen sc1")
            if z: A("s_mov_b32 exec_hi, 0xffff")
            A(f"buffer_load_dwordx4 v[20:23], v{vL16}, s[{sWS}:{sWS+3}], s{sRI} offen offset:1024 sc1")
            if z: A("s_mov_b32 exec_hi, -1")
            A("s_waitcnt vmcnt(0)")
            bo = "0x80" if z else "0xfe"
            A(f"v_bitop3_b32 v{vT}, v24, v25, v26 bitop3:{bo}")
            A(f"v_bitop3_b32 v10, v27, v20, v21 bitop3:{bo}")
            A(f"v_bitop3_b32 v{vT}, v{vT}, v22, v23 bitop3:{bo}")
            A(f"v_bitop3_b32 v{vT}, v{vT}, v10, 1 bitop3:{'0x80' if z else '0xa8'}")
            A(f"v_cmp_ne_u32 vcc, {1 if z else 0}, v{vT}")
        A(pk("add", 16, 24, 20)); A(pk("add", 18, 26, 22))
        retry_branch(g, lab)
        tstamp(g, st)
        g.nop(1)
        A(f"v_permlane32_swap_b32 v16, v17")
        A(f"v_permlane32_swap_b32 v18, v19")
        A(f"v_add_f32 v16, v16, v17")
        A(f"v_add_f32 v18, v18, v19")
        g.nop(2)
        A(f"v_permlane16_swap_b32 v16, v18")
        A(f"v_add_f32 v16, v16, v18")
        g.nop(2)
        A(f"v_add_f32 v16, v16, v16 row_ror:4 {DPP}")
        g.nop(2)
        A(f"v_add_f32 v16, v16, v16 row_ror:8 {DPP}")
        rnd1(g, 16)
        A(f"v_mul_f32 v16, v16, v{gate}")
        rnd1(g, 16)
        A(f"v_add_f32 v{XV}, v{XV}, v16")
    XB = opt.get("XB", 1)
    RO = opt.get("RO", 0)
    A(f"s_cmp_lt_u32 s{sWAVE}, 4")
    A(f"s_cbranch_scc{0 if RO else 1} {'L_x1b' if XB else 'L_x1poll'}")
    A(f"v_mov_b32 v47, s{sTAG}")
    A(f"v_mov_b32 v46, 0")
    A(f"s_lshl_b32 s{sT2}, s{sPX}, 1")
    A(f"s_add_u32 s{sT2}, s{sT2}, {WS_X1}")
    reduce("L_ypoll", 0, GA, 5)
    g.nop(2)
    A(f"v_mov_b32 v17, v{XV} quad_perm:[1,1,3,3] {DPP}")
    A(f"v_cvt_pk_bf16_f32 v44, v{XV}, v17")
    g.nop(2)
    A(f"v_mov_b32 v45, v44 quad_perm:[2,2,2,2] {DPP}")
    A("s_mov_b32 exec_lo, 0x00010001"); A("s_mov_b32 exec_hi, 0x00010001")
    xstore(f"buffer_store_dwordx4 v[44:47], v{vX1}, s[{sWS}:{sWS+3}], s{sT2} offen")
    A("s_mov_b64 exec, -1")
    rnd1(g, XV)
    stamp(g, 6)
    if XB:
        g.lbl("L_x1b")
        A("s_barrier")
    g.lbl("L_x1poll")
    A(f"buffer_load_dwordx4 v[16:19], v{vL16}, s[{sWS}:{sWS+3}], s{sXO} offen sc1")
    A(f"buffer_load_dwordx4 v[20:23], v{vXB}, s[{sWS}:{sWS+3}], s{sXO} offen sc1")
    A("s_waitcnt vmcnt(0)")
    tags_ab(g, [19], [23])
    retry_branch(g, "L_x1poll")
    tstamp(g, 2)
    if opt.get("YC", 0):
        A(f"s_lshr_b32 s{sT0}, s{sWAVE}, 2")
        A(f"s_lshl_b32 s{sT0}, s{sT0}, 10")
        A(f"s_add_u32 s{sT0}, s{sT0}, s{sRI}")
        A(f"buffer_store_dwordx4 v[64:67], v{vL16}, s[{sWS}:{sWS+3}], s{sT0} offen sc1")
    for i, r in enumerate((16, 17, 20, 21)):
        unpack(g, r, 24+2*i, 25+2*i)
    E = 44
    layernorm(g, 24, 32, E, 4, presel=[f"v_cndmask_b32 v{E+i}, v{24+i}, v{28+i}, s[{sR8}:{sR8+1}]" for i in range(4)])
    rnd2(g, E, E+1, vT); rnd2(g, E+2, E+3, vT)
    modulate_pack(g, E, OC, SH, E, vT, 4)
    A(f"s_mov_b64 exec, s[{sMH}:{sMH+1}]")
    A(f"ds_write2_b32 v{vHW}, v{E}, v{E+1} offset0:0 offset1:120")
    A("s_mov_b64 exec, -1")
    A("s_waitcnt lgkmcnt(0)")
    A("s_barrier")
    tstamp(g, 3)
    for ks in range(7):
        A(f"ds_read_b128 v[{64+4*ks}:{67+4*ks}], v{vAF} offset:{64*ks}")
    for ks in range(7):
        A(f"s_waitcnt lgkmcnt({6-ks})")
        A(f"v_smfmac_f32_16x16x64_bf16 v[{GD}:{GD+3}], v[{64+4*ks}:{67+4*ks}], v[{GUF+8*ks}:{GUF+7+8*ks}], v{vIX}")
    kk = -2.0 * math.sqrt(2.0/math.pi) * LOG2E
    A(f"v_mov_b32 v24, {f2u(kk*0.044715):#x}")
    A(f"v_mov_b32 v25, {f2u(kk):#x}")
    g.nop(6)
    A(f"v_add_f32 v20, v{GD}, v{GD+1}")
    rnd1(g, 20)
    A(f"v_mul_f32 v21, v20, v20")
    A(f"v_fma_f32 v21, v21, v24, v25")
    A(f"v_mul_f32 v21, v21, v20")
    A(f"v_exp_f32 v21, v21")
    A(f"v_mov_b32 v23, v20 row_ror:8 {DPP}")
    A(f"v_add_f32 v21, 1.0, v21")
    A(f"v_rcp_f32 v21, v21")
    A(f"s_mov_b32 exec_lo, 0x00ff00ff")
    A(f"s_mov_b32 exec_hi, 0x00ff00ff")
    A(f"v_mul_f32 v21, v21, v20")
    rnd1(g, 21)
    A(f"v_mul_f32 v21, v21, v23")
    A(f"v_cvt_pk_bf16_f32 v21, v21, v21")
    A(f"ds_write_b16 v{vGW}, v21")
    A("s_mov_b64 exec, -1")
    A("s_waitcnt lgkmcnt(0)")
    A("s_barrier")
    tstamp(g, 4)
    A(f"s_cmp_eq_u32 s{sWAVE}, 7")
    A(f"s_cbranch_scc1 {'L_fin' if RO else 'L_t4'}")
    proj(vGRD, 1, DNF, 8, 2048)
    stamp(g, 8)
    A(f"s_cmp_lt_u32 s{sWAVE}, 4")
    A(f"s_cbranch_scc{0 if RO else 1} L_fin")
    g.lbl("L_t4")
    srd(g, sA, P_OUT, 3584)
    reduce("L_zpoll", 1, GB, 7)
    if "cal" in opt:
        A(f"s_add_u32 s{sT0}, s{92+opt['cal']}, 6000")
        g.lbl("L_cal")
        A(f"s_memrealtime s[{sST}:{sST+1}]")
        A("s_waitcnt lgkmcnt(0)")
        A(f"s_sub_u32 s{sT1}, s{sST}, s{sT0}")
        A(f"s_cmp_lt_i32 s{sT1}, 0")
        A("s_cbranch_scc1 L_cal")
    A(f"v_cvt_pk_bf16_f32 v16, v{XV}, v{XV}")
    A("s_mov_b32 exec_lo, 0x000f000f"); A("s_mov_b32 exec_hi, 0x000f000f")
    A(f"buffer_store_short v16, v{vOUT}, s[{sA}:{sA+3}], s{sPX} offen{opt.get('polO', '')}")
    stamp(g, 9)
    A(f"s_cmp_eq_u32 s{sPX}, 0")
    A("s_cbranch_scc0 L_fin")
    A("s_mov_b64 exec, 1")
    A(f"v_mov_b32 v16, s{sTAG}")
    A(f"buffer_store_dword v16, v{vL16}, s[{sWS}:{sWS+3}], 0 offen sc1")
    if opt.get("WB", 0):
        A("s_branch L_fin")
        g.lbl("L_wb1")
        A("s_sleep 16")
        g.lbl("L_wb2")
        A(f"s_cmp_eq_u32 s{sWAVE}, 0")
        A("s_cbranch_scc0 L_fin")
        A(f"s_and_b32 s{sT0}, s{SID}, {opt.get('WBM', 3)}")
        A("s_cbranch_scc1 L_fin")
        A("s_waitcnt vmcnt(0)")
        A("buffer_wbl2 sc1")
        A("s_waitcnt vmcnt(0)")
    g.lbl("L_fin")
    flush_stamps(g, NSTAMP)
    g.lbl("L_end")
    A("s_endpgm")
    g.L += ['.section .rodata,"a"', ".p2align 6", f".amdhsa_kernel {NAME}_kernel",
            "  .amdhsa_next_free_vgpr 256", "  .amdhsa_next_free_sgpr 102", "  .amdhsa_accum_offset 256",
            "  .amdhsa_group_segment_fixed_size 0", "  .amdhsa_kernarg_size 112", "  .amdhsa_user_sgpr_count 2",
            "  .amdhsa_user_sgpr_kernarg_segment_ptr 1", "  .amdhsa_system_sgpr_workgroup_id_x 1", ".end_amdhsa_kernel"]
    return "\n".join(g.L) + "\n"

if __name__ == "__main__":
    out = sys.argv[1] if len(sys.argv) > 1 else f"cdna_kernels/{NAME}.s"
    opt = {}
    for a in sys.argv[2:]:
        k, val = a.split("=", 1)
        try: val = int(val)
        except ValueError: val = (" " + val.replace("+", " ")) if val else ""
        opt[k] = val
    open(out, "w").write(build(opt))
```
